```python
import torch

def _softmax(x, axis=-1):
    return torch.softmax(x, dim=axis)
def _gelu(x):
    return torch.nn.functional.gelu(x, approximate="tanh")
def _silu(x):
    return torch.nn.functional.silu(x)
def _sigmoid(x):
    return torch.sigmoid(x)
def _layernorm(x, axis=-1, eps=1e-5):
    m = x.mean(dim=axis, keepdim=True)
    v = x.var(dim=axis, keepdim=True, unbiased=False)
    return (x - m) / torch.sqrt(v + eps)
def _scatter_add(tgt, idx, src, axis=0):
    return tgt.clone().index_add_(axis, idx, src)
def _segment_sum(src, seg, n):
    out = torch.zeros((n,) + src.shape[1:], dtype=src.dtype)
    return out.index_add_(0, seg, src)
def _pad(x, pw):
    flat = tuple(v for pair in reversed(pw) for v in pair)
    return torch.nn.functional.pad(x, flat)

kernel_name = 'gated_mix__softmax_full_mha__mixer_token_mlp__prompt'

def setup_inputs():

    _w = (lambda a: (lambda t: t.to(torch.bfloat16) if t.is_floating_point() else t)(torch.as_tensor(a)))
    def _A_setup():
        B, S, D = 1, 2048, 576
        return {
            "x": _w((lambda *s: torch.randn(*s, dtype=torch.bfloat16) * 0.05)(B, S, D)),
            "wqkv": _w((lambda *s: torch.randn(*s, dtype=torch.bfloat16) * 0.8)(D, 3 * D)),
            "wo": _w((lambda *s: torch.randn(*s, dtype=torch.bfloat16) * 0.05)(D, D)),
        }
    _A_in = _A_setup()

    def _B_setup():
        B, S, D, F = 1, 2048, 576, 4608
        return {
            "x": _w((lambda *s: torch.randn(*s, dtype=torch.bfloat16) * 0.05)(B, S, D)),
            "w1": _w((lambda *s: torch.randn(*s, dtype=torch.bfloat16) * 0.8)(S, F) * (S ** -0.5)),
            "b1": _w((lambda *s: torch.randn(*s, dtype=torch.bfloat16) * 12.8)(F) * 0.02),
            "w2": _w((lambda *s: torch.randn(*s, dtype=torch.bfloat16) * 0.1)(F, S) * (F ** -0.5)),
            "b2": _w((lambda *s: torch.randn(*s, dtype=torch.bfloat16) * 1.6)(S) * 0.02),
        }
    _B_in = _B_setup()

    return {
        "A_x": _A_in["x"],
        "A_wqkv": _A_in["wqkv"],
        "A_wo": _A_in["wo"],
        "B_x": _B_in["x"],
        "B_w1": _B_in["w1"],
        "B_b1": _B_in["b1"],
        "B_w2": _B_in["w2"],
        "B_b2": _B_in["b2"],
        "gate_w": _w((lambda *s: torch.randn(*s, dtype=torch.bfloat16) * 0.05)(576) * 16.0),
    }

def reference(A_x, A_wqkv, A_wo, B_x, B_w1, B_b1, B_w2, B_b2, gate_w):
    def _A_ref(x, wqkv, wo):
        B, S, D = x.shape
        H = 32; Dh = D // H
        qkv = (lambda x, *d: x.permute(*d))((x @ wqkv).reshape(B, S, 3, H, Dh), 2, 0, 3, 1, 4)
        q, k, v = qkv[0], qkv[1], qkv[2]
        scale = Dh ** -0.5
        scores = torch.einsum("bhqd,bhkd->bhqk", q, k) * scale
        p = _softmax(scores, axis=-1)
        o = torch.einsum("bhqk,bhkd->bhqd", p, v)
        return (lambda x, *d: x.permute(*d))(o, 0, 2, 1, 3).reshape(B, S, D) @ wo

    def _B_ref(x, w1, b1, w2, b2):
        B, S, D = x.shape
        h = _layernorm(x, axis=-1)
        u = torch.einsum("bsd,sf->bdf", h, w1) + b1
        u = _gelu(u)
        y = torch.einsum("bdf,fs->bds", u, w2) + b2
        return (lambda x, *d: x.permute(*d))(y, 0, 2, 1)

    x = A_x
    g = _sigmoid((x * gate_w).sum(-1, keepdims=True))
    a = _A_ref(x, A_wqkv, A_wo)
    b = _B_ref(x, B_w1, B_b1, B_w2, B_b2)
    return g * a + (1 - g) * b
```

```python
S, D, H, DH, F = 2048, 576, 32, 18, 4608
NAME = "gated_mix__softmax_full_mha__mixer_token_mlp__prompt"

WS_SIZE = 268435456
HT_OFF  = 0
HT_SZ   = 128*18*1024
U_OFF   = HT_OFF + HT_SZ
U_SZ    = 288*18*1024
QR_OFF  = U_OFF + U_SZ
QR_RS   = 1152
QR_SZ   = 32*64*QR_RS
KV_OFF  = QR_OFF + QR_SZ
KV_RS   = 2304
KV_SZ   = 32*64*KV_RS
O_OFF   = KV_OFF + KV_SZ
O_SZ    = 64*36*1024
WOF_OFF = O_OFF + O_SZ
WOF_SZ  = 36*18*1024
G_OFF   = WOF_OFF + WOF_SZ
G_SZ    = 8192
YP_OFF  = G_OFF + G_SZ
YP_SZ   = 18*64*4096
YPB_SZ  = 18*64*2048
CNT_OFF = YP_OFF + 5*YPB_SZ
CNT_N   = 256
PP_OFF  = CNT_OFF + (1 << 20)
STAMP_OFF = 128 << 20

P_X, P_WQKV, P_WO, P_BX, P_W1, P_B1, P_W2, P_B2 = 16, 18, 20, 22, 24, 26, 28, 30
P_GW, P_OUT, P_DBG, P_WS = 32, 34, 36, 38

import struct
def f32bits(x):
    return struct.unpack("<I", struct.pack("<f", x))[0]

class Asm:
    def __init__(self):
        self.lines = []
        self.uid = 0
    def __call__(self, s):
        for l in s.split("\n"):
            l = l.strip()
            if l:
                self.lines.append("    " + l)
    def label(self, l):
        self.lines.append(l + ":")
    def raw(self, s):
        self.lines.append(s)
    def comment(self, s):
        self.lines.append("    ; " + s)
    def newlabel(self, base):
        self.uid += 1
        return f"L_{base}_{self.uid}"
    def text(self):
        return "\n".join(self.lines) + "\n"
    stamp = False
    kidx = 0
    def stamp_begin(self):
        if self.stamp:
            self("s_memrealtime s[88:89]")
            self("s_memtime s[12:13]")
            for i in range(8): self(f"s_mov_b32 s{4+i}, 0")
            for i in range(8): self(f"s_mov_b32 s{93+i}, 0")
    def stamp_mid(self, slot):
        if self.stamp is True and slot is not None and slot < 8:
            self("s_memrealtime s[90:91]")
            self("s_memtime s[14:15]")
            self("s_waitcnt lgkmcnt(0)")
            self(f"s_mov_b32 s{4+slot}, s90")
            self(f"s_sub_u32 s{93+slot}, s14, s12")
    def end(self):
        if self.stamp:
            self("s_waitcnt vmcnt(0) lgkmcnt(0)")
            self("s_memrealtime s[90:91]")
            self("s_memtime s[14:15]")
            self("s_waitcnt lgkmcnt(0)")
            self("s_sub_u32 s14, s14, s12")
            self("v_mov_b32 v0, s88")
            self("v_mov_b32 v1, s90")
            self("v_mov_b32 v2, s14")
            for i in range(8): self(f"v_mov_b32 v{4+i}, s{4+i}")
            for i in range(8): self(f"v_mov_b32 v{12+i}, s{93+i}")
            self("s_lshl_b32 s92, s2, 3")
            self("s_add_u32 s92, s92, s52")
            self("s_lshl_b32 s92, s92, 7")
            self(f"s_add_u32 s92, s92, {STAMP_OFF + self.kidx*(1 << 20)}")
            self("v_mov_b32 v20, 0")
            for i in range(5):
                self(f"buffer_store_dwordx4 v[{4*i}:{4*i+3}], v20, s[48:51], s92 offen offset:{16*i}")
        self("s_endpgm")
    def load_kernargs(self):
        self.stamp_begin()
        self("s_load_dwordx16 s[16:31], s[0:1], 0")
        self("s_load_dwordx8 s[32:39], s[0:1], 64")
    def srd(self, d, p, size):
        self(f"s_mov_b32 s{d}, s{p}")
        self(f"s_mov_b32 s{d+1}, s{p+1}")
        self(f"s_mov_b32 s{d+2}, {size}")
        self(f"s_mov_b32 s{d+3}, 0x00020000")
    def kernel_begin(self, name):
        self.raw(f".globl {name}")
        self.raw(".p2align 8")
        self.raw(f".type {name},@function")
        self.label(name)

def vr(b, n=1):
    return f"v{b}" if n == 1 else f"v[{b}:{b+n-1}]"
def sr(b, n=1):
    return f"s{b}" if n == 1 else f"s[{b}:{b+n-1}]"

def descriptor(name, nvgpr, accum=None, nsgpr=102):
    if accum is None:
        accum = min(256, (nvgpr + 3)//4*4)
    return f""".amdhsa_kernel {name}
  .amdhsa_next_free_vgpr {nvgpr}
  .amdhsa_next_free_sgpr {nsgpr}
  .amdhsa_accum_offset {accum}
  .amdhsa_group_segment_fixed_size 0
  .amdhsa_kernarg_size 96
  .amdhsa_user_sgpr_count 2
  .amdhsa_user_sgpr_kernarg_segment_ptr 1
  .amdhsa_system_sgpr_workgroup_id_x 1
.end_amdhsa_kernel
"""

class LdsSched:
    def __init__(self, a, pending=()):
        self.a = a
        self.q = list(pending)
    def read(self, rid, text):
        self.a(text)
        self.q.append(rid)
        assert len(self.q) <= 15, "lgkmcnt overflow"
    def need(self, ids, extra=""):
        idx = [i for i, r in enumerate(self.q) if r in ids]
        if idx:
            n = len(self.q) - 1 - max(idx)
            self.a(f"s_waitcnt {extra}lgkmcnt({n})")
            self.q = self.q[max(idx)+1:]
        elif extra:
            self.a(f"s_waitcnt {extra}")
    def drain(self, extra=""):
        self.a(f"s_waitcnt {extra}lgkmcnt(0)")
        self.q = []
```

```python
from common import *

ATTN_GRID = 256
CH = 16*KV_RS
ATTN_LDS = 2*CH + 64

VK0, VK1, VV, VDM = 1, 2, 3, 4
Q0 = [8, 12]; Q1 = [16, 18]
K0 = [20, 24]; K1 = [28, 30]
V = [32, 40]
P = [48, 56]
Sx = [64, 80]
O = [96, 112]
TMP = 128
NV_ATTN = 144
S_KV, S_C, S_ATT, S_VM = 54, 55, 56, 58

def dma_chunk(a, sbuf, soff):
    for i in range(9):
        a(f"s_add_u32 m0, s{sbuf}, {i*4096}")
        a(f"s_add_u32 s60, s{soff}, {i*4096}")
        a(f"buffer_load_dwordx4 v{VDM}, s[48:51], s60 offen sc1 lds")

def qk(a, which, aq, kb):
    s = vr(Sx[aq], 16)
    if which == 0:
        a(f"v_mfma_f32_32x32x16_bf16 {s}, {vr(K0[kb],4)}, {vr(Q0[aq],4)}, 0")
    else:
        a(f"v_mfma_f32_32x32x8_bf16 {s}, {vr(K1[kb],2)}, {vr(Q1[aq],2)}, {s}")

def pv(a, which, aq, vb):
    o = vr(O[aq], 16)
    a(f"v_mfma_f32_32x32x16_bf16 {o}, {vr(V[vb]+4*which,4)}, {vr(P[aq]+4*which,4)}, {o}")

def read_k(a, kb, rec):
    a(f"ds_read_b128 {vr(K0[kb],4)}, v{VK0} offset:{rec*KV_RS}")
    a(f"ds_read_b32 v{K1[kb]}, v{VK1} offset:{rec*KV_RS}")

def read_v(a, vb, rec):
    a(f"s_mov_b64 exec, s[{S_VM}:{S_VM+1}]")
    a(f"ds_read_b128 {vr(V[vb],4)}, v{VV} offset:{rec*KV_RS}")
    a(f"ds_read_b128 {vr(V[vb]+4,4)}, v{VV} offset:{rec*KV_RS + 576}")
    a(f"s_mov_b64 exec, -1")

def expq(a, aq, q):
    for e in range(4):
        r = Sx[aq] + 4*q + e
        a(f"v_exp_f32 v{r}, v{r}")
    for c in range(2):
        r = Sx[aq] + 4*q + 2*c
        a(f"v_cvt_pk_bf16_f32 v{P[aq]+2*q+c}, v{r}, v{r+1}")

def block(a, kt, aq, rec=None, do_qk=True):
    an = 1 - aq
    kq = (kt + aq) & 1
    vb = (kt - 1 + aq) & 1
    if aq == 1:
        a("s_waitcnt lgkmcnt(0)")
    if do_qk: qk(a, 0, an, kq)
    if rec is not None:
        if aq == 0: read_k(a, (kt+1) & 1, rec)
        else: read_v(a, (kt+1) & 1, rec)
    expq(a, aq, 0)
    if do_qk: qk(a, 1, an, kq)
    expq(a, aq, 1)
    pv(a, 0, an, vb)
    expq(a, aq, 2)
    pv(a, 1, an, vb)
    expq(a, aq, 3)

def set_m(a, aq, m):
    t = TMP
    a(f"v_mov_b32 v{t}, v{m}")
    a("s_nop 1")
    a(f"v_permlane32_swap_b32 v{m}, v{t}")
    a("s_nop 1")
    a(f"v_max_f32 v{m}, v{m}, v{t}")
    a(f"v_sub_f32 v{m}, 0, v{m}")
    a(f"v_and_b32 v{t}, 0xffff0000, v{m}")
    a(f"v_sub_f32 v{m}, v{m}, v{t}")
    a(f"v_and_b32 v{t+1}, 0xffff0000, v{m}")
    a(f"v_sub_f32 v{m}, v{m}, v{t+1}")
    a(f"v_lshrrev_b32 v{t}, 16, v{t}")
    a(f"v_or_b32 v{t}, v{t}, v{t+1}")
    a(f"v_lshrrev_b32 v{m}, 16, v{m}")
    a(f"v_cmp_gt_u32 vcc, 32, v0")
    a("s_nop 1")
    a(f"v_cndmask_b32 v{Q1[aq]+1}, v{m}, v{t}, vcc")

def tile_max(a, aq, m, first):
    s = Sx[aq]
    if first:
        a(f"v_max3_f32 v{m}, v{s}, v{s+1}, v{s+2}")
        a(f"v_max_f32 v{m}, v{m}, v{s+3}")
        st = 4
    else:
        st = 0
    for e in range(st, 16, 2):
        a(f"v_max3_f32 v{m}, v{m}, v{s+e}, v{s+e+1}")

def attn_body(a, wgreg, dep, pub, sm=0, tsetup=None, touch=None):
    a(f"s_and_b32 s61, {wgreg}, 7")
    a("s_lshl_b32 s61, s61, 2")
    a(f"s_bfe_u32 s62, {wgreg}, 0x20003")
    a("s_add_u32 s61, s61, s62")
    a(f"s_lshr_b32 s62, {wgreg}, 5")
    a("s_lshl_b32 s62, s62, 3")
    a("s_lshl_b32 s63, s52, 1")
    a("s_add_u32 s62, s62, s63")
    a(f"s_mul_i32 s{S_KV}, s61, {64*KV_RS}")
    a(f"s_add_u32 s{S_KV}, s{S_KV}, {KV_OFF}")
    a("s_lshl_b32 s64, s52, 10")
    a(f"s_add_u32 s65, s64, {CH}")
    a(f"v_lshlrev_b32 v5, 4, v0")
    a(f"v_add_u32 v{VDM}, s64, v5")
    a("s_lshl_b32 s63, s61, 6")
    a("s_add_u32 s63, s63, s62")
    a(f"s_mul_i32 s63, s63, {QR_RS}")
    a(f"s_add_u32 s63, s63, {QR_OFF}")
    a("v_and_b32 v6, 31, v0")
    a("v_lshlrev_b32 v7, 2, v6")
    if tsetup: tsetup(a)
    dep(a)
    for aq in range(2):
        a(f"buffer_load_dwordx4 {vr(Q0[aq],4)}, v5, s[48:51], s63 offen offset:{aq*QR_RS} sc1")
        a(f"buffer_load_dword v{Q1[aq]}, v7, s[48:51], s63 offen offset:{aq*QR_RS + 1024} sc1")
    a(f"s_mov_b32 s{S_VM}, 0x3ffff")
    a(f"s_mov_b32 s{S_VM+1}, 0x3ffff")
    a(f"s_mov_b32 s{S_ATT}, 0")
    for b in range(2):
        a(f"v_mov_b32 v{K1[b]+1}, 0x3f803f80")
        a(f"v_mov_b32 v{Q1[b]+1}, 0")
        for e in range(8):
            a(f"v_mov_b32 v{V[b]+e}, 0x3f803f80")
    a.label("L_attn_start")
    dma_chunk(a, 64, S_KV)
    a(f"s_add_u32 s66, s{S_KV}, {CH}")
    dma_chunk(a, 65, 66)
    a(f"s_add_u32 s66, s66, {CH}")
    a(f"s_mov_b32 s67, s64")
    a(f"s_mov_b32 s68, s65")
    a(f"v_mov_b32 v{VK0}, v5")
    a(f"v_add_u32 v{VK1}, 1024, v7")
    a(f"v_lshrrev_b32 v{VV}, 5, v0")
    a(f"v_mul_u32_u24 v{VV}, 288, v{VV}")
    a(f"v_lshl_add_u32 v{VV}, v6, 4, v{VV}")
    a(f"v_add_u32 v{VV}, 1152, v{VV}")
    for aq in range(2):
        for e in range(16):
            a(f"v_mov_b32 v{O[aq]+e}, 0")
    for e in range(8):
        a(f"v_mov_b32 v{P[1]+e}, 0")
    a("s_waitcnt vmcnt(9)")
    a("s_barrier")
    if touch: touch(a)
    read_k(a, 0, 0)
    read_v(a, 0, 0)
    a(f"v_cmp_gt_u32 vcc, 32, v0")
    a("s_nop 1")
    for aq in range(2):
        a(f"v_cndmask_b32 v{Q1[aq]}, 0, v{Q1[aq]}, vcc")
    a("s_waitcnt lgkmcnt(0)")
    a(f"s_cmp_lg_u32 s{S_ATT}, 0")
    a("s_cbranch_scc1 L_attn_havemax")
    for aq in range(2):
        qk(a, 0, aq, 0); qk(a, 1, aq, 0)
    a("s_nop 15")
    for aq in range(2):
        tile_max(a, aq, TMP+2+aq, True)
    for aq in range(2):
        set_m(a, aq, TMP+2+aq)
    a("s_nop 1")
    a.label("L_attn_havemax")
    qk(a, 0, 0, 0); qk(a, 1, 0, 0)
    a(f"s_mov_b32 s{S_C}, 0")
    a.stamp_mid(sm)
    a("s_nop 15")
    a("s_branch L_attn_entry")
    a.raw(".p2align 6")
    a.label("L_attn_loop")
    a("s_waitcnt vmcnt(0) lgkmcnt(0)")
    a("s_barrier")
    a(f"v_xor_b32 v{VK0}, {CH}, v{VK0}")
    a(f"v_xor_b32 v{VK1}, {CH}, v{VK1}")
    a(f"v_xor_b32 v{VV}, {CH}, v{VV}")
    a(f"s_cmp_eq_u32 s{S_C}, 3")
    a("s_cbranch_scc1 L_attn_nodma")
    dma_chunk(a, 67, 66)
    a(f"s_add_u32 s66, s66, {CH}")
    a("s_mov_b32 s69, s67")
    a("s_mov_b32 s67, s68")
    a("s_mov_b32 s68, s69")
    if touch: touch(a)
    a.label("L_attn_nodma")
    block(a, -1, 0, 0); block(a, -1, 1, 0)
    a.label("L_attn_entry")
    for kt in range(15):
        block(a, kt, 0, kt+1); block(a, kt, 1, kt+1)
    a(f"s_add_u32 s{S_C}, s{S_C}, 1")
    a(f"s_cmp_lt_u32 s{S_C}, 4")
    a("s_cbranch_scc1 L_attn_loop")
    block(a, 15, 0); block(a, 15, 1, do_qk=False)
    a("s_nop 1")
    pv(a, 0, 1, 1); pv(a, 1, 1, 1)
    a("s_nop 15")
    a.stamp_mid(sm+1)
    a(f"s_cmp_lg_u32 s{S_ATT}, 0")
    a("s_cbranch_scc1 L_attn_out")
    a(f"v_max_f32 v{TMP}, v{O[0]+10}, v{O[1]+10}")
    for aq in range(2):
        for e in range(11):
            a(f"v_fma_f32 v{TMP}, v{O[aq]+e}, 0, v{TMP}")
    a(f"v_mov_b32 v{TMP+1}, 0x5f800000")
    a(f"v_cmp_nlt_f32 vcc, v{TMP}, v{TMP+1}")
    a("s_cmp_lg_u64 vcc, 0")
    a("s_cselect_b32 s69, 1, 0")
    a(f"v_mov_b32 v{TMP}, s69")
    a(f"s_lshl_b32 s69, s52, 2")
    a(f"s_add_u32 s69, s69, {2*CH}")
    a(f"v_mov_b32 v{TMP+1}, s69")
    a(f"ds_write_b32 v{TMP+1}, v{TMP}")
    a(f"v_mov_b32 v{TMP+1}, {2*CH}")
    a("s_waitcnt lgkmcnt(0)")
    a("s_barrier")
    a(f"ds_read_b128 {vr(TMP+4,4)}, v{TMP+1}")
    a("s_waitcnt lgkmcnt(0)")
    a(f"v_or_b32 v{TMP}, v{TMP+4}, v{TMP+5}")
    a(f"v_or3_b32 v{TMP}, v{TMP}, v{TMP+6}, v{TMP+7}")
    a("s_nop 0")
    a(f"v_readfirstlane_b32 s69, v{TMP}")
    a("s_nop 3")
    a("s_cmp_eq_u32 s69, 0")
    a("s_cbranch_scc1 L_attn_out")
    a(f"s_mov_b32 s{S_ATT}, 1")
    for aq in range(2):
        a(f"v_mov_b32 v{Q1[aq]+1}, 0")
        a(f"v_mov_b32 v{TMP+2+aq}, 0xff800000")
    a(f"s_mov_b32 s66, s{S_KV}")
    a(f"s_mov_b32 s{S_C}, 0")
    a.label("L_attn_mx_chunk")
    dma_chunk(a, 64, 66)
    a(f"s_add_u32 s66, s66, {CH}")
    a(f"v_mov_b32 v{VK0}, v5")
    a(f"v_add_u32 v{VK1}, 1024, v7")
    a("s_mov_b32 s69, 0")
    a("s_waitcnt vmcnt(0)")
    a("s_barrier")
    a.label("L_attn_mx_tile")
    read_k(a, 0, 0)
    a(f"v_add_u32 v{VK0}, {KV_RS}, v{VK0}")
    a(f"v_add_u32 v{VK1}, {KV_RS}, v{VK1}")
    a("s_waitcnt lgkmcnt(0)")
    for aq in range(2):
        qk(a, 0, aq, 0); qk(a, 1, aq, 0)
    a("s_nop 15")
    for aq in range(2):
        tile_max(a, aq, TMP+2+aq, False)
    a("s_add_u32 s69, s69, 1")
    a("s_cmp_lt_u32 s69, 16")
    a("s_cbranch_scc1 L_attn_mx_tile")
    a("s_barrier")
    a(f"s_add_u32 s{S_C}, s{S_C}, 1")
    a(f"s_cmp_lt_u32 s{S_C}, 4")
    a("s_cbranch_scc1 L_attn_mx_chunk")
    for aq in range(2):
        set_m(a, aq, TMP+2+aq)
    a("s_branch L_attn_start")
    a.label("L_attn_out")
    a("s_mul_i32 s63, s62, 36")
    a("s_add_u32 s69, s63, s61")
    a("s_lshl_b32 s69, s69, 10")
    a(f"s_add_u32 s69, s69, {O_OFF}")
    a("s_lshr_b32 s70, s61, 3")
    a("s_add_u32 s70, s70, s63")
    a("s_lshl_b32 s70, s70, 10")
    a("s_bfe_u32 s71, s61, 0x10002")
    a("s_lshl_b32 s71, s71, 9")
    a("s_add_u32 s70, s70, s71")
    a("s_and_b32 s71, s61, 3")
    a("s_lshl_b32 s71, s71, 2")
    a("s_add_u32 s70, s70, s71")
    a(f"s_add_u32 s70, s70, {O_OFF + 32*1024}")
    for aq in range(2):
        o = O[aq]
        a(f"v_rcp_f32 v{o+10}, v{o+10}")
        a("s_nop 0")
        for e in range(10):
            a(f"v_mul_f32 v{o+e}, v{o+e}, v{o+10}")
        for e in range(5):
            a(f"v_cvt_pk_bf16_f32 v{o+e}, v{o+2*e}, v{o+2*e+1}")
        a(f"buffer_store_dwordx4 {vr(o,4)}, v5, s[48:51], s69 offen sc1")
        a("s_mov_b32 exec_hi, 0")
        a(f"buffer_store_dword v{o+4}, v5, s[48:51], s70 offen sc1")
        a("s_mov_b64 exec, -1")
        if aq == 0:
            a(f"s_add_u32 s69, s69, {36*1024}")
            a(f"s_add_u32 s70, s70, {36*1024}")
    pub(a)
```

```python
from common import *

FINAL_GRID = 192
FINAL_LDS = 4*18432
WA = 16
OB = 124
ACC = 160
NOB = 4

def final_body(a, wgreg, dep_o=None, dep_y=None, sc="", sm=0):
    a.srd(40, P_OUT, S*D*2)
    a.srd(44, P_B2, S*2)
    a(f"s_and_b32 s53, {wgreg}, 7")
    a("s_lshl_b32 s53, s53, 2")
    a(f"s_bfe_u32 s54, {wgreg}, 0x20003")
    a("s_add_u32 s53, s53, s54")
    a(f"s_lshr_b32 s54, {wgreg}, 5")
    a("s_and_b32 s61, s52, 1")
    a("s_lshr_b32 s62, s52, 1")
    a("v_lshlrev_b32 v2, 4, v0")
    a("s_lshl_b32 s55, s61, 8")
    a("v_xor_b32 v3, s55, v2")
    a(f"s_mul_i32 s56, s52, {9*18*1024}")
    a("s_mul_i32 s57, s54, 3072")
    a("s_add_u32 s56, s56, s57")
    a(f"s_add_u32 s56, s56, {WOF_OFF}")
    for t in range(9):
        for i in range(3):
            a(f"buffer_load_dwordx4 {vr(WA+12*t+4*i,4)}, v3, s[48:51], s56 offen offset:{i*1024}{sc}")
        if t < 8:
            a(f"s_add_u32 s56, s56, {18*1024}")
    a("v_and_b32 v5, 31, v0")
    a("s_lshl_b32 s57, s53, 1")
    a("s_add_u32 s63, s57, s62")
    a("s_lshl_b32 s57, s63, 5")
    a("v_add_u32 v5, s57, v5")
    a("v_lshlrev_b32 v7, 1, v5")
    a("buffer_load_ushort v10, v7, s[44:47], 0 offen")
    a(f"s_mul_i32 s58, s52, {9*1024}")
    a(f"s_add_u32 s58, s58, {O_OFF}")
    a(f"s_mul_i32 s57, s63, {36*1024}")
    a("s_add_u32 s57, s57, s58")
    a("s_xor_b32 s59, s63, 1")
    a(f"s_mul_i32 s59, s59, {36*1024}")
    a("s_add_u32 s58, s59, s58")
    for x in range(1, 4):
        a(f"s_xor_b32 s59, s52, {x}")
        a(f"s_mul_i32 s59, s59, 18432")
        a(f"s_add_u32 s59, s59, {(x-1)*6144}")
        a(f"v_add_u32 v{11+x}, s59, v2")
    a(f"s_mul_i32 s59, s52, 18432")
    a(f"v_add_u32 v15, s59, v2")
    if dep_o: dep_o(a)
    def ld_o(t):
        b = OB + 8*(t % NOB)
        if t and t % 4 == 0:
            a("s_add_u32 s57, s57, 4096")
            a("s_add_u32 s58, s58, 4096")
        a(f"buffer_load_dwordx4 {vr(b,4)}, v2, s[48:51], s57 offen offset:{(t%4)*1024}{sc}")
        a(f"buffer_load_dwordx4 {vr(b+4,4)}, v2, s[48:51], s58 offen offset:{(t%4)*1024}{sc}")
    for t in range(NOB): ld_o(t)
    for t in range(9):
        a(f"s_waitcnt vmcnt({2*(min(9, t+NOB) - t - 1)})")
        for i in range(3):
            for n in range(2):
                c = vr(ACC+16*(2*i+n), 16)
                a(f"v_mfma_f32_32x32x16_bf16 {c}, {vr(WA+12*t+4*i,4)}, {vr(OB+8*(t%NOB)+4*n,4)}, {c if t else 0}")
        if t + NOB < 9: ld_o(t + NOB)
    a.stamp_mid(sm)
    a("v_lshlrev_b32 v6, 2, v5")
    a(f"s_mov_b32 s57, {G_OFF}")
    a("s_nop 13")
    for i in range(3):
        for x, (n, hf) in ((1, (0, 1)), (2, (1, 0)), (3, (1, 1))):
            for q in range(2):
                a(f"ds_write_b128 v{11+x}, {vr(ACC+16*(2*i+n)+8*hf+4*q,4)} offset:{i*2048+q*1024}")
    a("s_waitcnt lgkmcnt(0)")
    a("s_barrier")
    R = WA
    for i in range(3):
        for x in range(3):
            for q in range(2):
                a(f"ds_read_b128 {vr(R+24*x+8*i+4*q,4)}, v15 offset:{x*6144+i*2048+q*1024}")
    for i in range(3):
        a(f"s_waitcnt lgkmcnt({6*(2-i)})")
        b = ACC + 32*i
        for e in range(8):
            a(f"v_add_f32 v{b+e}, v{b+e}, v{R+8*i+e}")
            a(f"v_add_f32 v{R+24+8*i+e}, v{R+24+8*i+e}, v{R+48+8*i+e}")
        for e in range(8):
            a(f"v_add_f32 v{b+e}, v{b+e}, v{R+24+8*i+e}")
    if dep_y: dep_y(a)
    a(f"buffer_load_dword v8, v6, s[48:51], s57 offen{sc}")
    a(f"s_mul_i32 s56, s54, {3*64*2048}")
    a("s_lshl_b32 s57, s63, 11")
    a("s_add_u32 s56, s56, s57")
    a("s_lshl_b32 s57, s61, 10")
    a("s_add_u32 s56, s56, s57")
    a(f"s_add_u32 s56, s56, {YP_OFF}")
    Y = WA
    for i in range(3):
        for ks in range(5):
            a(f"s_add_u32 s57, s56, {ks*YPB_SZ + i*64*2048}")
            a(f"buffer_load_dwordx4 {vr(Y+20*i+4*ks,4)}, v2, s[48:51], s57 offen{sc}")
    a("v_mul_u32_u24 v5, 1152, v5")
    a("v_lshrrev_b32 v6, 5, v0")
    a("v_lshl_add_u32 v5, v6, 4, v5")
    a("s_mul_i32 s57, s54, 192")
    a("s_lshl_b32 s58, s61, 5")
    a("s_add_u32 s57, s57, s58")
    a("s_waitcnt vmcnt(15)")
    a("v_lshlrev_b32 v10, 16, v10")
    a("v_sub_f32 v6, 1.0, v8")
    T = 80
    for i in range(3):
        b = ACC + 32*i
        for e in range(8):
            a(f"v_mul_f32 v{b+e}, v{b+e}, v8")
        a(f"s_waitcnt vmcnt({5*(2-i) + i})")
        for p in range(4):
            for ks in range(5):
                y = Y + 20*i + 4*ks + p
                if ks == 0:
                    a(f"v_lshlrev_b32 v{T+2*p}, 16, v{y}")
                    a(f"v_and_b32 v{T+2*p+1}, 0xffff0000, v{y}")
                    a(f"v_add_f32 v{T+2*p}, v{T+2*p}, v10")
                    a(f"v_add_f32 v{T+2*p+1}, v{T+2*p+1}, v10")
                else:
                    a(f"v_lshlrev_b32 v{T+8}, 16, v{y}")
                    a(f"v_and_b32 v{T+9}, 0xffff0000, v{y}")
                    a(f"v_add_f32 v{T+2*p}, v{T+2*p}, v{T+8}")
                    a(f"v_add_f32 v{T+2*p+1}, v{T+2*p+1}, v{T+9}")
        for e in range(8):
            a(f"v_fmac_f32 v{b+e}, v{T+e}, v6")
        for e in range(4):
            a(f"v_cvt_pk_bf16_f32 v{b+e}, v{b+2*e}, v{b+2*e+1}")
        a("s_nop 1")
        a(f"v_permlane32_swap_b32 v{b}, v{b+2}")
        a(f"v_permlane32_swap_b32 v{b+1}, v{b+3}")
        a(f"buffer_store_dwordx4 {vr(b,4)}, v5, s[40:43], s57 offen offset:{i*64}")
```

```python
from common import *
import math
QSCALE = (DH ** -0.5) * math.log2(math.e)
SC = " sc1"
CB = 17408
ACC = 96
SET = [32, 52]

def qkv_body(a, wgreg, pub):
    a.srd(40, P_X, S*D*2)
    a.srd(44, P_WQKV, D*3*D*2)
    a(f"s_and_b32 s53, {wgreg}, 7")
    a(f"s_lshr_b32 s54, {wgreg}, 3")
    a("s_lshr_b32 s55, s53, 1")
    a("s_lshl_b32 s55, s55, 2")
    a("s_and_b32 s56, s54, 3")
    a("s_add_u32 s55, s55, s56")
    a("s_and_b32 s56, s53, 1")
    a("s_mul_i32 s56, s56, 6")
    a("s_lshr_b32 s57, s54, 2")
    a("s_add_u32 s56, s56, s57")
    a("s_lshl_b32 s59, s55, 2")
    a("s_add_u32 s60, s59, s52")
    a("v_lshrrev_b32 v2, 2, v0")
    a("s_lshl_b32 s60, s60, 5")
    a("v_add_u32 v2, s60, v2")
    a("v_mul_u32_u24 v2, 1152, v2")
    a("v_lshrrev_b32 v3, 4, v0")
    a("v_xor_b32 v3, v3, v0")
    a("v_and_b32 v3, 3, v3")
    a("v_lshl_add_u32 v2, v3, 4, v2")
    a(f"v_add_u32 v3, {16*1152}, v2")
    a("s_mul_i32 s65, s56, 288")
    a(f"s_mul_i32 s60, s52, {8*3456}")
    a("s_add_u32 s65, s65, s60")
    for i in range(3):
        a(f"v_add_u32 v7, {64*i}, v0")
        a(f"v_mul_u32_u24 v8, 3641, v7")
        a(f"v_lshrrev_b32 v8, 16, v8")
        a(f"v_mul_u32_u24 v9, 18, v8")
        a(f"v_sub_u32 v7, v7, v9")
        a(f"v_and_b32 v10, 1, v8")
        a(f"v_lshrrev_b32 v9, 1, v8")
        a(f"v_lshl_or_b32 v9, v10, 2, v9")
        a(f"v_mul_u32_u24 v9, 3456, v9")
        a(f"v_lshl_add_u32 v9, v7, 4, v9")
        a(f"v_add_u32 v{4+i}, s65, v9")
    a("s_lshl_b32 s61, s52, 11")
    a("s_mul_i32 s62, s52, 2304")
    a("s_add_u32 s62, s62, 8192")
    a("s_mov_b32 s63, 0")
    a("s_mov_b32 s64, 0")
    a(f"s_mov_b32 s71, {32*3456}")
    a("s_mov_b64 s[72:73], 0xffff")
    def setm0(buf, i):
        if i < 2: a(f"s_add_u32 m0, s61, {buf*CB + i*1024}")
        else: a(f"s_add_u32 m0, s62, {buf*CB + (i-2)*1024}")
    def load(i):
        if i < 2:
            a(f"buffer_load_dwordx4 v{2+i}, s[40:43], s63 offen lds")
            if i == 1: a("s_add_u32 s63, s63, 64")
        elif i < 4:
            a(f"buffer_load_dwordx4 v{2+i}, s[44:47], s64 offen lds")
        else:
            a("s_mov_b64 exec, s[72:73]")
            a(f"buffer_load_dwordx4 v6, s[44:47], s64 offen lds")
            a("s_mov_b64 exec, -1")
            a("s_add_u32 s64, s64, s71")
    for c in range(4):
        for i in range(5 if c < 3 else 2):
            setm0(c, i); a("s_nop 0"); load(i)
    a.stamp_mid(0)
    a("s_and_b32 s57, s52, 1")
    a("s_lshr_b32 s58, s52, 1")
    a("s_lshl_b32 s60, s57, 1")
    a("s_add_u32 s60, s60, s58")
    a("s_add_u32 s59, s59, s60")
    a("v_and_b32 v10, 31, v0")
    a("v_lshrrev_b32 v11, 5, v0")
    a("v_bfe_u32 v12, v10, 2, 2")
    a("v_xor_b32 v12, v12, v11")
    a("v_lshlrev_b32 v13, 6, v10")
    a("v_lshl_add_u32 v16, v12, 4, v13")
    a("s_lshl_b32 s60, s60, 11")
    a("v_add_u32 v16, s60, v16")
    a("v_xor_b32 v17, 32, v16")
    a("v_xor_b32 v18, 0x800, v16")
    a("v_xor_b32 v19, 0x800, v17")
    a("v_bfe_u32 v12, v0, 2, 2")
    a("v_lshlrev_b32 v12, 1, v12")
    a("v_lshl_add_u32 v12, v11, 3, v12")
    a("v_mul_u32_u24 v12, 288, v12")
    a("v_add_u32 v12, 0x2000, v12")
    a("v_bfe_u32 v13, v0, 4, 1")
    a("v_and_b32 v14, 3, v0")
    a("v_lshl_add_u32 v15, v14, 3, v12")
    a("v_lshl_add_u32 v20, v13, 5, v15")
    a("s_and_b32 s69, s56, 3")
    a("s_lshl_b32 s69, s69, 9")
    a("s_cmp_ge_u32 s56, 8")
    a("s_cbranch_scc1 L_qkv_v")
    a("s_mul_i32 s60, s58, 144")
    a("s_add_u32 s60, s60, 40")
    a("v_add_u32 v21, 112, v20")
    a("v_add_u32 v20, s60, v20")
    a("v_lshl_add_u32 v23, v13, 8, v15")
    a("s_cmp_lg_u32 s58, 0")
    a("s_cselect_b64 vcc, -1, 0")
    a("v_cndmask_b32 v21, v21, v23, vcc")
    a("v_mul_u32_u24 v22, 72, v14")
    a("v_add3_u32 v22, v22, v12, 32")
    loop(a, False, setm0, load)
    a("s_cmp_ge_u32 s56, 4")
    a(f"s_mov_b32 s66, {QR_OFF}")
    a(f"s_mov_b32 s67, {QR_RS}")
    a(f"s_mov_b32 s68, {f32bits(QSCALE)}")
    a(f"s_cselect_b32 s66, {KV_OFF}, s66")
    a(f"s_cselect_b32 s67, {KV_RS}, s67")
    a(f"s_cselect_b32 s68, 1.0, s68")
    a("s_xor_b32 s63, s59, 1")
    a("s_add_u32 s63, s63, s69")
    a("s_add_u32 s69, s59, s69")
    a("s_mul_i32 s69, s69, s67")
    a("s_add_u32 s69, s69, s66")
    a("s_mul_i32 s63, s63, s67")
    a("s_add_u32 s63, s63, s66")
    a("s_lshl_b32 s70, s67, 6")
    a("s_lshl_b32 s60, s58, 2")
    a("s_add_u32 s72, s60, 1")
    a("s_add_u32 s73, s60, 2")
    a("s_cmp_lg_u32 s58, 0")
    a("s_cselect_b32 s76, 0, 3")
    a("s_cselect_b32 s77, 7, 4")
    for r in (72, 73, 76, 77): a(f"s_mul_i32 s{r}, s{r}, s70")
    for j, (hx, hy, rec) in enumerate(((72, 73, 69), (72, 73, 63), (76, 77, 69), (76, 77, 63))):
        qk_store_main(a, j, hx, hy, rec)
    qk_store_left(a, 4)
    a("s_branch L_qkv_done")
    a.label("L_qkv_v")
    a("s_lshl_b32 s60, s58, 7")
    a("v_add_u32 v20, s60, v20")
    a("v_add_u32 v21, 64, v20")
    a("v_add_u32 v22, 256, v15")
    loop(a, True, setm0, load)
    a("s_xor_b32 s63, s59, 1")
    a("s_add_u32 s63, s63, s69")
    a("s_add_u32 s69, s59, s69")
    a(f"s_mul_i32 s69, s69, {KV_RS}")
    a(f"s_add_u32 s69, s69, {KV_OFF + 1152}")
    a(f"s_mul_i32 s63, s63, {KV_RS}")
    a(f"s_add_u32 s63, s63, {KV_OFF + 1152}")
    a("s_lshl_b32 s60, s58, 6")
    a("v_add_u32 v12, s60, v10")
    v_addr(a, "v12"); v_store(a, 0, 69); v_store(a, 1, 63)
    a("v_add_u32 v12, 32, v12")
    v_addr(a, "v12"); v_store(a, 2, 69); v_store(a, 3, 63)
    a("v_add_u32 v12, 128, v10")
    v_addr(a, "v12"); v_store(a, 4, 69)
    a.label("L_qkv_done")
    a.stamp_mid(7)
    pub(a)

def loop(a, isv, setm0, load):
    def reads(sn, buf, t):
        b = SET[sn]
        X = [((sn, "x", n), f"ds_read_b128 {vr(b+4*n,4)}, v{16+2*n+t} offset:{buf*CB}") for n in range(2)]
        W = [((sn, "w", j), f"ds_read_b64_tr_b16 {vr(b+8+4*j+2*sec,2)}, v{20+j} offset:{buf*CB + t*4608 + sec*288}") for j in range(3) for sec in range(2)]
        return [X[0], W[0], W[1], X[1], W[2], W[3], W[4], W[5]]
    MF = [(0, 0), (0, 1), (1, 0), (1, 1), (2, 0)]
    def mfma(ls, sn, k, first):
        b = SET[sn]
        j, n = MF[k]
        ls.need([(sn, "x", n), (sn, "w", j)])
        w = vr(b+8+4*j, 4); x = vr(b+4*n, 4); c = vr(ACC+16*k, 16)
        A, B = (x, w) if isv else (w, x)
        a(f"v_mfma_f32_32x32x16_bf16 {c}, {A}, {B}, {'0' if first else c}")
    def body(c, first=False, kill=False, last=False):
        buf = c % 4; pb = (c - 1) % 4
        ls = LdsSched(a, [r[0] for r in reads(0, buf, 0)])
        ls.need([(0, "w", 1)])
        r = reads(1, buf, 1)
        mfma(ls, 0, 0, first)
        if not last: setm0(pb, 2)
        for x in r[0:3]: ls.read(*x)
        if not last: load(2)
        mfma(ls, 0, 1, first)
        for x in r[3:7]: ls.read(*x)
        mfma(ls, 0, 2, first)
        if not last: setm0(pb, 3)
        ls.read(*r[7])
        if not last: load(3)
        mfma(ls, 0, 3, first)
        if not last: setm0(pb, 4); load(4)
        mfma(ls, 0, 4, first)
        if kill: kill()
        if last:
            ls.drain()
            for k in range(5): mfma(ls, 1, k, False)
            return
        ls.drain()
        mfma(ls, 1, 0, False)
        a("s_waitcnt vmcnt(10)")
        a("s_barrier")
        r = reads(0, (c+1) % 4, 0)
        for x in r[0:3]: ls.read(*x)
        mfma(ls, 1, 1, False)
        for x in r[3:7]: ls.read(*x)
        mfma(ls, 1, 2, False)
        setm0(buf, 0)
        ls.read(*r[7])
        load(0)
        mfma(ls, 1, 3, False)
        setm0(buf, 1)
        mfma(ls, 1, 4, False)
        load(1)
    a("s_waitcnt vmcnt(12)")
    a("s_barrier")
    a.stamp_mid(1)
    for r in reads(0, 0, 0): a(r[1])
    body(0, first=True)
    a("s_mov_b32 s60, 4")
    L = a.newlabel("qkv")
    def kill():
        a("s_cmp_gt_u32 s60, 1")
        a("s_cselect_b32 s42, s42, 0")
        a("s_cselect_b32 s46, s46, 0")
    a.raw(".p2align 6")
    a.label(L)
    for c in range(1, 5):
        body(c, kill=kill if c == 2 else None)
    a("s_sub_u32 s60, s60, 1")
    a("s_cmp_lg_u32 s60, 0")
    a(f"s_cbranch_scc1 {L}")
    body(17, last=True)
    a("v_lshlrev_b32 v2, 4, v0")
    a.stamp_mid(6)

def qk_store_main(a, j, hx, hy, rec):
    b = ACC + 16*j
    for i in range(16):
        a(f"v_mul_f32 v{b+i}, s68, v{b+i}")
    for i in range(8):
        a(f"v_cvt_pk_bf16_f32 v{b+i}, v{b+2*i}, v{b+2*i+1}")
    for half, hd in ((0, hx), (1, hy)):
        a(f"s_add_u32 s60, s{hd}, s{rec}")
        a(f"buffer_store_dwordx4 {vr(b+4*half,4)}, v2, s[48:51], s60 offen{SC}")

def qk_store_left(a, j):
    b = ACC + 16*j
    for i in range(8):
        a(f"v_mul_f32 v{b+i}, s68, v{b+i}")
    for i in range(4):
        a(f"v_cvt_pk_bf16_f32 v{b+i}, v{b+2*i}, v{b+2*i+1}")
    a("s_lshl_b32 s60, s70, 1")
    a("v_mul_lo_u32 v3, v11, s60")
    a("v_lshl_add_u32 v3, v10, 2, v3")
    for jj in range(2):
        for bb in range(2):
            a(f"s_mul_i32 s60, s70, {4*jj+bb}")
            a(f"s_add_u32 s60, s60, s69")
            a(f"buffer_store_dword v{b+2*jj+bb}, v3, s[48:51], s60 offen offset:1024{SC}")

def v_addr(a, col):
    a(f"v_mul_u32_u24 v4, 3641, {col}")
    a(f"v_lshrrev_b32 v4, 16, v4")
    a(f"v_mul_u32_u24 v5, 18, v4")
    a(f"v_sub_u32 v3, {col}, v5")
    a(f"v_mul_u32_u24 v4, {64*KV_RS}, v4")
    a(f"v_lshl_add_u32 v3, v3, 4, v4")
    a(f"v_mul_u32_u24 v4, 288, v11")
    a(f"v_add_u32 v3, v3, v4")

def v_store(a, k, rec):
    b = ACC + 16*k
    for i in range(8):
        a(f"v_cvt_pk_bf16_f32 v{b+i}, v{b+2*i}, v{b+2*i+1}")
    if k == 4:
        a("s_mov_b32 exec_lo, 0xffff")
        a("s_mov_b32 exec_hi, 0xffff")
    a(f"buffer_store_dwordx4 {vr(b,4)}, v3, s[48:51], s{rec} offen{SC}")
    a(f"buffer_store_dwordx4 {vr(b+4,4)}, v3, s[48:51], s{rec} offen offset:576{SC}")
    if k == 4:
        a("s_mov_b64 exec, -1")

RS = 1216
X0, F0 = 16, 88
XK, GK = 160, 196

def red8(a, r):
    a("s_nop 1")
    a(f"v_add_f32_dpp v{r}, v{r}, v{r} quad_perm:[1,0,3,2] row_mask:0xf bank_mask:0xf")
    a("s_nop 1")
    a(f"v_add_f32_dpp v{r}, v{r}, v{r} quad_perm:[2,3,0,1] row_mask:0xf bank_mask:0xf")
    a("s_nop 1")
    a(f"v_add_f32_dpp v{r}, v{r}, v{r} row_half_mirror row_mask:0xf bank_mask:0xf")

def rows_setup(a):
    a("v_lshrrev_b32 v2, 3, v0")
    a("v_and_b32 v3, 7, v0")
    a("s_lshl_b32 s53, s52, 3")
    a("v_add_u32 v4, s53, v2")

def rows_tail(a):
    a(f"v_mul_u32_u24 v5, {RS}, v4")
    a("v_lshl_add_u32 v5, v3, 4, v5")
    for i in range(9):
        a(f"ds_write_b128 v5, {vr(X0+4*i,4)} offset:{i*128}")
    a("s_lshr_b32 s55, s52, 1")
    a("s_and_b32 s56, s52, 1")
    a("v_lshrrev_b32 v6, 5, v0")
    a("v_bfe_u32 v7, v0, 2, 2")
    a("v_lshl_add_u32 v6, v6, 3, v7")
    a("s_lshl_b32 s60, s55, 4")
    a("v_add_u32 v6, s60, v6")
    a(f"v_mul_u32_u24 v6, {RS}, v6")
    a("v_bfe_u32 v7, v0, 4, 1")
    a("v_lshl_add_u32 v6, v7, 5, v6")
    a("v_and_b32 v7, 3, v0")
    a("v_lshl_add_u32 v6, v7, 3, v6")
    a("s_mul_i32 s60, s56, 576")
    a("v_add_u32 v6, s60, v6")
    a("s_mul_i32 s60, s52, 9216")
    a("s_add_u32 s57, s57, s60")
    a("v_lshlrev_b32 v7, 4, v0")
    a("s_waitcnt lgkmcnt(0)")
    a("s_barrier")
    for i in range(7):
        for sec in range(2):
            a(f"ds_read_b64_tr_b16 {vr(X0+4*i+2*sec,2)}, v6 offset:{sec*4*RS + i*64}")
    for i in range(9):
        a(f"s_waitcnt lgkmcnt({min(12, 2*(8-i))})")
        if i % 4 == 0 and i:
            a("s_add_u32 s57, s57, 4096")
        a(f"buffer_store_dwordx4 {vr(X0+4*i,4)}, v7, s[48:51], s57 offen offset:{(i%4)*1024}{SC}")
        if i + 7 < 9:
            for sec in range(2):
                a(f"ds_read_b64_tr_b16 {vr(X0+4*(i+7)+2*sec,2)}, v6 offset:{sec*4*RS + (i+7)*64}")

def ln_body(a, jreg, pub):
    a.srd(40, P_X, S*D*2)
    rows_setup(a)
    a(f"s_and_b32 s58, {jreg}, 7")
    a(f"s_lshr_b32 s56, {jreg}, 3")
    a("s_lshl_b32 s58, s58, 3")
    a("s_add_u32 s58, s58, s56")
    a("s_lshl_b32 s56, s58, 5")
    a("v_add_u32 v6, s56, v4")
    a("v_mul_u32_u24 v7, 1152, v6")
    a("v_lshl_add_u32 v7, v3, 4, v7")
    for i in range(9):
        a(f"buffer_load_dwordx4 {vr(XK+4*i,4)}, v7, s[40:43], 0 offen offset:{i*128}")
    a.srd(44, P_GW, D*2)
    a("v_lshlrev_b32 v8, 4, v3")
    for i in range(9):
        a(f"buffer_load_dwordx4 {vr(GK+4*i,4)}, v8, s[44:47], 0 offen offset:{i*128}")
    a(f"s_mul_i32 s57, s58, {2*18*1024}")
    a(f"s_add_u32 s57, s57, {HT_OFF}")
    a("v_mov_b32 v8, 0")
    a("v_mov_b32 v9, 0")
    a.stamp_mid(0)
    def pk(i): return vr(F0+2*i, 2)
    for i in range(36):
        if i % 4 == 0: a(f"s_waitcnt vmcnt({17 - i//4})")
        a(f"v_lshlrev_b32 v{F0+2*i}, 16, v{XK+i}")
        a(f"v_and_b32 v{F0+2*i+1}, 0xffff0000, v{XK+i}")
        a(f"v_pk_add_f32 v[8:9], v[8:9], {pk(i)}")
    a.stamp_mid(1)
    a("v_add_f32 v8, v8, v9")
    red8(a, 8)
    a(f"v_mul_f32 v8, {f32bits(-1.0/D)}, v8")
    a("v_mov_b32 v10, 0")
    a("v_mov_b32 v9, v8")
    a("v_mov_b32 v11, 0")
    for i in range(36):
        a(f"v_pk_add_f32 {pk(i)}, {pk(i)}, v[8:9]")
    for i in range(36):
        a(f"v_pk_fma_f32 v[10:11], {pk(i)}, {pk(i)}, v[10:11]")
    a("v_add_f32 v10, v10, v11")
    red8(a, 10)
    a(f"v_mov_b32 v12, {f32bits(1e-5)}")
    a(f"v_fmac_f32 v12, {f32bits(1.0/D)}, v10")
    a("v_rsq_f32 v12, v12")
    a("s_nop 0")
    a("v_mov_b32 v13, v12")
    for i in range(36):
        a(f"v_pk_mul_f32 {pk(i)}, {pk(i)}, v[12:13]")
    for i in range(36):
        a(f"v_cvt_pk_bf16_f32 v{X0+i}, v{F0+2*i}, v{F0+2*i+1}")
    rows_tail(a)
    pub(a)

def wo_body(a, jreg):
    a.srd(40, P_WO, D*D*2)
    rows_setup(a)
    a(f"s_lshl_b32 s57, {jreg}, 1")
    a("s_lshr_b32 s55, s52, 1")
    a("s_add_u32 s57, s57, s55")
    a("s_and_b32 s56, s52, 1")
    a("s_lshl_b32 s56, s56, 2")
    a("s_cmp_ge_u32 s57, 32")
    a("s_cbranch_scc1 L_wo_left")
    a("s_mul_i32 s57, s57, 18")
    a("s_add_u32 s57, s57, s56")
    a("v_lshrrev_b32 v6, 2, v2")
    a("v_and_b32 v7, 3, v2")
    a("v_lshl_add_u32 v6, v6, 3, v7")
    a("v_add_u32 v6, s57, v6")
    a("s_branch L_wo_ld")
    a.label("L_wo_left")
    a("s_sub_u32 s57, s57, 32")
    a("s_lshl_b32 s57, s57, 3")
    a("s_add_u32 s57, s57, s56")
    a("v_lshrrev_b32 v6, 1, v2")
    a("v_add_u32 v6, s57, v6")
    a("v_mul_u32_u24 v6, 18, v6")
    a("v_and_b32 v7, 1, v2")
    a("v_add3_u32 v6, v6, v7, 16")
    a.label("L_wo_ld")
    a("v_mul_u32_u24 v7, 1152, v6")
    a("v_lshl_add_u32 v7, v3, 4, v7")
    for i in range(9):
        a(f"buffer_load_dwordx4 {vr(X0+4*i,4)}, v7, s[40:43], 0 offen offset:{i*128}")
    a(f"s_mul_i32 s57, {jreg}, {2*18*1024}")
    a(f"s_add_u32 s57, s57, {WOF_OFF}")
    a("s_waitcnt vmcnt(0)")
    rows_tail(a)

def gate_own(a):
    a("v_mov_b32 v8, 0")
    a("v_mov_b32 v9, 0")
    for i in range(36):
        a(f"v_lshlrev_b32 v12, 16, v{GK+i}")
        a(f"v_and_b32 v13, 0xffff0000, v{GK+i}")
        a(f"v_lshlrev_b32 v14, 16, v{XK+i}")
        a(f"v_and_b32 v15, 0xffff0000, v{XK+i}")
        a(f"v_pk_fma_f32 v[8:9], v[12:13], v[14:15], v[8:9]")
    a("v_add_f32 v8, v8, v9")
    red8(a, 8)
    a(f"v_mul_f32 v8, {f32bits(-math.log2(math.e))}, v8")
    a("v_exp_f32 v8, v8")
    a("s_lshl_b32 s56, s58, 5")
    a("v_add_f32 v8, 1.0, v8")
    a("v_rcp_f32 v8, v8")
    a("v_add_u32 v6, s56, v4")
    a("v_lshlrev_b32 v6, 2, v6")
    a(f"s_mov_b32 s57, {G_OFF}")
    a("s_mov_b32 exec_lo, 0x01010101")
    a("s_mov_b32 exec_hi, 0x01010101")
    a(f"buffer_store_dword v8, v6, s[48:51], s57 offen{SC}")
    a("s_mov_b64 exec, -1")

def xw_touch(a, greg):
    a.srd(40, P_WQKV, D*3*D*2)
    a.srd(44, P_X, S*D*2)
    a(f"s_lshr_b32 s53, {greg}, 3")
    a("s_lshl_b32 s53, s53, 2")
    a("s_add_u32 s53, s53, s52")
    a("s_lshl_b32 s54, s53, 6")
    a("v_add_u32 v5, s54, v0")
    a("v_mul_u32_u24 v6, 18725, v5")
    a("v_lshrrev_b32 v6, 18, v6")
    a("v_mul_u32_u24 v7, 13, v6")
    a("v_add_u32 v7, v7, v5")
    a(f"s_and_b32 s54, {greg}, 1")
    a("s_mul_i32 s54, s54, 13")
    a("v_add_lshl_u32 v7, v7, s54, 7")
    a("buffer_load_dword v60, v7, s[40:43], 0 offen")
    L = a.newlabel("nox")
    a("s_cmp_ge_u32 s53, 72")
    a(f"s_cbranch_scc1 {L}")
    a(f"s_bfe_u32 s54, {greg}, 0x20001")
    a("s_mul_i32 s54, s54, 4608")
    a("v_add_lshl_u32 v7, v5, s54, 7")
    a("buffer_load_dword v61, v7, s[44:47], 0 offen")
    a.label(L)
for n in range(8192):
    assert (n*18725) >> 18 == n//14
```

```python
from common import *
import math

MLP1_GRID = 216
for t in range(216):
    assert (t*171) >> 10 == t//6

VT, VTB, VD, VF = 1, 2, 3, 4
TB = 8
FB = 24
ACC = 64
def acc(j, i): return ACC + 16*(3*j + i)
S_T, S_F, S_TMP, S_WO, S_WB, S_RO, S_LBASE, S_CNT = 54, 57, 60, 61, 62, 63, 64, 65
YIELD = 2
TOUCH = False
DEP_FIRST = True
NS = 32
STRIDE = F*2

def mlp1_body(a, wgreg, dep, pub, sm=0):
    a.srd(40, P_W1, S*F*2)
    a.srd(44, P_B1, F*2)
    a(f"s_and_b32 s66, {wgreg}, 7")
    a("s_mul_i32 s66, s66, 27")
    a(f"s_lshr_b32 s67, {wgreg}, 3")
    a("s_add_u32 s67, s67, s66")
    a("s_mul_i32 s66, s67, 171")
    a("s_lshr_b32 s66, s66, 10")
    a("s_mul_i32 s68, s66, 6")
    a("s_sub_u32 s67, s67, s68")
    a(f"s_mul_i32 s{S_T}, s52, {512*STRIDE}")
    a(f"s_lshl_b32 s70, s66, 8")
    a(f"s_add_u32 s{S_T}, s{S_T}, s70")
    a(f"s_mov_b32 s55, s{S_T}")
    a(f"s_mul_i32 s{S_F}, s52, {32*18*1024}")
    a(f"s_mul_i32 s70, s67, 3072")
    a(f"s_add_u32 s{S_F}, s{S_F}, s70")
    a(f"s_add_u32 s{S_F}, s{S_F}, {HT_OFF}")
    a(f"v_lshrrev_b32 v5, 4, v0")
    a(f"v_add_u32 v5, s52, v5")
    a(f"v_and_b32 v5, 3, v5")
    a(f"v_and_b32 v6, 3, v0")
    a(f"v_lshlrev_b32 v6, 4, v6")
    a(f"v_lshl_add_u32 v5, v5, 6, v6")
    a(f"v_bfe_u32 v6, v0, 2, 2")
    a(f"v_mul_u32_u24 v6, {STRIDE}, v6")
    a(f"v_add_u32 v{VD}, v5, v6")
    a(f"v_lshlrev_b32 v{VF}, 4, v0")
    a(f"s_lshl_b32 s{S_LBASE}, s52, 14")
    a(f"s_mov_b32 s{S_WO}, 0")
    a(f"s_mov_b32 s{S_WB}, s{S_LBASE}")
    a(f"s_mov_b32 s{S_RO}, 0")

    ops = []
    place = [("F",0,0),("F",1,0),("F",2,1),("D",0,1),("D",1,2),("D",2,2),("D",3,3)]
    for t in range(-3, NS):
        for kind, i, g in place:
            ds = t + 2 if kind == "F" else t + 3
            if 0 <= ds < NS:
                ops.append((kind, ds, i, t, g))
    def need(kind, ds, t, g):
        last = max(n for n, o in enumerate(ops) if o[0] == kind and o[1] == ds)
        return sum(1 for n, o in enumerate(ops) if n > last and (o[3], o[4]) < (t, g))
    def issue(kind, ds, i):
        if kind == "F":
            a(f"buffer_load_dwordx4 {vr(FB + 12*(ds%3) + 4*i, 4)}, v{VF}, s[48:51], s{S_F} offen offset:{i*1024} sc1")
            if i == 2:
                a(f"s_add_u32 s{S_F}, s{S_F}, {18*1024}")
        else:
            a(f"s_add_u32 m0, s{S_WB}, {i*1024}")
            a(f"s_add_u32 s{S_T}, s{S_T}, {4*STRIDE}")
            a(f"buffer_load_dwordx4 v{VD}, s[40:43], s{S_T} offen lds")
            if i == 3:
                a(f"s_add_u32 s{S_WO}, s{S_WO}, 4096")
                a(f"s_and_b32 s{S_WO}, s{S_WO}, 0x3fff")
                a(f"s_add_u32 s{S_WB}, s{S_WO}, s{S_LBASE}")
    def tread(j, sec):
        a(f"ds_read_b64_tr_b16 {vr(TB + 4*j + 2*sec, 2)}, v{VT} offset:{j*256 + sec*1024}")
    def mfma(t, j, i):
        T = vr(TB + 4*j, 4); Fr = vr(FB + 12*(t%3) + 4*i, 4); c = vr(acc(j, i), 16)
        n = 3*j + i
        if YIELD > 1:
            if n % YIELD == 0: a("s_setprio 0")
            if n % YIELD == 1: a("s_setprio 2")
        a(f"v_mfma_f32_32x32x16_bf16 {c}, {T}, {Fr}, {c if t > 0 else '0'}")
    def step(t):
        for g in range(4):
            mine = [o for o in ops if o[3] == t and o[4] == g]
            last = (t == NS-1)
            if g == 0:
                a(f"s_waitcnt vmcnt({need('F', t, t, 0)}) lgkmcnt(2)")
            elif g == 2 and not last:
                a(f"s_waitcnt vmcnt({need('D', t+1, t, 2)}) lgkmcnt(2)")
                a(f"s_add_u32 s{S_RO}, s{S_RO}, 4096")
                a(f"s_and_b32 s{S_RO}, s{S_RO}, 0x3fff")
                a(f"v_add_u32 v{VT}, s{S_RO}, v{VTB}")
            else:
                a(f"s_waitcnt lgkmcnt({0 if (last and g == 3) else 2})")
            rd = not (last and g >= 2)
            mfma(t, g, 0)
            if rd: tread((g+2) % 4, 0)
            if mine: issue(*mine[0][:3])
            mfma(t, g, 1)
            if rd: tread((g+2) % 4, 1)
            if len(mine) > 1: issue(*mine[1][:3])
            mfma(t, g, 2)
    a(f"s_sub_u32 s{S_T}, s{S_T}, {4*STRIDE}")
    if DEP_FIRST: dep(a)
    for o in ops:
        if o[3] < 0 and o[0] == "D":
            issue(*o[:3])
    a(f"v_lshrrev_b32 v5, 5, v0")
    a(f"v_lshlrev_b32 v5, 11, v5")
    a(f"v_bfe_u32 v6, v0, 2, 2")
    a(f"v_lshl_add_u32 v5, v6, 6, v5")
    a(f"v_bfe_u32 v6, v0, 4, 1")
    a(f"v_lshl_add_u32 v5, v6, 5, v5")
    a(f"v_and_b32 v6, 3, v0")
    a(f"v_lshl_add_u32 v5, v6, 3, v5")
    a(f"v_add_u32 v{VTB}, s{S_LBASE}, v5")
    a(f"v_mov_b32 v{VT}, v{VTB}")
    if TOUCH:
        a(f"v_lshrrev_b32 v5, 1, v0")
        a(f"v_mul_u32_u24 v5, {STRIDE}, v5")
        a(f"v_and_b32 v6, 1, v0")
        a(f"v_lshl_add_u32 v5, v6, 7, v5")
        a(f"s_add_u32 s70, s67, 1")
        a(f"s_mul_i32 s70, s70, {32*STRIDE}")
        a(f"s_add_u32 s70, s70, s55")
        a(f"buffer_load_dword v60, v5, s[40:43], s70 offen")
    if not DEP_FIRST: dep(a)
    for o in ops:
        if o[3] < 0 and o[0] == "F":
            issue(*o[:3])
    a("s_waitcnt vmcnt(6)")
    for j in range(2):
        tread(j, 0); tread(j, 1)
    a("s_waitcnt vmcnt(0)")
    a(f"s_setprio {0 if YIELD else 2}")
    a.stamp_mid(sm)
    step(0)
    nloop = (NS - 4)//3
    for t in range(1, 1 + 3*nloop):
        assert need('F', t, t, 0) == 11 and need('D', t+1, t, 2) == 11
    a(f"s_mov_b32 s{S_CNT}, {nloop}")
    a.raw(".p2align 6")
    a.label(f"L_mlp1_loop")
    for t in range(1, 4):
        step(t)
    a(f"s_sub_u32 s{S_CNT}, s{S_CNT}, 1")
    a(f"s_cmp_lg_u32 s{S_CNT}, 0")
    a(f"s_cbranch_scc1 L_mlp1_loop")
    for t in range(1 + 3*nloop, NS):
        step(t)
    a("s_setprio 2")
    a.stamp_mid(sm+1)
    a("s_lshl_b32 s70, s66, 2")
    a("s_add_u32 s70, s70, s52")
    a("s_lshl_b32 s71, s70, 6")
    a("v_lshrrev_b32 v5, 5, v0")
    a("v_lshlrev_b32 v5, 3, v5")
    for jj in range(4):
        a(f"buffer_load_dwordx2 {vr(8+2*jj,2)}, v5, s[44:47], s71 offen offset:{jj*16}")
    for rho in range(1, 4):
        a(f"s_add_u32 s72, s52, {rho}")
        a(f"s_and_b32 s72, s72, 3")
        a(f"s_mul_i32 s72, s72, 20480")
        a(f"v_add_u32 v{rho}, s72, v{VF}")
    a(f"s_mul_i32 s72, s52, 20480")
    a(f"v_add_u32 v6, s72, v{VF}")
    a("s_nop 7")
    a("s_barrier")
    rounds = [[(1,0),(2,0),(3,0),(1,1),(2,1)], [(3,1),(1,2),(2,2),(3,2)]]
    for rn, rnd in enumerate(rounds):
        for slot, (rho, i) in enumerate(rnd):
            for q in range(4):
                a(f"ds_write_b128 v{rho}, {vr(acc(rho,i)+4*q,4)} offset:{slot*4096+q*1024}")
        a("s_waitcnt lgkmcnt(0)")
        a("s_barrier")
        for slot, (rho, i) in enumerate(rnd):
            for q in range(4):
                a(f"ds_read_b128 {vr(acc(rho,i)+4*q,4)}, v6 offset:{slot*4096+q*1024}")
            if slot >= 2:
                a("s_waitcnt lgkmcnt(8)")
                r2, i2 = rnd[slot-2]
                for e in range(0, 16, 2):
                    a(f"v_pk_add_f32 {vr(acc(0,i2)+e,2)}, {vr(acc(0,i2)+e,2)}, {vr(acc(r2,i2)+e,2)}")
        for k, slot in enumerate((len(rnd)-2, len(rnd)-1)):
            a(f"s_waitcnt lgkmcnt({4 if k == 0 else 0})")
            if k == 1 and rn == 0:
                a("s_barrier")
            r2, i2 = rnd[slot]
            for e in range(0, 16, 2):
                a(f"v_pk_add_f32 {vr(acc(0,i2)+e,2)}, {vr(acc(0,i2)+e,2)}, {vr(acc(r2,i2)+e,2)}")
    a("s_waitcnt vmcnt(0)")
    for jj in range(4):
        for p in range(2):
            a(f"v_lshlrev_b32 v{24+4*jj+2*p}, 16, v{8+2*jj+p}")
            a(f"v_and_b32 v{24+4*jj+2*p+1}, 0xffff0000, v{8+2*jj+p}")
    c0 = -2.0*math.sqrt(2.0/math.pi)*math.log2(math.e)
    a(f"v_mov_b32 v40, {f32bits(c0*0.044715)}")
    a(f"v_mov_b32 v41, {f32bits(c0*0.044715)}")
    a(f"v_mov_b32 v42, {f32bits(c0)}")
    a(f"v_mov_b32 v43, {f32bits(c0)}")
    a(f"v_mov_b32 v44, 1.0")
    a(f"v_mov_b32 v45, 1.0")
    a(f"s_mul_i32 s71, s70, {2*18*1024}")
    a(f"s_mul_i32 s73, s67, 3072")
    a(f"s_add_u32 s71, s71, s73")
    a(f"s_add_u32 s71, s71, {U_OFF}")
    a(f"s_add_u32 s73, s71, {18*1024}")
    T1 = acc(1, 0)
    P = lambda r: vr(r, 2)
    for i in range(3):
        b = acc(0, i)
        for e in range(0, 16, 2): a(f"v_pk_add_f32 {P(b+e)}, {P(b+e)}, {P(24+e)}")
        for e in range(0, 16, 2): a(f"v_pk_mul_f32 {P(T1+e)}, {P(b+e)}, {P(b+e)}")
        for e in range(0, 16, 2): a(f"v_pk_fma_f32 {P(T1+e)}, {P(T1+e)}, v[40:41], v[42:43]")
        for e in range(0, 16, 2): a(f"v_pk_mul_f32 {P(T1+e)}, {P(T1+e)}, {P(b+e)}")
        for e in range(16): a(f"v_exp_f32 v{T1+e}, v{T1+e}")
        for e in range(0, 16, 2): a(f"v_pk_add_f32 {P(T1+e)}, {P(T1+e)}, v[44:45]")
        for e in range(16): a(f"v_rcp_f32 v{T1+e}, v{T1+e}")
        for e in range(0, 16, 2): a(f"v_pk_mul_f32 {P(b+e)}, {P(b+e)}, {P(T1+e)}")
        for e in range(8):  a(f"v_cvt_pk_bf16_f32 v{b+e}, v{b+2*e}, v{b+2*e+1}")
        a(f"buffer_store_dwordx4 {vr(b,4)}, v{VF}, s[48:51], s71 offen offset:{i*1024} sc1")
        a(f"buffer_store_dwordx4 {vr(b+4,4)}, v{VF}, s[48:51], s73 offen offset:{i*1024} sc1")
    pub(a)
```

```python
from common import *

MLP2_GRID = 240
for n in range(30):
    assert (n*86) >> 8 == n//3

VFA, VTA, VFB, VTB_, VDT, VDF = 1, 2, 3, 4, 5, 6
FR = [8, 28]
ACC = 64
def acc(i, n): return ACC + 16*(2*i + n)
S_T, S_F, S_WB, S_RO, S_CNT, S_LEFT = 54, 55, 56, 57, 58, 59
STAGE = 20480
YIELD = 2

def mlp2_body(a, wgreg, sm=0, dep=None, pub=None):
    a.srd(40, P_W2, S*F*2)
    a.srd(44, P_WS, WS_SIZE)
    a(f"s_lshr_b32 s67, {wgreg}, 3")
    a("s_mul_i32 s66, s67, 86")
    a("s_lshr_b32 s66, s66, 8")
    a("s_mul_i32 s68, s66, 3")
    a("s_sub_u32 s67, s67, s68")
    a(f"s_and_b32 s68, {wgreg}, 7")
    a("s_mul_i32 s68, s68, 10")
    a("s_add_u32 s66, s66, s68")
    a("s_lshr_b32 s69, s66, 4")
    a("s_and_b32 s66, s66, 15")
    a("s_cmp_eq_u32 s69, 4")
    a(f"s_cselect_b32 s{S_CNT}, 28, 29")
    a(f"s_mov_b32 s{S_LEFT}, s{S_CNT}")
    a(f"s_mul_i32 s{S_T}, s69, {928*4096}")
    a("s_lshl_b32 s70, s66, 8")
    a(f"s_add_u32 s{S_T}, s{S_T}, s70")
    a("s_lshl_b32 s70, s52, 15")
    a(f"s_add_u32 s{S_T}, s{S_T}, s70")
    a(f"s_mul_i32 s{S_F}, s69, {58*18*1024}")
    a("s_mul_i32 s70, s67, 6144")
    a(f"s_add_u32 s{S_F}, s{S_F}, s70")
    a("s_lshr_b32 s70, s52, 1")
    a(f"s_mul_i32 s70, s70, {18*1024}")
    a(f"s_add_u32 s{S_F}, s{S_F}, s70")
    a("s_and_b32 s71, s52, 1")
    a("s_mul_i32 s70, s71, 3072")
    a(f"s_add_u32 s{S_F}, s{S_F}, s70")
    a(f"s_add_u32 s{S_F}, s{S_F}, {U_OFF}")
    a("s_lshl_b32 s60, s52, 11")
    a("s_mul_i32 s61, s52, 3072")
    a("s_add_u32 s61, s61, 8192")
    a(f"s_mov_b32 s{S_WB}, 0")
    a(f"s_mov_b32 s{S_RO}, 0")
    a(f"v_lshrrev_b32 v8, 4, v0")
    a(f"v_and_b32 v9, 3, v0")
    a(f"v_lshlrev_b32 v9, 4, v9")
    a(f"v_lshl_add_u32 v8, v8, 6, v9")
    a(f"v_bfe_u32 v9, v0, 2, 2")
    a(f"v_lshl_add_u32 v{VDT}, v9, 12, v8")
    a(f"v_lshlrev_b32 v{VDF}, 4, v0")
    a(f"v_lshrrev_b32 v8, 5, v0")
    a(f"v_lshlrev_b32 v8, 10, v8")
    a(f"v_lshl_add_u32 v8, v9, 6, v8")
    a(f"v_bfe_u32 v9, v0, 4, 1")
    a(f"v_lshl_add_u32 v8, v9, 5, v8")
    a(f"v_and_b32 v9, 3, v0")
    a(f"v_lshl_add_u32 v8, v9, 3, v8")
    a("s_lshr_b32 s72, s52, 1")
    a("s_lshl_b32 s70, s72, 9")
    a(f"v_add_u32 v{VTB_}, s70, v8")
    a("s_mul_i32 s70, s71, 3072")
    a("s_add_u32 s70, s70, 8192")
    a(f"v_add_u32 v{VFB}, s70, v{VDF}")
    a(f"v_mov_b32 v{VTA}, v{VTB_}")
    a(f"v_mov_b32 v{VFA}, v{VFB}")

    def dma_t(i, wb, st):
        a(f"s_add_u32 m0, s{wb}, {i*1024}")
        if i:
            a(f"s_add_u32 s63, s{st}, {4*4096}")
            a(f"buffer_load_dwordx4 v{VDT}, s[40:43], s63 offen lds")
        else:
            a("s_nop 0")
            a(f"buffer_load_dwordx4 v{VDT}, s[40:43], s{st} offen lds")
    def dma_f(i, wb, sf):
        if i == 0:
            a(f"s_mov_b32 m0, s{wb}")
            a("s_nop 0")
        a(f"buffer_load_dwordx4 v{VDF}, s[44:47], s{sf} offen offset:{i*1024} sc1 lds")
    for st in range(4):
        a(f"s_add_u32 s62, s60, {st*STAGE}")
        dma_t(0, 62, S_T); dma_t(1, 62, S_T)
        a(f"s_add_u32 s{S_T}, s{S_T}, {32*4096}")
    if dep: dep(a)
    for st in range(3):
        a(f"s_add_u32 s64, s61, {st*STAGE}")
        for i in range(3): dma_f(i, 64, S_F)
        a(f"s_add_u32 s{S_F}, s{S_F}, {2*18*1024}")
    a(f"s_add_u32 s64, s61, {3*STAGE}")
    a(f"s_sub_u32 s{S_LEFT}, s{S_LEFT}, 4")
    def reads(sn, step):
        b = FR[sn]
        Fr = [((sn, "F", i), f"ds_read_b128 {vr(b+4*i,4)}, v{VFA} offset:{step*6144 + i*1024}") for i in range(3)]
        T = [((sn, "T", n), f"ds_read_b64_tr_b16 {vr(b+12+4*n+2*sec,2)}, v{VTA} offset:{step*4096 + sec*2048 + n*256}") for n in range(2) for sec in range(2)]
        return [Fr[0], T[0], T[1], T[2], T[3], Fr[1], Fr[2]]
    def mfma(ls, sn, k, first):
        b = FR[sn]
        i, n = k >> 1, k & 1
        ls.need([(sn, "F", i), (sn, "T", n)])
        if YIELD > 1:
            if k % YIELD == 0: a("s_setprio 0")
            if k % YIELD == 1: a("s_setprio 2")
        c = vr(acc(i, n), 16)
        a(f"v_mfma_f32_32x32x16_bf16 {c}, {vr(b+4*i,4)}, {vr(b+12+4*n,4)}, {'0' if first else c}")
    def body(first, vm):
        ls = LdsSched(a, [r[0] for r in reads(0, 0)])
        r = reads(1, 1)
        cut = [0, 4, 7, 7, 7, 7, 7]
        for k in range(6):
            mfma(ls, 0, k, first)
            for x in r[cut[k]:cut[k+1]]: ls.read(*x)
            if k == 0: dma_f(0, 64, S_F)
            if k == 2: dma_f(1, 64, S_F)
            if k == 3:
                a(f"s_add_u32 s{S_RO}, s{S_RO}, {STAGE}")
                a(f"s_cmp_eq_u32 s{S_RO}, {4*STAGE}")
                a(f"s_cselect_b32 s{S_RO}, 0, s{S_RO}")
                a(f"v_add_u32 v{VFA}, s{S_RO}, v{VFB}")
                a(f"v_add_u32 v{VTA}, s{S_RO}, v{VTB_}")
            if k == 4:
                dma_f(2, 64, S_F)
                a(f"s_add_u32 s{S_F}, s{S_F}, {2*18*1024}")
            if k == 5:
                a(f"s_cmp_gt_i32 s{S_LEFT}, 0")
                a(f"s_cselect_b32 s42, s42, 0")
                a(f"s_cselect_b32 s46, s46, 0")
                a(f"s_add_u32 s62, s60, s{S_WB}")
                a(f"s_add_u32 s64, s61, s{S_WB}")
        mfma(ls, 1, 0, False)
        ls.drain(f"vmcnt({vm}) ")
        a("s_barrier")
        r = reads(0, 0)
        for x in r[0:3]: ls.read(*x)
        mfma(ls, 1, 1, False)
        for x in r[3:7]: ls.read(*x)
        mfma(ls, 1, 2, False)
        dma_t(0, 62, S_T)
        mfma(ls, 1, 3, False)
        a(f"s_sub_u32 s{S_LEFT}, s{S_LEFT}, 1")
        a(f"s_mov_b32 s{S_WB}, s{S_RO}")
        mfma(ls, 1, 4, False)
        dma_t(1, 62, S_T)
        a(f"s_add_u32 s{S_T}, s{S_T}, {32*4096}")
        mfma(ls, 1, 5, False)
    a("s_waitcnt vmcnt(6)")
    a("s_barrier")
    for r in reads(0, 0): a(r[1])
    a.stamp_mid(sm)
    body(True, 6)
    body(False, 8)
    a(f"s_sub_u32 s{S_CNT}, s{S_CNT}, 2")
    L = a.newlabel("mlp2")
    a.raw(".p2align 6")
    a.label(L)
    body(False, 10)
    a(f"s_sub_u32 s{S_CNT}, s{S_CNT}, 1")
    a(f"s_cmp_lg_u32 s{S_CNT}, 0")
    a(f"s_cbranch_scc1 {L}")
    a("s_setprio 2")
    a.stamp_mid(sm+1)
    a(f"s_mul_i32 s73, s69, {YPB_SZ}")
    a("s_lshl_b32 s70, s67, 1")
    a("s_add_u32 s70, s70, s71")
    a(f"s_mul_i32 s70, s70, {3*64*2048}")
    a("s_add_u32 s73, s73, s70")
    a("s_lshl_b32 s70, s66, 1")
    a("s_add_u32 s70, s70, s72")
    a("s_lshl_b32 s70, s70, 12")
    a("s_add_u32 s73, s73, s70")
    a(f"s_add_u32 s73, s73, {YP_OFF}")
    a("s_nop 7")
    for i in range(3):
        for n in range(2):
            b = acc(i, n)
            for e in range(8):
                a(f"v_cvt_pk_bf16_f32 v{b+e}, v{b+2*e}, v{b+2*e+1}")
            for hf in range(2):
                a(f"buffer_store_dwordx4 {vr(b+4*hf,4)}, v{VDF}, s[48:51], s73 offen offset:{n*2048+hf*1024}{' sc1' if pub else ''}")
        if i < 2:
            a(f"s_add_u32 s73, s73, {64*2048}")
    if pub: pub(a)
```

```python
from common import *

MB_U, MB_H, MB_QKV, MB_O, MB_Y, MB_N = 0, 256, 384, 512, 768, 1024
def mb(i): return CNT_OFF + 256*i
SPIN_MAX = 0x40000

def wave_setup(a):
    a("v_lshrrev_b32 v1, 6, v0")
    a("v_and_b32 v0, 63, v0")
    a("s_nop 0")
    a("v_readfirstlane_b32 s52, v1")
    a("s_waitcnt lgkmcnt(0)")

def spin(a, srd, soff, target, vt, sleep=8):
    L = a.newlabel("poll"); Ld = a.newlabel("polld")
    a(f"v_mov_b32 v{vt}, 0")
    a("s_mov_b32 s74, 0")
    a.label(L)
    a("s_mov_b64 exec, 1")
    a(f"buffer_load_dword v{vt+1}, v{vt}, s[{srd}:{srd+3}], {soff} offen sc1")
    a("s_mov_b64 exec, -1")
    a("s_waitcnt vmcnt(0)")
    a(f"v_readfirstlane_b32 s75, v{vt+1}")
    a("s_add_u32 s74, s74, 1")
    a(f"s_cmp_ge_u32 s75, {target}")
    a(f"s_cbranch_scc1 {Ld}")
    a(f"s_sleep {sleep}")
    a(f"s_cmp_lt_u32 s74, {SPIN_MAX}")
    a(f"s_cbranch_scc1 {L}")
    a.label(Ld)

def spin_init(a, vt):
    a("s_and_b32 s77, s2, 1")
    a("s_lshl_b32 s77, s77, 7")
    spin(a, 84, "s77", 1, vt, sleep=16)

def poll(a, sidx, target, vt=5, init=False):
    Ld = a.newlabel("pw")
    a("s_cmp_lg_u32 s52, 0")
    a(f"s_cbranch_scc1 {Ld}")
    if init: spin_init(a, vt)
    if sidx is not None:
        spin(a, 48, f"s{sidx}", target, vt)
    a.label(Ld)
    a("s_barrier")

def publish(a, sidx, nrep, vt=5, init=False, voff=None, ninstr=1):
    L = a.newlabel("pub")
    a("s_waitcnt vmcnt(0)")
    a("s_barrier")
    a("s_cmp_lg_u32 s52, 0")
    a(f"s_cbranch_scc1 {L}")
    if init: spin_init(a, vt)
    if voff: voff(a, vt)
    else: a(f"v_lshlrev_b32 v{vt}, 8, v0")
    a(f"v_mov_b32 v{vt+1}, 1")
    if isinstance(nrep, str):
        a(f"s_mov_b32 exec_lo, {nrep}")
        a("s_mov_b32 exec_hi, 0")
    elif nrep <= 32:
        a(f"s_mov_b32 exec_lo, {((1 << nrep) - 1) & 0xffffffff}")
        a("s_mov_b32 exec_hi, 0")
    for i in range(ninstr):
        a(f"buffer_atomic_add v{vt+1}, v{vt}, s[48:51], s{sidx} offen sc1")
        if i + 1 < ninstr: a(f"s_add_u32 s{sidx}, s{sidx}, {64*256}")
    a("s_mov_b64 exec, -1")
    a.label(L)

def init_mailboxes(a):
    a("v_lshlrev_b32 v5, 8, v0")
    a("v_mov_b32 v6, 0")
    a("s_lshl_b32 s72, s52, 16")
    a(f"s_add_u32 s72, s72, {CNT_OFF}")
    for i in range(4):
        a("buffer_store_dword v6, v5, s[48:51], s72 offen sc1")
        if i < 3: a(f"s_add_u32 s72, s72, {64*256}")
    a("s_waitcnt vmcnt(0)")
    a("s_barrier")
    L = a.newlabel("ini")
    a("s_cmp_lg_u32 s52, 0")
    a(f"s_cbranch_scc1 {L}")
    a("v_lshlrev_b32 v5, 7, v0")
    a("v_mov_b32 v6, 1")
    a("s_mov_b64 exec, 3")
    a("buffer_store_dword v6, v5, s[84:87], 0 offen sc1")
    a("s_mov_b64 exec, -1")
    a.label(L)
```

```python
import sys
from common import *
import sync, k_front, k_mlp1, k_mlp2, k_attn, k_final
from sync import mb, MB_U, MB_H, MB_QKV, MB_O, MB_Y

HEADER = open("cdna_kernels/" + NAME + ".s.ref").read().split("; Override launch geometry")[0]
N_WO = 18
W2_TOUCH = True
FRONT_ONLY = False
AUX_G0 = 0
AUX_NT = ''

def gen_main(a, name):
    a.kernel_begin(name)
    a("s_cmp_ge_u32 s2, 512")
    a("s_cbranch_scc1 L_end")
    a.load_kernargs()
    sync.wave_setup(a)
    a.srd(48, P_WS, WS_SIZE)
    a.srd(84, P_DBG, 256)
    a("s_cmp_ge_u32 s2, 256")
    a("s_cbranch_scc1 L_slotB")
    a("s_setprio 3")
    a("s_cmp_ge_u32 s2, 192")
    a("s_cbranch_scc1 L_ln")
    def pub_qkv(a):
        a("s_and_b32 s72, s56, 3")
        a("s_lshl_b32 s72, s72, 13")
        a(f"s_add_u32 s72, s72, {mb(MB_QKV)}")
        sync.publish(a, 72, 32, init=True)
    k_front.qkv_body(a, "s2", pub_qkv)
    a("s_branch L_attn")
    a.label("L_ln")
    a("s_sub_u32 s3, s2, 192")
    def pub_h(a):
        a("s_lshr_b32 s72, s58, 4")
        a("s_lshl_b32 s72, s72, 13")
        a(f"s_add_u32 s72, s72, {mb(MB_H)}")
        sync.publish(a, 72, 32, init=True)
    k_front.ln_body(a, "s3", pub_h)
    a.stamp_mid(6)
    k_front.gate_own(a)
    a(f"s_cmp_ge_u32 s3, {N_WO}")
    a("s_cbranch_scc1 L_nowo")
    k_front.wo_body(a, "s3")
    a.label("L_nowo")
    a(f"s_mov_b32 s72, {mb(MB_QKV)}")
    sync.publish(a, 72, 64, ninstr=2)
    a.label("L_attn")
    a.stamp_mid(2)
    if FRONT_ONLY: a("s_branch L_done")
    def dep_qkv(a):
        a("s_lshr_b32 s72, s61, 3")
        a("s_lshl_b32 s72, s72, 5")
        a("s_bfe_u32 s73, s2, 0x50003")
        a("s_add_u32 s72, s72, s73")
        a("s_lshl_b32 s72, s72, 8")
        a(f"s_add_u32 s72, s72, {mb(MB_QKV)}")
        sync.poll(a, 72, 48 + 64, vt=8)
        a("s_setprio 1")
    def pub_o(a):
        a("s_setprio 3")
        a("s_lshr_b32 s72, s2, 5")
        a("s_lshl_b32 s72, s72, 13")
        a(f"s_add_u32 s72, s72, {mb(MB_O)}")
        sync.publish(a, 72, 24)
    TV = 140
    def tsetup(a):
        a.srd(80, P_W2, S*F*2)
        a("s_lshr_b32 s72, s2, 3")
        a("s_lshl_b32 s72, s72, 2")
        a("s_add_u32 s72, s72, s52")
        a("s_mul_i32 s73, s72, 205")
        a("s_lshr_b32 s73, s73, 11")
        a("s_mul_i32 s76, s73, 10")
        a("s_sub_u32 s72, s72, s76")
        a("s_and_b32 s76, s2, 7")
        a("s_mul_i32 s76, s76, 10")
        a("s_add_u32 s72, s72, s76")
        a("s_lshr_b32 s76, s72, 4")
        a("s_and_b32 s72, s72, 15")
        a(f"s_mul_i32 s76, s76, {928*4096}")
        a("s_lshl_b32 s72, s72, 8")
        a("s_add_u32 s76, s76, s72")
        a("s_lshl_b32 s72, s73, 17")
        a("s_add_u32 s76, s76, s72")
        a("s_cmp_ge_u32 s73, 12")
        a("s_cselect_b32 s82, 0, s82")
        a(f"v_lshrrev_b32 v{TV}, 1, v0")
        a(f"v_lshlrev_b32 v{TV}, 12, v{TV}")
        a(f"v_and_b32 v{TV+1}, 1, v0")
        a(f"v_lshl_add_u32 v{TV}, v{TV+1}, 7, v{TV}")
        a(f"v_add_u32 v{TV}, s76, v{TV}")
        a("s_mov_b32 s78, s73")
    def touch(a):
        a("s_cmp_ge_u32 s78, 29")
        a("s_cselect_b32 s82, 0, s82")
        a(f"buffer_load_dword v{TV+1}, v{TV}, s[80:83], 0 offen")
        a(f"v_add_u32 v{TV}, {12*32*4096}, v{TV}")
        a("s_add_u32 s78, s78, 12")
    k_attn.attn_body(a, "s2", dep_qkv, pub_o, sm=3, tsetup=tsetup if W2_TOUCH else None, touch=touch if W2_TOUCH else None)
    a.stamp_mid(5)
    a("s_cmp_ge_u32 s2, 192")
    a("s_cbranch_scc1 L_done")
    def dep_o(a):
        a("s_lshr_b32 s72, s53, 2")
        a("s_lshl_b32 s72, s72, 5")
        a("s_lshr_b32 s73, s2, 3")
        a("s_add_u32 s72, s72, s73")
        a("s_lshl_b32 s72, s72, 8")
        a(f"s_add_u32 s72, s72, {mb(MB_O)}")
        sync.poll(a, 72, 32, vt=8)
    def dep_y(a):
        a("s_lshl_b32 s72, s54, 5")
        a("s_add_u32 s72, s72, s53")
        a("s_lshl_b32 s72, s72, 8")
        a(f"s_add_u32 s72, s72, {mb(MB_Y)}")
        sync.poll(a, 72, 5, vt=8)
        a.stamp_mid(7)
    k_final.final_body(a, "s2", dep_o, dep_y, sc=" sc1", sm=6)
    a("s_branch L_done")
    a.label("L_slotB")
    a("s_sub_u32 s3, s2, 256")
    a("s_cmp_lg_u32 s3, 0")
    a("s_cbranch_scc1 L_noinit")
    sync.init_mailboxes(a)
    a.label("L_noinit")
    if FRONT_ONLY != 2: k_front.xw_touch(a, "s3")
    a("s_waitcnt vmcnt(0)")
    if FRONT_ONLY: a("s_branch L_done")
    a(f"s_cmp_ge_u32 s3, {k_mlp1.MLP1_GRID}")
    a("s_cbranch_scc1 L_aux")
    def dep_h(a):
        sync.poll(a, None, 0, vt=5, init=True)
        a("s_lshl_b32 s72, s52, 5")
        a("s_and_b32 s73, s3, 31")
        a("s_add_u32 s72, s72, s73")
        a("s_lshl_b32 s72, s72, 8")
        a(f"s_add_u32 s72, s72, {mb(MB_H)}")
        sync.spin(a, 48, "s72", 16, 5)
    def pub_u(a):
        a("s_mul_i32 s73, s66, 565")
        a("s_lshr_b32 s73, s73, 12")
        a("s_lshr_b32 s72, s67, 1")
        a("s_mul_i32 s72, s72, 5")
        a("s_add_u32 s73, s73, s72")
        a("s_lshl_b32 s73, s73, 12")
        a(f"s_add_u32 s73, s73, {mb(MB_U)}")
        a("s_lshr_b32 s72, 0x204080, s66")
        a("s_cmp_lt_u32 s66, 32")
        a("s_cselect_b32 s72, s72, 0")
        a("s_and_b32 s72, s72, 1")
        a("s_cselect_b32 s72, -1, 0xffff")
        sync.publish(a, 73, "s72")
    k_mlp1.mlp1_body(a, "s3", dep_h, pub_u, sm=0)
    a.stamp_mid(2)
    a("s_cmp_lt_u32 s3, 16")
    a("s_cbranch_scc1 L_done")
    a("s_branch L_mlp2")
    a.label("L_aux")
    a(f"s_sub_u32 s78, s3, {k_mlp1.MLP1_GRID}")
    a.stamp_mid(0)
    a.srd(40, P_W1, S*F*2)
    a("s_and_b32 s66, s78, 7")
    a("s_mul_i32 s66, s66, 9")
    a("s_lshr_b32 s66, s66, 1")
    a("s_lshr_b32 s67, s78, 3")
    a("s_add_u32 s66, s66, s67")
    a("s_lshl_b32 s66, s66, 8")
    a(f"s_mul_i32 s67, s52, {512*F*2}")
    a("s_add_u32 s66, s66, s67")
    a(f"s_add_u32 s66, s66, {AUX_G0*32*F*2}")
    a("v_lshrrev_b32 v5, 1, v0")
    a(f"v_mul_u32_u24 v5, {F*2}, v5")
    a("v_and_b32 v6, 1, v0")
    a("v_lshl_add_u32 v5, v6, 7, v5")
    for n in range(16 - AUX_G0):
        a(f"buffer_load_dword v{8+n}, v5, s[40:43], s66 offen{AUX_NT}")
        a(f"s_add_u32 s66, s66, {32*F*2}")
        if n >= 1: a("s_waitcnt vmcnt(1)")
    a("s_waitcnt vmcnt(0)")
    sync.poll(a, None, 0, vt=5, init=True)
    a.stamp_mid(2)
    a.label("L_mlp2")
    a("s_sub_u32 s3, s2, 272")
    def dep_u(a):
        a("s_mul_i32 s73, s67, 5")
        a("s_add_u32 s73, s73, s69")
        a("s_lshl_b32 s73, s73, 4")
        a("s_add_u32 s73, s73, s66")
        a("s_lshl_b32 s73, s73, 8")
        a(f"s_add_u32 s73, s73, {mb(MB_U)}")
        a("s_cmp_eq_u32 s69, 4")
        a("s_cselect_b32 s76, 14, 16")
        sync.poll(a, 73, "s76", vt=8)
    def pub_y(a):
        a("s_lshl_b32 s73, s67, 6")
        a("s_lshl_b32 s70, s66, 1")
        a("s_add_u32 s73, s73, s70")
        a("s_lshl_b32 s73, s73, 8")
        a(f"s_add_u32 s73, s73, {mb(MB_Y)}")
        def voff(a, vt):
            a(f"v_lshrrev_b32 v{vt}, 1, v0")
            a(f"v_lshlrev_b32 v{vt}, 13, v{vt}")
            a(f"v_and_b32 v{vt+1}, 1, v0")
            a(f"v_lshl_add_u32 v{vt}, v{vt+1}, 8, v{vt}")
        sync.publish(a, 73, 4, vt=8, voff=voff)
    k_mlp2.mlp2_body(a, "s3", sm=3, dep=dep_u, pub=pub_y)
    a.label("L_done")
    a.end()
    a.label("L_end")
    a("s_endpgm")

def build(stamp=False):
    a = Asm()
    a.stamp = stamp
    fin = NAME + "_kernel"
    out = HEADER
    out += f"; @launch kernel={fin} grid=(512,1,1) block=(256,1,1) lds=81920\n"
    out += '.amdgcn_target "amdgcn-amd-amdhsa--gfx950"\n.text\n'
    gen_main(a, fin)
    out += a.text()
    out += '.section .rodata,"a"\n'
    out += ".p2align 6\n" + descriptor(fin, 256, None)
    return out

if __name__ == "__main__":
    open("main.s", "w").write(build())
    open("stamp.s", "w").write(build(True))
    AUX_NT = " nt"
    open("va.s", "w").write(build(True))
    AUX_NT = ""
    k_mlp1.YIELD = 3; k_mlp2.YIELD = 3
    open("vb.s", "w").write(build(True))
    print("wrote")
```

```python
from common import *

ATTN_GRID = 256
SKIP = False
CH = 16*KV_RS
ATTN_LDS = 2*CH + 64

VK0, VK1, VV, VDM = 1, 2, 3, 4
Q0 = [8, 12]; Q1 = [16, 18]
K0 = [20, 24]; K1 = [28, 30]
V = [32, 40]
P = [48, 56]
Sx = [64, 80]
O = [96, 112]
TMP = 128
NV_ATTN = 144
S_KV, S_C, S_ATT, S_VM = 54, 55, 56, 58

def dma_chunk(a, sbuf, soff):
    for i in range(9):
        a(f"s_add_u32 m0, s{sbuf}, {i*4096}")
        a(f"s_add_u32 s60, s{soff}, {i*4096}")
        a(f"buffer_load_dwordx4 v{VDM}, s[48:51], s60 offen sc1 lds")

def qk(a, which, aq, kb):
    s = vr(Sx[aq], 16)
    if which == 0:
        a(f"v_mfma_f32_32x32x16_bf16 {s}, {vr(K0[kb],4)}, {vr(Q0[aq],4)}, 0")
    else:
        a(f"v_mfma_f32_32x32x8_bf16 {s}, {vr(K1[kb],2)}, {vr(Q1[aq],2)}, {s}")

def pv(a, which, aq, vb):
    o = vr(O[aq], 16)
    a(f"v_mfma_f32_32x32x16_bf16 {o}, {vr(V[vb]+4*which,4)}, {vr(P[aq]+4*which,4)}, {o}")

def read_k(a, kb, rec):
    a(f"ds_read_b128 {vr(K0[kb],4)}, v{VK0} offset:{rec*KV_RS}")
    a(f"ds_read_b32 v{K1[kb]}, v{VK1} offset:{rec*KV_RS}")

def read_v(a, vb, rec):
    a(f"s_mov_b64 exec, s[{S_VM}:{S_VM+1}]")
    a(f"ds_read_b128 {vr(V[vb],4)}, v{VV} offset:{rec*KV_RS}")
    a(f"ds_read_b128 {vr(V[vb]+4,4)}, v{VV} offset:{rec*KV_RS + 576}")
    a(f"s_mov_b64 exec, -1")

def expq(a, aq, q):
    for e in range(4):
        r = Sx[aq] + 4*q + e
        a(f"v_exp_f32 v{r}, v{r}")
    for c in range(2):
        r = Sx[aq] + 4*q + 2*c
        a(f"v_cvt_pk_bf16_f32 v{P[aq]+2*q+c}, v{r}, v{r+1}")

def block(a, kt, aq, rec=None, do_qk=True):
    an = 1 - aq
    kq = (kt + aq) & 1
    vb = (kt - 1 + aq) & 1
    if aq == 1:
        a("s_waitcnt lgkmcnt(0)")
    if do_qk: qk(a, 0, an, kq)
    if rec is not None:
        if aq == 0: read_k(a, (kt+1) & 1, rec)
        else: read_v(a, (kt+1) & 1, rec)
    expq(a, aq, 0)
    if do_qk: qk(a, 1, an, kq)
    expq(a, aq, 1)
    pv(a, 0, an, vb)
    expq(a, aq, 2)
    pv(a, 1, an, vb)
    expq(a, aq, 3)

def set_m(a, aq, m):
    t = TMP
    a(f"v_mov_b32 v{t}, v{m}")
    a("s_nop 1")
    a(f"v_permlane32_swap_b32 v{m}, v{t}")
    a("s_nop 1")
    a(f"v_max_f32 v{m}, v{m}, v{t}")
    a(f"v_sub_f32 v{m}, 0, v{m}")
    a(f"v_and_b32 v{t}, 0xffff0000, v{m}")
    a(f"v_sub_f32 v{m}, v{m}, v{t}")
    a(f"v_and_b32 v{t+1}, 0xffff0000, v{m}")
    a(f"v_sub_f32 v{m}, v{m}, v{t+1}")
    a(f"v_lshrrev_b32 v{t}, 16, v{t}")
    a(f"v_or_b32 v{t}, v{t}, v{t+1}")
    a(f"v_lshrrev_b32 v{m}, 16, v{m}")
    a(f"v_cmp_gt_u32 vcc, 32, v0")
    a("s_nop 1")
    a(f"v_cndmask_b32 v{Q1[aq]+1}, v{m}, v{t}, vcc")

def tile_max(a, aq, m, first):
    s = Sx[aq]
    if first:
        a(f"v_max3_f32 v{m}, v{s}, v{s+1}, v{s+2}")
        a(f"v_max_f32 v{m}, v{m}, v{s+3}")
        st = 4
    else:
        st = 0
    for e in range(st, 16, 2):
        a(f"v_max3_f32 v{m}, v{m}, v{s+e}, v{s+e+1}")

def attn_body(a, wgreg, dep, pub, sm=0, tsetup=None, touch=None, dep_g=None):
    a(f"s_and_b32 s61, {wgreg}, 7")
    a("s_lshl_b32 s61, s61, 2")
    a(f"s_bfe_u32 s62, {wgreg}, 0x20003")
    a("s_add_u32 s61, s61, s62")
    a(f"s_lshr_b32 s62, {wgreg}, 5")
    a("s_lshl_b32 s62, s62, 3")
    a("s_lshl_b32 s63, s52, 1")
    a("s_add_u32 s62, s62, s63")
    a(f"s_mul_i32 s{S_KV}, s61, {64*KV_RS}")
    a(f"s_add_u32 s{S_KV}, s{S_KV}, {KV_OFF}")
    a("s_lshl_b32 s64, s52, 10")
    a(f"s_add_u32 s65, s64, {CH}")
    a(f"v_lshlrev_b32 v5, 4, v0")
    a(f"v_add_u32 v{VDM}, s64, v5")
    a("s_lshl_b32 s63, s61, 6")
    a("s_add_u32 s63, s63, s62")
    a(f"s_mul_i32 s63, s63, {QR_RS}")
    a(f"s_add_u32 s63, s63, {QR_OFF}")
    a("v_and_b32 v6, 31, v0")
    a("v_lshlrev_b32 v7, 2, v6")
    if tsetup: tsetup(a)
    dep(a)
    for aq in range(2):
        a(f"buffer_load_dwordx4 {vr(Q0[aq],4)}, v5, s[48:51], s63 offen offset:{aq*QR_RS} sc1")
        a(f"buffer_load_dword v{Q1[aq]}, v7, s[48:51], s63 offen offset:{aq*QR_RS + 1024} sc1")
    a(f"s_mov_b32 s{S_VM}, 0x3ffff")
    a(f"s_mov_b32 s{S_VM+1}, 0x3ffff")
    a(f"s_mov_b32 s{S_ATT}, 0")
    for b in range(2):
        a(f"v_mov_b32 v{K1[b]+1}, 0x3f803f80")
        a(f"v_mov_b32 v{Q1[b]+1}, 0")
        for e in range(8):
            a(f"v_mov_b32 v{V[b]+e}, 0")
    a("s_mov_b32 exec_lo, 0x440000")
    a("s_mov_b32 exec_hi, 0x440000")
    for b in range(2):
        for e in range(8):
            a(f"v_mov_b32 v{V[b]+e}, 0x3f803f80")
    a("s_mov_b64 exec, -1")
    a.label("L_attn_start")
    dma_chunk(a, 64, S_KV)
    a(f"s_add_u32 s66, s{S_KV}, {CH}")
    dma_chunk(a, 65, 66)
    a(f"s_add_u32 s66, s66, {CH}")
    a(f"s_mov_b32 s67, s64")
    a(f"s_mov_b32 s68, s65")
    a(f"v_mov_b32 v{VK0}, v5")
    a(f"v_add_u32 v{VK1}, 1024, v7")
    a(f"v_lshrrev_b32 v{VV}, 5, v0")
    a(f"v_mul_u32_u24 v{VV}, 288, v{VV}")
    a(f"v_lshl_add_u32 v{VV}, v6, 4, v{VV}")
    a(f"v_add_u32 v{VV}, 1152, v{VV}")
    for aq in range(2):
        for e in range(16):
            a(f"v_mov_b32 v{O[aq]+e}, 0")
    for e in range(8):
        a(f"v_mov_b32 v{P[1]+e}, 0")
    a("s_waitcnt vmcnt(16)")
    a("s_barrier")
    if touch: touch(a)
    read_k(a, 0, 0)
    read_v(a, 0, 0)
    a(f"v_cmp_gt_u32 vcc, 32, v0")
    a("s_nop 1")
    for aq in range(2):
        a(f"v_cndmask_b32 v{Q1[aq]}, 0, v{Q1[aq]}, vcc")
    a("s_waitcnt lgkmcnt(0)")
    a(f"s_cmp_lg_u32 s{S_ATT}, 0")
    a("s_cbranch_scc1 L_attn_havemax")
    for aq in range(2):
        qk(a, 0, aq, 0); qk(a, 1, aq, 0)
    a("s_nop 15")
    for aq in range(2):
        tile_max(a, aq, TMP+2+aq, True)
    for aq in range(2):
        set_m(a, aq, TMP+2+aq)
    a("s_nop 1")
    a.label("L_attn_havemax")
    qk(a, 0, 0, 0); qk(a, 1, 0, 0)
    a(f"s_mov_b32 s{S_C}, 0")
    a.stamp_mid(sm)
    a("s_setprio 1")
    a("s_nop 15")
    a("s_branch L_attn_out" if SKIP else "s_branch L_attn_entry")
    a.raw(".p2align 6")
    a.label("L_attn_loop")
    a("s_waitcnt vmcnt(0) lgkmcnt(0)")
    a("s_barrier")
    a(f"v_xor_b32 v{VK0}, {CH}, v{VK0}")
    a(f"v_xor_b32 v{VK1}, {CH}, v{VK1}")
    a(f"v_xor_b32 v{VV}, {CH}, v{VV}")
    a(f"s_cmp_eq_u32 s{S_C}, 3")
    a("s_cbranch_scc1 L_attn_nodma")
    dma_chunk(a, 67, 66)
    a(f"s_add_u32 s66, s66, {CH}")
    a("s_mov_b32 s69, s67")
    a("s_mov_b32 s67, s68")
    a("s_mov_b32 s68, s69")
    if touch: touch(a)
    a.label("L_attn_nodma")
    block(a, -1, 0, 0); block(a, -1, 1, 0)
    a.label("L_attn_entry")
    for kt in range(15):
        if kt == 2:
            a("s_waitcnt vmcnt(9)")
            a("s_barrier")
        block(a, kt, 0, kt+1); block(a, kt, 1, kt+1)
    a(f"s_add_u32 s{S_C}, s{S_C}, 1")
    a(f"s_cmp_lt_u32 s{S_C}, 4")
    a("s_cbranch_scc1 L_attn_loop")
    dep_g(a)
    a("s_lshl_b32 s69, s62, 7")
    a(f"s_add_u32 s69, s69, {G_OFF}")
    a(f"buffer_load_dword v{TMP+8}, v7, s[48:51], s69 offen sc1")
    a(f"buffer_load_dword v{TMP+9}, v7, s[48:51], s69 offen offset:128 sc1")
    block(a, 15, 0); block(a, 15, 1, do_qk=False)
    a("s_nop 1")
    pv(a, 0, 1, 1); pv(a, 1, 1, 1)
    a("s_nop 15")
    a.stamp_mid(sm+1)
    a("s_setprio 3")
    a(f"s_cmp_lg_u32 s{S_ATT}, 0")
    a("s_cbranch_scc1 L_attn_out")
    a(f"v_max_f32 v{TMP}, v{O[0]+10}, v{O[1]+10}")
    for aq in range(2):
        for e in range(11):
            a(f"v_fma_f32 v{TMP}, v{O[aq]+e}, 0, v{TMP}")
    a(f"v_mov_b32 v{TMP+1}, 0x5f800000")
    a(f"v_cmp_nlt_f32 vcc, v{TMP}, v{TMP+1}")
    a("s_cmp_lg_u64 vcc, 0")
    a("s_cselect_b32 s69, 1, 0")
    a(f"v_mov_b32 v{TMP}, s69")
    a(f"s_lshl_b32 s69, s52, 2")
    a(f"s_add_u32 s69, s69, {2*CH}")
    a(f"v_mov_b32 v{TMP+1}, s69")
    a(f"ds_write_b32 v{TMP+1}, v{TMP}")
    a(f"v_mov_b32 v{TMP+1}, {2*CH}")
    a("s_waitcnt lgkmcnt(0)")
    a("s_barrier")
    a(f"ds_read_b128 {vr(TMP+4,4)}, v{TMP+1}")
    a("s_waitcnt lgkmcnt(0)")
    a(f"v_or_b32 v{TMP}, v{TMP+4}, v{TMP+5}")
    a(f"v_or3_b32 v{TMP}, v{TMP}, v{TMP+6}, v{TMP+7}")
    a("s_nop 0")
    a(f"v_readfirstlane_b32 s69, v{TMP}")
    a("s_nop 3")
    a("s_cmp_eq_u32 s69, 0")
    a("s_cbranch_scc1 L_attn_out")
    a(f"s_mov_b32 s{S_ATT}, 1")
    for aq in range(2):
        a(f"v_mov_b32 v{Q1[aq]+1}, 0")
        a(f"v_mov_b32 v{TMP+2+aq}, 0xff800000")
    a(f"s_mov_b32 s66, s{S_KV}")
    a(f"s_mov_b32 s{S_C}, 0")
    a.label("L_attn_mx_chunk")
    dma_chunk(a, 64, 66)
    a(f"s_add_u32 s66, s66, {CH}")
    a(f"v_mov_b32 v{VK0}, v5")
    a(f"v_add_u32 v{VK1}, 1024, v7")
    a("s_mov_b32 s69, 0")
    a("s_waitcnt vmcnt(0)")
    a("s_barrier")
    a.label("L_attn_mx_tile")
    read_k(a, 0, 0)
    a(f"v_add_u32 v{VK0}, {KV_RS}, v{VK0}")
    a(f"v_add_u32 v{VK1}, {KV_RS}, v{VK1}")
    a("s_waitcnt lgkmcnt(0)")
    for aq in range(2):
        qk(a, 0, aq, 0); qk(a, 1, aq, 0)
    a("s_nop 15")
    for aq in range(2):
        tile_max(a, aq, TMP+2+aq, False)
    a("s_add_u32 s69, s69, 1")
    a("s_cmp_lt_u32 s69, 16")
    a("s_cbranch_scc1 L_attn_mx_tile")
    a("s_barrier")
    a(f"s_add_u32 s{S_C}, s{S_C}, 1")
    a(f"s_cmp_lt_u32 s{S_C}, 4")
    a("s_cbranch_scc1 L_attn_mx_chunk")
    for aq in range(2):
        set_m(a, aq, TMP+2+aq)
    a("s_branch L_attn_start")
    a.label("L_attn_out")
    a("s_barrier")
    a(f"v_lshrrev_b32 v{TMP}, 5, v0")
    a(f"v_lshlrev_b32 v{TMP}, 11, v{TMP}")
    a(f"v_lshl_add_u32 v{TMP}, v6, 1, v{TMP}")
    a("s_lshl_b32 s69, s52, 7")
    a(f"v_add_u32 v{TMP}, s69, v{TMP}")
    a("s_waitcnt vmcnt(0)")
    for aq in range(2):
        o = O[aq]
        a(f"v_rcp_f32 v{o+10}, v{o+10}")
        a("s_nop 0")
        a(f"v_mul_f32 v{o+10}, v{o+10}, v{TMP+8+aq}")
        for e in range(10):
            a(f"v_mul_f32 v{o+e}, v{o+e}, v{o+10}")
        for e in range(5):
            a(f"v_cvt_pk_bf16_f32 v{o+e}, v{o+2*e}, v{o+2*e+1}")
        for p in range(5):
            e = 2*p
            dim = 8*(e >> 2) + (e & 3)
            if p == 4: a("s_mov_b32 exec_hi, 0")
            a(f"ds_write_b16 v{TMP}, v{o+p} offset:{dim*512 + aq*64}")
            a(f"ds_write_b16_d16_hi v{TMP}, v{o+p} offset:{(dim+1)*512 + aq*64}")
            if p == 4: a("s_mov_b64 exec, -1")
    a(f"v_lshrrev_b32 v{TMP+1}, 5, v0")
    a(f"v_lshlrev_b32 v{TMP+1}, 12, v{TMP+1}")
    a(f"v_lshl_add_u32 v{TMP+1}, v6, 4, v{TMP+1}")
    a(f"s_mul_i32 s69, s61, {18*4096}")
    a(f"s_lshr_b32 s70, {wgreg}, 5")
    a("s_lshl_b32 s70, s70, 9")
    a("s_add_u32 s69, s69, s70")
    a("s_lshl_b32 s70, s52, 13")
    a("s_add_u32 s69, s69, s70")
    a(f"s_add_u32 s69, s69, {O_OFF}")
    a("s_add_u32 s70, s69, 32768")
    a("s_add_u32 s71, s69, 65536")
    a("s_waitcnt lgkmcnt(0)")
    a("s_barrier")
    a(f"ds_read_b128 {vr(O[0],4)}, v{VDM}")
    a(f"ds_read_b128 {vr(O[0]+4,4)}, v{VDM} offset:4096")
    a(f"ds_read_b128 {vr(O[0]+8,4)}, v{VDM} offset:8192")
    a("s_waitcnt lgkmcnt(2)")
    a(f"buffer_store_dwordx4 {vr(O[0],4)}, v{TMP+1}, s[48:51], s69 offen sc1")
    a("s_waitcnt lgkmcnt(1)")
    a(f"buffer_store_dwordx4 {vr(O[0]+4,4)}, v{TMP+1}, s[48:51], s70 offen sc1")
    a("s_cmp_lg_u32 s52, 0")
    a("s_cbranch_scc1 L_attn_st")
    a("s_waitcnt lgkmcnt(0)")
    a(f"buffer_store_dwordx4 {vr(O[0]+8,4)}, v{TMP+1}, s[48:51], s71 offen sc1")
    a.label("L_attn_st")
    pub(a)
```

```python
from common import *

FINAL_GRID = 192

def final_body(a, wgreg, dep_y, sc=" sc1"):
    a.srd(40, P_OUT, S*D*2)
    a(f"s_and_b32 s53, {wgreg}, 7")
    a("s_lshl_b32 s53, s53, 2")
    a(f"s_bfe_u32 s54, {wgreg}, 0x20003")
    a("s_add_u32 s53, s53, s54")
    a(f"s_lshr_b32 s54, {wgreg}, 5")
    a("s_and_b32 s61, s52, 1")
    a("s_lshr_b32 s62, s52, 1")
    a("v_lshlrev_b32 v2, 4, v0")
    a("v_and_b32 v5, 31, v0")
    a("s_lshl_b32 s57, s53, 1")
    a("s_add_u32 s63, s57, s62")
    a("s_lshl_b32 s57, s63, 5")
    a("v_add_u32 v5, s57, v5")
    a(f"s_mul_i32 s56, s54, {3*64*2048}")
    a("s_lshl_b32 s57, s63, 11")
    a("s_add_u32 s56, s56, s57")
    a("s_lshl_b32 s57, s61, 10")
    a("s_add_u32 s56, s56, s57")
    a(f"s_add_u32 s56, s56, {YP_OFF}")
    a("v_mul_u32_u24 v5, 1152, v5")
    a("v_lshrrev_b32 v6, 5, v0")
    a("v_lshl_add_u32 v5, v6, 4, v5")
    a("s_mul_i32 s58, s54, 192")
    a("s_lshl_b32 s57, s61, 5")
    a("s_add_u32 s58, s57, s58")
    dep_y(a)
    Y = 16
    for i in range(3):
        for ks in range(5):
            a(f"s_add_u32 s57, s56, {ks*YPB_SZ + i*64*2048}")
            a(f"buffer_load_dwordx4 {vr(Y+20*i+4*ks,4)}, v2, s[48:51], s57 offen{sc}")
    for i in range(3):
        T = 80 + 16*i
        a(f"s_waitcnt vmcnt({5*(2-i) + i})")
        for ks in range(5):
            for p in range(4):
                y = Y + 20*i + 4*ks + p
                d = T + 2*p if ks == 0 else T + 8 + 2*p
                a(f"v_lshlrev_b32 v{d}, 16, v{y}")
                a(f"v_and_b32 v{d+1}, 0xffff0000, v{y}")
            if ks:
                for p in range(4):
                    a(f"v_pk_add_f32 {vr(T+2*p,2)}, {vr(T+2*p,2)}, {vr(T+8+2*p,2)}")
        for e in range(4):
            a(f"v_cvt_pk_bf16_f32 v{T+e}, v{T+2*e}, v{T+2*e+1}")
        a("s_nop 1")
        a(f"v_permlane32_swap_b32 v{T}, v{T+2}")
        a(f"v_permlane32_swap_b32 v{T+1}, v{T+3}")
        a(f"buffer_store_dwordx4 {vr(T,4)}, v5, s[40:43], s58 offen offset:{i*64}")
```

```python
from common import *
import math
QSCALE = (DH ** -0.5) * math.log2(math.e)
SC = " sc1"
CB = 17408
ACC = 96
SET = [32, 52]

XNT = ''
def qkv_body(a, wgreg, pub, hint=None):
    a.srd(40, P_X, S*D*2)
    a.srd(44, P_WQKV, D*3*D*2)
    a(f"s_and_b32 s53, {wgreg}, 7")
    a(f"s_lshr_b32 s54, {wgreg}, 3")
    a("s_lshr_b32 s55, s53, 1")
    a("s_lshl_b32 s55, s55, 2")
    a("s_and_b32 s56, s54, 3")
    a("s_add_u32 s55, s55, s56")
    a("s_and_b32 s56, s53, 1")
    a("s_mul_i32 s56, s56, 6")
    a("s_lshr_b32 s57, s54, 2")
    a("s_add_u32 s56, s56, s57")
    a("s_lshl_b32 s59, s55, 2")
    a("s_add_u32 s60, s59, s52")
    a("v_lshrrev_b32 v2, 2, v0")
    a("s_lshl_b32 s60, s60, 5")
    a("v_add_u32 v2, s60, v2")
    a("v_mul_u32_u24 v2, 1152, v2")
    a("v_lshrrev_b32 v3, 4, v0")
    a("v_xor_b32 v3, v3, v0")
    a("v_and_b32 v3, 3, v3")
    a("v_lshl_add_u32 v2, v3, 4, v2")
    a(f"v_add_u32 v3, {16*1152}, v2")
    a("s_mul_i32 s65, s56, 288")
    a(f"s_mul_i32 s60, s52, {8*3456}")
    a("s_add_u32 s65, s65, s60")
    for i in range(3):
        a(f"v_add_u32 v7, {64*i}, v0")
        a(f"v_mul_u32_u24 v8, 3641, v7")
        a(f"v_lshrrev_b32 v8, 16, v8")
        a(f"v_mul_u32_u24 v9, 18, v8")
        a(f"v_sub_u32 v7, v7, v9")
        a(f"v_and_b32 v10, 1, v8")
        a(f"v_lshrrev_b32 v9, 1, v8")
        a(f"v_lshl_or_b32 v9, v10, 2, v9")
        a(f"v_mul_u32_u24 v9, 3456, v9")
        a(f"v_lshl_add_u32 v9, v7, 4, v9")
        a(f"v_add_u32 v{4+i}, s65, v9")
    a("s_lshl_b32 s61, s52, 11")
    a("s_mul_i32 s62, s52, 2304")
    a("s_add_u32 s62, s62, 8192")
    a("s_mov_b32 s63, 0")
    a("s_mov_b32 s64, 0")
    a(f"s_mov_b32 s71, {32*3456}")
    a("s_mov_b64 s[72:73], 0xffff")
    def setm0(buf, i):
        if i < 2: a(f"s_add_u32 m0, s61, {buf*CB + i*1024}")
        else: a(f"s_add_u32 m0, s62, {buf*CB + (i-2)*1024}")
    def load(i):
        if i < 2:
            a(f"buffer_load_dwordx4 v{2+i}, s[40:43], s63 offen lds")
            if i == 1: a("s_add_u32 s63, s63, 64")
        elif i < 4:
            a(f"buffer_load_dwordx4 v{2+i}, s[44:47], s64 offen lds")
        else:
            a("s_mov_b64 exec, s[72:73]")
            a(f"buffer_load_dwordx4 v6, s[44:47], s64 offen lds")
            a("s_mov_b64 exec, -1")
            a("s_add_u32 s64, s64, s71")
    for c in range(4):
        for i in range(5 if c < 3 else 2):
            setm0(c, i); a("s_nop 0"); load(i)
    a.stamp_mid(0)
    a("s_and_b32 s57, s52, 1")
    a("s_lshr_b32 s58, s52, 1")
    a("s_lshl_b32 s60, s57, 1")
    a("s_add_u32 s60, s60, s58")
    a("s_add_u32 s59, s59, s60")
    a("v_and_b32 v10, 31, v0")
    a("v_lshrrev_b32 v11, 5, v0")
    a("v_bfe_u32 v12, v10, 2, 2")
    a("v_xor_b32 v12, v12, v11")
    a("v_lshlrev_b32 v13, 6, v10")
    a("v_lshl_add_u32 v16, v12, 4, v13")
    a("s_lshl_b32 s60, s60, 11")
    a("v_add_u32 v16, s60, v16")
    a("v_xor_b32 v17, 32, v16")
    a("v_xor_b32 v18, 0x800, v16")
    a("v_xor_b32 v19, 0x800, v17")
    a("v_bfe_u32 v12, v0, 2, 2")
    a("v_lshlrev_b32 v12, 1, v12")
    a("v_lshl_add_u32 v12, v11, 3, v12")
    a("v_mul_u32_u24 v12, 288, v12")
    a("v_add_u32 v12, 0x2000, v12")
    a("v_bfe_u32 v13, v0, 4, 1")
    a("v_and_b32 v14, 3, v0")
    a("v_lshl_add_u32 v15, v14, 3, v12")
    a("v_lshl_add_u32 v20, v13, 5, v15")
    a("s_and_b32 s69, s56, 3")
    a("s_lshl_b32 s69, s69, 9")
    a("s_cmp_ge_u32 s56, 8")
    a("s_cbranch_scc1 L_qkv_v")
    a("s_mul_i32 s60, s58, 144")
    a("s_add_u32 s60, s60, 40")
    a("v_add_u32 v21, 112, v20")
    a("v_add_u32 v20, s60, v20")
    a("v_lshl_add_u32 v23, v13, 8, v15")
    a("s_cmp_lg_u32 s58, 0")
    a("s_cselect_b64 vcc, -1, 0")
    a("v_cndmask_b32 v21, v21, v23, vcc")
    a("v_mul_u32_u24 v22, 72, v14")
    a("v_add3_u32 v22, v22, v12, 32")
    loop(a, False, setm0, load, hint)
    a("s_cmp_ge_u32 s56, 4")
    a(f"s_mov_b32 s66, {QR_OFF}")
    a(f"s_mov_b32 s67, {QR_RS}")
    a(f"s_mov_b32 s68, {f32bits(QSCALE)}")
    a(f"s_cselect_b32 s66, {KV_OFF}, s66")
    a(f"s_cselect_b32 s67, {KV_RS}, s67")
    a(f"s_cselect_b32 s68, 1.0, s68")
    a("s_xor_b32 s63, s59, 1")
    a("s_add_u32 s63, s63, s69")
    a("s_add_u32 s69, s59, s69")
    a("s_mul_i32 s69, s69, s67")
    a("s_add_u32 s69, s69, s66")
    a("s_mul_i32 s63, s63, s67")
    a("s_add_u32 s63, s63, s66")
    a("s_lshl_b32 s70, s67, 6")
    a("s_lshl_b32 s60, s58, 2")
    a("s_add_u32 s72, s60, 1")
    a("s_add_u32 s73, s60, 2")
    a("s_cmp_lg_u32 s58, 0")
    a("s_cselect_b32 s76, 0, 3")
    a("s_cselect_b32 s77, 7, 4")
    for r in (72, 73, 76, 77): a(f"s_mul_i32 s{r}, s{r}, s70")
    for j, (hx, hy, rec) in enumerate(((72, 73, 69), (72, 73, 63), (76, 77, 69), (76, 77, 63))):
        qk_store_main(a, j, hx, hy, rec)
    qk_store_left(a, 4)
    a("s_branch L_qkv_done")
    a.label("L_qkv_v")
    a("s_lshl_b32 s60, s58, 7")
    a("v_add_u32 v20, s60, v20")
    a("v_add_u32 v21, 64, v20")
    a("v_add_u32 v22, 256, v15")
    loop(a, True, setm0, load, hint)
    a("s_xor_b32 s63, s59, 1")
    a("s_add_u32 s63, s63, s69")
    a("s_add_u32 s69, s59, s69")
    a(f"s_mul_i32 s69, s69, {KV_RS}")
    a(f"s_add_u32 s69, s69, {KV_OFF + 1152}")
    a(f"s_mul_i32 s63, s63, {KV_RS}")
    a(f"s_add_u32 s63, s63, {KV_OFF + 1152}")
    a("s_lshl_b32 s60, s58, 6")
    a("v_add_u32 v12, s60, v10")
    v_addr(a, "v12"); v_store(a, 0, 69); v_store(a, 1, 63)
    a("v_add_u32 v12, 32, v12")
    v_addr(a, "v12"); v_store(a, 2, 69); v_store(a, 3, 63)
    a("v_add_u32 v12, 128, v10")
    v_addr(a, "v12"); v_store(a, 4, 69)
    a.label("L_qkv_done")
    a.stamp_mid(7)
    pub(a)

def loop(a, isv, setm0, load, hint):
    def reads(sn, buf, t):
        b = SET[sn]
        X = [((sn, "x", n), f"ds_read_b128 {vr(b+4*n,4)}, v{16+2*n+t} offset:{buf*CB}") for n in range(2)]
        W = [((sn, "w", j), f"ds_read_b64_tr_b16 {vr(b+8+4*j+2*sec,2)}, v{20+j} offset:{buf*CB + t*4608 + sec*288}") for j in range(3) for sec in range(2)]
        return [X[0], W[0], W[1], X[1], W[2], W[3], W[4], W[5]]
    MF = [(0, 0), (0, 1), (1, 0), (1, 1), (2, 0)]
    def mfma(ls, sn, k, first):
        b = SET[sn]
        j, n = MF[k]
        ls.need([(sn, "x", n), (sn, "w", j)])
        w = vr(b+8+4*j, 4); x = vr(b+4*n, 4); c = vr(ACC+16*k, 16)
        A, B = (x, w) if isv else (w, x)
        a(f"v_mfma_f32_32x32x16_bf16 {c}, {A}, {B}, {'0' if first else c}")
    def body(c, first=False, kill=False, last=False):
        buf = c % 4; pb = (c - 1) % 4
        ls = LdsSched(a, [r[0] for r in reads(0, buf, 0)])
        ls.need([(0, "w", 1)])
        r = reads(1, buf, 1)
        mfma(ls, 0, 0, first)
        if not last: setm0(pb, 2)
        for x in r[0:3]: ls.read(*x)
        if not last: load(2)
        mfma(ls, 0, 1, first)
        for x in r[3:7]: ls.read(*x)
        mfma(ls, 0, 2, first)
        if not last: setm0(pb, 3)
        ls.read(*r[7])
        if not last: load(3)
        mfma(ls, 0, 3, first)
        if not last: setm0(pb, 4); load(4)
        mfma(ls, 0, 4, first)
        if kill: kill()
        if last:
            ls.drain()
            for k in range(5): mfma(ls, 1, k, False)
            return
        ls.drain()
        mfma(ls, 1, 0, False)
        a("s_waitcnt vmcnt(10)")
        a("s_barrier")
        r = reads(0, (c+1) % 4, 0)
        for x in r[0:3]: ls.read(*x)
        mfma(ls, 1, 1, False)
        for x in r[3:7]: ls.read(*x)
        mfma(ls, 1, 2, False)
        setm0(buf, 0)
        ls.read(*r[7])
        load(0)
        mfma(ls, 1, 3, False)
        setm0(buf, 1)
        mfma(ls, 1, 4, False)
        load(1)
    a("s_waitcnt vmcnt(12)")
    a("s_barrier")
    a.stamp_mid(1)
    for r in reads(0, 0, 0): a(r[1])
    body(0, first=True)
    a("s_mov_b32 s60, 4")
    L = a.newlabel("qkv")
    def kill():
        a("s_cmp_gt_u32 s60, 1")
        a("s_cselect_b32 s42, s42, 0")
        a("s_cselect_b32 s46, s46, 0")
    a.raw(".p2align 6")
    a.label(L)
    for c in range(1, 5):
        body(c, kill=kill if c == 2 else None)
    if hint: hint(a)
    a("s_sub_u32 s60, s60, 1")
    a("s_cmp_lg_u32 s60, 0")
    a(f"s_cbranch_scc1 {L}")
    body(17, last=True)
    a("v_lshlrev_b32 v2, 4, v0")
    a.stamp_mid(6)

def qk_store_main(a, j, hx, hy, rec):
    b = ACC + 16*j
    for i in range(16):
        a(f"v_mul_f32 v{b+i}, s68, v{b+i}")
    for i in range(8):
        a(f"v_cvt_pk_bf16_f32 v{b+i}, v{b+2*i}, v{b+2*i+1}")
    for half, hd in ((0, hx), (1, hy)):
        a(f"s_add_u32 s60, s{hd}, s{rec}")
        a(f"buffer_store_dwordx4 {vr(b+4*half,4)}, v2, s[48:51], s60 offen{SC}")

def qk_store_left(a, j):
    b = ACC + 16*j
    for i in range(8):
        a(f"v_mul_f32 v{b+i}, s68, v{b+i}")
    for i in range(4):
        a(f"v_cvt_pk_bf16_f32 v{b+i}, v{b+2*i}, v{b+2*i+1}")
    a("s_lshl_b32 s60, s70, 1")
    a("v_mul_lo_u32 v3, v11, s60")
    a("v_lshl_add_u32 v3, v10, 2, v3")
    for jj in range(2):
        for bb in range(2):
            a(f"s_mul_i32 s60, s70, {4*jj+bb}")
            a(f"s_add_u32 s60, s60, s69")
            a(f"buffer_store_dword v{b+2*jj+bb}, v3, s[48:51], s60 offen offset:1024{SC}")

def v_addr(a, col):
    a(f"v_mul_u32_u24 v4, 3641, {col}")
    a(f"v_lshrrev_b32 v4, 16, v4")
    a(f"v_mul_u32_u24 v5, 18, v4")
    a(f"v_sub_u32 v3, {col}, v5")
    a(f"v_mul_u32_u24 v4, {64*KV_RS}, v4")
    a(f"v_lshl_add_u32 v3, v3, 4, v4")
    a(f"v_mul_u32_u24 v4, 288, v11")
    a(f"v_add_u32 v3, v3, v4")

def v_store(a, k, rec):
    b = ACC + 16*k
    for i in range(8):
        a(f"v_cvt_pk_bf16_f32 v{b+i}, v{b+2*i}, v{b+2*i+1}")
    if k == 4:
        a("s_mov_b32 exec_lo, 0xffff")
        a("s_mov_b32 exec_hi, 0xffff")
    a(f"buffer_store_dwordx4 {vr(b,4)}, v3, s[48:51], s{rec} offen{SC}")
    a(f"buffer_store_dwordx4 {vr(b+4,4)}, v3, s[48:51], s{rec} offen offset:576{SC}")
    if k == 4:
        a("s_mov_b64 exec, -1")

RS = 1216
X0, F0 = 16, 88
XK, GK = 160, 196

def red8(a, r):
    a("s_nop 1")
    a(f"v_add_f32_dpp v{r}, v{r}, v{r} quad_perm:[1,0,3,2] row_mask:0xf bank_mask:0xf")
    a("s_nop 1")
    a(f"v_add_f32_dpp v{r}, v{r}, v{r} quad_perm:[2,3,0,1] row_mask:0xf bank_mask:0xf")
    a("s_nop 1")
    a(f"v_add_f32_dpp v{r}, v{r}, v{r} row_half_mirror row_mask:0xf bank_mask:0xf")

def rows_setup(a):
    a("v_lshrrev_b32 v2, 3, v0")
    a("v_and_b32 v3, 7, v0")
    a("s_lshl_b32 s53, s52, 3")
    a("v_add_u32 v4, s53, v2")

def rows_tail(a):
    a(f"v_mul_u32_u24 v5, {RS}, v4")
    a("v_lshl_add_u32 v5, v3, 4, v5")
    for i in range(9):
        a(f"ds_write_b128 v5, {vr(X0+4*i,4)} offset:{i*128}")
    a("s_lshr_b32 s55, s52, 1")
    a("s_and_b32 s56, s52, 1")
    a("v_lshrrev_b32 v6, 5, v0")
    a("v_bfe_u32 v7, v0, 2, 2")
    a("v_lshl_add_u32 v6, v6, 3, v7")
    a("s_lshl_b32 s60, s55, 4")
    a("v_add_u32 v6, s60, v6")
    a(f"v_mul_u32_u24 v6, {RS}, v6")
    a("v_bfe_u32 v7, v0, 4, 1")
    a("v_lshl_add_u32 v6, v7, 5, v6")
    a("v_and_b32 v7, 3, v0")
    a("v_lshl_add_u32 v6, v7, 3, v6")
    a("s_mul_i32 s60, s56, 576")
    a("v_add_u32 v6, s60, v6")
    a("s_mul_i32 s60, s52, 9216")
    a("s_add_u32 s57, s57, s60")
    a("v_lshlrev_b32 v7, 4, v0")
    a("s_waitcnt lgkmcnt(0)")
    a("s_barrier")
    for i in range(7):
        for sec in range(2):
            a(f"ds_read_b64_tr_b16 {vr(X0+4*i+2*sec,2)}, v6 offset:{sec*4*RS + i*64}")
    for i in range(9):
        a(f"s_waitcnt lgkmcnt({min(12, 2*(8-i))})")
        if i % 4 == 0 and i:
            a("s_add_u32 s57, s57, 4096")
        a(f"buffer_store_dwordx4 {vr(X0+4*i,4)}, v7, s[48:51], s57 offen offset:{(i%4)*1024}{SC}")
        if i + 7 < 9:
            for sec in range(2):
                a(f"ds_read_b64_tr_b16 {vr(X0+4*(i+7)+2*sec,2)}, v6 offset:{sec*4*RS + (i+7)*64}")

def ln_body(a, jreg, pub, pre=None):
    a.srd(40, P_X, S*D*2)
    rows_setup(a)
    a(f"s_and_b32 s58, {jreg}, 7")
    a(f"s_lshr_b32 s56, {jreg}, 3")
    a("s_lshl_b32 s58, s58, 3")
    a("s_add_u32 s58, s58, s56")
    a("s_lshl_b32 s56, s58, 5")
    a("v_add_u32 v6, s56, v4")
    a("v_mul_u32_u24 v7, 1152, v6")
    a("v_lshl_add_u32 v7, v3, 4, v7")
    for i in range(9):
        a(f"buffer_load_dwordx4 {vr(XK+4*i,4)}, v7, s[40:43], 0 offen offset:{i*128}")
    a.srd(44, P_GW, D*2)
    a("v_lshlrev_b32 v8, 4, v3")
    for i in range(9):
        a(f"buffer_load_dwordx4 {vr(GK+4*i,4)}, v8, s[44:47], 0 offen offset:{i*128}")
    a(f"s_mul_i32 s57, s58, {2*18*1024}")
    a(f"s_add_u32 s57, s57, {HT_OFF}")
    a("v_mov_b32 v8, 0")
    a("v_mov_b32 v9, 0")
    a.stamp_mid(0)
    def pk(i): return vr(F0+2*i, 2)
    for i in range(36):
        if i % 4 == 0: a(f"s_waitcnt vmcnt({17 - i//4})")
        a(f"v_lshlrev_b32 v{F0+2*i}, 16, v{XK+i}")
        a(f"v_and_b32 v{F0+2*i+1}, 0xffff0000, v{XK+i}")
        a(f"v_pk_add_f32 v[8:9], v[8:9], {pk(i)}")
    a.stamp_mid(1)
    a("v_add_f32 v8, v8, v9")
    red8(a, 8)
    a(f"v_mul_f32 v8, {f32bits(-1.0/D)}, v8")
    a("v_mov_b32 v10, 0")
    a("v_mov_b32 v9, v8")
    a("v_mov_b32 v11, 0")
    for i in range(36):
        a(f"v_pk_add_f32 {pk(i)}, {pk(i)}, v[8:9]")
    for i in range(36):
        a(f"v_pk_fma_f32 v[10:11], {pk(i)}, {pk(i)}, v[10:11]")
    a("v_add_f32 v10, v10, v11")
    red8(a, 10)
    a(f"v_mov_b32 v12, {f32bits(1e-5)}")
    a(f"v_fmac_f32 v12, {f32bits(1.0/D)}, v10")
    a("v_rsq_f32 v12, v12")
    a("s_nop 0")
    a("v_mov_b32 v13, v12")
    for i in range(36):
        a(f"v_pk_mul_f32 {pk(i)}, {pk(i)}, v[12:13]")
    for i in range(36):
        a(f"v_cvt_pk_bf16_f32 v{X0+i}, v{F0+2*i}, v{F0+2*i+1}")
    if pre: pre(a)
    rows_tail(a)
    pub(a)

def wo_body(a, jreg):
    a.srd(40, P_WO, D*D*2)
    rows_setup(a)
    a(f"s_lshl_b32 s57, {jreg}, 1")
    a("s_lshr_b32 s55, s52, 1")
    a("s_add_u32 s57, s57, s55")
    a("s_and_b32 s56, s52, 1")
    a("s_lshl_b32 s56, s56, 2")
    a("s_lshl_b32 s57, s57, 4")
    a("s_add_u32 s57, s57, s56")
    a("v_lshrrev_b32 v6, 2, v2")
    a("v_and_b32 v7, 3, v2")
    a("v_lshl_add_u32 v6, v6, 3, v7")
    a("v_add_u32 v6, s57, v6")
    a("v_mul_u32_u24 v7, 1152, v6")
    a("v_lshl_add_u32 v7, v3, 4, v7")
    for i in range(9):
        a(f"buffer_load_dwordx4 {vr(X0+4*i,4)}, v7, s[40:43], 0 offen offset:{i*128}")
    a(f"s_mul_i32 s57, {jreg}, {2*18*1024}")
    a(f"s_add_u32 s57, s57, {WOF_OFF}")
    a("s_waitcnt vmcnt(0)")
    rows_tail(a)

def gate_own(a):
    a("v_mov_b32 v8, 0")
    a("v_mov_b32 v9, 0")
    for i in range(36):
        a(f"v_lshlrev_b32 v12, 16, v{GK+i}")
        a(f"v_and_b32 v13, 0xffff0000, v{GK+i}")
        a(f"v_lshlrev_b32 v14, 16, v{XK+i}")
        a(f"v_and_b32 v15, 0xffff0000, v{XK+i}")
        a(f"v_pk_fma_f32 v[8:9], v[12:13], v[14:15], v[8:9]")
    a("v_add_f32 v8, v8, v9")
    red8(a, 8)
    a(f"v_mul_f32 v8, {f32bits(-math.log2(math.e))}, v8")
    a("v_exp_f32 v8, v8")
    a("s_lshl_b32 s56, s58, 5")
    a("v_add_f32 v8, 1.0, v8")
    a("v_rcp_f32 v8, v8")
    a("v_add_u32 v6, s56, v4")
    a("v_lshlrev_b32 v6, 2, v6")
    a(f"s_mov_b32 s57, {G_OFF}")
    a("s_mov_b32 exec_lo, 0x01010101")
    a("s_mov_b32 exec_hi, 0x01010101")
    a(f"buffer_store_dword v8, v6, s[48:51], s57 offen{SC}")
    a("s_mov_b64 exec, -1")

def xw_touch(a, greg):
    a.srd(40, P_WQKV, D*3*D*2)
    a.srd(44, P_X, S*D*2)
    a(f"s_lshr_b32 s53, {greg}, 3")
    a("s_lshl_b32 s53, s53, 2")
    a("s_add_u32 s53, s53, s52")
    a("s_lshl_b32 s54, s53, 6")
    a("v_add_u32 v5, s54, v0")
    a("v_mul_u32_u24 v6, 18725, v5")
    a("v_lshrrev_b32 v6, 18, v6")
    a("v_mul_u32_u24 v7, 13, v6")
    a("v_add_u32 v7, v7, v5")
    a(f"s_and_b32 s54, {greg}, 1")
    a("s_mul_i32 s54, s54, 13")
    a("v_add_lshl_u32 v7, v7, s54, 7")
    a(f"buffer_load_dword v60, v7, s[40:43], 0 offen{XNT}")
    L = a.newlabel("nox")
    a("s_cmp_ge_u32 s53, 72")
    a(f"s_cbranch_scc1 {L}")
    a(f"s_bfe_u32 s54, {greg}, 0x20001")
    a("s_mul_i32 s54, s54, 4608")
    a("v_add_lshl_u32 v7, v5, s54, 7")
    a(f"buffer_load_dword v61, v7, s[44:47], 0 offen{XNT}")
    a.label(L)
for n in range(8192):
    assert (n*18725) >> 18 == n//14
```

```python
from common import *
import math

MLP1_GRID = 216
for t in range(216):
    assert (t*171) >> 10 == t//6

VT, VTB, VD, VF = 1, 2, 3, 4
TB = 8
FB = 24
ACC = 64
def acc(j, i): return ACC + 16*(3*j + i)
S_T, S_F, S_TMP, S_WO, S_WB, S_RO, S_LBASE, S_CNT = 54, 57, 60, 61, 62, 63, 64, 65
YIELD = 1
TOUCH = False
FSC = ' sc1'
STAG = 0
TNT = ''
DEP_FIRST = False
NS = 32
STRIDE = F*2

def mlp1_body(a, wgreg, dep, pub, sm=0, epi=None):
    a.srd(40, P_W1, S*F*2)
    a.srd(44, P_B1, F*2)
    a(f"s_and_b32 s66, {wgreg}, 7")
    a("s_mul_i32 s66, s66, 27")
    a(f"s_lshr_b32 s67, {wgreg}, 3")
    a("s_add_u32 s67, s67, s66")
    a("s_mul_i32 s66, s67, 171")
    a("s_lshr_b32 s66, s66, 10")
    a("s_mul_i32 s68, s66, 6")
    a("s_sub_u32 s67, s67, s68")
    a(f"s_mul_i32 s{S_T}, s52, {512*STRIDE}")
    a(f"s_lshl_b32 s70, s66, 8")
    a(f"s_add_u32 s{S_T}, s{S_T}, s70")
    a(f"s_mov_b32 s55, s{S_T}")
    a(f"s_mul_i32 s{S_F}, s52, {32*18*1024}")
    a(f"s_mul_i32 s70, s67, 3072")
    a(f"s_add_u32 s{S_F}, s{S_F}, s70")
    a(f"s_add_u32 s{S_F}, s{S_F}, {HT_OFF}")
    a(f"v_lshrrev_b32 v5, 4, v0")
    a(f"v_add_u32 v5, s52, v5")
    a(f"v_and_b32 v5, 3, v5")
    a(f"v_and_b32 v6, 3, v0")
    a(f"v_lshlrev_b32 v6, 4, v6")
    a(f"v_lshl_add_u32 v5, v5, 6, v6")
    a(f"v_bfe_u32 v6, v0, 2, 2")
    a(f"v_mul_u32_u24 v6, {STRIDE}, v6")
    a(f"v_add_u32 v{VD}, v5, v6")
    a(f"v_lshlrev_b32 v{VF}, 4, v0")
    a(f"s_lshl_b32 s{S_LBASE}, s52, 14")
    a(f"s_mov_b32 s{S_WO}, 0")
    a(f"s_mov_b32 s{S_WB}, s{S_LBASE}")
    a(f"s_mov_b32 s{S_RO}, 0")

    ops = []
    place = [("F",0,0),("F",1,0),("F",2,1),("D",0,1),("D",1,2),("D",2,2),("D",3,3)]
    for t in range(-3, NS):
        for kind, i, g in place:
            ds = t + 2 if kind == "F" else t + 3
            if 0 <= ds < NS:
                ops.append((kind, ds, i, t, g))
    def need(kind, ds, t, g):
        last = max(n for n, o in enumerate(ops) if o[0] == kind and o[1] == ds)
        return sum(1 for n, o in enumerate(ops) if n > last and (o[3], o[4]) < (t, g))
    def issue(kind, ds, i):
        if kind == "F":
            a(f"buffer_load_dwordx4 {vr(FB + 12*(ds%3) + 4*i, 4)}, v{VF}, s[48:51], s{S_F} offen offset:{i*1024}{FSC}")
            if i == 2:
                a(f"s_add_u32 s{S_F}, s{S_F}, {18*1024}")
                if STAG:
                    a(f"s_cmp_eq_u32 s{S_F}, s59")
                    a(f"s_cselect_b32 s{S_F}, s58, s{S_F}")
        else:
            a(f"s_add_u32 m0, s{S_WB}, {i*1024}")
            a(f"s_add_u32 s{S_T}, s{S_T}, {4*STRIDE}")
            a(f"buffer_load_dwordx4 v{VD}, s[40:43], s{S_T} offen{TNT} lds")
            if i == 3:
                if STAG:
                    a(f"s_cmp_eq_u32 s{S_T}, s56")
                    a(f"s_cselect_b32 s{S_T}, s55, s{S_T}")
                a(f"s_add_u32 s{S_WO}, s{S_WO}, 4096")
                a(f"s_and_b32 s{S_WO}, s{S_WO}, 0x3fff")
                a(f"s_add_u32 s{S_WB}, s{S_WO}, s{S_LBASE}")
    def tread(j, sec):
        a(f"ds_read_b64_tr_b16 {vr(TB + 4*j + 2*sec, 2)}, v{VT} offset:{j*256 + sec*1024}")
    def mfma(t, j, i):
        T = vr(TB + 4*j, 4); Fr = vr(FB + 12*(t%3) + 4*i, 4); c = vr(acc(j, i), 16)
        n = 3*j + i
        if YIELD > 1:
            if n % YIELD == 0: a("s_setprio 0")
            if n % YIELD == 1: a("s_setprio 2")
        a(f"v_mfma_f32_32x32x16_bf16 {c}, {T}, {Fr}, {c if t > 0 else '0'}")
    def step(t):
        for g in range(4):
            mine = [o for o in ops if o[3] == t and o[4] == g]
            last = (t == NS-1)
            if g == 0:
                a(f"s_waitcnt vmcnt({need('F', t, t, 0)}) lgkmcnt(2)")
            elif g == 2 and not last:
                a(f"s_waitcnt vmcnt({need('D', t+1, t, 2)}) lgkmcnt(2)")
                a(f"s_add_u32 s{S_RO}, s{S_RO}, 4096")
                a(f"s_and_b32 s{S_RO}, s{S_RO}, 0x3fff")
                a(f"v_add_u32 v{VT}, s{S_RO}, v{VTB}")
            else:
                a(f"s_waitcnt lgkmcnt({0 if (last and g == 3) else 2})")
            rd = not (last and g >= 2)
            mfma(t, g, 0)
            if rd: tread((g+2) % 4, 0)
            if mine: issue(*mine[0][:3])
            mfma(t, g, 1)
            if rd: tread((g+2) % 4, 1)
            if len(mine) > 1: issue(*mine[1][:3])
            mfma(t, g, 2)
    a(f"s_sub_u32 s{S_T}, s{S_T}, {4*STRIDE}")
    if STAG:
        a(f"s_mov_b32 s55, s{S_T}")
        a(f"s_add_u32 s56, s55, {512*STRIDE}")
        a(f"s_mov_b32 s58, s{S_F}")
        a(f"s_add_u32 s59, s58, {32*18*1024}")
        if STAG == 1:
            a("s_mul_i32 s70, s67, 5")
        else:
            a(f"s_lshr_b32 s70, {wgreg}, 3")
            a("s_mul_i32 s70, s70, 5")
            a("s_and_b32 s70, s70, 31")
        a(f"s_mul_i32 s71, s70, {16*STRIDE}")
        a(f"s_add_u32 s{S_T}, s{S_T}, s71")
        a(f"s_mul_i32 s71, s70, {18*1024}")
        a(f"s_add_u32 s{S_F}, s{S_F}, s71")
    if DEP_FIRST: dep(a)
    for o in ops:
        if o[3] < 0 and o[0] == "D":
            issue(*o[:3])
    a(f"v_lshrrev_b32 v5, 5, v0")
    a(f"v_lshlrev_b32 v5, 11, v5")
    a(f"v_bfe_u32 v6, v0, 2, 2")
    a(f"v_lshl_add_u32 v5, v6, 6, v5")
    a(f"v_bfe_u32 v6, v0, 4, 1")
    a(f"v_lshl_add_u32 v5, v6, 5, v5")
    a(f"v_and_b32 v6, 3, v0")
    a(f"v_lshl_add_u32 v5, v6, 3, v5")
    a(f"v_add_u32 v{VTB}, s{S_LBASE}, v5")
    a(f"v_mov_b32 v{VT}, v{VTB}")
    if TOUCH:
        a(f"v_lshrrev_b32 v5, 1, v0")
        a(f"v_mul_u32_u24 v5, {STRIDE}, v5")
        a(f"v_and_b32 v6, 1, v0")
        a(f"v_lshl_add_u32 v5, v6, 7, v5")
        a(f"s_add_u32 s70, s67, 1")
        a(f"s_mul_i32 s70, s70, {32*STRIDE}")
        a(f"s_add_u32 s70, s70, s55")
        a(f"buffer_load_dword v60, v5, s[40:43], s70 offen")
    if not DEP_FIRST: dep(a)
    for o in ops:
        if o[3] < 0 and o[0] == "F":
            issue(*o[:3])
    a("s_waitcnt vmcnt(6)")
    for j in range(2):
        tread(j, 0); tread(j, 1)
    a("s_waitcnt vmcnt(0)")
    a(f"s_setprio {0 if YIELD else 2}")
    a.stamp_mid(sm)
    step(0)
    nloop = (NS - 4)//3
    for t in range(1, 1 + 3*nloop):
        assert need('F', t, t, 0) == 11 and need('D', t+1, t, 2) == 11
    a(f"s_mov_b32 s{S_CNT}, {nloop}")
    a.raw(".p2align 6")
    a.label(f"L_mlp1_loop")
    for t in range(1, 4):
        step(t)
    if a.stamp and False:
        for cnt, slot in ((7, 6), (4, 7)):
            Ls = a.newlabel("st")
            a(f"s_cmp_lg_u32 s{S_CNT}, {cnt}")
            a(f"s_cbranch_scc1 {Ls}")
            a.stamp_mid(slot)
            a.label(Ls)
    a(f"s_sub_u32 s{S_CNT}, s{S_CNT}, 1")
    a(f"s_cmp_lg_u32 s{S_CNT}, 0")
    a(f"s_cbranch_scc1 L_mlp1_loop")
    for t in range(1 + 3*nloop, NS):
        step(t)
    a("s_setprio 2")
    a.stamp_mid(sm+1)
    a("s_lshl_b32 s70, s66, 2")
    a("s_add_u32 s70, s70, s52")
    a("s_lshl_b32 s71, s70, 6")
    a("v_lshrrev_b32 v5, 5, v0")
    a("v_lshlrev_b32 v5, 3, v5")
    for jj in range(4):
        a(f"buffer_load_dwordx2 {vr(8+2*jj,2)}, v5, s[44:47], s71 offen offset:{jj*16}")
    if epi: epi(a)
    for rho in range(1, 4):
        a(f"s_add_u32 s72, s52, {rho}")
        a(f"s_and_b32 s72, s72, 3")
        a(f"s_mul_i32 s72, s72, 20480")
        a(f"v_add_u32 v{rho}, s72, v{VF}")
    a(f"s_mul_i32 s72, s52, 20480")
    a(f"v_add_u32 v6, s72, v{VF}")
    a("s_nop 7")
    a("s_barrier")
    rounds = [[(1,0),(2,0),(3,0),(1,1),(2,1)], [(3,1),(1,2),(2,2),(3,2)]]
    for rn, rnd in enumerate(rounds):
        for slot, (rho, i) in enumerate(rnd):
            for q in range(4):
                a(f"ds_write_b128 v{rho}, {vr(acc(rho,i)+4*q,4)} offset:{slot*4096+q*1024}")
        a("s_waitcnt lgkmcnt(0)")
        a("s_barrier")
        for slot, (rho, i) in enumerate(rnd):
            for q in range(4):
                a(f"ds_read_b128 {vr(acc(rho,i)+4*q,4)}, v6 offset:{slot*4096+q*1024}")
            if slot >= 2:
                a("s_waitcnt lgkmcnt(8)")
                r2, i2 = rnd[slot-2]
                for e in range(0, 16, 2):
                    a(f"v_pk_add_f32 {vr(acc(0,i2)+e,2)}, {vr(acc(0,i2)+e,2)}, {vr(acc(r2,i2)+e,2)}")
        for k, slot in enumerate((len(rnd)-2, len(rnd)-1)):
            a(f"s_waitcnt lgkmcnt({4 if k == 0 else 0})")
            if k == 1 and rn == 0:
                a("s_barrier")
            r2, i2 = rnd[slot]
            for e in range(0, 16, 2):
                a(f"v_pk_add_f32 {vr(acc(0,i2)+e,2)}, {vr(acc(0,i2)+e,2)}, {vr(acc(r2,i2)+e,2)}")
    a(f"s_waitcnt vmcnt({1 if epi else 0})")
    for jj in range(4):
        for p in range(2):
            a(f"v_lshlrev_b32 v{24+4*jj+2*p}, 16, v{8+2*jj+p}")
            a(f"v_and_b32 v{24+4*jj+2*p+1}, 0xffff0000, v{8+2*jj+p}")
    c0 = -2.0*math.sqrt(2.0/math.pi)*math.log2(math.e)
    a(f"v_mov_b32 v40, {f32bits(c0*0.044715)}")
    a(f"v_mov_b32 v41, {f32bits(c0*0.044715)}")
    a(f"v_mov_b32 v42, {f32bits(c0)}")
    a(f"v_mov_b32 v43, {f32bits(c0)}")
    a(f"v_mov_b32 v44, 1.0")
    a(f"v_mov_b32 v45, 1.0")
    a(f"s_mul_i32 s71, s70, {2*18*1024}")
    a(f"s_mul_i32 s73, s67, 3072")
    a(f"s_add_u32 s71, s71, s73")
    a(f"s_add_u32 s71, s71, {U_OFF}")
    a(f"s_add_u32 s73, s71, {18*1024}")
    T1 = acc(1, 0)
    P = lambda r: vr(r, 2)
    for i in range(3):
        b = acc(0, i)
        for e in range(0, 16, 2): a(f"v_pk_add_f32 {P(b+e)}, {P(b+e)}, {P(24+e)}")
        for e in range(0, 16, 2): a(f"v_pk_mul_f32 {P(T1+e)}, {P(b+e)}, {P(b+e)}")
        for e in range(0, 16, 2): a(f"v_pk_fma_f32 {P(T1+e)}, {P(T1+e)}, v[40:41], v[42:43]")
        for e in range(0, 16, 2): a(f"v_pk_mul_f32 {P(T1+e)}, {P(T1+e)}, {P(b+e)}")
        for e in range(16): a(f"v_exp_f32 v{T1+e}, v{T1+e}")
        for e in range(0, 16, 2): a(f"v_pk_add_f32 {P(T1+e)}, {P(T1+e)}, v[44:45]")
        for e in range(16): a(f"v_rcp_f32 v{T1+e}, v{T1+e}")
        for e in range(0, 16, 2): a(f"v_pk_mul_f32 {P(b+e)}, {P(b+e)}, {P(T1+e)}")
        for e in range(8):  a(f"v_cvt_pk_bf16_f32 v{b+e}, v{b+2*e}, v{b+2*e+1}")
        a(f"buffer_store_dwordx4 {vr(b,4)}, v{VF}, s[48:51], s71 offen offset:{i*1024} sc1")
        a(f"buffer_store_dwordx4 {vr(b+4,4)}, v{VF}, s[48:51], s73 offen offset:{i*1024} sc1")
    pub(a)
```

```python
from common import *

MLP2_GRID = 240
for n in range(30):
    assert (n*86) >> 8 == n//3

VFA, VTA, VFB, VTB_, VDT, VDF = 1, 2, 3, 4, 5, 6
FR = [8, 28]
ACC = 64
def acc(i, n): return ACC + 16*(2*i + n)
S_T, S_F, S_WB, S_RO, S_CNT, S_LEFT = 54, 55, 56, 57, 58, 59
STAGE = 20480
YIELD = 2
M2ST = False
TNT = ' sc1'

P0 = (0, 4, 8, 11, 14)
PC = (4, 4, 3, 3, 4)
def mlp2_body(a, wgreg, sm=0, dep=None, pub=None, dep_o=None):
    a.srd(40, P_W2, S*F*2)
    a.srd(44, P_WS, WS_SIZE)
    a(f"s_lshr_b32 s67, {wgreg}, 3")
    a("s_mul_i32 s66, s67, 86")
    a("s_lshr_b32 s66, s66, 8")
    a("s_mul_i32 s68, s66, 3")
    a("s_sub_u32 s67, s67, s68")
    a(f"s_and_b32 s68, {wgreg}, 7")
    a("s_mul_i32 s68, s68, 10")
    a("s_add_u32 s66, s66, s68")
    a("s_lshr_b32 s69, s66, 4")
    a("s_and_b32 s66, s66, 15")
    a("s_cmp_eq_u32 s69, 4")
    a(f"s_cselect_b32 s{S_CNT}, 28, 29")
    a("s_lshl_b32 s70, s69, 2")
    a(f"s_lshr_b32 s53, {sum(c << (4*i) for i, c in enumerate(PC))}, s70")
    a("s_and_b32 s53, s53, 15")
    a(f"s_lshr_b32 s65, {sum(c << (4*i) for i, c in enumerate(P0))}, s70")
    a("s_and_b32 s65, s65, 15")
    a(f"s_add_u32 s{S_LEFT}, s{S_CNT}, s53")
    a(f"s_mul_i32 s{S_T}, s69, {928*4096}")
    a("s_lshl_b32 s70, s66, 8")
    a(f"s_add_u32 s{S_T}, s{S_T}, s70")
    a("s_lshl_b32 s70, s52, 15")
    a(f"s_add_u32 s{S_T}, s{S_T}, s70")
    a(f"s_mul_i32 s{S_F}, s69, {58*18*1024}")
    a("s_mul_i32 s70, s67, 6144")
    a(f"s_add_u32 s{S_F}, s{S_F}, s70")
    a("s_lshr_b32 s70, s52, 1")
    a(f"s_mul_i32 s70, s70, {18*1024}")
    a(f"s_add_u32 s{S_F}, s{S_F}, s70")
    a("s_and_b32 s71, s52, 1")
    a("s_mul_i32 s70, s71, 3072")
    a(f"s_add_u32 s{S_F}, s{S_F}, s70")
    a(f"s_add_u32 s{S_F}, s{S_F}, {U_OFF}")
    a("s_lshl_b32 s60, s52, 11")
    a("s_mul_i32 s61, s52, 3072")
    a("s_add_u32 s61, s61, 8192")
    a(f"s_mov_b32 s{S_WB}, 0")
    a(f"s_mov_b32 s{S_RO}, 0")
    a(f"v_lshrrev_b32 v8, 4, v0")
    a(f"v_and_b32 v9, 3, v0")
    a(f"v_lshlrev_b32 v9, 4, v9")
    a(f"v_lshl_add_u32 v8, v8, 6, v9")
    a(f"v_bfe_u32 v9, v0, 2, 2")
    a(f"v_lshl_add_u32 v{VDT}, v9, 12, v8")
    a(f"v_lshlrev_b32 v{VDF}, 4, v0")
    a(f"v_lshrrev_b32 v8, 5, v0")
    a(f"v_lshlrev_b32 v8, 10, v8")
    a(f"v_lshl_add_u32 v8, v9, 6, v8")
    a(f"v_bfe_u32 v9, v0, 4, 1")
    a(f"v_lshl_add_u32 v8, v9, 5, v8")
    a(f"v_and_b32 v9, 3, v0")
    a(f"v_lshl_add_u32 v8, v9, 3, v8")
    a("s_lshr_b32 s72, s52, 1")
    a("s_lshl_b32 s70, s72, 9")
    a(f"v_add_u32 v{VTB_}, s70, v8")
    a("s_mul_i32 s70, s71, 3072")
    a("s_add_u32 s70, s70, 8192")
    a(f"v_add_u32 v{VFB}, s70, v{VDF}")
    a(f"v_mov_b32 v{VTA}, v{VTB_}")
    a(f"v_mov_b32 v{VFA}, v{VFB}")

    def dma_t(i, wb, st):
        a(f"s_add_u32 m0, s{wb}, {i*1024}")
        if i:
            a(f"s_add_u32 s63, s{st}, {4*4096}")
            a(f"buffer_load_dwordx4 v{VDT}, s[40:43], s63 offen{TNT} lds")
        else:
            a("s_nop 0")
            a(f"buffer_load_dwordx4 v{VDT}, s[40:43], s{st} offen{TNT} lds")
    def dma_f(i, wb, sf):
        if i == 0:
            a(f"s_mov_b32 m0, s{wb}")
            a("s_nop 0")
        a(f"buffer_load_dwordx4 v{VDF}, s[44:47], s{sf} offen offset:{i*1024} sc1 lds")
    for st in range(4):
        a(f"s_add_u32 s62, s60, {st*STAGE}")
        dma_t(0, 62, S_T); dma_t(1, 62, S_T)
        a(f"s_add_u32 s{S_T}, s{S_T}, {32*4096}")
    if dep: dep(a)
    for st in range(3):
        a(f"s_add_u32 s64, s61, {st*STAGE}")
        for i in range(3): dma_f(i, 64, S_F)
        a(f"s_add_u32 s{S_F}, s{S_F}, {2*18*1024}")
    a(f"s_add_u32 s64, s61, {3*STAGE}")
    a(f"s_sub_u32 s{S_LEFT}, s{S_LEFT}, 4")
    def reads(sn, step):
        b = FR[sn]
        Fr = [((sn, "F", i), f"ds_read_b128 {vr(b+4*i,4)}, v{VFA} offset:{step*6144 + i*1024}") for i in range(3)]
        T = [((sn, "T", n), f"ds_read_b64_tr_b16 {vr(b+12+4*n+2*sec,2)}, v{VTA} offset:{step*4096 + sec*2048 + n*256}") for n in range(2) for sec in range(2)]
        return [Fr[0], T[0], T[1], T[2], T[3], Fr[1], Fr[2]]
    def mfma(ls, sn, k, first):
        b = FR[sn]
        i, n = k >> 1, k & 1
        ls.need([(sn, "F", i), (sn, "T", n)])
        if YIELD > 1:
            if k % YIELD == 0: a("s_setprio 0")
            if k % YIELD == 1: a("s_setprio 2")
        c = vr(acc(i, n), 16)
        a(f"v_mfma_f32_32x32x16_bf16 {c}, {vr(b+4*i,4)}, {vr(b+12+4*n,4)}, {'0' if first else c}")
    def body(first, vm, sw=None):
        ls = LdsSched(a, [r[0] for r in reads(0, 0)])
        r = reads(1, 1)
        cut = [0, 4, 7, 7, 7, 7, 7]
        for k in range(6):
            mfma(ls, 0, k, first)
            for x in r[cut[k]:cut[k+1]]: ls.read(*x)
            if k == 0: dma_f(0, 64, S_F)
            if k == 2: dma_f(1, 64, S_F)
            if k == 3:
                a(f"s_add_u32 s{S_RO}, s{S_RO}, {STAGE}")
                a(f"s_cmp_eq_u32 s{S_RO}, {4*STAGE}")
                a(f"s_cselect_b32 s{S_RO}, 0, s{S_RO}")
                a(f"v_add_u32 v{VFA}, s{S_RO}, v{VFB}")
                a(f"v_add_u32 v{VTA}, s{S_RO}, v{VTB_}")
            if k == 4:
                dma_f(2, 64, S_F)
                a(f"s_add_u32 s{S_F}, s{S_F}, {2*18*1024}")
            if k == 5:
                if sw:
                    a(f"s_cmp_eq_u32 s{S_LEFT}, s53")
                    a(f"s_cbranch_scc1 {sw[0]}")
                    a.label(sw[1])
                a(f"s_cmp_gt_i32 s{S_LEFT}, 0")
                a(f"s_cselect_b32 s42, s42, 0")
                a(f"s_cselect_b32 s46, s46, 0")
                a(f"s_add_u32 s62, s60, s{S_WB}")
                a(f"s_add_u32 s64, s61, s{S_WB}")
        mfma(ls, 1, 0, False)
        ls.drain(f"vmcnt({vm}) ")
        a("s_barrier")
        r = reads(0, 0)
        for x in r[0:3]: ls.read(*x)
        mfma(ls, 1, 1, False)
        for x in r[3:7]: ls.read(*x)
        mfma(ls, 1, 2, False)
        dma_t(0, 62, S_T)
        mfma(ls, 1, 3, False)
        a(f"s_sub_u32 s{S_LEFT}, s{S_LEFT}, 1")
        a(f"s_mov_b32 s{S_WB}, s{S_RO}")
        mfma(ls, 1, 4, False)
        dma_t(1, 62, S_T)
        a(f"s_add_u32 s{S_T}, s{S_T}, {32*4096}")
        mfma(ls, 1, 5, False)
    a("s_waitcnt vmcnt(6)")
    a("s_barrier")
    for r in reads(0, 0): a(r[1])
    a(f"s_setprio {0 if YIELD else 2}")
    a.stamp_mid(sm)
    body(True, 6)
    body(False, 8)
    a(f"s_sub_u32 s{S_CNT}, s{S_CNT}, 2")
    L = a.newlabel("mlp2"); Lsw = a.newlabel("sw"); Lrt = a.newlabel("rt"); Lgo = a.newlabel("go")
    a(f"s_branch {L}")
    a.label(Lsw)
    dep_o(a)
    a.srd(40, P_WS, WS_SIZE)
    a(f"s_lshl_b32 s{S_T}, s65, 17")
    a("s_lshl_b32 s70, s66, 8")
    a(f"s_add_u32 s{S_T}, s{S_T}, s70")
    a("s_lshl_b32 s70, s52, 15")
    a(f"s_add_u32 s{S_T}, s{S_T}, s70")
    a(f"s_add_u32 s{S_T}, s{S_T}, {O_OFF}")
    a(f"s_mul_i32 s{S_F}, s65, {2*18*1024}")
    a("s_mul_i32 s70, s67, 6144")
    a(f"s_add_u32 s{S_F}, s{S_F}, s70")
    a(f"s_mul_i32 s70, s72, {18*1024}")
    a(f"s_add_u32 s{S_F}, s{S_F}, s70")
    a("s_mul_i32 s70, s71, 3072")
    a(f"s_add_u32 s{S_F}, s{S_F}, s70")
    a(f"s_add_u32 s{S_F}, s{S_F}, {WOF_OFF}")
    a("s_lshl_b32 s70, s66, 1")
    a("s_add_u32 s70, s70, s72")
    a("s_lshl_b32 s70, s70, 6")
    a("v_and_b32 v48, 31, v0")
    a("v_add_u32 v48, s70, v48")
    a("v_lshlrev_b32 v49, 2, v48")
    a("v_lshlrev_b32 v48, 1, v48")
    a(f"s_mov_b32 s70, {G_OFF}")
    a.srd(80, P_B2, S*2)
    a("s_cmp_eq_u32 s69, 0")
    a("s_cselect_b32 s82, s82, 0")
    a("buffer_load_dword v50, v49, s[48:51], s70 offen sc1")
    a("buffer_load_dword v51, v49, s[48:51], s70 offen offset:128 sc1")
    a("buffer_load_ushort v52, v48, s[80:83], 0 offen")
    a("buffer_load_ushort v53, v48, s[80:83], 0 offen offset:64")
    a(f"s_branch {Lrt}")
    a.raw(".p2align 6")
    a.label(L)
    body(False, 10, (Lsw, Lrt))
    a(f"s_sub_u32 s{S_CNT}, s{S_CNT}, 1")
    a(f"s_cmp_lg_u32 s{S_CNT}, 0")
    a(f"s_cbranch_scc1 {L}")
    a.stamp_mid(7)
    a("s_setprio 2")
    for n in range(2):
        a(f"v_sub_f32 v{50+n}, 1.0, v{50+n}")
        a(f"v_lshlrev_b32 v{52+n}, 16, v{52+n}")
        a(f"v_mul_f32 v{52+n}, v{52+n}, v{50+n}")
    a("s_nop 7")
    for i in range(3):
        for n in range(2):
            for e in range(16):
                r = acc(i, n) + e
                a(f"v_fma_f32 v{r}, v{r}, v{50+n}, v{52+n}")
    a(f"s_mov_b32 s{S_CNT}, s53")
    L2 = a.newlabel("mlp2p")
    a.label(L2)
    body(False, 10)
    a(f"s_sub_u32 s{S_CNT}, s{S_CNT}, 1")
    a(f"s_cmp_lg_u32 s{S_CNT}, 0")
    a(f"s_cbranch_scc1 {L2}")
    a("s_setprio 2")
    a.stamp_mid(sm+1)
    a(f"s_mul_i32 s73, s69, {YPB_SZ}")
    a("s_lshl_b32 s70, s67, 1")
    a("s_add_u32 s70, s70, s71")
    a(f"s_mul_i32 s70, s70, {3*64*2048}")
    a("s_add_u32 s73, s73, s70")
    a("s_lshl_b32 s70, s66, 1")
    a("s_add_u32 s70, s70, s72")
    a("s_lshl_b32 s70, s70, 12")
    a("s_add_u32 s73, s73, s70")
    a(f"s_add_u32 s73, s73, {YP_OFF}")
    a("s_nop 7")
    for i in range(3):
        for n in range(2):
            b = acc(i, n)
            for e in range(8):
                a(f"v_cvt_pk_bf16_f32 v{b+e}, v{b+2*e}, v{b+2*e+1}")
            for hf in range(2):
                a(f"buffer_store_dwordx4 {vr(b+4*hf,4)}, v{VDF}, s[48:51], s73 offen offset:{n*2048+hf*1024}{' sc1' if pub else ''}")
        if i < 2:
            a(f"s_add_u32 s73, s73, {64*2048}")
    if pub: pub(a)
```

```python
from common import *

MB_U, MB_H, MB_QKV, MB_O, MB_Y, MB_P, MB_N = 0, 256, 384, 512, 768, 1024, 1280
MB_G = 960
def mb(i): return CNT_OFF + 256*i
SPIN_MAX = 0x40000

def wave_setup(a):
    a("v_lshrrev_b32 v1, 6, v0")
    a("v_and_b32 v0, 63, v0")
    a("s_nop 0")
    a("v_readfirstlane_b32 s52, v1")
    a("s_waitcnt lgkmcnt(0)")

def spin(a, srd, soff, target, vt, sleep=8):
    L = a.newlabel("poll"); Ld = a.newlabel("polld")
    a("s_mov_b32 s74, 0")
    a.label(L)
    a(f"s_buffer_load_dword s75, s[{srd}:{srd+3}], {soff} glc")
    a("s_add_u32 s74, s74, 1")
    a("s_waitcnt lgkmcnt(0)")
    a(f"s_cmp_ge_u32 s75, {target}")
    a(f"s_cbranch_scc1 {Ld}")
    a(f"s_sleep {sleep}")
    a(f"s_cmp_lt_u32 s74, {SPIN_MAX}")
    a(f"s_cbranch_scc1 {L}")
    a.label(Ld)

N_INIT = 40
def spin_init(a, vt):
    L = a.newlabel("ini")
    a("s_and_b32 s77, s2, 1")
    a("s_lshl_b32 s77, s77, 7")
    a("s_buffer_load_dword s75, s[84:87], s77")
    a("s_waitcnt lgkmcnt(0)")
    a(f"s_cmp_ge_u32 s75, {N_INIT}")
    a(f"s_cbranch_scc1 {L}")
    Lr = a.newlabel("inir")
    a(f"v_mov_b32 v{vt}, 0")
    a("s_mov_b32 s74, 0")
    a.label(Lr)
    a("s_sleep 8")
    a("s_mov_b64 exec, 1")
    a(f"buffer_load_dword v{vt+1}, v{vt}, s[84:87], s77 offen sc1")
    a("s_mov_b64 exec, -1")
    a("s_waitcnt vmcnt(0)")
    a(f"v_readfirstlane_b32 s75, v{vt+1}")
    a("s_add_u32 s74, s74, 1")
    a(f"s_cmp_ge_u32 s75, {N_INIT}")
    a(f"s_cbranch_scc1 {L}")
    a(f"s_cmp_lt_u32 s74, {SPIN_MAX}")
    a(f"s_cbranch_scc1 {Lr}")
    a.label(L)

def poll(a, sidx, target, vt=5, init=False, sleep=8):
    Ld = a.newlabel("pw")
    a("s_cmp_lg_u32 s52, 0")
    a(f"s_cbranch_scc1 {Ld}")
    if init: spin_init(a, vt)
    if sidx is not None:
        spin(a, 48, f"s{sidx}", target, vt, sleep=sleep)
    a.label(Ld)
    a("s_barrier")

def publish(a, sidx, nrep, vt=5, init=False, voff=None, ninstr=1):
    L = a.newlabel("pub")
    if init:
        L0 = a.newlabel("pub")
        a("s_cmp_lg_u32 s52, 0")
        a(f"s_cbranch_scc1 {L0}")
        spin_init(a, vt)
        a.label(L0)
    a("s_waitcnt vmcnt(0)")
    a("s_barrier")
    a("s_cmp_lg_u32 s52, 0")
    a(f"s_cbranch_scc1 {L}")
    if voff: voff(a, vt)
    else: a(f"v_lshlrev_b32 v{vt}, 8, v0")
    a(f"v_mov_b32 v{vt+1}, 1")
    if isinstance(nrep, str):
        a(f"s_mov_b32 exec_lo, {nrep}")
        a("s_mov_b32 exec_hi, 0")
    elif nrep <= 32:
        a(f"s_mov_b32 exec_lo, {((1 << nrep) - 1) & 0xffffffff}")
        a("s_mov_b32 exec_hi, 0")
    for i in range(ninstr):
        a(f"buffer_atomic_add v{vt+1}, v{vt}, s[48:51], s{sidx} offen sc1")
        if i + 1 < ninstr: a(f"s_add_u32 s{sidx}, s{sidx}, {64*256}")
    a("s_mov_b64 exec, -1")
    a.label(L)

def init_mailboxes(a, jreg):
    a("v_lshrrev_b32 v5, 3, v0")
    a("v_and_b32 v6, 7, v0")
    a("v_lshlrev_b32 v6, 4, v6")
    a("v_lshl_add_u32 v5, v5, 8, v6")
    for i in range(4): a(f"v_mov_b32 v{8+i}, 0")
    a(f"s_lshl_b32 s72, {jreg}, 2")
    a("s_add_u32 s72, s72, s52")
    a("s_lshl_b32 s72, s72, 11")
    a(f"s_add_u32 s72, s72, {CNT_OFF}")
    a("buffer_store_dwordx4 v[8:11], v5, s[48:51], s72 offen sc1")
    a("s_waitcnt vmcnt(0)")
    a("s_barrier")
    L = a.newlabel("ini")
    a("s_cmp_lg_u32 s52, 0")
    a(f"s_cbranch_scc1 {L}")
    a("v_lshlrev_b32 v5, 7, v0")
    a("v_mov_b32 v6, 1")
    a("s_mov_b64 exec, 3")
    a("buffer_atomic_add v6, v5, s[84:87], 0 offen sc1")
    a("s_mov_b64 exec, -1")
    a.label(L)
```

```python
import sys
from common import *
import sync, k_front, k_mlp1, k_mlp2, k_attn, k_final
from sync import mb, MB_U, MB_H, MB_QKV, MB_O, MB_Y, MB_P, MB_G

HEADER = open("cdna_kernels/" + NAME + ".s.ref").read().split("; Override launch geometry")[0]
N_WO = 18
W2_TOUCH = False
FRONT_ONLY = False
PARTNER = True
A_EXIT = False
PF1 = 2
LIST = True
NO_FINAL = False
PFD = 1
LN_WAIT = True
PF2 = 9
EARLY = 1
EARLY_FL = ''
PROMOTE = False
WAIT_QKV = True
HINT_AT = 2
SLP_HINT = 4
SLP_FIN = 4
W2_TAIL = True
AUX_G0 = 16
AUX_NT = ''

def gen_main(a, name):
    a.kernel_begin(name)
    a("s_cmp_ge_u32 s2, 512")
    a("s_cbranch_scc1 L_end")
    a.load_kernargs()
    sync.wave_setup(a)
    a.srd(48, P_WS, WS_SIZE)
    a.srd(84, P_DBG, 256)
    a("s_cmp_ge_u32 s2, 256")
    a("s_cbranch_scc1 L_slotB")
    a("s_setprio 3")
    a("s_cmp_ge_u32 s2, 192")
    a("s_cbranch_scc1 L_ln")
    def pub_qkv(a):
        a("s_and_b32 s72, s56, 3")
        a("s_lshl_b32 s72, s72, 13")
        a(f"s_add_u32 s72, s72, {mb(MB_QKV)}")
        sync.publish(a, 72, 32, init=not WAIT_QKV)
    def hint_store(a):
        a("s_lshl_b32 s76, s2, 8")
        a(f"s_add_u32 s76, s76, {mb(MB_P)}")
        a("v_mov_b32 v8, 0")
        a("v_mov_b32 v9, 1")
        a("s_mov_b64 exec, 1")
        a("buffer_store_dword v9, v8, s[48:51], s76 offen sc1")
        a("s_mov_b64 exec, -1")
    def hint(a):
        L = a.newlabel("hint")
        a("s_lshl_b32 s76, s52, 3")
        a("s_add_u32 s76, s76, s60")
        a(f"s_cmp_lg_u32 s76, {HINT_AT}")
        a(f"s_cbranch_scc1 {L}")
        sync.spin_init(a, 8)
        hint_store(a)
        a.label(L)
    k_front.qkv_body(a, "s2", pub_qkv, hint if WAIT_QKV else None)
    a("s_branch L_attn")
    a.label("L_ln")
    a("s_sub_u32 s3, s2, 192")
    def pub_h(a):
        a("s_lshr_b32 s72, s58, 4")
        a("s_lshl_b32 s72, s72, 13")
        a(f"s_add_u32 s72, s72, {mb(MB_H)}")
        sync.publish(a, 72, 32, init=True)
    k_front.ln_body(a, "s3", pub_h)
    Lh = a.newlabel("lnh")
    a("s_cmp_lg_u32 s52, 0")
    a(f"s_cbranch_scc1 {Lh}")
    hint_store(a)
    a.label(Lh)
    a.stamp_mid(6)
    k_front.gate_own(a)
    a(f"s_cmp_ge_u32 s3, {N_WO}")
    a("s_cbranch_scc1 L_nowo")
    k_front.wo_body(a, "s3")
    a.label("L_nowo")
    a(f"s_mov_b32 s72, {mb(MB_G)}")
    sync.publish(a, 72, 32)
    a.label("L_attn")
    a.stamp_mid(2)
    if FRONT_ONLY or A_EXIT: a("s_branch L_done")
    def dep_qkv(a):
        a("s_lshr_b32 s72, s61, 3")
        a("s_lshl_b32 s72, s72, 5")
        a("s_bfe_u32 s73, s2, 0x50003")
        a("s_add_u32 s72, s72, s73")
        a("s_lshl_b32 s72, s72, 8")
        a(f"s_add_u32 s72, s72, {mb(MB_QKV)}")
        sync.poll(a, 72, 48, vt=8, sleep=4)
    def dep_g(a):
        a("s_bfe_u32 s72, s2, 0x50003")
        a("s_lshl_b32 s72, s72, 8")
        a(f"s_add_u32 s72, s72, {mb(MB_G)}")
        sync.spin(a, 48, "s72", 64, 0)
    def pub_o(a):
        a("s_cmp_gt_u32 s61, 7")
        a("s_cselect_b32 s72, 1, 0")
        for hd in (14, 19, 24):
            a(f"s_cmp_gt_u32 s61, {hd}")
            a("s_addc_u32 s72, s72, 0")
        a("s_lshr_b32 s73, s2, 5")
        a("s_mul_i32 s73, s73, 5")
        a("s_add_u32 s72, s72, s73")
        a(f"s_mul_i32 s72, s72, {6*256}")
        a(f"s_add_u32 s72, s72, {mb(MB_O)}")
        a(f"s_lshr_b32 s73, {(1<<7)|(1<<14)|(1<<19)|(1<<24)}, s61")
        a("s_and_b32 s73, s73, 1")
        a("s_cselect_b32 s73, 0xfff, 63")
        sync.publish(a, 72, "s73")
    TV = 140
    def tsetup(a):
        a.srd(80, P_W2, S*F*2)
        a("s_lshr_b32 s72, s2, 3")
        a("s_lshl_b32 s72, s72, 2")
        a("s_add_u32 s72, s72, s52")
        a("s_mul_i32 s73, s72, 205")
        a("s_lshr_b32 s73, s73, 11")
        a("s_mul_i32 s76, s73, 10")
        a("s_sub_u32 s72, s72, s76")
        a("s_and_b32 s76, s2, 7")
        a("s_mul_i32 s76, s76, 10")
        a("s_add_u32 s72, s72, s76")
        a("s_lshr_b32 s76, s72, 4")
        a("s_and_b32 s72, s72, 15")
        a(f"s_mul_i32 s76, s76, {928*4096}")
        a("s_lshl_b32 s72, s72, 8")
        a("s_add_u32 s76, s76, s72")
        a("s_lshl_b32 s72, s73, 17")
        a("s_add_u32 s76, s76, s72")
        a("s_cmp_ge_u32 s73, 12")
        a("s_cselect_b32 s82, 0, s82")
        a(f"v_lshrrev_b32 v{TV}, 1, v0")
        a(f"v_lshlrev_b32 v{TV}, 12, v{TV}")
        a(f"v_and_b32 v{TV+1}, 1, v0")
        a(f"v_lshl_add_u32 v{TV}, v{TV+1}, 7, v{TV}")
        a(f"v_add_u32 v{TV}, s76, v{TV}")
        a("s_mov_b32 s78, s73")
    def touch(a):
        a("s_cmp_ge_u32 s78, 29")
        a("s_cselect_b32 s82, 0, s82")
        a(f"buffer_load_dword v{TV+1}, v{TV}, s[80:83], 0 offen")
        a(f"v_add_u32 v{TV}, {12*32*4096}, v{TV}")
        a("s_add_u32 s78, s78, 12")
    k_attn.attn_body(a, "s2", dep_qkv, pub_o, sm=3, tsetup=tsetup if W2_TOUCH else None, touch=touch if W2_TOUCH else None, dep_g=dep_g)
    a.stamp_mid(5)
    a("s_cmp_ge_u32 s2, 192")
    a("s_cbranch_scc1 L_done")
    if NO_FINAL: a("s_branch L_done")
    def dep_y(a):
        a("s_lshl_b32 s72, s54, 5")
        a("s_add_u32 s72, s72, s53")
        a("s_lshl_b32 s72, s72, 8")
        a(f"s_add_u32 s72, s72, {mb(MB_Y)}")
        sync.spin(a, 48, "s72", 5, 8, sleep=SLP_FIN)
        a.stamp_mid(7)
    k_final.final_body(a, "s2", dep_y)
    a("s_branch L_done")
    a.label("L_slotB")
    a("s_sub_u32 s3, s2, 256")
    a(f"s_cmp_lt_u32 s3, {k_mlp1.MLP1_GRID}")
    a("s_cbranch_scc1 L_noinit")
    a("s_setprio 3")
    a(f"s_sub_u32 s78, s3, {k_mlp1.MLP1_GRID}")
    sync.init_mailboxes(a, "s78")
    a("s_setprio 0")
    a.stamp_mid(0)
    a.label("L_noinit")
    if FRONT_ONLY != 2: k_front.xw_touch(a, "s3")
    a("s_waitcnt vmcnt(0)")
    a("s_lshl_b32 s72, s3, 8")
    a(f"s_add_u32 s72, s72, {mb(MB_P)}")
    a("s_cmp_lt_u32 s3, 192")
    a(f"s_cselect_b32 s76, 1, {1 if LN_WAIT else 0}")
    sync.poll(a, 72, "s76", vt=5, init=True, sleep=SLP_HINT)
    a.stamp_mid(5)
    a("s_cmp_lt_u32 s3, 192")
    a("s_cbranch_scc1 L_mlp1")
    a.srd(40, P_W1, S*F*2)
    a("s_sub_u32 s67, 255, s3")
    a(f"s_mul_i32 s66, s52, {512*F*2}")
    a("s_lshl_b32 s68, s67, 13")
    a("s_add_u32 s66, s66, s68")
    a("v_lshlrev_b32 v5, 7, v0")
    a("v_add_u32 v5, s66, v5")
    for r in range(PF1):
        a(f"buffer_load_dword v{60+(r&1)}, v5, s[40:43], 0 offen")
        a(f"v_add_u32 v5, {64*8192}, v5")
        if r >= PFD: a(f"s_waitcnt vmcnt({PFD})")
    a(f"s_cmp_ge_u32 s3, {k_mlp1.MLP1_GRID}")
    a("s_cbranch_scc1 L_aux")
    a.label("L_mlp1")
    def dep_h(a):
        a("s_lshl_b32 s72, s52, 5")
        a("s_and_b32 s73, s3, 31")
        a("s_add_u32 s72, s72, s73")
        a("s_lshl_b32 s72, s72, 8")
        a(f"s_add_u32 s72, s72, {mb(MB_H)}")
        sync.spin(a, 48, "s72", 16, 5)
    def w2_tail(a):
        a.srd(80, P_W2, S*F*2)
        a("s_lshr_b32 s72, s3, 3")
        a("s_mul_i32 s73, s72, 86")
        a("s_lshr_b32 s73, s73, 8")
        a("s_mul_i32 s76, s73, 3")
        a("s_sub_u32 s72, s72, s76")
        a("s_and_b32 s76, s3, 7")
        a("s_mul_i32 s76, s76, 10")
        a("s_add_u32 s73, s73, s76")
        a("s_lshr_b32 s76, s73, 4")
        a("s_and_b32 s73, s73, 15")
        a(f"s_mul_i32 s76, s76, {928*4096}")
        a("s_lshl_b32 s73, s73, 8")
        a("s_add_u32 s76, s76, s73")
        a("s_lshl_b32 s72, s72, 2")
        a("s_add_u32 s72, s72, s52")
        a("s_add_u32 s72, s72, 17")
        a("s_lshl_b32 s72, s72, 17")
        a("s_add_u32 s76, s76, s72")
        a("v_lshrrev_b32 v60, 1, v0")
        a("v_lshlrev_b32 v60, 12, v60")
        a("v_and_b32 v61, 1, v0")
        a("v_lshl_add_u32 v60, v61, 7, v60")
        a("v_add_u32 v60, s76, v60")
        a("buffer_load_dword v61, v60, s[80:83], 0 offen")
    def pub_u(a):
        a("s_mul_i32 s73, s66, 565")
        a("s_lshr_b32 s73, s73, 12")
        a("s_lshr_b32 s72, s67, 1")
        a("s_mul_i32 s72, s72, 5")
        a("s_add_u32 s73, s73, s72")
        a("s_lshl_b32 s73, s73, 12")
        a(f"s_add_u32 s73, s73, {mb(MB_U)}")
        a("s_lshr_b32 s72, 0x204080, s66")
        a("s_cmp_lt_u32 s66, 32")
        a("s_cselect_b32 s72, s72, 0")
        a("s_and_b32 s72, s72, 1")
        a("s_cselect_b32 s72, -1, 0xffff")
        sync.publish(a, 73, "s72")
    k_mlp1.mlp1_body(a, "s3", dep_h, pub_u, sm=0, epi=w2_tail if W2_TAIL else None)
    a.stamp_mid(2)
    a("s_branch L_mlp2")
    a.label("L_aux")
    for n in range(-(-(576 - 64*PF1)//40)):
        a(f"buffer_load_dword v{60+(n&1)}, v5, s[40:43], 0 offen")
        a(f"v_add_u32 v5, {40*8192}, v5")
        a(f"s_waitcnt vmcnt({PFD})")
    a.stamp_mid(1)
    a.srd(40, P_W2, S*F*2)
    a("s_lshl_b32 s68, s67, 2")
    a("s_add_u32 s68, s68, s52")
    a("s_lshr_b32 s66, s68, 5")
    a("s_and_b32 s68, s68, 31")
    a(f"s_mul_i32 s66, s66, {928*4096}")
    a("s_lshl_b32 s68, s68, 13")
    a("s_add_u32 s66, s66, s68")
    a("v_lshlrev_b32 v5, 7, v0")
    a("v_add_u32 v5, s66, v5")
    for n in range(PF2):
        a(f"buffer_load_dword v{60+(n&1)}, v5, s[40:43], 0 offen")
        a(f"v_add_u32 v5, {32*8192}, v5")
        a(f"s_waitcnt vmcnt({PFD})")
    a("s_waitcnt vmcnt(0)")
    a.stamp_mid(2)
    a(f"s_cmp_ge_u32 s3, {k_mlp2.MLP2_GRID}")
    a("s_cbranch_scc1 L_done")
    a.label("L_mlp2")
    def dep_u(a):
        a("s_mul_i32 s73, s67, 5")
        a("s_add_u32 s73, s73, s69")
        a("s_lshl_b32 s73, s73, 4")
        a("s_add_u32 s73, s73, s66")
        a("s_lshl_b32 s73, s73, 8")
        a(f"s_add_u32 s73, s73, {mb(MB_U)}")
        a("s_cmp_eq_u32 s69, 4")
        a("s_cselect_b32 s76, 14, 16")
        sync.poll(a, 73, "s76", vt=8)
    def pub_y(a):
        a("s_lshl_b32 s73, s67, 6")
        a("s_lshl_b32 s70, s66, 1")
        a("s_add_u32 s73, s73, s70")
        a("s_lshl_b32 s73, s73, 8")
        a(f"s_add_u32 s73, s73, {mb(MB_Y)}")
        def voff(a, vt):
            a(f"v_lshrrev_b32 v{vt}, 1, v0")
            a(f"v_lshlrev_b32 v{vt}, 13, v{vt}")
            a(f"v_and_b32 v{vt+1}, 1, v0")
            a(f"v_lshl_add_u32 v{vt}, v{vt+1}, 8, v{vt}")
        sync.publish(a, 73, 4, vt=8, voff=voff)
    def dep_o(a):
        a("s_lshr_b32 s73, s66, 1")
        a("s_mul_i32 s73, s73, 5")
        a("s_add_u32 s73, s73, s69")
        a("s_mul_i32 s73, s73, 6")
        a("s_lshl_b32 s70, s67, 1")
        a("s_add_u32 s73, s73, s70")
        a("s_and_b32 s70, s66, 1")
        a("s_add_u32 s73, s73, s70")
        a("s_lshl_b32 s73, s73, 8")
        a(f"s_add_u32 s73, s73, {mb(MB_O)}")
        a("s_lshl_b32 s76, s53, 1")
        a.stamp_mid(5)
        sync.spin(a, 48, "s73", "s76", 8, sleep=2)
        a.stamp_mid(6)
    k_mlp2.mlp2_body(a, "s3", sm=3, dep=dep_u, pub=pub_y, dep_o=dep_o)
    a.label("L_done")
    a.end()
    a.label("L_end")
    a("s_endpgm")

def build(stamp=False):
    a = Asm()
    a.stamp = stamp
    fin = NAME + "_kernel"
    out = HEADER
    out += (f"; @launch kernel={fin} grid=(512,1,1) block=(256,1,1) lds=81920\n" if LIST else "; @launch grid=(512,1,1) block=(256,1,1) lds=81920\n")
    out += '.amdgcn_target "amdgcn-amd-amdhsa--gfx950"\n.text\n'
    gen_main(a, fin)
    out += a.text()
    out += '.section .rodata,"a"\n'
    out += ".p2align 6\n" + descriptor(fin, 256, None)
    return out

if __name__ == "__main__":
    open("main.s", "w").write(build())
    open("stamp.s", "w").write(build(True))
    LIST = False
    open("final.s", "w").write(build())
    LIST = True
    for nm, y1, y2 in (("va", 2, 2), ("vb", 3, 1), ("vc", 1, 1), ("vd", 1, 2)):
        k_mlp1.YIELD = y1; k_mlp2.YIELD = y2
        open(f"gen/{nm}.s", "w").write(build(True))
    print("wrote")
```

```python
import sys
from common import *
import sync, k_front, k_mlp1, k_mlp2, k_attn, k_final
from sync import mb, MB_U, MB_H, MB_QKV, MB_O, MB_Y, MB_P, MB_G

HEADER = open("cdna_kernels/" + NAME + ".s.ref").read().split("; Override launch geometry")[0]
N_WO = 18
W2_TOUCH = False
FRONT_ONLY = False
PARTNER = True
A_EXIT = False
PF1 = 2
PFW1 = True
XW = True
LIST = True
NO_FINAL = False
PFD = 1
LN_WAIT = True
PF2 = 9
EARLY = 1
EARLY_FL = ''
PROMOTE = False
WAIT_QKV = True
HINT_AT = 2
SLP_HINT = 4
SLP_FIN = 4
W2_TAIL = True
AUX_G0 = 16
AUX_NT = ''

def gen_main(a, name):
    a.kernel_begin(name)
    a("s_cmp_ge_u32 s2, 512")
    a("s_cbranch_scc1 L_end")
    a.load_kernargs()
    sync.wave_setup(a)
    a.srd(48, P_WS, WS_SIZE)
    a.srd(84, P_DBG, 256)
    a("s_cmp_ge_u32 s2, 256")
    a("s_cbranch_scc1 L_slotB")
    a("s_setprio 3")
    a("s_cmp_ge_u32 s2, 192")
    a("s_cbranch_scc1 L_ln")
    def pub_qkv(a):
        a("s_and_b32 s72, s56, 3")
        a("s_lshl_b32 s72, s72, 13")
        a(f"s_add_u32 s72, s72, {mb(MB_QKV)}")
        sync.publish(a, 72, 32, init=not WAIT_QKV)
    def hint_store(a):
        a("s_lshl_b32 s76, s2, 8")
        a(f"s_add_u32 s76, s76, {mb(MB_P)}")
        a("v_mov_b32 v8, 0")
        a("v_mov_b32 v9, 1")
        a("s_mov_b64 exec, 1")
        a("buffer_store_dword v9, v8, s[48:51], s76 offen sc1")
        a("s_mov_b64 exec, -1")
    def hint(a):
        L = a.newlabel("hint")
        a("s_lshl_b32 s76, s52, 3")
        a("s_add_u32 s76, s76, s60")
        a(f"s_cmp_lg_u32 s76, {HINT_AT}")
        a(f"s_cbranch_scc1 {L}")
        sync.spin_init(a, 8)
        hint_store(a)
        a.label(L)
    k_front.qkv_body(a, "s2", pub_qkv, hint if WAIT_QKV else None)
    a("s_branch L_attn")
    a.label("L_ln")
    a("s_sub_u32 s3, s2, 192")
    def pub_h(a):
        a("s_lshr_b32 s72, s58, 4")
        a("s_lshl_b32 s72, s72, 13")
        a(f"s_add_u32 s72, s72, {mb(MB_H)}")
        sync.publish(a, 72, 32, init=True)
    k_front.ln_body(a, "s3", pub_h)
    Lh = a.newlabel("lnh")
    a("s_cmp_lg_u32 s52, 0")
    a(f"s_cbranch_scc1 {Lh}")
    hint_store(a)
    a.label(Lh)
    a.stamp_mid(6)
    k_front.gate_own(a)
    a(f"s_cmp_ge_u32 s3, {N_WO}")
    a("s_cbranch_scc1 L_nowo")
    k_front.wo_body(a, "s3")
    a.label("L_nowo")
    a(f"s_mov_b32 s72, {mb(MB_G)}")
    sync.publish(a, 72, 32)
    a.label("L_attn")
    a.stamp_mid(2)
    if FRONT_ONLY or A_EXIT: a("s_branch L_done")
    def dep_qkv(a):
        a("s_lshr_b32 s72, s61, 3")
        a("s_lshl_b32 s72, s72, 5")
        a("s_bfe_u32 s73, s2, 0x50003")
        a("s_add_u32 s72, s72, s73")
        a("s_lshl_b32 s72, s72, 8")
        a(f"s_add_u32 s72, s72, {mb(MB_QKV)}")
        sync.poll(a, 72, 48, vt=8, sleep=4)
    def dep_g(a):
        a("s_bfe_u32 s72, s2, 0x50003")
        a("s_lshl_b32 s72, s72, 8")
        a(f"s_add_u32 s72, s72, {mb(MB_G)}")
        sync.spin(a, 48, "s72", 64, 0)
    def pub_o(a):
        a("s_cmp_gt_u32 s61, 7")
        a("s_cselect_b32 s72, 1, 0")
        for hd in (14, 19, 24):
            a(f"s_cmp_gt_u32 s61, {hd}")
            a("s_addc_u32 s72, s72, 0")
        a("s_lshr_b32 s73, s2, 5")
        a("s_mul_i32 s73, s73, 5")
        a("s_add_u32 s72, s72, s73")
        a(f"s_mul_i32 s72, s72, {6*256}")
        a(f"s_add_u32 s72, s72, {mb(MB_O)}")
        a(f"s_lshr_b32 s73, {(1<<7)|(1<<14)|(1<<19)|(1<<24)}, s61")
        a("s_and_b32 s73, s73, 1")
        a("s_cselect_b32 s73, 0xfff, 63")
        sync.publish(a, 72, "s73")
    TV = 140
    def tsetup(a):
        a.srd(80, P_W2, S*F*2)
        a("s_lshr_b32 s72, s2, 3")
        a("s_lshl_b32 s72, s72, 2")
        a("s_add_u32 s72, s72, s52")
        a("s_mul_i32 s73, s72, 205")
        a("s_lshr_b32 s73, s73, 11")
        a("s_mul_i32 s76, s73, 10")
        a("s_sub_u32 s72, s72, s76")
        a("s_and_b32 s76, s2, 7")
        a("s_mul_i32 s76, s76, 10")
        a("s_add_u32 s72, s72, s76")
        a("s_lshr_b32 s76, s72, 4")
        a("s_and_b32 s72, s72, 15")
        a(f"s_mul_i32 s76, s76, {928*4096}")
        a("s_lshl_b32 s72, s72, 8")
        a("s_add_u32 s76, s76, s72")
        a("s_lshl_b32 s72, s73, 17")
        a("s_add_u32 s76, s76, s72")
        a("s_cmp_ge_u32 s73, 12")
        a("s_cselect_b32 s82, 0, s82")
        a(f"v_lshrrev_b32 v{TV}, 1, v0")
        a(f"v_lshlrev_b32 v{TV}, 12, v{TV}")
        a(f"v_and_b32 v{TV+1}, 1, v0")
        a(f"v_lshl_add_u32 v{TV}, v{TV+1}, 7, v{TV}")
        a(f"v_add_u32 v{TV}, s76, v{TV}")
        a("s_mov_b32 s78, s73")
    def touch(a):
        a("s_cmp_ge_u32 s78, 29")
        a("s_cselect_b32 s82, 0, s82")
        a(f"buffer_load_dword v{TV+1}, v{TV}, s[80:83], 0 offen")
        a(f"v_add_u32 v{TV}, {12*32*4096}, v{TV}")
        a("s_add_u32 s78, s78, 12")
    k_attn.attn_body(a, "s2", dep_qkv, pub_o, sm=3, tsetup=tsetup if W2_TOUCH else None, touch=touch if W2_TOUCH else None, dep_g=dep_g)
    a.stamp_mid(5)
    a("s_cmp_ge_u32 s2, 192")
    a("s_cbranch_scc1 L_done")
    if NO_FINAL: a("s_branch L_done")
    def dep_y(a):
        a("s_lshl_b32 s72, s54, 5")
        a("s_add_u32 s72, s72, s53")
        a("s_lshl_b32 s72, s72, 8")
        a(f"s_add_u32 s72, s72, {mb(MB_Y)}")
        sync.spin(a, 48, "s72", 5, 8, sleep=SLP_FIN)
        a.stamp_mid(7)
    k_final.final_body(a, "s2", dep_y)
    a("s_branch L_done")
    a.label("L_slotB")
    a("s_sub_u32 s3, s2, 256")
    a(f"s_cmp_lt_u32 s3, {k_mlp1.MLP1_GRID}")
    a("s_cbranch_scc1 L_noinit")
    a("s_setprio 3")
    a(f"s_sub_u32 s78, s3, {k_mlp1.MLP1_GRID}")
    sync.init_mailboxes(a, "s78")
    a("s_setprio 0")
    a.stamp_mid(0)
    a.label("L_noinit")
    if XW: k_front.xw_touch(a, "s3")
    a("s_waitcnt vmcnt(0)")
    a("s_lshl_b32 s72, s3, 8")
    a(f"s_add_u32 s72, s72, {mb(MB_P)}")
    a("s_cmp_lt_u32 s3, 192")
    a(f"s_cselect_b32 s76, 1, {1 if LN_WAIT else 0}")
    sync.poll(a, 72, "s76", vt=5, init=True, sleep=SLP_HINT)
    a.stamp_mid(5)
    a("s_cmp_lt_u32 s3, 192")
    a("s_cbranch_scc1 L_mlp1")
    a.srd(40, P_W1, S*F*2)
    a("s_sub_u32 s67, 255, s3")
    a(f"s_mul_i32 s66, s52, {512*F*2}")
    a("s_lshl_b32 s68, s67, 13")
    a("s_add_u32 s66, s66, s68")
    a("v_lshlrev_b32 v5, 7, v0")
    a("v_add_u32 v5, s66, v5")
    for r in range(PF1):
        a(f"buffer_load_dword v{60+(r&1)}, v5, s[40:43], 0 offen")
        a(f"v_add_u32 v5, {64*8192}, v5")
        if r >= PFD: a(f"s_waitcnt vmcnt({PFD})")
    a(f"s_cmp_ge_u32 s3, {k_mlp1.MLP1_GRID}")
    a("s_cbranch_scc1 L_aux")
    a.label("L_mlp1")
    def dep_h(a):
        a("s_lshl_b32 s72, s52, 5")
        a("s_and_b32 s73, s3, 31")
        a("s_add_u32 s72, s72, s73")
        a("s_lshl_b32 s72, s72, 8")
        a(f"s_add_u32 s72, s72, {mb(MB_H)}")
        sync.spin(a, 48, "s72", 16, 5)
    def w2_tail(a):
        a.srd(80, P_W2, S*F*2)
        a("s_lshr_b32 s72, s3, 3")
        a("s_mul_i32 s73, s72, 86")
        a("s_lshr_b32 s73, s73, 8")
        a("s_mul_i32 s76, s73, 3")
        a("s_sub_u32 s72, s72, s76")
        a("s_and_b32 s76, s3, 7")
        a("s_mul_i32 s76, s76, 10")
        a("s_add_u32 s73, s73, s76")
        a("s_lshr_b32 s76, s73, 4")
        a("s_and_b32 s73, s73, 15")
        a(f"s_mul_i32 s76, s76, {928*4096}")
        a("s_lshl_b32 s73, s73, 8")
        a("s_add_u32 s76, s76, s73")
        a("s_lshl_b32 s72, s72, 2")
        a("s_add_u32 s72, s72, s52")
        a("s_add_u32 s72, s72, 17")
        a("s_lshl_b32 s72, s72, 17")
        a("s_add_u32 s76, s76, s72")
        a("v_lshrrev_b32 v60, 1, v0")
        a("v_lshlrev_b32 v60, 12, v60")
        a("v_and_b32 v61, 1, v0")
        a("v_lshl_add_u32 v60, v61, 7, v60")
        a("v_add_u32 v60, s76, v60")
        a("buffer_load_dword v61, v60, s[80:83], 0 offen")
    def pub_u(a):
        a("s_mul_i32 s73, s66, 565")
        a("s_lshr_b32 s73, s73, 12")
        a("s_lshr_b32 s72, s67, 1")
        a("s_mul_i32 s72, s72, 5")
        a("s_add_u32 s73, s73, s72")
        a("s_lshl_b32 s73, s73, 12")
        a(f"s_add_u32 s73, s73, {mb(MB_U)}")
        a("s_lshr_b32 s72, 0x204080, s66")
        a("s_cmp_lt_u32 s66, 32")
        a("s_cselect_b32 s72, s72, 0")
        a("s_and_b32 s72, s72, 1")
        a("s_cselect_b32 s72, -1, 0xffff")
        sync.publish(a, 73, "s72")
    k_mlp1.mlp1_body(a, "s3", dep_h, pub_u, sm=0, epi=w2_tail if W2_TAIL else None)
    a.stamp_mid(2)
    a("s_branch L_mlp2")
    a.label("L_aux")
    for n in range(-(-(576 - 64*PF1)//40) if PFW1 else 0):
        a(f"buffer_load_dword v{60+(n&1)}, v5, s[40:43], 0 offen")
        a(f"v_add_u32 v5, {40*8192}, v5")
        a(f"s_waitcnt vmcnt({PFD})")
    a.stamp_mid(1)
    a.srd(40, P_W2, S*F*2)
    a("s_lshl_b32 s68, s67, 2")
    a("s_add_u32 s68, s68, s52")
    a("s_lshr_b32 s66, s68, 5")
    a("s_and_b32 s68, s68, 31")
    a(f"s_mul_i32 s66, s66, {928*4096}")
    a("s_lshl_b32 s68, s68, 13")
    a("s_add_u32 s66, s66, s68")
    a("v_lshlrev_b32 v5, 7, v0")
    a("v_add_u32 v5, s66, v5")
    for n in range(PF2):
        a(f"buffer_load_dword v{60+(n&1)}, v5, s[40:43], 0 offen")
        a(f"v_add_u32 v5, {32*8192}, v5")
        a(f"s_waitcnt vmcnt({PFD})")
    a("s_waitcnt vmcnt(0)")
    a.stamp_mid(2)
    a(f"s_cmp_ge_u32 s3, {k_mlp2.MLP2_GRID}")
    a("s_cbranch_scc1 L_done")
    a.label("L_mlp2")
    def dep_u(a):
        a("s_mul_i32 s73, s67, 5")
        a("s_add_u32 s73, s73, s69")
        a("s_lshl_b32 s73, s73, 4")
        a("s_add_u32 s73, s73, s66")
        a("s_lshl_b32 s73, s73, 8")
        a(f"s_add_u32 s73, s73, {mb(MB_U)}")
        a("s_cmp_eq_u32 s69, 4")
        a("s_cselect_b32 s76, 14, 16")
        sync.poll(a, 73, "s76", vt=8)
    def pub_y(a):
        a("s_lshl_b32 s73, s67, 6")
        a("s_lshl_b32 s70, s66, 1")
        a("s_add_u32 s73, s73, s70")
        a("s_lshl_b32 s73, s73, 8")
        a(f"s_add_u32 s73, s73, {mb(MB_Y)}")
        def voff(a, vt):
            a(f"v_lshrrev_b32 v{vt}, 1, v0")
            a(f"v_lshlrev_b32 v{vt}, 13, v{vt}")
            a(f"v_and_b32 v{vt+1}, 1, v0")
            a(f"v_lshl_add_u32 v{vt}, v{vt+1}, 8, v{vt}")
        sync.publish(a, 73, 4, vt=8, voff=voff)
    def dep_o(a):
        a("s_lshr_b32 s73, s66, 1")
        a("s_mul_i32 s73, s73, 5")
        a("s_add_u32 s73, s73, s69")
        a("s_mul_i32 s73, s73, 6")
        a("s_lshl_b32 s70, s67, 1")
        a("s_add_u32 s73, s73, s70")
        a("s_and_b32 s70, s66, 1")
        a("s_add_u32 s73, s73, s70")
        a("s_lshl_b32 s73, s73, 8")
        a(f"s_add_u32 s73, s73, {mb(MB_O)}")
        a("s_lshl_b32 s76, s53, 1")
        a.stamp_mid(5)
        sync.spin(a, 48, "s73", "s76", 8, sleep=2)
        a.stamp_mid(6)
    k_mlp2.mlp2_body(a, "s3", sm=3, dep=dep_u, pub=pub_y, dep_o=dep_o)
    a.label("L_done")
    a.end()
    a.label("L_end")
    a("s_endpgm")

def build(stamp=False):
    a = Asm()
    a.stamp = stamp
    fin = NAME + "_kernel"
    out = HEADER
    out += (f"; @launch kernel={fin} grid=(512,1,1) block=(256,1,1) lds=81920\n" if LIST else "; @launch grid=(512,1,1) block=(256,1,1) lds=81920\n")
    out += '.amdgcn_target "amdgcn-amd-amdhsa--gfx950"\n.text\n'
    gen_main(a, fin)
    out += a.text()
    out += '.section .rodata,"a"\n'
    out += ".p2align 6\n" + descriptor(fin, 256, None)
    return out

if __name__ == "__main__":
    open("main.s", "w").write(build())
    open("stamp.s", "w").write(build(True))
    LIST = False
    open("final.s", "w").write(build())
    LIST = True
    PF1 = 0; PFW1 = False; PF2 = 0; W2_TAIL = False
    open(f"na.s", "w").write(build())
    XW = False
    open(f"nb.s", "w").write(build())
    print("wrote")
```

```python
import sys
from common import *
import sync, k_front, k_mlp1, k_mlp2, k_attn, k_final
from sync import mb, MB_U, MB_H, MB_QKV, MB_O, MB_Y, MB_P, MB_G

HEADER = open("cdna_kernels/" + NAME + ".s.ref").read().split("; Override launch geometry")[0]
N_WO = 18
W2_TOUCH = False
FRONT_ONLY = False
PARTNER = True
A_EXIT = False
PF1 = 2
TLBW = 0
PFW1 = True
XW = True
LIST = True
NO_FINAL = False
PFD = 1
LN_WAIT = True
PF2 = 9
EARLY = 1
EARLY_FL = ''
PROMOTE = False
WAIT_QKV = True
HINT_AT = 2
SLP_HINT = 4
SLP_FIN = 4
W2_TAIL = True
AUX_G0 = 16
AUX_NT = ''

def gen_main(a, name):
    a.kernel_begin(name)
    a("s_cmp_ge_u32 s2, 512")
    a("s_cbranch_scc1 L_end")
    a.load_kernargs()
    sync.wave_setup(a)
    a.srd(48, P_WS, WS_SIZE)
    a.srd(84, P_DBG, 256)
    a("s_cmp_ge_u32 s2, 256")
    a("s_cbranch_scc1 L_slotB")
    a("s_setprio 3")
    a("s_cmp_ge_u32 s2, 192")
    a("s_cbranch_scc1 L_ln")
    def pub_qkv(a):
        a("s_and_b32 s72, s56, 3")
        a("s_lshl_b32 s72, s72, 13")
        a(f"s_add_u32 s72, s72, {mb(MB_QKV)}")
        sync.publish(a, 72, 32, init=not WAIT_QKV)
    def hint_store(a):
        a("s_lshl_b32 s76, s2, 8")
        a(f"s_add_u32 s76, s76, {mb(MB_P)}")
        a("v_mov_b32 v8, 0")
        a("v_mov_b32 v9, 1")
        a("s_mov_b64 exec, 1")
        a("buffer_store_dword v9, v8, s[48:51], s76 offen sc1")
        a("s_mov_b64 exec, -1")
    def hint(a):
        L = a.newlabel("hint")
        a("s_lshl_b32 s76, s52, 3")
        a("s_add_u32 s76, s76, s60")
        a(f"s_cmp_lg_u32 s76, {HINT_AT}")
        a(f"s_cbranch_scc1 {L}")
        sync.spin_init(a, 8)
        hint_store(a)
        a.label(L)
    k_front.qkv_body(a, "s2", pub_qkv, hint if WAIT_QKV else None)
    a("s_branch L_attn")
    a.label("L_ln")
    a("s_sub_u32 s3, s2, 192")
    def pub_h(a):
        a("s_lshr_b32 s72, s58, 4")
        a("s_lshl_b32 s72, s72, 13")
        a(f"s_add_u32 s72, s72, {mb(MB_H)}")
        sync.publish(a, 72, 32, init=True)
    k_front.ln_body(a, "s3", pub_h)
    Lh = a.newlabel("lnh")
    a("s_cmp_lg_u32 s52, 0")
    a(f"s_cbranch_scc1 {Lh}")
    hint_store(a)
    a.label(Lh)
    a.stamp_mid(6)
    k_front.gate_own(a)
    a(f"s_cmp_ge_u32 s3, {N_WO}")
    a("s_cbranch_scc1 L_nowo")
    k_front.wo_body(a, "s3")
    a.label("L_nowo")
    a(f"s_mov_b32 s72, {mb(MB_G)}")
    sync.publish(a, 72, 32)
    a.label("L_attn")
    a.stamp_mid(2)
    if FRONT_ONLY or A_EXIT: a("s_branch L_done")
    def dep_qkv(a):
        a("s_lshr_b32 s72, s61, 3")
        a("s_lshl_b32 s72, s72, 5")
        a("s_bfe_u32 s73, s2, 0x50003")
        a("s_add_u32 s72, s72, s73")
        a("s_lshl_b32 s72, s72, 8")
        a(f"s_add_u32 s72, s72, {mb(MB_QKV)}")
        sync.poll(a, 72, 48, vt=8, sleep=4)
    def dep_g(a):
        a("s_bfe_u32 s72, s2, 0x50003")
        a("s_lshl_b32 s72, s72, 8")
        a(f"s_add_u32 s72, s72, {mb(MB_G)}")
        sync.spin(a, 48, "s72", 64, 0)
    def pub_o(a):
        a("s_cmp_gt_u32 s61, 7")
        a("s_cselect_b32 s72, 1, 0")
        for hd in (14, 19, 24):
            a(f"s_cmp_gt_u32 s61, {hd}")
            a("s_addc_u32 s72, s72, 0")
        a("s_lshr_b32 s73, s2, 5")
        a("s_mul_i32 s73, s73, 5")
        a("s_add_u32 s72, s72, s73")
        a(f"s_mul_i32 s72, s72, {6*256}")
        a(f"s_add_u32 s72, s72, {mb(MB_O)}")
        a(f"s_lshr_b32 s73, {(1<<7)|(1<<14)|(1<<19)|(1<<24)}, s61")
        a("s_and_b32 s73, s73, 1")
        a("s_cselect_b32 s73, 0xfff, 63")
        sync.publish(a, 72, "s73")
    TV = 140
    def tsetup(a):
        a.srd(80, P_W2, S*F*2)
        a("s_lshr_b32 s72, s2, 3")
        a("s_lshl_b32 s72, s72, 2")
        a("s_add_u32 s72, s72, s52")
        a("s_mul_i32 s73, s72, 205")
        a("s_lshr_b32 s73, s73, 11")
        a("s_mul_i32 s76, s73, 10")
        a("s_sub_u32 s72, s72, s76")
        a("s_and_b32 s76, s2, 7")
        a("s_mul_i32 s76, s76, 10")
        a("s_add_u32 s72, s72, s76")
        a("s_lshr_b32 s76, s72, 4")
        a("s_and_b32 s72, s72, 15")
        a(f"s_mul_i32 s76, s76, {928*4096}")
        a("s_lshl_b32 s72, s72, 8")
        a("s_add_u32 s76, s76, s72")
        a("s_lshl_b32 s72, s73, 17")
        a("s_add_u32 s76, s76, s72")
        a("s_cmp_ge_u32 s73, 12")
        a("s_cselect_b32 s82, 0, s82")
        a(f"v_lshrrev_b32 v{TV}, 1, v0")
        a(f"v_lshlrev_b32 v{TV}, 12, v{TV}")
        a(f"v_and_b32 v{TV+1}, 1, v0")
        a(f"v_lshl_add_u32 v{TV}, v{TV+1}, 7, v{TV}")
        a(f"v_add_u32 v{TV}, s76, v{TV}")
        a("s_mov_b32 s78, s73")
    def touch(a):
        a("s_cmp_ge_u32 s78, 29")
        a("s_cselect_b32 s82, 0, s82")
        a(f"buffer_load_dword v{TV+1}, v{TV}, s[80:83], 0 offen")
        a(f"v_add_u32 v{TV}, {12*32*4096}, v{TV}")
        a("s_add_u32 s78, s78, 12")
    k_attn.attn_body(a, "s2", dep_qkv, pub_o, sm=3, tsetup=tsetup if W2_TOUCH else None, touch=touch if W2_TOUCH else None, dep_g=dep_g)
    a.stamp_mid(5)
    a("s_cmp_ge_u32 s2, 192")
    a("s_cbranch_scc1 L_done")
    if NO_FINAL: a("s_branch L_done")
    def dep_y(a):
        a("s_lshl_b32 s72, s54, 5")
        a("s_add_u32 s72, s72, s53")
        a("s_lshl_b32 s72, s72, 8")
        a(f"s_add_u32 s72, s72, {mb(MB_Y)}")
        sync.spin(a, 48, "s72", 5, 8, sleep=SLP_FIN)
        a.stamp_mid(7)
    k_final.final_body(a, "s2", dep_y)
    a("s_branch L_done")
    a.label("L_slotB")
    a("s_sub_u32 s3, s2, 256")
    a(f"s_cmp_lt_u32 s3, {k_mlp1.MLP1_GRID}")
    a("s_cbranch_scc1 L_noinit")
    a("s_setprio 3")
    a(f"s_sub_u32 s78, s3, {k_mlp1.MLP1_GRID}")
    sync.init_mailboxes(a, "s78")
    a("s_setprio 0")
    a.stamp_mid(0)
    a.label("L_noinit")
    if XW: k_front.xw_touch(a, "s3")
    if TLBW:
        a("s_lshr_b32 s53, s3, 3")
        a("s_lshl_b32 s53, s53, 2")
        a("s_add_u32 s53, s53, s52")
        a("s_lshl_b32 s53, s53, 6")
        a("v_add_u32 v5, s53, v0")
        a(f"v_lshlrev_b32 v5, {TLBW}, v5")
        a.srd(80, P_W1, S*F*2)
        a("buffer_load_dword v62, v5, s[80:83], 0 offen nt")
        a.srd(80, P_W2, S*F*2)
        a("buffer_load_dword v63, v5, s[80:83], 0 offen nt")
        a.srd(80, P_WS, CNT_OFF)
        a("buffer_load_dword v59, v5, s[80:83], 0 offen nt")
    a("s_waitcnt vmcnt(0)")
    a("s_lshl_b32 s72, s3, 8")
    a(f"s_add_u32 s72, s72, {mb(MB_P)}")
    a("s_cmp_lt_u32 s3, 192")
    a(f"s_cselect_b32 s76, 1, {1 if LN_WAIT else 0}")
    sync.poll(a, 72, "s76", vt=5, init=True, sleep=SLP_HINT)
    a.stamp_mid(5)
    a("s_cmp_lt_u32 s3, 192")
    a("s_cbranch_scc1 L_mlp1")
    a.srd(40, P_W1, S*F*2)
    a("s_sub_u32 s67, 255, s3")
    a(f"s_mul_i32 s66, s52, {512*F*2}")
    a("s_lshl_b32 s68, s67, 13")
    a("s_add_u32 s66, s66, s68")
    a("v_lshlrev_b32 v5, 7, v0")
    a("v_add_u32 v5, s66, v5")
    for r in range(PF1):
        a(f"buffer_load_dword v{60+(r&1)}, v5, s[40:43], 0 offen")
        a(f"v_add_u32 v5, {64*8192}, v5")
        if r >= PFD: a(f"s_waitcnt vmcnt({PFD})")
    a(f"s_cmp_ge_u32 s3, {k_mlp1.MLP1_GRID}")
    a("s_cbranch_scc1 L_aux")
    a.label("L_mlp1")
    def dep_h(a):
        a("s_lshl_b32 s72, s52, 5")
        a("s_and_b32 s73, s3, 31")
        a("s_add_u32 s72, s72, s73")
        a("s_lshl_b32 s72, s72, 8")
        a(f"s_add_u32 s72, s72, {mb(MB_H)}")
        sync.spin(a, 48, "s72", 16, 5)
    def w2_tail(a):
        a.srd(80, P_W2, S*F*2)
        a("s_lshr_b32 s72, s3, 3")
        a("s_mul_i32 s73, s72, 86")
        a("s_lshr_b32 s73, s73, 8")
        a("s_mul_i32 s76, s73, 3")
        a("s_sub_u32 s72, s72, s76")
        a("s_and_b32 s76, s3, 7")
        a("s_mul_i32 s76, s76, 10")
        a("s_add_u32 s73, s73, s76")
        a("s_lshr_b32 s76, s73, 4")
        a("s_and_b32 s73, s73, 15")
        a(f"s_mul_i32 s76, s76, {928*4096}")
        a("s_lshl_b32 s73, s73, 8")
        a("s_add_u32 s76, s76, s73")
        a("s_lshl_b32 s72, s72, 2")
        a("s_add_u32 s72, s72, s52")
        a("s_add_u32 s72, s72, 17")
        a("s_lshl_b32 s72, s72, 17")
        a("s_add_u32 s76, s76, s72")
        a("v_lshrrev_b32 v60, 1, v0")
        a("v_lshlrev_b32 v60, 12, v60")
        a("v_and_b32 v61, 1, v0")
        a("v_lshl_add_u32 v60, v61, 7, v60")
        a("v_add_u32 v60, s76, v60")
        a("buffer_load_dword v61, v60, s[80:83], 0 offen")
    def pub_u(a):
        a("s_mul_i32 s73, s66, 565")
        a("s_lshr_b32 s73, s73, 12")
        a("s_lshr_b32 s72, s67, 1")
        a("s_mul_i32 s72, s72, 5")
        a("s_add_u32 s73, s73, s72")
        a("s_lshl_b32 s73, s73, 12")
        a(f"s_add_u32 s73, s73, {mb(MB_U)}")
        a("s_lshr_b32 s72, 0x204080, s66")
        a("s_cmp_lt_u32 s66, 32")
        a("s_cselect_b32 s72, s72, 0")
        a("s_and_b32 s72, s72, 1")
        a("s_cselect_b32 s72, -1, 0xffff")
        sync.publish(a, 73, "s72")
    k_mlp1.mlp1_body(a, "s3", dep_h, pub_u, sm=0, epi=w2_tail if W2_TAIL else None)
    a.stamp_mid(2)
    a("s_branch L_mlp2")
    a.label("L_aux")
    for n in range(-(-(576 - 64*PF1)//40) if PFW1 else 0):
        a(f"buffer_load_dword v{60+(n&1)}, v5, s[40:43], 0 offen")
        a(f"v_add_u32 v5, {40*8192}, v5")
        a(f"s_waitcnt vmcnt({PFD})")
    a.stamp_mid(1)
    a.srd(40, P_W2, S*F*2)
    a("s_lshl_b32 s68, s67, 2")
    a("s_add_u32 s68, s68, s52")
    a("s_lshr_b32 s66, s68, 5")
    a("s_and_b32 s68, s68, 31")
    a(f"s_mul_i32 s66, s66, {928*4096}")
    a("s_lshl_b32 s68, s68, 13")
    a("s_add_u32 s66, s66, s68")
    a("v_lshlrev_b32 v5, 7, v0")
    a("v_add_u32 v5, s66, v5")
    for n in range(PF2):
        a(f"buffer_load_dword v{60+(n&1)}, v5, s[40:43], 0 offen")
        a(f"v_add_u32 v5, {32*8192}, v5")
        a(f"s_waitcnt vmcnt({PFD})")
    a("s_waitcnt vmcnt(0)")
    a.stamp_mid(2)
    a(f"s_cmp_ge_u32 s3, {k_mlp2.MLP2_GRID}")
    a("s_cbranch_scc1 L_done")
    a.label("L_mlp2")
    def dep_u(a):
        a("s_mul_i32 s73, s67, 5")
        a("s_add_u32 s73, s73, s69")
        a("s_lshl_b32 s73, s73, 4")
        a("s_add_u32 s73, s73, s66")
        a("s_lshl_b32 s73, s73, 8")
        a(f"s_add_u32 s73, s73, {mb(MB_U)}")
        a("s_cmp_eq_u32 s69, 4")
        a("s_cselect_b32 s76, 14, 16")
        sync.poll(a, 73, "s76", vt=8)
    def pub_y(a):
        a("s_lshl_b32 s73, s67, 6")
        a("s_lshl_b32 s70, s66, 1")
        a("s_add_u32 s73, s73, s70")
        a("s_lshl_b32 s73, s73, 8")
        a(f"s_add_u32 s73, s73, {mb(MB_Y)}")
        def voff(a, vt):
            a(f"v_lshrrev_b32 v{vt}, 1, v0")
            a(f"v_lshlrev_b32 v{vt}, 13, v{vt}")
            a(f"v_and_b32 v{vt+1}, 1, v0")
            a(f"v_lshl_add_u32 v{vt}, v{vt+1}, 8, v{vt}")
        sync.publish(a, 73, 4, vt=8, voff=voff)
    def dep_o(a):
        a("s_lshr_b32 s73, s66, 1")
        a("s_mul_i32 s73, s73, 5")
        a("s_add_u32 s73, s73, s69")
        a("s_mul_i32 s73, s73, 6")
        a("s_lshl_b32 s70, s67, 1")
        a("s_add_u32 s73, s73, s70")
        a("s_and_b32 s70, s66, 1")
        a("s_add_u32 s73, s73, s70")
        a("s_lshl_b32 s73, s73, 8")
        a(f"s_add_u32 s73, s73, {mb(MB_O)}")
        a("s_lshl_b32 s76, s53, 1")
        a.stamp_mid(5)
        sync.spin(a, 48, "s73", "s76", 8, sleep=2)
        a.stamp_mid(6)
    k_mlp2.mlp2_body(a, "s3", sm=3, dep=dep_u, pub=pub_y, dep_o=dep_o)
    a.label("L_done")
    a.end()
    a.label("L_end")
    a("s_endpgm")

def build(stamp=False):
    a = Asm()
    a.stamp = stamp
    fin = NAME + "_kernel"
    out = HEADER
    out += (f"; @launch kernel={fin} grid=(512,1,1) block=(256,1,1) lds=81920\n" if LIST else "; @launch grid=(512,1,1) block=(256,1,1) lds=81920\n")
    out += '.amdgcn_target "amdgcn-amd-amdhsa--gfx950"\n.text\n'
    gen_main(a, fin)
    out += a.text()
    out += '.section .rodata,"a"\n'
    out += ".p2align 6\n" + descriptor(fin, 256, None)
    return out

if __name__ == "__main__":
    open("main.s", "w").write(build())
    open("stamp.s", "w").write(build(True))
    LIST = False
    open("final.s", "w").write(build())
    LIST = True
    TLBW = 12
    open(f"nc.s", "w").write(build())
    TLBW = 16
    open(f"nd.s", "w").write(build())
    TLBW = 0
    PF1 = 0; PFW1 = False; PF2 = 0; W2_TAIL = False
    k_mlp1.TNT = " nt"; k_mlp2.TNT = " sc1 nt"
    open(f"na.s", "w").write(build())
    k_mlp1.TNT = ""; k_mlp2.TNT = " sc1"; W2_TAIL = True
    open(f"nb.s", "w").write(build())
    print("wrote")
```

```python
from common import *

ATTN_GRID = 256
SKIP = False
CH = 16*KV_RS
ATTN_LDS = 2*CH + 64

VK0, VK1, VV, VDM = 1, 2, 3, 4
VST, VWR, VWC = 144, 145, 146
CONST = 2*CH + 64
Q0 = [8, 12]; Q1 = [16, 18]
K0 = [20, 24]; K1 = [28, 30]
V = [32, 40]
P = [48, 56]
Sx = [64, 80]
O = [96, 112]
TMP = 128
NV_ATTN = 144
S_KV, S_C, S_ATT, S_VM = 54, 55, 56, 58

def dma_chunk(a, sbuf, soff):
    for i in range(9):
        a(f"s_add_u32 m0, s{sbuf}, {i*4096}")
        a(f"s_add_u32 s60, s{soff}, {i*4096}")
        a(f"buffer_load_dwordx4 v{VDM}, s[48:51], s60 offen sc1 lds")

def qk(a, which, aq, kb):
    s = vr(Sx[aq], 16)
    if which == 0:
        a(f"v_mfma_f32_32x32x16_bf16 {s}, {vr(K0[kb],4)}, {vr(Q0[aq],4)}, 0")
    else:
        a(f"v_mfma_f32_32x32x8_bf16 {s}, {vr(K1[kb],2)}, {vr(Q1[aq],2)}, {s}")

def pv(a, which, aq, vb):
    o = vr(O[aq], 16)
    a(f"v_mfma_f32_32x32x16_bf16 {o}, {vr(V[vb]+4*which,4)}, {vr(P[aq]+4*which,4)}, {o}")

def read_k(a, kb, rec):
    a(f"ds_read_b128 {vr(K0[kb],4)}, v{VK0} offset:{rec*KV_RS}")
    a(f"ds_read_b32 v{K1[kb]}, v{VK1} offset:{rec*KV_RS}")

def read_v(a, vb, rec):
    for x in V_FILL(vb, rec): a(x)

def expq(a, aq, q, fill=()):
    fill = list(fill)
    for e in range(4):
        r = Sx[aq] + 4*q + e
        a(f"v_exp_f32 v{r}, v{r}")
        if fill: a(fill.pop(0))
    assert not fill
    for c in range(2):
        r = Sx[aq] + 4*q + 2*c
        a(f"v_cvt_pk_bf16_f32 v{P[aq]+2*q+c}, v{r}, v{r+1}")

def block(a, kt, aq, rec=None, do_qk=True):
    an = 1 - aq
    kq = (kt + aq) & 1
    vb = (kt - 1 + aq) & 1
    nb = (kt + 1) & 1
    f0 = []; f3 = []
    if rec is not None:
        if aq == 0:
            f0 = [f"ds_read_b128 {vr(K0[nb],4)}, v{VK0} offset:{rec*KV_RS}", f"ds_read_b32 v{K1[nb]}, v{VK1} offset:{rec*KV_RS}"]
        else:
            f0 = V_FILL(nb, rec)
    if aq == 0:
        f3 = ["s_nop 0", "s_nop 0", "s_nop 0", "s_waitcnt lgkmcnt(0)"][3:]
    if do_qk: qk(a, 0, an, kq)
    if aq == 1 and rec is not None and not SPREAD_V:
        for x in f0: a(x)
        f0 = []
    expq(a, aq, 0, f0)
    if do_qk: qk(a, 1, an, kq)
    expq(a, aq, 1)
    pv(a, 0, an, vb)
    expq(a, aq, 2)
    pv(a, 1, an, vb)
    expq(a, aq, 3, f3)

SPREAD_V = True
def V_FILL(vb, rec):
    return [f"ds_read_b128 {vr(V[vb],4)}, v{VV}",
            f"ds_read_b128 {vr(V[vb]+4,4)}, v{VV} offset:576",
            f"v_add_u32 v{VV}, v{VV}, v{VST}"]

def set_m(a, aq, m):
    t = TMP
    a(f"v_mov_b32 v{t}, v{m}")
    a("s_nop 1")
    a(f"v_permlane32_swap_b32 v{m}, v{t}")
    a("s_nop 1")
    a(f"v_max_f32 v{m}, v{m}, v{t}")
    a(f"v_sub_f32 v{m}, 0, v{m}")
    a(f"v_and_b32 v{t}, 0xffff0000, v{m}")
    a(f"v_sub_f32 v{m}, v{m}, v{t}")
    a(f"v_and_b32 v{t+1}, 0xffff0000, v{m}")
    a(f"v_sub_f32 v{m}, v{m}, v{t+1}")
    a(f"v_lshrrev_b32 v{t}, 16, v{t}")
    a(f"v_or_b32 v{t}, v{t}, v{t+1}")
    a(f"v_lshrrev_b32 v{m}, 16, v{m}")
    a(f"v_cmp_gt_u32 vcc, 32, v0")
    a("s_nop 1")
    a(f"v_cndmask_b32 v{Q1[aq]+1}, v{m}, v{t}, vcc")

def tile_max(a, aq, m, first):
    s = Sx[aq]
    if first:
        a(f"v_max3_f32 v{m}, v{s}, v{s+1}, v{s+2}")
        a(f"v_max_f32 v{m}, v{m}, v{s+3}")
        st = 4
    else:
        st = 0
    for e in range(st, 16, 2):
        a(f"v_max3_f32 v{m}, v{m}, v{s+e}, v{s+e+1}")

def attn_body(a, wgreg, dep, pub, sm=0, tsetup=None, touch=None, dep_g=None):
    a(f"s_and_b32 s61, {wgreg}, 7")
    a("s_lshl_b32 s61, s61, 2")
    a(f"s_bfe_u32 s62, {wgreg}, 0x20003")
    a("s_add_u32 s61, s61, s62")
    a(f"s_lshr_b32 s62, {wgreg}, 5")
    a("s_lshl_b32 s62, s62, 3")
    a("s_lshl_b32 s63, s52, 1")
    a("s_add_u32 s62, s62, s63")
    a(f"s_mul_i32 s{S_KV}, s61, {64*KV_RS}")
    a(f"s_add_u32 s{S_KV}, s{S_KV}, {KV_OFF}")
    a("s_lshl_b32 s64, s52, 10")
    a(f"s_add_u32 s65, s64, {CH}")
    a(f"v_lshlrev_b32 v5, 4, v0")
    a(f"v_add_u32 v{VDM}, s64, v5")
    a("s_lshl_b32 s63, s61, 6")
    a("s_add_u32 s63, s63, s62")
    a(f"s_mul_i32 s63, s63, {QR_RS}")
    a(f"s_add_u32 s63, s63, {QR_OFF}")
    a("v_and_b32 v6, 31, v0")
    a("v_lshlrev_b32 v7, 2, v6")
    if tsetup: tsetup(a)
    dep(a)
    for aq in range(2):
        a(f"buffer_load_dwordx4 {vr(Q0[aq],4)}, v5, s[48:51], s63 offen offset:{aq*QR_RS} sc1")
        a(f"buffer_load_dword v{Q1[aq]}, v7, s[48:51], s63 offen offset:{aq*QR_RS + 1024} sc1")
    a(f"s_mov_b32 s{S_ATT}, 0")
    for b in range(2):
        a(f"v_mov_b32 v{K1[b]+1}, 0x3f803f80")
        a(f"v_mov_b32 v{Q1[b]+1}, 0")
    for e in range(8):
        a(f"v_mov_b32 v{V[1]+e}, 0")
    a(f"v_cmp_gt_u32 vcc, 4, v0")
    a(f"v_mov_b32 v{TMP}, 0x3f803f80")
    a(f"v_lshlrev_b32 v{TMP+1}, 2, v0")
    a(f"v_cndmask_b32 v{TMP}, 0, v{TMP}, vcc")
    a(f"v_add_u32 v{TMP+1}, {CONST}, v{TMP+1}")
    a("s_mov_b64 exec, 0xff")
    a(f"ds_write_b32 v{TMP+1}, v{TMP}")
    a(f"ds_write_b32 v{TMP+1}, v{TMP} offset:576")
    a("s_mov_b64 exec, -1")
    a(f"v_cmp_gt_u32 s[{S_VM}:{S_VM+1}], 18, v6")
    a(f"v_mov_b32 v{VST}, {KV_RS}")
    a(f"v_mov_b32 v{VWC}, {(-2*CH) & 0xffffffff}")
    a(f"v_cndmask_b32 v{VST}, 0, v{VST}, s[{S_VM}:{S_VM+1}]")
    a(f"v_cndmask_b32 v{VWC}, 0, v{VWC}, s[{S_VM}:{S_VM+1}]")
    a.label("L_attn_start")
    dma_chunk(a, 64, S_KV)
    a(f"s_add_u32 s66, s{S_KV}, {CH}")
    dma_chunk(a, 65, 66)
    a(f"s_add_u32 s66, s66, {CH}")
    a(f"s_mov_b32 s67, s64")
    a(f"s_mov_b32 s68, s65")
    a(f"v_mov_b32 v{VK0}, v5")
    a(f"v_add_u32 v{VK1}, 1024, v7")
    a(f"v_lshrrev_b32 v{VV}, 5, v0")
    a(f"v_mul_u32_u24 v{VV}, 288, v{VV}")
    a(f"v_lshl_add_u32 v{VV}, v6, 4, v{VV}")
    a(f"v_add_u32 v{VV}, 1152, v{VV}")
    a(f"v_and_b32 v{TMP}, 27, v6")
    a(f"v_cmp_eq_u32 vcc, 18, v{TMP}")
    a(f"v_mov_b32 v{TMP}, {CONST + 16}")
    a(f"v_mov_b32 v{TMP+1}, {CONST}")
    a(f"v_cndmask_b32 v{TMP}, v{TMP}, v{TMP+1}, vcc")
    a(f"v_cndmask_b32 v{VV}, v{TMP}, v{VV}, s[{S_VM}:{S_VM+1}]")
    a(f"v_mov_b32 v{VWR}, 0")
    for aq in range(2):
        for e in range(16):
            a(f"v_mov_b32 v{O[aq]+e}, 0")
    for e in range(8):
        a(f"v_mov_b32 v{P[1]+e}, 0")
    a("s_waitcnt vmcnt(16) lgkmcnt(0)")
    a("s_barrier")
    if touch: touch(a)
    read_k(a, 0, 0)
    read_v(a, 0, 0)
    a(f"v_cmp_gt_u32 vcc, 32, v0")
    a("s_nop 1")
    for aq in range(2):
        a(f"v_cndmask_b32 v{Q1[aq]}, 0, v{Q1[aq]}, vcc")
    a("s_waitcnt lgkmcnt(0)")
    a(f"s_cmp_lg_u32 s{S_ATT}, 0")
    a("s_cbranch_scc1 L_attn_havemax")
    for aq in range(2):
        qk(a, 0, aq, 0); qk(a, 1, aq, 0)
    a("s_nop 15")
    for aq in range(2):
        tile_max(a, aq, TMP+2+aq, True)
    for aq in range(2):
        set_m(a, aq, TMP+2+aq)
    a("s_nop 1")
    a.label("L_attn_havemax")
    qk(a, 0, 0, 0); qk(a, 1, 0, 0)
    a(f"s_mov_b32 s{S_C}, 0")
    a.stamp_mid(sm)
    a("s_setprio 1")
    a("s_nop 15")
    a("s_branch L_attn_out" if SKIP else "s_branch L_attn_entry")
    a.raw(".p2align 6")
    a.label("L_attn_loop")
    a("s_waitcnt vmcnt(0) lgkmcnt(0)")
    a("s_barrier")
    a(f"v_xor_b32 v{VK0}, {CH}, v{VK0}")
    a(f"v_xor_b32 v{VK1}, {CH}, v{VK1}")
    a(f"v_add_u32 v{VV}, v{VV}, v{VWR}")
    a(f"v_xor_b32 v{VWR}, v{VWR}, v{VWC}")
    a(f"s_cmp_eq_u32 s{S_C}, 3")
    a("s_cbranch_scc1 L_attn_nodma")
    dma_chunk(a, 67, 66)
    a(f"s_add_u32 s66, s66, {CH}")
    a("s_mov_b32 s69, s67")
    a("s_mov_b32 s67, s68")
    a("s_mov_b32 s68, s69")
    if touch: touch(a)
    a.label("L_attn_nodma")
    block(a, -1, 0, 0); block(a, -1, 1, 0)
    a.label("L_attn_entry")
    for kt in range(15):
        if kt == 2:
            a("s_waitcnt vmcnt(9)")
            a("s_barrier")
        block(a, kt, 0, kt+1); block(a, kt, 1, kt+1)
    a(f"s_add_u32 s{S_C}, s{S_C}, 1")
    a(f"s_cmp_lt_u32 s{S_C}, 4")
    a("s_cbranch_scc1 L_attn_loop")
    dep_g(a)
    a("s_lshl_b32 s69, s62, 7")
    a(f"s_add_u32 s69, s69, {G_OFF}")
    a(f"buffer_load_dword v{TMP+8}, v7, s[48:51], s69 offen sc1")
    a(f"buffer_load_dword v{TMP+9}, v7, s[48:51], s69 offen offset:128 sc1")
    block(a, 15, 0); block(a, 15, 1, do_qk=False)
    a("s_nop 1")
    pv(a, 0, 1, 1); pv(a, 1, 1, 1)
    a("s_nop 15")
    a.stamp_mid(sm+1)
    a("s_setprio 3")
    a(f"s_cmp_lg_u32 s{S_ATT}, 0")
    a("s_cbranch_scc1 L_attn_out")
    a(f"v_max_f32 v{TMP}, v{O[0]+10}, v{O[1]+10}")
    for aq in range(2):
        for e in range(11):
            a(f"v_fma_f32 v{TMP}, v{O[aq]+e}, 0, v{TMP}")
    a(f"v_mov_b32 v{TMP+1}, 0x5f800000")
    a(f"v_cmp_nlt_f32 vcc, v{TMP}, v{TMP+1}")
    a("s_cmp_lg_u64 vcc, 0")
    a("s_cselect_b32 s69, 1, 0")
    a(f"v_mov_b32 v{TMP}, s69")
    a(f"s_lshl_b32 s69, s52, 2")
    a(f"s_add_u32 s69, s69, {2*CH}")
    a(f"v_mov_b32 v{TMP+1}, s69")
    a(f"ds_write_b32 v{TMP+1}, v{TMP}")
    a(f"v_mov_b32 v{TMP+1}, {2*CH}")
    a("s_waitcnt lgkmcnt(0)")
    a("s_barrier")
    a(f"ds_read_b128 {vr(TMP+4,4)}, v{TMP+1}")
    a("s_waitcnt lgkmcnt(0)")
    a(f"v_or_b32 v{TMP}, v{TMP+4}, v{TMP+5}")
    a(f"v_or3_b32 v{TMP}, v{TMP}, v{TMP+6}, v{TMP+7}")
    a("s_nop 0")
    a(f"v_readfirstlane_b32 s69, v{TMP}")
    a("s_nop 3")
    a("s_cmp_eq_u32 s69, 0")
    a("s_cbranch_scc1 L_attn_out")
    a(f"s_mov_b32 s{S_ATT}, 1")
    for aq in range(2):
        a(f"v_mov_b32 v{Q1[aq]+1}, 0")
        a(f"v_mov_b32 v{TMP+2+aq}, 0xff800000")
    a(f"s_mov_b32 s66, s{S_KV}")
    a(f"s_mov_b32 s{S_C}, 0")
    a.label("L_attn_mx_chunk")
    dma_chunk(a, 64, 66)
    a(f"s_add_u32 s66, s66, {CH}")
    a(f"v_mov_b32 v{VK0}, v5")
    a(f"v_add_u32 v{VK1}, 1024, v7")
    a("s_mov_b32 s69, 0")
    a("s_waitcnt vmcnt(0)")
    a("s_barrier")
    a.label("L_attn_mx_tile")
    read_k(a, 0, 0)
    a(f"v_add_u32 v{VK0}, {KV_RS}, v{VK0}")
    a(f"v_add_u32 v{VK1}, {KV_RS}, v{VK1}")
    a("s_waitcnt lgkmcnt(0)")
    for aq in range(2):
        qk(a, 0, aq, 0); qk(a, 1, aq, 0)
    a("s_nop 15")
    for aq in range(2):
        tile_max(a, aq, TMP+2+aq, False)
    a("s_add_u32 s69, s69, 1")
    a("s_cmp_lt_u32 s69, 16")
    a("s_cbranch_scc1 L_attn_mx_tile")
    a("s_barrier")
    a(f"s_add_u32 s{S_C}, s{S_C}, 1")
    a(f"s_cmp_lt_u32 s{S_C}, 4")
    a("s_cbranch_scc1 L_attn_mx_chunk")
    for aq in range(2):
        set_m(a, aq, TMP+2+aq)
    a("s_branch L_attn_start")
    a.label("L_attn_out")
    a("s_barrier")
    a(f"v_lshrrev_b32 v{TMP}, 5, v0")
    a(f"v_lshlrev_b32 v{TMP}, 11, v{TMP}")
    a(f"v_lshl_add_u32 v{TMP}, v6, 1, v{TMP}")
    a("s_lshl_b32 s69, s52, 7")
    a(f"v_add_u32 v{TMP}, s69, v{TMP}")
    a("s_waitcnt vmcnt(0)")
    for aq in range(2):
        o = O[aq]
        a(f"v_rcp_f32 v{o+10}, v{o+10}")
        a("s_nop 0")
        a(f"v_mul_f32 v{o+10}, v{o+10}, v{TMP+8+aq}")
        for e in range(10):
            a(f"v_mul_f32 v{o+e}, v{o+e}, v{o+10}")
        for e in range(5):
            a(f"v_cvt_pk_bf16_f32 v{o+e}, v{o+2*e}, v{o+2*e+1}")
        for p in range(5):
            e = 2*p
            dim = 8*(e >> 2) + (e & 3)
            if p == 4: a("s_mov_b32 exec_hi, 0")
            a(f"ds_write_b16 v{TMP}, v{o+p} offset:{dim*512 + aq*64}")
            a(f"ds_write_b16_d16_hi v{TMP}, v{o+p} offset:{(dim+1)*512 + aq*64}")
            if p == 4: a("s_mov_b64 exec, -1")
    a(f"v_lshrrev_b32 v{TMP+1}, 5, v0")
    a(f"v_lshlrev_b32 v{TMP+1}, 12, v{TMP+1}")
    a(f"v_lshl_add_u32 v{TMP+1}, v6, 4, v{TMP+1}")
    a(f"s_mul_i32 s69, s61, {18*4096}")
    a(f"s_lshr_b32 s70, {wgreg}, 5")
    a("s_lshl_b32 s70, s70, 9")
    a("s_add_u32 s69, s69, s70")
    a("s_lshl_b32 s70, s52, 13")
    a("s_add_u32 s69, s69, s70")
    a(f"s_add_u32 s69, s69, {O_OFF}")
    a("s_add_u32 s70, s69, 32768")
    a("s_add_u32 s71, s69, 65536")
    a("s_waitcnt lgkmcnt(0)")
    a("s_barrier")
    a(f"ds_read_b128 {vr(O[0],4)}, v{VDM}")
    a(f"ds_read_b128 {vr(O[0]+4,4)}, v{VDM} offset:4096")
    a(f"ds_read_b128 {vr(O[0]+8,4)}, v{VDM} offset:8192")
    a("s_waitcnt lgkmcnt(2)")
    a(f"buffer_store_dwordx4 {vr(O[0],4)}, v{TMP+1}, s[48:51], s69 offen sc1")
    a("s_waitcnt lgkmcnt(1)")
    a(f"buffer_store_dwordx4 {vr(O[0]+4,4)}, v{TMP+1}, s[48:51], s70 offen sc1")
    a("s_cmp_lg_u32 s52, 0")
    a("s_cbranch_scc1 L_attn_st")
    a("s_waitcnt lgkmcnt(0)")
    a(f"buffer_store_dwordx4 {vr(O[0]+8,4)}, v{TMP+1}, s[48:51], s71 offen sc1")
    a.label("L_attn_st")
    pub(a)
```

```python
from common import *

MLP2_GRID = 240
for n in range(30):
    assert (n*86) >> 8 == n//3

VFA, VTA, VFB, VTB_, VDT, VDF = 1, 2, 3, 4, 5, 6
FR = [8, 28]
ACC = 64
def acc(i, n): return ACC + 16*(2*i + n)
S_T, S_F, S_WB, S_RO, S_CNT, S_LEFT = 54, 55, 56, 57, 58, 59
STAGE = 20480
YIELD = 1
M2ST = False
TNT = ' sc1'

P0 = (0, 4, 8, 11, 14)
PC = (4, 4, 3, 3, 4)
def mlp2_body(a, wgreg, sm=0, dep=None, pub=None, dep_o=None):
    a.srd(40, P_W2, S*F*2)
    a.srd(44, P_WS, WS_SIZE)
    a(f"s_lshr_b32 s67, {wgreg}, 3")
    a("s_mul_i32 s66, s67, 86")
    a("s_lshr_b32 s66, s66, 8")
    a("s_mul_i32 s68, s66, 3")
    a("s_sub_u32 s67, s67, s68")
    a(f"s_and_b32 s68, {wgreg}, 7")
    a("s_mul_i32 s68, s68, 10")
    a("s_add_u32 s66, s66, s68")
    a("s_lshr_b32 s69, s66, 4")
    a("s_and_b32 s66, s66, 15")
    a("s_cmp_eq_u32 s69, 4")
    a(f"s_cselect_b32 s{S_CNT}, 28, 29")
    a("s_lshl_b32 s70, s69, 2")
    a(f"s_lshr_b32 s53, {sum(c << (4*i) for i, c in enumerate(PC))}, s70")
    a("s_and_b32 s53, s53, 15")
    a(f"s_lshr_b32 s65, {sum(c << (4*i) for i, c in enumerate(P0))}, s70")
    a("s_and_b32 s65, s65, 15")
    a(f"s_add_u32 s{S_LEFT}, s{S_CNT}, s53")
    a(f"s_mul_i32 s{S_T}, s69, {928*4096}")
    a("s_lshl_b32 s70, s66, 8")
    a(f"s_add_u32 s{S_T}, s{S_T}, s70")
    a("s_lshl_b32 s70, s52, 15")
    a(f"s_add_u32 s{S_T}, s{S_T}, s70")
    a(f"s_mul_i32 s{S_F}, s69, {58*18*1024}")
    a("s_mul_i32 s70, s67, 6144")
    a(f"s_add_u32 s{S_F}, s{S_F}, s70")
    a("s_lshr_b32 s70, s52, 1")
    a(f"s_mul_i32 s70, s70, {18*1024}")
    a(f"s_add_u32 s{S_F}, s{S_F}, s70")
    a("s_and_b32 s71, s52, 1")
    a("s_mul_i32 s70, s71, 3072")
    a(f"s_add_u32 s{S_F}, s{S_F}, s70")
    a(f"s_add_u32 s{S_F}, s{S_F}, {U_OFF}")
    a("s_lshl_b32 s60, s52, 11")
    a("s_mul_i32 s61, s52, 3072")
    a("s_add_u32 s61, s61, 8192")
    a(f"s_mov_b32 s{S_WB}, 0")
    a(f"s_mov_b32 s{S_RO}, 0")
    a(f"v_lshrrev_b32 v8, 4, v0")
    a(f"v_and_b32 v9, 3, v0")
    a(f"v_lshlrev_b32 v9, 4, v9")
    a(f"v_lshl_add_u32 v8, v8, 6, v9")
    a(f"v_bfe_u32 v9, v0, 2, 2")
    a(f"v_lshl_add_u32 v{VDT}, v9, 12, v8")
    a(f"v_lshlrev_b32 v{VDF}, 4, v0")
    a(f"v_lshrrev_b32 v8, 5, v0")
    a(f"v_lshlrev_b32 v8, 10, v8")
    a(f"v_lshl_add_u32 v8, v9, 6, v8")
    a(f"v_bfe_u32 v9, v0, 4, 1")
    a(f"v_lshl_add_u32 v8, v9, 5, v8")
    a(f"v_and_b32 v9, 3, v0")
    a(f"v_lshl_add_u32 v8, v9, 3, v8")
    a("s_lshr_b32 s72, s52, 1")
    a("s_lshl_b32 s70, s72, 9")
    a(f"v_add_u32 v{VTB_}, s70, v8")
    a("s_mul_i32 s70, s71, 3072")
    a("s_add_u32 s70, s70, 8192")
    a(f"v_add_u32 v{VFB}, s70, v{VDF}")
    a(f"v_mov_b32 v{VTA}, v{VTB_}")
    a(f"v_mov_b32 v{VFA}, v{VFB}")

    def dma_t(i, wb, st):
        a(f"s_add_u32 m0, s{wb}, {i*1024}")
        if i:
            a(f"s_add_u32 s63, s{st}, {4*4096}")
            a(f"buffer_load_dwordx4 v{VDT}, s[40:43], s63 offen{TNT} lds")
        else:
            a("s_nop 0")
            a(f"buffer_load_dwordx4 v{VDT}, s[40:43], s{st} offen{TNT} lds")
    def dma_f(i, wb, sf):
        if i == 0:
            a(f"s_mov_b32 m0, s{wb}")
            a("s_nop 0")
        a(f"buffer_load_dwordx4 v{VDF}, s[44:47], s{sf} offen offset:{i*1024} sc1 lds")
    for st in range(4):
        a(f"s_add_u32 s62, s60, {st*STAGE}")
        dma_t(0, 62, S_T); dma_t(1, 62, S_T)
        a(f"s_add_u32 s{S_T}, s{S_T}, {32*4096}")
    if dep: dep(a)
    for st in range(3):
        a(f"s_add_u32 s64, s61, {st*STAGE}")
        for i in range(3): dma_f(i, 64, S_F)
        a(f"s_add_u32 s{S_F}, s{S_F}, {2*18*1024}")
    a(f"s_add_u32 s64, s61, {3*STAGE}")
    a(f"s_sub_u32 s{S_LEFT}, s{S_LEFT}, 4")
    def reads(sn, step):
        b = FR[sn]
        Fr = [((sn, "F", i), f"ds_read_b128 {vr(b+4*i,4)}, v{VFA} offset:{step*6144 + i*1024}") for i in range(3)]
        T = [((sn, "T", n), f"ds_read_b64_tr_b16 {vr(b+12+4*n+2*sec,2)}, v{VTA} offset:{step*4096 + sec*2048 + n*256}") for n in range(2) for sec in range(2)]
        return [Fr[0], T[0], T[1], T[2], T[3], Fr[1], Fr[2]]
    def mfma(ls, sn, k, first):
        b = FR[sn]
        i, n = k >> 1, k & 1
        ls.need([(sn, "F", i), (sn, "T", n)])
        if YIELD > 1:
            if k % YIELD == 0: a("s_setprio 0")
            if k % YIELD == 1: a("s_setprio 2")
        c = vr(acc(i, n), 16)
        a(f"v_mfma_f32_32x32x16_bf16 {c}, {vr(b+4*i,4)}, {vr(b+12+4*n,4)}, {'0' if first else c}")
    def body(first, vm, sw=None):
        ls = LdsSched(a, [r[0] for r in reads(0, 0)])
        r = reads(1, 1)
        cut = [0, 4, 7, 7, 7, 7, 7]
        for k in range(6):
            mfma(ls, 0, k, first)
            for x in r[cut[k]:cut[k+1]]: ls.read(*x)
            if k == 0: dma_f(0, 64, S_F)
            if k == 2: dma_f(1, 64, S_F)
            if k == 3:
                a(f"s_add_u32 s{S_RO}, s{S_RO}, {STAGE}")
                a(f"s_cmp_eq_u32 s{S_RO}, {4*STAGE}")
                a(f"s_cselect_b32 s{S_RO}, 0, s{S_RO}")
                a(f"v_add_u32 v{VFA}, s{S_RO}, v{VFB}")
                a(f"v_add_u32 v{VTA}, s{S_RO}, v{VTB_}")
            if k == 4:
                dma_f(2, 64, S_F)
                a(f"s_add_u32 s{S_F}, s{S_F}, {2*18*1024}")
            if k == 5:
                if sw:
                    a(f"s_cmp_eq_u32 s{S_LEFT}, s53")
                    a(f"s_cbranch_scc1 {sw[0]}")
                    a.label(sw[1])
                a(f"s_cmp_gt_i32 s{S_LEFT}, 0")
                a(f"s_cselect_b32 s42, s42, 0")
                a(f"s_cselect_b32 s46, s46, 0")
                a(f"s_add_u32 s62, s60, s{S_WB}")
                a(f"s_add_u32 s64, s61, s{S_WB}")
        mfma(ls, 1, 0, False)
        ls.drain(f"vmcnt({vm}) ")
        a("s_barrier")
        r = reads(0, 0)
        for x in r[0:3]: ls.read(*x)
        mfma(ls, 1, 1, False)
        for x in r[3:7]: ls.read(*x)
        mfma(ls, 1, 2, False)
        dma_t(0, 62, S_T)
        mfma(ls, 1, 3, False)
        a(f"s_sub_u32 s{S_LEFT}, s{S_LEFT}, 1")
        a(f"s_mov_b32 s{S_WB}, s{S_RO}")
        mfma(ls, 1, 4, False)
        dma_t(1, 62, S_T)
        a(f"s_add_u32 s{S_T}, s{S_T}, {32*4096}")
        mfma(ls, 1, 5, False)
    a("s_waitcnt vmcnt(6)")
    a("s_barrier")
    for r in reads(0, 0): a(r[1])
    a(f"s_setprio {0 if YIELD else 2}")
    a.stamp_mid(sm)
    body(True, 6)
    body(False, 8)
    a(f"s_sub_u32 s{S_CNT}, s{S_CNT}, 2")
    L = a.newlabel("mlp2"); Lsw = a.newlabel("sw"); Lrt = a.newlabel("rt"); Lgo = a.newlabel("go")
    a(f"s_branch {L}")
    a.label(Lsw)
    dep_o(a, False)
    a.srd(40, P_WS, WS_SIZE)
    a("s_cmp_lg_u32 s79, 0")
    a("s_cselect_b32 s42, s42, 0")
    a(f"s_lshl_b32 s{S_T}, s65, 17")
    a("s_lshl_b32 s70, s66, 8")
    a(f"s_add_u32 s{S_T}, s{S_T}, s70")
    a("s_lshl_b32 s70, s52, 15")
    a(f"s_add_u32 s{S_T}, s{S_T}, s70")
    a(f"s_add_u32 s{S_T}, s{S_T}, {O_OFF}")
    a(f"s_mov_b32 s78, s{S_T}")
    a(f"s_mul_i32 s{S_F}, s65, {2*18*1024}")
    a("s_mul_i32 s70, s67, 6144")
    a(f"s_add_u32 s{S_F}, s{S_F}, s70")
    a(f"s_mul_i32 s70, s72, {18*1024}")
    a(f"s_add_u32 s{S_F}, s{S_F}, s70")
    a("s_mul_i32 s70, s71, 3072")
    a(f"s_add_u32 s{S_F}, s{S_F}, s70")
    a(f"s_add_u32 s{S_F}, s{S_F}, {WOF_OFF}")
    a("s_lshl_b32 s70, s66, 1")
    a("s_add_u32 s70, s70, s72")
    a("s_lshl_b32 s70, s70, 6")
    a("v_and_b32 v48, 31, v0")
    a("v_add_u32 v48, s70, v48")
    a("v_lshlrev_b32 v49, 2, v48")
    a("v_lshlrev_b32 v48, 1, v48")
    a(f"s_mov_b32 s70, {G_OFF}")
    a.srd(80, P_B2, S*2)
    a("s_cmp_eq_u32 s69, 0")
    a("s_cselect_b32 s82, s82, 0")
    a("buffer_load_dword v50, v49, s[48:51], s70 offen sc1")
    a("buffer_load_dword v51, v49, s[48:51], s70 offen offset:128 sc1")
    a("buffer_load_ushort v52, v48, s[80:83], 0 offen")
    a("buffer_load_ushort v53, v48, s[80:83], 0 offen offset:64")
    a(f"s_branch {Lrt}")
    a.raw(".p2align 6")
    a.label(L)
    body(False, 10, (Lsw, Lrt))
    a(f"s_sub_u32 s{S_CNT}, s{S_CNT}, 1")
    a(f"s_cmp_lg_u32 s{S_CNT}, 0")
    a(f"s_cbranch_scc1 {L}")
    a.stamp_mid(7)
    a("s_setprio 2")
    a("s_cmp_lg_u32 s79, 0")
    a(f"s_cbranch_scc1 {Lgo}")
    dep_o(a, True)
    a.srd(40, P_WS, WS_SIZE)
    a(f"s_mov_b32 s73, s{S_RO}")
    for j in range(4):
        if j == 3:
            a("s_cmp_lt_u32 s53, 4")
            a("s_cselect_b32 s42, 0, s42")
        a("s_add_u32 s62, s60, s73")
        dma_t(0, 62, 78); dma_t(1, 62, 78)
        if j < 3:
            a(f"s_add_u32 s78, s78, {32*4096}")
            a(f"s_add_u32 s73, s73, {STAGE}")
            a(f"s_cmp_eq_u32 s73, {4*STAGE}")
            a("s_cselect_b32 s73, 0, s73")
    a("s_mov_b32 s42, 0")
    a.label(Lgo)
    for n in range(2):
        a(f"v_sub_f32 v{50+n}, 1.0, v{50+n}")
        a(f"v_lshlrev_b32 v{52+n}, 16, v{52+n}")
        a(f"v_mul_f32 v{52+n}, v{52+n}, v{50+n}")
    a("s_nop 7")
    for i in range(3):
        for n in range(2):
            for e in range(16):
                r = acc(i, n) + e
                a(f"v_fma_f32 v{r}, v{r}, v{50+n}, v{52+n}")
    a(f"s_mov_b32 s{S_CNT}, s53")
    a("s_waitcnt vmcnt(0) lgkmcnt(0)")
    a("s_barrier")
    for r in reads(0, 0): a(r[1])
    L2 = a.newlabel("mlp2p")
    a.label(L2)
    body(False, 10)
    a(f"s_sub_u32 s{S_CNT}, s{S_CNT}, 1")
    a(f"s_cmp_lg_u32 s{S_CNT}, 0")
    a(f"s_cbranch_scc1 {L2}")
    a("s_setprio 2")
    a.stamp_mid(sm+1)
    a(f"s_mul_i32 s73, s69, {YPB_SZ}")
    a("s_lshl_b32 s70, s67, 1")
    a("s_add_u32 s70, s70, s71")
    a(f"s_mul_i32 s70, s70, {3*64*2048}")
    a("s_add_u32 s73, s73, s70")
    a("s_lshl_b32 s70, s66, 1")
    a("s_add_u32 s70, s70, s72")
    a("s_lshl_b32 s70, s70, 12")
    a("s_add_u32 s73, s73, s70")
    a(f"s_add_u32 s73, s73, {YP_OFF}")
    a("s_nop 7")
    for i in range(3):
        for n in range(2):
            b = acc(i, n)
            for e in range(8):
                a(f"v_cvt_pk_bf16_f32 v{b+e}, v{b+2*e}, v{b+2*e+1}")
            for hf in range(2):
                a(f"buffer_store_dwordx4 {vr(b+4*hf,4)}, v{VDF}, s[48:51], s73 offen offset:{n*2048+hf*1024}{' sc1' if pub else ''}")
        if i < 2:
            a(f"s_add_u32 s73, s73, {64*2048}")
    if pub: pub(a)
```

```python
from common import *

MB_H, MB_QKV, MB_U, MB_O, MB_Y, MB_N = 0, 32, 128, 384, 640, 896
MB_G = 832
def mb(i): return CNT_OFF + 256*i
SPIN_MAX = 0x40000

def wave_setup(a):
    a("v_lshrrev_b32 v1, 6, v0")
    a("v_and_b32 v0, 63, v0")
    a("s_nop 0")
    a("v_readfirstlane_b32 s52, v1")
    a("s_waitcnt lgkmcnt(0)")

def spin(a, srd, soff, target, vt, sleep=8):
    L = a.newlabel("poll"); Ld = a.newlabel("polld")
    a("s_mov_b32 s74, 0")
    a.label(L)
    a(f"s_buffer_load_dword s75, s[{srd}:{srd+3}], {soff} glc")
    a("s_add_u32 s74, s74, 1")
    a("s_waitcnt lgkmcnt(0)")
    a(f"s_cmp_ge_u32 s75, {target}")
    a(f"s_cbranch_scc1 {Ld}")
    a(f"s_sleep {sleep}")
    a(f"s_cmp_lt_u32 s74, {SPIN_MAX}")
    a(f"s_cbranch_scc1 {L}")
    a.label(Ld)

N_LATE = 24
def spin_init(a, vt, late=False):
    L = a.newlabel("ini"); Lr = a.newlabel("inir")
    off, tgt = (128, N_LATE) if late else (0, 1)
    a(f"s_buffer_load_dword s75, s[84:87], {off}")
    a("s_waitcnt lgkmcnt(0)")
    a(f"s_cmp_ge_u32 s75, {tgt}")
    a(f"s_cbranch_scc1 {L}")
    a(f"v_mov_b32 v{vt}, 0")
    a("s_mov_b32 s74, 0")
    a.label(Lr)
    a("s_sleep 6")
    a("s_mov_b64 exec, 1")
    a(f"buffer_load_dword v{vt+1}, v{vt}, s[84:87], 0 offen offset:{off} sc1")
    a("s_mov_b64 exec, -1")
    a("s_waitcnt vmcnt(0)")
    a(f"v_readfirstlane_b32 s75, v{vt+1}")
    a("s_add_u32 s74, s74, 1")
    a(f"s_cmp_ge_u32 s75, {tgt}")
    a(f"s_cbranch_scc1 {L}")
    a(f"s_cmp_lt_u32 s74, {SPIN_MAX}")
    a(f"s_cbranch_scc1 {Lr}")
    a.label(L)

def poll(a, sidx, target, vt=5, init=False, sleep=8):
    Ld = a.newlabel("pw")
    a("s_cmp_lg_u32 s52, 0")
    a(f"s_cbranch_scc1 {Ld}")
    if init: spin_init(a, vt, init == 'late')
    if sidx is not None:
        spin(a, 48, f"s{sidx}", target, vt, sleep=sleep)
    a.label(Ld)
    a("s_barrier")

def publish(a, sidx, nrep, vt=5, init=False, voff=None, ninstr=1):
    L = a.newlabel("pub")
    if init:
        L0 = a.newlabel("pub")
        a("s_cmp_lg_u32 s52, 0")
        a(f"s_cbranch_scc1 {L0}")
        spin_init(a, vt, init == 'late')
        a.label(L0)
    a("s_waitcnt vmcnt(0)")
    a("s_barrier")
    a("s_cmp_lg_u32 s52, 0")
    a(f"s_cbranch_scc1 {L}")
    if voff: voff(a, vt)
    else: a(f"v_lshlrev_b32 v{vt}, 8, v0")
    a(f"v_mov_b32 v{vt+1}, 1")
    if isinstance(nrep, str):
        a(f"s_mov_b32 exec_lo, {nrep}")
        a("s_mov_b32 exec_hi, 0")
    elif nrep <= 32:
        a(f"s_mov_b32 exec_lo, {((1 << nrep) - 1) & 0xffffffff}")
        a("s_mov_b32 exec_hi, 0")
    for i in range(ninstr):
        a(f"buffer_atomic_add v{vt+1}, v{vt}, s[48:51], s{sidx} offen sc1")
        if i + 1 < ninstr: a(f"s_add_u32 s{sidx}, s{sidx}, {64*256}")
    a("s_mov_b64 exec, -1")
    a.label(L)

def init_mailboxes(a, jreg):
    a("v_lshrrev_b32 v5, 3, v0")
    a("v_and_b32 v6, 7, v0")
    a("v_lshlrev_b32 v6, 4, v6")
    a("v_lshl_add_u32 v5, v5, 8, v6")
    for i in range(4): a(f"v_mov_b32 v{8+i}, 0")
    Le = a.newlabel("inie"); Lj = a.newlabel("inij")
    a(f"s_cmp_eq_u32 {jreg}, {N_LATE}")
    a(f"s_cbranch_scc1 {Le}")
    a(f"s_lshl_b32 s72, {jreg}, 2")
    a("s_add_u32 s72, s72, s52")
    a("s_lshl_b32 s72, s72, 11")
    a(f"s_add_u32 s72, s72, {mb(128)}")
    a("buffer_store_dwordx4 v[8:11], v5, s[48:51], s72 offen sc1")
    a("s_movk_i32 s73, 128")
    a(f"s_branch {Lj}")
    a.label(Le)
    a("s_mul_i32 s72, s52, 6144")
    a(f"s_add_u32 s72, s72, {mb(0)}")
    a("buffer_store_dwordx4 v[8:11], v5, s[48:51], s72 offen sc1")
    a("buffer_store_dwordx4 v[8:11], v5, s[48:51], s72 offen offset:2048 sc1")
    a("s_add_u32 s72, s72, 4096")
    a("buffer_store_dwordx4 v[8:11], v5, s[48:51], s72 offen sc1")
    a("s_mov_b32 s73, 0")
    a.label(Lj)
    a("buffer_load_dword v12, v8, s[84:87], 0 offen offset:64 sc1")
    a("s_waitcnt vmcnt(0)")
    a("s_barrier")
    L = a.newlabel("ini")
    a("s_cmp_lg_u32 s52, 0")
    a(f"s_cbranch_scc1 {L}")
    a("v_mov_b32 v6, 1")
    a("s_mov_b64 exec, 1")
    a("buffer_atomic_add v6, v8, s[84:87], s73 offen sc1")
    a("s_mov_b64 exec, -1")
    a.label(L)
```

```python
import sys
from common import *
import sync, k_front, k_mlp1, k_mlp2, k_attn, k_final
from sync import mb, MB_U, MB_H, MB_QKV, MB_O, MB_Y, MB_G

HEADER = open("cdna_kernels/" + NAME + ".s.ref").read().split("; Override launch geometry")[0]
N_WO = 18
W2_TOUCH = False
FRONT_ONLY = False
PARTNER = True
A_EXIT = False
PF1 = 0
PF_AFTER_H = True
TLBW = 0
PFW1 = True
XW = True
LIST = True
NO_FINAL = False
PFD = 1
LN_WAIT = True
PF2 = 15
EARLY = 1
EARLY_FL = ''
PROMOTE = False
WAIT_QKV = True
HINT_AT = 2
SLP_HINT = 4
SLP_FIN = 4
W2_TAIL = False
AUX_G0 = 16
AUX_NT = ''

def gen_main(a, name):
    a.kernel_begin(name)
    a("s_cmp_ge_u32 s2, 512")
    a("s_cbranch_scc1 L_end")
    a.load_kernargs()
    sync.wave_setup(a)
    a.srd(48, P_WS, WS_SIZE)
    a.srd(84, P_DBG, 256)
    a("s_cmp_ge_u32 s2, 256")
    a("s_cbranch_scc1 L_slotB")
    a("s_setprio 3")
    a("s_cmp_ge_u32 s2, 192")
    a("s_cbranch_scc1 L_ln")
    def pub_qkv(a):
        a("s_and_b32 s72, s56, 3")
        a("s_lshl_b32 s72, s72, 12")
        a(f"s_add_u32 s72, s72, {mb(MB_QKV)}")
        sync.publish(a, 72, 16, init=True)
    k_front.qkv_body(a, "s2", pub_qkv)
    a("s_branch L_attn")
    a.label("L_ln")
    a("s_sub_u32 s3, s2, 192")
    def pub_h(a):
        a("s_lshr_b32 s72, s58, 4")
        a("s_lshl_b32 s72, s72, 11")
        a(f"s_add_u32 s72, s72, {mb(MB_H)}")
        sync.publish(a, 72, 8, init=True)
    k_front.ln_body(a, "s3", pub_h)
    a.stamp_mid(6)
    k_front.gate_own(a)
    a(f"s_cmp_ge_u32 s3, {N_WO}")
    a("s_cbranch_scc1 L_nowo")
    k_front.wo_body(a, "s3")
    a.label("L_nowo")
    a(f"s_mov_b32 s72, {mb(MB_G)}")
    sync.publish(a, 72, 32, init='late')
    a.label("L_attn")
    a.stamp_mid(2)
    if FRONT_ONLY or A_EXIT: a("s_branch L_done")
    def dep_qkv(a):
        a("s_lshr_b32 s72, s61, 3")
        a("s_lshl_b32 s72, s72, 4")
        a("s_bfe_u32 s73, s2, 0x40003")
        a("s_add_u32 s72, s72, s73")
        a("s_lshl_b32 s72, s72, 8")
        a(f"s_add_u32 s72, s72, {mb(MB_QKV)}")
        sync.poll(a, 72, 48, vt=8, sleep=4, init='late')
    def dep_g(a):
        a("s_bfe_u32 s72, s2, 0x50003")
        a("s_lshl_b32 s72, s72, 8")
        a(f"s_add_u32 s72, s72, {mb(MB_G)}")
        sync.spin(a, 48, "s72", 64, 0)
    def pub_o(a):
        a("s_cmp_gt_u32 s61, 7")
        a("s_cselect_b32 s72, 1, 0")
        for hd in (14, 19, 24):
            a(f"s_cmp_gt_u32 s61, {hd}")
            a("s_addc_u32 s72, s72, 0")
        a("s_lshr_b32 s73, s2, 5")
        a("s_mul_i32 s73, s73, 5")
        a("s_add_u32 s72, s72, s73")
        a(f"s_mul_i32 s72, s72, {6*256}")
        a(f"s_add_u32 s72, s72, {mb(MB_O)}")
        a(f"s_lshr_b32 s73, {(1<<7)|(1<<14)|(1<<19)|(1<<24)}, s61")
        a("s_and_b32 s73, s73, 1")
        a("s_cselect_b32 s73, 0xfff, 63")
        sync.publish(a, 72, "s73")
    TV = 140
    def tsetup(a):
        a.srd(80, P_W2, S*F*2)
        a("s_lshr_b32 s72, s2, 3")
        a("s_lshl_b32 s72, s72, 2")
        a("s_add_u32 s72, s72, s52")
        a("s_mul_i32 s73, s72, 205")
        a("s_lshr_b32 s73, s73, 11")
        a("s_mul_i32 s76, s73, 10")
        a("s_sub_u32 s72, s72, s76")
        a("s_and_b32 s76, s2, 7")
        a("s_mul_i32 s76, s76, 10")
        a("s_add_u32 s72, s72, s76")
        a("s_lshr_b32 s76, s72, 4")
        a("s_and_b32 s72, s72, 15")
        a(f"s_mul_i32 s76, s76, {928*4096}")
        a("s_lshl_b32 s72, s72, 8")
        a("s_add_u32 s76, s76, s72")
        a("s_lshl_b32 s72, s73, 17")
        a("s_add_u32 s76, s76, s72")
        a("s_cmp_ge_u32 s73, 12")
        a("s_cselect_b32 s82, 0, s82")
        a(f"v_lshrrev_b32 v{TV}, 1, v0")
        a(f"v_lshlrev_b32 v{TV}, 12, v{TV}")
        a(f"v_and_b32 v{TV+1}, 1, v0")
        a(f"v_lshl_add_u32 v{TV}, v{TV+1}, 7, v{TV}")
        a(f"v_add_u32 v{TV}, s76, v{TV}")
        a("s_mov_b32 s78, s73")
    def touch(a):
        a("s_cmp_ge_u32 s78, 29")
        a("s_cselect_b32 s82, 0, s82")
        a(f"buffer_load_dword v{TV+1}, v{TV}, s[80:83], 0 offen")
        a(f"v_add_u32 v{TV}, {12*32*4096}, v{TV}")
        a("s_add_u32 s78, s78, 12")
    k_attn.attn_body(a, "s2", dep_qkv, pub_o, sm=3, tsetup=tsetup if W2_TOUCH else None, touch=touch if W2_TOUCH else None, dep_g=dep_g)
    a.stamp_mid(5)
    a("s_cmp_ge_u32 s2, 192")
    a("s_cbranch_scc1 L_done")
    if NO_FINAL: a("s_branch L_done")
    def dep_y(a):
        a("s_lshl_b32 s72, s54, 5")
        a("s_add_u32 s72, s72, s53")
        a("s_lshl_b32 s72, s72, 8")
        a(f"s_add_u32 s72, s72, {mb(MB_Y)}")
        sync.spin(a, 48, "s72", 5, 8, sleep=SLP_FIN)
        a.stamp_mid(7)
    k_final.final_body(a, "s2", dep_y)
    a("s_branch L_done")
    a.label("L_slotB")
    a("s_sub_u32 s3, s2, 256")
    a(f"s_cmp_lt_u32 s3, {255 - sync.N_LATE}")
    a("s_cbranch_scc1 L_noinit")
    a("s_setprio 3")
    a(f"s_sub_u32 s78, s3, {255 - sync.N_LATE}")
    sync.init_mailboxes(a, "s78")
    a("s_setprio 0")
    a.stamp_mid(0)
    a.label("L_noinit")
    if XW: k_front.xw_touch(a, "s3")
    if TLBW:
        a("s_lshr_b32 s53, s3, 3")
        a("s_lshl_b32 s53, s53, 2")
        a("s_add_u32 s53, s53, s52")
        a("s_lshl_b32 s53, s53, 6")
        a("v_add_u32 v5, s53, v0")
        a(f"v_lshlrev_b32 v5, {TLBW}, v5")
        a.srd(80, P_W1, S*F*2)
        a("buffer_load_dword v62, v5, s[80:83], 0 offen nt")
        a.srd(80, P_W2, S*F*2)
        a("buffer_load_dword v63, v5, s[80:83], 0 offen nt")
        a.srd(80, P_WS, CNT_OFF)
        a("buffer_load_dword v59, v5, s[80:83], 0 offen nt")
    a("s_waitcnt vmcnt(0)")
    sync.poll(a, None, 0, vt=5, init=True)
    a.stamp_mid(5)
    a("s_cmp_lt_u32 s3, 192")
    a("s_cbranch_scc1 L_mlp1")
    if PF_AFTER_H:
        a("s_bfe_u32 s72, s3, 0x20001")
        a("s_lshl_b32 s72, s72, 3")
        a("s_bfe_u32 s73, s3, 0x30003")
        a("s_add_u32 s72, s72, s73")
        a("s_lshl_b32 s72, s72, 8")
        a(f"s_add_u32 s72, s72, {mb(MB_H)}")
        sync.poll(a, 72, 16, vt=5, sleep=4)
    a.srd(40, P_W1, S*F*2)
    a("s_sub_u32 s67, 255, s3")
    a(f"s_mul_i32 s66, s52, {512*F*2}")
    a("s_lshl_b32 s68, s67, 13")
    a("s_add_u32 s66, s66, s68")
    a("v_lshlrev_b32 v5, 7, v0")
    a("v_add_u32 v5, s66, v5")
    for r in range(PF1):
        a(f"buffer_load_dword v{60+(r&1)}, v5, s[40:43], 0 offen")
        a(f"v_add_u32 v5, {64*8192}, v5")
        if r >= PFD: a(f"s_waitcnt vmcnt({PFD})")
    a(f"s_cmp_ge_u32 s3, {k_mlp1.MLP1_GRID}")
    a("s_cbranch_scc1 L_aux")
    a.label("L_mlp1")
    def dep_h(a):
        a("s_lshl_b32 s72, s52, 3")
        a("s_bfe_u32 s73, s3, 0x30003")
        a("s_add_u32 s72, s72, s73")
        a("s_lshl_b32 s72, s72, 8")
        a(f"s_add_u32 s72, s72, {mb(MB_H)}")
        sync.spin(a, 48, "s72", 16, 5)
    def w2_tail(a):
        a.srd(80, P_W2, S*F*2)
        a("s_lshr_b32 s72, s3, 3")
        a("s_mul_i32 s73, s72, 86")
        a("s_lshr_b32 s73, s73, 8")
        a("s_mul_i32 s76, s73, 3")
        a("s_sub_u32 s72, s72, s76")
        a("s_and_b32 s76, s3, 7")
        a("s_mul_i32 s76, s76, 10")
        a("s_add_u32 s73, s73, s76")
        a("s_lshr_b32 s76, s73, 4")
        a("s_and_b32 s73, s73, 15")
        a(f"s_mul_i32 s76, s76, {928*4096}")
        a("s_lshl_b32 s73, s73, 8")
        a("s_add_u32 s76, s76, s73")
        a("s_lshl_b32 s72, s72, 2")
        a("s_add_u32 s72, s72, s52")
        a("s_add_u32 s72, s72, 17")
        a("s_lshl_b32 s72, s72, 17")
        a("s_add_u32 s76, s76, s72")
        a("v_lshrrev_b32 v60, 1, v0")
        a("v_lshlrev_b32 v60, 12, v60")
        a("v_and_b32 v61, 1, v0")
        a("v_lshl_add_u32 v60, v61, 7, v60")
        a("v_add_u32 v60, s76, v60")
        a("buffer_load_dword v61, v60, s[80:83], 0 offen")
    def pub_u(a):
        a("s_mul_i32 s73, s66, 565")
        a("s_lshr_b32 s73, s73, 12")
        a("s_lshr_b32 s72, s67, 1")
        a("s_mul_i32 s72, s72, 5")
        a("s_add_u32 s73, s73, s72")
        a("s_lshl_b32 s73, s73, 12")
        a(f"s_add_u32 s73, s73, {mb(MB_U)}")
        a("s_lshr_b32 s72, 0x204080, s66")
        a("s_cmp_lt_u32 s66, 32")
        a("s_cselect_b32 s72, s72, 0")
        a("s_and_b32 s72, s72, 1")
        a("s_cselect_b32 s72, -1, 0xffff")
        sync.publish(a, 73, "s72", init='late')
    k_mlp1.mlp1_body(a, "s3", dep_h, pub_u, sm=0, epi=w2_tail if W2_TAIL else None)
    a.stamp_mid(2)
    a("s_branch L_mlp2")
    a.label("L_aux")
    for n in range(-(-(576 - 64*PF1)//40) if PFW1 else 0):
        a(f"buffer_load_dword v{60+(n&1)}, v5, s[40:43], 0 offen")
        a(f"v_add_u32 v5, {40*8192}, v5")
        a(f"s_waitcnt vmcnt({PFD})")
    a.stamp_mid(1)
    a.srd(40, P_W2, S*F*2)
    a("s_lshl_b32 s68, s67, 2")
    a("s_add_u32 s68, s68, s52")
    a("s_lshr_b32 s66, s68, 5")
    a("s_and_b32 s68, s68, 31")
    a(f"s_mul_i32 s66, s66, {928*4096}")
    a("s_lshl_b32 s68, s68, 13")
    a("s_add_u32 s66, s66, s68")
    a("v_lshlrev_b32 v5, 7, v0")
    a("v_add_u32 v5, s66, v5")
    for n in range(PF2):
        a(f"buffer_load_dword v{60+(n&1)}, v5, s[40:43], 0 offen")
        a(f"v_add_u32 v5, {32*8192}, v5")
        a(f"s_waitcnt vmcnt({PFD})")
    a("s_waitcnt vmcnt(0)")
    a.stamp_mid(2)
    a(f"s_cmp_ge_u32 s3, {k_mlp2.MLP2_GRID}")
    a("s_cbranch_scc1 L_done")
    a.label("L_mlp2")
    def dep_u(a):
        a("s_mul_i32 s73, s67, 5")
        a("s_add_u32 s73, s73, s69")
        a("s_lshl_b32 s73, s73, 4")
        a("s_add_u32 s73, s73, s66")
        a("s_lshl_b32 s73, s73, 8")
        a(f"s_add_u32 s73, s73, {mb(MB_U)}")
        a("s_cmp_eq_u32 s69, 4")
        a("s_cselect_b32 s76, 14, 16")
        sync.poll(a, 73, "s76", vt=8, init='late', sleep=4)
    def pub_y(a):
        a("s_lshl_b32 s73, s67, 1")
        a("s_add_u32 s73, s73, s71")
        a("s_lshl_b32 s73, s73, 5")
        a("s_lshl_b32 s70, s66, 1")
        a("s_add_u32 s73, s73, s70")
        a("s_add_u32 s73, s73, s72")
        a("s_lshl_b32 s73, s73, 8")
        a(f"s_add_u32 s73, s73, {mb(MB_Y)}")
        a("v_mov_b32 v8, 0")
        a("v_mov_b32 v9, 1")
        a("s_waitcnt vmcnt(0)")
        a("s_mov_b64 exec, 1")
        a("buffer_atomic_add v9, v8, s[48:51], s73 offen sc1")
        a("s_mov_b64 exec, -1")
    def dep_o(a, block):
        if not block:
            a("s_bfe_u32 s73, s2, 0x50003")
            a("s_lshl_b32 s73, s73, 8")
            a(f"s_add_u32 s73, s73, {mb(MB_G)}")
            sync.spin(a, 48, "s73", 64, 0)
        a("s_lshr_b32 s73, s66, 1")
        a("s_mul_i32 s73, s73, 5")
        a("s_add_u32 s73, s73, s69")
        a("s_mul_i32 s73, s73, 6")
        a("s_lshl_b32 s70, s67, 1")
        a("s_add_u32 s73, s73, s70")
        a("s_and_b32 s70, s66, 1")
        a("s_add_u32 s73, s73, s70")
        a("s_lshl_b32 s73, s73, 8")
        a(f"s_add_u32 s73, s73, {mb(MB_O)}")
        a("s_lshl_b32 s76, s53, 1")
        if block:
            sync.spin(a, 48, "s73", "s76", 8, sleep=2)
            a.stamp_mid(6)
        else:
            a("s_buffer_load_dword s75, s[48:51], s73 glc")
            a("s_waitcnt lgkmcnt(0)")
            a("s_cmp_ge_u32 s75, s76")
            a("s_cselect_b32 s79, 1, 0")
            a.stamp_mid(5)
    k_mlp2.mlp2_body(a, "s3", sm=3, dep=dep_u, pub=pub_y, dep_o=dep_o)
    a.label("L_done")
    a.end()
    a.label("L_end")
    a("s_endpgm")

def build(stamp=False):
    a = Asm()
    a.stamp = stamp
    fin = NAME + "_kernel"
    out = HEADER
    out += (f"; @launch kernel={fin} grid=(512,1,1) block=(256,1,1) lds=81920\n" if LIST else "; @launch grid=(512,1,1) block=(256,1,1) lds=81920\n")
    out += '.amdgcn_target "amdgcn-amd-amdhsa--gfx950"\n.text\n'
    gen_main(a, fin)
    out += a.text()
    out += '.section .rodata,"a"\n'
    out += ".p2align 6\n" + descriptor(fin, 256, None)
    return out

if __name__ == "__main__":
    open("main.s", "w").write(build())
    open("stamp.s", "w").write(build(True))
    LIST = False
    open("final.s", "w").write(build())
    LIST = True
    VARS = eval(open("vars.txt").read())
    import copy
    for nm, kv in VARS.items():
        saved = {}
        for k, v in kv.items():
            mod, name = (globals()[k.split(".")[0]].__dict__, k.split(".")[1]) if "." in k else (globals(), k)
            saved[k] = (mod, name, mod[name]); mod[name] = v
        open(f"gen/{nm}.s", "w").write(build(False))
        open(f"gen/{nm}_s.s", "w").write(build(True))
        for mod, name, v in saved.values(): mod[name] = v
    print("wrote")
```

```python
from common import *

ATTN_GRID = 256
SKIP = False
CH = 16*KV_RS
ATTN_LDS = 2*CH + 64

VK0, VK1, VV, VDM = 1, 2, 3, 4
VST, VWR, VWC = 144, 145, 146
CONST = 2*CH + 64
Q0 = [8, 12]; Q1 = [16, 18]
K0 = [20, 24]; K1 = [28, 30]
V = [32, 40]
P = [48, 56]
Sx = [64, 80]
O = [96, 112]
TMP = 128
NV_ATTN = 144
S_KV, S_C, S_ATT, S_VM = 54, 55, 56, 58

def dma_chunk(a, sbuf, soff):
    for i in range(9):
        a(f"s_add_u32 m0, s{sbuf}, {i*4096}")
        a(f"s_add_u32 s60, s{soff}, {i*4096}")
        a(f"buffer_load_dwordx4 v{VDM}, s[48:51], s60 offen sc1 lds")

def qk(a, which, aq, kb):
    s = vr(Sx[aq], 16)
    if which == 0:
        a(f"v_mfma_f32_32x32x16_bf16 {s}, {vr(K0[kb],4)}, {vr(Q0[aq],4)}, 0")
    else:
        a(f"v_mfma_f32_32x32x8_bf16 {s}, {vr(K1[kb],2)}, {vr(Q1[aq],2)}, {s}")

def pv(a, which, aq, vb):
    o = vr(O[aq], 16)
    a(f"v_mfma_f32_32x32x16_bf16 {o}, {vr(V[vb]+4*which,4)}, {vr(P[aq]+4*which,4)}, {o}")

def read_k(a, kb, rec):
    a(f"ds_read_b128 {vr(K0[kb],4)}, v{VK0} offset:{rec*KV_RS}")
    a(f"ds_read_b32 v{K1[kb]}, v{VK1} offset:{rec*KV_RS}")

def read_v(a, vb, rec):
    for x in V_FILL(vb, rec): a(x)

def expq(a, aq, q, fill=()):
    fill = list(fill)
    for e in range(4):
        r = Sx[aq] + 4*q + e
        a(f"v_exp_f32 v{r}, v{r}")
        if fill: a(fill.pop(0))
    assert not fill
    for c in range(2):
        r = Sx[aq] + 4*q + 2*c
        a(f"v_cvt_pk_bf16_f32 v{P[aq]+2*q+c}, v{r}, v{r+1}")

def block(a, kt, aq, rec=None, do_qk=True):
    an = 1 - aq
    kq = (kt + aq) & 1
    vb = (kt - 1 + aq) & 1
    nb = (kt + 1) & 1
    f0 = []
    if rec is not None:
        if aq == 0:
            f0 = [f"ds_read_b128 {vr(K0[nb],4)}, v{VK0} offset:{rec*KV_RS}", f"ds_read_b32 v{K1[nb]}, v{VK1} offset:{rec*KV_RS}"]
        else:
            f0 = V_FILL(nb, rec)
    if NOLDS: f0 = []
    if aq == 1 and MODE != 1:
        a("s_waitcnt lgkmcnt(0)")
    ms = [lambda: qk(a, 0, an, kq) if do_qk else None, lambda: qk(a, 1, an, kq) if do_qk else None,
          lambda: pv(a, 0, an, vb), lambda: pv(a, 1, an, vb)]
    for q in range(4):
        ms[q]()
        fl = []
        if MODE == 0:
            if q == 0:
                for x in f0: a(x)
        elif MODE == 1:
            if q == 0: fl = f0
            if q == 3 and aq == 0: fl = ["s_waitcnt lgkmcnt(0)"]
        elif MODE == 2:
            if q < len(f0): a(f0[q])
        expq(a, aq, q, fl)

MODE = 0
NOLDS = False
SPREAD_V = True
def V_FILL(vb, rec):
    return [f"ds_read_b128 {vr(V[vb],4)}, v{VV}",
            f"ds_read_b128 {vr(V[vb]+4,4)}, v{VV} offset:576",
            f"v_add_u32 v{VV}, v{VV}, v{VST}"]

def set_m(a, aq, m):
    t = TMP
    a(f"v_mov_b32 v{t}, v{m}")
    a("s_nop 1")
    a(f"v_permlane32_swap_b32 v{m}, v{t}")
    a("s_nop 1")
    a(f"v_max_f32 v{m}, v{m}, v{t}")
    a(f"v_sub_f32 v{m}, 0, v{m}")
    a(f"v_and_b32 v{t}, 0xffff0000, v{m}")
    a(f"v_sub_f32 v{m}, v{m}, v{t}")
    a(f"v_and_b32 v{t+1}, 0xffff0000, v{m}")
    a(f"v_sub_f32 v{m}, v{m}, v{t+1}")
    a(f"v_lshrrev_b32 v{t}, 16, v{t}")
    a(f"v_or_b32 v{t}, v{t}, v{t+1}")
    a(f"v_lshrrev_b32 v{m}, 16, v{m}")
    a(f"v_cmp_gt_u32 vcc, 32, v0")
    a("s_nop 1")
    a(f"v_cndmask_b32 v{Q1[aq]+1}, v{m}, v{t}, vcc")

def tile_max(a, aq, m, first):
    s = Sx[aq]
    if first:
        a(f"v_max3_f32 v{m}, v{s}, v{s+1}, v{s+2}")
        a(f"v_max_f32 v{m}, v{m}, v{s+3}")
        st = 4
    else:
        st = 0
    for e in range(st, 16, 2):
        a(f"v_max3_f32 v{m}, v{m}, v{s+e}, v{s+e+1}")

def attn_body(a, wgreg, dep, pub, sm=0, tsetup=None, touch=None, dep_g=None):
    a(f"s_and_b32 s61, {wgreg}, 7")
    a("s_lshl_b32 s61, s61, 2")
    a(f"s_bfe_u32 s62, {wgreg}, 0x20003")
    a("s_add_u32 s61, s61, s62")
    a(f"s_lshr_b32 s62, {wgreg}, 5")
    a("s_lshl_b32 s62, s62, 3")
    a("s_lshl_b32 s63, s52, 1")
    a("s_add_u32 s62, s62, s63")
    a(f"s_mul_i32 s{S_KV}, s61, {64*KV_RS}")
    a(f"s_add_u32 s{S_KV}, s{S_KV}, {KV_OFF}")
    a("s_lshl_b32 s64, s52, 10")
    a(f"s_add_u32 s65, s64, {CH}")
    a(f"v_lshlrev_b32 v5, 4, v0")
    a(f"v_add_u32 v{VDM}, s64, v5")
    a("s_lshl_b32 s63, s61, 6")
    a("s_add_u32 s63, s63, s62")
    a(f"s_mul_i32 s63, s63, {QR_RS}")
    a(f"s_add_u32 s63, s63, {QR_OFF}")
    a("v_and_b32 v6, 31, v0")
    a("v_lshlrev_b32 v7, 2, v6")
    if tsetup: tsetup(a)
    dep(a)
    for aq in range(2):
        a(f"buffer_load_dwordx4 {vr(Q0[aq],4)}, v5, s[48:51], s63 offen offset:{aq*QR_RS} sc1")
        a(f"buffer_load_dword v{Q1[aq]}, v7, s[48:51], s63 offen offset:{aq*QR_RS + 1024} sc1")
    a(f"s_mov_b32 s{S_ATT}, 0")
    for b in range(2):
        a(f"v_mov_b32 v{K1[b]+1}, 0x3f803f80")
        a(f"v_mov_b32 v{Q1[b]+1}, 0")
    for e in range(8):
        a(f"v_mov_b32 v{V[1]+e}, 0")
    a(f"v_cmp_gt_u32 vcc, 4, v0")
    a(f"v_mov_b32 v{TMP}, 0x3f803f80")
    a(f"v_lshlrev_b32 v{TMP+1}, 2, v0")
    a(f"v_cndmask_b32 v{TMP}, 0, v{TMP}, vcc")
    a(f"v_add_u32 v{TMP+1}, {CONST}, v{TMP+1}")
    a("s_mov_b64 exec, 0xff")
    a(f"ds_write_b32 v{TMP+1}, v{TMP}")
    a(f"ds_write_b32 v{TMP+1}, v{TMP} offset:576")
    a("s_mov_b64 exec, -1")
    a(f"v_cmp_gt_u32 s[{S_VM}:{S_VM+1}], 18, v6")
    a(f"v_mov_b32 v{VST}, {KV_RS}")
    a(f"v_mov_b32 v{VWC}, {(-2*CH) & 0xffffffff}")
    a(f"v_cndmask_b32 v{VST}, 0, v{VST}, s[{S_VM}:{S_VM+1}]")
    a(f"v_cndmask_b32 v{VWC}, 0, v{VWC}, s[{S_VM}:{S_VM+1}]")
    a.label("L_attn_start")
    dma_chunk(a, 64, S_KV)
    a(f"s_add_u32 s66, s{S_KV}, {CH}")
    dma_chunk(a, 65, 66)
    a(f"s_add_u32 s66, s66, {CH}")
    a(f"s_mov_b32 s67, s64")
    a(f"s_mov_b32 s68, s65")
    a(f"v_mov_b32 v{VK0}, v5")
    a(f"v_add_u32 v{VK1}, 1024, v7")
    a(f"v_lshrrev_b32 v{VV}, 5, v0")
    a(f"v_mul_u32_u24 v{VV}, 288, v{VV}")
    a(f"v_lshl_add_u32 v{VV}, v6, 4, v{VV}")
    a(f"v_add_u32 v{VV}, 1152, v{VV}")
    a(f"v_and_b32 v{TMP}, 27, v6")
    a(f"v_cmp_eq_u32 vcc, 18, v{TMP}")
    a(f"v_mov_b32 v{TMP}, {CONST + 16}")
    a(f"v_mov_b32 v{TMP+1}, {CONST}")
    a(f"v_cndmask_b32 v{TMP}, v{TMP}, v{TMP+1}, vcc")
    a(f"v_cndmask_b32 v{VV}, v{TMP}, v{VV}, s[{S_VM}:{S_VM+1}]")
    a(f"v_mov_b32 v{VWR}, 0")
    for aq in range(2):
        for e in range(16):
            a(f"v_mov_b32 v{O[aq]+e}, 0")
    for e in range(8):
        a(f"v_mov_b32 v{P[1]+e}, 0")
    a("s_waitcnt vmcnt(16) lgkmcnt(0)")
    a("s_barrier")
    if touch: touch(a)
    read_k(a, 0, 0)
    read_v(a, 0, 0)
    a(f"v_cmp_gt_u32 vcc, 32, v0")
    a("s_nop 1")
    for aq in range(2):
        a(f"v_cndmask_b32 v{Q1[aq]}, 0, v{Q1[aq]}, vcc")
    a("s_waitcnt lgkmcnt(0)")
    a(f"s_cmp_lg_u32 s{S_ATT}, 0")
    a("s_cbranch_scc1 L_attn_havemax")
    for aq in range(2):
        qk(a, 0, aq, 0); qk(a, 1, aq, 0)
    a("s_nop 15")
    for aq in range(2):
        tile_max(a, aq, TMP+2+aq, True)
    for aq in range(2):
        set_m(a, aq, TMP+2+aq)
    a("s_nop 1")
    a.label("L_attn_havemax")
    qk(a, 0, 0, 0); qk(a, 1, 0, 0)
    a(f"s_mov_b32 s{S_C}, 0")
    a.stamp_mid(sm)
    a("s_setprio 1")
    a("s_nop 15")
    a("s_branch L_attn_out" if SKIP else "s_branch L_attn_entry")
    a.raw(".p2align 6")
    a.label("L_attn_loop")
    a("s_waitcnt vmcnt(0) lgkmcnt(0)")
    a("s_barrier")
    a(f"v_xor_b32 v{VK0}, {CH}, v{VK0}")
    a(f"v_xor_b32 v{VK1}, {CH}, v{VK1}")
    a(f"v_add_u32 v{VV}, v{VV}, v{VWR}")
    a(f"v_xor_b32 v{VWR}, v{VWR}, v{VWC}")
    a(f"s_cmp_eq_u32 s{S_C}, 3")
    a("s_cbranch_scc1 L_attn_nodma")
    dma_chunk(a, 67, 66)
    a(f"s_add_u32 s66, s66, {CH}")
    a("s_mov_b32 s69, s67")
    a("s_mov_b32 s67, s68")
    a("s_mov_b32 s68, s69")
    if touch: touch(a)
    a.label("L_attn_nodma")
    block(a, -1, 0, 0); block(a, -1, 1, 0)
    a.label("L_attn_entry")
    for kt in range(15):
        if kt == 2:
            a("s_waitcnt vmcnt(9)")
            a("s_barrier")
        block(a, kt, 0, kt+1); block(a, kt, 1, kt+1)
    a(f"s_add_u32 s{S_C}, s{S_C}, 1")
    a(f"s_cmp_lt_u32 s{S_C}, 4")
    a("s_cbranch_scc1 L_attn_loop")
    dep_g(a)
    a("s_lshl_b32 s69, s62, 7")
    a(f"s_add_u32 s69, s69, {G_OFF}")
    a(f"buffer_load_dword v{TMP+8}, v7, s[48:51], s69 offen sc1")
    a(f"buffer_load_dword v{TMP+9}, v7, s[48:51], s69 offen offset:128 sc1")
    block(a, 15, 0); block(a, 15, 1, do_qk=False)
    a("s_nop 1")
    pv(a, 0, 1, 1); pv(a, 1, 1, 1)
    a("s_nop 15")
    a.stamp_mid(sm+1)
    a("s_setprio 3")
    a(f"s_cmp_lg_u32 s{S_ATT}, 0")
    a("s_cbranch_scc1 L_attn_out")
    a(f"v_max_f32 v{TMP}, v{O[0]+10}, v{O[1]+10}")
    for aq in range(2):
        for e in range(11):
            a(f"v_fma_f32 v{TMP}, v{O[aq]+e}, 0, v{TMP}")
    a(f"v_mov_b32 v{TMP+1}, 0x5f800000")
    a(f"v_cmp_nlt_f32 vcc, v{TMP}, v{TMP+1}")
    a("s_cmp_lg_u64 vcc, 0")
    a("s_cselect_b32 s69, 1, 0")
    a(f"v_mov_b32 v{TMP}, s69")
    a(f"s_lshl_b32 s69, s52, 2")
    a(f"s_add_u32 s69, s69, {2*CH}")
    a(f"v_mov_b32 v{TMP+1}, s69")
    a(f"ds_write_b32 v{TMP+1}, v{TMP}")
    a(f"v_mov_b32 v{TMP+1}, {2*CH}")
    a("s_waitcnt lgkmcnt(0)")
    a("s_barrier")
    a(f"ds_read_b128 {vr(TMP+4,4)}, v{TMP+1}")
    a("s_waitcnt lgkmcnt(0)")
    a(f"v_or_b32 v{TMP}, v{TMP+4}, v{TMP+5}")
    a(f"v_or3_b32 v{TMP}, v{TMP}, v{TMP+6}, v{TMP+7}")
    a("s_nop 0")
    a(f"v_readfirstlane_b32 s69, v{TMP}")
    a("s_nop 3")
    a("s_cmp_eq_u32 s69, 0")
    a("s_cbranch_scc1 L_attn_out")
    a(f"s_mov_b32 s{S_ATT}, 1")
    for aq in range(2):
        a(f"v_mov_b32 v{Q1[aq]+1}, 0")
        a(f"v_mov_b32 v{TMP+2+aq}, 0xff800000")
    a(f"s_mov_b32 s66, s{S_KV}")
    a(f"s_mov_b32 s{S_C}, 0")
    a.label("L_attn_mx_chunk")
    dma_chunk(a, 64, 66)
    a(f"s_add_u32 s66, s66, {CH}")
    a(f"v_mov_b32 v{VK0}, v5")
    a(f"v_add_u32 v{VK1}, 1024, v7")
    a("s_mov_b32 s69, 0")
    a("s_waitcnt vmcnt(0)")
    a("s_barrier")
    a.label("L_attn_mx_tile")
    read_k(a, 0, 0)
    a(f"v_add_u32 v{VK0}, {KV_RS}, v{VK0}")
    a(f"v_add_u32 v{VK1}, {KV_RS}, v{VK1}")
    a("s_waitcnt lgkmcnt(0)")
    for aq in range(2):
        qk(a, 0, aq, 0); qk(a, 1, aq, 0)
    a("s_nop 15")
    for aq in range(2):
        tile_max(a, aq, TMP+2+aq, False)
    a("s_add_u32 s69, s69, 1")
    a("s_cmp_lt_u32 s69, 16")
    a("s_cbranch_scc1 L_attn_mx_tile")
    a("s_barrier")
    a(f"s_add_u32 s{S_C}, s{S_C}, 1")
    a(f"s_cmp_lt_u32 s{S_C}, 4")
    a("s_cbranch_scc1 L_attn_mx_chunk")
    for aq in range(2):
        set_m(a, aq, TMP+2+aq)
    a("s_branch L_attn_start")
    a.label("L_attn_out")
    a("s_barrier")
    a(f"v_lshrrev_b32 v{TMP}, 5, v0")
    a(f"v_lshlrev_b32 v{TMP}, 11, v{TMP}")
    a(f"v_lshl_add_u32 v{TMP}, v6, 1, v{TMP}")
    a("s_lshl_b32 s69, s52, 7")
    a(f"v_add_u32 v{TMP}, s69, v{TMP}")
    a("s_waitcnt vmcnt(0)")
    for aq in range(2):
        o = O[aq]
        a(f"v_rcp_f32 v{o+10}, v{o+10}")
        a("s_nop 0")
        a(f"v_mul_f32 v{o+10}, v{o+10}, v{TMP+8+aq}")
        for e in range(10):
            a(f"v_mul_f32 v{o+e}, v{o+e}, v{o+10}")
        for e in range(5):
            a(f"v_cvt_pk_bf16_f32 v{o+e}, v{o+2*e}, v{o+2*e+1}")
        for p in range(5):
            e = 2*p
            dim = 8*(e >> 2) + (e & 3)
            if p == 4: a("s_mov_b32 exec_hi, 0")
            a(f"ds_write_b16 v{TMP}, v{o+p} offset:{dim*512 + aq*64}")
            a(f"ds_write_b16_d16_hi v{TMP}, v{o+p} offset:{(dim+1)*512 + aq*64}")
            if p == 4: a("s_mov_b64 exec, -1")
    a(f"v_lshrrev_b32 v{TMP+1}, 5, v0")
    a(f"v_lshlrev_b32 v{TMP+1}, 12, v{TMP+1}")
    a(f"v_lshl_add_u32 v{TMP+1}, v6, 4, v{TMP+1}")
    a(f"s_mul_i32 s69, s61, {18*4096}")
    a(f"s_lshr_b32 s70, {wgreg}, 5")
    a("s_lshl_b32 s70, s70, 9")
    a("s_add_u32 s69, s69, s70")
    a("s_lshl_b32 s70, s52, 13")
    a("s_add_u32 s69, s69, s70")
    a(f"s_add_u32 s69, s69, {O_OFF}")
    a("s_add_u32 s70, s69, 32768")
    a("s_add_u32 s71, s69, 65536")
    a("s_waitcnt lgkmcnt(0)")
    a("s_barrier")
    a(f"ds_read_b128 {vr(O[0],4)}, v{VDM}")
    a(f"ds_read_b128 {vr(O[0]+4,4)}, v{VDM} offset:4096")
    a(f"ds_read_b128 {vr(O[0]+8,4)}, v{VDM} offset:8192")
    a("s_waitcnt lgkmcnt(2)")
    a(f"buffer_store_dwordx4 {vr(O[0],4)}, v{TMP+1}, s[48:51], s69 offen sc1")
    a("s_waitcnt lgkmcnt(1)")
    a(f"buffer_store_dwordx4 {vr(O[0]+4,4)}, v{TMP+1}, s[48:51], s70 offen sc1")
    a("s_cmp_lg_u32 s52, 0")
    a("s_cbranch_scc1 L_attn_st")
    a("s_waitcnt lgkmcnt(0)")
    a(f"buffer_store_dwordx4 {vr(O[0]+8,4)}, v{TMP+1}, s[48:51], s71 offen sc1")
    a.label("L_attn_st")
    pub(a)
```

```python
from common import *

FINAL_GRID = 192
OSC = ' nt'

def final_body(a, wgreg, dep_y, sc=" sc1"):
    a.srd(40, P_OUT, S*D*2)
    a(f"s_and_b32 s53, {wgreg}, 7")
    a("s_lshl_b32 s53, s53, 2")
    a(f"s_bfe_u32 s54, {wgreg}, 0x20003")
    a("s_add_u32 s53, s53, s54")
    a(f"s_lshr_b32 s54, {wgreg}, 5")
    a("s_and_b32 s61, s52, 1")
    a("s_lshr_b32 s62, s52, 1")
    a("v_lshlrev_b32 v2, 4, v0")
    a("v_and_b32 v5, 31, v0")
    a("s_lshl_b32 s57, s53, 1")
    a("s_add_u32 s63, s57, s62")
    a("s_lshl_b32 s57, s63, 5")
    a("v_add_u32 v5, s57, v5")
    a(f"s_mul_i32 s56, s54, {3*64*2048}")
    a("s_lshl_b32 s57, s63, 11")
    a("s_add_u32 s56, s56, s57")
    a("s_lshl_b32 s57, s61, 10")
    a("s_add_u32 s56, s56, s57")
    a(f"s_add_u32 s56, s56, {YP_OFF}")
    a("v_mul_u32_u24 v5, 1152, v5")
    a("v_lshrrev_b32 v6, 5, v0")
    a("v_lshl_add_u32 v5, v6, 4, v5")
    a("s_mul_i32 s58, s54, 192")
    a("s_lshl_b32 s57, s61, 5")
    a("s_add_u32 s58, s57, s58")
    Y = 16
    def loads(i):
        dep_y(a, i)
        for ks in range(5):
            a(f"s_add_u32 s57, s56, {ks*YPB_SZ + i*64*2048}")
            a(f"buffer_load_dwordx4 {vr(Y+20*i+4*ks,4)}, v2, s[48:51], s57 offen{sc}")
    def proc(i, vm):
        T = 80 + 16*i
        for ks in range(5):
            a(f"s_waitcnt vmcnt({vm + 4 - ks})")
            for p in range(4):
                y = Y + 20*i + 4*ks + p
                d = T + 2*p if ks == 0 else T + 8 + 2*p
                a(f"v_lshlrev_b32 v{d}, 16, v{y}")
                a(f"v_and_b32 v{d+1}, 0xffff0000, v{y}")
            if ks:
                for p in range(4):
                    a(f"v_pk_add_f32 {vr(T+2*p,2)}, {vr(T+2*p,2)}, {vr(T+8+2*p,2)}")
        for e in range(4):
            a(f"v_cvt_pk_bf16_f32 v{T+e}, v{T+2*e}, v{T+2*e+1}")
        a("s_nop 1")
        a(f"v_permlane32_swap_b32 v{T}, v{T+2}")
        a(f"v_permlane32_swap_b32 v{T+1}, v{T+3}")
        a(f"buffer_store_dwordx4 {vr(T,4)}, v5, s[40:43], s58 offen offset:{i*64}{OSC}")
    loads(0); loads(1); loads(2)
    proc(0, 10); proc(1, 6); proc(2, 2)
```

```python
from common import *
import math
QSCALE = (DH ** -0.5) * math.log2(math.e)
SC = " sc1"
CB = 17408
ACC = 96
SET = [32, 52]

XNT = ''
def qkv_body(a, wgreg, pub, hint=None):
    a.srd(40, P_X, S*D*2)
    a.srd(44, P_WQKV, D*3*D*2)
    a(f"s_and_b32 s53, {wgreg}, 7")
    a(f"s_lshr_b32 s54, {wgreg}, 3")
    a("s_lshr_b32 s55, s53, 1")
    a("s_lshl_b32 s55, s55, 2")
    a("s_and_b32 s56, s54, 3")
    a("s_add_u32 s55, s55, s56")
    a("s_and_b32 s56, s53, 1")
    a("s_mul_i32 s56, s56, 6")
    a("s_lshr_b32 s57, s54, 2")
    a("s_add_u32 s56, s56, s57")
    a("s_lshl_b32 s59, s55, 2")
    a("s_add_u32 s60, s59, s52")
    a("v_lshrrev_b32 v2, 2, v0")
    a("s_lshl_b32 s60, s60, 5")
    a("v_add_u32 v2, s60, v2")
    a("v_mul_u32_u24 v2, 1152, v2")
    a("v_lshrrev_b32 v3, 4, v0")
    a("v_xor_b32 v3, v3, v0")
    a("v_and_b32 v3, 3, v3")
    a("v_lshl_add_u32 v2, v3, 4, v2")
    a(f"v_add_u32 v3, {16*1152}, v2")
    a("s_mul_i32 s65, s56, 288")
    a(f"s_mul_i32 s60, s52, {8*3456}")
    a("s_add_u32 s65, s65, s60")
    for i in range(3):
        a(f"v_add_u32 v7, {64*i}, v0")
        a(f"v_mul_u32_u24 v8, 3641, v7")
        a(f"v_lshrrev_b32 v8, 16, v8")
        a(f"v_mul_u32_u24 v9, 18, v8")
        a(f"v_sub_u32 v7, v7, v9")
        a(f"v_and_b32 v10, 1, v8")
        a(f"v_lshrrev_b32 v9, 1, v8")
        a(f"v_lshl_or_b32 v9, v10, 2, v9")
        a(f"v_mul_u32_u24 v9, 3456, v9")
        a(f"v_lshl_add_u32 v9, v7, 4, v9")
        a(f"v_add_u32 v{4+i}, s65, v9")
    a("s_lshl_b32 s61, s52, 11")
    a("s_mul_i32 s62, s52, 2304")
    a("s_add_u32 s62, s62, 8192")
    a("s_mov_b32 s63, 0")
    a("s_mov_b32 s64, 0")
    a(f"s_mov_b32 s71, {32*3456}")
    a("s_mov_b64 s[72:73], 0xffff")
    def setm0(buf, i):
        if i < 2: a(f"s_add_u32 m0, s61, {buf*CB + i*1024}")
        else: a(f"s_add_u32 m0, s62, {buf*CB + (i-2)*1024}")
    def load(i):
        if i < 2:
            a(f"buffer_load_dwordx4 v{2+i}, s[40:43], s63 offen lds")
            if i == 1: a("s_add_u32 s63, s63, 64")
        elif i < 4:
            a(f"buffer_load_dwordx4 v{2+i}, s[44:47], s64 offen lds")
        else:
            a("s_mov_b64 exec, s[72:73]")
            a(f"buffer_load_dwordx4 v6, s[44:47], s64 offen lds")
            a("s_mov_b64 exec, -1")
            a("s_add_u32 s64, s64, s71")
    for c in range(4):
        for i in range(5 if c < 3 else 2):
            setm0(c, i); a("s_nop 0"); load(i)
    a.stamp_mid(0)
    a("s_and_b32 s57, s52, 1")
    a("s_lshr_b32 s58, s52, 1")
    a("s_lshl_b32 s60, s57, 1")
    a("s_add_u32 s60, s60, s58")
    a("s_add_u32 s59, s59, s60")
    a("v_and_b32 v10, 31, v0")
    a("v_lshrrev_b32 v11, 5, v0")
    a("v_bfe_u32 v12, v10, 2, 2")
    a("v_xor_b32 v12, v12, v11")
    a("v_lshlrev_b32 v13, 6, v10")
    a("v_lshl_add_u32 v16, v12, 4, v13")
    a("s_lshl_b32 s60, s60, 11")
    a("v_add_u32 v16, s60, v16")
    a("v_xor_b32 v17, 32, v16")
    a("v_xor_b32 v18, 0x800, v16")
    a("v_xor_b32 v19, 0x800, v17")
    a("v_bfe_u32 v12, v0, 2, 2")
    a("v_lshlrev_b32 v12, 1, v12")
    a("v_lshl_add_u32 v12, v11, 3, v12")
    a("v_mul_u32_u24 v12, 288, v12")
    a("v_add_u32 v12, 0x2000, v12")
    a("v_bfe_u32 v13, v0, 4, 1")
    a("v_and_b32 v14, 3, v0")
    a("v_lshl_add_u32 v15, v14, 3, v12")
    a("v_lshl_add_u32 v20, v13, 5, v15")
    a("s_and_b32 s69, s56, 3")
    a("s_lshl_b32 s69, s69, 9")
    a("s_cmp_ge_u32 s56, 8")
    a("s_cbranch_scc1 L_qkv_v")
    a("s_mul_i32 s60, s58, 144")
    a("s_add_u32 s60, s60, 40")
    a("v_add_u32 v21, 112, v20")
    a("v_add_u32 v20, s60, v20")
    a("v_lshl_add_u32 v23, v13, 8, v15")
    a("s_cmp_lg_u32 s58, 0")
    a("s_cselect_b64 vcc, -1, 0")
    a("v_cndmask_b32 v21, v21, v23, vcc")
    a("v_mul_u32_u24 v22, 72, v14")
    a("v_add3_u32 v22, v22, v12, 32")
    loop(a, False, setm0, load, hint)
    a("s_cmp_ge_u32 s56, 4")
    a(f"s_mov_b32 s66, {QR_OFF}")
    a(f"s_mov_b32 s67, {QR_RS}")
    a(f"s_mov_b32 s68, {f32bits(QSCALE)}")
    a(f"s_cselect_b32 s66, {KV_OFF}, s66")
    a(f"s_cselect_b32 s67, {KV_RS}, s67")
    a(f"s_cselect_b32 s68, 1.0, s68")
    a("s_xor_b32 s63, s59, 1")
    a("s_add_u32 s63, s63, s69")
    a("s_add_u32 s69, s59, s69")
    a("s_mul_i32 s69, s69, s67")
    a("s_add_u32 s69, s69, s66")
    a("s_mul_i32 s63, s63, s67")
    a("s_add_u32 s63, s63, s66")
    a("s_lshl_b32 s70, s67, 6")
    a("s_lshl_b32 s60, s58, 2")
    a("s_add_u32 s72, s60, 1")
    a("s_add_u32 s73, s60, 2")
    a("s_cmp_lg_u32 s58, 0")
    a("s_cselect_b32 s76, 0, 3")
    a("s_cselect_b32 s77, 7, 4")
    for r in (72, 73, 76, 77): a(f"s_mul_i32 s{r}, s{r}, s70")
    for j, (hx, hy, rec) in enumerate(((72, 73, 69), (72, 73, 63), (76, 77, 69), (76, 77, 63))):
        qk_store_main(a, j, hx, hy, rec)
    qk_store_left(a, 4)
    a("s_branch L_qkv_done")
    a.label("L_qkv_v")
    a("s_lshl_b32 s60, s58, 7")
    a("v_add_u32 v20, s60, v20")
    a("v_add_u32 v21, 64, v20")
    a("v_add_u32 v22, 256, v15")
    loop(a, True, setm0, load, hint)
    a("s_and_b32 s63, s59, 3")
    a("s_mul_i32 s64, s63, 1152")
    a("s_xor_b32 s63, s63, 1")
    a("s_mul_i32 s63, s63, 1152")
    a("s_lshl_b32 s60, s58, 6")
    a("v_add_u32 v12, s60, v10")
    a("s_waitcnt vmcnt(0)")
    a("s_barrier")
    v_addr(a, "v12"); v_put(a, 0, 64); v_put(a, 1, 63)
    a("v_add_u32 v12, 32, v12")
    v_addr(a, "v12"); v_put(a, 2, 64); v_put(a, 3, 63)
    a("v_add_u32 v12, 128, v10")
    v_addr(a, "v12"); v_put(a, 4, 64)
    a("s_lshl_b32 s60, s52, 7")
    a("s_add_u32 s69, s69, s60")
    a("s_and_b32 s60, s59, 60")
    a("s_add_u32 s69, s69, s60")
    a(f"s_mul_i32 s69, s69, {KV_RS}")
    a(f"s_add_u32 s69, s69, {KV_OFF + 1152}")
    for n in range(9):
        a(f"v_add_u32 v4, {64*n}, v0")
        a("v_mul_u32_u24 v5, 911, v4")
        a("v_lshrrev_b32 v5, 16, v5")
        a("v_lshrrev_b32 v6, 2, v5")
        a(f"v_mul_u32_u24 v6, {60*144}, v6")
        a("v_mad_u32_u24 v6, v5, v7, v6") if False else None
        a(f"v_mul_u32_u24 v5, 72, v5")
        a("v_add3_u32 v4, v4, v5, v6")
        a(f"v_lshlrev_b32 v{20+n}, 4, v4")
    a("s_mul_i32 s60, s52, 9216")
    a("v_add_u32 v3, s60, v2")
    a("s_waitcnt lgkmcnt(0)")
    a("s_barrier")
    for n in range(9):
        a(f"ds_read_b128 {vr(32+4*n,4)}, v3 offset:{n*1024}")
    for n in range(9):
        a(f"s_waitcnt lgkmcnt({8-n})")
        a(f"buffer_store_dwordx4 {vr(32+4*n,4)}, v{20+n}, s[48:51], s69 offen{SC}")
    a.label("L_qkv_done")
    a.stamp_mid(7)
    pub(a)

def loop(a, isv, setm0, load, hint):
    def reads(sn, buf, t):
        b = SET[sn]
        X = [((sn, "x", n), f"ds_read_b128 {vr(b+4*n,4)}, v{16+2*n+t} offset:{buf*CB}") for n in range(2)]
        W = [((sn, "w", j), f"ds_read_b64_tr_b16 {vr(b+8+4*j+2*sec,2)}, v{20+j} offset:{buf*CB + t*4608 + sec*288}") for j in range(3) for sec in range(2)]
        return [X[0], W[0], W[1], X[1], W[2], W[3], W[4], W[5]]
    MF = [(0, 0), (0, 1), (1, 0), (1, 1), (2, 0)]
    def mfma(ls, sn, k, first):
        b = SET[sn]
        j, n = MF[k]
        ls.need([(sn, "x", n), (sn, "w", j)])
        w = vr(b+8+4*j, 4); x = vr(b+4*n, 4); c = vr(ACC+16*k, 16)
        A, B = (x, w) if isv else (w, x)
        a(f"v_mfma_f32_32x32x16_bf16 {c}, {A}, {B}, {'0' if first else c}")
    def body(c, first=False, kill=False, last=False):
        buf = c % 4; pb = (c - 1) % 4
        ls = LdsSched(a, [r[0] for r in reads(0, buf, 0)])
        ls.need([(0, "w", 1)])
        r = reads(1, buf, 1)
        mfma(ls, 0, 0, first)
        if not last: setm0(pb, 2)
        for x in r[0:3]: ls.read(*x)
        if not last: load(2)
        mfma(ls, 0, 1, first)
        for x in r[3:7]: ls.read(*x)
        mfma(ls, 0, 2, first)
        if not last: setm0(pb, 3)
        ls.read(*r[7])
        if not last: load(3)
        mfma(ls, 0, 3, first)
        if not last: setm0(pb, 4); load(4)
        mfma(ls, 0, 4, first)
        if kill: kill()
        if last:
            ls.drain()
            for k in range(5): mfma(ls, 1, k, False)
            return
        ls.drain()
        mfma(ls, 1, 0, False)
        a("s_waitcnt vmcnt(10)")
        a("s_barrier")
        r = reads(0, (c+1) % 4, 0)
        for x in r[0:3]: ls.read(*x)
        mfma(ls, 1, 1, False)
        for x in r[3:7]: ls.read(*x)
        mfma(ls, 1, 2, False)
        setm0(buf, 0)
        ls.read(*r[7])
        load(0)
        mfma(ls, 1, 3, False)
        setm0(buf, 1)
        mfma(ls, 1, 4, False)
        load(1)
    a("s_waitcnt vmcnt(12)")
    a("s_barrier")
    a.stamp_mid(1)
    for r in reads(0, 0, 0): a(r[1])
    body(0, first=True)
    a("s_mov_b32 s60, 4")
    L = a.newlabel("qkv")
    def kill():
        a("s_cmp_gt_u32 s60, 1")
        a("s_cselect_b32 s42, s42, 0")
        a("s_cselect_b32 s46, s46, 0")
    a.raw(".p2align 6")
    a.label(L)
    for c in range(1, 5):
        body(c, kill=kill if c == 2 else None)
    if hint: hint(a)
    a("s_sub_u32 s60, s60, 1")
    a("s_cmp_lg_u32 s60, 0")
    a(f"s_cbranch_scc1 {L}")
    body(17, last=True)
    a("v_lshlrev_b32 v2, 4, v0")
    a.stamp_mid(6)

def qk_store_main(a, j, hx, hy, rec):
    b = ACC + 16*j
    for i in range(16):
        a(f"v_mul_f32 v{b+i}, s68, v{b+i}")
    for i in range(8):
        a(f"v_cvt_pk_bf16_f32 v{b+i}, v{b+2*i}, v{b+2*i+1}")
    for half, hd in ((0, hx), (1, hy)):
        a(f"s_add_u32 s60, s{hd}, s{rec}")
        a(f"buffer_store_dwordx4 {vr(b+4*half,4)}, v2, s[48:51], s60 offen{SC}")

def qk_store_left(a, j):
    b = ACC + 16*j
    for i in range(8):
        a(f"v_mul_f32 v{b+i}, s68, v{b+i}")
    for i in range(4):
        a(f"v_cvt_pk_bf16_f32 v{b+i}, v{b+2*i}, v{b+2*i+1}")
    a("s_lshl_b32 s60, s70, 1")
    a("v_mul_lo_u32 v3, v11, s60")
    a("v_lshl_add_u32 v3, v10, 2, v3")
    for jj in range(2):
        for bb in range(2):
            a(f"s_mul_i32 s60, s70, {4*jj+bb}")
            a(f"s_add_u32 s60, s60, s69")
            a(f"buffer_store_dword v{b+2*jj+bb}, v3, s[48:51], s60 offen offset:1024{SC}")

def v_addr(a, col):
    a(f"v_mul_u32_u24 v4, 3641, {col}")
    a(f"v_lshrrev_b32 v4, 16, v4")
    a(f"v_mul_u32_u24 v5, 18, v4")
    a(f"v_sub_u32 v3, {col}, v5")
    a(f"v_mul_u32_u24 v4, {4*1152}, v4")
    a(f"v_lshl_add_u32 v3, v3, 4, v4")
    a(f"v_mul_u32_u24 v4, 288, v11")
    a(f"v_add_u32 v3, v3, v4")

def v_put(a, k, sub):
    b = ACC + 16*k
    for i in range(8):
        a(f"v_cvt_pk_bf16_f32 v{b+i}, v{b+2*i}, v{b+2*i+1}")
    a(f"v_add_u32 v6, s{sub}, v3")
    if k == 4:
        a("s_mov_b32 exec_lo, 0xffff")
        a("s_mov_b32 exec_hi, 0xffff")
    a(f"ds_write_b128 v6, {vr(b,4)}")
    a(f"ds_write_b128 v6, {vr(b+4,4)} offset:576")
    if k == 4:
        a("s_mov_b64 exec, -1")
for u in range(576):
    assert (u*911) >> 16 == u//72

RS = 1216
X0, F0 = 16, 88
XK, GK = 160, 196

def red8(a, r):
    a("s_nop 1")
    a(f"v_add_f32_dpp v{r}, v{r}, v{r} quad_perm:[1,0,3,2] row_mask:0xf bank_mask:0xf")
    a("s_nop 1")
    a(f"v_add_f32_dpp v{r}, v{r}, v{r} quad_perm:[2,3,0,1] row_mask:0xf bank_mask:0xf")
    a("s_nop 1")
    a(f"v_add_f32_dpp v{r}, v{r}, v{r} row_half_mirror row_mask:0xf bank_mask:0xf")

def rows_setup(a):
    a("v_lshrrev_b32 v2, 3, v0")
    a("v_and_b32 v3, 7, v0")
    a("s_lshl_b32 s53, s52, 3")
    a("v_add_u32 v4, s53, v2")

def rows_tail(a):
    a(f"v_mul_u32_u24 v5, {RS}, v4")
    a("v_lshl_add_u32 v5, v3, 4, v5")
    for i in range(9):
        a(f"ds_write_b128 v5, {vr(X0+4*i,4)} offset:{i*128}")
    a("s_lshr_b32 s55, s52, 1")
    a("s_and_b32 s56, s52, 1")
    a("v_lshrrev_b32 v6, 5, v0")
    a("v_bfe_u32 v7, v0, 2, 2")
    a("v_lshl_add_u32 v6, v6, 3, v7")
    a("s_lshl_b32 s60, s55, 4")
    a("v_add_u32 v6, s60, v6")
    a(f"v_mul_u32_u24 v6, {RS}, v6")
    a("v_bfe_u32 v7, v0, 4, 1")
    a("v_lshl_add_u32 v6, v7, 5, v6")
    a("v_and_b32 v7, 3, v0")
    a("v_lshl_add_u32 v6, v7, 3, v6")
    a("s_mul_i32 s60, s56, 576")
    a("v_add_u32 v6, s60, v6")
    a("s_mul_i32 s60, s52, 9216")
    a("s_add_u32 s57, s57, s60")
    a("v_lshlrev_b32 v7, 4, v0")
    a("s_waitcnt lgkmcnt(0)")
    a("s_barrier")
    for i in range(7):
        for sec in range(2):
            a(f"ds_read_b64_tr_b16 {vr(X0+4*i+2*sec,2)}, v6 offset:{sec*4*RS + i*64}")
    for i in range(9):
        a(f"s_waitcnt lgkmcnt({min(12, 2*(8-i))})")
        if i % 4 == 0 and i:
            a("s_add_u32 s57, s57, 4096")
        a(f"buffer_store_dwordx4 {vr(X0+4*i,4)}, v7, s[48:51], s57 offen offset:{(i%4)*1024}{SC}")
        if i + 7 < 9:
            for sec in range(2):
                a(f"ds_read_b64_tr_b16 {vr(X0+4*(i+7)+2*sec,2)}, v6 offset:{sec*4*RS + (i+7)*64}")

def ln_body(a, jreg, pub, pre=None):
    a.srd(40, P_X, S*D*2)
    rows_setup(a)
    a(f"s_and_b32 s58, {jreg}, 7")
    a(f"s_lshr_b32 s56, {jreg}, 3")
    a("s_lshl_b32 s58, s58, 3")
    a("s_add_u32 s58, s58, s56")
    a("s_lshl_b32 s56, s58, 5")
    a("v_add_u32 v6, s56, v4")
    a("v_mul_u32_u24 v7, 1152, v6")
    a("v_lshl_add_u32 v7, v3, 4, v7")
    for i in range(9):
        a(f"buffer_load_dwordx4 {vr(XK+4*i,4)}, v7, s[40:43], 0 offen offset:{i*128}")
    a.srd(44, P_GW, D*2)
    a("v_lshlrev_b32 v8, 4, v3")
    for i in range(9):
        a(f"buffer_load_dwordx4 {vr(GK+4*i,4)}, v8, s[44:47], 0 offen offset:{i*128}")
    a(f"s_mul_i32 s57, s58, {2*18*1024}")
    a(f"s_add_u32 s57, s57, {HT_OFF}")
    a("v_mov_b32 v8, 0")
    a("v_mov_b32 v9, 0")
    a.stamp_mid(0)
    def pk(i): return vr(F0+2*i, 2)
    for i in range(36):
        if i % 4 == 0: a(f"s_waitcnt vmcnt({17 - i//4})")
        a(f"v_lshlrev_b32 v{F0+2*i}, 16, v{XK+i}")
        a(f"v_and_b32 v{F0+2*i+1}, 0xffff0000, v{XK+i}")
        a(f"v_pk_add_f32 v[8:9], v[8:9], {pk(i)}")
    a.stamp_mid(1)
    a("v_add_f32 v8, v8, v9")
    red8(a, 8)
    a(f"v_mul_f32 v8, {f32bits(-1.0/D)}, v8")
    a("v_mov_b32 v10, 0")
    a("v_mov_b32 v9, v8")
    a("v_mov_b32 v11, 0")
    for i in range(36):
        a(f"v_pk_add_f32 {pk(i)}, {pk(i)}, v[8:9]")
    for i in range(36):
        a(f"v_pk_fma_f32 v[10:11], {pk(i)}, {pk(i)}, v[10:11]")
    a("v_add_f32 v10, v10, v11")
    red8(a, 10)
    a(f"v_mov_b32 v12, {f32bits(1e-5)}")
    a(f"v_fmac_f32 v12, {f32bits(1.0/D)}, v10")
    a("v_rsq_f32 v12, v12")
    a("s_nop 0")
    a("v_mov_b32 v13, v12")
    for i in range(36):
        a(f"v_pk_mul_f32 {pk(i)}, {pk(i)}, v[12:13]")
    for i in range(36):
        a(f"v_cvt_pk_bf16_f32 v{X0+i}, v{F0+2*i}, v{F0+2*i+1}")
    if pre: pre(a)
    rows_tail(a)
    pub(a)

def wo_body(a, jreg):
    a.srd(40, P_WO, D*D*2)
    rows_setup(a)
    a(f"s_lshl_b32 s57, {jreg}, 1")
    a("s_lshr_b32 s55, s52, 1")
    a("s_add_u32 s57, s57, s55")
    a("s_and_b32 s56, s52, 1")
    a("s_lshl_b32 s56, s56, 2")
    a("s_lshl_b32 s57, s57, 4")
    a("s_add_u32 s57, s57, s56")
    a("v_lshrrev_b32 v6, 2, v2")
    a("v_and_b32 v7, 3, v2")
    a("v_lshl_add_u32 v6, v6, 3, v7")
    a("v_add_u32 v6, s57, v6")
    a("v_mul_u32_u24 v7, 1152, v6")
    a("v_lshl_add_u32 v7, v3, 4, v7")
    for i in range(9):
        a(f"buffer_load_dwordx4 {vr(X0+4*i,4)}, v7, s[40:43], 0 offen offset:{i*128}")
    a(f"s_mul_i32 s57, {jreg}, {2*18*1024}")
    a(f"s_add_u32 s57, s57, {WOF_OFF}")
    a("s_waitcnt vmcnt(0)")
    rows_tail(a)

def gate_own(a):
    a("v_mov_b32 v8, 0")
    a("v_mov_b32 v9, 0")
    for i in range(36):
        a(f"v_lshlrev_b32 v12, 16, v{GK+i}")
        a(f"v_and_b32 v13, 0xffff0000, v{GK+i}")
        a(f"v_lshlrev_b32 v14, 16, v{XK+i}")
        a(f"v_and_b32 v15, 0xffff0000, v{XK+i}")
        a(f"v_pk_fma_f32 v[8:9], v[12:13], v[14:15], v[8:9]")
    a("v_add_f32 v8, v8, v9")
    red8(a, 8)
    a(f"v_mul_f32 v8, {f32bits(-math.log2(math.e))}, v8")
    a("v_exp_f32 v8, v8")
    a("s_lshl_b32 s56, s58, 5")
    a("v_add_f32 v8, 1.0, v8")
    a("v_rcp_f32 v8, v8")
    a("v_add_u32 v6, s56, v4")
    a("v_lshlrev_b32 v6, 2, v6")
    a(f"s_mov_b32 s57, {G_OFF}")
    a("s_mov_b32 exec_lo, 0x01010101")
    a("s_mov_b32 exec_hi, 0x01010101")
    a(f"buffer_store_dword v8, v6, s[48:51], s57 offen{SC}")
    a("s_mov_b64 exec, -1")

def xw_touch(a, greg):
    a.srd(40, P_WQKV, D*3*D*2)
    a.srd(44, P_X, S*D*2)
    a(f"s_lshr_b32 s53, {greg}, 3")
    a("s_lshl_b32 s53, s53, 2")
    a("s_add_u32 s53, s53, s52")
    a("s_lshl_b32 s54, s53, 6")
    a("v_add_u32 v5, s54, v0")
    a("v_mul_u32_u24 v6, 18725, v5")
    a("v_lshrrev_b32 v6, 18, v6")
    a("v_mul_u32_u24 v7, 13, v6")
    a("v_add_u32 v7, v7, v5")
    a(f"s_and_b32 s54, {greg}, 1")
    a("s_mul_i32 s54, s54, 13")
    a("v_add_lshl_u32 v7, v7, s54, 7")
    a(f"buffer_load_dword v60, v7, s[40:43], 0 offen{XNT}")
    L = a.newlabel("nox")
    a("s_cmp_ge_u32 s53, 72")
    a(f"s_cbranch_scc1 {L}")
    a(f"s_bfe_u32 s54, {greg}, 0x20001")
    a("s_mul_i32 s54, s54, 4608")
    a("v_add_lshl_u32 v7, v5, s54, 7")
    a(f"buffer_load_dword v61, v7, s[44:47], 0 offen{XNT}")
    a.label(L)
for n in range(8192):
    assert (n*18725) >> 18 == n//14
```

```python
from common import *
import math

MLP1_GRID = 216
for t in range(216):
    assert (t*171) >> 10 == t//6

VT, VTB, VD, VF = 1, 2, 3, 4
TB = 8
FB = 24
ACC = 64
def acc(j, i): return ACC + 16*(3*j + i)
S_T, S_F, S_TMP, S_WO, S_WB, S_RO, S_LBASE, S_CNT = 54, 57, 60, 61, 62, 63, 64, 65
YIELD = 1
TOUCH = False
EPIST = False
NEPI = 2
FSC = ' sc1'
STAG = 0
TNT = ''
DEP_FIRST = False
NS = 32
STRIDE = F*2

def mlp1_body(a, wgreg, dep, pub, sm=0, epi=None, hold=None):
    a.srd(40, P_W1, S*F*2)
    a.srd(44, P_B1, F*2)
    a(f"s_and_b32 s66, {wgreg}, 7")
    a("s_mul_i32 s66, s66, 27")
    a(f"s_lshr_b32 s67, {wgreg}, 3")
    a("s_add_u32 s67, s67, s66")
    a("s_mul_i32 s66, s67, 171")
    a("s_lshr_b32 s66, s66, 10")
    a("s_mul_i32 s68, s66, 6")
    a("s_sub_u32 s67, s67, s68")
    a(f"s_mul_i32 s{S_T}, s52, {512*STRIDE}")
    a(f"s_lshl_b32 s70, s66, 8")
    a(f"s_add_u32 s{S_T}, s{S_T}, s70")
    a(f"s_mov_b32 s55, s{S_T}")
    a(f"s_mul_i32 s{S_F}, s52, {32*18*1024}")
    a(f"s_mul_i32 s70, s67, 3072")
    a(f"s_add_u32 s{S_F}, s{S_F}, s70")
    a(f"s_add_u32 s{S_F}, s{S_F}, {HT_OFF}")
    a(f"v_lshrrev_b32 v5, 4, v0")
    a(f"v_add_u32 v5, s52, v5")
    a(f"v_and_b32 v5, 3, v5")
    a(f"v_and_b32 v6, 3, v0")
    a(f"v_lshlrev_b32 v6, 4, v6")
    a(f"v_lshl_add_u32 v5, v5, 6, v6")
    a(f"v_bfe_u32 v6, v0, 2, 2")
    a(f"v_mul_u32_u24 v6, {STRIDE}, v6")
    a(f"v_add_u32 v{VD}, v5, v6")
    a(f"v_lshlrev_b32 v{VF}, 4, v0")
    a(f"s_lshl_b32 s{S_LBASE}, s52, 14")
    a(f"s_mov_b32 s{S_WO}, 0")
    a(f"s_mov_b32 s{S_WB}, s{S_LBASE}")
    a(f"s_mov_b32 s{S_RO}, 0")

    ops = []
    place = [("F",0,0),("F",1,0),("F",2,1),("D",0,1),("D",1,2),("D",2,2),("D",3,3)]
    for t in range(-3, NS):
        for kind, i, g in place:
            ds = t + 2 if kind == "F" else t + 3
            if 0 <= ds < NS:
                ops.append((kind, ds, i, t, g))
    def need(kind, ds, t, g):
        last = max(n for n, o in enumerate(ops) if o[0] == kind and o[1] == ds)
        return sum(1 for n, o in enumerate(ops) if n > last and (o[3], o[4]) < (t, g))
    def issue(kind, ds, i):
        if kind == "F":
            a(f"buffer_load_dwordx4 {vr(FB + 12*(ds%3) + 4*i, 4)}, v{VF}, s[48:51], s{S_F} offen offset:{i*1024}{FSC}")
            if i == 2:
                a(f"s_add_u32 s{S_F}, s{S_F}, {18*1024}")
                if STAG:
                    a(f"s_cmp_eq_u32 s{S_F}, s59")
                    a(f"s_cselect_b32 s{S_F}, s58, s{S_F}")
        else:
            a(f"s_add_u32 m0, s{S_WB}, {i*1024}")
            a(f"s_add_u32 s{S_T}, s{S_T}, {4*STRIDE}")
            a(f"buffer_load_dwordx4 v{VD}, s[40:43], s{S_T} offen{TNT} lds")
            if i == 3:
                if STAG:
                    a(f"s_cmp_eq_u32 s{S_T}, s56")
                    a(f"s_cselect_b32 s{S_T}, s55, s{S_T}")
                a(f"s_add_u32 s{S_WO}, s{S_WO}, 4096")
                a(f"s_and_b32 s{S_WO}, s{S_WO}, 0x3fff")
                a(f"s_add_u32 s{S_WB}, s{S_WO}, s{S_LBASE}")
    def tread(j, sec):
        a(f"ds_read_b64_tr_b16 {vr(TB + 4*j + 2*sec, 2)}, v{VT} offset:{j*256 + sec*1024}")
    def mfma(t, j, i):
        T = vr(TB + 4*j, 4); Fr = vr(FB + 12*(t%3) + 4*i, 4); c = vr(acc(j, i), 16)
        n = 3*j + i
        if YIELD > 1:
            if n % YIELD == 0: a("s_setprio 0")
            if n % YIELD == 1: a("s_setprio 2")
        c0 = vr(acc(3, 2), 16) if j == 0 else "0"
        a(f"v_mfma_f32_32x32x16_bf16 {c}, {T}, {Fr}, {c if t > 0 else c0}")
    def step(t):
        for g in range(4):
            mine = [o for o in ops if o[3] == t and o[4] == g]
            last = (t == NS-1)
            if g == 0:
                a(f"s_waitcnt vmcnt({need('F', t, t, 0)}) lgkmcnt(2)")
            elif g == 2 and not last:
                a(f"s_waitcnt vmcnt({need('D', t+1, t, 2)}) lgkmcnt(2)")
                a(f"s_add_u32 s{S_RO}, s{S_RO}, 4096")
                a(f"s_and_b32 s{S_RO}, s{S_RO}, 0x3fff")
                a(f"v_add_u32 v{VT}, s{S_RO}, v{VTB}")
            else:
                a(f"s_waitcnt lgkmcnt({0 if (last and g == 3) else 2})")
            rd = not (last and g >= 2)
            mfma(t, g, 0)
            if rd: tread((g+2) % 4, 0)
            if mine: issue(*mine[0][:3])
            mfma(t, g, 1)
            if rd: tread((g+2) % 4, 1)
            if len(mine) > 1: issue(*mine[1][:3])
            mfma(t, g, 2)
    a(f"s_sub_u32 s{S_T}, s{S_T}, {4*STRIDE}")
    if STAG:
        a(f"s_mov_b32 s55, s{S_T}")
        a(f"s_add_u32 s56, s55, {512*STRIDE}")
        a(f"s_mov_b32 s58, s{S_F}")
        a(f"s_add_u32 s59, s58, {32*18*1024}")
        if STAG == 1:
            a("s_mul_i32 s70, s67, 5")
        else:
            a(f"s_lshr_b32 s70, {wgreg}, 3")
            a("s_mul_i32 s70, s70, 5")
            a("s_and_b32 s70, s70, 31")
        a(f"s_mul_i32 s71, s70, {16*STRIDE}")
        a(f"s_add_u32 s{S_T}, s{S_T}, s71")
        a(f"s_mul_i32 s71, s70, {18*1024}")
        a(f"s_add_u32 s{S_F}, s{S_F}, s71")
    a("s_lshl_b32 s69, s66, 2")
    a("s_add_u32 s69, s69, s52")
    a("s_lshl_b32 s71, s69, 6")
    a("v_lshrrev_b32 v5, 5, v0")
    a("v_lshlrev_b32 v5, 3, v5")
    for jj in range(4):
        a(f"buffer_load_dwordx2 {vr(acc(3,1)+2*jj,2)}, v5, s[44:47], s71 offen offset:{jj*16}")
    if DEP_FIRST: dep(a)
    for o in ops:
        if o[3] < 0 and o[0] == "D":
            issue(*o[:3])
    a(f"v_lshrrev_b32 v5, 5, v0")
    a(f"v_lshlrev_b32 v5, 11, v5")
    a(f"v_bfe_u32 v6, v0, 2, 2")
    a(f"v_lshl_add_u32 v5, v6, 6, v5")
    a(f"v_bfe_u32 v6, v0, 4, 1")
    a(f"v_lshl_add_u32 v5, v6, 5, v5")
    a(f"v_and_b32 v6, 3, v0")
    a(f"v_lshl_add_u32 v5, v6, 3, v5")
    a(f"v_add_u32 v{VTB}, s{S_LBASE}, v5")
    a(f"v_mov_b32 v{VT}, v{VTB}")
    if TOUCH:
        a(f"v_lshrrev_b32 v5, 1, v0")
        a(f"v_mul_u32_u24 v5, {STRIDE}, v5")
        a(f"v_and_b32 v6, 1, v0")
        a(f"v_lshl_add_u32 v5, v6, 7, v5")
        a(f"s_add_u32 s70, s67, 1")
        a(f"s_mul_i32 s70, s70, {32*STRIDE}")
        a(f"s_add_u32 s70, s70, s55")
        a(f"buffer_load_dword v60, v5, s[40:43], s70 offen")
    if not DEP_FIRST: dep(a)
    for o in ops:
        if o[3] < 0 and o[0] == "F":
            issue(*o[:3])
    a("s_waitcnt vmcnt(6)")
    for j in range(2):
        tread(j, 0); tread(j, 1)
    for p in range(8):
        a(f"v_lshlrev_b32 v{acc(3,2)+2*p}, 16, v{acc(3,1)+p}")
        a(f"v_and_b32 v{acc(3,2)+2*p+1}, 0xffff0000, v{acc(3,1)+p}")
    a("s_waitcnt vmcnt(0)")
    a.stamp_mid(6)
    if hold: hold(a)
    a(f"s_setprio {0 if YIELD else 2}")
    a.stamp_mid(sm)
    step(0)
    nloop = (NS - 4)//3
    for t in range(1, 1 + 3*nloop):
        assert need('F', t, t, 0) == 11 and need('D', t+1, t, 2) == 11
    a(f"s_mov_b32 s{S_CNT}, {nloop}")
    a.raw(".p2align 6")
    a.label(f"L_mlp1_loop")
    for t in range(1, 4):
        step(t)
    if a.stamp and False:
        for cnt, slot in ((7, 6), (4, 7)):
            Ls = a.newlabel("st")
            a(f"s_cmp_lg_u32 s{S_CNT}, {cnt}")
            a(f"s_cbranch_scc1 {Ls}")
            a.stamp_mid(slot)
            a.label(Ls)
    a(f"s_sub_u32 s{S_CNT}, s{S_CNT}, 1")
    a(f"s_cmp_lg_u32 s{S_CNT}, 0")
    a(f"s_cbranch_scc1 L_mlp1_loop")
    for t in range(1 + 3*nloop, NS):
        step(t)
    a("s_setprio 2")
    a.stamp_mid(sm+1)
    if epi: epi(a)
    for rho in range(1, 4):
        a(f"s_add_u32 s72, s52, {rho}")
        a(f"s_and_b32 s72, s72, 3")
        a(f"s_mul_i32 s72, s72, 12288")
        a(f"s_add_u32 s72, s72, {(rho-1)*4096}")
        a(f"v_add_u32 v{rho}, s72, v{VF}")
    a(f"s_mul_i32 s72, s52, 12288")
    a(f"v_add_u32 v6, s72, v{VF}")
    c0 = -2.0*math.sqrt(2.0/math.pi)*math.log2(math.e)
    a(f"v_mov_b32 v40, {f32bits(c0*0.044715)}")
    a(f"v_mov_b32 v41, {f32bits(c0*0.044715)}")
    a(f"v_mov_b32 v42, {f32bits(c0)}")
    a(f"v_mov_b32 v43, {f32bits(c0)}")
    a(f"v_mov_b32 v44, 1.0")
    a(f"v_mov_b32 v45, 1.0")
    a(f"s_mul_i32 s71, s69, {2*18*1024}")
    a(f"s_mul_i32 s73, s67, 3072")
    a(f"s_add_u32 s71, s71, s73")
    a(f"s_add_u32 s71, s71, {U_OFF}")
    a(f"s_add_u32 s73, s71, {18*1024}")
    P = lambda r: vr(r, 2)
    T1 = 8
    def gelu(i):
        b = acc(0, i); L = []
        for e in range(16): L.append(f"v_mul_f32 v{T1+e}, v{b+e}, v{b+e}")
        for e in range(16): L.append(f"v_fma_f32 v{T1+e}, v{T1+e}, v40, v42")
        for e in range(16): L.append(f"v_mul_f32 v{T1+e}, v{T1+e}, v{b+e}")
        for e in range(16): L.append(f"v_exp_f32 v{T1+e}, v{T1+e}")
        for e in range(16): L.append(f"v_add_f32 v{T1+e}, 1.0, v{T1+e}")
        for e in range(16): L.append(f"v_rcp_f32 v{T1+e}, v{T1+e}")
        for e in range(16): L.append(f"v_mul_f32 v{b+e}, v{b+e}, v{T1+e}")
        for e in range(8):  L.append(f"v_cvt_pk_bf16_f32 v{b+e}, v{b+2*e}, v{b+2*e+1}")
        L.append(f"buffer_store_dwordx4 {vr(b,4)}, v{VF}, s[48:51], s71 offen offset:{i*1024} sc1")
        L.append(f"buffer_store_dwordx4 {vr(b+4,4)}, v{VF}, s[48:51], s73 offen offset:{i*1024} sc1")
        return L
    a("s_barrier")
    if EPIST: a.stamp_mid(0)
    pend = []
    for i in range(3):
        W = [f"ds_write_b128 v{rho}, {vr(acc(rho,i)+4*q,4)} offset:{q*1024}" for rho in range(1, 4) for q in range(4)]
        for w in W:
            a(w)
            for x in pend[:8]: a(x)
            pend = pend[8:]
        a("s_waitcnt lgkmcnt(0)")
        a("s_barrier")
        for rho in range(1, 4):
            for q in range(4):
                a(f"ds_read_b128 {vr(acc(rho,i)+4*q,4)}, v6 offset:{(rho-1)*4096+q*1024}")
        for x in pend: a(x)
        for rho in range(1, 4):
            a(f"s_waitcnt lgkmcnt({4*(3-rho)})")
            if rho == 3 and i < 2: a("s_barrier")
            for e in range(16):
                a(f"v_add_f32 v{acc(0,i)+e}, v{acc(0,i)+e}, v{acc(rho,i)+e}")
        pend = gelu(i)
        if EPIST and i == 0: a.stamp_mid(5)
    for x in pend: a(x)
    if EPIST: a.stamp_mid(6)
    pub(a)
```

```python
from common import *
import math

MLP1_GRID = 216
for t in range(216):
    assert (t*171) >> 10 == t//6

VF = [1, 2]; VT = [3, 4]
VDT, VDT2, VDF = 5, 6, 7
SET = [16, 48]
ACC = 80
BIAS = 128
S_T, S_F, S_CNT = 54, 55, 58
STAGE = 14336
NB = 5
NST = 64
STRIDE = F*2
YIELD = 1
EPIST = False
HOLD_FIRST = True

def mlp1_body(a, wgreg, dep, pub, sm=0, epi=None, hold=None):
    a.srd(40, P_W1, S*F*2)
    a.srd(44, P_B1, F*2)
    a(f"s_and_b32 s66, {wgreg}, 7")
    a("s_mul_i32 s66, s66, 27")
    a(f"s_lshr_b32 s67, {wgreg}, 3")
    a("s_add_u32 s67, s67, s66")
    a("s_mul_i32 s66, s67, 171")
    a("s_lshr_b32 s66, s66, 10")
    a("s_mul_i32 s68, s66, 6")
    a("s_sub_u32 s67, s67, s68")
    a(f"s_mul_i32 s{S_T}, s52, {8*STRIDE}")
    a("s_lshl_b32 s70, s66, 8")
    a(f"s_add_u32 s{S_T}, s{S_T}, s70")
    a("s_lshr_b32 s70, s52, 1")
    a(f"s_mul_i32 s{S_F}, s70, {18*1024}")
    a("s_and_b32 s70, s52, 1")
    a("s_mul_i32 s70, s70, 1536")
    a(f"s_add_u32 s{S_F}, s{S_F}, s70")
    a("s_mul_i32 s70, s67, 3072")
    a(f"s_add_u32 s{S_F}, s{S_F}, s70")
    a(f"s_add_u32 s{S_F}, s{S_F}, {HT_OFF}")
    a("s_lshl_b32 s60, s52, 11")
    a("s_mul_i32 s61, s52, 1536")
    a("s_add_u32 s61, s61, 8192")
    a(f"s_mov_b32 s62, {32*STRIDE}")
    a(f"s_mov_b32 s63, {2*18*1024}")
    a("v_lshrrev_b32 v8, 4, v0")
    a("v_and_b32 v9, 3, v0")
    a("v_lshlrev_b32 v9, 4, v9")
    a("v_lshl_add_u32 v8, v8, 6, v9")
    a("v_bfe_u32 v9, v0, 2, 2")
    a(f"v_mul_u32_u24 v10, {STRIDE}, v9")
    a(f"v_add_u32 v{VDT}, v10, v8")
    a(f"v_add_u32 v{VDT2}, {4*STRIDE}, v{VDT}")
    a(f"v_lshlrev_b32 v{VDF}, 4, v0")
    def m0t(buf, i): a(f"s_add_u32 m0, s60, {buf*STAGE + i*1024}")
    def m0f(buf): a(f"s_add_u32 m0, s61, {buf*STAGE}")
    def ldt(i):
        a(f"buffer_load_dwordx4 v{VDT2 if i else VDT}, s[40:43], s{S_T} offen lds")
        if i: a(f"s_add_u32 s{S_T}, s{S_T}, s62")
    def ldf(i):
        if i: a("s_mov_b32 exec_hi, 0")
        a(f"buffer_load_dwordx4 v{VDF}, s[48:51], s{S_F} offen offset:{i*1024} sc1 lds")
        if i:
            a("s_mov_b32 exec_hi, -1")
            a(f"s_add_u32 s{S_F}, s{S_F}, s63")
    a("s_lshl_b32 s69, s66, 2")
    a("s_add_u32 s69, s69, s52")
    a("s_lshl_b32 s71, s69, 6")
    a("v_lshrrev_b32 v10, 5, v0")
    a("v_lshlrev_b32 v11, 3, v10")
    for jj in range(4):
        a(f"buffer_load_dwordx2 {vr(BIAS+16+2*jj,2)}, v11, s[44:47], s71 offen offset:{jj*16}")
    if hold and HOLD_FIRST:
        dep(a); hold(a)
    for st in range(NB):
        for i in range(2):
            m0t(st, i); a("s_nop 0"); ldt(i)
    a("v_lshlrev_b32 v8, 11, v10")
    a("v_lshl_add_u32 v8, v9, 6, v8")
    a("v_bfe_u32 v9, v0, 4, 1")
    a("v_lshl_add_u32 v8, v9, 5, v8")
    a("v_and_b32 v9, 3, v0")
    a("v_lshl_add_u32 v8, v9, 3, v8")
    a("s_lshl_b32 s70, s52, 8")
    a(f"v_add_u32 v{VT[0]}, s70, v8")
    a(f"v_add_u32 v{VT[1]}, {3*STAGE}, v{VT[0]}")
    a(f"v_add_u32 v{VF[0]}, 0x2000, v{VDF}")
    a(f"v_add_u32 v{VF[1]}, {3*STAGE}, v{VF[0]}")
    if not (hold and HOLD_FIRST): dep(a)
    a("s_barrier")
    for st in range(NB):
        m0f(st); a("s_nop 0")
        ldf(0); ldf(1)
    def reads(c):
        buf = c % NB; hi = 1 if buf >= 3 else 0; o = (buf - 3*hi)*STAGE
        L = []
        for step in range(2):
            b = SET[c & 1] + 16*step
            for sec in range(2):
                L.append(f"ds_read_b64_tr_b16 {vr(b+2*sec,2)}, v{VT[hi]} offset:{o + step*4096 + sec*1024}")
            for i in range(3):
                L.append(f"ds_read_b128 {vr(b+4+4*i,4)}, v{VF[hi]} offset:{o + step*3072 + i*1024}")
        return L
    def mfma(c, k):
        step, i = divmod(k, 3)
        b = SET[c & 1] + 16*step
        if YIELD > 1:
            if k % YIELD == 0: a("s_setprio 0")
            if k % YIELD == 1: a("s_setprio 2")
        elif YIELD < 0:
            if k % -YIELD == 0: a("s_setprio 0")
            if k % -YIELD == -YIELD - 1: a("s_setprio 2")
        d = vr(ACC + 16*i, 16)
        cin = vr(BIAS, 16) if (c == 0 and step == 0) else d
        a(f"v_mfma_f32_32x32x16_bf16 {d}, {vr(b,4)}, {vr(b+4+4*i,4)}, {cin}")
    def body(c, vm):
        buf = c % NB
        ld = c + NB < NST
        r = reads(c+1) if c + 1 < NST else []
        if c + 1 < NST:
            a(f"s_waitcnt vmcnt({vm}) lgkmcnt(0)")
            a("s_barrier")
        else:
            a("s_waitcnt lgkmcnt(0)")
        mfma(c, 0)
        if ld: m0t(buf, 0)
        for x in r[0:3]: a(x)
        if ld: ldt(0)
        mfma(c, 1)
        if ld: m0t(buf, 1)
        for x in r[3:6]: a(x)
        mfma(c, 2)
        if ld: ldt(1)
        for x in r[6:8]: a(x)
        mfma(c, 3)
        if ld: m0f(buf)
        for x in r[8:10]: a(x)
        if ld: ldf(0)
        mfma(c, 4)
        if ld: ldf(1)
        mfma(c, 5)
    def vm_of(c):
        order = [("T", s_) for s_ in range(NB) for _ in range(2)] + [("F", s_) for s_ in range(NB) for _ in range(2)]
        for b in range(c):
            if b + NB < NST: order += [("X", b + NB)]*4
        last = max(n for n, o in enumerate(order) if o[1] == c + 1)
        return len(order) - 1 - last
    a(f"s_waitcnt vmcnt({2*(NB-1)})")
    a("s_barrier")
    for x in reads(0): a(x)
    for p in range(8):
        a(f"v_lshlrev_b32 v{BIAS+2*p}, 16, v{BIAS+16+p}")
        a(f"v_and_b32 v{BIAS+2*p+1}, 0xffff0000, v{BIAS+16+p}")
    a.stamp_mid(6)
    if hold and not HOLD_FIRST: hold(a)
    a("s_setprio 0")
    a.stamp_mid(sm)
    P0 = 4
    for c in range(P0): body(c, vm_of(c))
    nl = (NST - NB - P0)//10
    for c in range(P0, P0 + 10*nl): assert vm_of(c) == 12
    a(f"s_mov_b32 s{S_CNT}, {nl}")
    a.raw(".p2align 6")
    a.label("L_mlp1_loop")
    for c in range(P0, P0 + 10): body(c, 12)
    a(f"s_sub_u32 s{S_CNT}, s{S_CNT}, 1")
    a(f"s_cmp_lg_u32 s{S_CNT}, 0")
    a("s_cbranch_scc1 L_mlp1_loop")
    for c in range(P0 + 10*nl, NST): body(c, vm_of(c) if c + 1 < NST else 0)
    a("s_setprio 2")
    a.stamp_mid(sm+1)
    if epi: epi(a)
    c0 = -2.0*math.sqrt(2.0/math.pi)*math.log2(math.e)
    a(f"v_mov_b32 v8, {f32bits(c0*0.044715)}")
    a(f"v_mov_b32 v9, {f32bits(c0)}")
    a(f"s_mul_i32 s71, s69, {2*18*1024}")
    a(f"s_mul_i32 s73, s67, 3072")
    a(f"s_add_u32 s71, s71, s73")
    a(f"s_add_u32 s71, s71, {U_OFF}")
    a(f"s_add_u32 s73, s71, {18*1024}")
    a("s_nop 3")
    T1 = 16
    for i in range(3):
        b = ACC + 16*i
        for e in range(16): a(f"v_mul_f32 v{T1+e}, v{b+e}, v{b+e}")
        for e in range(16): a(f"v_fma_f32 v{T1+e}, v{T1+e}, v8, v9")
        for e in range(16): a(f"v_mul_f32 v{T1+e}, v{T1+e}, v{b+e}")
        for e in range(16): a(f"v_exp_f32 v{T1+e}, v{T1+e}")
        for e in range(16): a(f"v_add_f32 v{T1+e}, 1.0, v{T1+e}")
        for e in range(16): a(f"v_rcp_f32 v{T1+e}, v{T1+e}")
        for e in range(16): a(f"v_mul_f32 v{b+e}, v{b+e}, v{T1+e}")
        for e in range(8):  a(f"v_cvt_pk_bf16_f32 v{b+e}, v{b+2*e}, v{b+2*e+1}")
        a(f"buffer_store_dwordx4 {vr(b,4)}, v{VDF}, s[48:51], s71 offen offset:{i*1024} sc1")
        a(f"buffer_store_dwordx4 {vr(b+4,4)}, v{VDF}, s[48:51], s73 offen offset:{i*1024} sc1")
    pub(a)
```

```python
from common import *

MLP2_GRID = 240
for n in range(30):
    assert (n*86) >> 8 == n//3

VF = [1, 2]; VT = [3, 4]
VDT, VDT2, VDF = 5, 6, 7
FR = [8, 28]
ACC = 64
TP = 160
def acc(i, n): return ACC + 16*(2*i + n)
S_T, S_F, S_CNT = 54, 55, 58
STAGE = 20480
NST = 29
YIELD = 1
P0 = (0, 4, 8, 11, 14)
PC = (4, 4, 3, 3, 4)

def mlp2_body(a, wgreg, sm, dep, dep_o, ybox, post=None):
    a.srd(40, P_W2, S*F*2)
    a.srd(44, P_WS, WS_SIZE)
    a(f"s_lshr_b32 s67, {wgreg}, 3")
    a("s_mul_i32 s66, s67, 86")
    a("s_lshr_b32 s66, s66, 8")
    a("s_mul_i32 s68, s66, 3")
    a("s_sub_u32 s67, s67, s68")
    a(f"s_and_b32 s68, {wgreg}, 7")
    a("s_mul_i32 s68, s68, 10")
    a("s_add_u32 s66, s66, s68")
    a("s_lshr_b32 s69, s66, 4")
    a("s_and_b32 s66, s66, 15")
    a("s_lshl_b32 s70, s69, 2")
    a(f"s_lshr_b32 s53, {sum(c << (4*i) for i, c in enumerate(PC))}, s70")
    a("s_and_b32 s53, s53, 15")
    a(f"s_lshr_b32 s65, {sum(c << (4*i) for i, c in enumerate(P0))}, s70")
    a("s_and_b32 s65, s65, 15")
    a("s_and_b32 s71, s52, 1")
    a("s_lshr_b32 s72, s52, 1")
    a("s_lshl_b32 s56, s66, 8")
    a("s_lshl_b32 s70, s52, 15")
    a("s_add_u32 s56, s56, s70")
    a("s_mul_i32 s57, s67, 6144")
    a(f"s_mul_i32 s70, s72, {18*1024}")
    a("s_add_u32 s57, s57, s70")
    a("s_mul_i32 s70, s71, 3072")
    a("s_add_u32 s57, s57, s70")
    a(f"s_mul_i32 s{S_T}, s69, {928*4096}")
    a(f"s_add_u32 s{S_T}, s{S_T}, s56")
    a(f"s_mul_i32 s{S_F}, s69, {58*18*1024}")
    a(f"s_add_u32 s{S_F}, s{S_F}, s57")
    a(f"s_add_u32 s{S_F}, s{S_F}, {U_OFF}")
    a("s_lshl_b32 s60, s52, 11")
    a("s_mul_i32 s61, s52, 3072")
    a("s_add_u32 s61, s61, 8192")
    a(f"s_mov_b32 s62, {32*4096}")
    a(f"s_mov_b32 s63, {2*18*1024}")
    a(f"v_lshrrev_b32 v8, 4, v0")
    a(f"v_and_b32 v9, 3, v0")
    a(f"v_lshlrev_b32 v9, 4, v9")
    a(f"v_lshl_add_u32 v8, v8, 6, v9")
    a(f"v_bfe_u32 v9, v0, 2, 2")
    a(f"v_lshl_add_u32 v{VDT}, v9, 12, v8")
    a(f"v_add_u32 v{VDT2}, {4*4096}, v{VDT}")
    a(f"v_lshlrev_b32 v{VDF}, 4, v0")
    def m0t(buf, i): a(f"s_add_u32 m0, s60, {buf*STAGE + i*1024}")
    def m0f(buf): a(f"s_add_u32 m0, s61, {buf*STAGE}")
    def ldt(i, st=S_T):
        a(f"buffer_load_dwordx4 v{VDT2 if i else VDT}, s[40:43], s{st} offen sc1 lds")
        if i: a(f"s_add_u32 s{st}, s{st}, s62")
    def ldf(i):
        a(f"buffer_load_dwordx4 v{VDF}, s[44:47], s{S_F} offen offset:{i*1024} sc1 lds")
        if i == 2: a(f"s_add_u32 s{S_F}, s{S_F}, s63")
    for st in range(4):
        for i in range(2):
            m0t(st, i); a("s_nop 0"); ldt(i)
    a(f"v_lshrrev_b32 v8, 5, v0")
    a(f"v_lshlrev_b32 v8, 10, v8")
    a(f"v_lshl_add_u32 v8, v9, 6, v8")
    a(f"v_bfe_u32 v9, v0, 4, 1")
    a(f"v_lshl_add_u32 v8, v9, 5, v8")
    a(f"v_and_b32 v9, 3, v0")
    a(f"v_lshl_add_u32 v8, v9, 3, v8")
    a("s_lshl_b32 s70, s72, 9")
    a(f"v_add_u32 v{VT[0]}, s70, v8")
    a(f"v_add_u32 v{VT[1]}, {2*STAGE}, v{VT[0]}")
    a("s_mul_i32 s70, s71, 3072")
    a("s_add_u32 s70, s70, 8192")
    a(f"v_add_u32 v{VF[0]}, s70, v{VDF}")
    a(f"v_add_u32 v{VF[1]}, {2*STAGE}, v{VF[0]}")
    dep(a)
    for st in range(3):
        m0f(st); a("s_nop 0")
        for i in range(3): ldf(i)
    def rdF(dst, buf, step, i):
        return f"ds_read_b128 {vr(dst,4)}, v{VF[buf>>1]} offset:{(buf&1)*STAGE + step*6144 + i*1024}"
    def rdT(dst, buf, step, n, sec):
        return f"ds_read_b64_tr_b16 {vr(dst,2)}, v{VT[buf>>1]} offset:{(buf&1)*STAGE + step*4096 + sec*2048 + n*256}"
    def reads(sn, buf, step):
        b = FR[sn]
        Fr = [((sn, "F", i), rdF(b+4*i, buf, step, i)) for i in range(3)]
        T = [((sn, "T", n), rdT(b+12+4*n+2*sec, buf, step, n, sec)) for n in range(2) for sec in range(2)]
        return [Fr[0], T[0], T[1], T[2], T[3], Fr[1], Fr[2]]
    def mfma(ls, sn, k, first):
        b = FR[sn]
        i, n = k >> 1, k & 1
        ls.need([(sn, "F", i), (sn, "T", n)])
        if YIELD > 1:
            if k % YIELD == 0: a("s_setprio 0")
            if k % YIELD == 1: a("s_setprio 2")
        elif YIELD < 0:
            if k % -YIELD == 0: a("s_setprio 0")
            if k % -YIELD == -YIELD - 1: a("s_setprio 2")
        c = vr(acc(i, n), 16)
        a(f"v_mfma_f32_32x32x16_bf16 {c}, {vr(b+4*i,4)}, {vr(b+12+4*n,4)}, {'0' if first else c}")
    def body(c, vm=10, mid=None):
        buf = c % 4; pb = (c - 1) % 4; last = (c == NST - 1)
        ls = LdsSched(a, [r[0] for r in reads(0, buf, 0)])
        ls.drain()
        r = reads(1, buf, 1)
        mfma(ls, 0, 0, c == 0)
        m0f(pb)
        for x in r[0:3]: ls.read(*x)
        ldf(0)
        mfma(ls, 0, 1, c == 0)
        for x in r[3:7]: ls.read(*x)
        mfma(ls, 0, 2, c == 0)
        ldf(1)
        mfma(ls, 0, 3, c == 0)
        mfma(ls, 0, 4, c == 0)
        ldf(2)
        mfma(ls, 0, 5, c == 0)
        if mid: mid()
        ls.drain()
        mfma(ls, 1, 0, False)
        a(f"s_waitcnt vmcnt({vm})")
        a("s_barrier")
        r = [] if last else reads(0, (c+1) % 4, 0)
        m0t(buf, 0)
        for x in r[0:3]: ls.read(*x)
        mfma(ls, 1, 1, False)
        for x in r[3:7]: ls.read(*x)
        mfma(ls, 1, 2, False)
        ldt(0)
        mfma(ls, 1, 3, False)
        m0t(buf, 1)
        mfma(ls, 1, 4, False)
        ldt(1)
        if last: m0f(buf)
        mfma(ls, 1, 5, False)
        if last:
            for i in range(3): ldf(i)
    if post:
        post(a)
    x = 1 if post else 0
    a(f"s_waitcnt vmcnt({6+x})")
    a("s_barrier")
    for r in reads(0, 0, 0): a(r[1])
    a("s_setprio 0")
    a.stamp_mid(sm)
    body(0, 6+x)
    body(1, 8+x)
    a(f"s_mov_b32 s{S_CNT}, 5")
    L = a.newlabel("mlp2")
    a.raw(".p2align 6")
    a.label(L)
    for c in range(2, 6): body(c)
    a(f"s_sub_u32 s{S_CNT}, s{S_CNT}, 1")
    a(f"s_cmp_lg_u32 s{S_CNT}, 0")
    a(f"s_cbranch_scc1 {L}")
    body(22, mid=lambda: dep_o(a, False)); body(23)
    def kill28():
        a("s_cmp_eq_u32 s69, 4")
        a("s_cselect_b32 s42, 0, s42")
        a("s_cselect_b32 s46, 0, s46")
    body(24, mid=kill28)
    def switch():
        dep_o(a, "look")
        a.srd(40, P_WS, WS_SIZE)
        a(f"s_mov_b32 s46, {WS_SIZE}")
        a("s_cmp_lg_u32 s79, 0")
        a("s_cselect_b32 s42, s42, 0")
        a(f"s_lshl_b32 s{S_T}, s65, 17")
        a(f"s_add_u32 s{S_T}, s{S_T}, s56")
        a(f"s_add_u32 s{S_T}, s{S_T}, {O_OFF}")
        a(f"s_mov_b32 s78, s{S_T}")
        a(f"s_mul_i32 s{S_F}, s65, s63")
        a(f"s_add_u32 s{S_F}, s{S_F}, s57")
        a(f"s_add_u32 s{S_F}, s{S_F}, {WOF_OFF}")
        a("s_lshl_b32 s70, s66, 1")
        a("s_add_u32 s70, s70, s72")
        a("s_lshl_b32 s70, s70, 6")
        a("v_and_b32 v48, 31, v0")
        a("v_add_u32 v48, s70, v48")
        a("v_lshlrev_b32 v49, 2, v48")
        a("v_lshlrev_b32 v48, 1, v48")
        a(f"s_mov_b32 s70, {G_OFF}")
        a.srd(80, P_B2, S*2)
        a("s_cmp_eq_u32 s69, 0")
        a("s_cselect_b32 s82, s82, 0")
        a("buffer_load_dword v50, v49, s[48:51], s70 offen sc1")
        a("buffer_load_dword v51, v49, s[48:51], s70 offen offset:128 sc1")
        a("buffer_load_ushort v52, v48, s[80:83], 0 offen")
        a("buffer_load_ushort v53, v48, s[80:83], 0 offen offset:64")
    body(25, mid=switch)
    body(26); body(27)
    def kill_p3():
        a("s_cmp_lt_u32 s53, 4")
        a("s_cselect_b32 s42, 0, s42")
        a("s_cselect_b32 s46, 0, s46")
    body(28, mid=kill_p3)
    a.stamp_mid(7)
    a("s_setprio 2")
    Lgo = a.newlabel("go")
    a("s_cmp_lg_u32 s79, 0")
    a(f"s_cbranch_scc1 {Lgo}")
    dep_o(a, True)
    a(f"s_mov_b32 s42, {WS_SIZE}")
    for j in range(4):
        if j == 3:
            a("s_cmp_lt_u32 s53, 4")
            a("s_cselect_b32 s42, 0, s42")
        for i in range(2):
            m0t((NST + j) % 4, i); a("s_nop 0"); ldt(i, 78)
    a.label(Lgo)
    for n in range(2):
        a(f"v_sub_f32 v{50+n}, 1.0, v{50+n}")
        a(f"v_lshlrev_b32 v{52+n}, 16, v{52+n}")
        a(f"v_mul_f32 v{52+n}, v{52+n}, v{50+n}")
    a(f"s_mul_i32 s73, s69, {YPB_SZ}")
    a("s_lshl_b32 s70, s67, 1")
    a("s_add_u32 s70, s70, s71")
    a(f"s_mul_i32 s70, s70, {3*64*2048}")
    a("s_add_u32 s73, s73, s70")
    a("s_lshl_b32 s70, s66, 1")
    a("s_add_u32 s70, s70, s72")
    a("s_lshl_b32 s70, s70, 12")
    a("s_add_u32 s73, s73, s70")
    a(f"s_add_u32 s73, s73, {YP_OFF}")
    ybox(a)
    a("v_mov_b32 v54, 0")
    a("v_mov_b32 v55, 1")
    for i in range(3):
        for n in range(2):
            for e in range(16):
                r = acc(i, n) + e
                a(f"v_fma_f32 v{r}, v{r}, v{50+n}, v{52+n}")
    a("s_waitcnt vmcnt(0)")
    a("s_barrier")
    ls = LdsSched(a)
    def prd(k): return ((NST + (k >> 1)) % 4, k & 1)
    def fread(i, k): ls.read(("F", i, k), rdF(8 + 4*k, *prd(k), i))
    def tread(k):
        for n in range(2):
            for sec in range(2):
                ls.read(("T", k), rdT(TP + 8*k + 4*n + 2*sec, *prd(k), n, sec))
    def signal(i, vm):
        a(f"s_waitcnt vmcnt({vm})")
        a("s_mov_b64 exec, 1")
        a(f"buffer_atomic_add v55, v54, s[48:51], s76 offen offset:{4*i} sc1")
        a("s_mov_b64 exec, -1")
    def finish(i):
        L = []
        for n in range(2):
            b = acc(i, n)
            for hf in range(2):
                for e in range(4*hf, 4*hf+4):
                    L.append(f"v_cvt_pk_bf16_f32 v{b+e}, v{b+2*e}, v{b+2*e+1}")
                L.append(f"buffer_store_dwordx4 {vr(b+4*hf,4)}, v{VDF}, s[48:51], s73 offen offset:{n*2048+hf*1024} sc1")
        if i < 2: L.append(f"s_add_u32 s73, s73, {64*2048}")
        return L
    for k in range(2):
        fread(0, k); tread(k)
    for i in range(3):
        fin = finish(i-1) if i else []
        for k in range(8):
            ls.need([("F", i, k), ("T", k)])
            for n in range(2):
                c = vr(acc(i, n), 16)
                a(f"v_mfma_f32_32x32x16_bf16 {c}, {vr(8+4*k,4)}, {vr(TP+8*k+4*n,4)}, {c}")
                if i and k == 3 and n == 0: a("s_nop 3")
                if k >= 3 and (k > 3 or n):
                    for x in fin[:3]: a(x)
                    fin = fin[3:]
            if i == 0 and k + 2 < 8:
                fread(0, k+2); tread(k+2)
            if i < 2 and k >= 2: fread(i+1, k-2)
            if i > 0 and k == 0:
                fread(i, 6); fread(i, 7)
        assert not fin
    a.stamp_mid(sm+1)
    a("s_nop 15")
    for x in finish(2): a(x)
    signal(0, 8)
    signal(1, 5)
    signal(2, 2)
```

```python
from common import *

MB_H, MB_QKV, MB_U, MB_O, MB_Y, MB_N = 1152, 1280, 128, 384, 640, 1344
MB_G = 832
MB_P = 896
def mb(i): return CNT_OFF + 256*i
SPIN_MAX = 0x40000

def wave_setup(a):
    a("v_lshrrev_b32 v1, 6, v0")
    a("v_and_b32 v0, 63, v0")
    a("s_nop 0")
    a("v_readfirstlane_b32 s52, v1")
    a("s_waitcnt lgkmcnt(0)")

def spin(a, srd, soff, target, vt, sleep=8):
    L = a.newlabel("poll"); Ld = a.newlabel("polld")
    a("s_mov_b32 s74, 0")
    a.label(L)
    a(f"s_buffer_load_dword s75, s[{srd}:{srd+3}], {soff} glc")
    a("s_add_u32 s74, s74, 1")
    a("s_waitcnt lgkmcnt(0)")
    a(f"s_cmp_ge_u32 s75, {target}")
    a(f"s_cbranch_scc1 {Ld}")
    a(f"s_sleep {sleep}")
    a(f"s_cmp_lt_u32 s74, {SPIN_MAX}")
    a(f"s_cbranch_scc1 {L}")
    a.label(Ld)

N_LATE = 24
def spin_init(a, vt, late=False):
    L = a.newlabel("ini"); Lr = a.newlabel("inir")
    off, tgt = (128, N_LATE) if late else (0, 1)
    a(f"s_buffer_load_dword s75, s[84:87], {off}")
    a("s_waitcnt lgkmcnt(0)")
    a(f"s_cmp_ge_u32 s75, {tgt}")
    a(f"s_cbranch_scc1 {L}")
    a(f"v_mov_b32 v{vt}, 0")
    a("s_mov_b32 s74, 0")
    a.label(Lr)
    a("s_sleep 6")
    a("s_mov_b64 exec, 1")
    a(f"buffer_load_dword v{vt+1}, v{vt}, s[84:87], 0 offen offset:{off} sc1")
    a("s_mov_b64 exec, -1")
    a("s_waitcnt vmcnt(0)")
    a(f"v_readfirstlane_b32 s75, v{vt+1}")
    a("s_add_u32 s74, s74, 1")
    a(f"s_cmp_ge_u32 s75, {tgt}")
    a(f"s_cbranch_scc1 {L}")
    a(f"s_cmp_lt_u32 s74, {SPIN_MAX}")
    a(f"s_cbranch_scc1 {Lr}")
    a.label(L)

def poll(a, sidx, target, vt=5, init=False, sleep=8):
    Ld = a.newlabel("pw")
    a("s_cmp_lg_u32 s52, 0")
    a(f"s_cbranch_scc1 {Ld}")
    if init: spin_init(a, vt, init == 'late')
    if sidx is not None:
        spin(a, 48, f"s{sidx}", target, vt, sleep=sleep)
    a.label(Ld)
    a("s_barrier")

def publish(a, sidx, nrep, vt=5, init=False, voff=None, ninstr=1):
    L = a.newlabel("pub")
    if init:
        L0 = a.newlabel("pub")
        a("s_cmp_lg_u32 s52, 0")
        a(f"s_cbranch_scc1 {L0}")
        spin_init(a, vt, init == 'late')
        a.label(L0)
    a("s_waitcnt vmcnt(0)")
    a("s_barrier")
    a("s_cmp_lg_u32 s52, 0")
    a(f"s_cbranch_scc1 {L}")
    if voff: voff(a, vt)
    else: a(f"v_lshlrev_b32 v{vt}, 8, v0")
    a(f"v_mov_b32 v{vt+1}, 1")
    if isinstance(nrep, str):
        a(f"s_mov_b32 exec_lo, {nrep}")
        a("s_mov_b32 exec_hi, 0")
    elif nrep <= 32:
        a(f"s_mov_b32 exec_lo, {((1 << nrep) - 1) & 0xffffffff}")
        a("s_mov_b32 exec_hi, 0")
    for i in range(ninstr):
        a(f"buffer_atomic_add v{vt+1}, v{vt}, s[48:51], s{sidx} offen sc1")
        if i + 1 < ninstr: a(f"s_add_u32 s{sidx}, s{sidx}, {64*256}")
    a("s_mov_b64 exec, -1")
    a.label(L)

def init_mailboxes(a, jreg):
    a("v_lshrrev_b32 v5, 3, v0")
    a("v_and_b32 v6, 7, v0")
    a("v_lshlrev_b32 v6, 4, v6")
    a("v_lshl_add_u32 v5, v5, 8, v6")
    for i in range(4): a(f"v_mov_b32 v{8+i}, 0")
    Le = a.newlabel("inie"); Lj = a.newlabel("inij")
    a(f"s_cmp_eq_u32 {jreg}, {N_LATE}")
    a(f"s_cbranch_scc1 {Le}")
    a(f"s_lshl_b32 s72, {jreg}, 2")
    a("s_add_u32 s72, s72, s52")
    a("s_lshl_b32 s72, s72, 11")
    a(f"s_add_u32 s72, s72, {mb(128)}")
    a("buffer_store_dwordx4 v[8:11], v5, s[48:51], s72 offen sc1")
    a("s_movk_i32 s73, 128")
    a(f"s_branch {Lj}")
    a.label(Le)
    a("s_mul_i32 s72, s52, 12288")
    a(f"s_add_u32 s72, s72, {mb(MB_H)}")
    for i in range(3):
        a("buffer_store_dwordx4 v[8:11], v5, s[48:51], s72 offen sc1")
        a("buffer_store_dwordx4 v[8:11], v5, s[48:51], s72 offen offset:2048 sc1")
        if i < 2: a("s_add_u32 s72, s72, 4096")
    a("s_mov_b32 s73, 0")
    a.label(Lj)
    a("buffer_load_dword v12, v8, s[84:87], 0 offen offset:64 sc1")
    a("s_waitcnt vmcnt(0)")
    a("s_barrier")
    L = a.newlabel("ini")
    a("s_cmp_lg_u32 s52, 0")
    a(f"s_cbranch_scc1 {L}")
    a("v_mov_b32 v6, 1")
    a("s_mov_b64 exec, 1")
    a("buffer_atomic_add v6, v8, s[84:87], s73 offen sc1")
    a("s_mov_b64 exec, -1")
    a.label(L)
```

```python
import sys
from common import *
import sync, k_front, k_mlp1, k_mlp1y, k_mlp2, k_attn, k_final
from sync import mb, MB_U, MB_H, MB_QKV, MB_O, MB_Y, MB_G, MB_P

HEADER = open("cdna_kernels/" + NAME + ".s.ref").read().split("; Override launch geometry")[0]
N_WO = 18
W2_TOUCH = False
FRONT_ONLY = False
PARTNER = True
A_EXIT = False
PF1 = 0
M1Y = True
COOP = False
COOP_H = False
COOP_U = False
BPRIO = 0
INIT_LATE = True
PFMODE = 'col'
PFH = False
SLP_H = 4
HEAD_PF = 0
CODE_PF = True
B_EXIT = False
DIAG = None
PF_AFTER_H = True
TLBW = 0
PFW1 = True
XW = True
LIST = True
NO_FINAL = False
PFD = 1
LN_WAIT = True
PF2 = 11
EARLY = 1
EARLY_FL = ''
PROMOTE = False
WAIT_QKV = True
HINT_AT = 3
SLP_HINT = 4
SLP_FIN = 4
W2_TAIL = 0
AUX_G0 = 16
AUX_NT = ''

def gen_main(a, name):
    a.kernel_begin(name)
    a("s_cmp_ge_u32 s2, 512")
    a("s_cbranch_scc1 L_end")
    a.load_kernargs()
    sync.wave_setup(a)
    a.srd(48, P_WS, WS_SIZE)
    a.srd(84, P_DBG, 256)
    a("s_cmp_ge_u32 s2, 256")
    a("s_cbranch_scc1 L_slotB")
    a("s_setprio 3")
    a("s_cmp_ge_u32 s2, 192")
    a("s_cbranch_scc1 L_ln")
    def pub_qkv(a):
        a("s_and_b32 s72, s56, 3")
        a("s_lshl_b32 s72, s72, 12")
        a(f"s_add_u32 s72, s72, {mb(MB_QKV)}")
        sync.publish(a, 72, 16, init=True)
    def hint(a):
        L = a.newlabel("hint")
        a("s_lshl_b32 s76, s52, 3")
        a("s_add_u32 s76, s76, s60")
        a(f"s_cmp_lg_u32 s76, {HINT_AT}")
        a(f"s_cbranch_scc1 {L}")
        a("s_lshl_b32 s76, s2, 8")
        a(f"s_add_u32 s76, s76, {mb(MB_P)}")
        a("v_mov_b32 v8, 0")
        a("v_mov_b32 v9, 1")
        a("s_mov_b64 exec, 1")
        a("buffer_store_dword v9, v8, s[48:51], s76 offen sc1")
        a("s_mov_b64 exec, -1")
        a.label(L)
    k_front.qkv_body(a, "s2", pub_qkv, hint if WAIT_QKV else None)
    a("s_branch L_attn")
    a.label("L_ln")
    a("s_sub_u32 s3, s2, 192")
    def pub_h(a):
        a("s_lshr_b32 s72, s58, 4")
        a("s_lshl_b32 s72, s72, 13")
        a(f"s_add_u32 s72, s72, {mb(MB_H)}")
        sync.publish(a, 72, 32, init=True)
    k_front.ln_body(a, "s3", pub_h)
    a.stamp_mid(6)
    k_front.gate_own(a)
    a(f"s_cmp_ge_u32 s3, {N_WO}")
    a("s_cbranch_scc1 L_nowo")
    k_front.wo_body(a, "s3")
    a.label("L_nowo")
    a(f"s_mov_b32 s72, {mb(MB_G)}")
    sync.publish(a, 72, 32, init='late')
    a.label("L_attn")
    a.stamp_mid(2)
    if FRONT_ONLY or A_EXIT: a("s_branch L_done")
    def dep_qkv(a):
        a("s_lshr_b32 s72, s61, 3")
        a("s_lshl_b32 s72, s72, 4")
        a("s_bfe_u32 s73, s2, 0x40003")
        a("s_add_u32 s72, s72, s73")
        a("s_lshl_b32 s72, s72, 8")
        a(f"s_add_u32 s72, s72, {mb(MB_QKV)}")
        sync.poll(a, 72, 48, vt=8, sleep=4, init='late')
    def dep_g(a):
        a("s_bfe_u32 s72, s2, 0x50003")
        a("s_lshl_b32 s72, s72, 8")
        a(f"s_add_u32 s72, s72, {mb(MB_G)}")
        sync.spin(a, 48, "s72", 64, 0)
    def pub_o(a):
        a("s_cmp_gt_u32 s61, 7")
        a("s_cselect_b32 s72, 1, 0")
        for hd in (14, 19, 24):
            a(f"s_cmp_gt_u32 s61, {hd}")
            a("s_addc_u32 s72, s72, 0")
        a("s_lshr_b32 s73, s2, 5")
        a("s_mul_i32 s73, s73, 5")
        a("s_add_u32 s72, s72, s73")
        a(f"s_mul_i32 s72, s72, {6*256}")
        a(f"s_add_u32 s72, s72, {mb(MB_O)}")
        a(f"s_lshr_b32 s73, {(1<<7)|(1<<14)|(1<<19)|(1<<24)}, s61")
        a("s_and_b32 s73, s73, 1")
        a("s_cselect_b32 s73, 0xfff, 63")
        sync.publish(a, 72, "s73")
    TV = 140
    def tsetup(a):
        a.srd(80, P_W2, S*F*2)
        a("s_lshr_b32 s72, s2, 3")
        a("s_lshl_b32 s72, s72, 2")
        a("s_add_u32 s72, s72, s52")
        a("s_mul_i32 s73, s72, 205")
        a("s_lshr_b32 s73, s73, 11")
        a("s_mul_i32 s76, s73, 10")
        a("s_sub_u32 s72, s72, s76")
        a("s_and_b32 s76, s2, 7")
        a("s_mul_i32 s76, s76, 10")
        a("s_add_u32 s72, s72, s76")
        a("s_lshr_b32 s76, s72, 4")
        a("s_and_b32 s72, s72, 15")
        a(f"s_mul_i32 s76, s76, {928*4096}")
        a("s_lshl_b32 s72, s72, 8")
        a("s_add_u32 s76, s76, s72")
        a("s_lshl_b32 s72, s73, 17")
        a("s_add_u32 s76, s76, s72")
        a("s_cmp_ge_u32 s73, 12")
        a("s_cselect_b32 s82, 0, s82")
        a(f"v_lshrrev_b32 v{TV}, 1, v0")
        a(f"v_lshlrev_b32 v{TV}, 12, v{TV}")
        a(f"v_and_b32 v{TV+1}, 1, v0")
        a(f"v_lshl_add_u32 v{TV}, v{TV+1}, 7, v{TV}")
        a(f"v_add_u32 v{TV}, s76, v{TV}")
        a("s_mov_b32 s78, s73")
    def touch(a):
        a("s_cmp_ge_u32 s78, 29")
        a("s_cselect_b32 s82, 0, s82")
        a(f"buffer_load_dword v{TV+1}, v{TV}, s[80:83], 0 offen")
        a(f"v_add_u32 v{TV}, {12*32*4096}, v{TV}")
        a("s_add_u32 s78, s78, 12")
    k_attn.attn_body(a, "s2", dep_qkv, pub_o, sm=3, tsetup=tsetup if W2_TOUCH else None, touch=touch if W2_TOUCH else None, dep_g=dep_g)
    a.stamp_mid(5)
    a("s_cmp_ge_u32 s2, 192")
    a("s_cbranch_scc1 L_done")
    if NO_FINAL: a("s_branch L_done")
    def dep_y(a, i):
        if i == 0:
            a("s_lshl_b32 s72, s54, 5")
            a("s_add_u32 s72, s72, s53")
            a("s_lshl_b32 s72, s72, 8")
            a(f"s_add_u32 s72, s72, {mb(MB_Y)}")
        else:
            a("s_add_u32 s72, s72, 4")
        sync.spin(a, 48, "s72", 5, 8, sleep=SLP_FIN if i == 0 else 1)
        if i == 2: a.stamp_mid(7)
    k_final.final_body(a, "s2", dep_y)
    a("s_branch L_done")
    a.label("L_slotB")
    a("s_sub_u32 s3, s2, 256")
    a(f"s_cmp_lt_u32 s3, {255 - sync.N_LATE}")
    a("s_cbranch_scc1 L_noinit")
    a("s_setprio 3")
    a(f"s_sub_u32 s78, s3, {255 - sync.N_LATE}")
    sync.init_mailboxes(a, "s78")
    a("s_setprio 0")
    a.stamp_mid(0)
    a.label("L_noinit")
    if CODE_PF:
        Lc = a.newlabel("cpf")
        a("s_lshr_b32 s72, s3, 4")
        a("s_cmp_lg_u32 s72, 13")
        a(f"s_cbranch_scc1 {Lc}")
        a("s_getpc_b64 s[80:81]")
        a.label("L_pc")
        a(f"s_sub_u32 s80, s80, L_pc - {name}")
        a("s_subb_u32 s81, s81, 0")
        a(f"s_mov_b32 s82, L_code_end - {name}")
        a("s_mov_b32 s83, 0x00020000")
        a("s_bfe_u32 s72, s3, 0x10003")
        a("s_lshl_b32 s72, s72, 2")
        a("s_add_u32 s72, s72, s52")
        a("s_lshl_b32 s72, s72, 13")
        a("v_lshlrev_b32 v5, 7, v0")
        a("v_add_u32 v5, s72, v5")
        a("buffer_load_dword v58, v5, s[80:83], 0 offen")
        a.label(Lc)
    if WAIT_QKV:
        Lz = a.newlabel("hz")
        a("s_cmp_lg_u32 s52, 0")
        a(f"s_cbranch_scc1 {Lz}")
        a("s_lshl_b32 s72, s3, 8")
        a(f"s_add_u32 s72, s72, {mb(MB_P)}")
        a("v_lshlrev_b32 v5, 4, v0")
        for i in range(4): a(f"v_mov_b32 v{8+i}, 0")
        a("s_mov_b64 exec, 0xff")
        a("buffer_store_dwordx4 v[8:11], v5, s[48:51], s72 offen sc1")
        a("s_mov_b64 exec, -1")
        a.label(Lz)
    if XW: k_front.xw_touch(a, "s3")
    if COOP:
        Le = a.newlabel("head")
        a(f"s_cmp_ge_u32 s3, {k_mlp1.MLP1_GRID}")
        a(f"s_cbranch_scc1 {Le}")
        a.srd(80, P_W1, S*F*2)
        a("s_and_b32 s66, s3, 7")
        a("s_mul_i32 s66, s66, 27")
        a("s_lshr_b32 s67, s3, 3")
        a("s_add_u32 s67, s67, s66")
        a("s_mul_i32 s70, s67, 171")
        a("s_lshr_b32 s70, s70, 10")
        a("s_mul_i32 s68, s70, 6")
        a("s_sub_u32 s69, s67, s68")
        a("s_lshl_b32 s66, s70, 8")
        a("s_lshl_b32 s68, s52, 4")
        a("s_add_u32 s67, s69, s68")
        a(f"s_mul_i32 s67, s67, {32*F*2}")
        a("s_add_u32 s66, s66, s67")
        a("v_lshrrev_b32 v5, 1, v0")
        a(f"v_mul_u32_u24 v5, {F*2}, v5")
        a("v_and_b32 v6, 1, v0")
        a("v_lshl_add_u32 v5, v6, 7, v5")
        a("buffer_load_dword v62, v5, s[80:83], s66 offen")
        a("s_cmp_ge_u32 s69, 3")
        a(f"s_mov_b32 s67, {3*32*F*2}")
        a(f"s_cselect_b32 s67, {(-3*32*F*2) & 0xffffffff}, s67")
        a("s_add_u32 s67, s67, s66")
        a("s_lshr_b32 s68, 0x80402010, s70")
        a("s_cmp_lt_u32 s70, 32")
        a("s_cselect_b32 s68, s68, 0")
        a("s_and_b32 s68, s68, 1")
        a(f"s_cbranch_scc0 {Le}")
        a("buffer_load_dword v63, v5, s[80:83], s67 offen")
        a.label(Le)
    if TLBW:
        a("s_lshr_b32 s53, s3, 3")
        a("s_lshl_b32 s53, s53, 2")
        a("s_add_u32 s53, s53, s52")
        a("s_lshl_b32 s53, s53, 6")
        a("v_add_u32 v5, s53, v0")
        a(f"v_lshlrev_b32 v5, {TLBW}, v5")
        a.srd(80, P_W1, S*F*2)
        a("buffer_load_dword v62, v5, s[80:83], 0 offen nt")
        a.srd(80, P_W2, S*F*2)
        a("buffer_load_dword v63, v5, s[80:83], 0 offen nt")
        a.srd(80, P_WS, CNT_OFF)
        a("buffer_load_dword v59, v5, s[80:83], 0 offen nt")
    a(f"s_setprio {BPRIO}")
    if INIT_LATE:
        a(f"s_cmp_lt_u32 s3, {k_mlp1.MLP1_GRID}")
        a("s_cbranch_scc1 L_mlp1")
    a("s_waitcnt vmcnt(0)")
    sync.poll(a, None, 0, vt=5, init=True)
    a.stamp_mid(5)
    a("s_cmp_lt_u32 s3, 192")
    a("s_cbranch_scc1 L_mlp1")
    if PF_AFTER_H:
        a("s_bfe_u32 s72, s3, 0x20001")
        a("s_lshl_b32 s72, s72, 5")
        a("s_and_b32 s73, s3, 31")
        a("s_add_u32 s72, s72, s73")
        a("s_lshl_b32 s72, s72, 8")
        a(f"s_add_u32 s72, s72, {mb(MB_H)}")
        sync.poll(a, 72, 16, vt=5, sleep=4)
    a.srd(40, P_W1, S*F*2)
    a("s_sub_u32 s67, 255, s3")
    a(f"s_mul_i32 s66, s52, {512*F*2}")
    a("s_lshl_b32 s68, s67, 13")
    a("s_add_u32 s66, s66, s68")
    a("v_lshlrev_b32 v5, 7, v0")
    a("v_add_u32 v5, s66, v5")
    for r in range(PF1):
        a(f"buffer_load_dword v{60+(r&1)}, v5, s[40:43], 0 offen")
        a(f"v_add_u32 v5, {64*8192}, v5")
        if r >= PFD: a(f"s_waitcnt vmcnt({PFD})")
    a(f"s_cmp_ge_u32 s3, {k_mlp1.MLP1_GRID}")
    a("s_cbranch_scc1 L_aux")
    a.label("L_mlp1")
    if B_EXIT: a("s_branch L_done")
    def dep_h(a):
        a("s_lshl_b32 s72, s52, 5")
        a("s_and_b32 s73, s3, 31")
        a("s_add_u32 s72, s72, s73")
        a("s_lshl_b32 s72, s72, 8")
        a(f"s_add_u32 s72, s72, {mb(MB_H)}")
        sync.spin(a, 48, "s72", 16, 5, sleep=SLP_H)
    def dep_h_touch(a):
        if INIT_LATE:
            a("s_waitcnt vmcnt(0)")
            sync.poll(a, None, 0, vt=12, init=True)
        dep_h(a)
        a.stamp_mid(5)
        if COOP_H:
            a("s_and_b32 s72, s3, 7")
            a("s_mul_i32 s72, s72, 9")
            a("s_lshr_b32 s72, s72, 1")
            a("s_sub_u32 s72, s66, s72")
            a("s_lshl_b32 s72, s72, 6")
            a("v_add_u32 v60, s72, v0")
            a("v_mul_u32_u24 v61, 2731, v60")
            a("v_lshrrev_b32 v61, 16, v61")
            a("v_mul_u32_u24 v61, 120, v61")
            a("v_add_lshl_u32 v60, v60, v61, 7")
            a(f"buffer_load_dword v61, v60, s[48:51], s{k_mlp1.S_F} offen sc1")
    def hold(a):
        L = a.newlabel("hold"); Ld = a.newlabel("holdd")
        a("s_cmp_ge_u32 s3, 192")
        a(f"s_cbranch_scc1 {Ld}")
        a("s_lshl_b32 s72, s3, 8")
        a(f"s_add_u32 s72, s72, {mb(MB_P)}")
        a("s_and_b32 s73, s3, 63")
        a("s_lshl_b32 s73, s73, 8")
        a(f"s_add_u32 s73, s73, {mb(MB_QKV)}")
        a("s_mov_b32 s74, 0")
        a.label(L)
        a("s_buffer_load_dword s75, s[48:51], s72 glc")
        a("s_add_u32 s74, s74, 1")
        a("s_waitcnt lgkmcnt(0)")
        a("s_cmp_lg_u32 s75, 0")
        a(f"s_cbranch_scc1 {Ld}")
        a("s_sleep 4")
        a("s_and_b32 s75, s74, 15")
        a(f"s_cbranch_scc1 {L}")
        a("s_buffer_load_dword s75, s[48:51], s73 glc")
        a("s_waitcnt lgkmcnt(0)")
        a("s_cmp_ge_u32 s75, 48")
        a(f"s_cbranch_scc1 {Ld}")
        a(f"s_cmp_lt_u32 s74, {sync.SPIN_MAX}")
        a(f"s_cbranch_scc1 {L}")
        a.label(Ld)
    def w2_tail(a):
        a.srd(80, P_W2, S*F*2)
        a("s_lshr_b32 s72, s3, 3")
        a("s_mul_i32 s73, s72, 86")
        a("s_lshr_b32 s73, s73, 8")
        a("s_mul_i32 s76, s73, 3")
        a("s_sub_u32 s72, s72, s76")
        a("s_and_b32 s76, s3, 7")
        a("s_mul_i32 s76, s76, 10")
        a("s_add_u32 s73, s73, s76")
        a("s_lshr_b32 s76, s73, 4")
        a("s_and_b32 s73, s73, 15")
        a(f"s_mul_i32 s76, s76, {928*4096}")
        a("s_lshl_b32 s73, s73, 8")
        a("s_add_u32 s76, s76, s73")
        a("s_lshl_b32 s72, s72, 2")
        a("s_add_u32 s72, s72, s52")
        a(f"s_add_u32 s72, s72, {29 - 12*W2_TAIL}")
        a("s_lshl_b32 s72, s72, 17")
        a("s_add_u32 s76, s76, s72")
        a("v_lshrrev_b32 v60, 1, v0")
        a("v_lshlrev_b32 v60, 12, v60")
        a("v_and_b32 v61, 1, v0")
        a("v_lshl_add_u32 v60, v61, 7, v60")
        a("v_add_u32 v60, s76, v60")
        for e in range(W2_TAIL):
            a(f"buffer_load_dword v{61+e}, v60, s[80:83], 0 offen")
            a(f"v_add_u32 v60, {12*32*4096}, v60")
    def pub_u(a):
        a("s_mul_i32 s73, s66, 565")
        a("s_lshr_b32 s73, s73, 12")
        a("s_lshr_b32 s72, s67, 1")
        a("s_mul_i32 s72, s72, 5")
        a("s_add_u32 s73, s73, s72")
        a("s_lshl_b32 s73, s73, 12")
        a(f"s_add_u32 s73, s73, {mb(MB_U)}")
        a("s_lshr_b32 s72, 0x204080, s66")
        a("s_cmp_lt_u32 s66, 32")
        a("s_cselect_b32 s72, s72, 0")
        a("s_and_b32 s72, s72, 1")
        a("s_cselect_b32 s72, -1, 0xffff")
        sync.publish(a, 73, "s72", vt=12, init='late')
    (k_mlp1y if M1Y else k_mlp1).mlp1_body(a, "s3", dep_h_touch, pub_u, sm=0, epi=w2_tail if W2_TAIL else None, hold=hold if WAIT_QKV else None)
    a.stamp_mid(2)
    a("s_branch L_mlp2")
    a.label("L_aux")
    if B_EXIT: a("s_branch L_done")
    if PFMODE == "col":
        a("s_and_b32 s66, s3, 7")
        a("s_mul_i32 s66, s66, 9")
        a("s_lshr_b32 s66, s66, 1")
        a("s_lshr_b32 s67, s67, 3")
        a("s_add_u32 s66, s66, s67")
        a("s_lshl_b32 s66, s66, 8")
        a(f"s_mul_i32 s69, s52, {(32 if M1Y else 512)*F*2}")
        a("s_add_u32 s66, s66, s69")
        a("v_lshrrev_b32 v5, 1, v0")
        a(f"v_mul_u32_u24 v5, {F*2}, v5")
        a("v_and_b32 v6, 1, v0")
        a("v_lshl_add_u32 v5, v6, 7, v5")
        if PFH:
            dep_h(a)
            a(f"s_mul_i32 s69, s52, {32*18*1024}")
            a("s_lshl_b32 s70, s67, 13")
            a("s_add_u32 s69, s69, s70")
            a(f"s_add_u32 s69, s69, {HT_OFF}")
            a("v_lshlrev_b32 v7, 7, v0")
        g0 = 6 if COOP else 0
        a(f"s_add_u32 s66, s66, {g0*32*F*2}")
        if PFH and COOP_H: a(f"s_add_u32 s69, s69, {12*18*1024}")
        for n in range(16 - g0):
            a(f"buffer_load_dword v{60+(n&1)}, v5, s[40:43], s66 offen")
            a(f"s_add_u32 s66, s66, {(128 if M1Y else 32)*F*2}")
            if PFH and n < (9 if COOP_H else 14):
                a(f"buffer_load_dword v{62+(n&1)}, v7, s[48:51], s69 offen sc1")
                a(f"s_add_u32 s69, s69, {5*8192}")
            a(f"s_waitcnt vmcnt({PFD})")
        a.stamp_mid(1)
        a.srd(40, P_W2, S*F*2)
        a("s_lshl_b32 s68, s67, 2")
        a("s_add_u32 s68, s68, s52")
        a("s_and_b32 s66, s3, 7")
        a("s_mul_i32 s66, s66, 10")
        a("s_lshr_b32 s69, s68, 1")
        a("s_add_u32 s66, s66, s69")
        a("s_lshr_b32 s67, s66, 4")
        a("s_and_b32 s66, s66, 15")
        a(f"s_mul_i32 s67, s67, {928*4096}")
        a("s_lshl_b32 s66, s66, 8")
        a("s_add_u32 s67, s67, s66")
        a("s_and_b32 s66, s52, 1")
        a("s_lshl_b32 s66, s66, 17")
        a("s_add_u32 s67, s67, s66")
        a("v_lshrrev_b32 v5, 1, v0")
        a("v_lshlrev_b32 v5, 12, v5")
        a("v_and_b32 v6, 1, v0")
        a("v_lshl_add_u32 v5, v6, 7, v5")
        a("v_add_u32 v5, s67, v5")
        for n in range(PF2):
            a(f"buffer_load_dword v{60+(n&1)}, v5, s[40:43], 0 offen")
            a(f"v_add_u32 v5, {64*4096}, v5")
            a(f"s_waitcnt vmcnt({PFD})")
    else:
        for n in range(-(-(576 - 64*PF1)//40) if PFW1 else 0):
            a(f"buffer_load_dword v{60+(n&1)}, v5, s[40:43], 0 offen")
            a(f"v_add_u32 v5, {40*8192}, v5")
            a(f"s_waitcnt vmcnt({PFD})")
        a.stamp_mid(1)
        a.srd(40, P_W2, S*F*2)
        a("s_lshl_b32 s68, s67, 2")
        a("s_add_u32 s68, s68, s52")
        a("s_lshr_b32 s66, s68, 5")
        a("s_and_b32 s68, s68, 31")
        a(f"s_mul_i32 s66, s66, {928*4096}")
        a("s_lshl_b32 s68, s68, 13")
        a("s_add_u32 s66, s66, s68")
        a("v_lshlrev_b32 v5, 7, v0")
        a("v_add_u32 v5, s66, v5")
        for n in range(PF2):
            a(f"buffer_load_dword v{60+(n&1)}, v5, s[40:43], 0 offen")
            a(f"v_add_u32 v5, {32*8192}, v5")
            a(f"s_waitcnt vmcnt({PFD})")
    a("s_waitcnt vmcnt(0)")
    a.stamp_mid(2)
    a(f"s_cmp_ge_u32 s3, {k_mlp2.MLP2_GRID}")
    a("s_cbranch_scc1 L_done")
    a.label("L_mlp2")
    def dep_u(a):
        Lg = a.newlabel("g")
        a("s_cmp_lg_u32 s52, 0")
        a(f"s_cbranch_scc1 {Lg}")
        sync.spin_init(a, 8, True)
        a("s_bfe_u32 s73, s2, 0x50003")
        a("s_lshl_b32 s73, s73, 8")
        a(f"s_add_u32 s73, s73, {mb(MB_G)}")
        sync.spin(a, 48, "s73", 64, 0)
        a.label(Lg)
        a("s_mul_i32 s73, s67, 5")
        a("s_add_u32 s73, s73, s69")
        a("s_lshl_b32 s73, s73, 4")
        a("s_add_u32 s73, s73, s66")
        a("s_lshl_b32 s73, s73, 8")
        a(f"s_add_u32 s73, s73, {mb(MB_U)}")
        a("s_cmp_eq_u32 s69, 4")
        a("s_cselect_b32 s76, 14, 16")
        sync.poll(a, 73, "s76", vt=8, sleep=2)
        if COOP_U:
            a("s_lshr_b32 s70, s3, 3")
            a("s_mul_i32 s70, s70, 86")
            a("s_lshr_b32 s70, s70, 8")
            a("s_mul_i32 s73, s52, 10")
            a("s_add_u32 s70, s70, s73")
            a("s_lshl_b32 s70, s70, 6")
            a("s_add_u32 s70, s70, 288")
            a("v_add_u32 v60, s70, v0")
            a("v_min_u32 v60, 2783, v60")
            a("v_mul_u32_u24 v61, 5462, v60")
            a("v_lshrrev_b32 v61, 18, v61")
            a("v_mul_u32_u24 v61, 96, v61")
            a("v_add_lshl_u32 v60, v60, v61, 7")
            a(f"s_mul_i32 s70, s69, {58*18*1024}")
            a("s_mul_i32 s73, s67, 6144")
            a("s_add_u32 s70, s70, s73")
            a(f"s_add_u32 s70, s70, {U_OFF}")
            a("s_mov_b32 s77, s70")
    def ybox(a):
        a("s_lshl_b32 s76, s67, 1")
        a("s_add_u32 s76, s76, s71")
        a("s_lshl_b32 s76, s76, 5")
        a("s_lshl_b32 s70, s66, 1")
        a("s_add_u32 s76, s76, s70")
        a("s_add_u32 s76, s76, s72")
        a("s_lshl_b32 s76, s76, 8")
        a(f"s_add_u32 s76, s76, {mb(MB_Y)}")
    def dep_o(a, block):
        if block == "look":
            a("v_readfirstlane_b32 s75, v57")
            a("s_lshl_b32 s76, s53, 1")
            a("s_cmp_ge_u32 s75, s76")
            a("s_cselect_b32 s79, 1, 0")
            return
        a("s_lshr_b32 s73, s66, 1")
        a("s_mul_i32 s73, s73, 5")
        a("s_add_u32 s73, s73, s69")
        a("s_mul_i32 s73, s73, 6")
        a("s_lshl_b32 s70, s67, 1")
        a("s_add_u32 s73, s73, s70")
        a("s_and_b32 s70, s66, 1")
        a("s_add_u32 s73, s73, s70")
        a("s_lshl_b32 s73, s73, 8")
        a(f"s_add_u32 s73, s73, {mb(MB_O)}")
        a("s_lshl_b32 s76, s53, 1")
        if block:
            sync.spin(a, 48, "s73", "s76", 8, sleep=2)
            if not k_mlp1.EPIST: a.stamp_mid(6)
        else:
            a("v_mov_b32 v56, 0")
            a("s_mov_b64 exec, 1")
            a("buffer_load_dword v57, v56, s[48:51], s73 offen sc1")
            a("s_mov_b64 exec, -1")
    k_mlp2.mlp2_body(a, "s3", 3, dep_u, dep_o, ybox, post=(lambda a: a("buffer_load_dword v61, v60, s[48:51], s77 offen sc1")) if COOP_U else None)
    a.label("L_done")
    if DIAG is not None:
        wg, slot, kind = DIAG
        Ld = a.newlabel("diag"); Lw = a.newlabel("diagw")
        a(f"s_cmp_lg_u32 s2, {wg}")
        a(f"s_cbranch_scc1 {Ld}")
        a("s_waitcnt vmcnt(0)")
        if slot == "end":
            a.stamp_mid(0); slot = 0
        if slot is None:
            a("s_mov_b32 s70, 0")
        elif kind == "t":
            a(f"s_sub_u32 s70, s{4+slot}, s88")
            a("s_mul_i32 s70, s70, 10")
        else:
            a(f"s_lshr_b32 s70, s{93+slot}, 1")
        a("s_add_u32 s70, s70, 20000")
        a.label(Lw)
        a("s_sleep 1")
        a("s_memrealtime s[90:91]")
        a("s_waitcnt lgkmcnt(0)")
        a("s_sub_u32 s71, s90, s88")
        a("s_cmp_lt_u32 s71, s70")
        a(f"s_cbranch_scc1 {Lw}")
        a.label(Ld)
    a.end()
    a.label("L_end")
    a("s_endpgm")
    a.label("L_code_end")

def build(stamp=False):
    a = Asm()
    a.stamp = stamp
    fin = NAME + "_kernel"
    out = HEADER
    out += (f"; @launch kernel={fin} grid=(512,1,1) block=(256,1,1) lds=81920\n" if LIST else "; @launch grid=(512,1,1) block=(256,1,1) lds=81920\n")
    out += '.amdgcn_target "amdgcn-amd-amdhsa--gfx950"\n.text\n'
    gen_main(a, fin)
    out += a.text()
    out += '.section .rodata,"a"\n'
    out += ".p2align 6\n" + descriptor(fin, 256, None)
    return out

if __name__ == "__main__":
    open("main.s", "w").write(build())
    open("stamp.s", "w").write(build(True))
    open("main_l.s", "w").write(build("lite"))
    LIST = False
    open("final.s", "w").write(build())
    LIST = True
    VARS = eval(open("vars.txt").read())
    import copy
    for nm, kv in VARS.items():
        saved = {}
        for k, v in kv.items():
            mod, name = (globals()[k.split(".")[0]].__dict__, k.split(".")[1]) if "." in k else (globals(), k)
            saved[k] = (mod, name, mod[name]); mod[name] = v
        open(f"gen/{nm}.s", "w").write(build(False))
        open(f"gen/{nm}_s.s", "w").write(build(True))
        open(f"gen/{nm}_l.s", "w").write(build("lite"))
        for mod, name, v in saved.values(): mod[name] = v
    print("wrote")
```

```python
from common import *

ATTN_GRID = 256
SKIP = False
CH = 16*KV_RS
ATTN_LDS = 2*CH + 64

VK0, VK1, VV, VDM = 1, 2, 3, 4
Q0 = [8, 12]; Q1 = [16, 18]
K0 = [20, 24]; K1 = [28, 30]
V = [32, 40]
P = [48, 56]
Sx = [64, 80]
O = [96, 112]
TMP = 128
NV_ATTN = 144
S_KV, S_C, S_ATT, S_VM = 54, 55, 56, 58

def dma_chunk(a, sbuf, soff):
    for i in range(9):
        a(f"s_add_u32 m0, s{sbuf}, {i*4096}")
        a(f"s_add_u32 s60, s{soff}, {i*4096}")
        a(f"buffer_load_dwordx4 v{VDM}, s[48:51], s60 offen sc1 lds")

def qk(a, which, aq, kb):
    s = vr(Sx[aq], 16)
    if which == 0:
        a(f"v_mfma_f32_32x32x16_bf16 {s}, {vr(K0[kb],4)}, {vr(Q0[aq],4)}, 0")
    else:
        a(f"v_mfma_f32_32x32x8_bf16 {s}, {vr(K1[kb],2)}, {vr(Q1[aq],2)}, {s}")

def pv(a, which, aq, vb):
    o = vr(O[aq], 16)
    a(f"v_mfma_f32_32x32x16_bf16 {o}, {vr(V[vb]+4*which,4)}, {vr(P[aq]+4*which,4)}, {o}")

def read_k(a, kb, rec):
    a(f"ds_read_b128 {vr(K0[kb],4)}, v{VK0} offset:{rec*KV_RS}")
    a(f"ds_read_b32 v{K1[kb]}, v{VK1} offset:{rec*KV_RS}")

def read_v(a, vb, rec):
    a(f"s_mov_b64 exec, s[{S_VM}:{S_VM+1}]")
    a(f"ds_read_b128 {vr(V[vb],4)}, v{VV} offset:{rec*KV_RS}")
    a(f"ds_read_b128 {vr(V[vb]+4,4)}, v{VV} offset:{rec*KV_RS + 576}")
    a(f"s_mov_b64 exec, -1")

def expq(a, aq, q):
    for e in range(4):
        r = Sx[aq] + 4*q + e
        a(f"v_exp_f32 v{r}, v{r}")
    for c in range(2):
        r = Sx[aq] + 4*q + 2*c
        a(f"v_cvt_pk_bf16_f32 v{P[aq]+2*q+c}, v{r}, v{r+1}")

def block(a, kt, aq, rec=None, do_qk=True):
    an = 1 - aq
    kq = (kt + aq) & 1
    vb = (kt - 1 + aq) & 1
    if aq == 1:
        a("s_waitcnt lgkmcnt(0)")
    if do_qk: qk(a, 0, an, kq)
    if rec is not None:
        if aq == 0: read_k(a, (kt+1) & 1, rec)
        else: read_v(a, (kt+1) & 1, rec)
    expq(a, aq, 0)
    if do_qk: qk(a, 1, an, kq)
    expq(a, aq, 1)
    pv(a, 0, an, vb)
    expq(a, aq, 2)
    pv(a, 1, an, vb)
    expq(a, aq, 3)

def set_m(a, aq, m):
    t = TMP
    a(f"v_mov_b32 v{t}, v{m}")
    a("s_nop 1")
    a(f"v_permlane32_swap_b32 v{m}, v{t}")
    a("s_nop 1")
    a(f"v_max_f32 v{m}, v{m}, v{t}")
    a(f"v_sub_f32 v{m}, 0, v{m}")
    a(f"v_and_b32 v{t}, 0xffff0000, v{m}")
    a(f"v_sub_f32 v{m}, v{m}, v{t}")
    a(f"v_and_b32 v{t+1}, 0xffff0000, v{m}")
    a(f"v_sub_f32 v{m}, v{m}, v{t+1}")
    a(f"v_lshrrev_b32 v{t}, 16, v{t}")
    a(f"v_or_b32 v{t}, v{t}, v{t+1}")
    a(f"v_lshrrev_b32 v{m}, 16, v{m}")
    a(f"v_cmp_gt_u32 vcc, 32, v0")
    a("s_nop 1")
    a(f"v_cndmask_b32 v{Q1[aq]+1}, v{m}, v{t}, vcc")

def tile_max(a, aq, m, first):
    s = Sx[aq]
    if first:
        a(f"v_max3_f32 v{m}, v{s}, v{s+1}, v{s+2}")
        a(f"v_max_f32 v{m}, v{m}, v{s+3}")
        st = 4
    else:
        st = 0
    for e in range(st, 16, 2):
        a(f"v_max3_f32 v{m}, v{m}, v{s+e}, v{s+e+1}")

def attn_body(a, wgreg, dep, pub, sm=0, tsetup=None, touch=None):
    a(f"s_and_b32 s61, {wgreg}, 7")
    a("s_lshl_b32 s61, s61, 2")
    a(f"s_bfe_u32 s62, {wgreg}, 0x20003")
    a("s_add_u32 s61, s61, s62")
    a(f"s_lshr_b32 s62, {wgreg}, 5")
    a("s_lshl_b32 s62, s62, 3")
    a("s_lshl_b32 s63, s52, 1")
    a("s_add_u32 s62, s62, s63")
    a(f"s_mul_i32 s{S_KV}, s61, {64*KV_RS}")
    a(f"s_add_u32 s{S_KV}, s{S_KV}, {KV_OFF}")
    a("s_lshl_b32 s64, s52, 10")
    a(f"s_add_u32 s65, s64, {CH}")
    a(f"v_lshlrev_b32 v5, 4, v0")
    a(f"v_add_u32 v{VDM}, s64, v5")
    a("s_lshl_b32 s63, s61, 6")
    a("s_add_u32 s63, s63, s62")
    a(f"s_mul_i32 s63, s63, {QR_RS}")
    a(f"s_add_u32 s63, s63, {QR_OFF}")
    a("v_and_b32 v6, 31, v0")
    a("v_lshlrev_b32 v7, 2, v6")
    if tsetup: tsetup(a)
    dep(a)
    for aq in range(2):
        a(f"buffer_load_dwordx4 {vr(Q0[aq],4)}, v5, s[48:51], s63 offen offset:{aq*QR_RS} sc1")
        a(f"buffer_load_dword v{Q1[aq]}, v7, s[48:51], s63 offen offset:{aq*QR_RS + 1024} sc1")
    a(f"s_mov_b32 s{S_VM}, 0x3ffff")
    a(f"s_mov_b32 s{S_VM+1}, 0x3ffff")
    a(f"s_mov_b32 s{S_ATT}, 0")
    for b in range(2):
        a(f"v_mov_b32 v{K1[b]+1}, 0x3f803f80")
        a(f"v_mov_b32 v{Q1[b]+1}, 0")
        for e in range(8):
            a(f"v_mov_b32 v{V[b]+e}, 0")
    a("s_mov_b32 exec_lo, 0x440000")
    a("s_mov_b32 exec_hi, 0x440000")
    for b in range(2):
        for e in range(8):
            a(f"v_mov_b32 v{V[b]+e}, 0x3f803f80")
    a("s_mov_b64 exec, -1")
    a.label("L_attn_start")
    dma_chunk(a, 64, S_KV)
    a(f"s_add_u32 s66, s{S_KV}, {CH}")
    dma_chunk(a, 65, 66)
    a(f"s_add_u32 s66, s66, {CH}")
    a(f"s_mov_b32 s67, s64")
    a(f"s_mov_b32 s68, s65")
    a(f"v_mov_b32 v{VK0}, v5")
    a(f"v_add_u32 v{VK1}, 1024, v7")
    a(f"v_lshrrev_b32 v{VV}, 5, v0")
    a(f"v_mul_u32_u24 v{VV}, 288, v{VV}")
    a(f"v_lshl_add_u32 v{VV}, v6, 4, v{VV}")
    a(f"v_add_u32 v{VV}, 1152, v{VV}")
    for aq in range(2):
        for e in range(16):
            a(f"v_mov_b32 v{O[aq]+e}, 0")
    for e in range(8):
        a(f"v_mov_b32 v{P[1]+e}, 0")
    a("s_waitcnt vmcnt(16)")
    a("s_barrier")
    if touch: touch(a)
    read_k(a, 0, 0)
    read_v(a, 0, 0)
    a(f"v_cmp_gt_u32 vcc, 32, v0")
    a("s_nop 1")
    for aq in range(2):
        a(f"v_cndmask_b32 v{Q1[aq]}, 0, v{Q1[aq]}, vcc")
    a("s_waitcnt lgkmcnt(0)")
    a(f"s_cmp_lg_u32 s{S_ATT}, 0")
    a("s_cbranch_scc1 L_attn_havemax")
    for aq in range(2):
        qk(a, 0, aq, 0); qk(a, 1, aq, 0)
    a("s_nop 15")
    for aq in range(2):
        tile_max(a, aq, TMP+2+aq, True)
    for aq in range(2):
        set_m(a, aq, TMP+2+aq)
    a("s_nop 1")
    a.label("L_attn_havemax")
    qk(a, 0, 0, 0); qk(a, 1, 0, 0)
    a(f"s_mov_b32 s{S_C}, 0")
    a.stamp_mid(sm)
    a("s_setprio 1")
    a("s_nop 15")
    a("s_branch L_attn_out" if SKIP else "s_branch L_attn_entry")
    a.raw(".p2align 6")
    a.label("L_attn_loop")
    a("s_waitcnt vmcnt(0) lgkmcnt(0)")
    a("s_barrier")
    a(f"v_xor_b32 v{VK0}, {CH}, v{VK0}")
    a(f"v_xor_b32 v{VK1}, {CH}, v{VK1}")
    a(f"v_xor_b32 v{VV}, {CH}, v{VV}")
    a(f"s_cmp_eq_u32 s{S_C}, 3")
    a("s_cbranch_scc1 L_attn_nodma")
    dma_chunk(a, 67, 66)
    a(f"s_add_u32 s66, s66, {CH}")
    a("s_mov_b32 s69, s67")
    a("s_mov_b32 s67, s68")
    a("s_mov_b32 s68, s69")
    if touch: touch(a)
    a.label("L_attn_nodma")
    block(a, -1, 0, 0); block(a, -1, 1, 0)
    a.label("L_attn_entry")
    for kt in range(15):
        if kt == 2:
            a("s_waitcnt vmcnt(9)")
            a("s_barrier")
        block(a, kt, 0, kt+1); block(a, kt, 1, kt+1)
    a(f"s_add_u32 s{S_C}, s{S_C}, 1")
    a(f"s_cmp_lt_u32 s{S_C}, 4")
    a("s_cbranch_scc1 L_attn_loop")
    block(a, 15, 0); block(a, 15, 1, do_qk=False)
    a("s_nop 1")
    pv(a, 0, 1, 1); pv(a, 1, 1, 1)
    a("s_nop 15")
    a.stamp_mid(sm+1)
    a("s_setprio 3")
    a(f"s_cmp_lg_u32 s{S_ATT}, 0")
    a("s_cbranch_scc1 L_attn_out")
    a(f"v_max_f32 v{TMP}, v{O[0]+10}, v{O[1]+10}")
    for aq in range(2):
        for e in range(11):
            a(f"v_fma_f32 v{TMP}, v{O[aq]+e}, 0, v{TMP}")
    a(f"v_mov_b32 v{TMP+1}, 0x5f800000")
    a(f"v_cmp_nlt_f32 vcc, v{TMP}, v{TMP+1}")
    a("s_cmp_lg_u64 vcc, 0")
    a("s_cselect_b32 s69, 1, 0")
    a(f"v_mov_b32 v{TMP}, s69")
    a(f"s_lshl_b32 s69, s52, 2")
    a(f"s_add_u32 s69, s69, {2*CH}")
    a(f"v_mov_b32 v{TMP+1}, s69")
    a(f"ds_write_b32 v{TMP+1}, v{TMP}")
    a(f"v_mov_b32 v{TMP+1}, {2*CH}")
    a("s_waitcnt lgkmcnt(0)")
    a("s_barrier")
    a(f"ds_read_b128 {vr(TMP+4,4)}, v{TMP+1}")
    a("s_waitcnt lgkmcnt(0)")
    a(f"v_or_b32 v{TMP}, v{TMP+4}, v{TMP+5}")
    a(f"v_or3_b32 v{TMP}, v{TMP}, v{TMP+6}, v{TMP+7}")
    a("s_nop 0")
    a(f"v_readfirstlane_b32 s69, v{TMP}")
    a("s_nop 3")
    a("s_cmp_eq_u32 s69, 0")
    a("s_cbranch_scc1 L_attn_out")
    a(f"s_mov_b32 s{S_ATT}, 1")
    for aq in range(2):
        a(f"v_mov_b32 v{Q1[aq]+1}, 0")
        a(f"v_mov_b32 v{TMP+2+aq}, 0xff800000")
    a(f"s_mov_b32 s66, s{S_KV}")
    a(f"s_mov_b32 s{S_C}, 0")
    a.label("L_attn_mx_chunk")
    dma_chunk(a, 64, 66)
    a(f"s_add_u32 s66, s66, {CH}")
    a(f"v_mov_b32 v{VK0}, v5")
    a(f"v_add_u32 v{VK1}, 1024, v7")
    a("s_mov_b32 s69, 0")
    a("s_waitcnt vmcnt(0)")
    a("s_barrier")
    a.label("L_attn_mx_tile")
    read_k(a, 0, 0)
    a(f"v_add_u32 v{VK0}, {KV_RS}, v{VK0}")
    a(f"v_add_u32 v{VK1}, {KV_RS}, v{VK1}")
    a("s_waitcnt lgkmcnt(0)")
    for aq in range(2):
        qk(a, 0, aq, 0); qk(a, 1, aq, 0)
    a("s_nop 15")
    for aq in range(2):
        tile_max(a, aq, TMP+2+aq, False)
    a("s_add_u32 s69, s69, 1")
    a("s_cmp_lt_u32 s69, 16")
    a("s_cbranch_scc1 L_attn_mx_tile")
    a("s_barrier")
    a(f"s_add_u32 s{S_C}, s{S_C}, 1")
    a(f"s_cmp_lt_u32 s{S_C}, 4")
    a("s_cbranch_scc1 L_attn_mx_chunk")
    for aq in range(2):
        set_m(a, aq, TMP+2+aq)
    a("s_branch L_attn_start")
    a.label("L_attn_out")
    a("s_mul_i32 s63, s62, 36")
    a("s_add_u32 s69, s63, s61")
    a("s_lshl_b32 s69, s69, 10")
    a(f"s_add_u32 s69, s69, {O_OFF}")
    a("s_lshr_b32 s70, s61, 3")
    a("s_add_u32 s70, s70, s63")
    a("s_lshl_b32 s70, s70, 10")
    a("s_bfe_u32 s71, s61, 0x10002")
    a("s_lshl_b32 s71, s71, 9")
    a("s_add_u32 s70, s70, s71")
    a("s_and_b32 s71, s61, 3")
    a("s_lshl_b32 s71, s71, 2")
    a("s_add_u32 s70, s70, s71")
    a(f"s_add_u32 s70, s70, {O_OFF + 32*1024}")
    for aq in range(2):
        o = O[aq]
        a(f"v_rcp_f32 v{o+10}, v{o+10}")
        a("s_nop 0")
        for e in range(10):
            a(f"v_mul_f32 v{o+e}, v{o+e}, v{o+10}")
        for e in range(5):
            a(f"v_cvt_pk_bf16_f32 v{o+e}, v{o+2*e}, v{o+2*e+1}")
        a(f"buffer_store_dwordx4 {vr(o,4)}, v5, s[48:51], s69 offen sc1")
        a("s_mov_b32 exec_hi, 0")
        a(f"buffer_store_dword v{o+4}, v5, s[48:51], s70 offen sc1")
        a("s_mov_b64 exec, -1")
        if aq == 0:
            a(f"s_add_u32 s69, s69, {36*1024}")
            a(f"s_add_u32 s70, s70, {36*1024}")
    pub(a)
```

```python
from common import *
import math
QSCALE = (DH ** -0.5) * math.log2(math.e)
SC = " sc1"
CB = 17408
ACC = 96
SET = [32, 52]

XNT = ''
def qkv_body(a, wgreg, pub, hint=None):
    a.srd(40, P_X, S*D*2)
    a.srd(44, P_WQKV, D*3*D*2)
    a(f"s_and_b32 s53, {wgreg}, 7")
    a(f"s_lshr_b32 s54, {wgreg}, 3")
    a("s_lshr_b32 s55, s53, 1")
    a("s_lshl_b32 s55, s55, 2")
    a("s_and_b32 s56, s54, 3")
    a("s_add_u32 s55, s55, s56")
    a("s_and_b32 s56, s53, 1")
    a("s_mul_i32 s56, s56, 6")
    a("s_lshr_b32 s57, s54, 2")
    a("s_add_u32 s56, s56, s57")
    a("s_lshl_b32 s59, s55, 2")
    a("s_add_u32 s60, s59, s52")
    a("v_lshrrev_b32 v2, 2, v0")
    a("s_lshl_b32 s60, s60, 5")
    a("v_add_u32 v2, s60, v2")
    a("v_mul_u32_u24 v2, 1152, v2")
    a("v_lshrrev_b32 v3, 4, v0")
    a("v_xor_b32 v3, v3, v0")
    a("v_and_b32 v3, 3, v3")
    a("v_lshl_add_u32 v2, v3, 4, v2")
    a(f"v_add_u32 v3, {16*1152}, v2")
    a("s_mul_i32 s65, s56, 288")
    a(f"s_mul_i32 s60, s52, {8*3456}")
    a("s_add_u32 s65, s65, s60")
    for i in range(3):
        a(f"v_add_u32 v7, {64*i}, v0")
        a(f"v_mul_u32_u24 v8, 3641, v7")
        a(f"v_lshrrev_b32 v8, 16, v8")
        a(f"v_mul_u32_u24 v9, 18, v8")
        a(f"v_sub_u32 v7, v7, v9")
        a(f"v_and_b32 v10, 1, v8")
        a(f"v_lshrrev_b32 v9, 1, v8")
        a(f"v_lshl_or_b32 v9, v10, 2, v9")
        a(f"v_mul_u32_u24 v9, 3456, v9")
        a(f"v_lshl_add_u32 v9, v7, 4, v9")
        a(f"v_add_u32 v{4+i}, s65, v9")
    a("s_lshl_b32 s61, s52, 11")
    a("s_mul_i32 s62, s52, 2304")
    a("s_add_u32 s62, s62, 8192")
    a("s_mov_b32 s63, 0")
    a("s_mov_b32 s64, 0")
    a(f"s_mov_b32 s71, {32*3456}")
    a("s_mov_b64 s[72:73], 0xffff")
    def setm0(buf, i):
        if i < 2: a(f"s_add_u32 m0, s61, {buf*CB + i*1024}")
        else: a(f"s_add_u32 m0, s62, {buf*CB + (i-2)*1024}")
    def load(i):
        if i < 2:
            a(f"buffer_load_dwordx4 v{2+i}, s[40:43], s63 offen lds")
            if i == 1: a("s_add_u32 s63, s63, 64")
        elif i < 4:
            a(f"buffer_load_dwordx4 v{2+i}, s[44:47], s64 offen lds")
        else:
            a("s_mov_b64 exec, s[72:73]")
            a(f"buffer_load_dwordx4 v6, s[44:47], s64 offen lds")
            a("s_mov_b64 exec, -1")
            a("s_add_u32 s64, s64, s71")
    for c in range(4):
        for i in range(5 if c < 3 else 2):
            setm0(c, i); a("s_nop 0"); load(i)
    a.stamp_mid(0)
    a("s_and_b32 s57, s52, 1")
    a("s_lshr_b32 s58, s52, 1")
    a("s_lshl_b32 s60, s57, 1")
    a("s_add_u32 s60, s60, s58")
    a("s_add_u32 s59, s59, s60")
    a("v_and_b32 v10, 31, v0")
    a("v_lshrrev_b32 v11, 5, v0")
    a("v_bfe_u32 v12, v10, 2, 2")
    a("v_xor_b32 v12, v12, v11")
    a("v_lshlrev_b32 v13, 6, v10")
    a("v_lshl_add_u32 v16, v12, 4, v13")
    a("s_lshl_b32 s60, s60, 11")
    a("v_add_u32 v16, s60, v16")
    a("v_xor_b32 v17, 32, v16")
    a("v_xor_b32 v18, 0x800, v16")
    a("v_xor_b32 v19, 0x800, v17")
    a("v_bfe_u32 v12, v0, 2, 2")
    a("v_lshlrev_b32 v12, 1, v12")
    a("v_lshl_add_u32 v12, v11, 3, v12")
    a("v_mul_u32_u24 v12, 288, v12")
    a("v_add_u32 v12, 0x2000, v12")
    a("v_bfe_u32 v13, v0, 4, 1")
    a("v_and_b32 v14, 3, v0")
    a("v_lshl_add_u32 v15, v14, 3, v12")
    a("v_lshl_add_u32 v20, v13, 5, v15")
    a("s_and_b32 s69, s56, 3")
    a("s_lshl_b32 s69, s69, 9")
    a("s_cmp_ge_u32 s56, 8")
    a("s_cbranch_scc1 L_qkv_v")
    a("s_mul_i32 s60, s58, 144")
    a("s_add_u32 s60, s60, 40")
    a("v_add_u32 v21, 112, v20")
    a("v_add_u32 v20, s60, v20")
    a("v_lshl_add_u32 v23, v13, 8, v15")
    a("s_cmp_lg_u32 s58, 0")
    a("s_cselect_b64 vcc, -1, 0")
    a("v_cndmask_b32 v21, v21, v23, vcc")
    a("v_mul_u32_u24 v22, 72, v14")
    a("v_add3_u32 v22, v22, v12, 32")
    loop(a, False, setm0, load, hint)
    a("s_cmp_ge_u32 s56, 4")
    a(f"s_mov_b32 s66, {QR_OFF}")
    a(f"s_mov_b32 s67, {QR_RS}")
    a(f"s_mov_b32 s68, {f32bits(QSCALE)}")
    a(f"s_cselect_b32 s66, {KV_OFF}, s66")
    a(f"s_cselect_b32 s67, {KV_RS}, s67")
    a(f"s_cselect_b32 s68, 1.0, s68")
    a("s_xor_b32 s63, s59, 1")
    a("s_add_u32 s63, s63, s69")
    a("s_add_u32 s69, s59, s69")
    a("s_mul_i32 s69, s69, s67")
    a("s_add_u32 s69, s69, s66")
    a("s_mul_i32 s63, s63, s67")
    a("s_add_u32 s63, s63, s66")
    a("s_lshl_b32 s70, s67, 6")
    a("s_lshl_b32 s60, s58, 2")
    a("s_add_u32 s72, s60, 1")
    a("s_add_u32 s73, s60, 2")
    a("s_cmp_lg_u32 s58, 0")
    a("s_cselect_b32 s76, 0, 3")
    a("s_cselect_b32 s77, 7, 4")
    for r in (72, 73, 76, 77): a(f"s_mul_i32 s{r}, s{r}, s70")
    for j, (hx, hy, rec) in enumerate(((72, 73, 69), (72, 73, 63), (76, 77, 69), (76, 77, 63))):
        qk_store_main(a, j, hx, hy, rec)
    qk_store_left(a, 4)
    a("s_branch L_qkv_done")
    a.label("L_qkv_v")
    a("s_lshl_b32 s60, s58, 7")
    a("v_add_u32 v20, s60, v20")
    a("v_add_u32 v21, 64, v20")
    a("v_add_u32 v22, 256, v15")
    loop(a, True, setm0, load, hint)
    a("s_xor_b32 s63, s59, 1")
    a("s_add_u32 s63, s63, s69")
    a("s_add_u32 s69, s59, s69")
    a(f"s_mul_i32 s69, s69, {KV_RS}")
    a(f"s_add_u32 s69, s69, {KV_OFF + 1152}")
    a(f"s_mul_i32 s63, s63, {KV_RS}")
    a(f"s_add_u32 s63, s63, {KV_OFF + 1152}")
    a("s_lshl_b32 s60, s58, 6")
    a("v_add_u32 v12, s60, v10")
    v_addr(a, "v12"); v_store(a, 0, 69); v_store(a, 1, 63)
    a("v_add_u32 v12, 32, v12")
    v_addr(a, "v12"); v_store(a, 2, 69); v_store(a, 3, 63)
    a("v_add_u32 v12, 128, v10")
    v_addr(a, "v12"); v_store(a, 4, 69)
    a.label("L_qkv_done")
    a.stamp_mid(7)
    pub(a)

def loop(a, isv, setm0, load, hint):
    def reads(sn, buf, t):
        b = SET[sn]
        X = [((sn, "x", n), f"ds_read_b128 {vr(b+4*n,4)}, v{16+2*n+t} offset:{buf*CB}") for n in range(2)]
        W = [((sn, "w", j), f"ds_read_b64_tr_b16 {vr(b+8+4*j+2*sec,2)}, v{20+j} offset:{buf*CB + t*4608 + sec*288}") for j in range(3) for sec in range(2)]
        return [X[0], W[0], W[1], X[1], W[2], W[3], W[4], W[5]]
    MF = [(0, 0), (0, 1), (1, 0), (1, 1), (2, 0)]
    def mfma(ls, sn, k, first):
        b = SET[sn]
        j, n = MF[k]
        ls.need([(sn, "x", n), (sn, "w", j)])
        w = vr(b+8+4*j, 4); x = vr(b+4*n, 4); c = vr(ACC+16*k, 16)
        A, B = (x, w) if isv else (w, x)
        a(f"v_mfma_f32_32x32x16_bf16 {c}, {A}, {B}, {'0' if first else c}")
    def body(c, first=False, kill=False, last=False):
        buf = c % 4; pb = (c - 1) % 4
        ls = LdsSched(a, [r[0] for r in reads(0, buf, 0)])
        ls.need([(0, "w", 1)])
        r = reads(1, buf, 1)
        mfma(ls, 0, 0, first)
        if not last: setm0(pb, 2)
        for x in r[0:3]: ls.read(*x)
        if not last: load(2)
        mfma(ls, 0, 1, first)
        for x in r[3:7]: ls.read(*x)
        mfma(ls, 0, 2, first)
        if not last: setm0(pb, 3)
        ls.read(*r[7])
        if not last: load(3)
        mfma(ls, 0, 3, first)
        if not last: setm0(pb, 4); load(4)
        mfma(ls, 0, 4, first)
        if kill: kill()
        if last:
            ls.drain()
            for k in range(5): mfma(ls, 1, k, False)
            return
        ls.drain()
        mfma(ls, 1, 0, False)
        a("s_waitcnt vmcnt(10)")
        a("s_barrier")
        r = reads(0, (c+1) % 4, 0)
        for x in r[0:3]: ls.read(*x)
        mfma(ls, 1, 1, False)
        for x in r[3:7]: ls.read(*x)
        mfma(ls, 1, 2, False)
        setm0(buf, 0)
        ls.read(*r[7])
        load(0)
        mfma(ls, 1, 3, False)
        setm0(buf, 1)
        mfma(ls, 1, 4, False)
        load(1)
    a("s_waitcnt vmcnt(12)")
    a("s_barrier")
    a.stamp_mid(1)
    for r in reads(0, 0, 0): a(r[1])
    body(0, first=True)
    a("s_mov_b32 s60, 4")
    L = a.newlabel("qkv")
    def kill():
        a("s_cmp_gt_u32 s60, 1")
        a("s_cselect_b32 s42, s42, 0")
        a("s_cselect_b32 s46, s46, 0")
    a.raw(".p2align 6")
    a.label(L)
    for c in range(1, 5):
        body(c, kill=kill if c == 2 else None)
    if hint: hint(a)
    a("s_sub_u32 s60, s60, 1")
    a("s_cmp_lg_u32 s60, 0")
    a(f"s_cbranch_scc1 {L}")
    body(17, last=True)
    a("v_lshlrev_b32 v2, 4, v0")
    a.stamp_mid(6)

def qk_store_main(a, j, hx, hy, rec):
    b = ACC + 16*j
    for i in range(16):
        a(f"v_mul_f32 v{b+i}, s68, v{b+i}")
    for i in range(8):
        a(f"v_cvt_pk_bf16_f32 v{b+i}, v{b+2*i}, v{b+2*i+1}")
    for half, hd in ((0, hx), (1, hy)):
        a(f"s_add_u32 s60, s{hd}, s{rec}")
        a(f"buffer_store_dwordx4 {vr(b+4*half,4)}, v2, s[48:51], s60 offen{SC}")

def qk_store_left(a, j):
    b = ACC + 16*j
    for i in range(8):
        a(f"v_mul_f32 v{b+i}, s68, v{b+i}")
    for i in range(4):
        a(f"v_cvt_pk_bf16_f32 v{b+i}, v{b+2*i}, v{b+2*i+1}")
    a("s_lshl_b32 s60, s70, 1")
    a("v_mul_lo_u32 v3, v11, s60")
    a("v_lshl_add_u32 v3, v10, 2, v3")
    for jj in range(2):
        for bb in range(2):
            a(f"s_mul_i32 s60, s70, {4*jj+bb}")
            a(f"s_add_u32 s60, s60, s69")
            a(f"buffer_store_dword v{b+2*jj+bb}, v3, s[48:51], s60 offen offset:1024{SC}")

def v_addr(a, col):
    a(f"v_mul_u32_u24 v4, 3641, {col}")
    a(f"v_lshrrev_b32 v4, 16, v4")
    a(f"v_mul_u32_u24 v5, 18, v4")
    a(f"v_sub_u32 v3, {col}, v5")
    a(f"v_mul_u32_u24 v4, {64*KV_RS}, v4")
    a(f"v_lshl_add_u32 v3, v3, 4, v4")
    a(f"v_mul_u32_u24 v4, 288, v11")
    a(f"v_add_u32 v3, v3, v4")

def v_store(a, k, rec):
    b = ACC + 16*k
    for i in range(8):
        a(f"v_cvt_pk_bf16_f32 v{b+i}, v{b+2*i}, v{b+2*i+1}")
    if k == 4:
        a("s_mov_b32 exec_lo, 0xffff")
        a("s_mov_b32 exec_hi, 0xffff")
    a(f"buffer_store_dwordx4 {vr(b,4)}, v3, s[48:51], s{rec} offen{SC}")
    a(f"buffer_store_dwordx4 {vr(b+4,4)}, v3, s[48:51], s{rec} offen offset:576{SC}")
    if k == 4:
        a("s_mov_b64 exec, -1")

RS = 1216
X0, F0 = 16, 88
XK, GK = 160, 196

def red8(a, r):
    a("s_nop 1")
    a(f"v_add_f32_dpp v{r}, v{r}, v{r} quad_perm:[1,0,3,2] row_mask:0xf bank_mask:0xf")
    a("s_nop 1")
    a(f"v_add_f32_dpp v{r}, v{r}, v{r} quad_perm:[2,3,0,1] row_mask:0xf bank_mask:0xf")
    a("s_nop 1")
    a(f"v_add_f32_dpp v{r}, v{r}, v{r} row_half_mirror row_mask:0xf bank_mask:0xf")

def rows_setup(a):
    a("v_lshrrev_b32 v2, 3, v0")
    a("v_and_b32 v3, 7, v0")
    a("s_lshl_b32 s53, s52, 3")
    a("v_add_u32 v4, s53, v2")

def rows_tail(a):
    a(f"v_mul_u32_u24 v5, {RS}, v4")
    a("v_lshl_add_u32 v5, v3, 4, v5")
    for i in range(9):
        a(f"ds_write_b128 v5, {vr(X0+4*i,4)} offset:{i*128}")
    a("s_lshr_b32 s55, s52, 1")
    a("s_and_b32 s56, s52, 1")
    a("v_lshrrev_b32 v6, 5, v0")
    a("v_bfe_u32 v7, v0, 2, 2")
    a("v_lshl_add_u32 v6, v6, 3, v7")
    a("s_lshl_b32 s60, s55, 4")
    a("v_add_u32 v6, s60, v6")
    a(f"v_mul_u32_u24 v6, {RS}, v6")
    a("v_bfe_u32 v7, v0, 4, 1")
    a("v_lshl_add_u32 v6, v7, 5, v6")
    a("v_and_b32 v7, 3, v0")
    a("v_lshl_add_u32 v6, v7, 3, v6")
    a("s_mul_i32 s60, s56, 576")
    a("v_add_u32 v6, s60, v6")
    a("s_mul_i32 s60, s52, 9216")
    a("s_add_u32 s57, s57, s60")
    a("v_lshlrev_b32 v7, 4, v0")
    a("s_waitcnt lgkmcnt(0)")
    a("s_barrier")
    for i in range(7):
        for sec in range(2):
            a(f"ds_read_b64_tr_b16 {vr(X0+4*i+2*sec,2)}, v6 offset:{sec*4*RS + i*64}")
    for i in range(9):
        a(f"s_waitcnt lgkmcnt({min(12, 2*(8-i))})")
        if i % 4 == 0 and i:
            a("s_add_u32 s57, s57, 4096")
        a(f"buffer_store_dwordx4 {vr(X0+4*i,4)}, v7, s[48:51], s57 offen offset:{(i%4)*1024}{SC}")
        if i + 7 < 9:
            for sec in range(2):
                a(f"ds_read_b64_tr_b16 {vr(X0+4*(i+7)+2*sec,2)}, v6 offset:{sec*4*RS + (i+7)*64}")

def ln_body(a, jreg, pub, pre=None):
    a.srd(40, P_X, S*D*2)
    rows_setup(a)
    a(f"s_and_b32 s58, {jreg}, 7")
    a(f"s_lshr_b32 s56, {jreg}, 3")
    a("s_lshl_b32 s58, s58, 3")
    a("s_add_u32 s58, s58, s56")
    a("s_lshl_b32 s56, s58, 5")
    a("v_add_u32 v6, s56, v4")
    a("v_mul_u32_u24 v7, 1152, v6")
    a("v_lshl_add_u32 v7, v3, 4, v7")
    for i in range(9):
        a(f"buffer_load_dwordx4 {vr(XK+4*i,4)}, v7, s[40:43], 0 offen offset:{i*128}")
    a.srd(44, P_GW, D*2)
    a("v_lshlrev_b32 v8, 4, v3")
    for i in range(9):
        a(f"buffer_load_dwordx4 {vr(GK+4*i,4)}, v8, s[44:47], 0 offen offset:{i*128}")
    a(f"s_mul_i32 s57, s58, {2*18*1024}")
    a(f"s_add_u32 s57, s57, {HT_OFF}")
    a("v_mov_b32 v8, 0")
    a("v_mov_b32 v9, 0")
    a.stamp_mid(0)
    def pk(i): return vr(F0+2*i, 2)
    for i in range(36):
        if i % 4 == 0: a(f"s_waitcnt vmcnt({17 - i//4})")
        a(f"v_lshlrev_b32 v{F0+2*i}, 16, v{XK+i}")
        a(f"v_and_b32 v{F0+2*i+1}, 0xffff0000, v{XK+i}")
        a(f"v_pk_add_f32 v[8:9], v[8:9], {pk(i)}")
    a.stamp_mid(1)
    a("v_add_f32 v8, v8, v9")
    red8(a, 8)
    a(f"v_mul_f32 v8, {f32bits(-1.0/D)}, v8")
    a("v_mov_b32 v10, 0")
    a("v_mov_b32 v9, v8")
    a("v_mov_b32 v11, 0")
    for i in range(36):
        a(f"v_pk_add_f32 {pk(i)}, {pk(i)}, v[8:9]")
    for i in range(36):
        a(f"v_pk_fma_f32 v[10:11], {pk(i)}, {pk(i)}, v[10:11]")
    a("v_add_f32 v10, v10, v11")
    red8(a, 10)
    a(f"v_mov_b32 v12, {f32bits(1e-5)}")
    a(f"v_fmac_f32 v12, {f32bits(1.0/D)}, v10")
    a("v_rsq_f32 v12, v12")
    a("s_nop 0")
    a("v_mov_b32 v13, v12")
    for i in range(36):
        a(f"v_pk_mul_f32 {pk(i)}, {pk(i)}, v[12:13]")
    for i in range(36):
        a(f"v_cvt_pk_bf16_f32 v{X0+i}, v{F0+2*i}, v{F0+2*i+1}")
    if pre: pre(a)
    rows_tail(a)
    pub(a)

def wo_body(a, jreg):
    a.srd(40, P_WO, D*D*2)
    rows_setup(a)
    a(f"s_lshl_b32 s57, {jreg}, 1")
    a("s_lshr_b32 s55, s52, 1")
    a("s_add_u32 s57, s57, s55")
    a("s_and_b32 s56, s52, 1")
    a("s_lshl_b32 s56, s56, 2")
    a("s_cmp_ge_u32 s57, 32")
    a("s_cbranch_scc1 L_wo_left")
    a("s_mul_i32 s57, s57, 18")
    a("s_add_u32 s57, s57, s56")
    a("v_lshrrev_b32 v6, 2, v2")
    a("v_and_b32 v7, 3, v2")
    a("v_lshl_add_u32 v6, v6, 3, v7")
    a("v_add_u32 v6, s57, v6")
    a("s_branch L_wo_ld")
    a.label("L_wo_left")
    a("s_sub_u32 s57, s57, 32")
    a("s_lshl_b32 s57, s57, 3")
    a("s_add_u32 s57, s57, s56")
    a("v_lshrrev_b32 v6, 1, v2")
    a("v_add_u32 v6, s57, v6")
    a("v_mul_u32_u24 v6, 18, v6")
    a("v_and_b32 v7, 1, v2")
    a("v_add3_u32 v6, v6, v7, 16")
    a.label("L_wo_ld")
    a("v_mul_u32_u24 v7, 1152, v6")
    a("v_lshl_add_u32 v7, v3, 4, v7")
    for i in range(9):
        a(f"buffer_load_dwordx4 {vr(X0+4*i,4)}, v7, s[40:43], 0 offen offset:{i*128}")
    a(f"s_mul_i32 s57, {jreg}, {2*18*1024}")
    a(f"s_add_u32 s57, s57, {WOF_OFF}")
    a("s_waitcnt vmcnt(0)")
    rows_tail(a)

def gate_own(a):
    a("v_mov_b32 v8, 0")
    a("v_mov_b32 v9, 0")
    for i in range(36):
        a(f"v_lshlrev_b32 v12, 16, v{GK+i}")
        a(f"v_and_b32 v13, 0xffff0000, v{GK+i}")
        a(f"v_lshlrev_b32 v14, 16, v{XK+i}")
        a(f"v_and_b32 v15, 0xffff0000, v{XK+i}")
        a(f"v_pk_fma_f32 v[8:9], v[12:13], v[14:15], v[8:9]")
    a("v_add_f32 v8, v8, v9")
    red8(a, 8)
    a(f"v_mul_f32 v8, {f32bits(-math.log2(math.e))}, v8")
    a("v_exp_f32 v8, v8")
    a("s_lshl_b32 s56, s58, 5")
    a("v_add_f32 v8, 1.0, v8")
    a("v_rcp_f32 v8, v8")
    a("v_add_u32 v6, s56, v4")
    a("v_lshlrev_b32 v6, 2, v6")
    a(f"s_mov_b32 s57, {G_OFF}")
    a("s_mov_b32 exec_lo, 0x01010101")
    a("s_mov_b32 exec_hi, 0x01010101")
    a(f"buffer_store_dword v8, v6, s[48:51], s57 offen{SC}")
    a("s_mov_b64 exec, -1")

def xw_touch(a, greg):
    a.srd(40, P_WQKV, D*3*D*2)
    a.srd(44, P_X, S*D*2)
    a(f"s_lshr_b32 s53, {greg}, 3")
    a("s_lshl_b32 s53, s53, 2")
    a("s_add_u32 s53, s53, s52")
    a("s_lshl_b32 s54, s53, 6")
    a("v_add_u32 v5, s54, v0")
    a("v_mul_u32_u24 v6, 18725, v5")
    a("v_lshrrev_b32 v6, 18, v6")
    a("v_mul_u32_u24 v7, 13, v6")
    a("v_add_u32 v7, v7, v5")
    a(f"s_and_b32 s54, {greg}, 1")
    a("s_mul_i32 s54, s54, 13")
    a("v_add_lshl_u32 v7, v7, s54, 7")
    a(f"buffer_load_dword v60, v7, s[40:43], 0 offen{XNT}")
    L = a.newlabel("nox")
    a("s_cmp_ge_u32 s53, 72")
    a(f"s_cbranch_scc1 {L}")
    a(f"s_bfe_u32 s54, {greg}, 0x20001")
    a("s_mul_i32 s54, s54, 4608")
    a("v_add_lshl_u32 v7, v5, s54, 7")
    a(f"buffer_load_dword v61, v7, s[44:47], 0 offen{XNT}")
    a.label(L)
for n in range(8192):
    assert (n*18725) >> 18 == n//14
```

```python
from common import *
import math

MLP1_GRID = 216
for t in range(216):
    assert (t*171) >> 10 == t//6

VT, VTB, VD, VF = 1, 2, 3, 4
TB = 8
FB = 24
ACC = 64
def acc(j, i): return ACC + 16*(3*j + i)
S_T, S_F, S_TMP, S_WO, S_WB, S_RO, S_LBASE, S_CNT = 54, 57, 60, 61, 62, 63, 64, 65
YIELD = 2
TOUCH = False
FSC = ' sc1'
STAG = 0
TNT = ''
DEP_FIRST = False
NS = 32
STRIDE = F*2

def mlp1_body(a, wgreg, dep, pub, sm=0, epi=None):
    a.srd(40, P_W1, S*F*2)
    a.srd(44, P_B1, F*2)
    a(f"s_and_b32 s66, {wgreg}, 7")
    a("s_mul_i32 s66, s66, 27")
    a(f"s_lshr_b32 s67, {wgreg}, 3")
    a("s_add_u32 s67, s67, s66")
    a("s_mul_i32 s66, s67, 171")
    a("s_lshr_b32 s66, s66, 10")
    a("s_mul_i32 s68, s66, 6")
    a("s_sub_u32 s67, s67, s68")
    a(f"s_mul_i32 s{S_T}, s52, {512*STRIDE}")
    a(f"s_lshl_b32 s70, s66, 8")
    a(f"s_add_u32 s{S_T}, s{S_T}, s70")
    a(f"s_mov_b32 s55, s{S_T}")
    a(f"s_mul_i32 s{S_F}, s52, {32*18*1024}")
    a(f"s_mul_i32 s70, s67, 3072")
    a(f"s_add_u32 s{S_F}, s{S_F}, s70")
    a(f"s_add_u32 s{S_F}, s{S_F}, {HT_OFF}")
    a(f"v_lshrrev_b32 v5, 4, v0")
    a(f"v_add_u32 v5, s52, v5")
    a(f"v_and_b32 v5, 3, v5")
    a(f"v_and_b32 v6, 3, v0")
    a(f"v_lshlrev_b32 v6, 4, v6")
    a(f"v_lshl_add_u32 v5, v5, 6, v6")
    a(f"v_bfe_u32 v6, v0, 2, 2")
    a(f"v_mul_u32_u24 v6, {STRIDE}, v6")
    a(f"v_add_u32 v{VD}, v5, v6")
    a(f"v_lshlrev_b32 v{VF}, 4, v0")
    a(f"s_lshl_b32 s{S_LBASE}, s52, 14")
    a(f"s_mov_b32 s{S_WO}, 0")
    a(f"s_mov_b32 s{S_WB}, s{S_LBASE}")
    a(f"s_mov_b32 s{S_RO}, 0")

    ops = []
    place = [("F",0,0),("F",1,0),("F",2,1),("D",0,1),("D",1,2),("D",2,2),("D",3,3)]
    for t in range(-3, NS):
        for kind, i, g in place:
            ds = t + 2 if kind == "F" else t + 3
            if 0 <= ds < NS:
                ops.append((kind, ds, i, t, g))
    def need(kind, ds, t, g):
        last = max(n for n, o in enumerate(ops) if o[0] == kind and o[1] == ds)
        return sum(1 for n, o in enumerate(ops) if n > last and (o[3], o[4]) < (t, g))
    def issue(kind, ds, i):
        if kind == "F":
            a(f"buffer_load_dwordx4 {vr(FB + 12*(ds%3) + 4*i, 4)}, v{VF}, s[48:51], s{S_F} offen offset:{i*1024}{FSC}")
            if i == 2:
                a(f"s_add_u32 s{S_F}, s{S_F}, {18*1024}")
                if STAG:
                    a(f"s_cmp_eq_u32 s{S_F}, s59")
                    a(f"s_cselect_b32 s{S_F}, s58, s{S_F}")
        else:
            a(f"s_add_u32 m0, s{S_WB}, {i*1024}")
            a(f"s_add_u32 s{S_T}, s{S_T}, {4*STRIDE}")
            a(f"buffer_load_dwordx4 v{VD}, s[40:43], s{S_T} offen{TNT} lds")
            if i == 3:
                if STAG:
                    a(f"s_cmp_eq_u32 s{S_T}, s56")
                    a(f"s_cselect_b32 s{S_T}, s55, s{S_T}")
                a(f"s_add_u32 s{S_WO}, s{S_WO}, 4096")
                a(f"s_and_b32 s{S_WO}, s{S_WO}, 0x3fff")
                a(f"s_add_u32 s{S_WB}, s{S_WO}, s{S_LBASE}")
    def tread(j, sec):
        a(f"ds_read_b64_tr_b16 {vr(TB + 4*j + 2*sec, 2)}, v{VT} offset:{j*256 + sec*1024}")
    def mfma(t, j, i):
        T = vr(TB + 4*j, 4); Fr = vr(FB + 12*(t%3) + 4*i, 4); c = vr(acc(j, i), 16)
        n = 3*j + i
        if YIELD > 1:
            if n % YIELD == 0: a("s_setprio 0")
            if n % YIELD == 1: a("s_setprio 2")
        a(f"v_mfma_f32_32x32x16_bf16 {c}, {T}, {Fr}, {c if t > 0 else '0'}")
    def step(t):
        for g in range(4):
            mine = [o for o in ops if o[3] == t and o[4] == g]
            last = (t == NS-1)
            if g == 0:
                a(f"s_waitcnt vmcnt({need('F', t, t, 0)}) lgkmcnt(2)")
            elif g == 2 and not last:
                a(f"s_waitcnt vmcnt({need('D', t+1, t, 2)}) lgkmcnt(2)")
                a(f"s_add_u32 s{S_RO}, s{S_RO}, 4096")
                a(f"s_and_b32 s{S_RO}, s{S_RO}, 0x3fff")
                a(f"v_add_u32 v{VT}, s{S_RO}, v{VTB}")
            else:
                a(f"s_waitcnt lgkmcnt({0 if (last and g == 3) else 2})")
            rd = not (last and g >= 2)
            mfma(t, g, 0)
            if rd: tread((g+2) % 4, 0)
            if mine: issue(*mine[0][:3])
            mfma(t, g, 1)
            if rd: tread((g+2) % 4, 1)
            if len(mine) > 1: issue(*mine[1][:3])
            mfma(t, g, 2)
    a(f"s_sub_u32 s{S_T}, s{S_T}, {4*STRIDE}")
    if STAG:
        a(f"s_mov_b32 s55, s{S_T}")
        a(f"s_add_u32 s56, s55, {512*STRIDE}")
        a(f"s_mov_b32 s58, s{S_F}")
        a(f"s_add_u32 s59, s58, {32*18*1024}")
        if STAG == 1:
            a("s_mul_i32 s70, s67, 5")
        else:
            a(f"s_lshr_b32 s70, {wgreg}, 3")
            a("s_mul_i32 s70, s70, 5")
            a("s_and_b32 s70, s70, 31")
        a(f"s_mul_i32 s71, s70, {16*STRIDE}")
        a(f"s_add_u32 s{S_T}, s{S_T}, s71")
        a(f"s_mul_i32 s71, s70, {18*1024}")
        a(f"s_add_u32 s{S_F}, s{S_F}, s71")
    if DEP_FIRST: dep(a)
    for o in ops:
        if o[3] < 0 and o[0] == "D":
            issue(*o[:3])
    a(f"v_lshrrev_b32 v5, 5, v0")
    a(f"v_lshlrev_b32 v5, 11, v5")
    a(f"v_bfe_u32 v6, v0, 2, 2")
    a(f"v_lshl_add_u32 v5, v6, 6, v5")
    a(f"v_bfe_u32 v6, v0, 4, 1")
    a(f"v_lshl_add_u32 v5, v6, 5, v5")
    a(f"v_and_b32 v6, 3, v0")
    a(f"v_lshl_add_u32 v5, v6, 3, v5")
    a(f"v_add_u32 v{VTB}, s{S_LBASE}, v5")
    a(f"v_mov_b32 v{VT}, v{VTB}")
    if TOUCH:
        a(f"v_lshrrev_b32 v5, 1, v0")
        a(f"v_mul_u32_u24 v5, {STRIDE}, v5")
        a(f"v_and_b32 v6, 1, v0")
        a(f"v_lshl_add_u32 v5, v6, 7, v5")
        a(f"s_add_u32 s70, s67, 1")
        a(f"s_mul_i32 s70, s70, {32*STRIDE}")
        a(f"s_add_u32 s70, s70, s55")
        a(f"buffer_load_dword v60, v5, s[40:43], s70 offen")
    if not DEP_FIRST: dep(a)
    for o in ops:
        if o[3] < 0 and o[0] == "F":
            issue(*o[:3])
    a("s_waitcnt vmcnt(6)")
    for j in range(2):
        tread(j, 0); tread(j, 1)
    a("s_waitcnt vmcnt(0)")
    a(f"s_setprio {0 if YIELD else 2}")
    a.stamp_mid(sm)
    step(0)
    nloop = (NS - 4)//3
    for t in range(1, 1 + 3*nloop):
        assert need('F', t, t, 0) == 11 and need('D', t+1, t, 2) == 11
    a(f"s_mov_b32 s{S_CNT}, {nloop}")
    a.raw(".p2align 6")
    a.label(f"L_mlp1_loop")
    for t in range(1, 4):
        step(t)
    if a.stamp:
        for cnt, slot in ((7, 6), (4, 7)):
            Ls = a.newlabel("st")
            a(f"s_cmp_lg_u32 s{S_CNT}, {cnt}")
            a(f"s_cbranch_scc1 {Ls}")
            a.stamp_mid(slot)
            a.label(Ls)
    a(f"s_sub_u32 s{S_CNT}, s{S_CNT}, 1")
    a(f"s_cmp_lg_u32 s{S_CNT}, 0")
    a(f"s_cbranch_scc1 L_mlp1_loop")
    for t in range(1 + 3*nloop, NS):
        step(t)
    a("s_setprio 2")
    a.stamp_mid(sm+1)
    a("s_lshl_b32 s70, s66, 2")
    a("s_add_u32 s70, s70, s52")
    a("s_lshl_b32 s71, s70, 6")
    a("v_lshrrev_b32 v5, 5, v0")
    a("v_lshlrev_b32 v5, 3, v5")
    for jj in range(4):
        a(f"buffer_load_dwordx2 {vr(8+2*jj,2)}, v5, s[44:47], s71 offen offset:{jj*16}")
    if epi: epi(a)
    for rho in range(1, 4):
        a(f"s_add_u32 s72, s52, {rho}")
        a(f"s_and_b32 s72, s72, 3")
        a(f"s_mul_i32 s72, s72, 20480")
        a(f"v_add_u32 v{rho}, s72, v{VF}")
    a(f"s_mul_i32 s72, s52, 20480")
    a(f"v_add_u32 v6, s72, v{VF}")
    a("s_nop 7")
    a("s_barrier")
    rounds = [[(1,0),(2,0),(3,0),(1,1),(2,1)], [(3,1),(1,2),(2,2),(3,2)]]
    for rn, rnd in enumerate(rounds):
        for slot, (rho, i) in enumerate(rnd):
            for q in range(4):
                a(f"ds_write_b128 v{rho}, {vr(acc(rho,i)+4*q,4)} offset:{slot*4096+q*1024}")
        a("s_waitcnt lgkmcnt(0)")
        a("s_barrier")
        for slot, (rho, i) in enumerate(rnd):
            for q in range(4):
                a(f"ds_read_b128 {vr(acc(rho,i)+4*q,4)}, v6 offset:{slot*4096+q*1024}")
            if slot >= 2:
                a("s_waitcnt lgkmcnt(8)")
                r2, i2 = rnd[slot-2]
                for e in range(0, 16, 2):
                    a(f"v_pk_add_f32 {vr(acc(0,i2)+e,2)}, {vr(acc(0,i2)+e,2)}, {vr(acc(r2,i2)+e,2)}")
        for k, slot in enumerate((len(rnd)-2, len(rnd)-1)):
            a(f"s_waitcnt lgkmcnt({4 if k == 0 else 0})")
            if k == 1 and rn == 0:
                a("s_barrier")
            r2, i2 = rnd[slot]
            for e in range(0, 16, 2):
                a(f"v_pk_add_f32 {vr(acc(0,i2)+e,2)}, {vr(acc(0,i2)+e,2)}, {vr(acc(r2,i2)+e,2)}")
    a(f"s_waitcnt vmcnt({1 if epi else 0})")
    for jj in range(4):
        for p in range(2):
            a(f"v_lshlrev_b32 v{24+4*jj+2*p}, 16, v{8+2*jj+p}")
            a(f"v_and_b32 v{24+4*jj+2*p+1}, 0xffff0000, v{8+2*jj+p}")
    c0 = -2.0*math.sqrt(2.0/math.pi)*math.log2(math.e)
    a(f"v_mov_b32 v40, {f32bits(c0*0.044715)}")
    a(f"v_mov_b32 v41, {f32bits(c0*0.044715)}")
    a(f"v_mov_b32 v42, {f32bits(c0)}")
    a(f"v_mov_b32 v43, {f32bits(c0)}")
    a(f"v_mov_b32 v44, 1.0")
    a(f"v_mov_b32 v45, 1.0")
    a(f"s_mul_i32 s71, s70, {2*18*1024}")
    a(f"s_mul_i32 s73, s67, 3072")
    a(f"s_add_u32 s71, s71, s73")
    a(f"s_add_u32 s71, s71, {U_OFF}")
    a(f"s_add_u32 s73, s71, {18*1024}")
    T1 = acc(1, 0)
    P = lambda r: vr(r, 2)
    for i in range(3):
        b = acc(0, i)
        for e in range(0, 16, 2): a(f"v_pk_add_f32 {P(b+e)}, {P(b+e)}, {P(24+e)}")
        for e in range(0, 16, 2): a(f"v_pk_mul_f32 {P(T1+e)}, {P(b+e)}, {P(b+e)}")
        for e in range(0, 16, 2): a(f"v_pk_fma_f32 {P(T1+e)}, {P(T1+e)}, v[40:41], v[42:43]")
        for e in range(0, 16, 2): a(f"v_pk_mul_f32 {P(T1+e)}, {P(T1+e)}, {P(b+e)}")
        for e in range(16): a(f"v_exp_f32 v{T1+e}, v{T1+e}")
        for e in range(0, 16, 2): a(f"v_pk_add_f32 {P(T1+e)}, {P(T1+e)}, v[44:45]")
        for e in range(16): a(f"v_rcp_f32 v{T1+e}, v{T1+e}")
        for e in range(0, 16, 2): a(f"v_pk_mul_f32 {P(b+e)}, {P(b+e)}, {P(T1+e)}")
        for e in range(8):  a(f"v_cvt_pk_bf16_f32 v{b+e}, v{b+2*e}, v{b+2*e+1}")
        a(f"buffer_store_dwordx4 {vr(b,4)}, v{VF}, s[48:51], s71 offen offset:{i*1024} sc1")
        a(f"buffer_store_dwordx4 {vr(b+4,4)}, v{VF}, s[48:51], s73 offen offset:{i*1024} sc1")
    pub(a)
```

```python
from common import *

MLP2_GRID = 240
for n in range(30):
    assert (n*86) >> 8 == n//3

VFA, VTA, VFB, VTB_, VDT, VDF = 1, 2, 3, 4, 5, 6
FR = [8, 28]
ACC = 64
def acc(i, n): return ACC + 16*(2*i + n)
S_T, S_F, S_WB, S_RO, S_CNT, S_LEFT = 54, 55, 56, 57, 58, 59
STAGE = 20480
YIELD = 1
M2ST = False
TNT = ''

def mlp2_body(a, wgreg, sm=0, dep=None, pub=None):
    a.srd(40, P_W2, S*F*2)
    a.srd(44, P_WS, WS_SIZE)
    a(f"s_lshr_b32 s67, {wgreg}, 3")
    a("s_mul_i32 s66, s67, 86")
    a("s_lshr_b32 s66, s66, 8")
    a("s_mul_i32 s68, s66, 3")
    a("s_sub_u32 s67, s67, s68")
    a(f"s_and_b32 s68, {wgreg}, 7")
    a("s_mul_i32 s68, s68, 10")
    a("s_add_u32 s66, s66, s68")
    a("s_lshr_b32 s69, s66, 4")
    a("s_and_b32 s66, s66, 15")
    a("s_cmp_eq_u32 s69, 4")
    a(f"s_cselect_b32 s{S_CNT}, 28, 29")
    a(f"s_mov_b32 s{S_LEFT}, s{S_CNT}")
    a(f"s_mul_i32 s{S_T}, s69, {928*4096}")
    a("s_lshl_b32 s70, s66, 8")
    a(f"s_add_u32 s{S_T}, s{S_T}, s70")
    a("s_lshl_b32 s70, s52, 15")
    a(f"s_add_u32 s{S_T}, s{S_T}, s70")
    a(f"s_mul_i32 s{S_F}, s69, {58*18*1024}")
    a("s_mul_i32 s70, s67, 6144")
    a(f"s_add_u32 s{S_F}, s{S_F}, s70")
    a("s_lshr_b32 s70, s52, 1")
    a(f"s_mul_i32 s70, s70, {18*1024}")
    a(f"s_add_u32 s{S_F}, s{S_F}, s70")
    a("s_and_b32 s71, s52, 1")
    a("s_mul_i32 s70, s71, 3072")
    a(f"s_add_u32 s{S_F}, s{S_F}, s70")
    a(f"s_add_u32 s{S_F}, s{S_F}, {U_OFF}")
    a("s_lshl_b32 s60, s52, 11")
    a("s_mul_i32 s61, s52, 3072")
    a("s_add_u32 s61, s61, 8192")
    a(f"s_mov_b32 s{S_WB}, 0")
    a(f"s_mov_b32 s{S_RO}, 0")
    a(f"v_lshrrev_b32 v8, 4, v0")
    a(f"v_and_b32 v9, 3, v0")
    a(f"v_lshlrev_b32 v9, 4, v9")
    a(f"v_lshl_add_u32 v8, v8, 6, v9")
    a(f"v_bfe_u32 v9, v0, 2, 2")
    a(f"v_lshl_add_u32 v{VDT}, v9, 12, v8")
    a(f"v_lshlrev_b32 v{VDF}, 4, v0")
    a(f"v_lshrrev_b32 v8, 5, v0")
    a(f"v_lshlrev_b32 v8, 10, v8")
    a(f"v_lshl_add_u32 v8, v9, 6, v8")
    a(f"v_bfe_u32 v9, v0, 4, 1")
    a(f"v_lshl_add_u32 v8, v9, 5, v8")
    a(f"v_and_b32 v9, 3, v0")
    a(f"v_lshl_add_u32 v8, v9, 3, v8")
    a("s_lshr_b32 s72, s52, 1")
    a("s_lshl_b32 s70, s72, 9")
    a(f"v_add_u32 v{VTB_}, s70, v8")
    a("s_mul_i32 s70, s71, 3072")
    a("s_add_u32 s70, s70, 8192")
    a(f"v_add_u32 v{VFB}, s70, v{VDF}")
    a(f"v_mov_b32 v{VTA}, v{VTB_}")
    a(f"v_mov_b32 v{VFA}, v{VFB}")

    def dma_t(i, wb, st):
        a(f"s_add_u32 m0, s{wb}, {i*1024}")
        if i:
            a(f"s_add_u32 s63, s{st}, {4*4096}")
            a(f"buffer_load_dwordx4 v{VDT}, s[40:43], s63 offen{TNT} lds")
        else:
            a("s_nop 0")
            a(f"buffer_load_dwordx4 v{VDT}, s[40:43], s{st} offen{TNT} lds")
    def dma_f(i, wb, sf):
        if i == 0:
            a(f"s_mov_b32 m0, s{wb}")
            a("s_nop 0")
        a(f"buffer_load_dwordx4 v{VDF}, s[44:47], s{sf} offen offset:{i*1024} sc1 lds")
    for st in range(4):
        a(f"s_add_u32 s62, s60, {st*STAGE}")
        dma_t(0, 62, S_T); dma_t(1, 62, S_T)
        a(f"s_add_u32 s{S_T}, s{S_T}, {32*4096}")
    if dep: dep(a)
    for st in range(3):
        a(f"s_add_u32 s64, s61, {st*STAGE}")
        for i in range(3): dma_f(i, 64, S_F)
        a(f"s_add_u32 s{S_F}, s{S_F}, {2*18*1024}")
    a(f"s_add_u32 s64, s61, {3*STAGE}")
    a(f"s_sub_u32 s{S_LEFT}, s{S_LEFT}, 4")
    def reads(sn, step):
        b = FR[sn]
        Fr = [((sn, "F", i), f"ds_read_b128 {vr(b+4*i,4)}, v{VFA} offset:{step*6144 + i*1024}") for i in range(3)]
        T = [((sn, "T", n), f"ds_read_b64_tr_b16 {vr(b+12+4*n+2*sec,2)}, v{VTA} offset:{step*4096 + sec*2048 + n*256}") for n in range(2) for sec in range(2)]
        return [Fr[0], T[0], T[1], T[2], T[3], Fr[1], Fr[2]]
    def mfma(ls, sn, k, first):
        b = FR[sn]
        i, n = k >> 1, k & 1
        ls.need([(sn, "F", i), (sn, "T", n)])
        if YIELD > 1:
            if k % YIELD == 0: a("s_setprio 0")
            if k % YIELD == 1: a("s_setprio 2")
        c = vr(acc(i, n), 16)
        a(f"v_mfma_f32_32x32x16_bf16 {c}, {vr(b+4*i,4)}, {vr(b+12+4*n,4)}, {'0' if first else c}")
    def body(first, vm):
        ls = LdsSched(a, [r[0] for r in reads(0, 0)])
        r = reads(1, 1)
        cut = [0, 4, 7, 7, 7, 7, 7]
        for k in range(6):
            mfma(ls, 0, k, first)
            for x in r[cut[k]:cut[k+1]]: ls.read(*x)
            if k == 0: dma_f(0, 64, S_F)
            if k == 2: dma_f(1, 64, S_F)
            if k == 3:
                a(f"s_add_u32 s{S_RO}, s{S_RO}, {STAGE}")
                a(f"s_cmp_eq_u32 s{S_RO}, {4*STAGE}")
                a(f"s_cselect_b32 s{S_RO}, 0, s{S_RO}")
                a(f"v_add_u32 v{VFA}, s{S_RO}, v{VFB}")
                a(f"v_add_u32 v{VTA}, s{S_RO}, v{VTB_}")
            if k == 4:
                dma_f(2, 64, S_F)
                a(f"s_add_u32 s{S_F}, s{S_F}, {2*18*1024}")
            if k == 5:
                a(f"s_cmp_gt_i32 s{S_LEFT}, 0")
                a(f"s_cselect_b32 s42, s42, 0")
                a(f"s_cselect_b32 s46, s46, 0")
                a(f"s_add_u32 s62, s60, s{S_WB}")
                a(f"s_add_u32 s64, s61, s{S_WB}")
        mfma(ls, 1, 0, False)
        ls.drain(f"vmcnt({vm}) ")
        a("s_barrier")
        r = reads(0, 0)
        for x in r[0:3]: ls.read(*x)
        mfma(ls, 1, 1, False)
        for x in r[3:7]: ls.read(*x)
        mfma(ls, 1, 2, False)
        dma_t(0, 62, S_T)
        mfma(ls, 1, 3, False)
        a(f"s_sub_u32 s{S_LEFT}, s{S_LEFT}, 1")
        a(f"s_mov_b32 s{S_WB}, s{S_RO}")
        mfma(ls, 1, 4, False)
        dma_t(1, 62, S_T)
        a(f"s_add_u32 s{S_T}, s{S_T}, {32*4096}")
        mfma(ls, 1, 5, False)
    a("s_waitcnt vmcnt(6)")
    a("s_barrier")
    for r in reads(0, 0): a(r[1])
    a(f"s_setprio {0 if YIELD else 2}")
    a.stamp_mid(sm)
    body(True, 6)
    body(False, 8)
    a(f"s_sub_u32 s{S_CNT}, s{S_CNT}, 2")
    L = a.newlabel("mlp2")
    a.raw(".p2align 6")
    a.label(L)
    body(False, 10)
    if a.stamp and M2ST:
        for cnt, slot in ((21, 0), (15, 1), (10, 6), (5, 7)):
            Ls = a.newlabel("st")
            a(f"s_cmp_lg_u32 s{S_CNT}, {cnt}")
            a(f"s_cbranch_scc1 {Ls}")
            a.stamp_mid(slot)
            a.label(Ls)
    a(f"s_sub_u32 s{S_CNT}, s{S_CNT}, 1")
    a(f"s_cmp_lg_u32 s{S_CNT}, 0")
    a(f"s_cbranch_scc1 {L}")
    a("s_setprio 2")
    a.stamp_mid(sm+1)
    a(f"s_mul_i32 s73, s69, {YPB_SZ}")
    a("s_lshl_b32 s70, s67, 1")
    a("s_add_u32 s70, s70, s71")
    a(f"s_mul_i32 s70, s70, {3*64*2048}")
    a("s_add_u32 s73, s73, s70")
    a("s_lshl_b32 s70, s66, 1")
    a("s_add_u32 s70, s70, s72")
    a("s_lshl_b32 s70, s70, 12")
    a("s_add_u32 s73, s73, s70")
    a(f"s_add_u32 s73, s73, {YP_OFF}")
    a("s_nop 7")
    for i in range(3):
        for n in range(2):
            b = acc(i, n)
            for e in range(8):
                a(f"v_cvt_pk_bf16_f32 v{b+e}, v{b+2*e}, v{b+2*e+1}")
            for hf in range(2):
                a(f"buffer_store_dwordx4 {vr(b+4*hf,4)}, v{VDF}, s[48:51], s73 offen offset:{n*2048+hf*1024}{' sc1' if pub else ''}")
        if i < 2:
            a(f"s_add_u32 s73, s73, {64*2048}")
    if pub: pub(a)
```

```python
from common import *

MB_U, MB_H, MB_QKV, MB_O, MB_Y, MB_P, MB_N = 0, 256, 384, 512, 768, 1024, 1280
def mb(i): return CNT_OFF + 256*i
SPIN_MAX = 0x40000

def wave_setup(a):
    a("v_lshrrev_b32 v1, 6, v0")
    a("v_and_b32 v0, 63, v0")
    a("s_nop 0")
    a("v_readfirstlane_b32 s52, v1")
    a("s_waitcnt lgkmcnt(0)")

def spin(a, srd, soff, target, vt, sleep=8):
    L = a.newlabel("poll"); Ld = a.newlabel("polld")
    a("s_mov_b32 s74, 0")
    a.label(L)
    a(f"s_buffer_load_dword s75, s[{srd}:{srd+3}], {soff} glc")
    a("s_add_u32 s74, s74, 1")
    a("s_waitcnt lgkmcnt(0)")
    a(f"s_cmp_ge_u32 s75, {target}")
    a(f"s_cbranch_scc1 {Ld}")
    a(f"s_sleep {sleep}")
    a(f"s_cmp_lt_u32 s74, {SPIN_MAX}")
    a(f"s_cbranch_scc1 {L}")
    a.label(Ld)

N_INIT = 40
def spin_init(a, vt):
    L = a.newlabel("ini")
    a("s_and_b32 s77, s2, 1")
    a("s_lshl_b32 s77, s77, 7")
    a("s_buffer_load_dword s75, s[84:87], s77")
    a("s_waitcnt lgkmcnt(0)")
    a(f"s_cmp_ge_u32 s75, {N_INIT}")
    a(f"s_cbranch_scc1 {L}")
    Lr = a.newlabel("inir")
    a(f"v_mov_b32 v{vt}, 0")
    a("s_mov_b32 s74, 0")
    a.label(Lr)
    a("s_sleep 8")
    a("s_mov_b64 exec, 1")
    a(f"buffer_load_dword v{vt+1}, v{vt}, s[84:87], s77 offen sc1")
    a("s_mov_b64 exec, -1")
    a("s_waitcnt vmcnt(0)")
    a(f"v_readfirstlane_b32 s75, v{vt+1}")
    a("s_add_u32 s74, s74, 1")
    a(f"s_cmp_ge_u32 s75, {N_INIT}")
    a(f"s_cbranch_scc1 {L}")
    a(f"s_cmp_lt_u32 s74, {SPIN_MAX}")
    a(f"s_cbranch_scc1 {Lr}")
    a.label(L)

def poll(a, sidx, target, vt=5, init=False, sleep=8):
    Ld = a.newlabel("pw")
    a("s_cmp_lg_u32 s52, 0")
    a(f"s_cbranch_scc1 {Ld}")
    if init: spin_init(a, vt)
    if sidx is not None:
        spin(a, 48, f"s{sidx}", target, vt, sleep=sleep)
    a.label(Ld)
    a("s_barrier")

def publish(a, sidx, nrep, vt=5, init=False, voff=None, ninstr=1):
    L = a.newlabel("pub")
    if init:
        L0 = a.newlabel("pub")
        a("s_cmp_lg_u32 s52, 0")
        a(f"s_cbranch_scc1 {L0}")
        spin_init(a, vt)
        a.label(L0)
    a("s_waitcnt vmcnt(0)")
    a("s_barrier")
    a("s_cmp_lg_u32 s52, 0")
    a(f"s_cbranch_scc1 {L}")
    if voff: voff(a, vt)
    else: a(f"v_lshlrev_b32 v{vt}, 8, v0")
    a(f"v_mov_b32 v{vt+1}, 1")
    if isinstance(nrep, str):
        a(f"s_mov_b32 exec_lo, {nrep}")
        a("s_mov_b32 exec_hi, 0")
    elif nrep <= 32:
        a(f"s_mov_b32 exec_lo, {((1 << nrep) - 1) & 0xffffffff}")
        a("s_mov_b32 exec_hi, 0")
    for i in range(ninstr):
        a(f"buffer_atomic_add v{vt+1}, v{vt}, s[48:51], s{sidx} offen sc1")
        if i + 1 < ninstr: a(f"s_add_u32 s{sidx}, s{sidx}, {64*256}")
    a("s_mov_b64 exec, -1")
    a.label(L)

def init_mailboxes(a, jreg):
    a("v_lshrrev_b32 v5, 3, v0")
    a("v_and_b32 v6, 7, v0")
    a("v_lshlrev_b32 v6, 4, v6")
    a("v_lshl_add_u32 v5, v5, 8, v6")
    for i in range(4): a(f"v_mov_b32 v{8+i}, 0")
    a(f"s_lshl_b32 s72, {jreg}, 2")
    a("s_add_u32 s72, s72, s52")
    a("s_lshl_b32 s72, s72, 11")
    a(f"s_add_u32 s72, s72, {CNT_OFF}")
    a("buffer_store_dwordx4 v[8:11], v5, s[48:51], s72 offen sc1")
    a("s_waitcnt vmcnt(0)")
    a("s_barrier")
    L = a.newlabel("ini")
    a("s_cmp_lg_u32 s52, 0")
    a(f"s_cbranch_scc1 {L}")
    a("v_lshlrev_b32 v5, 7, v0")
    a("v_mov_b32 v6, 1")
    a("s_mov_b64 exec, 3")
    a("buffer_atomic_add v6, v5, s[84:87], 0 offen sc1")
    a("s_mov_b64 exec, -1")
    a.label(L)
```

```python
import sys
from common import *
import sync, k_front, k_mlp1, k_mlp2, k_attn, k_final
from sync import mb, MB_U, MB_H, MB_QKV, MB_O, MB_Y, MB_P

HEADER = open("cdna_kernels/" + NAME + ".s.ref").read().split("; Override launch geometry")[0]
N_WO = 18
W2_TOUCH = False
FRONT_ONLY = False
PARTNER = True
A_EXIT = False
PF1 = 2
NO_FINAL = False
PFD = 1
LN_WAIT = True
PF2 = 9
EARLY = 1
EARLY_FL = ''
PROMOTE = False
WAIT_QKV = True
HINT_AT = 2
SLP_HINT = 4
SLP_FIN = 4
W2_TAIL = True
AUX_G0 = 16
AUX_NT = ''

def gen_main(a, name):
    a.kernel_begin(name)
    a("s_cmp_ge_u32 s2, 512")
    a("s_cbranch_scc1 L_end")
    a.load_kernargs()
    sync.wave_setup(a)
    a.srd(48, P_WS, WS_SIZE)
    a.srd(84, P_DBG, 256)
    a("s_cmp_ge_u32 s2, 256")
    a("s_cbranch_scc1 L_slotB")
    a("s_setprio 3")
    a("s_cmp_ge_u32 s2, 192")
    a("s_cbranch_scc1 L_ln")
    def pub_qkv(a):
        a("s_and_b32 s72, s56, 3")
        a("s_lshl_b32 s72, s72, 13")
        a(f"s_add_u32 s72, s72, {mb(MB_QKV)}")
        sync.publish(a, 72, 32, init=not WAIT_QKV)
    def hint_store(a):
        a("s_lshl_b32 s76, s2, 8")
        a(f"s_add_u32 s76, s76, {mb(MB_P)}")
        a("v_mov_b32 v8, 0")
        a("v_mov_b32 v9, 1")
        a("s_mov_b64 exec, 1")
        a("buffer_store_dword v9, v8, s[48:51], s76 offen sc1")
        a("s_mov_b64 exec, -1")
    def hint(a):
        L = a.newlabel("hint")
        a("s_lshl_b32 s76, s52, 3")
        a("s_add_u32 s76, s76, s60")
        a(f"s_cmp_lg_u32 s76, {HINT_AT}")
        a(f"s_cbranch_scc1 {L}")
        sync.spin_init(a, 8)
        hint_store(a)
        a.label(L)
    k_front.qkv_body(a, "s2", pub_qkv, hint if WAIT_QKV else None)
    a("s_branch L_attn")
    a.label("L_ln")
    a("s_sub_u32 s3, s2, 192")
    def pub_h(a):
        a("s_lshr_b32 s72, s58, 4")
        a("s_lshl_b32 s72, s72, 13")
        a(f"s_add_u32 s72, s72, {mb(MB_H)}")
        sync.publish(a, 72, 32, init=True)
    k_front.ln_body(a, "s3", pub_h)
    Lh = a.newlabel("lnh")
    a("s_cmp_lg_u32 s52, 0")
    a(f"s_cbranch_scc1 {Lh}")
    hint_store(a)
    a.label(Lh)
    a.stamp_mid(6)
    k_front.gate_own(a)
    a(f"s_cmp_ge_u32 s3, {N_WO}")
    a("s_cbranch_scc1 L_nowo")
    k_front.wo_body(a, "s3")
    a.label("L_nowo")
    a(f"s_mov_b32 s72, {mb(MB_O)}")
    sync.publish(a, 72, 64, ninstr=4)
    a.label("L_attn")
    a.stamp_mid(2)
    if FRONT_ONLY or A_EXIT: a("s_branch L_done")
    def dep_qkv(a):
        a("s_lshr_b32 s72, s61, 3")
        a("s_lshl_b32 s72, s72, 5")
        a("s_bfe_u32 s73, s2, 0x50003")
        a("s_add_u32 s72, s72, s73")
        a("s_lshl_b32 s72, s72, 8")
        a(f"s_add_u32 s72, s72, {mb(MB_QKV)}")
        sync.poll(a, 72, 48, vt=8, sleep=4)
    def pub_o(a):
        a("s_setprio 3")
        a("s_lshr_b32 s72, s2, 5")
        a("s_lshl_b32 s72, s72, 13")
        a(f"s_add_u32 s72, s72, {mb(MB_O)}")
        sync.publish(a, 72, 24)
    TV = 140
    def tsetup(a):
        a.srd(80, P_W2, S*F*2)
        a("s_lshr_b32 s72, s2, 3")
        a("s_lshl_b32 s72, s72, 2")
        a("s_add_u32 s72, s72, s52")
        a("s_mul_i32 s73, s72, 205")
        a("s_lshr_b32 s73, s73, 11")
        a("s_mul_i32 s76, s73, 10")
        a("s_sub_u32 s72, s72, s76")
        a("s_and_b32 s76, s2, 7")
        a("s_mul_i32 s76, s76, 10")
        a("s_add_u32 s72, s72, s76")
        a("s_lshr_b32 s76, s72, 4")
        a("s_and_b32 s72, s72, 15")
        a(f"s_mul_i32 s76, s76, {928*4096}")
        a("s_lshl_b32 s72, s72, 8")
        a("s_add_u32 s76, s76, s72")
        a("s_lshl_b32 s72, s73, 17")
        a("s_add_u32 s76, s76, s72")
        a("s_cmp_ge_u32 s73, 12")
        a("s_cselect_b32 s82, 0, s82")
        a(f"v_lshrrev_b32 v{TV}, 1, v0")
        a(f"v_lshlrev_b32 v{TV}, 12, v{TV}")
        a(f"v_and_b32 v{TV+1}, 1, v0")
        a(f"v_lshl_add_u32 v{TV}, v{TV+1}, 7, v{TV}")
        a(f"v_add_u32 v{TV}, s76, v{TV}")
        a("s_mov_b32 s78, s73")
    def touch(a):
        a("s_cmp_ge_u32 s78, 29")
        a("s_cselect_b32 s82, 0, s82")
        a(f"buffer_load_dword v{TV+1}, v{TV}, s[80:83], 0 offen")
        a(f"v_add_u32 v{TV}, {12*32*4096}, v{TV}")
        a("s_add_u32 s78, s78, 12")
    k_attn.attn_body(a, "s2", dep_qkv, pub_o, sm=3, tsetup=tsetup if W2_TOUCH else None, touch=touch if W2_TOUCH else None)
    a.stamp_mid(5)
    a("s_cmp_ge_u32 s2, 192")
    a("s_cbranch_scc1 L_done")
    if NO_FINAL: a("s_branch L_done")
    def dep_o(a):
        a("s_lshr_b32 s72, s53, 2")
        a("s_lshl_b32 s72, s72, 5")
        a("s_lshr_b32 s73, s2, 3")
        a("s_add_u32 s72, s72, s73")
        a("s_lshl_b32 s72, s72, 8")
        a(f"s_add_u32 s72, s72, {mb(MB_O)}")
        sync.poll(a, 72, 32 + 64, vt=8, sleep=SLP_FIN)
    def dep_y(a):
        a("s_lshl_b32 s72, s54, 5")
        a("s_add_u32 s72, s72, s53")
        a("s_lshl_b32 s72, s72, 8")
        a(f"s_add_u32 s72, s72, {mb(MB_Y)}")
        sync.poll(a, 72, 5, vt=8, sleep=SLP_FIN)
        a.stamp_mid(7)
    k_final.final_body(a, "s2", dep_o, dep_y, sc=" sc1", sm=6)
    a("s_branch L_done")
    a.label("L_slotB")
    a("s_sub_u32 s3, s2, 256")
    a(f"s_cmp_lt_u32 s3, {k_mlp1.MLP1_GRID}")
    a("s_cbranch_scc1 L_noinit")
    a("s_setprio 3")
    a(f"s_sub_u32 s78, s3, {k_mlp1.MLP1_GRID}")
    sync.init_mailboxes(a, "s78")
    a("s_setprio 0")
    a.stamp_mid(0)
    a.label("L_noinit")
    if FRONT_ONLY != 2: k_front.xw_touch(a, "s3")
    a("s_waitcnt vmcnt(0)")
    a("s_lshl_b32 s72, s3, 8")
    a(f"s_add_u32 s72, s72, {mb(MB_P)}")
    a("s_cmp_lt_u32 s3, 192")
    a(f"s_cselect_b32 s76, 1, {1 if LN_WAIT else 0}")
    sync.poll(a, 72, "s76", vt=5, init=True, sleep=SLP_HINT)
    a.stamp_mid(5)
    a("s_cmp_lt_u32 s3, 192")
    a("s_cbranch_scc1 L_mlp1")
    a.srd(40, P_W1, S*F*2)
    a("s_sub_u32 s67, 255, s3")
    a(f"s_mul_i32 s66, s52, {512*F*2}")
    a("s_lshl_b32 s68, s67, 13")
    a("s_add_u32 s66, s66, s68")
    a("v_lshlrev_b32 v5, 7, v0")
    a("v_add_u32 v5, s66, v5")
    for r in range(PF1):
        a(f"buffer_load_dword v{60+(r&1)}, v5, s[40:43], 0 offen")
        a(f"v_add_u32 v5, {64*8192}, v5")
        if r >= PFD: a(f"s_waitcnt vmcnt({PFD})")
    a(f"s_cmp_ge_u32 s3, {k_mlp1.MLP1_GRID}")
    a("s_cbranch_scc1 L_aux")
    a.label("L_mlp1")
    def dep_h(a):
        a("s_lshl_b32 s72, s52, 5")
        a("s_and_b32 s73, s3, 31")
        a("s_add_u32 s72, s72, s73")
        a("s_lshl_b32 s72, s72, 8")
        a(f"s_add_u32 s72, s72, {mb(MB_H)}")
        sync.spin(a, 48, "s72", 16, 5)
    def w2_tail(a):
        a.srd(80, P_W2, S*F*2)
        a("s_lshr_b32 s72, s3, 3")
        a("s_mul_i32 s73, s72, 86")
        a("s_lshr_b32 s73, s73, 8")
        a("s_mul_i32 s76, s73, 3")
        a("s_sub_u32 s72, s72, s76")
        a("s_and_b32 s76, s3, 7")
        a("s_mul_i32 s76, s76, 10")
        a("s_add_u32 s73, s73, s76")
        a("s_lshr_b32 s76, s73, 4")
        a("s_and_b32 s73, s73, 15")
        a(f"s_mul_i32 s76, s76, {928*4096}")
        a("s_lshl_b32 s73, s73, 8")
        a("s_add_u32 s76, s76, s73")
        a("s_lshl_b32 s72, s72, 2")
        a("s_add_u32 s72, s72, s52")
        a("s_add_u32 s72, s72, 17")
        a("s_lshl_b32 s72, s72, 17")
        a("s_add_u32 s76, s76, s72")
        a("v_lshrrev_b32 v60, 1, v0")
        a("v_lshlrev_b32 v60, 12, v60")
        a("v_and_b32 v61, 1, v0")
        a("v_lshl_add_u32 v60, v61, 7, v60")
        a("v_add_u32 v60, s76, v60")
        a("buffer_load_dword v61, v60, s[80:83], 0 offen")
    def pub_u(a):
        a("s_mul_i32 s73, s66, 565")
        a("s_lshr_b32 s73, s73, 12")
        a("s_lshr_b32 s72, s67, 1")
        a("s_mul_i32 s72, s72, 5")
        a("s_add_u32 s73, s73, s72")
        a("s_lshl_b32 s73, s73, 12")
        a(f"s_add_u32 s73, s73, {mb(MB_U)}")
        a("s_lshr_b32 s72, 0x204080, s66")
        a("s_cmp_lt_u32 s66, 32")
        a("s_cselect_b32 s72, s72, 0")
        a("s_and_b32 s72, s72, 1")
        a("s_cselect_b32 s72, -1, 0xffff")
        sync.publish(a, 73, "s72")
    k_mlp1.mlp1_body(a, "s3", dep_h, pub_u, sm=0, epi=w2_tail if W2_TAIL else None)
    a.stamp_mid(2)
    a("s_branch L_mlp2")
    a.label("L_aux")
    for n in range(-(-(576 - 64*PF1)//40)):
        a(f"buffer_load_dword v{60+(n&1)}, v5, s[40:43], 0 offen")
        a(f"v_add_u32 v5, {40*8192}, v5")
        a(f"s_waitcnt vmcnt({PFD})")
    a.stamp_mid(1)
    a.srd(40, P_W2, S*F*2)
    a("s_lshl_b32 s68, s67, 2")
    a("s_add_u32 s68, s68, s52")
    a("s_lshr_b32 s66, s68, 5")
    a("s_and_b32 s68, s68, 31")
    a(f"s_mul_i32 s66, s66, {928*4096}")
    a("s_lshl_b32 s68, s68, 13")
    a("s_add_u32 s66, s66, s68")
    a("v_lshlrev_b32 v5, 7, v0")
    a("v_add_u32 v5, s66, v5")
    for n in range(PF2):
        a(f"buffer_load_dword v{60+(n&1)}, v5, s[40:43], 0 offen")
        a(f"v_add_u32 v5, {32*8192}, v5")
        a(f"s_waitcnt vmcnt({PFD})")
    a("s_waitcnt vmcnt(0)")
    a.stamp_mid(2)
    a(f"s_cmp_ge_u32 s3, {k_mlp2.MLP2_GRID}")
    a("s_cbranch_scc1 L_done")
    a.label("L_mlp2")
    def dep_u(a):
        a("s_mul_i32 s73, s67, 5")
        a("s_add_u32 s73, s73, s69")
        a("s_lshl_b32 s73, s73, 4")
        a("s_add_u32 s73, s73, s66")
        a("s_lshl_b32 s73, s73, 8")
        a(f"s_add_u32 s73, s73, {mb(MB_U)}")
        a("s_cmp_eq_u32 s69, 4")
        a("s_cselect_b32 s76, 14, 16")
        sync.poll(a, 73, "s76", vt=8)
    def pub_y(a):
        a("s_lshl_b32 s73, s67, 6")
        a("s_lshl_b32 s70, s66, 1")
        a("s_add_u32 s73, s73, s70")
        a("s_lshl_b32 s73, s73, 8")
        a(f"s_add_u32 s73, s73, {mb(MB_Y)}")
        def voff(a, vt):
            a(f"v_lshrrev_b32 v{vt}, 1, v0")
            a(f"v_lshlrev_b32 v{vt}, 13, v{vt}")
            a(f"v_and_b32 v{vt+1}, 1, v0")
            a(f"v_lshl_add_u32 v{vt}, v{vt+1}, 8, v{vt}")
        sync.publish(a, 73, 4, vt=8, voff=voff)
    k_mlp2.mlp2_body(a, "s3", sm=3, dep=dep_u, pub=pub_y)
    a.label("L_done")
    a.end()
    a.label("L_end")
    a("s_endpgm")

def build(stamp=False):
    a = Asm()
    a.stamp = stamp
    fin = NAME + "_kernel"
    out = HEADER
    out += f"; @launch kernel={fin} grid=(512,1,1) block=(256,1,1) lds=81920\n"
    out += '.amdgcn_target "amdgcn-amd-amdhsa--gfx950"\n.text\n'
    gen_main(a, fin)
    out += a.text()
    out += '.section .rodata,"a"\n'
    out += ".p2align 6\n" + descriptor(fin, 256, None)
    return out

if __name__ == "__main__":
    open("main.s", "w").write(build())
    open("stamp.s", "w").write(build(True))
    k_mlp2.M2ST = True
    open(f"va.s", "w").write(build(True))
    NO_FINAL = True
    open(f"vb.s", "w").write(build(True))
    k_mlp2.YIELD = 2
    open(f"vc.s", "w").write(build(True))
    print("wrote")
```

```python
from common import *
import math
QSCALE = (DH ** -0.5) * math.log2(math.e)
SC = " sc1"
CB = 17408
ACC = 96
SET = [32, 52]

XNT = ''
QST = False
def qkv_body(a, wgreg, pub, hint=None):
    a.srd(40, P_X, S*D*2)
    a.srd(44, P_WQKV, D*3*D*2)
    a(f"s_and_b32 s53, {wgreg}, 7")
    a(f"s_lshr_b32 s54, {wgreg}, 3")
    a("s_lshr_b32 s55, s53, 1")
    a("s_lshl_b32 s55, s55, 2")
    a("s_and_b32 s56, s54, 3")
    a("s_add_u32 s55, s55, s56")
    a("s_and_b32 s56, s53, 1")
    a("s_mul_i32 s56, s56, 6")
    a("s_lshr_b32 s57, s54, 2")
    a("s_add_u32 s56, s56, s57")
    a("s_lshl_b32 s59, s55, 2")
    a("s_add_u32 s60, s59, s52")
    a("v_lshrrev_b32 v2, 2, v0")
    a("s_lshl_b32 s60, s60, 5")
    a("v_add_u32 v2, s60, v2")
    a("v_mul_u32_u24 v2, 1152, v2")
    a("v_lshrrev_b32 v3, 4, v0")
    a("v_xor_b32 v3, v3, v0")
    a("v_and_b32 v3, 3, v3")
    a("v_lshl_add_u32 v2, v3, 4, v2")
    a(f"v_add_u32 v3, {16*1152}, v2")
    a("s_mul_i32 s65, s56, 288")
    a(f"s_mul_i32 s60, s52, {8*3456}")
    a("s_add_u32 s65, s65, s60")
    for i in range(3):
        a(f"v_add_u32 v7, {64*i}, v0")
        a(f"v_mul_u32_u24 v8, 3641, v7")
        a(f"v_lshrrev_b32 v8, 16, v8")
        a(f"v_mul_u32_u24 v9, 18, v8")
        a(f"v_sub_u32 v7, v7, v9")
        a(f"v_and_b32 v10, 1, v8")
        a(f"v_lshrrev_b32 v9, 1, v8")
        a(f"v_lshl_or_b32 v9, v10, 2, v9")
        a(f"v_mul_u32_u24 v9, 3456, v9")
        a(f"v_lshl_add_u32 v9, v7, 4, v9")
        a(f"v_add_u32 v{4+i}, s65, v9")
    a("s_lshl_b32 s61, s52, 11")
    a("s_mul_i32 s62, s52, 2304")
    a("s_add_u32 s62, s62, 8192")
    a("s_mov_b32 s63, 0")
    a("s_mov_b32 s64, 0")
    a(f"s_mov_b32 s71, {32*3456}")
    a("s_mov_b64 s[72:73], 0xffff")
    def setm0(buf, i):
        if i < 2: a(f"s_add_u32 m0, s61, {buf*CB + i*1024}")
        else: a(f"s_add_u32 m0, s62, {buf*CB + (i-2)*1024}")
    def load(i):
        if i < 2:
            a(f"buffer_load_dwordx4 v{2+i}, s[40:43], s63 offen lds")
            if i == 1: a("s_add_u32 s63, s63, 64")
        elif i < 4:
            a(f"buffer_load_dwordx4 v{2+i}, s[44:47], s64 offen lds")
        else:
            a("s_mov_b64 exec, s[72:73]")
            a(f"buffer_load_dwordx4 v6, s[44:47], s64 offen lds")
            a("s_mov_b64 exec, -1")
            a("s_add_u32 s64, s64, s71")
    for c in range(4):
        for i in range(5 if c < 3 else 2):
            setm0(c, i); a("s_nop 0"); load(i)
    a.stamp_mid(0)
    a("s_and_b32 s57, s52, 1")
    a("s_lshr_b32 s58, s52, 1")
    a("s_lshl_b32 s60, s57, 1")
    a("s_add_u32 s60, s60, s58")
    a("s_add_u32 s59, s59, s60")
    a("v_and_b32 v10, 31, v0")
    a("v_lshrrev_b32 v11, 5, v0")
    a("v_bfe_u32 v12, v10, 2, 2")
    a("v_xor_b32 v12, v12, v11")
    a("v_lshlrev_b32 v13, 6, v10")
    a("v_lshl_add_u32 v16, v12, 4, v13")
    a("s_lshl_b32 s60, s60, 11")
    a("v_add_u32 v16, s60, v16")
    a("v_xor_b32 v17, 32, v16")
    a("v_xor_b32 v18, 0x800, v16")
    a("v_xor_b32 v19, 0x800, v17")
    a("v_bfe_u32 v12, v0, 2, 2")
    a("v_lshlrev_b32 v12, 1, v12")
    a("v_lshl_add_u32 v12, v11, 3, v12")
    a("v_mul_u32_u24 v12, 288, v12")
    a("v_add_u32 v12, 0x2000, v12")
    a("v_bfe_u32 v13, v0, 4, 1")
    a("v_and_b32 v14, 3, v0")
    a("v_lshl_add_u32 v15, v14, 3, v12")
    a("v_lshl_add_u32 v20, v13, 5, v15")
    a("s_and_b32 s69, s56, 3")
    a("s_lshl_b32 s69, s69, 9")
    a("s_cmp_ge_u32 s56, 8")
    a("s_cbranch_scc1 L_qkv_v")
    a("s_mul_i32 s60, s58, 144")
    a("s_add_u32 s60, s60, 40")
    a("v_add_u32 v21, 112, v20")
    a("v_add_u32 v20, s60, v20")
    a("v_lshl_add_u32 v23, v13, 8, v15")
    a("s_cmp_lg_u32 s58, 0")
    a("s_cselect_b64 vcc, -1, 0")
    a("v_cndmask_b32 v21, v21, v23, vcc")
    a("v_mul_u32_u24 v22, 72, v14")
    a("v_add3_u32 v22, v22, v12, 32")
    loop(a, False, setm0, load, hint)
    a("s_cmp_ge_u32 s56, 4")
    a(f"s_mov_b32 s66, {QR_OFF}")
    a(f"s_mov_b32 s67, {QR_RS}")
    a(f"s_mov_b32 s68, {f32bits(QSCALE)}")
    a(f"s_cselect_b32 s66, {KV_OFF}, s66")
    a(f"s_cselect_b32 s67, {KV_RS}, s67")
    a(f"s_cselect_b32 s68, 1.0, s68")
    a("s_xor_b32 s63, s59, 1")
    a("s_add_u32 s63, s63, s69")
    a("s_add_u32 s69, s59, s69")
    a("s_mul_i32 s69, s69, s67")
    a("s_add_u32 s69, s69, s66")
    a("s_mul_i32 s63, s63, s67")
    a("s_add_u32 s63, s63, s66")
    a("s_lshl_b32 s70, s67, 6")
    a("s_lshl_b32 s60, s58, 2")
    a("s_add_u32 s72, s60, 1")
    a("s_add_u32 s73, s60, 2")
    a("s_cmp_lg_u32 s58, 0")
    a("s_cselect_b32 s76, 0, 3")
    a("s_cselect_b32 s77, 7, 4")
    for r in (72, 73, 76, 77): a(f"s_mul_i32 s{r}, s{r}, s70")
    for j, (hx, hy, rec) in enumerate(((72, 73, 69), (72, 73, 63), (76, 77, 69), (76, 77, 63))):
        qk_store_main(a, j, hx, hy, rec)
    qk_store_left(a, 4)
    a("s_branch L_qkv_done")
    a.label("L_qkv_v")
    a("s_lshl_b32 s60, s58, 7")
    a("v_add_u32 v20, s60, v20")
    a("v_add_u32 v21, 64, v20")
    a("v_add_u32 v22, 256, v15")
    loop(a, True, setm0, load, hint)
    a("s_and_b32 s63, s59, 3")
    a("s_mul_i32 s64, s63, 1152")
    a("s_xor_b32 s63, s63, 1")
    a("s_mul_i32 s63, s63, 1152")
    a("s_lshl_b32 s60, s58, 6")
    a("v_add_u32 v12, s60, v10")
    a("s_waitcnt vmcnt(0)")
    a("s_barrier")
    v_addr(a, "v12"); v_put(a, 0, 64); v_put(a, 1, 63)
    a("v_add_u32 v12, 32, v12")
    v_addr(a, "v12"); v_put(a, 2, 64); v_put(a, 3, 63)
    a("v_add_u32 v12, 128, v10")
    v_addr(a, "v12"); v_put(a, 4, 64)
    a("s_lshl_b32 s60, s52, 7")
    a("s_add_u32 s69, s69, s60")
    a("s_and_b32 s60, s59, 60")
    a("s_add_u32 s69, s69, s60")
    a(f"s_mul_i32 s69, s69, {KV_RS}")
    a(f"s_add_u32 s69, s69, {KV_OFF + 1152}")
    for n in range(9):
        a(f"v_add_u32 v4, {64*n}, v0")
        a("v_mul_u32_u24 v5, 911, v4")
        a("v_lshrrev_b32 v5, 16, v5")
        a("v_lshrrev_b32 v6, 2, v5")
        a(f"v_mul_u32_u24 v6, {60*144}, v6")
        a("v_mad_u32_u24 v6, v5, v7, v6") if False else None
        a(f"v_mul_u32_u24 v5, 72, v5")
        a("v_add3_u32 v4, v4, v5, v6")
        a(f"v_lshlrev_b32 v{20+n}, 4, v4")
    a("s_mul_i32 s60, s52, 9216")
    a("v_add_u32 v3, s60, v2")
    a("s_waitcnt lgkmcnt(0)")
    a("s_barrier")
    for n in range(9):
        a(f"ds_read_b128 {vr(32+4*n,4)}, v3 offset:{n*1024}")
    for n in range(9):
        a(f"s_waitcnt lgkmcnt({8-n})")
        a(f"buffer_store_dwordx4 {vr(32+4*n,4)}, v{20+n}, s[48:51], s69 offen{SC}")
    a.label("L_qkv_done")
    a.stamp_mid(7)
    pub(a)

def loop(a, isv, setm0, load, hint):
    def reads(sn, buf, t):
        b = SET[sn]
        X = [((sn, "x", n), f"ds_read_b128 {vr(b+4*n,4)}, v{16+2*n+t} offset:{buf*CB}") for n in range(2)]
        W = [((sn, "w", j), f"ds_read_b64_tr_b16 {vr(b+8+4*j+2*sec,2)}, v{20+j} offset:{buf*CB + t*4608 + sec*288}") for j in range(3) for sec in range(2)]
        return [X[0], W[0], W[1], X[1], W[2], W[3], W[4], W[5]]
    MF = [(0, 0), (0, 1), (1, 0), (1, 1), (2, 0)]
    def mfma(ls, sn, k, first):
        b = SET[sn]
        j, n = MF[k]
        ls.need([(sn, "x", n), (sn, "w", j)])
        w = vr(b+8+4*j, 4); x = vr(b+4*n, 4); c = vr(ACC+16*k, 16)
        A, B = (x, w) if isv else (w, x)
        a(f"v_mfma_f32_32x32x16_bf16 {c}, {A}, {B}, {'0' if first else c}")
    def body(c, first=False, kill=False, last=False):
        buf = c % 4; pb = (c - 1) % 4
        ls = LdsSched(a, [r[0] for r in reads(0, buf, 0)])
        ls.need([(0, "w", 1)])
        r = reads(1, buf, 1)
        mfma(ls, 0, 0, first)
        if not last: setm0(pb, 2)
        for x in r[0:3]: ls.read(*x)
        if not last: load(2)
        mfma(ls, 0, 1, first)
        for x in r[3:7]: ls.read(*x)
        mfma(ls, 0, 2, first)
        if not last: setm0(pb, 3)
        ls.read(*r[7])
        if not last: load(3)
        mfma(ls, 0, 3, first)
        if not last: setm0(pb, 4); load(4)
        mfma(ls, 0, 4, first)
        if kill: kill()
        if last:
            ls.drain()
            for k in range(5): mfma(ls, 1, k, False)
            return
        ls.drain()
        mfma(ls, 1, 0, False)
        a("s_waitcnt vmcnt(10)")
        a("s_barrier")
        r = reads(0, (c+1) % 4, 0)
        for x in r[0:3]: ls.read(*x)
        mfma(ls, 1, 1, False)
        for x in r[3:7]: ls.read(*x)
        mfma(ls, 1, 2, False)
        setm0(buf, 0)
        ls.read(*r[7])
        load(0)
        mfma(ls, 1, 3, False)
        setm0(buf, 1)
        mfma(ls, 1, 4, False)
        load(1)
    a("s_waitcnt vmcnt(12)")
    a("s_barrier")
    a.stamp_mid(1)
    for r in reads(0, 0, 0): a(r[1])
    body(0, first=True)
    a("s_mov_b32 s60, 4")
    L = a.newlabel("qkv")
    def kill():
        a("s_cmp_gt_u32 s60, 1")
        a("s_cselect_b32 s42, s42, 0")
        a("s_cselect_b32 s46, s46, 0")
    a.raw(".p2align 6")
    a.label(L)
    for c in range(1, 5):
        body(c, kill=kill if c == 2 else None)
    if hint: hint(a)
    if QST and a.stamp is True:
        for cnt, slot in ((4, 3), (3, 4), (2, 5)):
            Ls = a.newlabel("st")
            a(f"s_cmp_lg_u32 s60, {cnt}")
            a(f"s_cbranch_scc1 {Ls}")
            a.stamp_mid(slot)
            a.label(Ls)
    a("s_sub_u32 s60, s60, 1")
    a("s_cmp_lg_u32 s60, 0")
    a(f"s_cbranch_scc1 {L}")
    body(17, last=True)
    a("v_lshlrev_b32 v2, 4, v0")
    a.stamp_mid(6)

def qk_store_main(a, j, hx, hy, rec):
    b = ACC + 16*j
    for i in range(16):
        a(f"v_mul_f32 v{b+i}, s68, v{b+i}")
    for i in range(8):
        a(f"v_cvt_pk_bf16_f32 v{b+i}, v{b+2*i}, v{b+2*i+1}")
    for half, hd in ((0, hx), (1, hy)):
        a(f"s_add_u32 s60, s{hd}, s{rec}")
        a(f"buffer_store_dwordx4 {vr(b+4*half,4)}, v2, s[48:51], s60 offen{SC}")

def qk_store_left(a, j):
    b = ACC + 16*j
    for i in range(8):
        a(f"v_mul_f32 v{b+i}, s68, v{b+i}")
    for i in range(4):
        a(f"v_cvt_pk_bf16_f32 v{b+i}, v{b+2*i}, v{b+2*i+1}")
    a("s_lshl_b32 s60, s70, 1")
    a("v_mul_lo_u32 v3, v11, s60")
    a("v_lshl_add_u32 v3, v10, 2, v3")
    for jj in range(2):
        for bb in range(2):
            a(f"s_mul_i32 s60, s70, {4*jj+bb}")
            a(f"s_add_u32 s60, s60, s69")
            a(f"buffer_store_dword v{b+2*jj+bb}, v3, s[48:51], s60 offen offset:1024{SC}")

def v_addr(a, col):
    a(f"v_mul_u32_u24 v4, 3641, {col}")
    a(f"v_lshrrev_b32 v4, 16, v4")
    a(f"v_mul_u32_u24 v5, 18, v4")
    a(f"v_sub_u32 v3, {col}, v5")
    a(f"v_mul_u32_u24 v4, {4*1152}, v4")
    a(f"v_lshl_add_u32 v3, v3, 4, v4")
    a(f"v_mul_u32_u24 v4, 288, v11")
    a(f"v_add_u32 v3, v3, v4")

def v_put(a, k, sub):
    b = ACC + 16*k
    for i in range(8):
        a(f"v_cvt_pk_bf16_f32 v{b+i}, v{b+2*i}, v{b+2*i+1}")
    a(f"v_add_u32 v6, s{sub}, v3")
    if k == 4:
        a("s_mov_b32 exec_lo, 0xffff")
        a("s_mov_b32 exec_hi, 0xffff")
    a(f"ds_write_b128 v6, {vr(b,4)}")
    a(f"ds_write_b128 v6, {vr(b+4,4)} offset:576")
    if k == 4:
        a("s_mov_b64 exec, -1")
for u in range(576):
    assert (u*911) >> 16 == u//72

RS = 1216
X0, F0 = 16, 88
XK, GK = 160, 196

def red8(a, r):
    a("s_nop 1")
    a(f"v_add_f32_dpp v{r}, v{r}, v{r} quad_perm:[1,0,3,2] row_mask:0xf bank_mask:0xf")
    a("s_nop 1")
    a(f"v_add_f32_dpp v{r}, v{r}, v{r} quad_perm:[2,3,0,1] row_mask:0xf bank_mask:0xf")
    a("s_nop 1")
    a(f"v_add_f32_dpp v{r}, v{r}, v{r} row_half_mirror row_mask:0xf bank_mask:0xf")

def rows_setup(a):
    a("v_lshrrev_b32 v2, 3, v0")
    a("v_and_b32 v3, 7, v0")
    a("s_lshl_b32 s53, s52, 3")
    a("v_add_u32 v4, s53, v2")

def rows_tail(a):
    a(f"v_mul_u32_u24 v5, {RS}, v4")
    a("v_lshl_add_u32 v5, v3, 4, v5")
    for i in range(9):
        a(f"ds_write_b128 v5, {vr(X0+4*i,4)} offset:{i*128}")
    a("s_lshr_b32 s55, s52, 1")
    a("s_and_b32 s56, s52, 1")
    a("v_lshrrev_b32 v6, 5, v0")
    a("v_bfe_u32 v7, v0, 2, 2")
    a("v_lshl_add_u32 v6, v6, 3, v7")
    a("s_lshl_b32 s60, s55, 4")
    a("v_add_u32 v6, s60, v6")
    a(f"v_mul_u32_u24 v6, {RS}, v6")
    a("v_bfe_u32 v7, v0, 4, 1")
    a("v_lshl_add_u32 v6, v7, 5, v6")
    a("v_and_b32 v7, 3, v0")
    a("v_lshl_add_u32 v6, v7, 3, v6")
    a("s_mul_i32 s60, s56, 576")
    a("v_add_u32 v6, s60, v6")
    a("s_mul_i32 s60, s52, 9216")
    a("s_add_u32 s57, s57, s60")
    a("v_lshlrev_b32 v7, 4, v0")
    a("s_waitcnt lgkmcnt(0)")
    a("s_barrier")
    for i in range(7):
        for sec in range(2):
            a(f"ds_read_b64_tr_b16 {vr(X0+4*i+2*sec,2)}, v6 offset:{sec*4*RS + i*64}")
    for i in range(9):
        a(f"s_waitcnt lgkmcnt({min(12, 2*(8-i))})")
        if i % 4 == 0 and i:
            a("s_add_u32 s57, s57, 4096")
        a(f"buffer_store_dwordx4 {vr(X0+4*i,4)}, v7, s[48:51], s57 offen offset:{(i%4)*1024}{SC}")
        if i + 7 < 9:
            for sec in range(2):
                a(f"ds_read_b64_tr_b16 {vr(X0+4*(i+7)+2*sec,2)}, v6 offset:{sec*4*RS + (i+7)*64}")

def ln_body(a, jreg, pub, pre=None):
    a.srd(40, P_X, S*D*2)
    rows_setup(a)
    a(f"s_and_b32 s58, {jreg}, 7")
    a(f"s_lshr_b32 s56, {jreg}, 3")
    a("s_lshl_b32 s58, s58, 3")
    a("s_add_u32 s58, s58, s56")
    a("s_lshl_b32 s56, s58, 5")
    a("v_add_u32 v6, s56, v4")
    a("v_mul_u32_u24 v7, 1152, v6")
    a("v_lshl_add_u32 v7, v3, 4, v7")
    for i in range(9):
        a(f"buffer_load_dwordx4 {vr(XK+4*i,4)}, v7, s[40:43], 0 offen offset:{i*128}")
    a.srd(44, P_GW, D*2)
    a("v_lshlrev_b32 v8, 4, v3")
    for i in range(9):
        a(f"buffer_load_dwordx4 {vr(GK+4*i,4)}, v8, s[44:47], 0 offen offset:{i*128}")
    a(f"s_mul_i32 s57, s58, {2*18*1024}")
    a(f"s_add_u32 s57, s57, {HT_OFF}")
    a("v_mov_b32 v8, 0")
    a("v_mov_b32 v9, 0")
    a.stamp_mid(0)
    def pk(i): return vr(F0+2*i, 2)
    for i in range(36):
        if i % 4 == 0: a(f"s_waitcnt vmcnt({17 - i//4})")
        a(f"v_lshlrev_b32 v{F0+2*i}, 16, v{XK+i}")
        a(f"v_and_b32 v{F0+2*i+1}, 0xffff0000, v{XK+i}")
        a(f"v_pk_add_f32 v[8:9], v[8:9], {pk(i)}")
    a.stamp_mid(1)
    a("v_add_f32 v8, v8, v9")
    red8(a, 8)
    a(f"v_mul_f32 v8, {f32bits(-1.0/D)}, v8")
    a("v_mov_b32 v10, 0")
    a("v_mov_b32 v9, v8")
    a("v_mov_b32 v11, 0")
    for i in range(36):
        a(f"v_pk_add_f32 {pk(i)}, {pk(i)}, v[8:9]")
    for i in range(36):
        a(f"v_pk_fma_f32 v[10:11], {pk(i)}, {pk(i)}, v[10:11]")
    a("v_add_f32 v10, v10, v11")
    red8(a, 10)
    a(f"v_mov_b32 v12, {f32bits(1e-5)}")
    a(f"v_fmac_f32 v12, {f32bits(1.0/D)}, v10")
    a("v_rsq_f32 v12, v12")
    a("s_nop 0")
    a("v_mov_b32 v13, v12")
    for i in range(36):
        a(f"v_pk_mul_f32 {pk(i)}, {pk(i)}, v[12:13]")
    for i in range(36):
        a(f"v_cvt_pk_bf16_f32 v{X0+i}, v{F0+2*i}, v{F0+2*i+1}")
    if pre: pre(a)
    rows_tail(a)
    pub(a)

def wo_body(a, jreg):
    a.srd(40, P_WO, D*D*2)
    rows_setup(a)
    a(f"s_lshl_b32 s57, {jreg}, 1")
    a("s_lshr_b32 s55, s52, 1")
    a("s_add_u32 s57, s57, s55")
    a("s_and_b32 s56, s52, 1")
    a("s_lshl_b32 s56, s56, 2")
    a("s_lshl_b32 s57, s57, 4")
    a("s_add_u32 s57, s57, s56")
    a("v_lshrrev_b32 v6, 2, v2")
    a("v_and_b32 v7, 3, v2")
    a("v_lshl_add_u32 v6, v6, 3, v7")
    a("v_add_u32 v6, s57, v6")
    a("v_mul_u32_u24 v7, 1152, v6")
    a("v_lshl_add_u32 v7, v3, 4, v7")
    for i in range(9):
        a(f"buffer_load_dwordx4 {vr(X0+4*i,4)}, v7, s[40:43], 0 offen offset:{i*128}")
    a(f"s_mul_i32 s57, {jreg}, {2*18*1024}")
    a(f"s_add_u32 s57, s57, {WOF_OFF}")
    a("s_waitcnt vmcnt(0)")
    rows_tail(a)

def gate_own(a):
    a("v_mov_b32 v8, 0")
    a("v_mov_b32 v9, 0")
    for i in range(36):
        a(f"v_lshlrev_b32 v12, 16, v{GK+i}")
        a(f"v_and_b32 v13, 0xffff0000, v{GK+i}")
        a(f"v_lshlrev_b32 v14, 16, v{XK+i}")
        a(f"v_and_b32 v15, 0xffff0000, v{XK+i}")
        a(f"v_pk_fma_f32 v[8:9], v[12:13], v[14:15], v[8:9]")
    a("v_add_f32 v8, v8, v9")
    red8(a, 8)
    a(f"v_mul_f32 v8, {f32bits(-math.log2(math.e))}, v8")
    a("v_exp_f32 v8, v8")
    a("s_lshl_b32 s56, s58, 5")
    a("v_add_f32 v8, 1.0, v8")
    a("v_rcp_f32 v8, v8")
    a("v_add_u32 v6, s56, v4")
    a("v_lshlrev_b32 v6, 2, v6")
    a(f"s_mov_b32 s57, {G_OFF}")
    a("s_mov_b32 exec_lo, 0x01010101")
    a("s_mov_b32 exec_hi, 0x01010101")
    a(f"buffer_store_dword v8, v6, s[48:51], s57 offen{SC}")
    a("s_mov_b64 exec, -1")

def xw_touch(a, greg):
    a.srd(40, P_WQKV, D*3*D*2)
    a.srd(44, P_X, S*D*2)
    a(f"s_lshr_b32 s53, {greg}, 3")
    a("s_lshl_b32 s53, s53, 2")
    a("s_add_u32 s53, s53, s52")
    a("s_lshl_b32 s54, s53, 6")
    a("v_add_u32 v5, s54, v0")
    a("v_mul_u32_u24 v6, 18725, v5")
    a("v_lshrrev_b32 v6, 18, v6")
    a("v_mul_u32_u24 v7, 13, v6")
    a("v_add_u32 v7, v7, v5")
    a(f"s_and_b32 s54, {greg}, 1")
    a("s_mul_i32 s54, s54, 13")
    a("v_add_lshl_u32 v7, v7, s54, 7")
    a(f"buffer_load_dword v60, v7, s[40:43], 0 offen{XNT}")
    L = a.newlabel("nox")
    a("s_cmp_ge_u32 s53, 72")
    a(f"s_cbranch_scc1 {L}")
    a(f"s_bfe_u32 s54, {greg}, 0x20001")
    a("s_mul_i32 s54, s54, 4608")
    a("v_add_lshl_u32 v7, v5, s54, 7")
    a(f"buffer_load_dword v61, v7, s[44:47], 0 offen{XNT}")
    a.label(L)
for n in range(8192):
    assert (n*18725) >> 18 == n//14
```

```python
import sys
from common import *
import sync, k_front, k_mlp1, k_mlp1y, k_mlp2, k_attn, k_final
from sync import mb, MB_U, MB_H, MB_QKV, MB_O, MB_Y, MB_G, MB_P

HEADER = open("cdna_kernels/" + NAME + ".s.ref").read().split("; Override launch geometry")[0]
N_WO = 18
W2_TOUCH = False
FRONT_ONLY = False
PARTNER = True
A_EXIT = False
PF1 = 0
PRE = 0
M1Y = True
COOP = False
COOP_H = False
COOP_U = False
BPRIO = 0
INIT_LATE = True
PFMODE = 'col'
PFH = False
SLP_H = 4
HEAD_PF = 0
CODE_PF = True
B_EXIT = False
DIAG = None
PF_AFTER_H = True
TLBW = 0
PFW1 = True
XW = True
LIST = True
NO_FINAL = False
PFD = 1
LN_WAIT = True
PF2 = 11
EARLY = 1
EARLY_FL = ''
PROMOTE = False
WAIT_QKV = True
HINT_AT = 3
SLP_HINT = 4
SLP_FIN = 4
W2_TAIL = 0
AUX_G0 = 16
AUX_NT = ''

def gen_main(a, name):
    a.kernel_begin(name)
    a("s_cmp_ge_u32 s2, 512")
    a("s_cbranch_scc1 L_end")
    a.load_kernargs()
    sync.wave_setup(a)
    a.srd(48, P_WS, WS_SIZE)
    a.srd(84, P_DBG, 256)
    a("s_cmp_ge_u32 s2, 256")
    a("s_cbranch_scc1 L_slotB")
    a("s_setprio 3")
    a("s_cmp_ge_u32 s2, 192")
    a("s_cbranch_scc1 L_ln")
    def pub_qkv(a):
        a("s_and_b32 s72, s56, 3")
        a("s_lshl_b32 s72, s72, 12")
        a(f"s_add_u32 s72, s72, {mb(MB_QKV)}")
        sync.publish(a, 72, 16, init=True)
    def hint(a):
        L = a.newlabel("hint")
        a("s_lshl_b32 s76, s52, 3")
        a("s_add_u32 s76, s76, s60")
        a(f"s_cmp_lg_u32 s76, {HINT_AT}")
        a(f"s_cbranch_scc1 {L}")
        a("s_lshl_b32 s76, s2, 8")
        a(f"s_add_u32 s76, s76, {mb(MB_P)}")
        a("v_mov_b32 v8, 0")
        a("v_mov_b32 v9, 1")
        a("s_mov_b64 exec, 1")
        a("buffer_store_dword v9, v8, s[48:51], s76 offen sc1")
        a("s_mov_b64 exec, -1")
        a.label(L)
    k_front.qkv_body(a, "s2", pub_qkv, hint if WAIT_QKV else None)
    a("s_branch L_attn")
    a.label("L_ln")
    a("s_sub_u32 s3, s2, 192")
    def pub_h(a):
        a("s_lshr_b32 s72, s58, 4")
        a("s_lshl_b32 s72, s72, 13")
        a(f"s_add_u32 s72, s72, {mb(MB_H)}")
        sync.publish(a, 72, 32, init=True)
    k_front.ln_body(a, "s3", pub_h)
    a.stamp_mid(6)
    k_front.gate_own(a)
    a(f"s_cmp_ge_u32 s3, {N_WO}")
    a("s_cbranch_scc1 L_nowo")
    k_front.wo_body(a, "s3")
    a.label("L_nowo")
    a(f"s_mov_b32 s72, {mb(MB_G)}")
    sync.publish(a, 72, 32, init='late')
    a.label("L_attn")
    a.stamp_mid(2)
    if FRONT_ONLY or A_EXIT: a("s_branch L_done")
    def dep_qkv(a):
        a("s_lshr_b32 s72, s61, 3")
        a("s_lshl_b32 s72, s72, 4")
        a("s_bfe_u32 s73, s2, 0x40003")
        a("s_add_u32 s72, s72, s73")
        a("s_lshl_b32 s72, s72, 8")
        a(f"s_add_u32 s72, s72, {mb(MB_QKV)}")
        sync.poll(a, 72, 48, vt=8, sleep=4, init='late')
    def dep_g(a):
        a("s_bfe_u32 s72, s2, 0x50003")
        a("s_lshl_b32 s72, s72, 8")
        a(f"s_add_u32 s72, s72, {mb(MB_G)}")
        sync.spin(a, 48, "s72", 64, 0)
    def pub_o(a):
        a("s_cmp_gt_u32 s61, 7")
        a("s_cselect_b32 s72, 1, 0")
        for hd in (14, 19, 24):
            a(f"s_cmp_gt_u32 s61, {hd}")
            a("s_addc_u32 s72, s72, 0")
        a("s_lshr_b32 s73, s2, 5")
        a("s_mul_i32 s73, s73, 5")
        a("s_add_u32 s72, s72, s73")
        a(f"s_mul_i32 s72, s72, {6*256}")
        a(f"s_add_u32 s72, s72, {mb(MB_O)}")
        a(f"s_lshr_b32 s73, {(1<<7)|(1<<14)|(1<<19)|(1<<24)}, s61")
        a("s_and_b32 s73, s73, 1")
        a("s_cselect_b32 s73, 0xfff, 63")
        sync.publish(a, 72, "s73")
    TV = 140
    def tsetup(a):
        a.srd(80, P_W2, S*F*2)
        a("s_lshr_b32 s72, s2, 3")
        a("s_lshl_b32 s72, s72, 2")
        a("s_add_u32 s72, s72, s52")
        a("s_mul_i32 s73, s72, 205")
        a("s_lshr_b32 s73, s73, 11")
        a("s_mul_i32 s76, s73, 10")
        a("s_sub_u32 s72, s72, s76")
        a("s_and_b32 s76, s2, 7")
        a("s_mul_i32 s76, s76, 10")
        a("s_add_u32 s72, s72, s76")
        a("s_lshr_b32 s76, s72, 4")
        a("s_and_b32 s72, s72, 15")
        a(f"s_mul_i32 s76, s76, {928*4096}")
        a("s_lshl_b32 s72, s72, 8")
        a("s_add_u32 s76, s76, s72")
        a("s_lshl_b32 s72, s73, 17")
        a("s_add_u32 s76, s76, s72")
        a("s_cmp_ge_u32 s73, 12")
        a("s_cselect_b32 s82, 0, s82")
        a(f"v_lshrrev_b32 v{TV}, 1, v0")
        a(f"v_lshlrev_b32 v{TV}, 12, v{TV}")
        a(f"v_and_b32 v{TV+1}, 1, v0")
        a(f"v_lshl_add_u32 v{TV}, v{TV+1}, 7, v{TV}")
        a(f"v_add_u32 v{TV}, s76, v{TV}")
        a("s_mov_b32 s78, s73")
    def touch(a):
        a("s_cmp_ge_u32 s78, 29")
        a("s_cselect_b32 s82, 0, s82")
        a(f"buffer_load_dword v{TV+1}, v{TV}, s[80:83], 0 offen")
        a(f"v_add_u32 v{TV}, {12*32*4096}, v{TV}")
        a("s_add_u32 s78, s78, 12")
    k_attn.attn_body(a, "s2", dep_qkv, pub_o, sm=3, tsetup=tsetup if W2_TOUCH else None, touch=touch if W2_TOUCH else None, dep_g=dep_g)
    a.stamp_mid(5)
    a("s_cmp_ge_u32 s2, 192")
    a("s_cbranch_scc1 L_done")
    if NO_FINAL: a("s_branch L_done")
    def dep_y(a, i):
        if i == 0:
            a("s_lshl_b32 s72, s54, 5")
            a("s_add_u32 s72, s72, s53")
            a("s_lshl_b32 s72, s72, 8")
            a(f"s_add_u32 s72, s72, {mb(MB_Y)}")
        else:
            a("s_add_u32 s72, s72, 4")
        sync.spin(a, 48, "s72", 5, 8, sleep=SLP_FIN if i == 0 else 1)
        if i == 2: a.stamp_mid(7)
    k_final.final_body(a, "s2", dep_y)
    a("s_branch L_done")
    a.label("L_slotB")
    a("s_sub_u32 s3, s2, 256")
    a(f"s_cmp_lt_u32 s3, {255 - sync.N_LATE}")
    a("s_cbranch_scc1 L_noinit")
    a("s_setprio 3")
    a(f"s_sub_u32 s78, s3, {255 - sync.N_LATE}")
    sync.init_mailboxes(a, "s78")
    a("s_setprio 0")
    a.stamp_mid(0)
    a.label("L_noinit")
    if CODE_PF:
        Lc = a.newlabel("cpf")
        a("s_lshr_b32 s72, s3, 4")
        a("s_cmp_lg_u32 s72, 13")
        a(f"s_cbranch_scc1 {Lc}")
        a("s_getpc_b64 s[80:81]")
        a.label("L_pc")
        a(f"s_sub_u32 s80, s80, L_pc - {name}")
        a("s_subb_u32 s81, s81, 0")
        a(f"s_mov_b32 s82, L_code_end - {name}")
        a("s_mov_b32 s83, 0x00020000")
        a("s_bfe_u32 s72, s3, 0x10003")
        a("s_lshl_b32 s72, s72, 2")
        a("s_add_u32 s72, s72, s52")
        a("s_lshl_b32 s72, s72, 13")
        a("v_lshlrev_b32 v5, 7, v0")
        a("v_add_u32 v5, s72, v5")
        a("buffer_load_dword v58, v5, s[80:83], 0 offen")
        a.label(Lc)
    if WAIT_QKV:
        Lz = a.newlabel("hz")
        a("s_cmp_lg_u32 s52, 0")
        a(f"s_cbranch_scc1 {Lz}")
        a("s_lshl_b32 s72, s3, 8")
        a(f"s_add_u32 s72, s72, {mb(MB_P)}")
        a("v_lshlrev_b32 v5, 4, v0")
        for i in range(4): a(f"v_mov_b32 v{8+i}, 0")
        a("s_mov_b64 exec, 0xff")
        a("buffer_store_dwordx4 v[8:11], v5, s[48:51], s72 offen sc1")
        a("s_mov_b64 exec, -1")
        a.label(Lz)
    if XW: k_front.xw_touch(a, "s3")
    if COOP:
        Le = a.newlabel("head")
        a(f"s_cmp_ge_u32 s3, {k_mlp1.MLP1_GRID}")
        a(f"s_cbranch_scc1 {Le}")
        a.srd(80, P_W1, S*F*2)
        a("s_and_b32 s66, s3, 7")
        a("s_mul_i32 s66, s66, 27")
        a("s_lshr_b32 s67, s3, 3")
        a("s_add_u32 s67, s67, s66")
        a("s_mul_i32 s70, s67, 171")
        a("s_lshr_b32 s70, s70, 10")
        a("s_mul_i32 s68, s70, 6")
        a("s_sub_u32 s69, s67, s68")
        a("s_lshl_b32 s66, s70, 8")
        a("s_lshl_b32 s68, s52, 4")
        a("s_add_u32 s67, s69, s68")
        a(f"s_mul_i32 s67, s67, {32*F*2}")
        a("s_add_u32 s66, s66, s67")
        a("v_lshrrev_b32 v5, 1, v0")
        a(f"v_mul_u32_u24 v5, {F*2}, v5")
        a("v_and_b32 v6, 1, v0")
        a("v_lshl_add_u32 v5, v6, 7, v5")
        a("buffer_load_dword v62, v5, s[80:83], s66 offen")
        a("s_cmp_ge_u32 s69, 3")
        a(f"s_mov_b32 s67, {3*32*F*2}")
        a(f"s_cselect_b32 s67, {(-3*32*F*2) & 0xffffffff}, s67")
        a("s_add_u32 s67, s67, s66")
        a("s_lshr_b32 s68, 0x80402010, s70")
        a("s_cmp_lt_u32 s70, 32")
        a("s_cselect_b32 s68, s68, 0")
        a("s_and_b32 s68, s68, 1")
        a(f"s_cbranch_scc0 {Le}")
        a("buffer_load_dword v63, v5, s[80:83], s67 offen")
        a.label(Le)
    if TLBW:
        a("s_lshr_b32 s53, s3, 3")
        a("s_lshl_b32 s53, s53, 2")
        a("s_add_u32 s53, s53, s52")
        a("s_lshl_b32 s53, s53, 6")
        a("v_add_u32 v5, s53, v0")
        a(f"v_lshlrev_b32 v5, {TLBW}, v5")
        a.srd(80, P_W1, S*F*2)
        a("buffer_load_dword v62, v5, s[80:83], 0 offen nt")
        a.srd(80, P_W2, S*F*2)
        a("buffer_load_dword v63, v5, s[80:83], 0 offen nt")
        a.srd(80, P_WS, CNT_OFF)
        a("buffer_load_dword v59, v5, s[80:83], 0 offen nt")
    a(f"s_setprio {BPRIO}")
    if INIT_LATE:
        a(f"s_cmp_lt_u32 s3, {k_mlp1.MLP1_GRID}")
        a("s_cbranch_scc1 L_mlp1")
    a("s_waitcnt vmcnt(0)")
    sync.poll(a, None, 0, vt=5, init=True)
    a.stamp_mid(5)
    a("s_cmp_lt_u32 s3, 192")
    a("s_cbranch_scc1 L_mlp1")
    if PF_AFTER_H:
        a("s_bfe_u32 s72, s3, 0x20001")
        a("s_lshl_b32 s72, s72, 5")
        a("s_and_b32 s73, s3, 31")
        a("s_add_u32 s72, s72, s73")
        a("s_lshl_b32 s72, s72, 8")
        a(f"s_add_u32 s72, s72, {mb(MB_H)}")
        sync.poll(a, 72, 16, vt=5, sleep=4)
    a.srd(40, P_W1, S*F*2)
    a("s_sub_u32 s67, 255, s3")
    a(f"s_mul_i32 s66, s52, {512*F*2}")
    a("s_lshl_b32 s68, s67, 13")
    a("s_add_u32 s66, s66, s68")
    a("v_lshlrev_b32 v5, 7, v0")
    a("v_add_u32 v5, s66, v5")
    for r in range(PF1):
        a(f"buffer_load_dword v{60+(r&1)}, v5, s[40:43], 0 offen")
        a(f"v_add_u32 v5, {64*8192}, v5")
        if r >= PFD: a(f"s_waitcnt vmcnt({PFD})")
    a(f"s_cmp_ge_u32 s3, {k_mlp1.MLP1_GRID}")
    a("s_cbranch_scc1 L_aux")
    a.label("L_mlp1")
    if B_EXIT: a("s_branch L_done")
    def dep_h(a):
        a("s_lshl_b32 s72, s52, 5")
        a("s_and_b32 s73, s3, 31")
        a("s_add_u32 s72, s72, s73")
        a("s_lshl_b32 s72, s72, 8")
        a(f"s_add_u32 s72, s72, {mb(MB_H)}")
        sync.spin(a, 48, "s72", 16, 5, sleep=SLP_H)
    def dep_h_touch(a):
        if INIT_LATE:
            a("s_waitcnt vmcnt(0)")
            sync.poll(a, None, 0, vt=12, init=True)
        dep_h(a)
        a.stamp_mid(5)
        if COOP_H:
            a("s_and_b32 s72, s3, 7")
            a("s_mul_i32 s72, s72, 9")
            a("s_lshr_b32 s72, s72, 1")
            a("s_sub_u32 s72, s66, s72")
            a("s_lshl_b32 s72, s72, 6")
            a("v_add_u32 v60, s72, v0")
            a("v_mul_u32_u24 v61, 2731, v60")
            a("v_lshrrev_b32 v61, 16, v61")
            a("v_mul_u32_u24 v61, 120, v61")
            a("v_add_lshl_u32 v60, v60, v61, 7")
            a(f"buffer_load_dword v61, v60, s[48:51], s{k_mlp1.S_F} offen sc1")
    def hold(a):
        L = a.newlabel("hold"); Ld = a.newlabel("holdd")
        a("s_cmp_ge_u32 s3, 192")
        a(f"s_cbranch_scc1 {Ld}")
        a("s_lshl_b32 s72, s3, 8")
        a(f"s_add_u32 s72, s72, {mb(MB_P)}")
        a("s_and_b32 s73, s3, 63")
        a("s_lshl_b32 s73, s73, 8")
        a(f"s_add_u32 s73, s73, {mb(MB_QKV)}")
        a("s_mov_b32 s74, 0")
        a.label(L)
        a("s_buffer_load_dword s75, s[48:51], s72 glc")
        a("s_add_u32 s74, s74, 1")
        a("s_waitcnt lgkmcnt(0)")
        a("s_cmp_lg_u32 s75, 0")
        a(f"s_cbranch_scc1 {Ld}")
        a("s_sleep 4")
        a("s_and_b32 s75, s74, 15")
        a(f"s_cbranch_scc1 {L}")
        a("s_buffer_load_dword s75, s[48:51], s73 glc")
        a("s_waitcnt lgkmcnt(0)")
        a("s_cmp_ge_u32 s75, 48")
        a(f"s_cbranch_scc1 {Ld}")
        a(f"s_cmp_lt_u32 s74, {sync.SPIN_MAX}")
        a(f"s_cbranch_scc1 {L}")
        a.label(Ld)
    def w2_tail(a):
        a.srd(80, P_W2, S*F*2)
        a("s_lshr_b32 s72, s3, 3")
        a("s_mul_i32 s73, s72, 86")
        a("s_lshr_b32 s73, s73, 8")
        a("s_mul_i32 s76, s73, 3")
        a("s_sub_u32 s72, s72, s76")
        a("s_and_b32 s76, s3, 7")
        a("s_mul_i32 s76, s76, 10")
        a("s_add_u32 s73, s73, s76")
        a("s_lshr_b32 s76, s73, 4")
        a("s_and_b32 s73, s73, 15")
        a(f"s_mul_i32 s76, s76, {928*4096}")
        a("s_lshl_b32 s73, s73, 8")
        a("s_add_u32 s76, s76, s73")
        a("s_lshl_b32 s72, s72, 2")
        a("s_add_u32 s72, s72, s52")
        a(f"s_add_u32 s72, s72, {29 - 12*W2_TAIL}")
        a("s_lshl_b32 s72, s72, 17")
        a("s_add_u32 s76, s76, s72")
        a("v_lshrrev_b32 v60, 1, v0")
        a("v_lshlrev_b32 v60, 12, v60")
        a("v_and_b32 v61, 1, v0")
        a("v_lshl_add_u32 v60, v61, 7, v60")
        a("v_add_u32 v60, s76, v60")
        for e in range(W2_TAIL):
            a(f"buffer_load_dword v{61+e}, v60, s[80:83], 0 offen")
            a(f"v_add_u32 v60, {12*32*4096}, v60")
    def pub_u(a):
        a("s_mul_i32 s73, s66, 565")
        a("s_lshr_b32 s73, s73, 12")
        a("s_lshr_b32 s72, s67, 1")
        a("s_mul_i32 s72, s72, 5")
        a("s_add_u32 s73, s73, s72")
        a("s_lshl_b32 s73, s73, 12")
        a(f"s_add_u32 s73, s73, {mb(MB_U)}")
        a("s_lshr_b32 s72, 0x204080, s66")
        a("s_cmp_lt_u32 s66, 32")
        a("s_cselect_b32 s72, s72, 0")
        a("s_and_b32 s72, s72, 1")
        a("s_cselect_b32 s72, -1, 0xffff")
        sync.publish(a, 73, "s72", vt=12, init='late')
    (k_mlp1y if M1Y else k_mlp1).mlp1_body(a, "s3", dep_h_touch, pub_u, sm=0, epi=w2_tail if W2_TAIL else None, hold=hold if WAIT_QKV else None)
    a.stamp_mid(2)
    a("s_branch L_mlp2")
    a.label("L_aux")
    if B_EXIT: a("s_branch L_done")
    if PFMODE == "col":
        a("s_and_b32 s66, s3, 7")
        a("s_mul_i32 s66, s66, 9")
        a("s_lshr_b32 s66, s66, 1")
        a("s_lshr_b32 s67, s67, 3")
        a("s_add_u32 s66, s66, s67")
        a("s_lshl_b32 s66, s66, 8")
        a(f"s_mul_i32 s69, s52, {(32 if M1Y else 512)*F*2}")
        a("s_add_u32 s66, s66, s69")
        a("v_lshrrev_b32 v5, 1, v0")
        a(f"v_mul_u32_u24 v5, {F*2}, v5")
        a("v_and_b32 v6, 1, v0")
        a("v_lshl_add_u32 v5, v6, 7, v5")
        if PFH:
            dep_h(a)
            a(f"s_mul_i32 s69, s52, {32*18*1024}")
            a("s_lshl_b32 s70, s67, 13")
            a("s_add_u32 s69, s69, s70")
            a(f"s_add_u32 s69, s69, {HT_OFF}")
            a("v_lshlrev_b32 v7, 7, v0")
        g0 = 6 if COOP else 0
        a(f"s_add_u32 s66, s66, {g0*32*F*2}")
        if PFH and COOP_H: a(f"s_add_u32 s69, s69, {12*18*1024}")
        for n in range(16 - g0):
            a(f"buffer_load_dword v{60+(n&1)}, v5, s[40:43], s66 offen")
            a(f"s_add_u32 s66, s66, {(128 if M1Y else 32)*F*2}")
            if PFH and n < (9 if COOP_H else 14):
                a(f"buffer_load_dword v{62+(n&1)}, v7, s[48:51], s69 offen sc1")
                a(f"s_add_u32 s69, s69, {5*8192}")
            a(f"s_waitcnt vmcnt({PFD})")
        a.stamp_mid(1)
        a.srd(40, P_W2, S*F*2)
        a("s_lshl_b32 s68, s67, 2")
        a("s_add_u32 s68, s68, s52")
        a("s_and_b32 s66, s3, 7")
        a("s_mul_i32 s66, s66, 10")
        a("s_lshr_b32 s69, s68, 1")
        a("s_add_u32 s66, s66, s69")
        a("s_lshr_b32 s67, s66, 4")
        a("s_and_b32 s66, s66, 15")
        a(f"s_mul_i32 s67, s67, {928*4096}")
        a("s_lshl_b32 s66, s66, 8")
        a("s_add_u32 s67, s67, s66")
        a("s_and_b32 s66, s52, 1")
        a("s_lshl_b32 s66, s66, 17")
        a("s_add_u32 s67, s67, s66")
        a("v_lshrrev_b32 v5, 1, v0")
        a("v_lshlrev_b32 v5, 12, v5")
        a("v_and_b32 v6, 1, v0")
        a("v_lshl_add_u32 v5, v6, 7, v5")
        a("v_add_u32 v5, s67, v5")
        for n in range(PF2):
            a(f"buffer_load_dword v{60+(n&1)}, v5, s[40:43], 0 offen")
            a(f"v_add_u32 v5, {64*4096}, v5")
            a(f"s_waitcnt vmcnt({PFD})")
    else:
        for n in range(-(-(576 - 64*PF1)//40) if PFW1 else 0):
            a(f"buffer_load_dword v{60+(n&1)}, v5, s[40:43], 0 offen")
            a(f"v_add_u32 v5, {40*8192}, v5")
            a(f"s_waitcnt vmcnt({PFD})")
        a.stamp_mid(1)
        a.srd(40, P_W2, S*F*2)
        a("s_lshl_b32 s68, s67, 2")
        a("s_add_u32 s68, s68, s52")
        a("s_lshr_b32 s66, s68, 5")
        a("s_and_b32 s68, s68, 31")
        a(f"s_mul_i32 s66, s66, {928*4096}")
        a("s_lshl_b32 s68, s68, 13")
        a("s_add_u32 s66, s66, s68")
        a("v_lshlrev_b32 v5, 7, v0")
        a("v_add_u32 v5, s66, v5")
        for n in range(PF2):
            a(f"buffer_load_dword v{60+(n&1)}, v5, s[40:43], 0 offen")
            a(f"v_add_u32 v5, {32*8192}, v5")
            a(f"s_waitcnt vmcnt({PFD})")
    a("s_waitcnt vmcnt(0)")
    a.stamp_mid(2)
    a(f"s_cmp_ge_u32 s3, {k_mlp2.MLP2_GRID}")
    a("s_cbranch_scc1 L_done")
    a.label("L_mlp2")
    def dep_u(a):
        Lg = a.newlabel("g")
        a("s_cmp_lg_u32 s52, 0")
        a(f"s_cbranch_scc1 {Lg}")
        sync.spin_init(a, 8, True)
        a("s_bfe_u32 s73, s2, 0x50003")
        a("s_lshl_b32 s73, s73, 8")
        a(f"s_add_u32 s73, s73, {mb(MB_G)}")
        sync.spin(a, 48, "s73", 64, 0)
        a.label(Lg)
        a("s_mul_i32 s73, s67, 5")
        a("s_add_u32 s73, s73, s69")
        a("s_lshl_b32 s73, s73, 4")
        a("s_add_u32 s73, s73, s66")
        a("s_lshl_b32 s73, s73, 8")
        a(f"s_add_u32 s73, s73, {mb(MB_U)}")
        a("s_cmp_eq_u32 s69, 4")
        a("s_cselect_b32 s76, 14, 16")
        sync.poll(a, 73, "s76", vt=8, sleep=2)
        if COOP_U:
            a("s_lshr_b32 s70, s3, 3")
            a("s_mul_i32 s70, s70, 86")
            a("s_lshr_b32 s70, s70, 8")
            a("s_mul_i32 s73, s52, 10")
            a("s_add_u32 s70, s70, s73")
            a("s_lshl_b32 s70, s70, 6")
            a("s_add_u32 s70, s70, 288")
            a("v_add_u32 v60, s70, v0")
            a("v_min_u32 v60, 2783, v60")
            a("v_mul_u32_u24 v61, 5462, v60")
            a("v_lshrrev_b32 v61, 18, v61")
            a("v_mul_u32_u24 v61, 96, v61")
            a("v_add_lshl_u32 v60, v60, v61, 7")
            a(f"s_mul_i32 s70, s69, {58*18*1024}")
            a("s_mul_i32 s73, s67, 6144")
            a("s_add_u32 s70, s70, s73")
            a(f"s_add_u32 s70, s70, {U_OFF}")
            a("s_mov_b32 s77, s70")
    def ybox(a):
        a("s_lshl_b32 s76, s67, 1")
        a("s_add_u32 s76, s76, s71")
        a("s_lshl_b32 s76, s76, 5")
        a("s_lshl_b32 s70, s66, 1")
        a("s_add_u32 s76, s76, s70")
        a("s_add_u32 s76, s76, s72")
        a("s_lshl_b32 s76, s76, 8")
        a(f"s_add_u32 s76, s76, {mb(MB_Y)}")
    def dep_o(a, block):
        if block == "look":
            a("v_readfirstlane_b32 s75, v57")
            a("s_lshl_b32 s76, s53, 1")
            a("s_cmp_ge_u32 s75, s76")
            a("s_cselect_b32 s79, 1, 0")
            return
        a("s_lshr_b32 s73, s66, 1")
        a("s_mul_i32 s73, s73, 5")
        a("s_add_u32 s73, s73, s69")
        a("s_mul_i32 s73, s73, 6")
        a("s_lshl_b32 s70, s67, 1")
        a("s_add_u32 s73, s73, s70")
        a("s_and_b32 s70, s66, 1")
        a("s_add_u32 s73, s73, s70")
        a("s_lshl_b32 s73, s73, 8")
        a(f"s_add_u32 s73, s73, {mb(MB_O)}")
        a("s_lshl_b32 s76, s53, 1")
        if block:
            sync.spin(a, 48, "s73", "s76", 8, sleep=2)
            if not k_mlp1.EPIST: a.stamp_mid(6)
        else:
            a("v_mov_b32 v56, 0")
            a("s_mov_b64 exec, 1")
            a("buffer_load_dword v57, v56, s[48:51], s73 offen sc1")
            a("s_mov_b64 exec, -1")
    k_mlp2.mlp2_body(a, "s3", 3, dep_u, dep_o, ybox, post=(lambda a: a("buffer_load_dword v61, v60, s[48:51], s77 offen sc1")) if COOP_U else None)
    a.label("L_done")
    if DIAG is not None:
        wg, slot, kind = DIAG
        Ld = a.newlabel("diag"); Lw = a.newlabel("diagw")
        a(f"s_cmp_lg_u32 s2, {wg}")
        a(f"s_cbranch_scc1 {Ld}")
        a("s_waitcnt vmcnt(0)")
        if slot == "end":
            a.stamp_mid(0); slot = 0
        if slot is None:
            a("s_mov_b32 s70, 0")
        elif kind == "t":
            a(f"s_sub_u32 s70, s{4+slot}, s88")
            a("s_mul_i32 s70, s70, 10")
        else:
            a(f"s_lshr_b32 s70, s{93+slot}, 1")
        a("s_add_u32 s70, s70, 20000")
        a.label(Lw)
        a("s_sleep 1")
        a("s_memrealtime s[90:91]")
        a("s_waitcnt lgkmcnt(0)")
        a("s_sub_u32 s71, s90, s88")
        a("s_cmp_lt_u32 s71, s70")
        a(f"s_cbranch_scc1 {Lw}")
        a.label(Ld)
    a.end()
    a.label("L_end")
    a("s_endpgm")
    a.label("L_code_end")

def build(stamp=False):
    a = Asm()
    a.stamp = stamp
    fin = NAME + "_kernel"
    out = HEADER
    out += (f"; @launch kernel={fin} grid=(512,1,1) block=(256,1,1) lds=81920\n" if LIST else "; @launch grid=(512,1,1) block=(256,1,1) lds=81920\n")
    out += '.amdgcn_target "amdgcn-amd-amdhsa--gfx950"\n.text\n'
    gen_main(a, fin)
    if PRE:
        out = out.replace("; @launch kernel=", "; @launch kernel=pre_kernel grid=(256,1,1) block=(256,1,1) lds=0\n; @launch kernel=", 1)
        st = a.stamp; a.stamp = False
        a.kernel_begin("pre_kernel")
        if PRE > 1:
            a("s_cmp_ge_u32 s2, 256")
            a("s_cbranch_scc1 L_pre_end")
            a.load_kernargs()
            sync.wave_setup(a)
            k_front.xw_touch(a, "s2")
            a("s_getpc_b64 s[80:81]")
            a.label("L_pc2")
            a(f"s_sub_u32 s80, s80, L_pc2 - {fin}")
            a("s_subb_u32 s81, s81, 0")
            a(f"s_mov_b32 s82, L_code_end - {fin}")
            a("s_mov_b32 s83, 0x00020000")
            a("s_lshr_b32 s72, s2, 3")
            a("s_lshl_b32 s72, s72, 2")
            a("s_add_u32 s72, s72, s52")
            a("s_lshl_b32 s72, s72, 13")
            a("v_lshlrev_b32 v5, 7, v0")
            a("v_add_u32 v5, s72, v5")
            a("buffer_load_dword v58, v5, s[80:83], 0 offen")
            a("s_waitcnt vmcnt(0)")
            a.label("L_pre_end")
        a("s_endpgm")
        a.stamp = st
    out += a.text()
    out += '.section .rodata,"a"\n'
    if PRE: out += ".p2align 6\n" + descriptor("pre_kernel", 64, None)
    out += ".p2align 6\n" + descriptor(fin, 256, None)
    return out

if __name__ == "__main__":
    open("main.s", "w").write(build())
    open("stamp.s", "w").write(build(True))
    open("main_l.s", "w").write(build("lite"))
    LIST = False
    open("final.s", "w").write(build())
    LIST = True
    VARS = eval(open("vars.txt").read())
    import copy
    for nm, kv in VARS.items():
        saved = {}
        for k, v in kv.items():
            mod, name = (globals()[k.split(".")[0]].__dict__, k.split(".")[1]) if "." in k else (globals(), k)
            saved[k] = (mod, name, mod[name]); mod[name] = v
        open(f"gen/{nm}.s", "w").write(build(False))
        open(f"gen/{nm}_s.s", "w").write(build(True))
        open(f"gen/{nm}_l.s", "w").write(build("lite"))
        for mod, name, v in saved.values(): mod[name] = v
    print("wrote")
```

```python
from common import *

ATTN_GRID = 256
SKIP = False
CH = 16*KV_RS
ATTN_LDS = 2*CH + 64

VK0, VK1, VV, VDM = 1, 2, 3, 4
VST, VWR, VWC = 144, 145, 146
CONST = 2*CH + 64
Q0 = [8, 12]; Q1 = [16, 18]
K0 = [20, 24]; K1 = [28, 30]
V = [32, 40]
P = [48, 56]
Sx = [64, 80]
O = [96, 112]
TMP = 128
NV_ATTN = 144
S_KV, S_C, S_ATT, S_VM = 54, 55, 56, 58

def dma_chunk(a, sbuf, soff):
    for i in range(9):
        a(f"s_add_u32 m0, s{sbuf}, {i*4096}")
        a(f"s_add_u32 s60, s{soff}, {i*4096}")
        a(f"buffer_load_dwordx4 v{VDM}, s[48:51], s60 offen sc1 lds")

def qk(a, which, aq, kb):
    s = vr(Sx[aq], 16)
    if which == 0:
        a(f"v_mfma_f32_32x32x16_bf16 {s}, {vr(K0[kb],4)}, {vr(Q0[aq],4)}, 0")
    else:
        a(f"v_mfma_f32_32x32x8_bf16 {s}, {vr(K1[kb],2)}, {vr(Q1[aq],2)}, {s}")

def pv(a, which, aq, vb):
    o = vr(O[aq], 16)
    a(f"v_mfma_f32_32x32x16_bf16 {o}, {vr(V[vb]+4*which,4)}, {vr(P[aq]+4*which,4)}, {o}")

def read_k(a, kb, rec):
    a(f"ds_read_b128 {vr(K0[kb],4)}, v{VK0} offset:{rec*KV_RS}")
    a(f"ds_read_b32 v{K1[kb]}, v{VK1} offset:{rec*KV_RS}")

def read_v(a, vb, rec):
    for x in V_FILL(vb, rec): a(x)

def expq(a, aq, q, fill=()):
    fill = list(fill)
    for e in range(4):
        r = Sx[aq] + 4*q + e
        a(f"v_exp_f32 v{r}, v{r}")
        if fill: a(fill.pop(0))
    assert not fill
    for c in range(2):
        r = Sx[aq] + 4*q + 2*c
        a(f"v_cvt_pk_bf16_f32 v{P[aq]+2*q+c}, v{r}, v{r+1}")

def block(a, kt, aq, rec=None, do_qk=True, dma=None):
    an = 1 - aq
    kq = (kt + aq) & 1
    vb = (kt - 1 + aq) & 1
    nb = (kt + 1) & 1
    f0 = []
    if rec is not None:
        if aq == 0:
            f0 = [f"ds_read_b128 {vr(K0[nb],4)}, v{VK0} offset:{rec*KV_RS}", f"ds_read_b32 v{K1[nb]}, v{VK1} offset:{rec*KV_RS}"]
        else:
            f0 = V_FILL(nb, rec)
    if NOLDS: f0 = []
    if aq == 1 and MODE != 1:
        a("s_waitcnt lgkmcnt(0)")
    ms = [lambda: qk(a, 0, an, kq) if do_qk else None, lambda: qk(a, 1, an, kq) if do_qk else None,
          lambda: pv(a, 0, an, vb), lambda: pv(a, 1, an, vb)]
    if MODE == 3:
        ops = []
        for q in range(4):
            for e in range(4): ops.append((8, f"v_exp_f32 v{Sx[aq]+4*q+e}, v{Sx[aq]+4*q+e}"))
            for c in range(2):
                r = Sx[aq] + 4*q + 2*c
                ops.append((4, f"v_cvt_pk_bf16_f32 v{P[aq]+2*q+c}, v{r}, v{r+1}"))
        ex = [[], [], [], []]
        for n, x in enumerate(f0): ex[n].append(x)
        pre = 4 if aq == 0 else 0
        total = 160 + 4*len(f0) + pre
        done = 0; i = 0
        for q in range(4):
            ms[q]()
            for x in ex[q]: a(x); done += 4
            lim = total*(q+1)/4 if q < 3 else 1e9
            while i < len(ops) and done + ops[i][0]/2 <= lim:
                a(ops[i][1]); done += ops[i][0]; i += 1
        return
    for q in range(4):
        ms[q]()
        fl = []
        if dma is not None and q == 2:
            a(f"s_add_u32 m0, s67, {dma*4096}")
            a(f"s_add_u32 s60, s66, {dma*4096}")
        if dma is not None and q == 3:
            a(f"buffer_load_dwordx4 v{VDM}, s[80:83], s60 offen sc1 lds")
        if MODE == 0:
            if q == 0:
                for x in f0: a(x)
        elif MODE == 1:
            if q == 0: fl = f0
            if q == 3 and aq == 0: fl = ["s_waitcnt lgkmcnt(0)"]
        elif MODE == 2:
            if q < len(f0): a(f0[q])
        expq(a, aq, q, fl)

MODE = 0
AST = False
K2 = 2
SPREAD = True
NOLDS = False
SPREAD_V = True
def V_FILL(vb, rec):
    return [f"ds_read_b128 {vr(V[vb],4)}, v{VV}",
            f"ds_read_b128 {vr(V[vb]+4,4)}, v{VV} offset:576",
            f"v_add_u32 v{VV}, v{VV}, v{VST}"]

def set_m(a, aq, m):
    t = TMP
    a(f"v_mov_b32 v{t}, v{m}")
    a("s_nop 1")
    a(f"v_permlane32_swap_b32 v{m}, v{t}")
    a("s_nop 1")
    a(f"v_max_f32 v{m}, v{m}, v{t}")
    a(f"v_sub_f32 v{m}, 0, v{m}")
    a(f"v_and_b32 v{t}, 0xffff0000, v{m}")
    a(f"v_sub_f32 v{m}, v{m}, v{t}")
    a(f"v_and_b32 v{t+1}, 0xffff0000, v{m}")
    a(f"v_sub_f32 v{m}, v{m}, v{t+1}")
    a(f"v_lshrrev_b32 v{t}, 16, v{t}")
    a(f"v_or_b32 v{t}, v{t}, v{t+1}")
    a(f"v_lshrrev_b32 v{m}, 16, v{m}")
    a(f"v_cmp_gt_u32 vcc, 32, v0")
    a("s_nop 1")
    a(f"v_cndmask_b32 v{Q1[aq]+1}, v{m}, v{t}, vcc")

def tile_max(a, aq, m, first):
    s = Sx[aq]
    if first:
        a(f"v_max3_f32 v{m}, v{s}, v{s+1}, v{s+2}")
        a(f"v_max_f32 v{m}, v{m}, v{s+3}")
        st = 4
    else:
        st = 0
    for e in range(st, 16, 2):
        a(f"v_max3_f32 v{m}, v{m}, v{s+e}, v{s+e+1}")

def attn_body(a, wgreg, dep, pub, sm=0, tsetup=None, touch=None, dep_g=None, dep2=None):
    a(f"s_and_b32 s61, {wgreg}, 7")
    a("s_lshl_b32 s61, s61, 2")
    a(f"s_bfe_u32 s62, {wgreg}, 0x20003")
    a("s_add_u32 s61, s61, s62")
    a(f"s_lshr_b32 s62, {wgreg}, 5")
    a("s_lshl_b32 s62, s62, 3")
    a("s_lshl_b32 s63, s52, 1")
    a("s_add_u32 s62, s62, s63")
    a(f"s_mul_i32 s{S_KV}, s61, {64*KV_RS}")
    a(f"s_add_u32 s{S_KV}, s{S_KV}, {KV_OFF}")
    a("s_lshl_b32 s64, s52, 10")
    a(f"s_add_u32 s65, s64, {CH}")
    a(f"v_lshlrev_b32 v5, 4, v0")
    a(f"v_add_u32 v{VDM}, s64, v5")
    a("s_lshl_b32 s63, s61, 6")
    a("s_add_u32 s63, s63, s62")
    a(f"s_mul_i32 s63, s63, {QR_RS}")
    a(f"s_add_u32 s63, s63, {QR_OFF}")
    a("v_and_b32 v6, 31, v0")
    a("v_lshlrev_b32 v7, 2, v6")
    if tsetup: tsetup(a)
    dep(a)
    for aq in range(2):
        a(f"buffer_load_dwordx4 {vr(Q0[aq],4)}, v5, s[48:51], s63 offen offset:{aq*QR_RS} sc1")
        a(f"buffer_load_dword v{Q1[aq]}, v7, s[48:51], s63 offen offset:{aq*QR_RS + 1024} sc1")
    a(f"s_mov_b32 s{S_ATT}, 0")
    for b in range(2):
        a(f"v_mov_b32 v{K1[b]+1}, 0x3f803f80")
        a(f"v_mov_b32 v{Q1[b]+1}, 0")
    for e in range(8):
        a(f"v_mov_b32 v{V[1]+e}, 0")
    a(f"v_cmp_gt_u32 vcc, 4, v0")
    a(f"v_mov_b32 v{TMP}, 0x3f803f80")
    a(f"v_lshlrev_b32 v{TMP+1}, 2, v0")
    a(f"v_cndmask_b32 v{TMP}, 0, v{TMP}, vcc")
    a(f"v_add_u32 v{TMP+1}, {CONST}, v{TMP+1}")
    a("s_mov_b64 exec, 0xff")
    a(f"ds_write_b32 v{TMP+1}, v{TMP}")
    a(f"ds_write_b32 v{TMP+1}, v{TMP} offset:576")
    a("s_mov_b64 exec, -1")
    a(f"v_cmp_gt_u32 s[{S_VM}:{S_VM+1}], 18, v6")
    a(f"v_mov_b32 v{VST}, {KV_RS}")
    a(f"v_mov_b32 v{VWC}, {(-2*CH) & 0xffffffff}")
    a(f"v_cndmask_b32 v{VST}, 0, v{VST}, s[{S_VM}:{S_VM+1}]")
    a(f"v_cndmask_b32 v{VWC}, 0, v{VWC}, s[{S_VM}:{S_VM+1}]")
    a.label("L_attn_start")
    a(f"s_lshr_b32 s57, {wgreg}, 6")
    def next_chunk(sbuf):
        a(f"s_mul_i32 s66, s57, {CH}")
        a(f"s_add_u32 s66, s66, s{S_KV}")
        a("s_add_u32 s57, s57, 1")
        a("s_and_b32 s57, s57, 3")
        if sbuf is not None: dma_chunk(a, sbuf, 66)
    next_chunk(64)
    if SPREAD:
        a.srd(80, P_WS, WS_SIZE)
        next_chunk(None)
        a(f"s_mov_b32 s67, s65")
        a(f"s_mov_b32 s68, s64")
    else:
        a(f"s_mov_b32 s67, s64")
        a(f"s_mov_b32 s68, s65")
    a(f"v_mov_b32 v{VK0}, v5")
    a(f"v_add_u32 v{VK1}, 1024, v7")
    a(f"v_lshrrev_b32 v{VV}, 5, v0")
    a(f"v_mul_u32_u24 v{VV}, 288, v{VV}")
    a(f"v_lshl_add_u32 v{VV}, v6, 4, v{VV}")
    a(f"v_add_u32 v{VV}, 1152, v{VV}")
    a(f"v_and_b32 v{TMP}, 27, v6")
    a(f"v_cmp_eq_u32 vcc, 18, v{TMP}")
    a(f"v_mov_b32 v{TMP}, {CONST + 16}")
    a(f"v_mov_b32 v{TMP+1}, {CONST}")
    a(f"v_cndmask_b32 v{TMP}, v{TMP}, v{TMP+1}, vcc")
    a(f"v_cndmask_b32 v{VV}, v{TMP}, v{VV}, s[{S_VM}:{S_VM+1}]")
    a(f"v_mov_b32 v{VWR}, 0")
    for aq in range(2):
        for e in range(16):
            a(f"v_mov_b32 v{O[aq]+e}, 0")
    for e in range(8):
        a(f"v_mov_b32 v{P[1]+e}, 0")
    a("s_waitcnt vmcnt(7) lgkmcnt(0)")
    a("s_barrier")
    if touch: touch(a)
    read_k(a, 0, 0)
    read_v(a, 0, 0)
    a(f"v_cmp_gt_u32 vcc, 32, v0")
    a("s_nop 1")
    for aq in range(2):
        a(f"v_cndmask_b32 v{Q1[aq]}, 0, v{Q1[aq]}, vcc")
    a("s_waitcnt lgkmcnt(0)")
    a(f"s_cmp_lg_u32 s{S_ATT}, 0")
    a("s_cbranch_scc1 L_attn_havemax")
    for aq in range(2):
        qk(a, 0, aq, 0); qk(a, 1, aq, 0)
    a("s_nop 15")
    for aq in range(2):
        tile_max(a, aq, TMP+2+aq, True)
    for aq in range(2):
        set_m(a, aq, TMP+2+aq)
    a("s_nop 1")
    a.label("L_attn_havemax")
    qk(a, 0, 0, 0); qk(a, 1, 0, 0)
    a(f"s_mov_b32 s{S_C}, 0")
    a.stamp_mid(sm)
    a("s_setprio 1")
    a("s_nop 15")
    a("s_branch L_attn_out" if SKIP else "s_branch L_attn_entry")
    a.raw(".p2align 6")
    a.label("L_attn_loop")
    a("s_waitcnt vmcnt(0) lgkmcnt(0)")
    a("s_barrier")
    a(f"v_xor_b32 v{VK0}, {CH}, v{VK0}")
    a(f"v_xor_b32 v{VK1}, {CH}, v{VK1}")
    a(f"v_add_u32 v{VV}, v{VV}, v{VWR}")
    a(f"v_xor_b32 v{VWR}, v{VWR}, v{VWC}")
    a(f"s_cmp_eq_u32 s{S_C}, 3")
    if SPREAD:
        a("s_cselect_b32 s82, 0, s82")
        next_chunk(None)
    else:
        a("s_cbranch_scc1 L_attn_nodma")
        next_chunk(67)
    a("s_mov_b32 s69, s67")
    a("s_mov_b32 s67, s68")
    a("s_mov_b32 s68, s69")
    if touch: touch(a)
    a.label("L_attn_nodma")
    block(a, -1, 0, 0); block(a, -1, 1, 0)
    a.label("L_attn_entry")
    for kt in range(15):
        if kt == 2:
            a(f"s_cmp_lg_u32 s{S_C}, 0")
            a("s_cbranch_scc1 L_attn_k2")
            a("s_waitcnt vmcnt(0)")
            a("s_barrier")
            a.label("L_attn_k2")
        if kt == K2:
            a(f"s_cmp_lg_u32 s{S_C}, 0")
            a("s_cbranch_scc1 L_attn_k3")
            dep2(a)
            dep_g(a)
            a("s_lshl_b32 s69, s62, 7")
            a(f"s_add_u32 s69, s69, {G_OFF}")
            a(f"buffer_load_dword v{TMP+8}, v7, s[48:51], s69 offen sc1")
            a(f"buffer_load_dword v{TMP+9}, v7, s[48:51], s69 offen offset:128 sc1")
            if not SPREAD: next_chunk(65)
            a.label("L_attn_k3")
        d = kt - K2 if (SPREAD and 0 <= kt - K2 < 9) else None
        block(a, kt, 0, kt+1, dma=d); block(a, kt, 1, kt+1)
    if AST and a.stamp is True:
        for cnt, slot in ((0, 0), (1, 1), (2, 2), (3, 6)):
            Ls = a.newlabel("st")
            a(f"s_cmp_lg_u32 s{S_C}, {cnt}")
            a(f"s_cbranch_scc1 {Ls}")
            a.stamp_mid(slot)
            a.label(Ls)
    a(f"s_add_u32 s{S_C}, s{S_C}, 1")
    a(f"s_cmp_lt_u32 s{S_C}, 4")
    a("s_cbranch_scc1 L_attn_loop")
    block(a, 15, 0); block(a, 15, 1, do_qk=False)
    a("s_nop 1")
    pv(a, 0, 1, 1); pv(a, 1, 1, 1)
    a("s_nop 15")
    a.stamp_mid(sm+1)
    a("s_setprio 3")
    a(f"v_max_f32 v{TMP}, v{O[0]+10}, v{O[1]+10}")
    a(f"v_mov_b32 v{TMP+2}, 0")
    for e in range(11):
        a(f"v_fma_f32 v{TMP}, v{O[0]+e}, 0, v{TMP}")
        a(f"v_fma_f32 v{TMP+2}, v{O[1]+e}, 0, v{TMP+2}")
    a(f"v_add_f32 v{TMP}, v{TMP}, v{TMP+2}")
    a(f"v_mov_b32 v{TMP+1}, 0x5f800000")
    a(f"v_cmp_nlt_f32 vcc, v{TMP}, v{TMP+1}")
    for aq in range(2):
        a(f"v_rcp_f32 v{O[aq]+10}, v{O[aq]+10}")
    a("s_cmp_lg_u64 vcc, 0")
    a("s_cselect_b32 s69, 1, 0")
    a(f"v_mov_b32 v{TMP}, s69")
    a(f"s_lshl_b32 s69, s52, 2")
    a(f"s_add_u32 s69, s69, {2*CH}")
    a(f"v_mov_b32 v{TMP+1}, s69")
    a(f"ds_write_b32 v{TMP+1}, v{TMP}")
    a(f"v_lshrrev_b32 v{TMP}, 5, v0")
    a(f"v_lshlrev_b32 v{TMP}, 9, v{TMP}")
    a(f"v_lshl_add_u32 v{TMP}, v6, 1, v{TMP}")
    a(f"v_add_u32 v{TMP}, s64, v{TMP}")
    a("s_waitcnt vmcnt(0)")
    for aq in range(2):
        o = O[aq]
        a(f"v_mul_f32 v{o+10}, v{o+10}, v{TMP+8+aq}")
        for e in range(10):
            a(f"v_mul_f32 v{o+e}, v{o+e}, v{o+10}")
        for e in range(5):
            a(f"v_cvt_pk_bf16_f32 v{o+e}, v{o+2*e}, v{o+2*e+1}")
        for p in range(5):
            off = (p >> 1)*4096 + (p & 1)*256 + aq*64
            if p == 4: a("s_mov_b32 exec_hi, 0")
            a(f"ds_write_b16 v{TMP}, v{o+p} offset:{off}")
            a(f"ds_write_b16_d16_hi v{TMP}, v{o+p} offset:{off+128}")
            if p == 4: a("s_mov_b64 exec, -1")
    a(f"v_lshrrev_b32 v{TMP+1}, 3, v0")
    a(f"v_lshlrev_b32 v{TMP+1}, 12, v{TMP+1}")
    a(f"v_and_b32 v{TMP+2}, 7, v0")
    a(f"v_lshl_add_u32 v{TMP+1}, v{TMP+2}, 4, v{TMP+1}")
    a(f"s_mul_i32 s69, s61, {18*4096}")
    a("s_lshl_b32 s70, s62, 6")
    a("s_add_u32 s69, s69, s70")
    a(f"s_add_u32 s69, s69, {O_OFF}")
    a("s_add_u32 s70, s69, 32768")
    a("s_add_u32 s71, s69, 65536")
    a("s_waitcnt lgkmcnt(0)")
    a(f"ds_read_b128 {vr(O[0],4)}, v{VDM}")
    a(f"ds_read_b128 {vr(O[0]+4,4)}, v{VDM} offset:4096")
    a(f"ds_read_b128 {vr(O[0]+8,4)}, v{VDM} offset:8192")
    a(f"v_mov_b32 v{TMP+2}, {2*CH}")
    a("s_waitcnt lgkmcnt(2)")
    a(f"buffer_store_dwordx4 {vr(O[0],4)}, v{TMP+1}, s[48:51], s69 offen sc1")
    a("s_waitcnt lgkmcnt(1)")
    a(f"buffer_store_dwordx4 {vr(O[0]+4,4)}, v{TMP+1}, s[48:51], s70 offen sc1")
    a("s_waitcnt lgkmcnt(0)")
    a("s_mov_b64 exec, 0xffff")
    a(f"buffer_store_dwordx4 {vr(O[0]+8,4)}, v{TMP+1}, s[48:51], s71 offen sc1")
    a("s_mov_b64 exec, -1")
    a("s_barrier")
    a(f"ds_read_b128 {vr(TMP+4,4)}, v{TMP+2}")
    a(f"s_cmp_lg_u32 s{S_ATT}, 0")
    a("s_cbranch_scc1 L_attn_out")
    a("s_waitcnt lgkmcnt(0)")
    a(f"v_or_b32 v{TMP}, v{TMP+4}, v{TMP+5}")
    a(f"v_or3_b32 v{TMP}, v{TMP}, v{TMP+6}, v{TMP+7}")
    a("s_nop 0")
    a(f"v_readfirstlane_b32 s69, v{TMP}")
    a("s_nop 3")
    a("s_cmp_eq_u32 s69, 0")
    a("s_cbranch_scc1 L_attn_out")
    a(f"s_mov_b32 s{S_ATT}, 1")
    for aq in range(2):
        a(f"v_mov_b32 v{Q1[aq]+1}, 0")
        a(f"v_mov_b32 v{TMP+2+aq}, 0xff800000")
    a(f"s_mov_b32 s66, s{S_KV}")
    a(f"s_mov_b32 s{S_C}, 0")
    a.label("L_attn_mx_chunk")
    dma_chunk(a, 64, 66)
    a(f"s_add_u32 s66, s66, {CH}")
    a(f"v_mov_b32 v{VK0}, v5")
    a(f"v_add_u32 v{VK1}, 1024, v7")
    a("s_mov_b32 s69, 0")
    a("s_waitcnt vmcnt(0)")
    a("s_barrier")
    a.label("L_attn_mx_tile")
    read_k(a, 0, 0)
    a(f"v_add_u32 v{VK0}, {KV_RS}, v{VK0}")
    a(f"v_add_u32 v{VK1}, {KV_RS}, v{VK1}")
    a("s_waitcnt lgkmcnt(0)")
    for aq in range(2):
        qk(a, 0, aq, 0); qk(a, 1, aq, 0)
    a("s_nop 15")
    for aq in range(2):
        tile_max(a, aq, TMP+2+aq, False)
    a("s_add_u32 s69, s69, 1")
    a("s_cmp_lt_u32 s69, 16")
    a("s_cbranch_scc1 L_attn_mx_tile")
    a("s_barrier")
    a(f"s_add_u32 s{S_C}, s{S_C}, 1")
    a(f"s_cmp_lt_u32 s{S_C}, 4")
    a("s_cbranch_scc1 L_attn_mx_chunk")
    for aq in range(2):
        set_m(a, aq, TMP+2+aq)
    a("s_branch L_attn_start")
    a.label("L_attn_out")
    pub(a)
```

```python
from common import *
import math
QSCALE = (DH ** -0.5) * math.log2(math.e)
SC = " sc1"
CB = 17408
ACC = 96
SET = [32, 52]

XNT = ''
QST = False
def qkv_body(a, wgreg, pub, hint=None):
    a.srd(40, P_X, S*D*2)
    a.srd(44, P_WQKV, D*3*D*2)
    a(f"s_and_b32 s53, {wgreg}, 7")
    a(f"s_lshr_b32 s54, {wgreg}, 3")
    a("s_lshr_b32 s55, s53, 1")
    a("s_lshl_b32 s55, s55, 2")
    a("s_and_b32 s56, s54, 3")
    a("s_add_u32 s55, s55, s56")
    a("s_and_b32 s56, s53, 1")
    a("s_mul_i32 s56, s56, 6")
    a("s_lshr_b32 s57, s54, 2")
    a("s_add_u32 s56, s56, s57")
    a("s_lshl_b32 s59, s55, 2")
    a("s_add_u32 s60, s59, s52")
    a("v_lshrrev_b32 v2, 2, v0")
    a("s_lshl_b32 s60, s60, 5")
    a("v_add_u32 v2, s60, v2")
    a("v_mul_u32_u24 v2, 1152, v2")
    a("v_lshrrev_b32 v3, 4, v0")
    a("v_xor_b32 v3, v3, v0")
    a("v_and_b32 v3, 3, v3")
    a("v_lshl_add_u32 v2, v3, 4, v2")
    a(f"v_add_u32 v3, {16*1152}, v2")
    a("s_mul_i32 s65, s56, 288")
    a(f"s_mul_i32 s60, s52, {8*3456}")
    a("s_add_u32 s65, s65, s60")
    for i in range(3):
        a(f"v_add_u32 v7, {64*i}, v0")
        a(f"v_mul_u32_u24 v8, 3641, v7")
        a(f"v_lshrrev_b32 v8, 16, v8")
        a(f"v_mul_u32_u24 v9, 18, v8")
        a(f"v_sub_u32 v7, v7, v9")
        a(f"v_and_b32 v10, 1, v8")
        a(f"v_lshrrev_b32 v9, 1, v8")
        a(f"v_lshl_or_b32 v9, v10, 2, v9")
        a(f"v_mul_u32_u24 v9, 3456, v9")
        a(f"v_lshl_add_u32 v9, v7, 4, v9")
        a(f"v_add_u32 v{4+i}, s65, v9")
    a("s_lshl_b32 s61, s52, 11")
    a("s_mul_i32 s62, s52, 2304")
    a("s_add_u32 s62, s62, 8192")
    a("s_mov_b32 s63, 0")
    a("s_mov_b32 s64, 0")
    a(f"s_mov_b32 s71, {32*3456}")
    a("s_mov_b64 s[72:73], 0xffff")
    def setm0(buf, i):
        if i < 2: a(f"s_add_u32 m0, s61, {buf*CB + i*1024}")
        else: a(f"s_add_u32 m0, s62, {buf*CB + (i-2)*1024}")
    def load(i):
        if i < 2:
            a(f"buffer_load_dwordx4 v{2+i}, s[40:43], s63 offen lds")
            if i == 1: a("s_add_u32 s63, s63, 64")
        elif i < 4:
            a(f"buffer_load_dwordx4 v{2+i}, s[44:47], s64 offen lds")
        else:
            a("s_mov_b64 exec, s[72:73]")
            a(f"buffer_load_dwordx4 v6, s[44:47], s64 offen lds")
            a("s_mov_b64 exec, -1")
            a("s_add_u32 s64, s64, s71")
    for c in range(4):
        for i in range(5 if c < 3 else 2):
            setm0(c, i); a("s_nop 0"); load(i)
    a.stamp_mid(0)
    a("s_and_b32 s57, s52, 1")
    a("s_lshr_b32 s58, s52, 1")
    a("s_lshl_b32 s60, s57, 1")
    a("s_add_u32 s60, s60, s58")
    a("s_add_u32 s59, s59, s60")
    a("v_and_b32 v10, 31, v0")
    a("v_lshrrev_b32 v11, 5, v0")
    a("v_bfe_u32 v12, v10, 2, 2")
    a("v_xor_b32 v12, v12, v11")
    a("v_lshlrev_b32 v13, 6, v10")
    a("v_lshl_add_u32 v16, v12, 4, v13")
    a("s_lshl_b32 s60, s60, 11")
    a("v_add_u32 v16, s60, v16")
    a("v_xor_b32 v17, 32, v16")
    a("v_xor_b32 v18, 0x800, v16")
    a("v_xor_b32 v19, 0x800, v17")
    a("v_bfe_u32 v12, v0, 2, 2")
    a("v_lshlrev_b32 v12, 1, v12")
    a("v_lshl_add_u32 v12, v11, 3, v12")
    a("v_mul_u32_u24 v12, 288, v12")
    a("v_add_u32 v12, 0x2000, v12")
    a("v_bfe_u32 v13, v0, 4, 1")
    a("v_and_b32 v14, 3, v0")
    a("v_lshl_add_u32 v15, v14, 3, v12")
    a("v_lshl_add_u32 v20, v13, 5, v15")
    a("s_and_b32 s69, s56, 3")
    a("s_lshl_b32 s69, s69, 9")
    a("s_cmp_ge_u32 s56, 8")
    a("s_cbranch_scc1 L_qkv_v")
    a("s_mul_i32 s60, s58, 144")
    a("s_add_u32 s60, s60, 40")
    a("v_add_u32 v21, 112, v20")
    a("v_add_u32 v20, s60, v20")
    a("v_lshl_add_u32 v23, v13, 8, v15")
    a("s_cmp_lg_u32 s58, 0")
    a("s_cselect_b64 vcc, -1, 0")
    a("v_cndmask_b32 v21, v21, v23, vcc")
    a("v_mul_u32_u24 v22, 72, v14")
    a("v_add3_u32 v22, v22, v12, 32")
    loop(a, False, setm0, load, hint)
    a("s_cmp_ge_u32 s56, 4")
    a(f"s_mov_b32 s66, {QR_OFF}")
    a(f"s_mov_b32 s67, {QR_RS}")
    a(f"s_mov_b32 s68, {f32bits(QSCALE)}")
    a(f"s_cselect_b32 s66, {KV_OFF}, s66")
    a(f"s_cselect_b32 s67, {KV_RS}, s67")
    a(f"s_cselect_b32 s68, 1.0, s68")
    a("s_xor_b32 s63, s59, 1")
    a("s_add_u32 s63, s63, s69")
    a("s_add_u32 s69, s59, s69")
    a("s_mul_i32 s69, s69, s67")
    a("s_add_u32 s69, s69, s66")
    a("s_mul_i32 s63, s63, s67")
    a("s_add_u32 s63, s63, s66")
    a("s_lshl_b32 s70, s67, 6")
    a("s_lshl_b32 s60, s58, 2")
    a("s_add_u32 s72, s60, 1")
    a("s_add_u32 s73, s60, 2")
    a("s_cmp_lg_u32 s58, 0")
    a("s_cselect_b32 s76, 0, 3")
    a("s_cselect_b32 s77, 7, 4")
    for r in (72, 73, 76, 77): a(f"s_mul_i32 s{r}, s{r}, s70")
    for j, (hx, hy, rec) in enumerate(((72, 73, 69), (72, 73, 63), (76, 77, 69), (76, 77, 63))):
        qk_store_main(a, j, hx, hy, rec)
    qk_store_left(a, 4)
    a("s_branch L_qkv_done")
    a.label("L_qkv_v")
    a("s_lshl_b32 s60, s58, 7")
    a("v_add_u32 v20, s60, v20")
    a("v_add_u32 v21, 64, v20")
    a("v_add_u32 v22, 256, v15")
    loop(a, True, setm0, load, hint)
    a("s_and_b32 s63, s59, 3")
    a("s_mul_i32 s64, s63, 1152")
    a("s_xor_b32 s63, s63, 1")
    a("s_mul_i32 s63, s63, 1152")
    a("s_lshl_b32 s60, s58, 6")
    a("v_add_u32 v12, s60, v10")
    a("s_waitcnt vmcnt(0)")
    a("s_barrier")
    v_addr(a, "v12"); v_put(a, 0, 64); v_put(a, 1, 63)
    a("v_add_u32 v12, 32, v12")
    v_addr(a, "v12"); v_put(a, 2, 64); v_put(a, 3, 63)
    a("v_add_u32 v12, 128, v10")
    v_addr(a, "v12"); v_put(a, 4, 64)
    a("s_lshl_b32 s60, s52, 7")
    a("s_add_u32 s69, s69, s60")
    a("s_and_b32 s60, s59, 60")
    a("s_add_u32 s69, s69, s60")
    a(f"s_mul_i32 s69, s69, {KV_RS}")
    a(f"s_add_u32 s69, s69, {KV_OFF + 1152}")
    for n in range(9):
        a(f"v_add_u32 v4, {64*n}, v0")
        a("v_mul_u32_u24 v5, 911, v4")
        a("v_lshrrev_b32 v5, 16, v5")
        a("v_lshrrev_b32 v6, 2, v5")
        a(f"v_mul_u32_u24 v6, {60*144}, v6")
        a("v_mad_u32_u24 v6, v5, v7, v6") if False else None
        a(f"v_mul_u32_u24 v5, 72, v5")
        a("v_add3_u32 v4, v4, v5, v6")
        a(f"v_lshlrev_b32 v{20+n}, 4, v4")
    a("s_mul_i32 s60, s52, 9216")
    a("v_add_u32 v3, s60, v2")
    a("s_waitcnt lgkmcnt(0)")
    a("s_barrier")
    for n in range(9):
        a(f"ds_read_b128 {vr(32+4*n,4)}, v3 offset:{n*1024}")
    for n in range(9):
        a(f"s_waitcnt lgkmcnt({8-n})")
        a(f"buffer_store_dwordx4 {vr(32+4*n,4)}, v{20+n}, s[48:51], s69 offen{SC}")
    a.label("L_qkv_done")
    a.stamp_mid(7)
    pub(a)

def loop(a, isv, setm0, load, hint):
    def reads(sn, buf, t):
        b = SET[sn]
        X = [((sn, "x", n), f"ds_read_b128 {vr(b+4*n,4)}, v{16+2*n+t} offset:{buf*CB}") for n in range(2)]
        W = [((sn, "w", j), f"ds_read_b64_tr_b16 {vr(b+8+4*j+2*sec,2)}, v{20+j} offset:{buf*CB + t*4608 + sec*288}") for j in range(3) for sec in range(2)]
        return [X[0], W[0], W[1], X[1], W[2], W[3], W[4], W[5]]
    MF = [(0, 0), (0, 1), (1, 0), (1, 1), (2, 0)]
    def mfma(ls, sn, k, first):
        b = SET[sn]
        j, n = MF[k]
        ls.need([(sn, "x", n), (sn, "w", j)])
        w = vr(b+8+4*j, 4); x = vr(b+4*n, 4); c = vr(ACC+16*k, 16)
        A, B = (x, w) if isv else (w, x)
        a(f"v_mfma_f32_32x32x16_bf16 {c}, {A}, {B}, {'0' if first else c}")
    def body(c, first=False, kill=False, last=False):
        buf = c % 4; pb = (c - 1) % 4
        ls = LdsSched(a, [r[0] for r in reads(0, buf, 0)])
        ls.need([(0, "w", 1)])
        r = reads(1, buf, 1)
        mfma(ls, 0, 0, first)
        if not last: setm0(pb, 2)
        for x in r[0:3]: ls.read(*x)
        if not last: load(2)
        mfma(ls, 0, 1, first)
        for x in r[3:7]: ls.read(*x)
        mfma(ls, 0, 2, first)
        if not last: setm0(pb, 3)
        ls.read(*r[7])
        if not last: load(3)
        mfma(ls, 0, 3, first)
        if not last: setm0(pb, 4); load(4)
        mfma(ls, 0, 4, first)
        if kill: kill()
        if last:
            ls.drain()
            for k in range(5): mfma(ls, 1, k, False)
            return
        ls.drain()
        mfma(ls, 1, 0, False)
        a("s_waitcnt vmcnt(10)")
        a("s_barrier")
        r = reads(0, (c+1) % 4, 0)
        for x in r[0:3]: ls.read(*x)
        mfma(ls, 1, 1, False)
        for x in r[3:7]: ls.read(*x)
        mfma(ls, 1, 2, False)
        setm0(buf, 0)
        ls.read(*r[7])
        load(0)
        mfma(ls, 1, 3, False)
        setm0(buf, 1)
        mfma(ls, 1, 4, False)
        load(1)
    a("s_waitcnt vmcnt(12)")
    a("s_barrier")
    a.stamp_mid(1)
    for r in reads(0, 0, 0): a(r[1])
    body(0, first=True)
    a("s_mov_b32 s60, 4")
    L = a.newlabel("qkv")
    def kill():
        a("s_cmp_gt_u32 s60, 1")
        a("s_cselect_b32 s42, s42, 0")
        a("s_cselect_b32 s46, s46, 0")
    a.raw(".p2align 6")
    a.label(L)
    for c in range(1, 5):
        body(c, kill=kill if c == 2 else None)
    if hint: hint(a)
    if QST and a.stamp is True:
        for cnt, slot in ((4, 3), (3, 4), (2, 5)):
            Ls = a.newlabel("st")
            a(f"s_cmp_lg_u32 s60, {cnt}")
            a(f"s_cbranch_scc1 {Ls}")
            a.stamp_mid(slot)
            a.label(Ls)
    a("s_sub_u32 s60, s60, 1")
    a("s_cmp_lg_u32 s60, 0")
    a(f"s_cbranch_scc1 {L}")
    body(17, last=True)
    a("v_lshlrev_b32 v2, 4, v0")
    a.stamp_mid(6)

def qk_store_main(a, j, hx, hy, rec):
    b = ACC + 16*j
    for i in range(16):
        a(f"v_mul_f32 v{b+i}, s68, v{b+i}")
    for i in range(8):
        a(f"v_cvt_pk_bf16_f32 v{b+i}, v{b+2*i}, v{b+2*i+1}")
    for half, hd in ((0, hx), (1, hy)):
        a(f"s_add_u32 s60, s{hd}, s{rec}")
        a(f"buffer_store_dwordx4 {vr(b+4*half,4)}, v2, s[48:51], s60 offen{SC}")

def qk_store_left(a, j):
    b = ACC + 16*j
    for i in range(8):
        a(f"v_mul_f32 v{b+i}, s68, v{b+i}")
    for i in range(4):
        a(f"v_cvt_pk_bf16_f32 v{b+i}, v{b+2*i}, v{b+2*i+1}")
    a("s_lshl_b32 s60, s70, 1")
    a("v_mul_lo_u32 v3, v11, s60")
    a("v_lshl_add_u32 v3, v10, 2, v3")
    for jj in range(2):
        for bb in range(2):
            a(f"s_mul_i32 s60, s70, {4*jj+bb}")
            a(f"s_add_u32 s60, s60, s69")
            a(f"buffer_store_dword v{b+2*jj+bb}, v3, s[48:51], s60 offen offset:1024{SC}")

def v_addr(a, col):
    a(f"v_mul_u32_u24 v4, 3641, {col}")
    a(f"v_lshrrev_b32 v4, 16, v4")
    a(f"v_mul_u32_u24 v5, 18, v4")
    a(f"v_sub_u32 v3, {col}, v5")
    a(f"v_mul_u32_u24 v4, {4*1152}, v4")
    a(f"v_lshl_add_u32 v3, v3, 4, v4")
    a(f"v_mul_u32_u24 v4, 288, v11")
    a(f"v_add_u32 v3, v3, v4")

def v_put(a, k, sub):
    b = ACC + 16*k
    for i in range(8):
        a(f"v_cvt_pk_bf16_f32 v{b+i}, v{b+2*i}, v{b+2*i+1}")
    a(f"v_add_u32 v6, s{sub}, v3")
    if k == 4:
        a("s_mov_b32 exec_lo, 0xffff")
        a("s_mov_b32 exec_hi, 0xffff")
    a(f"ds_write_b128 v6, {vr(b,4)}")
    a(f"ds_write_b128 v6, {vr(b+4,4)} offset:576")
    if k == 4:
        a("s_mov_b64 exec, -1")
for u in range(576):
    assert (u*911) >> 16 == u//72

RS = 1216
X0, F0 = 16, 88
XK, GK = 160, 196

def red8(a, r):
    a("s_nop 1")
    a(f"v_add_f32_dpp v{r}, v{r}, v{r} quad_perm:[1,0,3,2] row_mask:0xf bank_mask:0xf")
    a("s_nop 1")
    a(f"v_add_f32_dpp v{r}, v{r}, v{r} quad_perm:[2,3,0,1] row_mask:0xf bank_mask:0xf")
    a("s_nop 1")
    a(f"v_add_f32_dpp v{r}, v{r}, v{r} row_half_mirror row_mask:0xf bank_mask:0xf")

def rows_setup(a):
    a("v_lshrrev_b32 v2, 3, v0")
    a("v_and_b32 v3, 7, v0")
    a("s_lshl_b32 s53, s52, 3")
    a("v_add_u32 v4, s53, v2")

def rows_tail(a):
    a(f"v_mul_u32_u24 v5, {RS}, v4")
    a("v_lshl_add_u32 v5, v3, 4, v5")
    for i in range(9):
        a(f"ds_write_b128 v5, {vr(X0+4*i,4)} offset:{i*128}")
    a("s_lshr_b32 s55, s52, 1")
    a("s_and_b32 s56, s52, 1")
    a("v_lshrrev_b32 v6, 5, v0")
    a("v_bfe_u32 v7, v0, 2, 2")
    a("v_lshl_add_u32 v6, v6, 3, v7")
    a("s_lshl_b32 s60, s55, 4")
    a("v_add_u32 v6, s60, v6")
    a(f"v_mul_u32_u24 v6, {RS}, v6")
    a("v_bfe_u32 v7, v0, 4, 1")
    a("v_lshl_add_u32 v6, v7, 5, v6")
    a("v_and_b32 v7, 3, v0")
    a("v_lshl_add_u32 v6, v7, 3, v6")
    a("s_mul_i32 s60, s56, 576")
    a("v_add_u32 v6, s60, v6")
    a("s_mul_i32 s60, s52, 9216")
    a("s_add_u32 s57, s57, s60")
    a("v_lshlrev_b32 v7, 4, v0")
    a("s_waitcnt lgkmcnt(0)")
    a("s_barrier")
    for i in range(7):
        for sec in range(2):
            a(f"ds_read_b64_tr_b16 {vr(X0+4*i+2*sec,2)}, v6 offset:{sec*4*RS + i*64}")
    for i in range(9):
        a(f"s_waitcnt lgkmcnt({min(12, 2*(8-i))})")
        if i % 4 == 0 and i:
            a("s_add_u32 s57, s57, 4096")
        a(f"buffer_store_dwordx4 {vr(X0+4*i,4)}, v7, s[48:51], s57 offen offset:{(i%4)*1024}{SC}")
        if i + 7 < 9:
            for sec in range(2):
                a(f"ds_read_b64_tr_b16 {vr(X0+4*(i+7)+2*sec,2)}, v6 offset:{sec*4*RS + (i+7)*64}")

def ln_body(a, jreg, pub, pre=None):
    a.srd(40, P_X, S*D*2)
    rows_setup(a)
    a(f"s_and_b32 s58, {jreg}, 7")
    a(f"s_lshr_b32 s56, {jreg}, 3")
    a("s_lshl_b32 s58, s58, 3")
    a("s_add_u32 s58, s58, s56")
    a("s_lshl_b32 s56, s58, 5")
    a("v_add_u32 v6, s56, v4")
    a("v_mul_u32_u24 v7, 1152, v6")
    a("v_lshl_add_u32 v7, v3, 4, v7")
    for i in range(9):
        a(f"buffer_load_dwordx4 {vr(XK+4*i,4)}, v7, s[40:43], 0 offen offset:{i*128}")
    a.srd(44, P_GW, D*2)
    a("v_lshlrev_b32 v8, 4, v3")
    for i in range(9):
        a(f"buffer_load_dwordx4 {vr(GK+4*i,4)}, v8, s[44:47], 0 offen offset:{i*128}")
    a(f"s_mul_i32 s57, s58, {2*18*1024}")
    a(f"s_add_u32 s57, s57, {HT_OFF}")
    a("v_mov_b32 v8, 0")
    a("v_mov_b32 v9, 0")
    a.stamp_mid(0)
    def pk(i): return vr(F0+2*i, 2)
    for i in range(36):
        if i % 4 == 0: a(f"s_waitcnt vmcnt({17 - i//4})")
        a(f"v_lshlrev_b32 v{F0+2*i}, 16, v{XK+i}")
        a(f"v_and_b32 v{F0+2*i+1}, 0xffff0000, v{XK+i}")
        a(f"v_pk_add_f32 v[8:9], v[8:9], {pk(i)}")
    a.stamp_mid(1)
    a("v_add_f32 v8, v8, v9")
    red8(a, 8)
    a(f"v_mul_f32 v8, {f32bits(-1.0/D)}, v8")
    a("v_mov_b32 v10, 0")
    a("v_mov_b32 v9, v8")
    a("v_mov_b32 v11, 0")
    for i in range(36):
        a(f"v_pk_add_f32 {pk(i)}, {pk(i)}, v[8:9]")
    for i in range(36):
        a(f"v_pk_fma_f32 v[10:11], {pk(i)}, {pk(i)}, v[10:11]")
    a("v_add_f32 v10, v10, v11")
    red8(a, 10)
    a(f"v_mov_b32 v12, {f32bits(1e-5)}")
    a(f"v_fmac_f32 v12, {f32bits(1.0/D)}, v10")
    a("v_rsq_f32 v12, v12")
    a("s_nop 0")
    a("v_mov_b32 v13, v12")
    for i in range(36):
        a(f"v_pk_mul_f32 {pk(i)}, {pk(i)}, v[12:13]")
    for i in range(36):
        a(f"v_cvt_pk_bf16_f32 v{X0+i}, v{F0+2*i}, v{F0+2*i+1}")
    if pre: pre(a)
    rows_tail(a)
    pub(a)

def wo_body(a, jreg):
    a.srd(40, P_WO, D*D*2)
    rows_setup(a)
    a(f"s_lshl_b32 s57, {jreg}, 1")
    a("s_lshr_b32 s55, s52, 1")
    a("s_add_u32 s57, s57, s55")
    a("s_and_b32 s56, s52, 1")
    a("s_lshl_b32 s56, s56, 2")
    a("s_lshl_b32 s57, s57, 4")
    a("s_add_u32 s57, s57, s56")
    a("v_lshrrev_b32 v6, 2, v2")
    a("v_and_b32 v7, 3, v2")
    a("v_lshl_add_u32 v6, v6, 3, v7")
    a("v_add_u32 v6, s57, v6")
    a("v_mul_u32_u24 v7, 1152, v6")
    a("v_lshl_add_u32 v7, v3, 4, v7")
    for i in range(9):
        a(f"buffer_load_dwordx4 {vr(X0+4*i,4)}, v7, s[40:43], 0 offen offset:{i*128}")
    a(f"s_mul_i32 s57, {jreg}, {2*18*1024}")
    a(f"s_add_u32 s57, s57, {WOF_OFF}")
    a("s_waitcnt vmcnt(0)")
    rows_tail(a)

def gate_own(a):
    a("v_mov_b32 v8, 0")
    a("v_mov_b32 v9, 0")
    for i in range(36):
        a(f"v_lshlrev_b32 v12, 16, v{GK+i}")
        a(f"v_and_b32 v13, 0xffff0000, v{GK+i}")
        a(f"v_lshlrev_b32 v14, 16, v{XK+i}")
        a(f"v_and_b32 v15, 0xffff0000, v{XK+i}")
        a(f"v_pk_fma_f32 v[8:9], v[12:13], v[14:15], v[8:9]")
    a("v_add_f32 v8, v8, v9")
    red8(a, 8)
    a(f"v_mul_f32 v8, {f32bits(-math.log2(math.e))}, v8")
    a("v_exp_f32 v8, v8")
    a("s_lshl_b32 s56, s58, 5")
    a("v_add_f32 v8, 1.0, v8")
    a("v_rcp_f32 v8, v8")
    a("v_add_u32 v6, s56, v4")
    a("v_lshlrev_b32 v6, 2, v6")
    a(f"s_mov_b32 s57, {G_OFF}")
    a("s_mov_b32 exec_lo, 0x01010101")
    a("s_mov_b32 exec_hi, 0x01010101")
    a(f"buffer_store_dword v8, v6, s[48:51], s57 offen{SC}")
    a("s_mov_b64 exec, -1")

def xw_touch(a, greg):
    a.srd(40, P_WQKV, D*3*D*2)
    a.srd(44, P_X, S*D*2)
    a(f"s_lshr_b32 s53, {greg}, 3")
    a("s_lshl_b32 s53, s53, 2")
    a("s_add_u32 s53, s53, s52")
    a("s_lshl_b32 s54, s53, 6")
    a("v_add_u32 v5, s54, v0")
    a("v_mul_u32_u24 v6, 18725, v5")
    a("v_lshrrev_b32 v6, 18, v6")
    a("v_mul_u32_u24 v7, 13, v6")
    a("v_add_u32 v7, v7, v5")
    a(f"s_and_b32 s54, {greg}, 1")
    a("s_mul_i32 s54, s54, 13")
    a("v_add_lshl_u32 v7, v7, s54, 7")
    a(f"buffer_load_dword v60, v7, s[40:43], 0 offen{XNT}")
    L = a.newlabel("nox")
    a("s_cmp_ge_u32 s53, 72")
    a(f"s_cbranch_scc1 {L}")
    a(f"s_bfe_u32 s54, {greg}, 0x20001")
    a("s_mul_i32 s54, s54, 4608")
    a("v_add_lshl_u32 v7, v5, s54, 7")
    a(f"buffer_load_dword v61, v7, s[44:47], 0 offen{XNT}")
    a.label(L)
for n in range(8192):
    assert (n*18725) >> 18 == n//14

def xw_touch2(a, greg, depth=1):
    L = a.newlabel("nox")
    a(f"s_cmp_lt_u32 {greg}, 192")
    a(f"s_cbranch_scc1 {L}")
    a.srd(40, P_WQKV, D*3*D*2)
    a.srd(44, P_X, S*D*2)
    a(f"s_bfe_u32 s53, {greg}, 0x30003")
    a("s_lshl_b32 s53, s53, 2")
    a("s_add_u32 s53, s53, s52")
    a(f"s_and_b32 s54, {greg}, 1")
    a("s_mul_i32 s54, s54, 13")
    a(f"s_add_u32 s54, s54, {128*27}")
    a(f"s_bfe_u32 s55, {greg}, 0x20001")
    a("s_mul_i32 s55, s55, 4608")
    a("s_add_u32 s55, s55, 2")
    a("v_mul_u32_u24 v8, 9, v0")
    for r in range(5):
        Lx = a.newlabel("tx"); Le = a.newlabel("te")
        a(f"s_add_u32 s56, s53, {32*r}")
        a("s_mul_i32 s57, s56, 745")
        a("s_lshr_b32 s57, s57, 14")
        a("s_mul_i32 s58, s57, 22")
        a("s_sub_u32 s56, s56, s58")
        if r == 4:
            a("s_cmp_ge_u32 s57, 7")
            a(f"s_cbranch_scc1 {Le}")
        a("s_cmp_ge_u32 s56, 14")
        a(f"s_cbranch_scc1 {Lx}")
        a("s_lshl_b32 s56, s56, 6")
        a("v_add_u32 v5, s56, v0")
        a("v_mul_u32_u24 v6, 18725, v5")
        a("v_lshrrev_b32 v6, 18, v6")
        a("v_mul_u32_u24 v6, 13, v6")
        a(f"s_mul_i32 s57, s57, {64*27}")
        a("s_add_u32 s57, s57, s54")
        a("v_add3_u32 v5, v5, v6, s57")
        a("v_lshlrev_b32 v5, 7, v5")
        a(f"buffer_load_dword v{60+(r&1)}, v5, s[40:43], 0 offen")
        a(f"s_branch {Le}")
        a.label(Lx)
        a("s_sub_u32 s56, s56, 14")
        a(f"s_mul_i32 s56, s56, {64*9}")
        a("s_add_u32 s56, s56, s57")
        a("s_add_u32 s56, s56, s55")
        a("v_add_lshl_u32 v5, v8, s56, 7")
        a(f"buffer_load_dword v{60+(r&1)}, v5, s[44:47], 0 offen")
        a.label(Le)
        if r >= depth: a(f"s_waitcnt vmcnt({depth})")
    a.label(L)
for n in range(160):
    assert (n*745) >> 14 == n//22
```

```python
from common import *
import math

MLP1_GRID = 216
for t in range(216):
    assert (t*171) >> 10 == t//6

VF = [1, 2]; VT = [3, 4]
VDT, VDT2, VDF = 5, 6, 7
SET = [16, 48]
ACC = 80
BIAS = 128
S_T, S_F, S_CNT = 54, 55, 58
STAGE = 14336
NB = 5
NST = 64
STRIDE = F*2
YIELD = 1
EPIST = False
PST = False
HOLD_FIRST = 2

def mlp1_body(a, wgreg, dep, pub, sm=0, epi=None, hold=None):
    a.srd(40, P_W1, S*F*2)
    a.srd(44, P_B1, F*2)
    a(f"s_and_b32 s66, {wgreg}, 7")
    a("s_mul_i32 s66, s66, 27")
    a(f"s_lshr_b32 s67, {wgreg}, 3")
    a("s_add_u32 s67, s67, s66")
    a("s_mul_i32 s66, s67, 171")
    a("s_lshr_b32 s66, s66, 10")
    a("s_mul_i32 s68, s66, 6")
    a("s_sub_u32 s67, s67, s68")
    a(f"s_mul_i32 s{S_T}, s52, {8*STRIDE}")
    a("s_lshl_b32 s70, s66, 8")
    a(f"s_add_u32 s{S_T}, s{S_T}, s70")
    a("s_lshr_b32 s70, s52, 1")
    a(f"s_mul_i32 s{S_F}, s70, {18*1024}")
    a("s_and_b32 s70, s52, 1")
    a("s_mul_i32 s70, s70, 1536")
    a(f"s_add_u32 s{S_F}, s{S_F}, s70")
    a("s_mul_i32 s70, s67, 3072")
    a(f"s_add_u32 s{S_F}, s{S_F}, s70")
    a(f"s_add_u32 s{S_F}, s{S_F}, {HT_OFF}")
    a("s_lshl_b32 s60, s52, 11")
    a("s_mul_i32 s61, s52, 1536")
    a("s_add_u32 s61, s61, 8192")
    a(f"s_mov_b32 s62, {32*STRIDE}")
    a(f"s_mov_b32 s63, {2*18*1024}")
    a("v_lshrrev_b32 v8, 4, v0")
    a("v_and_b32 v9, 3, v0")
    a("v_lshlrev_b32 v9, 4, v9")
    a("v_lshl_add_u32 v8, v8, 6, v9")
    a("v_bfe_u32 v9, v0, 2, 2")
    a(f"v_mul_u32_u24 v10, {STRIDE}, v9")
    a(f"v_add_u32 v{VDT}, v10, v8")
    a(f"v_add_u32 v{VDT2}, {4*STRIDE}, v{VDT}")
    a(f"v_lshlrev_b32 v{VDF}, 4, v0")
    def m0t(buf, i): a(f"s_add_u32 m0, s60, {buf*STAGE + i*1024}")
    def m0f(buf): a(f"s_add_u32 m0, s61, {buf*STAGE}")
    def ldt(i):
        a(f"buffer_load_dwordx4 v{VDT2 if i else VDT}, s[40:43], s{S_T} offen lds")
        if i: a(f"s_add_u32 s{S_T}, s{S_T}, s62")
    def ldf(i):
        if i: a("s_mov_b32 exec_hi, 0")
        a(f"buffer_load_dwordx4 v{VDF}, s[48:51], s{S_F} offen offset:{i*1024} sc1 lds")
        if i:
            a("s_mov_b32 exec_hi, -1")
            a(f"s_add_u32 s{S_F}, s{S_F}, s63")
    a("s_lshl_b32 s69, s66, 2")
    a("s_add_u32 s69, s69, s52")
    a("s_lshl_b32 s71, s69, 6")
    a("v_lshrrev_b32 v10, 5, v0")
    a("v_lshlrev_b32 v11, 3, v10")
    for jj in range(4):
        a(f"buffer_load_dwordx2 {vr(BIAS+16+2*jj,2)}, v11, s[44:47], s71 offen offset:{jj*16}")
    if hold and HOLD_FIRST == 1:
        dep(a); hold(a)
    if hold and HOLD_FIRST == 2:
        dep(a, 1); hold(a)
    for st in range(NB):
        for i in range(2):
            m0t(st, i); a("s_nop 0"); ldt(i)
    a("v_lshlrev_b32 v8, 11, v10")
    a("v_lshl_add_u32 v8, v9, 6, v8")
    a("v_bfe_u32 v9, v0, 4, 1")
    a("v_lshl_add_u32 v8, v9, 5, v8")
    a("v_and_b32 v9, 3, v0")
    a("v_lshl_add_u32 v8, v9, 3, v8")
    a("s_lshl_b32 s70, s52, 8")
    a(f"v_add_u32 v{VT[0]}, s70, v8")
    a(f"v_add_u32 v{VT[1]}, {3*STAGE}, v{VT[0]}")
    a(f"v_add_u32 v{VF[0]}, 0x2000, v{VDF}")
    a(f"v_add_u32 v{VF[1]}, {3*STAGE}, v{VF[0]}")
    if not (hold and HOLD_FIRST): dep(a)
    if hold and HOLD_FIRST == 2: dep(a, 2)
    a("s_barrier")
    for st in range(NB):
        m0f(st); a("s_nop 0")
        ldf(0); ldf(1)
    def reads(c):
        buf = c % NB; hi = 1 if buf >= 3 else 0; o = (buf - 3*hi)*STAGE
        L = []
        for step in range(2):
            b = SET[c & 1] + 16*step
            for sec in range(2):
                L.append(f"ds_read_b64_tr_b16 {vr(b+2*sec,2)}, v{VT[hi]} offset:{o + step*4096 + sec*1024}")
            for i in range(3):
                L.append(f"ds_read_b128 {vr(b+4+4*i,4)}, v{VF[hi]} offset:{o + step*3072 + i*1024}")
        return L
    def mfma(c, k):
        step, i = divmod(k, 3)
        b = SET[c & 1] + 16*step
        if YIELD > 1:
            if k % YIELD == 0: a("s_setprio 0")
            if k % YIELD == 1: a("s_setprio 2")
        elif YIELD < 0:
            if k % -YIELD == 0: a("s_setprio 0")
            if k % -YIELD == -YIELD - 1: a("s_setprio 2")
        d = vr(ACC + 16*i, 16)
        cin = vr(BIAS, 16) if (c == 0 and step == 0) else d
        a(f"v_mfma_f32_32x32x16_bf16 {d}, {vr(b,4)}, {vr(b+4+4*i,4)}, {cin}")
    def body(c, vm):
        buf = c % NB
        ld = c + NB < NST
        r = reads(c+1) if c + 1 < NST else []
        if c + 1 < NST:
            a(f"s_waitcnt vmcnt({vm}) lgkmcnt(0)")
            a("s_barrier")
        else:
            a("s_waitcnt lgkmcnt(0)")
        mfma(c, 0)
        if ld: m0t(buf, 0)
        for x in r[0:3]: a(x)
        if ld: ldt(0)
        mfma(c, 1)
        if ld: m0t(buf, 1)
        for x in r[3:6]: a(x)
        mfma(c, 2)
        if ld: ldt(1)
        for x in r[6:8]: a(x)
        mfma(c, 3)
        if ld: m0f(buf)
        for x in r[8:10]: a(x)
        if ld: ldf(0)
        mfma(c, 4)
        if ld: ldf(1)
        mfma(c, 5)
    def vm_of(c):
        order = [("T", s_) for s_ in range(NB) for _ in range(2)] + [("F", s_) for s_ in range(NB) for _ in range(2)]
        for b in range(c):
            if b + NB < NST: order += [("X", b + NB)]*4
        last = max(n for n, o in enumerate(order) if o[1] == c + 1)
        return len(order) - 1 - last
    a(f"s_waitcnt vmcnt({2*(NB-1)})")
    a("s_barrier")
    for x in reads(0): a(x)
    for p in range(8):
        a(f"v_lshlrev_b32 v{BIAS+2*p}, 16, v{BIAS+16+p}")
        a(f"v_and_b32 v{BIAS+2*p+1}, 0xffff0000, v{BIAS+16+p}")
    a.stamp_mid(6)
    if hold and not HOLD_FIRST: hold(a)
    a("s_setprio 0")
    a.stamp_mid(sm)
    P0 = 4
    for c in range(P0): body(c, vm_of(c))
    nl = (NST - NB - P0)//10
    for c in range(P0, P0 + 10*nl): assert vm_of(c) == 12
    a(f"s_mov_b32 s{S_CNT}, {nl}")
    a.raw(".p2align 6")
    a.label("L_mlp1_loop")
    for c in range(P0, P0 + 10): body(c, 12)
    if PST and a.stamp is True:
        for cnt, slot in ((5, 3), (4, 4), (3, 5), (2, 6), (1, 7)):
            Ls = a.newlabel("st")
            a(f"s_cmp_lg_u32 s{S_CNT}, {cnt}")
            a(f"s_cbranch_scc1 {Ls}")
            a.stamp_mid(slot)
            a.label(Ls)
    a(f"s_sub_u32 s{S_CNT}, s{S_CNT}, 1")
    a(f"s_cmp_lg_u32 s{S_CNT}, 0")
    a("s_cbranch_scc1 L_mlp1_loop")
    for c in range(P0 + 10*nl, NST): body(c, vm_of(c) if c + 1 < NST else 0)
    a("s_setprio 2")
    a.stamp_mid(sm+1)
    if epi: epi(a)
    c0 = -2.0*math.sqrt(2.0/math.pi)*math.log2(math.e)
    a(f"v_mov_b32 v8, {f32bits(c0*0.044715)}")
    a(f"v_mov_b32 v9, {f32bits(c0)}")
    a(f"s_mul_i32 s71, s69, {2*18*1024}")
    a(f"s_mul_i32 s73, s67, 3072")
    a(f"s_add_u32 s71, s71, s73")
    a(f"s_add_u32 s71, s71, {U_OFF}")
    a(f"s_add_u32 s73, s71, {18*1024}")
    a("s_nop 3")
    T1 = 16
    for i in range(3):
        b = ACC + 16*i
        for e in range(16): a(f"v_mul_f32 v{T1+e}, v{b+e}, v{b+e}")
        for e in range(16): a(f"v_fma_f32 v{T1+e}, v{T1+e}, v8, v9")
        for e in range(16): a(f"v_mul_f32 v{T1+e}, v{T1+e}, v{b+e}")
        for e in range(16): a(f"v_exp_f32 v{T1+e}, v{T1+e}")
        for e in range(16): a(f"v_add_f32 v{T1+e}, 1.0, v{T1+e}")
        for e in range(16): a(f"v_rcp_f32 v{T1+e}, v{T1+e}")
        for e in range(16): a(f"v_mul_f32 v{b+e}, v{b+e}, v{T1+e}")
        for e in range(8):  a(f"v_cvt_pk_bf16_f32 v{b+e}, v{b+2*e}, v{b+2*e+1}")
        a(f"buffer_store_dwordx4 {vr(b,4)}, v{VDF}, s[48:51], s71 offen offset:{i*1024} sc1")
        a(f"buffer_store_dwordx4 {vr(b+4,4)}, v{VDF}, s[48:51], s73 offen offset:{i*1024} sc1")
    pub(a)
```

```python
import sys
from common import *
import sync, k_front, k_mlp1, k_mlp1y, k_mlp2, k_attn, k_final
from sync import mb, MB_U, MB_H, MB_QKV, MB_O, MB_Y, MB_G, MB_P

HEADER = open("cdna_kernels/" + NAME + ".s.ref").read().split("; Override launch geometry")[0]
N_WO = 18
W2_TOUCH = False
FRONT_ONLY = False
PARTNER = True
A_EXIT = False
PF1 = 0
INIT_LOW = 2
W1HEAD = True
PRE = 0
M1Y = True
COOP = False
COOP_H = False
COOP_U = False
BPRIO = 0
INIT_LATE = True
PFMODE = 'col'
PFH = False
SLP_H = 4
HEAD_PF = 0
CODE_PF = True
B_EXIT = False
DIAG = None
PF_AFTER_H = True
TLBW = 0
PFW1 = True
XW = 2
XWD = 1
LIST = True
NO_FINAL = False
PFD = 1
LN_WAIT = True
PF2 = 11
EARLY = 1
EARLY_FL = ''
PROMOTE = False
WAIT_QKV = True
HINT_AT = 3
SLP_HINT = 4
SLP_FIN = 2
W2_TAIL = 0
AUX_G0 = 16
AUX_NT = ''

def gen_main(a, name):
    a.kernel_begin(name)
    a("s_cmp_ge_u32 s2, 512")
    a("s_cbranch_scc1 L_end")
    a.load_kernargs()
    sync.wave_setup(a)
    a.srd(48, P_WS, WS_SIZE)
    a.srd(84, P_DBG, 256)
    a("s_cmp_ge_u32 s2, 256")
    a("s_cbranch_scc1 L_slotB")
    a("s_setprio 3")
    a("s_cmp_ge_u32 s2, 192")
    a("s_cbranch_scc1 L_ln")
    def pub_qkv(a):
        a("s_and_b32 s72, s56, 3")
        a("s_lshl_b32 s72, s72, 12")
        a("s_and_b32 s73, s55, 12")
        a("s_add_u32 s72, s72, s73")
        a(f"s_add_u32 s72, s72, {mb(MB_QKV)}")
        sync.publish(a, 72, 16, init=True)
    def hint(a):
        L = a.newlabel("hint")
        a("s_lshl_b32 s76, s52, 3")
        a("s_add_u32 s76, s76, s60")
        a(f"s_cmp_lg_u32 s76, {HINT_AT}")
        a(f"s_cbranch_scc1 {L}")
        a("s_lshl_b32 s76, s2, 8")
        a(f"s_add_u32 s76, s76, {mb(MB_P)}")
        a("v_mov_b32 v8, 0")
        a("v_mov_b32 v9, 1")
        a("s_mov_b64 exec, 1")
        a("buffer_store_dword v9, v8, s[48:51], s76 offen sc1")
        a("s_mov_b64 exec, -1")
        a.label(L)
    k_front.qkv_body(a, "s2", pub_qkv, hint if WAIT_QKV else None)
    a("s_branch L_attn")
    a.label("L_ln")
    a("s_sub_u32 s3, s2, 192")
    def pub_h(a):
        a("s_lshr_b32 s72, s58, 4")
        a("s_lshl_b32 s72, s72, 13")
        a(f"s_add_u32 s72, s72, {mb(MB_H)}")
        sync.publish(a, 72, 32, init=True)
    k_front.ln_body(a, "s3", pub_h)
    a.stamp_mid(6)
    k_front.gate_own(a)
    a(f"s_cmp_ge_u32 s3, {N_WO}")
    a("s_cbranch_scc1 L_nowo")
    k_front.wo_body(a, "s3")
    a.label("L_nowo")
    a(f"s_mov_b32 s72, {mb(MB_G)}")
    sync.publish(a, 72, 32, init='late')
    a.label("L_attn")
    a.stamp_mid(2)
    if FRONT_ONLY or A_EXIT: a("s_branch L_done")
    def dep_qkv(a):
        a("s_lshr_b32 s72, s61, 3")
        a("s_lshl_b32 s72, s72, 4")
        a("s_bfe_u32 s73, s2, 0x40003")
        a("s_add_u32 s72, s72, s73")
        a("s_lshl_b32 s72, s72, 8")
        a(f"s_add_u32 s79, s72, {mb(MB_QKV)}")
        a("s_lshr_b32 s73, s2, 6")
        a("s_lshl_b32 s73, s73, 2")
        a("s_add_u32 s72, s79, s73")
        sync.poll(a, 72, 12, vt=8, sleep=2, init='late')
    def dep_qkv2(a):
        L = a.newlabel("q2"); Ld = a.newlabel("q2d")
        a("s_mov_b32 s76, 0")
        a.label(L)
        a("s_buffer_load_dwordx4 s[72:75], s[48:51], s79 glc")
        a("s_add_u32 s76, s76, 1")
        a("s_waitcnt lgkmcnt(0)")
        a("s_min_u32 s72, s72, s73")
        a("s_min_u32 s74, s74, s75")
        a("s_min_u32 s72, s72, s74")
        a("s_cmp_ge_u32 s72, 12")
        a(f"s_cbranch_scc1 {Ld}")
        a("s_sleep 4")
        a(f"s_cmp_lt_u32 s76, {sync.SPIN_MAX}")
        a(f"s_cbranch_scc1 {L}")
        a.label(Ld)
    def dep_g(a):
        a("s_bfe_u32 s72, s2, 0x50003")
        a("s_lshl_b32 s72, s72, 8")
        a(f"s_add_u32 s72, s72, {mb(MB_G)}")
        sync.spin(a, 48, "s72", 64, 0)
    def pub_o(a):
        a("s_cmp_gt_u32 s61, 7")
        a("s_cselect_b32 s72, 1, 0")
        for hd in (14, 19, 24):
            a(f"s_cmp_gt_u32 s61, {hd}")
            a("s_addc_u32 s72, s72, 0")
        a("s_lshr_b32 s73, s2, 5")
        a("s_mul_i32 s73, s73, 5")
        a("s_add_u32 s72, s72, s73")
        a(f"s_mul_i32 s72, s72, {6*256}")
        a(f"s_add_u32 s72, s72, {mb(MB_O)}")
        a(f"s_lshr_b32 s73, {(1<<7)|(1<<14)|(1<<19)|(1<<24)}, s61")
        a("s_and_b32 s73, s73, 1")
        a("s_cselect_b32 s73, 0xfff, 63")
        sync.publish(a, 72, "s73")
    TV = 140
    def tsetup(a):
        a.srd(80, P_W2, S*F*2)
        a("s_lshr_b32 s72, s2, 3")
        a("s_lshl_b32 s72, s72, 2")
        a("s_add_u32 s72, s72, s52")
        a("s_mul_i32 s73, s72, 205")
        a("s_lshr_b32 s73, s73, 11")
        a("s_mul_i32 s76, s73, 10")
        a("s_sub_u32 s72, s72, s76")
        a("s_and_b32 s76, s2, 7")
        a("s_mul_i32 s76, s76, 10")
        a("s_add_u32 s72, s72, s76")
        a("s_lshr_b32 s76, s72, 4")
        a("s_and_b32 s72, s72, 15")
        a(f"s_mul_i32 s76, s76, {928*4096}")
        a("s_lshl_b32 s72, s72, 8")
        a("s_add_u32 s76, s76, s72")
        a("s_lshl_b32 s72, s73, 17")
        a("s_add_u32 s76, s76, s72")
        a("s_cmp_ge_u32 s73, 12")
        a("s_cselect_b32 s82, 0, s82")
        a(f"v_lshrrev_b32 v{TV}, 1, v0")
        a(f"v_lshlrev_b32 v{TV}, 12, v{TV}")
        a(f"v_and_b32 v{TV+1}, 1, v0")
        a(f"v_lshl_add_u32 v{TV}, v{TV+1}, 7, v{TV}")
        a(f"v_add_u32 v{TV}, s76, v{TV}")
        a("s_mov_b32 s78, s73")
    def touch(a):
        a("s_cmp_ge_u32 s78, 29")
        a("s_cselect_b32 s82, 0, s82")
        a(f"buffer_load_dword v{TV+1}, v{TV}, s[80:83], 0 offen")
        a(f"v_add_u32 v{TV}, {12*32*4096}, v{TV}")
        a("s_add_u32 s78, s78, 12")
    k_attn.attn_body(a, "s2", dep_qkv, pub_o, sm=3, tsetup=tsetup if W2_TOUCH else None, touch=touch if W2_TOUCH else None, dep_g=dep_g, dep2=dep_qkv2)
    a.stamp_mid(5)
    a("s_cmp_ge_u32 s2, 192")
    a("s_cbranch_scc1 L_done")
    if NO_FINAL: a("s_branch L_done")
    def dep_y(a, i):
        L = a.newlabel("y"); Ld = a.newlabel("yd")
        if i == 0:
            a("s_lshl_b32 s76, s54, 5")
            a("s_add_u32 s76, s76, s53")
            a("s_lshl_b32 s76, s76, 8")
            a(f"s_add_u32 s76, s76, {mb(MB_Y)}")
            a("s_mov_b32 s77, 0")
        else:
            a(f"s_cmp_ge_u32 s{72+i}, 5")
            a(f"s_cbranch_scc1 {Ld}")
        a.label(L)
        a("s_buffer_load_dwordx4 s[72:75], s[48:51], s76 glc")
        a("s_add_u32 s77, s77, 1")
        a("s_waitcnt lgkmcnt(0)")
        a(f"s_cmp_ge_u32 s{72+i}, 5")
        a(f"s_cbranch_scc1 {Ld}")
        if i == 0: a(f"s_sleep {SLP_FIN}")
        a(f"s_cmp_lt_u32 s77, {sync.SPIN_MAX}")
        a(f"s_cbranch_scc1 {L}")
        a.label(Ld)
        if i == 2: a.stamp_mid(7)
    k_final.final_body(a, "s2", dep_y)
    a("s_branch L_done")
    a.label("L_slotB")
    a("s_sub_u32 s3, s2, 256")
    if INIT_LOW == 1:
        a(f"s_cmp_gt_u32 s3, {sync.N_LATE}")
        a("s_cbranch_scc1 L_noinit")
        a("s_mov_b32 s78, s3")
    elif INIT_LOW == 2:
        a("s_cmp_eq_u32 s3, 255")
        a(f"s_cselect_b32 s78, {sync.N_LATE}, s3")
        a(f"s_cmp_eq_u32 s3, {sync.N_LATE}")
        a("s_cselect_b32 s78, 99, s78")
        a(f"s_cmp_gt_u32 s78, {sync.N_LATE}")
        a("s_cbranch_scc1 L_noinit")
    else:
        a(f"s_cmp_lt_u32 s3, {255 - sync.N_LATE}")
        a("s_cbranch_scc1 L_noinit")
        a(f"s_sub_u32 s78, s3, {255 - sync.N_LATE}")
    a("s_setprio 3")
    sync.init_mailboxes(a, "s78")
    a("s_setprio 0")
    a.stamp_mid(0)
    a.label("L_noinit")
    if CODE_PF:
        Lc = a.newlabel("cpf")
        a("s_lshr_b32 s72, s3, 4")
        a("s_cmp_lg_u32 s72, 2")
        a(f"s_cbranch_scc1 {Lc}")
        a("s_getpc_b64 s[80:81]")
        a.label("L_pc")
        a(f"s_sub_u32 s80, s80, L_pc - {name}")
        a("s_subb_u32 s81, s81, 0")
        a(f"s_mov_b32 s82, L_code_end - {name}")
        a("s_mov_b32 s83, 0x00020000")
        a("s_bfe_u32 s72, s3, 0x10003")
        a("s_lshl_b32 s72, s72, 2")
        a("s_add_u32 s72, s72, s52")
        a("s_lshl_b32 s72, s72, 13")
        a("v_lshlrev_b32 v5, 7, v0")
        a("v_add_u32 v5, s72, v5")
        a("buffer_load_dword v58, v5, s[80:83], 0 offen")
        a.label(Lc)
    if WAIT_QKV:
        Lz = a.newlabel("hz")
        a("s_cmp_lg_u32 s52, 0")
        a(f"s_cbranch_scc1 {Lz}")
        a("s_lshl_b32 s72, s3, 8")
        a(f"s_add_u32 s72, s72, {mb(MB_P)}")
        a("v_lshlrev_b32 v5, 4, v0")
        for i in range(4): a(f"v_mov_b32 v{8+i}, 0")
        a("s_mov_b64 exec, 0xff")
        a("buffer_store_dwordx4 v[8:11], v5, s[48:51], s72 offen sc1")
        a("s_mov_b64 exec, -1")
        a.label(Lz)
    if XW == 1: k_front.xw_touch(a, "s3")
    if XW == 2: k_front.xw_touch2(a, "s3", XWD)
    if W1HEAD:
        Lh = a.newlabel("w1h")
        a("s_cmp_lt_u32 s3, 192")
        a(f"s_cbranch_scc1 {Lh}")
        a("s_cmp_ge_u32 s53, 30")
        a(f"s_cbranch_scc1 {Lh}")
        a.srd(80, P_W1, S*F*2)
        a("s_mul_i32 s57, s53, 205")
        a("s_lshr_b32 s57, s57, 10")
        a("s_mul_i32 s58, s57, 5")
        a("s_sub_u32 s58, s53, s58")
        a("s_and_b32 s56, s3, 7")
        a("s_mul_i32 s56, s56, 9")
        a("s_lshr_b32 s56, s56, 1")
        a("s_add_u32 s56, s56, s58")
        a("s_lshl_b32 s56, s56, 8")
        a(f"s_mul_i32 s57, s57, {32*F*2}")
        a("s_add_u32 s56, s56, s57")
        a("v_lshrrev_b32 v5, 1, v0")
        a(f"v_mul_u32_u24 v5, {F*2}, v5")
        a("v_and_b32 v6, 1, v0")
        a("v_lshl_add_u32 v5, v6, 7, v5")
        a("buffer_load_dword v62, v5, s[80:83], s56 offen")
        a.label(Lh)
    if COOP:
        Le = a.newlabel("head")
        a(f"s_cmp_ge_u32 s3, {k_mlp1.MLP1_GRID}")
        a(f"s_cbranch_scc1 {Le}")
        a.srd(80, P_W1, S*F*2)
        a("s_and_b32 s66, s3, 7")
        a("s_mul_i32 s66, s66, 27")
        a("s_lshr_b32 s67, s3, 3")
        a("s_add_u32 s67, s67, s66")
        a("s_mul_i32 s70, s67, 171")
        a("s_lshr_b32 s70, s70, 10")
        a("s_mul_i32 s68, s70, 6")
        a("s_sub_u32 s69, s67, s68")
        a("s_lshl_b32 s66, s70, 8")
        a("s_lshl_b32 s68, s52, 4")
        a("s_add_u32 s67, s69, s68")
        a(f"s_mul_i32 s67, s67, {32*F*2}")
        a("s_add_u32 s66, s66, s67")
        a("v_lshrrev_b32 v5, 1, v0")
        a(f"v_mul_u32_u24 v5, {F*2}, v5")
        a("v_and_b32 v6, 1, v0")
        a("v_lshl_add_u32 v5, v6, 7, v5")
        a("buffer_load_dword v62, v5, s[80:83], s66 offen")
        a("s_cmp_ge_u32 s69, 3")
        a(f"s_mov_b32 s67, {3*32*F*2}")
        a(f"s_cselect_b32 s67, {(-3*32*F*2) & 0xffffffff}, s67")
        a("s_add_u32 s67, s67, s66")
        a("s_lshr_b32 s68, 0x80402010, s70")
        a("s_cmp_lt_u32 s70, 32")
        a("s_cselect_b32 s68, s68, 0")
        a("s_and_b32 s68, s68, 1")
        a(f"s_cbranch_scc0 {Le}")
        a("buffer_load_dword v63, v5, s[80:83], s67 offen")
        a.label(Le)
    if TLBW:
        a("s_lshr_b32 s53, s3, 3")
        a("s_lshl_b32 s53, s53, 2")
        a("s_add_u32 s53, s53, s52")
        a("s_lshl_b32 s53, s53, 6")
        a("v_add_u32 v5, s53, v0")
        a(f"v_lshlrev_b32 v5, {TLBW}, v5")
        a.srd(80, P_W1, S*F*2)
        a("buffer_load_dword v62, v5, s[80:83], 0 offen nt")
        a.srd(80, P_W2, S*F*2)
        a("buffer_load_dword v63, v5, s[80:83], 0 offen nt")
        a.srd(80, P_WS, CNT_OFF)
        a("buffer_load_dword v59, v5, s[80:83], 0 offen nt")
    a(f"s_setprio {BPRIO}")
    if INIT_LATE:
        a(f"s_cmp_lt_u32 s3, {k_mlp1.MLP1_GRID}")
        a("s_cbranch_scc1 L_mlp1")
    a("s_waitcnt vmcnt(0)")
    sync.poll(a, None, 0, vt=5, init=True)
    a.stamp_mid(5)
    a("s_cmp_lt_u32 s3, 192")
    a("s_cbranch_scc1 L_mlp1")
    if PF_AFTER_H:
        a("s_bfe_u32 s72, s3, 0x20001")
        a("s_lshl_b32 s72, s72, 5")
        a("s_and_b32 s73, s3, 31")
        a("s_add_u32 s72, s72, s73")
        a("s_lshl_b32 s72, s72, 8")
        a(f"s_add_u32 s72, s72, {mb(MB_H)}")
        sync.poll(a, 72, 16, vt=5, sleep=4)
    a.srd(40, P_W1, S*F*2)
    a("s_sub_u32 s67, 255, s3")
    a(f"s_mul_i32 s66, s52, {512*F*2}")
    a("s_lshl_b32 s68, s67, 13")
    a("s_add_u32 s66, s66, s68")
    a("v_lshlrev_b32 v5, 7, v0")
    a("v_add_u32 v5, s66, v5")
    for r in range(PF1):
        a(f"buffer_load_dword v{60+(r&1)}, v5, s[40:43], 0 offen")
        a(f"v_add_u32 v5, {64*8192}, v5")
        if r >= PFD: a(f"s_waitcnt vmcnt({PFD})")
    a(f"s_cmp_ge_u32 s3, {k_mlp1.MLP1_GRID}")
    a("s_cbranch_scc1 L_aux")
    a.label("L_mlp1")
    if B_EXIT: a("s_branch L_done")
    def dep_h(a):
        a("s_lshl_b32 s72, s52, 5")
        a("s_and_b32 s73, s3, 31")
        a("s_add_u32 s72, s72, s73")
        a("s_lshl_b32 s72, s72, 8")
        a(f"s_add_u32 s72, s72, {mb(MB_H)}")
        sync.spin(a, 48, "s72", 16, 5, sleep=SLP_H)
    def dep_h_touch(a, part=0):
        if INIT_LATE and part != 2:
            a("s_waitcnt vmcnt(0)")
            sync.poll(a, None, 0, vt=12, init=True)
        if part == 1: return
        dep_h(a)
        a.stamp_mid(5)
        if COOP_H:
            a("s_and_b32 s72, s3, 7")
            a("s_mul_i32 s72, s72, 9")
            a("s_lshr_b32 s72, s72, 1")
            a("s_sub_u32 s72, s66, s72")
            a("s_lshl_b32 s72, s72, 6")
            a("v_add_u32 v60, s72, v0")
            a("v_mul_u32_u24 v61, 2731, v60")
            a("v_lshrrev_b32 v61, 16, v61")
            a("v_mul_u32_u24 v61, 120, v61")
            a("v_add_lshl_u32 v60, v60, v61, 7")
            a(f"buffer_load_dword v61, v60, s[48:51], s{k_mlp1.S_F} offen sc1")
    def hold(a):
        L = a.newlabel("hold"); Ld = a.newlabel("holdd")
        a("s_cmp_ge_u32 s3, 192")
        a(f"s_cbranch_scc1 {Ld}")
        a("s_lshl_b32 s72, s3, 8")
        a(f"s_add_u32 s72, s72, {mb(MB_P)}")
        a("s_and_b32 s73, s3, 63")
        a("s_lshl_b32 s73, s73, 8")
        a(f"s_add_u32 s73, s73, {mb(MB_QKV)}")
        a("s_mov_b32 s74, 0")
        a.label(L)
        a("s_buffer_load_dword s75, s[48:51], s72 glc")
        a("s_add_u32 s74, s74, 1")
        a("s_waitcnt lgkmcnt(0)")
        a("s_cmp_lg_u32 s75, 0")
        a(f"s_cbranch_scc1 {Ld}")
        a("s_sleep 4")
        a("s_and_b32 s75, s74, 15")
        a(f"s_cbranch_scc1 {L}")
        a("s_buffer_load_dword s75, s[48:51], s73 glc")
        a("s_waitcnt lgkmcnt(0)")
        a("s_cmp_ge_u32 s75, 12")
        a(f"s_cbranch_scc1 {Ld}")
        a(f"s_cmp_lt_u32 s74, {sync.SPIN_MAX}")
        a(f"s_cbranch_scc1 {L}")
        a.label(Ld)
    def w2_tail(a):
        a.srd(80, P_W2, S*F*2)
        a("s_lshr_b32 s72, s3, 3")
        a("s_mul_i32 s73, s72, 86")
        a("s_lshr_b32 s73, s73, 8")
        a("s_mul_i32 s76, s73, 3")
        a("s_sub_u32 s72, s72, s76")
        a("s_and_b32 s76, s3, 7")
        a("s_mul_i32 s76, s76, 10")
        a("s_add_u32 s73, s73, s76")
        a("s_lshr_b32 s76, s73, 4")
        a("s_and_b32 s73, s73, 15")
        a(f"s_mul_i32 s76, s76, {928*4096}")
        a("s_lshl_b32 s73, s73, 8")
        a("s_add_u32 s76, s76, s73")
        a("s_lshl_b32 s72, s72, 2")
        a("s_add_u32 s72, s72, s52")
        a(f"s_add_u32 s72, s72, {29 - 12*W2_TAIL}")
        a("s_lshl_b32 s72, s72, 17")
        a("s_add_u32 s76, s76, s72")
        a("v_lshrrev_b32 v60, 1, v0")
        a("v_lshlrev_b32 v60, 12, v60")
        a("v_and_b32 v61, 1, v0")
        a("v_lshl_add_u32 v60, v61, 7, v60")
        a("v_add_u32 v60, s76, v60")
        for e in range(W2_TAIL):
            a(f"buffer_load_dword v{61+e}, v60, s[80:83], 0 offen")
            a(f"v_add_u32 v60, {12*32*4096}, v60")
    def pub_u(a):
        a("s_mul_i32 s73, s66, 565")
        a("s_lshr_b32 s73, s73, 12")
        a("s_lshr_b32 s72, s67, 1")
        a("s_mul_i32 s72, s72, 5")
        a("s_add_u32 s73, s73, s72")
        a("s_lshl_b32 s73, s73, 12")
        a(f"s_add_u32 s73, s73, {mb(MB_U)}")
        a("s_lshr_b32 s72, 0x204080, s66")
        a("s_cmp_lt_u32 s66, 32")
        a("s_cselect_b32 s72, s72, 0")
        a("s_and_b32 s72, s72, 1")
        a("s_cselect_b32 s72, -1, 0xffff")
        sync.publish(a, 73, "s72", vt=12, init='late')
    (k_mlp1y if M1Y else k_mlp1).mlp1_body(a, "s3", dep_h_touch, pub_u, sm=0, epi=w2_tail if W2_TAIL else None, hold=hold if WAIT_QKV else None)
    a.stamp_mid(2)
    a("s_branch L_mlp2")
    a.label("L_aux")
    if B_EXIT: a("s_branch L_done")
    if PFMODE == "col":
        a("s_and_b32 s66, s3, 7")
        a("s_mul_i32 s66, s66, 9")
        a("s_lshr_b32 s66, s66, 1")
        a("s_lshr_b32 s67, s67, 3")
        a("s_add_u32 s66, s66, s67")
        a("s_lshl_b32 s66, s66, 8")
        a(f"s_mul_i32 s69, s52, {(32 if M1Y else 512)*F*2}")
        a("s_add_u32 s66, s66, s69")
        a("v_lshrrev_b32 v5, 1, v0")
        a(f"v_mul_u32_u24 v5, {F*2}, v5")
        a("v_and_b32 v6, 1, v0")
        a("v_lshl_add_u32 v5, v6, 7, v5")
        if PFH:
            dep_h(a)
            a(f"s_mul_i32 s69, s52, {32*18*1024}")
            a("s_lshl_b32 s70, s67, 13")
            a("s_add_u32 s69, s69, s70")
            a(f"s_add_u32 s69, s69, {HT_OFF}")
            a("v_lshlrev_b32 v7, 7, v0")
        g0 = 6 if COOP else 0
        a(f"s_add_u32 s66, s66, {g0*32*F*2}")
        if PFH and COOP_H: a(f"s_add_u32 s69, s69, {12*18*1024}")
        for n in range(16 - g0):
            a(f"buffer_load_dword v{60+(n&1)}, v5, s[40:43], s66 offen")
            a(f"s_add_u32 s66, s66, {(128 if M1Y else 32)*F*2}")
            if PFH and n < (9 if COOP_H else 14):
                a(f"buffer_load_dword v{62+(n&1)}, v7, s[48:51], s69 offen sc1")
                a(f"s_add_u32 s69, s69, {5*8192}")
            a(f"s_waitcnt vmcnt({PFD})")
        a.stamp_mid(1)
        a.srd(40, P_W2, S*F*2)
        a("s_lshl_b32 s68, s67, 2")
        a("s_add_u32 s68, s68, s52")
        a("s_and_b32 s66, s3, 7")
        a("s_mul_i32 s66, s66, 10")
        a("s_lshr_b32 s69, s68, 1")
        a("s_add_u32 s66, s66, s69")
        a("s_lshr_b32 s67, s66, 4")
        a("s_and_b32 s66, s66, 15")
        a(f"s_mul_i32 s67, s67, {928*4096}")
        a("s_lshl_b32 s66, s66, 8")
        a("s_add_u32 s67, s67, s66")
        a("s_and_b32 s66, s52, 1")
        a("s_lshl_b32 s66, s66, 17")
        a("s_add_u32 s67, s67, s66")
        a("v_lshrrev_b32 v5, 1, v0")
        a("v_lshlrev_b32 v5, 12, v5")
        a("v_and_b32 v6, 1, v0")
        a("v_lshl_add_u32 v5, v6, 7, v5")
        a("v_add_u32 v5, s67, v5")
        for n in range(PF2):
            a(f"buffer_load_dword v{60+(n&1)}, v5, s[40:43], 0 offen")
            a(f"v_add_u32 v5, {64*4096}, v5")
            a(f"s_waitcnt vmcnt({PFD})")
    else:
        for n in range(-(-(576 - 64*PF1)//40) if PFW1 else 0):
            a(f"buffer_load_dword v{60+(n&1)}, v5, s[40:43], 0 offen")
            a(f"v_add_u32 v5, {40*8192}, v5")
            a(f"s_waitcnt vmcnt({PFD})")
        a.stamp_mid(1)
        a.srd(40, P_W2, S*F*2)
        a("s_lshl_b32 s68, s67, 2")
        a("s_add_u32 s68, s68, s52")
        a("s_lshr_b32 s66, s68, 5")
        a("s_and_b32 s68, s68, 31")
        a(f"s_mul_i32 s66, s66, {928*4096}")
        a("s_lshl_b32 s68, s68, 13")
        a("s_add_u32 s66, s66, s68")
        a("v_lshlrev_b32 v5, 7, v0")
        a("v_add_u32 v5, s66, v5")
        for n in range(PF2):
            a(f"buffer_load_dword v{60+(n&1)}, v5, s[40:43], 0 offen")
            a(f"v_add_u32 v5, {32*8192}, v5")
            a(f"s_waitcnt vmcnt({PFD})")
    a("s_waitcnt vmcnt(0)")
    a.stamp_mid(2)
    a(f"s_cmp_ge_u32 s3, {k_mlp2.MLP2_GRID}")
    a("s_cbranch_scc1 L_done")
    a.label("L_mlp2")
    if k_mlp1y.PST: a("s_branch L_done")
    def dep_u(a):
        Lg = a.newlabel("g")
        a("s_cmp_lg_u32 s52, 0")
        a(f"s_cbranch_scc1 {Lg}")
        sync.spin_init(a, 8, True)
        a("s_bfe_u32 s73, s2, 0x50003")
        a("s_lshl_b32 s73, s73, 8")
        a(f"s_add_u32 s73, s73, {mb(MB_G)}")
        sync.spin(a, 48, "s73", 64, 0)
        a.label(Lg)
        a("s_mul_i32 s73, s67, 5")
        a("s_add_u32 s73, s73, s69")
        a("s_lshl_b32 s73, s73, 4")
        a("s_add_u32 s73, s73, s66")
        a("s_lshl_b32 s73, s73, 8")
        a(f"s_add_u32 s73, s73, {mb(MB_U)}")
        a("s_cmp_eq_u32 s69, 4")
        a("s_cselect_b32 s76, 14, 16")
        sync.poll(a, 73, "s76", vt=8, sleep=2)
        if COOP_U:
            a("s_lshr_b32 s70, s3, 3")
            a("s_mul_i32 s70, s70, 86")
            a("s_lshr_b32 s70, s70, 8")
            a("s_mul_i32 s73, s52, 10")
            a("s_add_u32 s70, s70, s73")
            a("s_lshl_b32 s70, s70, 6")
            a("s_add_u32 s70, s70, 288")
            a("v_add_u32 v60, s70, v0")
            a("v_min_u32 v60, 2783, v60")
            a("v_mul_u32_u24 v61, 5462, v60")
            a("v_lshrrev_b32 v61, 18, v61")
            a("v_mul_u32_u24 v61, 96, v61")
            a("v_add_lshl_u32 v60, v60, v61, 7")
            a(f"s_mul_i32 s70, s69, {58*18*1024}")
            a("s_mul_i32 s73, s67, 6144")
            a("s_add_u32 s70, s70, s73")
            a(f"s_add_u32 s70, s70, {U_OFF}")
            a("s_mov_b32 s77, s70")
    def ybox(a):
        a("s_lshl_b32 s76, s67, 1")
        a("s_add_u32 s76, s76, s71")
        a("s_lshl_b32 s76, s76, 5")
        a("s_lshl_b32 s70, s66, 1")
        a("s_add_u32 s76, s76, s70")
        a("s_add_u32 s76, s76, s72")
        a("s_lshl_b32 s76, s76, 8")
        a(f"s_add_u32 s76, s76, {mb(MB_Y)}")
    def dep_o(a, block):
        if block == "look":
            a("v_readfirstlane_b32 s75, v57")
            a("s_lshl_b32 s76, s53, 1")
            a("s_cmp_ge_u32 s75, s76")
            a("s_cselect_b32 s79, 1, 0")
            return
        a("s_lshr_b32 s73, s66, 1")
        a("s_mul_i32 s73, s73, 5")
        a("s_add_u32 s73, s73, s69")
        a("s_mul_i32 s73, s73, 6")
        a("s_lshl_b32 s70, s67, 1")
        a("s_add_u32 s73, s73, s70")
        a("s_and_b32 s70, s66, 1")
        a("s_add_u32 s73, s73, s70")
        a("s_lshl_b32 s73, s73, 8")
        a(f"s_add_u32 s73, s73, {mb(MB_O)}")
        a("s_lshl_b32 s76, s53, 1")
        if block:
            sync.spin(a, 48, "s73", "s76", 8, sleep=2)
            if not k_mlp1.EPIST: a.stamp_mid(6)
        else:
            a("v_mov_b32 v56, 0")
            a("s_mov_b64 exec, 1")
            a("buffer_load_dword v57, v56, s[48:51], s73 offen sc1")
            a("s_mov_b64 exec, -1")
    k_mlp2.mlp2_body(a, "s3", 3, dep_u, dep_o, ybox, post=(lambda a: a("buffer_load_dword v61, v60, s[48:51], s77 offen sc1")) if COOP_U else None)
    a.label("L_done")
    if DIAG is not None:
        wg, slot, kind = DIAG
        Ld = a.newlabel("diag"); Lw = a.newlabel("diagw")
        a(f"s_cmp_lg_u32 s2, {wg}")
        a(f"s_cbranch_scc1 {Ld}")
        a("s_waitcnt vmcnt(0)")
        if slot == "end":
            a.stamp_mid(0); slot = 0
        if slot is None:
            a("s_mov_b32 s70, 0")
        elif kind == "t":
            a(f"s_sub_u32 s70, s{4+slot}, s88")
            a("s_mul_i32 s70, s70, 10")
        else:
            a(f"s_lshr_b32 s70, s{93+slot}, 1")
        a("s_add_u32 s70, s70, 20000")
        a.label(Lw)
        a("s_sleep 1")
        a("s_memrealtime s[90:91]")
        a("s_waitcnt lgkmcnt(0)")
        a("s_sub_u32 s71, s90, s88")
        a("s_cmp_lt_u32 s71, s70")
        a(f"s_cbranch_scc1 {Lw}")
        a.label(Ld)
    a.end()
    a.label("L_end")
    a("s_endpgm")
    a.label("L_code_end")

def build(stamp=False):
    a = Asm()
    a.stamp = stamp
    fin = NAME + "_kernel"
    out = HEADER
    out += (f"; @launch kernel={fin} grid=(512,1,1) block=(256,1,1) lds=81920\n" if LIST else "; @launch grid=(512,1,1) block=(256,1,1) lds=81920\n")
    out += '.amdgcn_target "amdgcn-amd-amdhsa--gfx950"\n.text\n'
    gen_main(a, fin)
    if PRE:
        out = out.replace("; @launch kernel=", "; @launch kernel=pre_kernel grid=(256,1,1) block=(256,1,1) lds=0\n; @launch kernel=", 1)
        st = a.stamp; a.stamp = False
        a.kernel_begin("pre_kernel")
        if PRE > 1:
            a("s_cmp_ge_u32 s2, 256")
            a("s_cbranch_scc1 L_pre_end")
            a.load_kernargs()
            sync.wave_setup(a)
            k_front.xw_touch(a, "s2")
            a("s_getpc_b64 s[80:81]")
            a.label("L_pc2")
            a(f"s_sub_u32 s80, s80, L_pc2 - {fin}")
            a("s_subb_u32 s81, s81, 0")
            a(f"s_mov_b32 s82, L_code_end - {fin}")
            a("s_mov_b32 s83, 0x00020000")
            a("s_lshr_b32 s72, s2, 3")
            a("s_lshl_b32 s72, s72, 2")
            a("s_add_u32 s72, s72, s52")
            a("s_lshl_b32 s72, s72, 13")
            a("v_lshlrev_b32 v5, 7, v0")
            a("v_add_u32 v5, s72, v5")
            a("buffer_load_dword v58, v5, s[80:83], 0 offen")
            a("s_waitcnt vmcnt(0)")
            a.label("L_pre_end")
        a("s_endpgm")
        a.stamp = st
    out += a.text()
    out += '.section .rodata,"a"\n'
    if PRE: out += ".p2align 6\n" + descriptor("pre_kernel", 64, None)
    out += ".p2align 6\n" + descriptor(fin, 256, None)
    return out

if __name__ == "__main__":
    open("main.s", "w").write(build())
    open("stamp.s", "w").write(build(True))
    open("main_l.s", "w").write(build("lite"))
    LIST = False
    open("final.s", "w").write(build())
    LIST = True
    VARS = eval(open("vars.txt").read())
    import copy
    for nm, kv in VARS.items():
        saved = {}
        for k, v in kv.items():
            mod, name = (globals()[k.split(".")[0]].__dict__, k.split(".")[1]) if "." in k else (globals(), k)
            saved[k] = (mod, name, mod[name]); mod[name] = v
        open(f"gen/{nm}.s", "w").write(build(False))
        open(f"gen/{nm}_s.s", "w").write(build(True))
        open(f"gen/{nm}_l.s", "w").write(build("lite"))
        for mod, name, v in saved.values(): mod[name] = v
    print("wrote")
```

```python
from common import *

ATTN_GRID = 256
SKIP = False
CH = 16*KV_RS
ATTN_LDS = 2*CH + 64

VK0, VK1, VV, VDM = 1, 2, 3, 4
VST, VWR, VWC = 144, 145, 146
CONST = 2*CH + 64
Q0 = [8, 12]; Q1 = [16, 18]
K0 = [20, 24]; K1 = [28, 30]
V = [32, 40]
P = [48, 56]
Sx = [64, 80]
O = [96, 112]
TMP = 128
NV_ATTN = 144
S_KV, S_C, S_ATT, S_VM = 54, 55, 56, 58

def dma_chunk(a, sbuf, soff):
    for i in range(9):
        a(f"s_add_u32 m0, s{sbuf}, {i*4096}")
        a(f"s_add_u32 s60, s{soff}, {i*4096}")
        a(f"buffer_load_dwordx4 v{VDM}, s[48:51], s60 offen sc1 lds")

def qk(a, which, aq, kb):
    s = vr(Sx[aq], 16)
    if which == 0:
        a(f"v_mfma_f32_32x32x16_bf16 {s}, {vr(K0[kb],4)}, {vr(Q0[aq],4)}, 0")
    else:
        a(f"v_mfma_f32_32x32x8_bf16 {s}, {vr(K1[kb],2)}, {vr(Q1[aq],2)}, {s}")

def pv(a, which, aq, vb):
    o = vr(O[aq], 16)
    a(f"v_mfma_f32_32x32x16_bf16 {o}, {vr(V[vb]+4*which,4)}, {vr(P[aq]+4*which,4)}, {o}")

def read_k(a, kb, rec):
    a(f"ds_read_b128 {vr(K0[kb],4)}, v{VK0} offset:{rec*KV_RS}")
    a(f"ds_read_b32 v{K1[kb]}, v{VK1} offset:{rec*KV_RS}")

def read_v(a, vb, rec):
    for x in V_FILL(vb, rec): a(x)

def expq(a, aq, q, fill=()):
    fill = list(fill)
    for e in range(4):
        r = Sx[aq] + 4*q + e
        a(f"v_exp_f32 v{r}, v{r}")
        if fill: a(fill.pop(0))
    assert not fill
    for c in range(2):
        r = Sx[aq] + 4*q + 2*c
        a(f"v_cvt_pk_bf16_f32 v{P[aq]+2*q+c}, v{r}, v{r+1}")

def block(a, kt, aq, rec=None, do_qk=True, dma=None, extra=None):
    an = 1 - aq
    kq = (kt + aq) & 1
    vb = (kt - 1 + aq) & 1
    nb = (kt + 1) & 1
    f0 = []
    if rec is not None:
        if aq == 0:
            f0 = [f"ds_read_b128 {vr(K0[nb],4)}, v{VK0} offset:{rec*KV_RS}", f"ds_read_b32 v{K1[nb]}, v{VK1} offset:{rec*KV_RS}"]
        else:
            f0 = V_FILL(nb, rec)
    if NOLDS: f0 = []
    if aq == 1 and MODE != 1:
        a("s_waitcnt lgkmcnt(0)")
    ms = [lambda: qk(a, 0, an, kq) if do_qk else None, lambda: qk(a, 1, an, kq) if do_qk else None,
          lambda: pv(a, 0, an, vb), lambda: pv(a, 1, an, vb)]
    if MODE == 3:
        ops = []
        for q in range(4):
            for e in range(4): ops.append((8, f"v_exp_f32 v{Sx[aq]+4*q+e}, v{Sx[aq]+4*q+e}"))
            for c in range(2):
                r = Sx[aq] + 4*q + 2*c
                ops.append((4, f"v_cvt_pk_bf16_f32 v{P[aq]+2*q+c}, v{r}, v{r+1}"))
        ex = [[], [], [], []]
        for n, x in enumerate(f0): ex[n].append(x)
        pre = 4 if aq == 0 else 0
        total = 160 + 4*len(f0) + pre
        done = 0; i = 0
        for q in range(4):
            ms[q]()
            for x in ex[q]: a(x); done += 4
            lim = total*(q+1)/4 if q < 3 else 1e9
            while i < len(ops) and done + ops[i][0]/2 <= lim:
                a(ops[i][1]); done += ops[i][0]; i += 1
        return
    for q in range(4):
        ms[q]()
        fl = []
        if dma is not None and q == 2:
            a(f"s_add_u32 m0, s67, {dma*4096}")
            a(f"s_add_u32 s60, s66, {dma*4096}")
        if dma is not None and q == 3:
            a(f"buffer_load_dwordx4 v{VDM}, s[80:83], s60 offen sc1 lds")
        if extra and q == 2:
            for x in extra: a(x)
        if MODE == 0:
            if q == 0:
                for x in f0: a(x)
        elif MODE == 1:
            if q == 0: fl = f0
            if q == 3 and aq == 0: fl = ["s_waitcnt lgkmcnt(0)"]
        elif MODE == 2:
            if q < len(f0): a(f0[q])
        expq(a, aq, q, fl)

MODE = 0
AST = False
K2 = 2
SPREAD = True
NOLDS = False
SPREAD_V = True
def V_FILL(vb, rec):
    return [f"ds_read_b128 {vr(V[vb],4)}, v{VV}",
            f"ds_read_b128 {vr(V[vb]+4,4)}, v{VV} offset:576",
            f"v_add_u32 v{VV}, v{VV}, v{VST}"]

def set_m(a, aq, m):
    t = TMP
    a(f"v_mov_b32 v{t}, v{m}")
    a("s_nop 1")
    a(f"v_permlane32_swap_b32 v{m}, v{t}")
    a("s_nop 1")
    a(f"v_max_f32 v{m}, v{m}, v{t}")
    a(f"v_sub_f32 v{m}, 0, v{m}")
    a(f"v_and_b32 v{t}, 0xffff0000, v{m}")
    a(f"v_sub_f32 v{m}, v{m}, v{t}")
    a(f"v_and_b32 v{t+1}, 0xffff0000, v{m}")
    a(f"v_sub_f32 v{m}, v{m}, v{t+1}")
    a(f"v_lshrrev_b32 v{t}, 16, v{t}")
    a(f"v_or_b32 v{t}, v{t}, v{t+1}")
    a(f"v_lshrrev_b32 v{m}, 16, v{m}")
    a(f"v_cmp_gt_u32 vcc, 32, v0")
    a("s_nop 1")
    a(f"v_cndmask_b32 v{Q1[aq]+1}, v{m}, v{t}, vcc")

def tile_max(a, aq, m, first):
    s = Sx[aq]
    if first:
        a(f"v_max3_f32 v{m}, v{s}, v{s+1}, v{s+2}")
        a(f"v_max_f32 v{m}, v{m}, v{s+3}")
        st = 4
    else:
        st = 0
    for e in range(st, 16, 2):
        a(f"v_max3_f32 v{m}, v{m}, v{s+e}, v{s+e+1}")

def attn_body(a, wgreg, dep, pub, sm=0, tsetup=None, touch=None, dep_g=None, dep2=None, last_extra=None):
    a(f"s_and_b32 s61, {wgreg}, 7")
    a("s_lshl_b32 s61, s61, 2")
    a(f"s_bfe_u32 s62, {wgreg}, 0x20003")
    a("s_add_u32 s61, s61, s62")
    a(f"s_lshr_b32 s62, {wgreg}, 5")
    a("s_lshl_b32 s62, s62, 3")
    a("s_lshl_b32 s63, s52, 1")
    a("s_add_u32 s62, s62, s63")
    a(f"s_mul_i32 s{S_KV}, s61, {64*KV_RS}")
    a(f"s_add_u32 s{S_KV}, s{S_KV}, {KV_OFF}")
    a("s_lshl_b32 s64, s52, 10")
    a(f"s_add_u32 s65, s64, {CH}")
    a(f"v_lshlrev_b32 v5, 4, v0")
    a(f"v_add_u32 v{VDM}, s64, v5")
    a("s_lshl_b32 s63, s61, 6")
    a("s_add_u32 s63, s63, s62")
    a(f"s_mul_i32 s63, s63, {QR_RS}")
    a(f"s_add_u32 s63, s63, {QR_OFF}")
    a("v_and_b32 v6, 31, v0")
    a("v_lshlrev_b32 v7, 2, v6")
    if tsetup: tsetup(a)
    dep(a)
    for aq in range(2):
        a(f"buffer_load_dwordx4 {vr(Q0[aq],4)}, v5, s[48:51], s63 offen offset:{aq*QR_RS} sc1")
        a(f"buffer_load_dword v{Q1[aq]}, v7, s[48:51], s63 offen offset:{aq*QR_RS + 1024} sc1")
    a(f"s_mov_b32 s{S_ATT}, 0")
    for b in range(2):
        a(f"v_mov_b32 v{K1[b]+1}, 0x3f803f80")
        a(f"v_mov_b32 v{Q1[b]+1}, 0")
    for e in range(8):
        a(f"v_mov_b32 v{V[1]+e}, 0")
    a(f"v_cmp_gt_u32 vcc, 4, v0")
    a(f"v_mov_b32 v{TMP}, 0x3f803f80")
    a(f"v_lshlrev_b32 v{TMP+1}, 2, v0")
    a(f"v_cndmask_b32 v{TMP}, 0, v{TMP}, vcc")
    a(f"v_add_u32 v{TMP+1}, {CONST}, v{TMP+1}")
    a("s_mov_b64 exec, 0xff")
    a(f"ds_write_b32 v{TMP+1}, v{TMP}")
    a(f"ds_write_b32 v{TMP+1}, v{TMP} offset:576")
    a("s_mov_b64 exec, -1")
    a(f"v_cmp_gt_u32 s[{S_VM}:{S_VM+1}], 18, v6")
    a(f"v_mov_b32 v{VST}, {KV_RS}")
    a(f"v_mov_b32 v{VWC}, {(-2*CH) & 0xffffffff}")
    a(f"v_cndmask_b32 v{VST}, 0, v{VST}, s[{S_VM}:{S_VM+1}]")
    a(f"v_cndmask_b32 v{VWC}, 0, v{VWC}, s[{S_VM}:{S_VM+1}]")
    a.label("L_attn_start")
    a(f"s_lshr_b32 s57, {wgreg}, 6")
    def next_chunk(sbuf):
        a(f"s_mul_i32 s66, s57, {CH}")
        a(f"s_add_u32 s66, s66, s{S_KV}")
        a("s_add_u32 s57, s57, 1")
        a("s_and_b32 s57, s57, 3")
        if sbuf is not None: dma_chunk(a, sbuf, 66)
    next_chunk(64)
    if SPREAD:
        a.srd(80, P_WS, WS_SIZE)
        next_chunk(None)
        a(f"s_mov_b32 s67, s65")
        a(f"s_mov_b32 s68, s64")
    else:
        a(f"s_mov_b32 s67, s64")
        a(f"s_mov_b32 s68, s65")
    a(f"v_mov_b32 v{VK0}, v5")
    a(f"v_add_u32 v{VK1}, 1024, v7")
    a(f"v_lshrrev_b32 v{VV}, 5, v0")
    a(f"v_mul_u32_u24 v{VV}, 288, v{VV}")
    a(f"v_lshl_add_u32 v{VV}, v6, 4, v{VV}")
    a(f"v_add_u32 v{VV}, 1152, v{VV}")
    a(f"v_and_b32 v{TMP}, 27, v6")
    a(f"v_cmp_eq_u32 vcc, 18, v{TMP}")
    a(f"v_mov_b32 v{TMP}, {CONST + 16}")
    a(f"v_mov_b32 v{TMP+1}, {CONST}")
    a(f"v_cndmask_b32 v{TMP}, v{TMP}, v{TMP+1}, vcc")
    a(f"v_cndmask_b32 v{VV}, v{TMP}, v{VV}, s[{S_VM}:{S_VM+1}]")
    a(f"v_mov_b32 v{VWR}, 0")
    for aq in range(2):
        for e in range(16):
            a(f"v_mov_b32 v{O[aq]+e}, 0")
    for e in range(8):
        a(f"v_mov_b32 v{P[1]+e}, 0")
    a("s_waitcnt vmcnt(7) lgkmcnt(0)")
    a("s_barrier")
    if touch: touch(a)
    read_k(a, 0, 0)
    read_v(a, 0, 0)
    a(f"v_cmp_gt_u32 vcc, 32, v0")
    a("s_nop 1")
    for aq in range(2):
        a(f"v_cndmask_b32 v{Q1[aq]}, 0, v{Q1[aq]}, vcc")
    a("s_waitcnt lgkmcnt(0)")
    a(f"s_cmp_lg_u32 s{S_ATT}, 0")
    a("s_cbranch_scc1 L_attn_havemax")
    for aq in range(2):
        qk(a, 0, aq, 0); qk(a, 1, aq, 0)
    a("s_nop 15")
    for aq in range(2):
        tile_max(a, aq, TMP+2+aq, True)
    for aq in range(2):
        set_m(a, aq, TMP+2+aq)
    a("s_nop 1")
    a.label("L_attn_havemax")
    qk(a, 0, 0, 0); qk(a, 1, 0, 0)
    a(f"s_mov_b32 s{S_C}, 0")
    a.stamp_mid(sm)
    a("s_setprio 1")
    a("s_nop 15")
    a("s_branch L_attn_out" if SKIP else "s_branch L_attn_entry")
    a.raw(".p2align 6")
    a.label("L_attn_loop")
    a("s_waitcnt vmcnt(0) lgkmcnt(0)")
    a("s_barrier")
    a(f"v_xor_b32 v{VK0}, {CH}, v{VK0}")
    a(f"v_xor_b32 v{VK1}, {CH}, v{VK1}")
    a(f"v_add_u32 v{VV}, v{VV}, v{VWR}")
    a(f"v_xor_b32 v{VWR}, v{VWR}, v{VWC}")
    a(f"s_cmp_eq_u32 s{S_C}, 3")
    if SPREAD:
        a("s_cselect_b32 s82, 0, s82")
        next_chunk(None)
    else:
        a("s_cbranch_scc1 L_attn_nodma")
        next_chunk(67)
    a("s_mov_b32 s69, s67")
    a("s_mov_b32 s67, s68")
    a("s_mov_b32 s68, s69")
    if touch: touch(a)
    a.label("L_attn_nodma")
    block(a, -1, 0, 0); block(a, -1, 1, 0)
    a.label("L_attn_entry")
    for kt in range(15):
        if kt == 2:
            a(f"s_cmp_lg_u32 s{S_C}, 0")
            a("s_cbranch_scc1 L_attn_k2")
            a("s_waitcnt vmcnt(0)")
            a("s_barrier")
            a.label("L_attn_k2")
        if kt == K2:
            a(f"s_cmp_lg_u32 s{S_C}, 0")
            a("s_cbranch_scc1 L_attn_k3")
            dep2(a)
            dep_g(a)
            a("s_lshl_b32 s69, s62, 7")
            a(f"s_add_u32 s69, s69, {G_OFF}")
            a(f"buffer_load_dword v{TMP+8}, v7, s[48:51], s69 offen sc1")
            a(f"buffer_load_dword v{TMP+9}, v7, s[48:51], s69 offen offset:128 sc1")
            if not SPREAD: next_chunk(65)
            a.label("L_attn_k3")
        d = kt - K2 if (SPREAD and 0 <= kt - K2 < 9) else None
        block(a, kt, 0, kt+1, dma=d); block(a, kt, 1, kt+1)
    if AST and a.stamp is True:
        for cnt, slot in ((0, 0), (1, 1), (2, 2), (3, 6)):
            Ls = a.newlabel("st")
            a(f"s_cmp_lg_u32 s{S_C}, {cnt}")
            a(f"s_cbranch_scc1 {Ls}")
            a.stamp_mid(slot)
            a.label(Ls)
    a(f"s_add_u32 s{S_C}, s{S_C}, 1")
    a(f"s_cmp_lt_u32 s{S_C}, {3 if last_extra else 4}")
    a("s_cbranch_scc1 L_attn_loop")
    if last_extra:
        a("s_waitcnt vmcnt(0) lgkmcnt(0)")
        a("s_barrier")
        a(f"v_xor_b32 v{VK0}, {CH}, v{VK0}")
        a(f"v_xor_b32 v{VK1}, {CH}, v{VK1}")
        a(f"v_add_u32 v{VV}, v{VV}, v{VWR}")
        ex = last_extra(a)
        for kt in range(-1, 15):
            for aq in range(2):
                block(a, kt, aq, kt+1, extra=ex.pop(0) if ex else None)
    block(a, 15, 0); block(a, 15, 1, do_qk=False)
    a("s_nop 1")
    pv(a, 0, 1, 1); pv(a, 1, 1, 1)
    a("s_nop 15")
    a.stamp_mid(sm+1)
    a("s_setprio 3")
    a(f"v_max_f32 v{TMP}, v{O[0]+10}, v{O[1]+10}")
    a(f"v_mov_b32 v{TMP+2}, 0")
    for e in range(11):
        a(f"v_fma_f32 v{TMP}, v{O[0]+e}, 0, v{TMP}")
        a(f"v_fma_f32 v{TMP+2}, v{O[1]+e}, 0, v{TMP+2}")
    a(f"v_add_f32 v{TMP}, v{TMP}, v{TMP+2}")
    a(f"v_mov_b32 v{TMP+1}, 0x5f800000")
    a(f"v_cmp_nlt_f32 vcc, v{TMP}, v{TMP+1}")
    for aq in range(2):
        a(f"v_rcp_f32 v{O[aq]+10}, v{O[aq]+10}")
    a("s_cmp_lg_u64 vcc, 0")
    a("s_cselect_b32 s69, 1, 0")
    a(f"v_mov_b32 v{TMP}, s69")
    a(f"s_lshl_b32 s69, s52, 2")
    a(f"s_add_u32 s69, s69, {2*CH}")
    a(f"v_mov_b32 v{TMP+1}, s69")
    a(f"ds_write_b32 v{TMP+1}, v{TMP}")
    a(f"v_lshrrev_b32 v{TMP}, 5, v0")
    a(f"v_lshlrev_b32 v{TMP}, 9, v{TMP}")
    a(f"v_lshl_add_u32 v{TMP}, v6, 1, v{TMP}")
    a(f"v_add_u32 v{TMP}, s64, v{TMP}")
    a("s_waitcnt vmcnt(0)")
    for aq in range(2):
        o = O[aq]
        a(f"v_mul_f32 v{o+10}, v{o+10}, v{TMP+8+aq}")
        for e in range(10):
            a(f"v_mul_f32 v{o+e}, v{o+e}, v{o+10}")
        for e in range(5):
            a(f"v_cvt_pk_bf16_f32 v{o+e}, v{o+2*e}, v{o+2*e+1}")
        for p in range(5):
            off = (p >> 1)*4096 + (p & 1)*256 + aq*64
            if p == 4: a("s_mov_b32 exec_hi, 0")
            a(f"ds_write_b16 v{TMP}, v{o+p} offset:{off}")
            a(f"ds_write_b16_d16_hi v{TMP}, v{o+p} offset:{off+128}")
            if p == 4: a("s_mov_b64 exec, -1")
    a(f"v_lshrrev_b32 v{TMP+1}, 3, v0")
    a(f"v_lshlrev_b32 v{TMP+1}, 12, v{TMP+1}")
    a(f"v_and_b32 v{TMP+2}, 7, v0")
    a(f"v_lshl_add_u32 v{TMP+1}, v{TMP+2}, 4, v{TMP+1}")
    a(f"s_mul_i32 s69, s61, {18*4096}")
    a("s_lshl_b32 s70, s62, 6")
    a("s_add_u32 s69, s69, s70")
    a(f"s_add_u32 s69, s69, {O_OFF}")
    a("s_add_u32 s70, s69, 32768")
    a("s_add_u32 s71, s69, 65536")
    a("s_waitcnt lgkmcnt(0)")
    a(f"ds_read_b128 {vr(O[0],4)}, v{VDM}")
    a(f"ds_read_b128 {vr(O[0]+4,4)}, v{VDM} offset:4096")
    a(f"ds_read_b128 {vr(O[0]+8,4)}, v{VDM} offset:8192")
    a(f"v_mov_b32 v{TMP+2}, {2*CH}")
    a("s_waitcnt lgkmcnt(2)")
    a(f"buffer_store_dwordx4 {vr(O[0],4)}, v{TMP+1}, s[48:51], s69 offen sc1")
    a("s_waitcnt lgkmcnt(1)")
    a(f"buffer_store_dwordx4 {vr(O[0]+4,4)}, v{TMP+1}, s[48:51], s70 offen sc1")
    a("s_waitcnt lgkmcnt(0)")
    a("s_mov_b64 exec, 0xffff")
    a(f"buffer_store_dwordx4 {vr(O[0]+8,4)}, v{TMP+1}, s[48:51], s71 offen sc1")
    a("s_mov_b64 exec, -1")
    a("s_barrier")
    a(f"ds_read_b128 {vr(TMP+4,4)}, v{TMP+2}")
    a(f"s_cmp_lg_u32 s{S_ATT}, 0")
    a("s_cbranch_scc1 L_attn_out")
    a("s_waitcnt lgkmcnt(0)")
    a(f"v_or_b32 v{TMP}, v{TMP+4}, v{TMP+5}")
    a(f"v_or3_b32 v{TMP}, v{TMP}, v{TMP+6}, v{TMP+7}")
    a("s_nop 0")
    a(f"v_readfirstlane_b32 s69, v{TMP}")
    a("s_nop 3")
    a("s_cmp_eq_u32 s69, 0")
    a("s_cbranch_scc1 L_attn_out")
    a(f"s_mov_b32 s{S_ATT}, 1")
    for aq in range(2):
        a(f"v_mov_b32 v{Q1[aq]+1}, 0")
        a(f"v_mov_b32 v{TMP+2+aq}, 0xff800000")
    a(f"s_mov_b32 s66, s{S_KV}")
    a(f"s_mov_b32 s{S_C}, 0")
    a.label("L_attn_mx_chunk")
    dma_chunk(a, 64, 66)
    a(f"s_add_u32 s66, s66, {CH}")
    a(f"v_mov_b32 v{VK0}, v5")
    a(f"v_add_u32 v{VK1}, 1024, v7")
    a("s_mov_b32 s69, 0")
    a("s_waitcnt vmcnt(0)")
    a("s_barrier")
    a.label("L_attn_mx_tile")
    read_k(a, 0, 0)
    a(f"v_add_u32 v{VK0}, {KV_RS}, v{VK0}")
    a(f"v_add_u32 v{VK1}, {KV_RS}, v{VK1}")
    a("s_waitcnt lgkmcnt(0)")
    for aq in range(2):
        qk(a, 0, aq, 0); qk(a, 1, aq, 0)
    a("s_nop 15")
    for aq in range(2):
        tile_max(a, aq, TMP+2+aq, False)
    a("s_add_u32 s69, s69, 1")
    a("s_cmp_lt_u32 s69, 16")
    a("s_cbranch_scc1 L_attn_mx_tile")
    a("s_barrier")
    a(f"s_add_u32 s{S_C}, s{S_C}, 1")
    a(f"s_cmp_lt_u32 s{S_C}, 4")
    a("s_cbranch_scc1 L_attn_mx_chunk")
    for aq in range(2):
        set_m(a, aq, TMP+2+aq)
    a("s_branch L_attn_start")
    a.label("L_attn_out")
    pub(a)
```

```python
from common import *

WA = 148
ACC = 52
TB = 16
OSC = " nt"
FPRIO = 3

def decode(a, wgreg):
    a(f"s_and_b32 s53, {wgreg}, 7")
    a("s_lshl_b32 s53, s53, 2")
    a(f"s_bfe_u32 s70, {wgreg}, 0x20003")
    a("s_add_u32 s53, s53, s70")

def wof_setup(a, wgreg, vaddr):
    a(f"s_mul_i32 s78, s52, {9*18*1024}")
    a(f"s_lshr_b32 s70, {wgreg}, 5")
    a("s_min_u32 s70, s70, 5")
    a("s_mul_i32 s70, s70, 3072")
    a("s_add_u32 s78, s78, s70")
    a(f"s_add_u32 s78, s78, {WOF_OFF}")
    a("s_and_b32 s70, s52, 1")
    a("s_lshl_b32 s70, s70, 8")
    a(f"v_lshlrev_b32 v{vaddr}, 4, v0")
    a(f"v_xor_b32 v{vaddr}, s70, v{vaddr}")

def wof_load(k, vaddr):
    t, i = divmod(k, 3)
    L = [f"buffer_load_dwordx4 {vr(WA+12*t+4*i,4)}, v{vaddr}, s[48:51], s78 offen offset:{i*1024} sc1"]
    if i == 2: L.append(f"s_add_u32 s78, s78, {18*1024}")
    return L

def final_body(a, wgreg, boxes, spin_max):
    a(f"s_setprio {FPRIO}")
    a.srd(40, P_OUT, S*D*2)
    decode(a, wgreg)
    a(f"s_lshr_b32 s54, {wgreg}, 5")
    a("s_and_b32 s61, s52, 1")
    a("s_lshr_b32 s62, s52, 1")
    boxes(a)
    a("v_lshlrev_b32 v2, 4, v0")
    a("v_and_b32 v5, 31, v0")
    a("s_lshl_b32 s57, s53, 1")
    a("s_add_u32 s63, s57, s62")
    a("s_lshl_b32 s57, s63, 5")
    a("v_add_u32 v5, s57, v5")
    a(f"s_mul_i32 s56, s54, {3*64*2048}")
    a("s_lshl_b32 s57, s63, 11")
    a("s_add_u32 s56, s56, s57")
    a("s_lshl_b32 s57, s61, 10")
    a("s_add_u32 s56, s56, s57")
    a(f"s_add_u32 s56, s56, {YP_OFF}")
    a("v_mul_u32_u24 v5, 1152, v5")
    a("v_lshrrev_b32 v6, 5, v0")
    a("v_lshl_add_u32 v5, v6, 4, v5")
    a("s_mul_i32 s58, s54, 192")
    a("s_lshl_b32 s57, s61, 5")
    a("s_add_u32 s58, s57, s58")
    a("v_bfe_u32 v8, v0, 2, 2")
    a("v_lshl_add_u32 v3, v6, 2, v8")
    a("v_lshlrev_b32 v3, 12, v3")
    a("v_bfe_u32 v9, v0, 4, 1")
    a("v_xor_b32 v10, s62, v9")
    a("v_lshl_add_u32 v3, v10, 6, v3")
    a("v_and_b32 v10, 3, v0")
    a("v_lshl_add_u32 v3, v10, 4, v3")
    a(f"s_mul_i32 s59, s52, {144*4096}")
    a("s_lshl_b32 s57, s53, 7")
    a("s_add_u32 s59, s59, s57")
    a(f"s_add_u32 s59, s59, {O_OFF}")
    a("s_mul_i32 s60, s52, 18432")
    a("v_lshlrev_b32 v4, 9, v6")
    a("v_lshl_add_u32 v4, v8, 6, v4")
    a("v_lshl_add_u32 v4, v9, 5, v4")
    a("v_lshl_add_u32 v4, v10, 3, v4")
    a("v_add_u32 v4, s60, v4")
    for x in range(1, 4):
        a(f"s_xor_b32 s57, s52, {x}")
        a(f"s_mul_i32 s57, s57, 18432")
        a(f"s_add_u32 s57, s57, {(x-1)*6144}")
        a(f"v_add_u32 v{11+x}, s57, v2")
    a(f"v_add_u32 v15, s60, v2")
    YS = list(range(32, 52)) + [8, 9, 10, 11]
    def ysum(Y):
        for i in range(3):
            for ks in range(5):
                a(f"s_add_u32 s57, s56, {ks*YPB_SZ + i*64*2048}")
                a(f"buffer_load_dwordx4 {vr(Y(i,ks),4)}, v2, s[48:51], s57 offen sc1")
        for i in range(3):
            for ks in range(5):
                a(f"s_waitcnt vmcnt({14 - 5*i - ks})")
                for p in range(4):
                    y = Y(i, ks) + p
                    lo, hi = YS[8*i+2*p], YS[8*i+2*p+1]
                    if ks == 0:
                        a(f"v_lshlrev_b32 v{lo}, 16, v{y}")
                        a(f"v_and_b32 v{hi}, 0xffff0000, v{y}")
                    else:
                        a(f"v_lshlrev_b32 v7, 16, v{y}")
                        a(f"v_and_b32 v{y}, 0xffff0000, v{y}")
                        a(f"v_add_f32 v{lo}, v{lo}, v7")
                        a(f"v_add_f32 v{hi}, v{hi}, v{y}")
    a("s_mov_b32 s64, 0")
    a("s_mov_b32 s65, 0")
    a("s_waitcnt vmcnt(0)")
    a.label("L_fin_poll")
    a("s_buffer_load_dword s72, s[48:51], s66 glc")
    a("s_buffer_load_dword s73, s[48:51], s67 glc")
    a("s_add_u32 s65, s65, 1")
    a("s_waitcnt lgkmcnt(0)")
    a("s_cmp_ge_u32 s72, 8")
    a("s_cbranch_scc1 L_fin_proj")
    a("s_cmp_ge_u32 s73, 5")
    a("s_cselect_b32 s73, 1, 0")
    a("s_cmp_gt_u32 s73, s64")
    a("s_cbranch_scc1 L_fin_y1")
    a("s_sleep 1")
    a(f"s_cmp_lt_u32 s65, {spin_max}")
    a("s_cbranch_scc1 L_fin_poll")
    a("s_branch L_fin_proj")
    a.label("L_fin_y1")
    ysum(lambda i, ks: ACC + 20*i + 4*ks)
    a("s_mov_b32 s64, 1")
    a("s_branch L_fin_poll")
    a.label("L_fin_proj")
    a.stamp_mid(6)
    for m in range(18):
        a(f"s_add_u32 m0, s60, {m*1024}")
        a(f"s_add_u32 s57, s59, {m*8*4096}")
        a("buffer_load_dwordx4 v3, s[48:51], s57 offen sc1 lds")
    def rd(t):
        a(f"s_waitcnt vmcnt({16 - 2*t})")
        for n in range(2):
            for sec in range(2):
                a(f"ds_read_b64_tr_b16 {vr(TB+8*(t%2)+4*n+2*sec,2)}, v4 offset:{t*2048 + sec*1024 + n*256}")
    rd(0)
    for t in range(9):
        a("s_waitcnt lgkmcnt(0)")
        for i in range(3):
            for n in range(2):
                c = vr(ACC+16*(2*i+n), 16)
                a(f"v_mfma_f32_32x32x16_bf16 {c}, {vr(WA+12*t+4*i,4)}, {vr(TB+8*(t%2)+4*n,4)}, {c if t else 0}")
            if i == 0 and t + 1 < 9: rd(t+1)
    a("s_barrier")
    a("s_nop 7")
    for i in range(3):
        for x, (n, hf) in ((1, (0, 1)), (2, (1, 0)), (3, (1, 1))):
            for q in range(2):
                a(f"ds_write_b128 v{11+x}, {vr(ACC+16*(2*i+n)+8*hf+4*q,4)} offset:{i*2048+q*1024}")
    a("s_waitcnt lgkmcnt(0)")
    a("s_barrier")
    R = WA
    for i in range(3):
        if i == 2: a("s_waitcnt lgkmcnt(6)")
        for x in range(3):
            for q in range(2):
                a(f"ds_read_b128 {vr(R+24*x+8*i+4*q,4)}, v15 offset:{x*6144+i*2048+q*1024}")
    for i in range(3):
        a(f"s_waitcnt lgkmcnt({6*(2-i)})")
        b = ACC + 32*i
        for e in range(8):
            a(f"v_add_f32 v{b+e}, v{b+e}, v{R+8*i+e}")
            a(f"v_add_f32 v{R+24+8*i+e}, v{R+24+8*i+e}, v{R+48+8*i+e}")
        for e in range(8):
            a(f"v_add_f32 v{b+e}, v{b+e}, v{R+24+8*i+e}")
    a("s_cmp_lg_u32 s64, 0")
    a("s_cbranch_scc1 L_fin_out")
    a.label("L_fin_poll2")
    a("s_buffer_load_dword s73, s[48:51], s67 glc")
    a("s_add_u32 s65, s65, 1")
    a("s_waitcnt lgkmcnt(0)")
    a("s_cmp_ge_u32 s73, 5")
    a("s_cbranch_scc1 L_fin_y2")
    a("s_sleep 1")
    a(f"s_cmp_lt_u32 s65, {2*spin_max}")
    a("s_cbranch_scc1 L_fin_poll2")
    a.label("L_fin_y2")
    ysum(lambda i, ks: WA + 20*i + 4*ks)
    a.label("L_fin_out")
    a.stamp_mid(7)
    for i in range(3):
        b = ACC + 32*i
        for e in range(8):
            a(f"v_add_f32 v{b+e}, v{b+e}, v{YS[8*i+e]}")
        for e in range(4):
            a(f"v_cvt_pk_bf16_f32 v{b+e}, v{b+2*e}, v{b+2*e+1}")
        a("s_nop 1")
        a(f"v_permlane32_swap_b32 v{b}, v{b+2}")
        a(f"v_permlane32_swap_b32 v{b+1}, v{b+3}")
        a(f"buffer_store_dwordx4 {vr(b,4)}, v5, s[40:43], s58 offen offset:{i*64}{OSC}")
```

```python
from common import *
import math

MLP1_GRID = 216
for t in range(216):
    assert (t*171) >> 10 == t//6

VF = [1, 2]; VT = [3, 4]
VDT, VDT2, VDF = 5, 6, 7
SET = [16, 48]
ACC = 80
BIAS = 128
S_T, S_F, S_CNT = 54, 55, 58
STAGE = 14336
NB = 5
NST = 64
STRIDE = F*2
YIELD = 1
EPIST = False
EPRIO = 2
EARLY2 = True
H2AT = 0
PST = False
HOLD_FIRST = 2

def mlp1_body(a, wgreg, dep, pub, sm=0, epi=None, hold=None, hold2=None):
    a.srd(40, P_W1, S*F*2)
    a.srd(44, P_B1, F*2)
    a(f"s_and_b32 s66, {wgreg}, 7")
    a("s_mul_i32 s66, s66, 27")
    a(f"s_lshr_b32 s67, {wgreg}, 3")
    a("s_add_u32 s67, s67, s66")
    a("s_mul_i32 s66, s67, 171")
    a("s_lshr_b32 s66, s66, 10")
    a("s_mul_i32 s68, s66, 6")
    a("s_sub_u32 s67, s67, s68")
    a(f"s_mul_i32 s{S_T}, s52, {8*STRIDE}")
    a("s_lshl_b32 s70, s66, 8")
    a(f"s_add_u32 s{S_T}, s{S_T}, s70")
    a("s_lshr_b32 s70, s52, 1")
    a(f"s_mul_i32 s{S_F}, s70, {18*1024}")
    a("s_and_b32 s70, s52, 1")
    a("s_mul_i32 s70, s70, 1536")
    a(f"s_add_u32 s{S_F}, s{S_F}, s70")
    a("s_mul_i32 s70, s67, 3072")
    a(f"s_add_u32 s{S_F}, s{S_F}, s70")
    a(f"s_add_u32 s{S_F}, s{S_F}, {HT_OFF}")
    a("s_lshl_b32 s60, s52, 11")
    a("s_mul_i32 s61, s52, 1536")
    a("s_add_u32 s61, s61, 8192")
    a(f"s_mov_b32 s62, {32*STRIDE}")
    a(f"s_mov_b32 s63, {2*18*1024}")
    a("v_lshrrev_b32 v8, 4, v0")
    a("v_and_b32 v9, 3, v0")
    a("v_lshlrev_b32 v9, 4, v9")
    a("v_lshl_add_u32 v8, v8, 6, v9")
    a("v_bfe_u32 v9, v0, 2, 2")
    a(f"v_mul_u32_u24 v10, {STRIDE}, v9")
    a(f"v_add_u32 v{VDT}, v10, v8")
    a(f"v_add_u32 v{VDT2}, {4*STRIDE}, v{VDT}")
    a(f"v_lshlrev_b32 v{VDF}, 4, v0")
    def m0t(buf, i): a(f"s_add_u32 m0, s60, {buf*STAGE + i*1024}")
    def m0f(buf): a(f"s_add_u32 m0, s61, {buf*STAGE}")
    def ldt(i):
        a(f"buffer_load_dwordx4 v{VDT2 if i else VDT}, s[40:43], s{S_T} offen lds")
        if i: a(f"s_add_u32 s{S_T}, s{S_T}, s62")
    def ldf(i):
        if i: a("s_mov_b32 exec_hi, 0")
        a(f"buffer_load_dwordx4 v{VDF}, s[48:51], s{S_F} offen offset:{i*1024} sc1 lds")
        if i:
            a("s_mov_b32 exec_hi, -1")
            a(f"s_add_u32 s{S_F}, s{S_F}, s63")
    a("s_lshl_b32 s69, s66, 2")
    a("s_add_u32 s69, s69, s52")
    a("s_lshl_b32 s71, s69, 6")
    a("v_lshrrev_b32 v10, 5, v0")
    a("v_lshlrev_b32 v11, 3, v10")
    for jj in range(4):
        a(f"buffer_load_dwordx2 {vr(BIAS+16+2*jj,2)}, v11, s[44:47], s71 offen offset:{jj*16}")
    if hold and HOLD_FIRST == 1:
        dep(a); hold(a)
    if hold and HOLD_FIRST == 2:
        dep(a, 1); hold(a)
    for st in range(NB):
        for i in range(2):
            m0t(st, i); a("s_nop 0"); ldt(i)
    a("v_lshlrev_b32 v8, 11, v10")
    a("v_lshl_add_u32 v8, v9, 6, v8")
    a("v_bfe_u32 v9, v0, 4, 1")
    a("v_lshl_add_u32 v8, v9, 5, v8")
    a("v_and_b32 v9, 3, v0")
    a("v_lshl_add_u32 v8, v9, 3, v8")
    a("s_lshl_b32 s70, s52, 8")
    a(f"v_add_u32 v{VT[0]}, s70, v8")
    a(f"v_add_u32 v{VT[1]}, {3*STAGE}, v{VT[0]}")
    a(f"v_add_u32 v{VF[0]}, 0x2000, v{VDF}")
    a(f"v_add_u32 v{VF[1]}, {3*STAGE}, v{VF[0]}")
    if not (hold and HOLD_FIRST): dep(a)
    if hold and HOLD_FIRST == 2: dep(a, 2)
    a("s_barrier")
    for st in range(NB):
        m0f(st); a("s_nop 0")
        ldf(0); ldf(1)
    def reads(c):
        buf = c % NB; hi = 1 if buf >= 3 else 0; o = (buf - 3*hi)*STAGE
        L = []
        for step in range(2):
            b = SET[c & 1] + 16*step
            for sec in range(2):
                L.append(f"ds_read_b64_tr_b16 {vr(b+2*sec,2)}, v{VT[hi]} offset:{o + step*4096 + sec*1024}")
            for i in range(3):
                L.append(f"ds_read_b128 {vr(b+4+4*i,4)}, v{VF[hi]} offset:{o + step*3072 + i*1024}")
        return L
    def mfma(c, k):
        step, i = divmod(k, 3)
        b = SET[c & 1] + 16*step
        if YIELD > 1:
            if k % YIELD == 0: a("s_setprio 0")
            if k % YIELD == 1: a("s_setprio 2")
        elif YIELD < 0:
            if k % -YIELD == 0: a("s_setprio 0")
            if k % -YIELD == -YIELD - 1: a("s_setprio 2")
        d = vr(ACC + 16*i, 16)
        cin = vr(BIAS, 16) if (c == 0 and step == 0) else d
        a(f"v_mfma_f32_32x32x16_bf16 {d}, {vr(b,4)}, {vr(b+4+4*i,4)}, {cin}")
    def body(c, vm):
        buf = c % NB
        ld = c + NB < NST
        r = reads(c+1) if c + 1 < NST else []
        if c + 1 < NST:
            a(f"s_waitcnt vmcnt({vm}) lgkmcnt(0)")
            a("s_barrier")
        else:
            a("s_waitcnt lgkmcnt(0)")
        mfma(c, 0)
        if ld: m0t(buf, 0)
        for x in r[0:3]: a(x)
        if ld: ldt(0)
        mfma(c, 1)
        if ld: m0t(buf, 1)
        for x in r[3:6]: a(x)
        mfma(c, 2)
        if ld: ldt(1)
        for x in r[6:8]: a(x)
        mfma(c, 3)
        if ld: m0f(buf)
        for x in r[8:10]: a(x)
        if ld: ldf(0)
        mfma(c, 4)
        if ld: ldf(1)
        mfma(c, 5)
    def vm_of(c):
        order = [("T", s_) for s_ in range(NB) for _ in range(2)] + [("F", s_) for s_ in range(NB) for _ in range(2)]
        for b in range(c):
            if b + NB < NST: order += [("X", b + NB)]*4
        last = max(n for n, o in enumerate(order) if o[1] == c + 1)
        return len(order) - 1 - last
    a(f"s_waitcnt vmcnt({2*(NB-1)})")
    a("s_barrier")
    for x in reads(0): a(x)
    for p in range(8):
        a(f"v_lshlrev_b32 v{BIAS+2*p}, 16, v{BIAS+16+p}")
        a(f"v_and_b32 v{BIAS+2*p+1}, 0xffff0000, v{BIAS+16+p}")
    a.stamp_mid(6)
    if hold and not HOLD_FIRST: hold(a)
    a("s_setprio 0")
    a.stamp_mid(sm)
    P0 = 4
    if hold2 and H2AT == 0: hold2(a)
    for c in range(P0): body(c, vm_of(c))
    nl = (NST - NB - P0)//10
    for c in range(P0, P0 + 10*nl): assert vm_of(c) == 12
    a(f"s_mov_b32 s{S_CNT}, {nl}")
    a.raw(".p2align 6")
    a.label("L_mlp1_loop")
    for c in range(P0, P0 + 10): body(c, 12)
    if PST and a.stamp is True:
        for cnt, slot in ((5, 3), (4, 4), (3, 5), (2, 6), (1, 7)):
            Ls = a.newlabel("st")
            a(f"s_cmp_lg_u32 s{S_CNT}, {cnt}")
            a(f"s_cbranch_scc1 {Ls}")
            a.stamp_mid(slot)
            a.label(Ls)
    a(f"s_sub_u32 s{S_CNT}, s{S_CNT}, 1")
    a(f"s_cmp_lg_u32 s{S_CNT}, 0")
    a("s_cbranch_scc1 L_mlp1_loop")
    for c in range(P0 + 10*nl, NST): body(c, vm_of(c) if c + 1 < NST else 0)
    a(f"s_setprio {EPRIO}")
    a.stamp_mid(sm+1)
    c0 = -2.0*math.sqrt(2.0/math.pi)*math.log2(math.e)
    a(f"v_mov_b32 v12, {f32bits(c0*0.044715)}")
    a(f"v_mov_b32 v13, {f32bits(c0)}")
    a(f"s_mul_i32 s16, s69, {2*18*1024}")
    a(f"s_mul_i32 s17, s67, 3072")
    a(f"s_add_u32 s16, s16, s17")
    a(f"s_add_u32 s16, s16, {U_OFF}")
    a(f"s_add_u32 s17, s16, {18*1024}")
    if EARLY2:
        pub(a, 0)
        if epi: epi(a)
    a("s_nop 3")
    T1 = 16
    for i in range(3):
        b = ACC + 16*i
        for e in range(16): a(f"v_mul_f32 v{T1+e}, v{b+e}, v{b+e}")
        for e in range(16): a(f"v_fma_f32 v{T1+e}, v{T1+e}, v12, v13")
        for e in range(16): a(f"v_mul_f32 v{T1+e}, v{T1+e}, v{b+e}")
        for e in range(16): a(f"v_exp_f32 v{T1+e}, v{T1+e}")
        for e in range(16): a(f"v_add_f32 v{T1+e}, 1.0, v{T1+e}")
        for e in range(16): a(f"v_rcp_f32 v{T1+e}, v{T1+e}")
        for e in range(16): a(f"v_mul_f32 v{b+e}, v{b+e}, v{T1+e}")
        for e in range(8):  a(f"v_cvt_pk_bf16_f32 v{b+e}, v{b+2*e}, v{b+2*e+1}")
        a(f"buffer_store_dwordx4 {vr(b,4)}, v{VDF}, s[48:51], s16 offen offset:{i*1024} sc1")
        a(f"buffer_store_dwordx4 {vr(b+4,4)}, v{VDF}, s[48:51], s17 offen offset:{i*1024} sc1")
    if not EARLY2:
        pub(a, 0)
        if epi: epi(a)
    pub(a, 1)
```

```python
from common import *

MLP2_GRID = 240
for n in range(30):
    assert (n*86) >> 8 == n//3

VF = [1, 2]; VT = [3, 4]
VDT, VDT2, VDF = 5, 6, 7
FR = [8, 28]
ACC = 64
TP = 160
def acc(i, n): return ACC + 16*(2*i + n)
S_T, S_F, S_CNT = 54, 55, 58
STAGE = 20480
NST = 29
YIELD = 1
P0 = (0, 4, 8, 11, 14)
PC = (4, 4, 3, 3, 4)

def mlp2_body(a, wgreg, sm, dep, ybox, post=None):
    a.srd(40, P_W2, S*F*2)
    a.srd(44, P_WS, WS_SIZE)
    a(f"s_lshr_b32 s67, {wgreg}, 3")
    a("s_mul_i32 s66, s67, 86")
    a("s_lshr_b32 s66, s66, 8")
    a("s_mul_i32 s68, s66, 3")
    a("s_sub_u32 s67, s67, s68")
    a(f"s_and_b32 s68, {wgreg}, 7")
    a("s_mul_i32 s68, s68, 10")
    a("s_add_u32 s66, s66, s68")
    a("s_lshr_b32 s69, s66, 4")
    a("s_and_b32 s66, s66, 15")
    a("s_and_b32 s71, s52, 1")
    a("s_lshr_b32 s72, s52, 1")
    a("s_lshl_b32 s56, s66, 8")
    a("s_lshl_b32 s70, s52, 15")
    a("s_add_u32 s56, s56, s70")
    a("s_mul_i32 s57, s67, 6144")
    a(f"s_mul_i32 s70, s72, {18*1024}")
    a("s_add_u32 s57, s57, s70")
    a("s_mul_i32 s70, s71, 3072")
    a("s_add_u32 s57, s57, s70")
    a(f"s_mul_i32 s{S_T}, s69, {928*4096}")
    a(f"s_add_u32 s{S_T}, s{S_T}, s56")
    a(f"s_mul_i32 s{S_F}, s69, {58*18*1024}")
    a(f"s_add_u32 s{S_F}, s{S_F}, s57")
    a(f"s_add_u32 s{S_F}, s{S_F}, {U_OFF}")
    a("s_lshl_b32 s60, s52, 11")
    a("s_mul_i32 s61, s52, 3072")
    a("s_add_u32 s61, s61, 8192")
    a(f"s_mov_b32 s62, {32*4096}")
    a(f"s_mov_b32 s63, {2*18*1024}")
    a(f"v_lshrrev_b32 v8, 4, v0")
    a(f"v_and_b32 v9, 3, v0")
    a(f"v_lshlrev_b32 v9, 4, v9")
    a(f"v_lshl_add_u32 v8, v8, 6, v9")
    a(f"v_bfe_u32 v9, v0, 2, 2")
    a(f"v_lshl_add_u32 v{VDT}, v9, 12, v8")
    a(f"v_add_u32 v{VDT2}, {4*4096}, v{VDT}")
    a(f"v_lshlrev_b32 v{VDF}, 4, v0")
    def m0t(buf, i): a(f"s_add_u32 m0, s60, {buf*STAGE + i*1024}")
    def m0f(buf): a(f"s_add_u32 m0, s61, {buf*STAGE}")
    def ldt(i, st=S_T):
        a(f"buffer_load_dwordx4 v{VDT2 if i else VDT}, s[40:43], s{st} offen lds")
        if i: a(f"s_add_u32 s{st}, s{st}, s62")
    def ldf(i):
        a(f"buffer_load_dwordx4 v{VDF}, s[44:47], s{S_F} offen offset:{i*1024} sc1 lds")
        if i == 2: a(f"s_add_u32 s{S_F}, s{S_F}, s63")
    for st in range(4):
        for i in range(2):
            m0t(st, i); a("s_nop 0"); ldt(i)
    a(f"v_lshrrev_b32 v8, 5, v0")
    a(f"v_lshlrev_b32 v8, 10, v8")
    a(f"v_lshl_add_u32 v8, v9, 6, v8")
    a(f"v_bfe_u32 v9, v0, 4, 1")
    a(f"v_lshl_add_u32 v8, v9, 5, v8")
    a(f"v_and_b32 v9, 3, v0")
    a(f"v_lshl_add_u32 v8, v9, 3, v8")
    a("s_lshl_b32 s70, s72, 9")
    a(f"v_add_u32 v{VT[0]}, s70, v8")
    a(f"v_add_u32 v{VT[1]}, {2*STAGE}, v{VT[0]}")
    a("s_mul_i32 s70, s71, 3072")
    a("s_add_u32 s70, s70, 8192")
    a(f"v_add_u32 v{VF[0]}, s70, v{VDF}")
    a(f"v_add_u32 v{VF[1]}, {2*STAGE}, v{VF[0]}")
    dep(a)
    a("s_lshl_b32 s70, s66, 1")
    a("s_add_u32 s70, s70, s72")
    a("s_lshl_b32 s70, s70, 6")
    a("v_and_b32 v48, 31, v0")
    a("v_add_u32 v48, s70, v48")
    a("v_lshlrev_b32 v49, 2, v48")
    a("v_lshlrev_b32 v48, 1, v48")
    a(f"s_mov_b32 s70, {G_OFF}")
    a.srd(80, P_B2, S*2)
    a("s_cmp_eq_u32 s69, 0")
    a("s_cselect_b32 s82, s82, 0")
    for st in range(3):
        m0f(st); a("s_nop 0")
        for i in range(3): ldf(i)
    def rdF(dst, buf, step, i):
        return f"ds_read_b128 {vr(dst,4)}, v{VF[buf>>1]} offset:{(buf&1)*STAGE + step*6144 + i*1024}"
    def rdT(dst, buf, step, n, sec):
        return f"ds_read_b64_tr_b16 {vr(dst,2)}, v{VT[buf>>1]} offset:{(buf&1)*STAGE + step*4096 + sec*2048 + n*256}"
    def reads(sn, buf, step):
        b = FR[sn]
        Fr = [((sn, "F", i), rdF(b+4*i, buf, step, i)) for i in range(3)]
        T = [((sn, "T", n), rdT(b+12+4*n+2*sec, buf, step, n, sec)) for n in range(2) for sec in range(2)]
        return [Fr[0], T[0], T[1], T[2], T[3], Fr[1], Fr[2]]
    def mfma(ls, sn, k, first):
        b = FR[sn]
        i, n = k >> 1, k & 1
        ls.need([(sn, "F", i), (sn, "T", n)])
        if YIELD > 1:
            if k % YIELD == 0: a("s_setprio 0")
            if k % YIELD == 1: a("s_setprio 2")
        elif YIELD < 0:
            if k % -YIELD == 0: a("s_setprio 0")
            if k % -YIELD == -YIELD - 1: a("s_setprio 2")
        c = vr(acc(i, n), 16)
        a(f"v_mfma_f32_32x32x16_bf16 {c}, {vr(b+4*i,4)}, {vr(b+12+4*n,4)}, {'0' if first else c}")
    def body(c, vm=10, mid=None):
        buf = c % 4; pb = (c - 1) % 4; last = (c == NST - 1)
        lf = c + 3 < NST; lt = c + 4 < NST
        ls = LdsSched(a, [r[0] for r in reads(0, buf, 0)])
        ls.drain()
        r = reads(1, buf, 1)
        mfma(ls, 0, 0, c == 0)
        if lf: m0f(pb)
        for x in r[0:3]: ls.read(*x)
        if lf: ldf(0)
        mfma(ls, 0, 1, c == 0)
        for x in r[3:7]: ls.read(*x)
        mfma(ls, 0, 2, c == 0)
        if lf: ldf(1)
        mfma(ls, 0, 3, c == 0)
        mfma(ls, 0, 4, c == 0)
        if lf: ldf(2)
        mfma(ls, 0, 5, c == 0)
        if mid: mid()
        ls.drain()
        mfma(ls, 1, 0, False)
        if not last:
            a(f"s_waitcnt vmcnt({vm})")
            a("s_barrier")
        r = [] if last else reads(0, (c+1) % 4, 0)
        if lt: m0t(buf, 0)
        for x in r[0:3]: ls.read(*x)
        mfma(ls, 1, 1, False)
        for x in r[3:7]: ls.read(*x)
        mfma(ls, 1, 2, False)
        if lt: ldt(0)
        mfma(ls, 1, 3, False)
        if lt: m0t(buf, 1)
        mfma(ls, 1, 4, False)
        if lt: ldt(1)
        mfma(ls, 1, 5, False)
    if post:
        post(a)
    x = 1 if post else 0
    a(f"s_waitcnt vmcnt({6+x})")
    a("s_barrier")
    for r in reads(0, 0, 0): a(r[1])
    a(f"s_setprio {2 if YIELD == 0 else 0}")
    a.stamp_mid(sm)
    body(0, 6+x)
    body(1, 8+x)
    a(f"s_mov_b32 s{S_CNT}, 5")
    L = a.newlabel("mlp2")
    a.raw(".p2align 6")
    a.label(L)
    for c in range(2, 6): body(c)
    a(f"s_sub_u32 s{S_CNT}, s{S_CNT}, 1")
    a(f"s_cmp_lg_u32 s{S_CNT}, 0")
    a(f"s_cbranch_scc1 {L}")
    def gload():
        a("buffer_load_dword v50, v49, s[48:51], s70 offen sc1")
        a("buffer_load_dword v51, v49, s[48:51], s70 offen offset:128 sc1")
        a("buffer_load_ushort v52, v48, s[80:83], 0 offen")
        a("buffer_load_ushort v53, v48, s[80:83], 0 offen offset:64")
    body(22, mid=gload); body(23)
    def kill28():
        a("s_cmp_eq_u32 s69, 4")
        a("s_cselect_b32 s42, 0, s42")
        a("s_cselect_b32 s46, 0, s46")
    body(24, mid=kill28)
    body(25)
    def dest():
        a(f"s_mul_i32 s73, s69, {YPB_SZ}")
        a("s_lshl_b32 s70, s67, 1")
        a("s_add_u32 s70, s70, s71")
        a(f"s_mul_i32 s70, s70, {3*64*2048}")
        a("s_add_u32 s73, s73, s70")
        a("s_lshl_b32 s70, s66, 1")
        a("s_add_u32 s70, s70, s72")
        a("s_lshl_b32 s70, s70, 12")
        a("s_add_u32 s73, s73, s70")
        a(f"s_add_u32 s73, s73, {YP_OFF}")
    def gprep():
        ybox(a)
        for n in range(2):
            a(f"v_sub_f32 v{50+n}, 1.0, v{50+n}")
            a(f"v_lshlrev_b32 v{52+n}, 16, v{52+n}")
            a(f"v_mul_f32 v{52+n}, v{52+n}, v{50+n}")
        a("v_mov_b32 v54, 0")
        a("v_mov_b32 v55, 1")
    body(26, 5, mid=dest); body(27, 0, mid=gprep); body(28)
    a("s_setprio 2")
    a.stamp_mid(sm+1)
    a("s_nop 7")
    for i in range(3):
        for n in range(2):
            b = acc(i, n)
            for hf in range(2):
                for e in range(8*hf, 8*hf+8):
                    a(f"v_fma_f32 v{b+e}, v{b+e}, v{50+n}, v{52+n}")
                for e in range(4*hf, 4*hf+4):
                    a(f"v_cvt_pk_bf16_f32 v{b+e}, v{b+2*e}, v{b+2*e+1}")
                a(f"buffer_store_dwordx4 {vr(b+4*hf,4)}, v{VDF}, s[48:51], s73 offen offset:{n*2048+hf*1024} sc1")
        if i < 2: a(f"s_add_u32 s73, s73, {64*2048}")
    a("s_waitcnt vmcnt(0)")
    a("s_mov_b64 exec, 1")
    a(f"buffer_atomic_add v55, v54, s[48:51], s76 offen sc1")
    a("s_mov_b64 exec, -1")
```

```python
from common import *

MLP2_GRID = 240
for n in range(30):
    assert (n*86) >> 8 == n//3

VF = [1, 2]; VT = [3, 4]
VDT, VDT2, VDF = 5, 6, 7
FR = [8, 28]
ACC = 64
TP = 160
def acc(i, n): return ACC + 16*(2*i + n)
S_T, S_F, S_CNT = 54, 55, 58
STAGE = 20480
NST = 29
YIELD = 1
P0 = (0, 4, 8, 11, 14)
PC = (4, 4, 3, 3, 4)

def mlp2_body(a, wgreg, sm, dep, dep_o, ybox, post=None, part=0):
    real = a
    if part == 2:
        a = Asm()
    a.srd(40, P_W2, S*F*2)
    a.srd(44, P_WS, WS_SIZE)
    a(f"s_lshr_b32 s67, {wgreg}, 3")
    a("s_mul_i32 s66, s67, 86")
    a("s_lshr_b32 s66, s66, 8")
    a("s_mul_i32 s68, s66, 3")
    a("s_sub_u32 s67, s67, s68")
    a(f"s_and_b32 s68, {wgreg}, 7")
    a("s_mul_i32 s68, s68, 10")
    a("s_add_u32 s66, s66, s68")
    a("s_lshr_b32 s69, s66, 4")
    a("s_and_b32 s66, s66, 15")
    a("s_lshl_b32 s70, s69, 2")
    a(f"s_lshr_b32 s53, {sum(c << (4*i) for i, c in enumerate(PC))}, s70")
    a("s_and_b32 s53, s53, 15")
    a(f"s_lshr_b32 s65, {sum(c << (4*i) for i, c in enumerate(P0))}, s70")
    a("s_and_b32 s65, s65, 15")
    a("s_and_b32 s71, s52, 1")
    a("s_lshr_b32 s72, s52, 1")
    a("s_lshl_b32 s56, s66, 8")
    a("s_lshl_b32 s70, s52, 15")
    a("s_add_u32 s56, s56, s70")
    a("s_mul_i32 s57, s67, 6144")
    a(f"s_mul_i32 s70, s72, {18*1024}")
    a("s_add_u32 s57, s57, s70")
    a("s_mul_i32 s70, s71, 3072")
    a("s_add_u32 s57, s57, s70")
    a(f"s_mul_i32 s{S_T}, s69, {928*4096}")
    a(f"s_add_u32 s{S_T}, s{S_T}, s56")
    a(f"s_mul_i32 s{S_F}, s69, {58*18*1024}")
    a(f"s_add_u32 s{S_F}, s{S_F}, s57")
    a(f"s_add_u32 s{S_F}, s{S_F}, {U_OFF}")
    a("s_lshl_b32 s60, s52, 11")
    a("s_mul_i32 s61, s52, 3072")
    a("s_add_u32 s61, s61, 8192")
    a(f"s_mov_b32 s62, {32*4096}")
    a(f"s_mov_b32 s63, {2*18*1024}")
    a(f"v_lshrrev_b32 v8, 4, v0")
    a(f"v_and_b32 v9, 3, v0")
    a(f"v_lshlrev_b32 v9, 4, v9")
    a(f"v_lshl_add_u32 v8, v8, 6, v9")
    a(f"v_bfe_u32 v9, v0, 2, 2")
    a(f"v_lshl_add_u32 v{VDT}, v9, 12, v8")
    a(f"v_add_u32 v{VDT2}, {4*4096}, v{VDT}")
    a(f"v_lshlrev_b32 v{VDF}, 4, v0")
    def m0t(buf, i): a(f"s_add_u32 m0, s60, {buf*STAGE + i*1024}")
    def m0f(buf): a(f"s_add_u32 m0, s61, {buf*STAGE}")
    def ldt(i, st=S_T):
        a(f"buffer_load_dwordx4 v{VDT2 if i else VDT}, s[40:43], s{st} offen sc1 lds")
        if i: a(f"s_add_u32 s{st}, s{st}, s62")
    def ldf(i):
        a(f"buffer_load_dwordx4 v{VDF}, s[44:47], s{S_F} offen offset:{i*1024} sc1 lds")
        if i == 2: a(f"s_add_u32 s{S_F}, s{S_F}, s63")
    for st in range(4):
        for i in range(2):
            m0t(st, i); a("s_nop 0"); ldt(i)
    a(f"v_lshrrev_b32 v8, 5, v0")
    a(f"v_lshlrev_b32 v8, 10, v8")
    a(f"v_lshl_add_u32 v8, v9, 6, v8")
    a(f"v_bfe_u32 v9, v0, 4, 1")
    a(f"v_lshl_add_u32 v8, v9, 5, v8")
    a(f"v_and_b32 v9, 3, v0")
    a(f"v_lshl_add_u32 v8, v9, 3, v8")
    a("s_lshl_b32 s70, s72, 9")
    a(f"v_add_u32 v{VT[0]}, s70, v8")
    a(f"v_add_u32 v{VT[1]}, {2*STAGE}, v{VT[0]}")
    a("s_mul_i32 s70, s71, 3072")
    a("s_add_u32 s70, s70, 8192")
    a(f"v_add_u32 v{VF[0]}, s70, v{VDF}")
    a(f"v_add_u32 v{VF[1]}, {2*STAGE}, v{VF[0]}")
    if part == 1: return
    a = real
    dep(a)
    for st in range(3):
        m0f(st); a("s_nop 0")
        for i in range(3): ldf(i)
    def rdF(dst, buf, step, i):
        return f"ds_read_b128 {vr(dst,4)}, v{VF[buf>>1]} offset:{(buf&1)*STAGE + step*6144 + i*1024}"
    def rdT(dst, buf, step, n, sec):
        return f"ds_read_b64_tr_b16 {vr(dst,2)}, v{VT[buf>>1]} offset:{(buf&1)*STAGE + step*4096 + sec*2048 + n*256}"
    def reads(sn, buf, step):
        b = FR[sn]
        Fr = [((sn, "F", i), rdF(b+4*i, buf, step, i)) for i in range(3)]
        T = [((sn, "T", n), rdT(b+12+4*n+2*sec, buf, step, n, sec)) for n in range(2) for sec in range(2)]
        return [Fr[0], T[0], T[1], T[2], T[3], Fr[1], Fr[2]]
    def mfma(ls, sn, k, first):
        b = FR[sn]
        i, n = k >> 1, k & 1
        ls.need([(sn, "F", i), (sn, "T", n)])
        if YIELD > 1:
            if k % YIELD == 0: a("s_setprio 0")
            if k % YIELD == 1: a("s_setprio 2")
        elif YIELD < 0:
            if k % -YIELD == 0: a("s_setprio 0")
            if k % -YIELD == -YIELD - 1: a("s_setprio 2")
        c = vr(acc(i, n), 16)
        a(f"v_mfma_f32_32x32x16_bf16 {c}, {vr(b+4*i,4)}, {vr(b+12+4*n,4)}, {'0' if first else c}")
    def body(c, vm=10, mid=None):
        buf = c % 4; pb = (c - 1) % 4; last = (c == NST - 1)
        ls = LdsSched(a, [r[0] for r in reads(0, buf, 0)])
        ls.drain()
        r = reads(1, buf, 1)
        mfma(ls, 0, 0, c == 0)
        m0f(pb)
        for x in r[0:3]: ls.read(*x)
        ldf(0)
        mfma(ls, 0, 1, c == 0)
        for x in r[3:7]: ls.read(*x)
        mfma(ls, 0, 2, c == 0)
        ldf(1)
        mfma(ls, 0, 3, c == 0)
        mfma(ls, 0, 4, c == 0)
        ldf(2)
        mfma(ls, 0, 5, c == 0)
        if mid: mid()
        ls.drain()
        mfma(ls, 1, 0, False)
        a(f"s_waitcnt vmcnt({vm})")
        a("s_barrier")
        r = [] if last else reads(0, (c+1) % 4, 0)
        m0t(buf, 0)
        for x in r[0:3]: ls.read(*x)
        mfma(ls, 1, 1, False)
        for x in r[3:7]: ls.read(*x)
        mfma(ls, 1, 2, False)
        ldt(0)
        mfma(ls, 1, 3, False)
        m0t(buf, 1)
        mfma(ls, 1, 4, False)
        ldt(1)
        if last: m0f(buf)
        mfma(ls, 1, 5, False)
        if last:
            for i in range(3): ldf(i)
    if post:
        post(a)
    x = 1 if post else 0
    a(f"s_waitcnt vmcnt({6+x})")
    a("s_barrier")
    for r in reads(0, 0, 0): a(r[1])
    a("s_setprio 0")
    a.stamp_mid(sm)
    body(0, 6+x)
    body(1, 8+x)
    a(f"s_mov_b32 s{S_CNT}, 5")
    L = a.newlabel("mlp2")
    a.raw(".p2align 6")
    a.label(L)
    for c in range(2, 6): body(c)
    a(f"s_sub_u32 s{S_CNT}, s{S_CNT}, 1")
    a(f"s_cmp_lg_u32 s{S_CNT}, 0")
    a(f"s_cbranch_scc1 {L}")
    body(22, mid=lambda: dep_o(a, False)); body(23)
    def kill28():
        a("s_cmp_eq_u32 s69, 4")
        a("s_cselect_b32 s42, 0, s42")
        a("s_cselect_b32 s46, 0, s46")
    body(24, mid=kill28)
    def switch():
        dep_o(a, "look")
        a.srd(40, P_WS, WS_SIZE)
        a(f"s_mov_b32 s46, {WS_SIZE}")
        a("s_cmp_lg_u32 s79, 0")
        a("s_cselect_b32 s42, s42, 0")
        a(f"s_lshl_b32 s{S_T}, s65, 17")
        a(f"s_add_u32 s{S_T}, s{S_T}, s56")
        a(f"s_add_u32 s{S_T}, s{S_T}, {O_OFF}")
        a(f"s_mov_b32 s78, s{S_T}")
        a(f"s_mul_i32 s{S_F}, s65, s63")
        a(f"s_add_u32 s{S_F}, s{S_F}, s57")
        a(f"s_add_u32 s{S_F}, s{S_F}, {WOF_OFF}")
        a("s_lshl_b32 s70, s66, 1")
        a("s_add_u32 s70, s70, s72")
        a("s_lshl_b32 s70, s70, 6")
        a("v_and_b32 v48, 31, v0")
        a("v_add_u32 v48, s70, v48")
        a("v_lshlrev_b32 v49, 2, v48")
        a("v_lshlrev_b32 v48, 1, v48")
        a(f"s_mov_b32 s70, {G_OFF}")
        a.srd(80, P_B2, S*2)
        a("s_cmp_eq_u32 s69, 0")
        a("s_cselect_b32 s82, s82, 0")
        a("buffer_load_dword v50, v49, s[48:51], s70 offen sc1")
        a("buffer_load_dword v51, v49, s[48:51], s70 offen offset:128 sc1")
        a("buffer_load_ushort v52, v48, s[80:83], 0 offen")
        a("buffer_load_ushort v53, v48, s[80:83], 0 offen offset:64")
    body(25, mid=switch)
    body(26); body(27)
    def kill_p3():
        a("s_cmp_lt_u32 s53, 4")
        a("s_cselect_b32 s42, 0, s42")
        a("s_cselect_b32 s46, 0, s46")
    body(28, mid=kill_p3)
    a.stamp_mid(7)
    a("s_setprio 2")
    Lgo = a.newlabel("go")
    a("s_cmp_lg_u32 s79, 0")
    a(f"s_cbranch_scc1 {Lgo}")
    dep_o(a, True)
    a(f"s_mov_b32 s42, {WS_SIZE}")
    for j in range(4):
        if j == 3:
            a("s_cmp_lt_u32 s53, 4")
            a("s_cselect_b32 s42, 0, s42")
        for i in range(2):
            m0t((NST + j) % 4, i); a("s_nop 0"); ldt(i, 78)
    a.label(Lgo)
    for n in range(2):
        a(f"v_sub_f32 v{50+n}, 1.0, v{50+n}")
        a(f"v_lshlrev_b32 v{52+n}, 16, v{52+n}")
        a(f"v_mul_f32 v{52+n}, v{52+n}, v{50+n}")
    a(f"s_mul_i32 s73, s69, {YPB_SZ}")
    a("s_lshl_b32 s70, s67, 1")
    a("s_add_u32 s70, s70, s71")
    a(f"s_mul_i32 s70, s70, {3*64*2048}")
    a("s_add_u32 s73, s73, s70")
    a("s_lshl_b32 s70, s66, 1")
    a("s_add_u32 s70, s70, s72")
    a("s_lshl_b32 s70, s70, 12")
    a("s_add_u32 s73, s73, s70")
    a(f"s_add_u32 s73, s73, {YP_OFF}")
    ybox(a)
    a("v_mov_b32 v54, 0")
    a("v_mov_b32 v55, 1")
    for i in range(3):
        for n in range(2):
            for e in range(16):
                r = acc(i, n) + e
                a(f"v_fma_f32 v{r}, v{r}, v{50+n}, v{52+n}")
    a("s_waitcnt vmcnt(0)")
    a("s_barrier")
    ls = LdsSched(a)
    def prd(k): return ((NST + (k >> 1)) % 4, k & 1)
    def fread(i, k): ls.read(("F", i, k), rdF(8 + 4*k, *prd(k), i))
    def tread(k):
        for n in range(2):
            for sec in range(2):
                ls.read(("T", k), rdT(TP + 8*k + 4*n + 2*sec, *prd(k), n, sec))
    def signal(i, vm):
        a(f"s_waitcnt vmcnt({vm})")
        a("s_mov_b64 exec, 1")
        a(f"buffer_atomic_add v55, v54, s[48:51], s76 offen offset:{4*i} sc1")
        a("s_mov_b64 exec, -1")
    def finish(i):
        L = []
        for n in range(2):
            b = acc(i, n)
            for hf in range(2):
                for e in range(4*hf, 4*hf+4):
                    L.append(f"v_cvt_pk_bf16_f32 v{b+e}, v{b+2*e}, v{b+2*e+1}")
                L.append(f"buffer_store_dwordx4 {vr(b+4*hf,4)}, v{VDF}, s[48:51], s73 offen offset:{n*2048+hf*1024} sc1")
        if i < 2: L.append(f"s_add_u32 s73, s73, {64*2048}")
        return L
    for k in range(2):
        fread(0, k); tread(k)
    for i in range(3):
        fin = finish(i-1) if i else []
        for k in range(8):
            ls.need([("F", i, k), ("T", k)])
            for n in range(2):
                c = vr(acc(i, n), 16)
                a(f"v_mfma_f32_32x32x16_bf16 {c}, {vr(8+4*k,4)}, {vr(TP+8*k+4*n,4)}, {c}")
                if i and k == 3 and n == 0: a("s_nop 3")
                if k >= 3 and (k > 3 or n):
                    for x in fin[:3]: a(x)
                    fin = fin[3:]
            if i == 0 and k + 2 < 8:
                fread(0, k+2); tread(k+2)
            if i < 2 and k >= 2: fread(i+1, k-2)
            if i > 0 and k == 0:
                fread(i, 6); fread(i, 7)
        assert not fin
    a.stamp_mid(sm+1)
    a("s_nop 15")
    for x in finish(2): a(x)
    signal(0, 8)
    signal(1, 4)
    signal(2, 0)
```

```python
from common import *

MB_H, MB_QKV, MB_U, MB_O, MB_Y, MB_N = 1152, 1280, 128, 384, 640, 1344
MB_G = 832
MB_E = 896
MB_P = 896
def mb(i): return CNT_OFF + 256*i
SPIN_MAX = 0x40000

def wave_setup(a):
    a("v_lshrrev_b32 v1, 6, v0")
    a("v_and_b32 v0, 63, v0")
    a("s_nop 0")
    a("v_readfirstlane_b32 s52, v1")
    a("s_waitcnt lgkmcnt(0)")

def spin(a, srd, soff, target, vt, sleep=8):
    L = a.newlabel("poll"); Ld = a.newlabel("polld")
    a("s_mov_b32 s74, 0")
    a.label(L)
    a(f"s_buffer_load_dword s75, s[{srd}:{srd+3}], {soff} glc")
    a("s_add_u32 s74, s74, 1")
    a("s_waitcnt lgkmcnt(0)")
    a(f"s_cmp_ge_u32 s75, {target}")
    a(f"s_cbranch_scc1 {Ld}")
    a(f"s_sleep {sleep}")
    a(f"s_cmp_lt_u32 s74, {SPIN_MAX}")
    a(f"s_cbranch_scc1 {L}")
    a.label(Ld)

N_LATE = 24
def spin_init(a, vt, late=False):
    L = a.newlabel("ini"); Lr = a.newlabel("inir")
    off, tgt = (128, N_LATE) if late else (0, 1)
    a(f"s_buffer_load_dword s75, s[84:87], {off}")
    a("s_waitcnt lgkmcnt(0)")
    a(f"s_cmp_ge_u32 s75, {tgt}")
    a(f"s_cbranch_scc1 {L}")
    a(f"v_mov_b32 v{vt}, 0")
    a("s_mov_b32 s74, 0")
    a.label(Lr)
    a("s_sleep 6")
    a("s_mov_b64 exec, 1")
    a(f"buffer_load_dword v{vt+1}, v{vt}, s[84:87], 0 offen offset:{off} sc1")
    a("s_mov_b64 exec, -1")
    a("s_waitcnt vmcnt(0)")
    a(f"v_readfirstlane_b32 s75, v{vt+1}")
    a("s_add_u32 s74, s74, 1")
    a(f"s_cmp_ge_u32 s75, {tgt}")
    a(f"s_cbranch_scc1 {L}")
    a(f"s_cmp_lt_u32 s74, {SPIN_MAX}")
    a(f"s_cbranch_scc1 {Lr}")
    a.label(L)

def poll(a, sidx, target, vt=5, init=False, sleep=8):
    Ld = a.newlabel("pw")
    a("s_cmp_lg_u32 s52, 0")
    a(f"s_cbranch_scc1 {Ld}")
    if init: spin_init(a, vt, init == 'late')
    if sidx is not None:
        spin(a, 48, f"s{sidx}", target, vt, sleep=sleep)
    a.label(Ld)
    a("s_barrier")

def publish(a, sidx, nrep, vt=5, init=False, voff=None, ninstr=1, vm=0):
    L = a.newlabel("pub")
    if init:
        L0 = a.newlabel("pub")
        a("s_cmp_lg_u32 s52, 0")
        a(f"s_cbranch_scc1 {L0}")
        spin_init(a, vt, init == 'late')
        a.label(L0)
    a(f"s_waitcnt vmcnt({vm})")
    a("s_barrier")
    a("s_cmp_lg_u32 s52, 0")
    a(f"s_cbranch_scc1 {L}")
    if voff: voff(a, vt)
    else: a(f"v_lshlrev_b32 v{vt}, 8, v0")
    a(f"v_mov_b32 v{vt+1}, 1")
    if isinstance(nrep, str):
        a(f"s_mov_b32 exec_lo, {nrep}")
        a("s_mov_b32 exec_hi, 0")
    elif nrep <= 32:
        a(f"s_mov_b32 exec_lo, {((1 << nrep) - 1) & 0xffffffff}")
        a("s_mov_b32 exec_hi, 0")
    for i in range(ninstr):
        a(f"buffer_atomic_add v{vt+1}, v{vt}, s[48:51], s{sidx} offen sc1")
        if i + 1 < ninstr: a(f"s_add_u32 s{sidx}, s{sidx}, {64*256}")
    a("s_mov_b64 exec, -1")
    a.label(L)

def init_mailboxes(a, jreg):
    a("v_lshrrev_b32 v5, 3, v0")
    a("v_and_b32 v6, 7, v0")
    a("v_lshlrev_b32 v6, 4, v6")
    a("v_lshl_add_u32 v5, v5, 8, v6")
    for i in range(4): a(f"v_mov_b32 v{8+i}, 0")
    Le = a.newlabel("inie"); Lj = a.newlabel("inij")
    a(f"s_cmp_eq_u32 {jreg}, {N_LATE}")
    a(f"s_cbranch_scc1 {Le}")
    a(f"s_lshl_b32 s72, {jreg}, 2")
    a("s_add_u32 s72, s72, s52")
    a("s_lshl_b32 s72, s72, 11")
    a(f"s_add_u32 s72, s72, {mb(128)}")
    a("buffer_store_dwordx4 v[8:11], v5, s[48:51], s72 offen sc1")
    a("s_movk_i32 s73, 128")
    a(f"s_branch {Lj}")
    a.label(Le)
    a("s_mul_i32 s72, s52, 12288")
    a(f"s_add_u32 s72, s72, {mb(MB_H)}")
    for i in range(3):
        a("buffer_store_dwordx4 v[8:11], v5, s[48:51], s72 offen sc1")
        a("buffer_store_dwordx4 v[8:11], v5, s[48:51], s72 offen offset:2048 sc1")
        if i < 2: a("s_add_u32 s72, s72, 4096")
    a("s_mov_b32 s73, 0")
    a.label(Lj)
    a("buffer_load_dword v12, v8, s[84:87], 0 offen offset:64 sc1")
    a("s_waitcnt vmcnt(0)")
    a("s_barrier")
    L = a.newlabel("ini")
    a("s_cmp_lg_u32 s52, 0")
    a(f"s_cbranch_scc1 {L}")
    a("v_mov_b32 v6, 1")
    a("s_mov_b64 exec, 1")
    a("buffer_atomic_add v6, v8, s[84:87], s73 offen sc1")
    a("s_mov_b64 exec, -1")
    a.label(L)
```

```python
import sys
from common import *
import sync, k_front, k_mlp1, k_mlp1y, k_mlp2, k_attn, k_final, k_final2, k_mlp2f
from sync import mb, MB_U, MB_H, MB_QKV, MB_O, MB_Y, MB_G, MB_P

HEADER = open("cdna_kernels/" + NAME + ".s.ref").read().split("; Override launch geometry")[0]
N_WO = 18
W2_TOUCH = False
FRONT_ONLY = False
PARTNER = True
A_EXIT = False
PF1 = 0
UPOLL_ALL = True
HINT2 = 0
FUSED = True
INIT_LOW = 2
W1HEAD = True
PRE = 0
M1Y = True
COOP = False
COOP_H = False
COOP_U = False
BPRIO = 0
INIT_LATE = True
PFMODE = 'col'
PFH = False
SLP_H = 4
HEAD_PF = 0
CODE_PF = True
B_EXIT = False
DIAG = None
PF_AFTER_H = True
TLBW = 0
PFW1 = True
XW = 2
XWD = 1
LIST = True
NO_FINAL = False
PFD = 1
LN_WAIT = True
PF2 = 7
EARLY = 1
EARLY_FL = ''
PROMOTE = False
WAIT_QKV = True
HINT_AT = 3
SLP_HINT = 4
SLP_FIN = 2
W2_TAIL = 0
AUX_G0 = 16
AUX_NT = ''

def gen_main(a, name):
    a.kernel_begin(name)
    a("s_cmp_ge_u32 s2, 512")
    a("s_cbranch_scc1 L_end")
    a.load_kernargs()
    sync.wave_setup(a)
    a.srd(48, P_WS, WS_SIZE)
    a.srd(84, P_DBG, 256)
    a("s_cmp_ge_u32 s2, 256")
    a("s_cbranch_scc1 L_slotB")
    a("s_setprio 3")
    a("s_cmp_ge_u32 s2, 192")
    a("s_cbranch_scc1 L_ln")
    def hint2(a):
        L = a.newlabel("hint")
        a("s_cmp_lg_u32 s52, 0")
        a(f"s_cbranch_scc1 {L}")
        a("s_lshl_b32 s76, s2, 8")
        a(f"s_add_u32 s76, s76, {mb(MB_P)}")
        a("v_mov_b32 v8, 0")
        a("v_mov_b32 v9, 1")
        a("s_mov_b64 exec, 1")
        a("buffer_store_dword v9, v8, s[48:51], s76 offen offset:4 sc1")
        a("s_mov_b64 exec, -1")
        a.label(L)
    def pub_qkv(a):
        a("s_and_b32 s72, s56, 3")
        a("s_lshl_b32 s72, s72, 12")
        a("s_and_b32 s73, s55, 12")
        a("s_add_u32 s72, s72, s73")
        a(f"s_add_u32 s72, s72, {mb(MB_QKV)}")
        if HINT2 == 1: hint2(a)
        sync.publish(a, 72, 16, init=True)
        if HINT2 == 2: hint2(a)
    def hint(a):
        L = a.newlabel("hint")
        a("s_lshl_b32 s76, s52, 3")
        a("s_add_u32 s76, s76, s60")
        a(f"s_cmp_lg_u32 s76, {HINT_AT}")
        a(f"s_cbranch_scc1 {L}")
        a("s_lshl_b32 s76, s2, 8")
        a(f"s_add_u32 s76, s76, {mb(MB_P)}")
        a("v_mov_b32 v8, 0")
        a("v_mov_b32 v9, 1")
        a("s_mov_b64 exec, 1")
        a("buffer_store_dword v9, v8, s[48:51], s76 offen sc1")
        a("s_mov_b64 exec, -1")
        a.label(L)
    k_front.qkv_body(a, "s2", pub_qkv, hint if WAIT_QKV else None)
    a("s_branch L_attn")
    a.label("L_ln")
    a("s_sub_u32 s3, s2, 192")
    def pub_h(a):
        a("s_lshr_b32 s72, s58, 4")
        a("s_lshl_b32 s72, s72, 13")
        a(f"s_add_u32 s72, s72, {mb(MB_H)}")
        sync.publish(a, 72, 32, init=True)
    k_front.ln_body(a, "s3", pub_h)
    a.stamp_mid(6)
    k_front.gate_own(a)
    a(f"s_cmp_ge_u32 s3, {N_WO}")
    a("s_cbranch_scc1 L_nowo")
    k_front.wo_body(a, "s3")
    a.label("L_nowo")
    a(f"s_mov_b32 s72, {mb(MB_G)}")
    sync.publish(a, 72, 32, init='late')
    a.label("L_attn")
    a.stamp_mid(2)
    if FRONT_ONLY or A_EXIT: a("s_branch L_done")
    def dep_qkv(a):
        a("s_lshr_b32 s72, s61, 3")
        a("s_lshl_b32 s72, s72, 4")
        a("s_bfe_u32 s73, s2, 0x40003")
        a("s_add_u32 s72, s72, s73")
        a("s_lshl_b32 s72, s72, 8")
        a(f"s_add_u32 s79, s72, {mb(MB_QKV)}")
        a("s_lshr_b32 s73, s2, 6")
        a("s_lshl_b32 s73, s73, 2")
        a("s_add_u32 s72, s79, s73")
        sync.poll(a, 72, 12, vt=8, sleep=2, init='late')
        if HINT2 == 3: hint2(a)
    def dep_qkv2(a):
        L = a.newlabel("q2"); Ld = a.newlabel("q2d")
        a("s_mov_b32 s76, 0")
        a.label(L)
        a("s_buffer_load_dwordx4 s[72:75], s[48:51], s79 glc")
        a("s_add_u32 s76, s76, 1")
        a("s_waitcnt lgkmcnt(0)")
        a("s_min_u32 s72, s72, s73")
        a("s_min_u32 s74, s74, s75")
        a("s_min_u32 s72, s72, s74")
        a("s_cmp_ge_u32 s72, 12")
        a(f"s_cbranch_scc1 {Ld}")
        a("s_sleep 4")
        a(f"s_cmp_lt_u32 s76, {sync.SPIN_MAX}")
        a(f"s_cbranch_scc1 {L}")
        a.label(Ld)
    def dep_g(a):
        a("s_bfe_u32 s72, s2, 0x50003")
        a("s_lshl_b32 s72, s72, 8")
        a(f"s_add_u32 s72, s72, {mb(MB_G)}")
        sync.spin(a, 48, "s72", 64, 0)
    def pub_o_f(a):
        a("s_cmp_gt_u32 s61, 7")
        a("s_cselect_b32 s72, 1, 0")
        for hd in (14, 19, 24):
            a(f"s_cmp_gt_u32 s61, {hd}")
            a("s_addc_u32 s72, s72, 0")
        a("s_lshr_b32 s73, s2, 5")
        a("s_mul_i32 s73, s73, 5")
        a("s_add_u32 s72, s72, s73")
        a(f"s_mul_i32 s72, s72, {6*256}")
        a(f"s_add_u32 s72, s72, {mb(MB_O)}")
        a(f"s_lshr_b32 s73, {(1<<7)|(1<<14)|(1<<19)|(1<<24)}, s61")
        a("s_and_b32 s73, s73, 1")
        a("s_cselect_b32 s73, 0xfff, 63")
        sync.publish(a, 72, "s73")
    def pub_o(a):
        if FUSED: return pub_o_f(a)
        a("s_lshr_b32 s72, s2, 5")
        a("s_lshl_b32 s72, s72, 13")
        a("s_lshr_b32 s73, s61, 3")
        a("s_lshl_b32 s73, s73, 2")
        a("s_add_u32 s72, s72, s73")
        a(f"s_add_u32 s72, s72, {mb(MB_O)}")
        sync.publish(a, 72, 24)
    def last_extra(a):
        k_final2.wof_setup(a, "s2", 147)
        return [k_final2.wof_load(k, 147) for k in range(27)]
    TV = 140
    def tsetup(a):
        a.srd(80, P_W2, S*F*2)
        a("s_lshr_b32 s72, s2, 3")
        a("s_lshl_b32 s72, s72, 2")
        a("s_add_u32 s72, s72, s52")
        a("s_mul_i32 s73, s72, 205")
        a("s_lshr_b32 s73, s73, 11")
        a("s_mul_i32 s76, s73, 10")
        a("s_sub_u32 s72, s72, s76")
        a("s_and_b32 s76, s2, 7")
        a("s_mul_i32 s76, s76, 10")
        a("s_add_u32 s72, s72, s76")
        a("s_lshr_b32 s76, s72, 4")
        a("s_and_b32 s72, s72, 15")
        a(f"s_mul_i32 s76, s76, {928*4096}")
        a("s_lshl_b32 s72, s72, 8")
        a("s_add_u32 s76, s76, s72")
        a("s_lshl_b32 s72, s73, 17")
        a("s_add_u32 s76, s76, s72")
        a("s_cmp_ge_u32 s73, 12")
        a("s_cselect_b32 s82, 0, s82")
        a(f"v_lshrrev_b32 v{TV}, 1, v0")
        a(f"v_lshlrev_b32 v{TV}, 12, v{TV}")
        a(f"v_and_b32 v{TV+1}, 1, v0")
        a(f"v_lshl_add_u32 v{TV}, v{TV+1}, 7, v{TV}")
        a(f"v_add_u32 v{TV}, s76, v{TV}")
        a("s_mov_b32 s78, s73")
    def touch(a):
        a("s_cmp_ge_u32 s78, 29")
        a("s_cselect_b32 s82, 0, s82")
        a(f"buffer_load_dword v{TV+1}, v{TV}, s[80:83], 0 offen")
        a(f"v_add_u32 v{TV}, {12*32*4096}, v{TV}")
        a("s_add_u32 s78, s78, 12")
    k_attn.attn_body(a, "s2", dep_qkv, pub_o, sm=3, tsetup=tsetup if W2_TOUCH else None, touch=touch if W2_TOUCH else None, dep_g=dep_g, dep2=dep_qkv2, last_extra=None if FUSED else last_extra)
    a.stamp_mid(5)
    a("s_cmp_ge_u32 s2, 192")
    a("s_cbranch_scc1 L_done")
    if NO_FINAL: a("s_branch L_done")
    def dep_y(a, i):
        L = a.newlabel("y"); Ld = a.newlabel("yd")
        if i == 0:
            a("s_lshl_b32 s76, s54, 5")
            a("s_add_u32 s76, s76, s53")
            a("s_lshl_b32 s76, s76, 8")
            a(f"s_add_u32 s76, s76, {mb(MB_Y)}")
            a("s_mov_b32 s77, 0")
        else:
            a(f"s_cmp_ge_u32 s{72+i}, 5")
            a(f"s_cbranch_scc1 {Ld}")
        a.label(L)
        a("s_buffer_load_dwordx4 s[72:75], s[48:51], s76 glc")
        a("s_add_u32 s77, s77, 1")
        a("s_waitcnt lgkmcnt(0)")
        a(f"s_cmp_ge_u32 s{72+i}, 5")
        a(f"s_cbranch_scc1 {Ld}")
        if i == 0: a(f"s_sleep {SLP_FIN}")
        a(f"s_cmp_lt_u32 s77, {sync.SPIN_MAX}")
        a(f"s_cbranch_scc1 {L}")
        a.label(Ld)
        if i == 2: a.stamp_mid(7)
    def boxes(a):
        a("s_lshr_b32 s66, s53, 2")
        a("s_lshl_b32 s66, s66, 5")
        a("s_lshr_b32 s67, s2, 3")
        a("s_add_u32 s66, s66, s67")
        a("s_lshl_b32 s66, s66, 8")
        a("s_lshl_b32 s67, s52, 2")
        a("s_add_u32 s66, s66, s67")
        a(f"s_add_u32 s66, s66, {mb(MB_O)}")
        a("s_lshl_b32 s67, s54, 5")
        a("s_add_u32 s67, s67, s53")
        a("s_lshl_b32 s67, s67, 8")
        a(f"s_add_u32 s67, s67, {mb(MB_Y)}")
    if FUSED: k_final.final_body(a, "s2", dep_y)
    else: k_final2.final_body(a, "s2", boxes, sync.SPIN_MAX)
    a("s_branch L_done")
    a.label("L_slotB")
    a("s_sub_u32 s3, s2, 256")
    if INIT_LOW == 1:
        a(f"s_cmp_gt_u32 s3, {sync.N_LATE}")
        a("s_cbranch_scc1 L_noinit")
        a("s_mov_b32 s78, s3")
    elif INIT_LOW == 2:
        a("s_cmp_eq_u32 s3, 255")
        a(f"s_cselect_b32 s78, {sync.N_LATE}, s3")
        a(f"s_cmp_eq_u32 s3, {sync.N_LATE}")
        a("s_cselect_b32 s78, 99, s78")
        a(f"s_cmp_gt_u32 s78, {sync.N_LATE}")
        a("s_cbranch_scc1 L_noinit")
    else:
        a(f"s_cmp_lt_u32 s3, {255 - sync.N_LATE}")
        a("s_cbranch_scc1 L_noinit")
        a(f"s_sub_u32 s78, s3, {255 - sync.N_LATE}")
    a("s_setprio 3")
    sync.init_mailboxes(a, "s78")
    a("s_setprio 0")
    a.stamp_mid(0)
    a.label("L_noinit")
    if CODE_PF:
        Lc = a.newlabel("cpf")
        a("s_lshr_b32 s72, s3, 4")
        a("s_cmp_lg_u32 s72, 2")
        a(f"s_cbranch_scc1 {Lc}")
        a("s_getpc_b64 s[80:81]")
        a.label("L_pc")
        a(f"s_sub_u32 s80, s80, L_pc - {name}")
        a("s_subb_u32 s81, s81, 0")
        a(f"s_mov_b32 s82, L_code_end - {name}")
        a("s_mov_b32 s83, 0x00020000")
        a("s_bfe_u32 s72, s3, 0x10003")
        a("s_lshl_b32 s72, s72, 2")
        a("s_add_u32 s72, s72, s52")
        a("s_lshl_b32 s72, s72, 13")
        a("v_lshlrev_b32 v5, 7, v0")
        a("v_add_u32 v5, s72, v5")
        a("buffer_load_dword v58, v5, s[80:83], 0 offen")
        a.label(Lc)
    if WAIT_QKV:
        Lz = a.newlabel("hz")
        a("s_cmp_lg_u32 s52, 0")
        a(f"s_cbranch_scc1 {Lz}")
        a("s_lshl_b32 s72, s3, 8")
        a(f"s_add_u32 s72, s72, {mb(MB_P)}")
        a("v_lshlrev_b32 v5, 4, v0")
        for i in range(4): a(f"v_mov_b32 v{8+i}, 0")
        a("s_mov_b64 exec, 0xff")
        a("buffer_store_dwordx4 v[8:11], v5, s[48:51], s72 offen sc1")
        a("s_mov_b64 exec, -1")
        a.label(Lz)
    if XW == 1: k_front.xw_touch(a, "s3")
    if XW == 2: k_front.xw_touch2(a, "s3", XWD)
    if W1HEAD:
        Lh = a.newlabel("w1h")
        a("s_cmp_lt_u32 s3, 192")
        a(f"s_cbranch_scc1 {Lh}")
        a("s_cmp_ge_u32 s53, 30")
        a(f"s_cbranch_scc1 {Lh}")
        a.srd(80, P_W1, S*F*2)
        a("s_mul_i32 s57, s53, 205")
        a("s_lshr_b32 s57, s57, 10")
        a("s_mul_i32 s58, s57, 5")
        a("s_sub_u32 s58, s53, s58")
        a("s_and_b32 s56, s3, 7")
        a("s_mul_i32 s56, s56, 9")
        a("s_lshr_b32 s56, s56, 1")
        a("s_add_u32 s56, s56, s58")
        a("s_lshl_b32 s56, s56, 8")
        a(f"s_mul_i32 s57, s57, {32*F*2}")
        a("s_add_u32 s56, s56, s57")
        a("v_lshrrev_b32 v5, 1, v0")
        a(f"v_mul_u32_u24 v5, {F*2}, v5")
        a("v_and_b32 v6, 1, v0")
        a("v_lshl_add_u32 v5, v6, 7, v5")
        a("buffer_load_dword v62, v5, s[80:83], s56 offen")
        a.label(Lh)
    if COOP:
        Le = a.newlabel("head")
        a(f"s_cmp_ge_u32 s3, {k_mlp1.MLP1_GRID}")
        a(f"s_cbranch_scc1 {Le}")
        a.srd(80, P_W1, S*F*2)
        a("s_and_b32 s66, s3, 7")
        a("s_mul_i32 s66, s66, 27")
        a("s_lshr_b32 s67, s3, 3")
        a("s_add_u32 s67, s67, s66")
        a("s_mul_i32 s70, s67, 171")
        a("s_lshr_b32 s70, s70, 10")
        a("s_mul_i32 s68, s70, 6")
        a("s_sub_u32 s69, s67, s68")
        a("s_lshl_b32 s66, s70, 8")
        a("s_lshl_b32 s68, s52, 4")
        a("s_add_u32 s67, s69, s68")
        a(f"s_mul_i32 s67, s67, {32*F*2}")
        a("s_add_u32 s66, s66, s67")
        a("v_lshrrev_b32 v5, 1, v0")
        a(f"v_mul_u32_u24 v5, {F*2}, v5")
        a("v_and_b32 v6, 1, v0")
        a("v_lshl_add_u32 v5, v6, 7, v5")
        a("buffer_load_dword v62, v5, s[80:83], s66 offen")
        a("s_cmp_ge_u32 s69, 3")
        a(f"s_mov_b32 s67, {3*32*F*2}")
        a(f"s_cselect_b32 s67, {(-3*32*F*2) & 0xffffffff}, s67")
        a("s_add_u32 s67, s67, s66")
        a("s_lshr_b32 s68, 0x80402010, s70")
        a("s_cmp_lt_u32 s70, 32")
        a("s_cselect_b32 s68, s68, 0")
        a("s_and_b32 s68, s68, 1")
        a(f"s_cbranch_scc0 {Le}")
        a("buffer_load_dword v63, v5, s[80:83], s67 offen")
        a.label(Le)
    if TLBW:
        a("s_lshr_b32 s53, s3, 3")
        a("s_lshl_b32 s53, s53, 2")
        a("s_add_u32 s53, s53, s52")
        a("s_lshl_b32 s53, s53, 6")
        a("v_add_u32 v5, s53, v0")
        a(f"v_lshlrev_b32 v5, {TLBW}, v5")
        a.srd(80, P_W1, S*F*2)
        a("buffer_load_dword v62, v5, s[80:83], 0 offen nt")
        a.srd(80, P_W2, S*F*2)
        a("buffer_load_dword v63, v5, s[80:83], 0 offen nt")
        a.srd(80, P_WS, CNT_OFF)
        a("buffer_load_dword v59, v5, s[80:83], 0 offen nt")
    a(f"s_setprio {BPRIO}")
    if INIT_LATE:
        a(f"s_cmp_lt_u32 s3, {k_mlp1.MLP1_GRID}")
        a("s_cbranch_scc1 L_mlp1")
    a("s_waitcnt vmcnt(0)")
    sync.poll(a, None, 0, vt=5, init=True)
    a.stamp_mid(5)
    a("s_cmp_lt_u32 s3, 192")
    a("s_cbranch_scc1 L_mlp1")
    if PF_AFTER_H:
        a("s_bfe_u32 s72, s3, 0x20001")
        a("s_lshl_b32 s72, s72, 5")
        a("s_and_b32 s73, s3, 31")
        a("s_add_u32 s72, s72, s73")
        a("s_lshl_b32 s72, s72, 8")
        a(f"s_add_u32 s72, s72, {mb(MB_H)}")
        sync.poll(a, 72, 16, vt=5, sleep=4)
    a.srd(40, P_W1, S*F*2)
    a("s_sub_u32 s67, 255, s3")
    a(f"s_mul_i32 s66, s52, {512*F*2}")
    a("s_lshl_b32 s68, s67, 13")
    a("s_add_u32 s66, s66, s68")
    a("v_lshlrev_b32 v5, 7, v0")
    a("v_add_u32 v5, s66, v5")
    for r in range(PF1):
        a(f"buffer_load_dword v{60+(r&1)}, v5, s[40:43], 0 offen")
        a(f"v_add_u32 v5, {64*8192}, v5")
        if r >= PFD: a(f"s_waitcnt vmcnt({PFD})")
    a(f"s_cmp_ge_u32 s3, {k_mlp1.MLP1_GRID}")
    a("s_cbranch_scc1 L_aux")
    a.label("L_mlp1")
    if B_EXIT: a("s_branch L_done")
    def dep_h(a):
        a("s_lshl_b32 s72, s52, 5")
        a("s_and_b32 s73, s3, 31")
        a("s_add_u32 s72, s72, s73")
        a("s_lshl_b32 s72, s72, 8")
        a(f"s_add_u32 s72, s72, {mb(MB_H)}")
        sync.spin(a, 48, "s72", 16, 5, sleep=SLP_H)
    def dep_h_touch(a, part=0):
        if INIT_LATE and part != 2:
            a("s_waitcnt vmcnt(0)")
            sync.poll(a, None, 0, vt=12, init=True)
        if part == 1: return
        dep_h(a)
        a.stamp_mid(5)
        if COOP_H:
            a("s_and_b32 s72, s3, 7")
            a("s_mul_i32 s72, s72, 9")
            a("s_lshr_b32 s72, s72, 1")
            a("s_sub_u32 s72, s66, s72")
            a("s_lshl_b32 s72, s72, 6")
            a("v_add_u32 v60, s72, v0")
            a("v_mul_u32_u24 v61, 2731, v60")
            a("v_lshrrev_b32 v61, 16, v61")
            a("v_mul_u32_u24 v61, 120, v61")
            a("v_add_lshl_u32 v60, v60, v61, 7")
            a(f"buffer_load_dword v61, v60, s[48:51], s{k_mlp1.S_F} offen sc1")
    def hold(a, word=0):
        L = a.newlabel("hold"); Ld = a.newlabel("holdd")
        a("s_cmp_ge_u32 s3, 192")
        a(f"s_cbranch_scc1 {Ld}")
        a("s_lshl_b32 s72, s3, 8")
        a(f"s_add_u32 s72, s72, {mb(MB_P) + 4*word}")
        a("s_and_b32 s73, s3, 63")
        a("s_lshl_b32 s73, s73, 8")
        a(f"s_add_u32 s73, s73, {mb(MB_QKV)}")
        a("s_mov_b32 s74, 0")
        a.label(L)
        a("s_buffer_load_dword s75, s[48:51], s72 glc")
        a("s_add_u32 s74, s74, 1")
        a("s_waitcnt lgkmcnt(0)")
        a("s_cmp_lg_u32 s75, 0")
        a(f"s_cbranch_scc1 {Ld}")
        a("s_sleep 4")
        a("s_and_b32 s75, s74, 15")
        a(f"s_cbranch_scc1 {L}")
        a("s_buffer_load_dword s75, s[48:51], s73 glc")
        a("s_waitcnt lgkmcnt(0)")
        a("s_cmp_ge_u32 s75, 12")
        a(f"s_cbranch_scc1 {Ld}")
        a(f"s_cmp_lt_u32 s74, {sync.SPIN_MAX}")
        a(f"s_cbranch_scc1 {L}")
        a.label(Ld)
    def w2_tail(a):
        a.srd(80, P_W2, S*F*2)
        a("s_lshr_b32 s72, s3, 3")
        a("s_mul_i32 s73, s72, 86")
        a("s_lshr_b32 s73, s73, 8")
        a("s_mul_i32 s76, s73, 3")
        a("s_sub_u32 s72, s72, s76")
        a("s_and_b32 s76, s3, 7")
        a("s_mul_i32 s76, s76, 10")
        a("s_add_u32 s73, s73, s76")
        a("s_lshr_b32 s76, s73, 4")
        a("s_and_b32 s73, s73, 15")
        a(f"s_mul_i32 s76, s76, {928*4096}")
        a("s_lshl_b32 s73, s73, 8")
        a("s_add_u32 s76, s76, s73")
        a("s_lshl_b32 s72, s72, 2")
        a("s_add_u32 s72, s72, s52")
        a(f"s_add_u32 s72, s72, {29 - 12*W2_TAIL}")
        a("s_lshl_b32 s72, s72, 17")
        a("s_add_u32 s76, s76, s72")
        a("v_lshrrev_b32 v60, 1, v0")
        a("v_lshlrev_b32 v60, 12, v60")
        a("v_and_b32 v61, 1, v0")
        a("v_lshl_add_u32 v60, v61, 7, v60")
        a("v_add_u32 v60, s76, v60")
        for e in range(W2_TAIL):
            a(f"buffer_load_dword v{61+e}, v60, s[80:83], 0 offen")
            a(f"v_add_u32 v60, {12*32*4096}, v60")
    def checks(a, wave):
        Lg = a.newlabel("g")
        a(f"s_cmp_lg_u32 s52, {wave}")
        a(f"s_cbranch_scc1 {Lg}")
        sync.spin_init(a, 14, True)
        a("s_bfe_u32 s73, s2, 0x50003")
        a("s_lshl_b32 s73, s73, 8")
        a(f"s_add_u32 s73, s73, {mb(MB_G)}")
        sync.spin(a, 48, "s73", 64, 0)
        a.label(Lg)
    def pub_u(a, part):
        if part == 0:
            a("s_mul_i32 s18, s66, 565")
            a("s_lshr_b32 s18, s18, 12")
            a("s_lshr_b32 s19, s67, 1")
            a("s_mul_i32 s19, s19, 5")
            a("s_add_u32 s18, s18, s19")
            a("s_lshl_b32 s18, s18, 12")
            a(f"s_add_u32 s18, s18, {mb(MB_U)}")
            a("s_lshr_b32 s19, 0x204080, s66")
            a("s_cmp_lt_u32 s66, 32")
            a("s_cselect_b32 s19, s19, 0")
            a("s_and_b32 s19, s19, 1")
            a("s_cselect_b32 s19, -1, 0xffff")
        else:
            checks(a, 1)
            sync.publish(a, 18, "s19", vt=14)
    def early2(a):
        a("s_barrier")
        k_mlp2f.mlp2_body(a, "s3", 3, None, None, None, part=1)
    (k_mlp1y if M1Y else k_mlp1).mlp1_body(a, "s3", dep_h_touch, pub_u, sm=0, epi=early2, hold=hold if WAIT_QKV else None, hold2=(lambda a: hold(a, 1)) if HINT2 else None)
    a.stamp_mid(2)
    a("s_branch L_mlp2")
    a.label("L_aux")
    if B_EXIT: a("s_branch L_done")
    if PFMODE == "col":
        a("s_and_b32 s66, s3, 7")
        a("s_mul_i32 s66, s66, 9")
        a("s_lshr_b32 s66, s66, 1")
        a("s_lshr_b32 s67, s67, 3")
        a("s_add_u32 s66, s66, s67")
        a("s_lshl_b32 s66, s66, 8")
        a(f"s_mul_i32 s69, s52, {(32 if M1Y else 512)*F*2}")
        a("s_add_u32 s66, s66, s69")
        a("v_lshrrev_b32 v5, 1, v0")
        a(f"v_mul_u32_u24 v5, {F*2}, v5")
        a("v_and_b32 v6, 1, v0")
        a("v_lshl_add_u32 v5, v6, 7, v5")
        if PFH:
            dep_h(a)
            a(f"s_mul_i32 s69, s52, {32*18*1024}")
            a("s_lshl_b32 s70, s67, 13")
            a("s_add_u32 s69, s69, s70")
            a(f"s_add_u32 s69, s69, {HT_OFF}")
            a("v_lshlrev_b32 v7, 7, v0")
        g0 = 6 if COOP else 0
        a(f"s_add_u32 s66, s66, {g0*32*F*2}")
        if PFH and COOP_H: a(f"s_add_u32 s69, s69, {12*18*1024}")
        for n in range(16 - g0):
            a(f"buffer_load_dword v{60+(n&1)}, v5, s[40:43], s66 offen")
            a(f"s_add_u32 s66, s66, {(128 if M1Y else 32)*F*2}")
            if PFH and n < (9 if COOP_H else 14):
                a(f"buffer_load_dword v{62+(n&1)}, v7, s[48:51], s69 offen sc1")
                a(f"s_add_u32 s69, s69, {5*8192}")
            a(f"s_waitcnt vmcnt({PFD})")
        a.stamp_mid(1)
        a.srd(40, P_W2, S*F*2)
        a("s_lshl_b32 s68, s67, 2")
        a("s_add_u32 s68, s68, s52")
        a("s_and_b32 s66, s3, 7")
        a("s_mul_i32 s66, s66, 10")
        a("s_lshr_b32 s69, s68, 1")
        a("s_add_u32 s66, s66, s69")
        a("s_lshr_b32 s67, s66, 4")
        a("s_and_b32 s66, s66, 15")
        a(f"s_mul_i32 s67, s67, {928*4096}")
        a("s_lshl_b32 s66, s66, 8")
        a("s_add_u32 s67, s67, s66")
        a("s_and_b32 s66, s52, 1")
        a("s_lshl_b32 s66, s66, 17")
        a("s_add_u32 s67, s67, s66")
        a("v_lshrrev_b32 v5, 1, v0")
        a("v_lshlrev_b32 v5, 12, v5")
        a("v_and_b32 v6, 1, v0")
        a("v_lshl_add_u32 v5, v6, 7, v5")
        a("v_add_u32 v5, s67, v5")
        for n in range(PF2):
            a(f"buffer_load_dword v{60+(n&1)}, v5, s[40:43], 0 offen")
            a(f"v_add_u32 v5, {64*4096}, v5")
            a(f"s_waitcnt vmcnt({PFD})")
    else:
        for n in range(-(-(576 - 64*PF1)//40) if PFW1 else 0):
            a(f"buffer_load_dword v{60+(n&1)}, v5, s[40:43], 0 offen")
            a(f"v_add_u32 v5, {40*8192}, v5")
            a(f"s_waitcnt vmcnt({PFD})")
        a.stamp_mid(1)
        a.srd(40, P_W2, S*F*2)
        a("s_lshl_b32 s68, s67, 2")
        a("s_add_u32 s68, s68, s52")
        a("s_lshr_b32 s66, s68, 5")
        a("s_and_b32 s68, s68, 31")
        a(f"s_mul_i32 s66, s66, {928*4096}")
        a("s_lshl_b32 s68, s68, 13")
        a("s_add_u32 s66, s66, s68")
        a("v_lshlrev_b32 v5, 7, v0")
        a("v_add_u32 v5, s66, v5")
        for n in range(PF2):
            a(f"buffer_load_dword v{60+(n&1)}, v5, s[40:43], 0 offen")
            a(f"v_add_u32 v5, {32*8192}, v5")
            a(f"s_waitcnt vmcnt({PFD})")
    a("s_waitcnt vmcnt(0)")
    a.stamp_mid(2)
    a(f"s_cmp_ge_u32 s3, {k_mlp2.MLP2_GRID}")
    a("s_cbranch_scc1 L_done")
    k_mlp2f.mlp2_body(a, "s3", 3, None, None, None, part=1)
    checks(a, 0)
    a("s_barrier")
    a.label("L_mlp2")
    if k_mlp1y.PST: a("s_branch L_done")
    def dep_u(a):
        a("s_mul_i32 s73, s67, 5")
        a("s_add_u32 s73, s73, s69")
        a("s_lshl_b32 s73, s73, 4")
        a("s_add_u32 s73, s73, s66")
        a("s_lshl_b32 s73, s73, 8")
        a(f"s_add_u32 s73, s73, {mb(MB_U)}")
        a("s_cmp_eq_u32 s69, 4")
        a("s_cselect_b32 s76, 14, 16")
        (sync.spin(a, 48, "s73", "s76", 8, sleep=1) if UPOLL_ALL else sync.poll(a, 73, "s76", vt=8, sleep=2))
        if COOP_U:
            a("s_lshr_b32 s70, s3, 3")
            a("s_mul_i32 s70, s70, 86")
            a("s_lshr_b32 s70, s70, 8")
            a("s_mul_i32 s73, s52, 10")
            a("s_add_u32 s70, s70, s73")
            a("s_lshl_b32 s70, s70, 6")
            a("s_add_u32 s70, s70, 288")
            a("v_add_u32 v60, s70, v0")
            a("v_min_u32 v60, 2783, v60")
            a("v_mul_u32_u24 v61, 5462, v60")
            a("v_lshrrev_b32 v61, 18, v61")
            a("v_mul_u32_u24 v61, 96, v61")
            a("v_add_lshl_u32 v60, v60, v61, 7")
            a(f"s_mul_i32 s70, s69, {58*18*1024}")
            a("s_mul_i32 s73, s67, 6144")
            a("s_add_u32 s70, s70, s73")
            a(f"s_add_u32 s70, s70, {U_OFF}")
            a("s_mov_b32 s77, s70")
    def ybox(a):
        a("s_lshl_b32 s76, s67, 1")
        a("s_add_u32 s76, s76, s71")
        a("s_lshl_b32 s76, s76, 5")
        a("s_lshl_b32 s70, s66, 1")
        a("s_add_u32 s76, s76, s70")
        a("s_add_u32 s76, s76, s72")
        a("s_lshl_b32 s76, s76, 8")
        a(f"s_add_u32 s76, s76, {mb(MB_Y)}")
    def dep_o(a, block):
        if block == "look":
            a("v_readfirstlane_b32 s75, v57")
            a("s_lshl_b32 s76, s53, 1")
            a("s_cmp_ge_u32 s75, s76")
            a("s_cselect_b32 s79, 1, 0")
            return
        a("s_lshr_b32 s73, s66, 1")
        a("s_mul_i32 s73, s73, 5")
        a("s_add_u32 s73, s73, s69")
        a("s_mul_i32 s73, s73, 6")
        a("s_lshl_b32 s70, s67, 1")
        a("s_add_u32 s73, s73, s70")
        a("s_and_b32 s70, s66, 1")
        a("s_add_u32 s73, s73, s70")
        a("s_lshl_b32 s73, s73, 8")
        a(f"s_add_u32 s73, s73, {mb(MB_O)}")
        a("s_lshl_b32 s76, s53, 1")
        if block:
            sync.spin(a, 48, "s73", "s76", 8, sleep=2)
            if not k_mlp1.EPIST: a.stamp_mid(6)
        else:
            a("v_mov_b32 v56, 0")
            a("s_mov_b64 exec, 1")
            a("buffer_load_dword v57, v56, s[48:51], s73 offen sc1")
            a("s_mov_b64 exec, -1")
    if FUSED: k_mlp2f.mlp2_body(a, "s3", 3, dep_u, dep_o, ybox, part=2)
    else: k_mlp2.mlp2_body(a, "s3", 3, dep_u, ybox)
    a.label("L_done")
    if DIAG is not None:
        wg, slot, kind = DIAG
        Ld = a.newlabel("diag"); Lw = a.newlabel("diagw")
        a(f"s_cmp_lg_u32 s2, {wg}")
        a(f"s_cbranch_scc1 {Ld}")
        a("s_waitcnt vmcnt(0)")
        if slot == "end":
            a.stamp_mid(0); slot = 0
        if slot is None:
            a("s_mov_b32 s70, 0")
        elif kind == "t":
            a(f"s_sub_u32 s70, s{4+slot}, s88")
            a("s_mul_i32 s70, s70, 10")
        else:
            a(f"s_lshr_b32 s70, s{93+slot}, 1")
        a("s_add_u32 s70, s70, 20000")
        a.label(Lw)
        a("s_sleep 1")
        a("s_memrealtime s[90:91]")
        a("s_waitcnt lgkmcnt(0)")
        a("s_sub_u32 s71, s90, s88")
        a("s_cmp_lt_u32 s71, s70")
        a(f"s_cbranch_scc1 {Lw}")
        a.label(Ld)
    a.end()
    a.label("L_end")
    a("s_endpgm")
    a.label("L_code_end")

def build(stamp=False):
    a = Asm()
    a.stamp = stamp
    fin = NAME + "_kernel"
    out = HEADER
    out += (f"; @launch kernel={fin} grid=(512,1,1) block=(256,1,1) lds=81920\n" if LIST else "; @launch grid=(512,1,1) block=(256,1,1) lds=81920\n")
    out += '.amdgcn_target "amdgcn-amd-amdhsa--gfx950"\n.text\n'
    gen_main(a, fin)
    if PRE:
        out = out.replace("; @launch kernel=", "; @launch kernel=pre_kernel grid=(256,1,1) block=(256,1,1) lds=0\n; @launch kernel=", 1)
        st = a.stamp; a.stamp = False
        a.kernel_begin("pre_kernel")
        if PRE > 1:
            a("s_cmp_ge_u32 s2, 256")
            a("s_cbranch_scc1 L_pre_end")
            a.load_kernargs()
            sync.wave_setup(a)
            k_front.xw_touch(a, "s2")
            a("s_getpc_b64 s[80:81]")
            a.label("L_pc2")
            a(f"s_sub_u32 s80, s80, L_pc2 - {fin}")
            a("s_subb_u32 s81, s81, 0")
            a(f"s_mov_b32 s82, L_code_end - {fin}")
            a("s_mov_b32 s83, 0x00020000")
            a("s_lshr_b32 s72, s2, 3")
            a("s_lshl_b32 s72, s72, 2")
            a("s_add_u32 s72, s72, s52")
            a("s_lshl_b32 s72, s72, 13")
            a("v_lshlrev_b32 v5, 7, v0")
            a("v_add_u32 v5, s72, v5")
            a("buffer_load_dword v58, v5, s[80:83], 0 offen")
            a("s_waitcnt vmcnt(0)")
            a.label("L_pre_end")
        a("s_endpgm")
        a.stamp = st
    out += a.text()
    out += '.section .rodata,"a"\n'
    if PRE: out += ".p2align 6\n" + descriptor("pre_kernel", 64, None)
    out += ".p2align 6\n" + descriptor(fin, 256, None)
    return out

if __name__ == "__main__":
    open("main.s", "w").write(build())
    open("stamp.s", "w").write(build(True))
    open("main_l.s", "w").write(build("lite"))
    LIST = False
    open("final.s", "w").write(build())
    LIST = True
    VARS = eval(open("vars.txt").read())
    import copy
    for nm, kv in VARS.items():
        saved = {}
        for k, v in kv.items():
            mod, name = (globals()[k.split(".")[0]].__dict__, k.split(".")[1]) if "." in k else (globals(), k)
            saved[k] = (mod, name, mod[name]); mod[name] = v
        open(f"gen/{nm}.s", "w").write(build(False))
        open(f"gen/{nm}_s.s", "w").write(build(True))
        open(f"gen/{nm}_l.s", "w").write(build("lite"))
        for mod, name, v in saved.values(): mod[name] = v
    print("wrote")
```

```python
from common import *

ATTN_GRID = 256
SKIP = False
CH = 16*KV_RS
ATTN_LDS = 2*CH + 64

VK0, VK1, VV, VDM = 1, 2, 3, 4
VST, VWR, VWC = 144, 145, 146
CONST = 2*CH + 64
Q0 = [8, 12]; Q1 = [16, 18]
K0 = [20, 24]; K1 = [28, 30]
V = [32, 40]
P = [48, 56]
Sx = [64, 80]
O = [96, 112]
TMP = 128
NV_ATTN = 144
S_KV, S_C, S_ATT, S_VM = 54, 55, 56, 58

def dma_chunk(a, sbuf, soff):
    for i in range(9):
        a(f"s_add_u32 m0, s{sbuf}, {i*4096}")
        a(f"s_add_u32 s60, s{soff}, {i*4096}")
        a(f"buffer_load_dwordx4 v{VDM}, s[48:51], s60 offen sc1 lds")

def qk(a, which, aq, kb):
    s = vr(Sx[aq], 16)
    if which == 0:
        a(f"v_mfma_f32_32x32x16_bf16 {s}, {vr(K0[kb],4)}, {vr(Q0[aq],4)}, 0")
    else:
        a(f"v_mfma_f32_32x32x8_bf16 {s}, {vr(K1[kb],2)}, {vr(Q1[aq],2)}, {s}")

def pv(a, which, aq, vb):
    o = vr(O[aq], 16)
    a(f"v_mfma_f32_32x32x16_bf16 {o}, {vr(V[vb]+4*which,4)}, {vr(P[aq]+4*which,4)}, {o}")

def read_k(a, kb, rec):
    a(f"ds_read_b128 {vr(K0[kb],4)}, v{VK0} offset:{rec*KV_RS}")
    a(f"ds_read_b32 v{K1[kb]}, v{VK1} offset:{rec*KV_RS}")

def read_v(a, vb, rec):
    for x in V_FILL(vb, rec): a(x)

def expq(a, aq, q, fill=()):
    fill = list(fill)
    for e in range(4):
        r = Sx[aq] + 4*q + e
        a(f"v_exp_f32 v{r}, v{r}")
        if fill: a(fill.pop(0))
    assert not fill
    for c in range(2):
        r = Sx[aq] + 4*q + 2*c
        a(f"v_cvt_pk_bf16_f32 v{P[aq]+2*q+c}, v{r}, v{r+1}")

def block(a, kt, aq, rec=None, do_qk=True, dma=None, extra=None):
    an = 1 - aq
    kq = (kt + aq) & 1
    vb = (kt - 1 + aq) & 1
    nb = (kt + 1) & 1
    f0 = []
    if rec is not None:
        if aq == 0:
            f0 = [f"ds_read_b128 {vr(K0[nb],4)}, v{VK0} offset:{rec*KV_RS}", f"ds_read_b32 v{K1[nb]}, v{VK1} offset:{rec*KV_RS}"]
        else:
            f0 = V_FILL(nb, rec)
    if NOLDS: f0 = []
    if aq == 1 and MODE != 1:
        a("s_waitcnt lgkmcnt(0)")
    ms = [lambda: qk(a, 0, an, kq) if do_qk else None, lambda: qk(a, 1, an, kq) if do_qk else None,
          lambda: pv(a, 0, an, vb), lambda: pv(a, 1, an, vb)]
    if MODE == 3:
        ops = []
        for q in range(4):
            for e in range(4): ops.append((8, f"v_exp_f32 v{Sx[aq]+4*q+e}, v{Sx[aq]+4*q+e}"))
            for c in range(2):
                r = Sx[aq] + 4*q + 2*c
                ops.append((4, f"v_cvt_pk_bf16_f32 v{P[aq]+2*q+c}, v{r}, v{r+1}"))
        ex = [[], [], [], []]
        for n, x in enumerate(f0): ex[n].append(x)
        pre = 4 if aq == 0 else 0
        total = 160 + 4*len(f0) + pre
        done = 0; i = 0
        for q in range(4):
            ms[q]()
            for x in ex[q]: a(x); done += 4
            lim = total*(q+1)/4 if q < 3 else 1e9
            while i < len(ops) and done + ops[i][0]/2 <= lim:
                a(ops[i][1]); done += ops[i][0]; i += 1
        return
    for q in range(4):
        ms[q]()
        fl = []
        if dma is not None and q == 2:
            a(f"s_add_u32 m0, s67, {dma*4096}")
            a(f"s_add_u32 s60, s66, {dma*4096}")
        if dma is not None and q == 3:
            a(f"buffer_load_dwordx4 v{VDM}, s[80:83], s60 offen sc1 lds")
        if extra and q == 2:
            for x in extra: a(x)
        if MODE == 0:
            if q == 0:
                for x in f0: a(x)
        elif MODE == 1:
            if q == 0: fl = f0
            if q == 3 and aq == 0: fl = ["s_waitcnt lgkmcnt(0)"]
        elif MODE == 2:
            if q < len(f0): a(f0[q])
        expq(a, aq, q, fl)

MODE = 0
PROST = False
AST = False
K2 = 2
SPREAD = True
NOLDS = False
SPREAD_V = True
def V_FILL(vb, rec):
    return [f"ds_read_b128 {vr(V[vb],4)}, v{VV}",
            f"ds_read_b128 {vr(V[vb]+4,4)}, v{VV} offset:576",
            f"v_add_u32 v{VV}, v{VV}, v{VST}"]

def set_m(a, aq, m):
    t = TMP
    a(f"v_mov_b32 v{t}, v{m}")
    a("s_nop 1")
    a(f"v_permlane32_swap_b32 v{m}, v{t}")
    a("s_nop 1")
    a(f"v_max_f32 v{m}, v{m}, v{t}")
    a(f"v_sub_f32 v{m}, 0, v{m}")
    a(f"v_and_b32 v{t}, 0xffff0000, v{m}")
    a(f"v_sub_f32 v{m}, v{m}, v{t}")
    a(f"v_and_b32 v{t+1}, 0xffff0000, v{m}")
    a(f"v_sub_f32 v{m}, v{m}, v{t+1}")
    a(f"v_lshrrev_b32 v{t}, 16, v{t}")
    a(f"v_or_b32 v{t}, v{t}, v{t+1}")
    a(f"v_lshrrev_b32 v{m}, 16, v{m}")
    a(f"v_cmp_gt_u32 vcc, 32, v0")
    a("s_nop 1")
    a(f"v_cndmask_b32 v{Q1[aq]+1}, v{m}, v{t}, vcc")

def tile_max(a, aq, m, first):
    s = Sx[aq]
    if first:
        a(f"v_max3_f32 v{m}, v{s}, v{s+1}, v{s+2}")
        a(f"v_max_f32 v{m}, v{m}, v{s+3}")
        st = 4
    else:
        st = 0
    for e in range(st, 16, 2):
        a(f"v_max3_f32 v{m}, v{m}, v{s+e}, v{s+e+1}")

def attn_body(a, wgreg, dep, pub, sm=0, tsetup=None, touch=None, dep_g=None, dep2=None, last_extra=None):
    a(f"s_and_b32 s61, {wgreg}, 7")
    a("s_lshl_b32 s61, s61, 2")
    a(f"s_bfe_u32 s62, {wgreg}, 0x20003")
    a("s_add_u32 s61, s61, s62")
    a(f"s_lshr_b32 s62, {wgreg}, 5")
    a("s_lshl_b32 s62, s62, 3")
    a("s_lshl_b32 s63, s52, 1")
    a("s_add_u32 s62, s62, s63")
    a(f"s_mul_i32 s{S_KV}, s61, {64*KV_RS}")
    a(f"s_add_u32 s{S_KV}, s{S_KV}, {KV_OFF}")
    a("s_lshl_b32 s64, s52, 10")
    a(f"s_add_u32 s65, s64, {CH}")
    a(f"v_lshlrev_b32 v5, 4, v0")
    a(f"v_add_u32 v{VDM}, s64, v5")
    a("s_lshl_b32 s63, s61, 6")
    a("s_add_u32 s63, s63, s62")
    a(f"s_mul_i32 s63, s63, {QR_RS}")
    a(f"s_add_u32 s63, s63, {QR_OFF}")
    a("v_and_b32 v6, 31, v0")
    a("v_lshlrev_b32 v7, 2, v6")
    a(f"s_mov_b32 s{S_ATT}, 0")
    for b in range(2):
        a(f"v_mov_b32 v{K1[b]+1}, 0x3f803f80")
        a(f"v_mov_b32 v{Q1[b]+1}, 0")
    for e in range(8):
        a(f"v_mov_b32 v{V[1]+e}, 0")
    a(f"v_cmp_gt_u32 vcc, 4, v0")
    a(f"v_mov_b32 v{TMP}, 0x3f803f80")
    a(f"v_lshlrev_b32 v{TMP+1}, 2, v0")
    a(f"v_cndmask_b32 v{TMP}, 0, v{TMP}, vcc")
    a(f"v_add_u32 v{TMP+1}, {CONST}, v{TMP+1}")
    a("s_mov_b64 exec, 0xff")
    a(f"ds_write_b32 v{TMP+1}, v{TMP}")
    a(f"ds_write_b32 v{TMP+1}, v{TMP} offset:576")
    a("s_mov_b64 exec, -1")
    a(f"v_cmp_gt_u32 s[{S_VM}:{S_VM+1}], 18, v6")
    a(f"v_mov_b32 v{VST}, {KV_RS}")
    a(f"v_mov_b32 v{VWC}, {(-2*CH) & 0xffffffff}")
    a(f"v_cndmask_b32 v{VST}, 0, v{VST}, s[{S_VM}:{S_VM+1}]")
    a(f"v_cndmask_b32 v{VWC}, 0, v{VWC}, s[{S_VM}:{S_VM+1}]")
    a.label("L_attn_start")
    a(f"s_lshr_b32 s57, {wgreg}, 6")
    def next_chunk(sbuf):
        a(f"s_mul_i32 s66, s57, {CH}")
        a(f"s_add_u32 s66, s66, s{S_KV}")
        a("s_add_u32 s57, s57, 1")
        a("s_and_b32 s57, s57, 3")
        if sbuf is not None: dma_chunk(a, sbuf, 66)
    a(f"v_mov_b32 v{VK0}, v5")
    a(f"v_add_u32 v{VK1}, 1024, v7")
    a(f"v_lshrrev_b32 v{VV}, 5, v0")
    a(f"v_mul_u32_u24 v{VV}, 288, v{VV}")
    a(f"v_lshl_add_u32 v{VV}, v6, 4, v{VV}")
    a(f"v_add_u32 v{VV}, 1152, v{VV}")
    a(f"v_and_b32 v{TMP}, 27, v6")
    a(f"v_cmp_eq_u32 vcc, 18, v{TMP}")
    a(f"v_mov_b32 v{TMP}, {CONST + 16}")
    a(f"v_mov_b32 v{TMP+1}, {CONST}")
    a(f"v_cndmask_b32 v{TMP}, v{TMP}, v{TMP+1}, vcc")
    a(f"v_cndmask_b32 v{VV}, v{TMP}, v{VV}, s[{S_VM}:{S_VM+1}]")
    a(f"v_mov_b32 v{VWR}, 0")
    for aq in range(2):
        for e in range(16):
            a(f"v_mov_b32 v{O[aq]+e}, 0")
    for e in range(8):
        a(f"v_mov_b32 v{P[1]+e}, 0")
    a.srd(80, P_WS, WS_SIZE)
    next_chunk(None)
    a(f"s_cmp_lg_u32 s{S_ATT}, 0")
    a("s_cbranch_scc1 L_attn_noq")
    dep(a)
    if PROST: a.stamp_mid(0)
    for aq in range(2):
        a(f"buffer_load_dwordx4 {vr(Q0[aq],4)}, v5, s[48:51], s63 offen offset:{aq*QR_RS} sc1")
        a(f"buffer_load_dword v{Q1[aq]}, v7, s[48:51], s63 offen offset:{aq*QR_RS + 1024} sc1")
    a.label("L_attn_noq")
    dma_chunk(a, 64, 66)
    next_chunk(None)
    a(f"s_mov_b32 s67, s65")
    a(f"s_mov_b32 s68, s64")
    if PROST: a.stamp_mid(1)
    a("s_waitcnt vmcnt(8) lgkmcnt(0)")
    a("s_barrier")
    if PROST: a.stamp_mid(6)
    if touch: touch(a)
    read_k(a, 0, 0)
    read_v(a, 0, 0)
    a(f"v_cmp_gt_u32 vcc, 32, v0")
    a("s_nop 1")
    for aq in range(2):
        a(f"v_cndmask_b32 v{Q1[aq]}, 0, v{Q1[aq]}, vcc")
    a("s_waitcnt lgkmcnt(0)")
    a(f"s_cmp_lg_u32 s{S_ATT}, 0")
    a("s_cbranch_scc1 L_attn_havemax")
    for aq in range(2):
        qk(a, 0, aq, 0); qk(a, 1, aq, 0)
    a("s_nop 15")
    for aq in range(2):
        tile_max(a, aq, TMP+2+aq, True)
    for aq in range(2):
        set_m(a, aq, TMP+2+aq)
    a("s_nop 1")
    a.label("L_attn_havemax")
    qk(a, 0, 0, 0); qk(a, 1, 0, 0)
    a("s_waitcnt vmcnt(7)")
    a("s_barrier")
    a(f"s_mov_b32 s{S_C}, 0")
    a.stamp_mid(sm)
    a("s_setprio 1")
    a("s_nop 7")
    a("s_branch L_attn_out" if SKIP else "s_branch L_attn_entry")
    a.raw(".p2align 6")
    a.label("L_attn_loop")
    a("s_waitcnt vmcnt(0) lgkmcnt(0)")
    a("s_barrier")
    a(f"v_xor_b32 v{VK0}, {CH}, v{VK0}")
    a(f"v_xor_b32 v{VK1}, {CH}, v{VK1}")
    a(f"v_add_u32 v{VV}, v{VV}, v{VWR}")
    a(f"v_xor_b32 v{VWR}, v{VWR}, v{VWC}")
    a(f"s_cmp_eq_u32 s{S_C}, 3")
    if SPREAD:
        a("s_cselect_b32 s82, 0, s82")
        next_chunk(None)
    else:
        a("s_cbranch_scc1 L_attn_nodma")
        next_chunk(67)
    a("s_mov_b32 s69, s67")
    a("s_mov_b32 s67, s68")
    a("s_mov_b32 s68, s69")
    if touch: touch(a)
    a.label("L_attn_nodma")
    block(a, -1, 0, 0); block(a, -1, 1, 0)
    a.label("L_attn_entry")
    for kt in range(15):
        if kt == 2:
            a(f"s_cmp_lg_u32 s{S_C}, 0")
            a("s_cbranch_scc1 L_attn_k2")
            a("s_waitcnt vmcnt(0)")
            a("s_barrier")
            a.label("L_attn_k2")
        if kt == K2:
            a(f"s_cmp_lg_u32 s{S_C}, 0")
            a("s_cbranch_scc1 L_attn_k3")
            dep2(a)
            dep_g(a)
            a("s_lshl_b32 s69, s62, 7")
            a(f"s_add_u32 s69, s69, {G_OFF}")
            a(f"buffer_load_dword v{TMP+8}, v7, s[48:51], s69 offen sc1")
            a(f"buffer_load_dword v{TMP+9}, v7, s[48:51], s69 offen offset:128 sc1")
            if not SPREAD: next_chunk(65)
            a.label("L_attn_k3")
        d = kt - K2 if (SPREAD and 0 <= kt - K2 < 9) else None
        block(a, kt, 0, kt+1, dma=d); block(a, kt, 1, kt+1)
    if AST and a.stamp is True:
        for cnt, slot in ((0, 0), (1, 1), (2, 2), (3, 6)):
            Ls = a.newlabel("st")
            a(f"s_cmp_lg_u32 s{S_C}, {cnt}")
            a(f"s_cbranch_scc1 {Ls}")
            a.stamp_mid(slot)
            a.label(Ls)
    a(f"s_add_u32 s{S_C}, s{S_C}, 1")
    a(f"s_cmp_lt_u32 s{S_C}, {3 if last_extra else 4}")
    a("s_cbranch_scc1 L_attn_loop")
    if last_extra:
        a("s_waitcnt vmcnt(0) lgkmcnt(0)")
        a("s_barrier")
        a(f"v_xor_b32 v{VK0}, {CH}, v{VK0}")
        a(f"v_xor_b32 v{VK1}, {CH}, v{VK1}")
        a(f"v_add_u32 v{VV}, v{VV}, v{VWR}")
        ex = last_extra(a)
        for kt in range(-1, 15):
            for aq in range(2):
                block(a, kt, aq, kt+1, extra=ex.pop(0) if ex else None)
    block(a, 15, 0); block(a, 15, 1, do_qk=False)
    a("s_nop 1")
    pv(a, 0, 1, 1); pv(a, 1, 1, 1)
    a("s_nop 15")
    a.stamp_mid(sm+1)
    a("s_setprio 3")
    a(f"v_max_f32 v{TMP}, v{O[0]+10}, v{O[1]+10}")
    a(f"v_mov_b32 v{TMP+2}, 0")
    for e in range(11):
        a(f"v_fma_f32 v{TMP}, v{O[0]+e}, 0, v{TMP}")
        a(f"v_fma_f32 v{TMP+2}, v{O[1]+e}, 0, v{TMP+2}")
    a(f"v_add_f32 v{TMP}, v{TMP}, v{TMP+2}")
    a(f"v_mov_b32 v{TMP+1}, 0x5f800000")
    a(f"v_cmp_nlt_f32 vcc, v{TMP}, v{TMP+1}")
    for aq in range(2):
        a(f"v_rcp_f32 v{O[aq]+10}, v{O[aq]+10}")
    a("s_cmp_lg_u64 vcc, 0")
    a("s_cselect_b32 s69, 1, 0")
    a(f"v_mov_b32 v{TMP}, s69")
    a(f"s_lshl_b32 s69, s52, 2")
    a(f"s_add_u32 s69, s69, {2*CH}")
    a(f"v_mov_b32 v{TMP+1}, s69")
    a(f"ds_write_b32 v{TMP+1}, v{TMP}")
    a(f"v_lshrrev_b32 v{TMP}, 5, v0")
    a(f"v_lshlrev_b32 v{TMP}, 9, v{TMP}")
    a(f"v_lshl_add_u32 v{TMP}, v6, 1, v{TMP}")
    a(f"v_add_u32 v{TMP}, s64, v{TMP}")
    a("s_waitcnt vmcnt(0)")
    for aq in range(2):
        o = O[aq]
        a(f"v_mul_f32 v{o+10}, v{o+10}, v{TMP+8+aq}")
        for e in range(10):
            a(f"v_mul_f32 v{o+e}, v{o+e}, v{o+10}")
        for e in range(5):
            a(f"v_cvt_pk_bf16_f32 v{o+e}, v{o+2*e}, v{o+2*e+1}")
        for p in range(5):
            off = (p >> 1)*4096 + (p & 1)*256 + aq*64
            if p == 4: a("s_mov_b32 exec_hi, 0")
            a(f"ds_write_b16 v{TMP}, v{o+p} offset:{off}")
            a(f"ds_write_b16_d16_hi v{TMP}, v{o+p} offset:{off+128}")
            if p == 4: a("s_mov_b64 exec, -1")
    a(f"v_lshrrev_b32 v{TMP+1}, 3, v0")
    a(f"v_lshlrev_b32 v{TMP+1}, 12, v{TMP+1}")
    a(f"v_and_b32 v{TMP+2}, 7, v0")
    a(f"v_lshl_add_u32 v{TMP+1}, v{TMP+2}, 4, v{TMP+1}")
    a(f"s_mul_i32 s69, s61, {18*4096}")
    a("s_lshl_b32 s70, s62, 6")
    a("s_add_u32 s69, s69, s70")
    a(f"s_add_u32 s69, s69, {O_OFF}")
    a("s_add_u32 s70, s69, 32768")
    a("s_add_u32 s71, s69, 65536")
    a("s_waitcnt lgkmcnt(0)")
    a(f"ds_read_b128 {vr(O[0],4)}, v{VDM}")
    a(f"ds_read_b128 {vr(O[0]+4,4)}, v{VDM} offset:4096")
    a(f"ds_read_b128 {vr(O[0]+8,4)}, v{VDM} offset:8192")
    a(f"v_mov_b32 v{TMP+2}, {2*CH}")
    a("s_waitcnt lgkmcnt(2)")
    a(f"buffer_store_dwordx4 {vr(O[0],4)}, v{TMP+1}, s[48:51], s69 offen sc1")
    a("s_waitcnt lgkmcnt(1)")
    a(f"buffer_store_dwordx4 {vr(O[0]+4,4)}, v{TMP+1}, s[48:51], s70 offen sc1")
    a("s_waitcnt lgkmcnt(0)")
    a("s_mov_b64 exec, 0xffff")
    a(f"buffer_store_dwordx4 {vr(O[0]+8,4)}, v{TMP+1}, s[48:51], s71 offen sc1")
    a("s_mov_b64 exec, -1")
    a("s_barrier")
    a(f"ds_read_b128 {vr(TMP+4,4)}, v{TMP+2}")
    a(f"s_cmp_lg_u32 s{S_ATT}, 0")
    a("s_cbranch_scc1 L_attn_out")
    a("s_waitcnt lgkmcnt(0)")
    a(f"v_or_b32 v{TMP}, v{TMP+4}, v{TMP+5}")
    a(f"v_or3_b32 v{TMP}, v{TMP}, v{TMP+6}, v{TMP+7}")
    a("s_nop 0")
    a(f"v_readfirstlane_b32 s69, v{TMP}")
    a("s_nop 3")
    a("s_cmp_eq_u32 s69, 0")
    a("s_cbranch_scc1 L_attn_out")
    a(f"s_mov_b32 s{S_ATT}, 1")
    for aq in range(2):
        a(f"v_mov_b32 v{Q1[aq]+1}, 0")
        a(f"v_mov_b32 v{TMP+2+aq}, 0xff800000")
    a(f"s_mov_b32 s66, s{S_KV}")
    a(f"s_mov_b32 s{S_C}, 0")
    a.label("L_attn_mx_chunk")
    dma_chunk(a, 64, 66)
    a(f"s_add_u32 s66, s66, {CH}")
    a(f"v_mov_b32 v{VK0}, v5")
    a(f"v_add_u32 v{VK1}, 1024, v7")
    a("s_mov_b32 s69, 0")
    a("s_waitcnt vmcnt(0)")
    a("s_barrier")
    a.label("L_attn_mx_tile")
    read_k(a, 0, 0)
    a(f"v_add_u32 v{VK0}, {KV_RS}, v{VK0}")
    a(f"v_add_u32 v{VK1}, {KV_RS}, v{VK1}")
    a("s_waitcnt lgkmcnt(0)")
    for aq in range(2):
        qk(a, 0, aq, 0); qk(a, 1, aq, 0)
    a("s_nop 15")
    for aq in range(2):
        tile_max(a, aq, TMP+2+aq, False)
    a("s_add_u32 s69, s69, 1")
    a("s_cmp_lt_u32 s69, 16")
    a("s_cbranch_scc1 L_attn_mx_tile")
    a("s_barrier")
    a(f"s_add_u32 s{S_C}, s{S_C}, 1")
    a(f"s_cmp_lt_u32 s{S_C}, 4")
    a("s_cbranch_scc1 L_attn_mx_chunk")
    for aq in range(2):
        set_m(a, aq, TMP+2+aq)
    a("s_branch L_attn_start")
    a.label("L_attn_out")
    pub(a)
```

```python
from common import *
import math
QSCALE = (DH ** -0.5) * math.log2(math.e)
SC = " sc1"
CB = 17408
ACC = 96
SET = [32, 52]

XNT = ''
QEPRIO = None
QST = False
def qkv_body(a, wgreg, pub, hint=None):
    a.srd(40, P_X, S*D*2)
    a.srd(44, P_WQKV, D*3*D*2)
    a(f"s_and_b32 s53, {wgreg}, 7")
    a(f"s_lshr_b32 s54, {wgreg}, 3")
    a("s_lshr_b32 s55, s53, 1")
    a("s_lshl_b32 s55, s55, 2")
    a("s_and_b32 s56, s54, 3")
    a("s_add_u32 s55, s55, s56")
    a("s_and_b32 s56, s53, 1")
    a("s_mul_i32 s56, s56, 6")
    a("s_lshr_b32 s57, s54, 2")
    a("s_add_u32 s56, s56, s57")
    a("s_lshl_b32 s59, s55, 2")
    a("s_add_u32 s60, s59, s52")
    a("v_lshrrev_b32 v2, 2, v0")
    a("s_lshl_b32 s60, s60, 5")
    a("v_add_u32 v2, s60, v2")
    a("v_mul_u32_u24 v2, 1152, v2")
    a("v_lshrrev_b32 v3, 4, v0")
    a("v_xor_b32 v3, v3, v0")
    a("v_and_b32 v3, 3, v3")
    a("v_lshl_add_u32 v2, v3, 4, v2")
    a(f"v_add_u32 v3, {16*1152}, v2")
    a("s_mul_i32 s65, s56, 288")
    a(f"s_mul_i32 s60, s52, {8*3456}")
    a("s_add_u32 s65, s65, s60")
    for i in range(3):
        a(f"v_add_u32 v7, {64*i}, v0")
        a(f"v_mul_u32_u24 v8, 3641, v7")
        a(f"v_lshrrev_b32 v8, 16, v8")
        a(f"v_mul_u32_u24 v9, 18, v8")
        a(f"v_sub_u32 v7, v7, v9")
        a(f"v_and_b32 v10, 1, v8")
        a(f"v_lshrrev_b32 v9, 1, v8")
        a(f"v_lshl_or_b32 v9, v10, 2, v9")
        a(f"v_mul_u32_u24 v9, 3456, v9")
        a(f"v_lshl_add_u32 v9, v7, 4, v9")
        a(f"v_add_u32 v{4+i}, s65, v9")
    a("s_lshl_b32 s61, s52, 11")
    a("s_mul_i32 s62, s52, 2304")
    a("s_add_u32 s62, s62, 8192")
    a("s_mov_b32 s63, 0")
    a("s_mov_b32 s64, 0")
    a(f"s_mov_b32 s71, {32*3456}")
    a("s_mov_b64 s[72:73], 0xffff")
    def setm0(buf, i):
        if i < 2: a(f"s_add_u32 m0, s61, {buf*CB + i*1024}")
        else: a(f"s_add_u32 m0, s62, {buf*CB + (i-2)*1024}")
    def load(i):
        if i < 2:
            a(f"buffer_load_dwordx4 v{2+i}, s[40:43], s63 offen lds")
            if i == 1: a("s_add_u32 s63, s63, 64")
        elif i < 4:
            a(f"buffer_load_dwordx4 v{2+i}, s[44:47], s64 offen lds")
        else:
            a("s_mov_b64 exec, s[72:73]")
            a(f"buffer_load_dwordx4 v6, s[44:47], s64 offen lds")
            a("s_mov_b64 exec, -1")
            a("s_add_u32 s64, s64, s71")
    for c in range(4):
        for i in range(5 if c < 3 else 2):
            setm0(c, i); a("s_nop 0"); load(i)
    a.stamp_mid(0)
    a("s_and_b32 s57, s52, 1")
    a("s_lshr_b32 s58, s52, 1")
    a("s_lshl_b32 s60, s57, 1")
    a("s_add_u32 s60, s60, s58")
    a("s_add_u32 s59, s59, s60")
    a("v_and_b32 v10, 31, v0")
    a("v_lshrrev_b32 v11, 5, v0")
    a("v_bfe_u32 v12, v10, 2, 2")
    a("v_xor_b32 v12, v12, v11")
    a("v_lshlrev_b32 v13, 6, v10")
    a("v_lshl_add_u32 v16, v12, 4, v13")
    a("s_lshl_b32 s60, s60, 11")
    a("v_add_u32 v16, s60, v16")
    a("v_xor_b32 v17, 32, v16")
    a("v_xor_b32 v18, 0x800, v16")
    a("v_xor_b32 v19, 0x800, v17")
    a("v_bfe_u32 v12, v0, 2, 2")
    a("v_lshlrev_b32 v12, 1, v12")
    a("v_lshl_add_u32 v12, v11, 3, v12")
    a("v_mul_u32_u24 v12, 288, v12")
    a("v_add_u32 v12, 0x2000, v12")
    a("v_bfe_u32 v13, v0, 4, 1")
    a("v_and_b32 v14, 3, v0")
    a("v_lshl_add_u32 v15, v14, 3, v12")
    a("v_lshl_add_u32 v20, v13, 5, v15")
    a("s_and_b32 s69, s56, 3")
    a("s_lshl_b32 s69, s69, 9")
    a("s_cmp_ge_u32 s56, 8")
    a("s_cbranch_scc1 L_qkv_v")
    a("s_mul_i32 s60, s58, 144")
    a("s_add_u32 s60, s60, 40")
    a("v_add_u32 v21, 112, v20")
    a("v_add_u32 v20, s60, v20")
    a("v_lshl_add_u32 v23, v13, 8, v15")
    a("s_cmp_lg_u32 s58, 0")
    a("s_cselect_b64 vcc, -1, 0")
    a("v_cndmask_b32 v21, v21, v23, vcc")
    a("v_mul_u32_u24 v22, 72, v14")
    a("v_add3_u32 v22, v22, v12, 32")
    a("s_cmp_ge_u32 s56, 4")
    a(f"s_mov_b32 s66, {QR_OFF}")
    a(f"s_mov_b32 s67, {QR_RS}")
    a(f"s_mov_b32 s68, {f32bits(QSCALE)}")
    a(f"s_cselect_b32 s66, {KV_OFF}, s66")
    a(f"s_cselect_b32 s67, {KV_RS}, s67")
    a(f"s_cselect_b32 s68, 1.0, s68")
    a("s_xor_b32 s65, s59, 1")
    a("s_add_u32 s65, s65, s69")
    a("s_add_u32 s69, s59, s69")
    a("s_mul_i32 s69, s69, s67")
    a("s_add_u32 s69, s69, s66")
    a("s_mul_i32 s65, s65, s67")
    a("s_add_u32 s65, s65, s66")
    a("s_lshl_b32 s70, s67, 6")
    a("s_lshl_b32 s60, s58, 2")
    a("s_add_u32 s78, s60, 1")
    a("s_add_u32 s79, s60, 2")
    a("s_cmp_lg_u32 s58, 0")
    a("s_cselect_b32 s53, 0, 3")
    a("s_cselect_b32 s54, 7, 4")
    for r in (78, 79, 53, 54): a(f"s_mul_i32 s{r}, s{r}, s70")
    loop(a, False, setm0, load, hint)
    a("s_nop 7")
    for j, (hx, hy, rec) in enumerate(((78, 79, 69), (78, 79, 65), (53, 54, 69), (53, 54, 65))):
        qk_store_main(a, j, hx, hy, rec)
    qk_store_left(a, 4)
    a("s_branch L_qkv_done")
    a.label("L_qkv_v")
    a("s_lshl_b32 s60, s58, 7")
    a("v_add_u32 v20, s60, v20")
    a("v_add_u32 v21, 64, v20")
    a("v_add_u32 v22, 256, v15")
    a("s_and_b32 s66, s59, 3")
    a("s_mul_i32 s67, s66, 1152")
    a("s_xor_b32 s66, s66, 1")
    a("s_mul_i32 s66, s66, 1152")
    a("s_lshl_b32 s60, s58, 6")
    a("v_add_u32 v12, s60, v10")
    v_addr(a, "v12"); a("v_add_u32 v176, s67, v7"); a("v_add_u32 v177, s66, v7")
    a("v_add_u32 v12, 32, v12")
    v_addr(a, "v12"); a("v_add_u32 v178, s67, v7"); a("v_add_u32 v179, s66, v7")
    a("v_add_u32 v12, 128, v10")
    v_addr(a, "v12"); a("v_add_u32 v180, s67, v7")
    a("s_lshl_b32 s60, s52, 7")
    a("s_add_u32 s69, s69, s60")
    a("s_and_b32 s60, s59, 60")
    a("s_add_u32 s69, s69, s60")
    a(f"s_mul_i32 s69, s69, {KV_RS}")
    a(f"s_add_u32 s69, s69, {KV_OFF + 1152}")
    for n in range(9):
        a(f"v_add_u32 v7, {64*n}, v0")
        a("v_mul_u32_u24 v8, 911, v7")
        a("v_lshrrev_b32 v8, 16, v8")
        a("v_lshrrev_b32 v9, 2, v8")
        a(f"v_mul_u32_u24 v9, {60*144}, v9")
        a(f"v_mul_u32_u24 v8, 72, v8")
        a("v_add3_u32 v7, v7, v8, v9")
        a(f"v_lshlrev_b32 v{184+n}, 4, v7")
    loop(a, True, setm0, load, hint)
    a("s_mul_i32 s60, s52, 9216")
    a("v_add_u32 v3, s60, v2")
    a("s_waitcnt vmcnt(0)")
    a("s_barrier")
    a("s_nop 3")
    for k in range(5): v_put(a, k)
    a("s_waitcnt lgkmcnt(0)")
    a("s_barrier")
    for n in range(9):
        a(f"ds_read_b128 {vr(32+4*n,4)}, v3 offset:{n*1024}")
    for n in range(9):
        a(f"s_waitcnt lgkmcnt({8-n})")
        a(f"buffer_store_dwordx4 {vr(32+4*n,4)}, v{184+n}, s[48:51], s69 offen{SC}")
    a.label("L_qkv_done")
    a.stamp_mid(7)
    pub(a)

def loop(a, isv, setm0, load, hint):
    def reads(sn, buf, t):
        b = SET[sn]
        X = [((sn, "x", n), f"ds_read_b128 {vr(b+4*n,4)}, v{16+2*n+t} offset:{buf*CB}") for n in range(2)]
        W = [((sn, "w", j), f"ds_read_b64_tr_b16 {vr(b+8+4*j+2*sec,2)}, v{20+j} offset:{buf*CB + t*4608 + sec*288}") for j in range(3) for sec in range(2)]
        return [X[0], W[0], W[1], X[1], W[2], W[3], W[4], W[5]]
    MF = [(0, 0), (0, 1), (1, 0), (1, 1), (2, 0)]
    def mfma(ls, sn, k, first):
        b = SET[sn]
        j, n = MF[k]
        ls.need([(sn, "x", n), (sn, "w", j)])
        w = vr(b+8+4*j, 4); x = vr(b+4*n, 4); c = vr(ACC+16*k, 16)
        A, B = (x, w) if isv else (w, x)
        a(f"v_mfma_f32_32x32x16_bf16 {c}, {A}, {B}, {'0' if first else c}")
    def body(c, first=False, kill=False, last=False):
        buf = c % 4; pb = (c - 1) % 4
        ls = LdsSched(a, [r[0] for r in reads(0, buf, 0)])
        ls.need([(0, "w", 1)])
        r = reads(1, buf, 1)
        mfma(ls, 0, 0, first)
        if not last: setm0(pb, 2)
        for x in r[0:3]: ls.read(*x)
        if not last: load(2)
        mfma(ls, 0, 1, first)
        for x in r[3:7]: ls.read(*x)
        mfma(ls, 0, 2, first)
        if not last: setm0(pb, 3)
        ls.read(*r[7])
        if not last: load(3)
        mfma(ls, 0, 3, first)
        if not last: setm0(pb, 4); load(4)
        mfma(ls, 0, 4, first)
        if kill: kill()
        if last:
            ls.drain()
            for k in range(5): mfma(ls, 1, k, False)
            return
        ls.drain()
        mfma(ls, 1, 0, False)
        a("s_waitcnt vmcnt(10)")
        a("s_barrier")
        r = reads(0, (c+1) % 4, 0)
        for x in r[0:3]: ls.read(*x)
        mfma(ls, 1, 1, False)
        for x in r[3:7]: ls.read(*x)
        mfma(ls, 1, 2, False)
        setm0(buf, 0)
        ls.read(*r[7])
        load(0)
        mfma(ls, 1, 3, False)
        setm0(buf, 1)
        mfma(ls, 1, 4, False)
        load(1)
    a("s_waitcnt vmcnt(12)")
    a("s_barrier")
    a.stamp_mid(1)
    for r in reads(0, 0, 0): a(r[1])
    body(0, first=True)
    a("s_mov_b32 s60, 4")
    L = a.newlabel("qkv")
    def kill():
        a("s_cmp_gt_u32 s60, 1")
        a("s_cselect_b32 s42, s42, 0")
        a("s_cselect_b32 s46, s46, 0")
    a.raw(".p2align 6")
    a.label(L)
    for c in range(1, 5):
        body(c, kill=kill if c == 2 else None)
    if hint: hint(a)
    if QST and a.stamp is True:
        for cnt, slot in ((4, 3), (3, 4), (2, 5)):
            Ls = a.newlabel("st")
            a(f"s_cmp_lg_u32 s60, {cnt}")
            a(f"s_cbranch_scc1 {Ls}")
            a.stamp_mid(slot)
            a.label(Ls)
    a("s_sub_u32 s60, s60, 1")
    a("s_cmp_lg_u32 s60, 0")
    a(f"s_cbranch_scc1 {L}")
    body(17, last=True)
    a("v_lshlrev_b32 v2, 4, v0")
    if QEPRIO is not None: a(f"s_setprio {QEPRIO}")
    a.stamp_mid(6)

def qk_store_main(a, j, hx, hy, rec):
    b = ACC + 16*j
    for i in range(16):
        a(f"v_mul_f32 v{b+i}, s68, v{b+i}")
    for i in range(8):
        a(f"v_cvt_pk_bf16_f32 v{b+i}, v{b+2*i}, v{b+2*i+1}")
    for half, hd in ((0, hx), (1, hy)):
        a(f"s_add_u32 s60, s{hd}, s{rec}")
        a(f"buffer_store_dwordx4 {vr(b+4*half,4)}, v2, s[48:51], s60 offen{SC}")

def qk_store_left(a, j):
    b = ACC + 16*j
    for i in range(8):
        a(f"v_mul_f32 v{b+i}, s68, v{b+i}")
    for i in range(4):
        a(f"v_cvt_pk_bf16_f32 v{b+i}, v{b+2*i}, v{b+2*i+1}")
    a("s_lshl_b32 s60, s70, 1")
    a("v_mul_lo_u32 v3, v11, s60")
    a("v_lshl_add_u32 v3, v10, 2, v3")
    for jj in range(2):
        for bb in range(2):
            a(f"s_mul_i32 s60, s70, {4*jj+bb}")
            a(f"s_add_u32 s60, s60, s69")
            a(f"buffer_store_dword v{b+2*jj+bb}, v3, s[48:51], s60 offen offset:1024{SC}")

def v_addr(a, col):
    a(f"v_mul_u32_u24 v8, 3641, {col}")
    a(f"v_lshrrev_b32 v8, 16, v8")
    a(f"v_mul_u32_u24 v9, 18, v8")
    a(f"v_sub_u32 v7, {col}, v9")
    a(f"v_mul_u32_u24 v8, {4*1152}, v8")
    a(f"v_lshl_add_u32 v7, v7, 4, v8")
    a(f"v_mul_u32_u24 v8, 288, v11")
    a(f"v_add_u32 v7, v7, v8")

def v_put(a, k):
    b = ACC + 16*k
    for i in range(8):
        a(f"v_cvt_pk_bf16_f32 v{b+i}, v{b+2*i}, v{b+2*i+1}")
    if k == 4:
        a("s_mov_b32 exec_lo, 0xffff")
        a("s_mov_b32 exec_hi, 0xffff")
    a(f"ds_write_b128 v{176+k}, {vr(b,4)}")
    a(f"ds_write_b128 v{176+k}, {vr(b+4,4)} offset:576")
    if k == 4:
        a("s_mov_b64 exec, -1")
for u in range(576):
    assert (u*911) >> 16 == u//72

RS = 1216
X0, F0 = 16, 88
XK, GK = 160, 196

def red8(a, r):
    a("s_nop 1")
    a(f"v_add_f32_dpp v{r}, v{r}, v{r} quad_perm:[1,0,3,2] row_mask:0xf bank_mask:0xf")
    a("s_nop 1")
    a(f"v_add_f32_dpp v{r}, v{r}, v{r} quad_perm:[2,3,0,1] row_mask:0xf bank_mask:0xf")
    a("s_nop 1")
    a(f"v_add_f32_dpp v{r}, v{r}, v{r} row_half_mirror row_mask:0xf bank_mask:0xf")

def rows_setup(a):
    a("v_lshrrev_b32 v2, 3, v0")
    a("v_and_b32 v3, 7, v0")
    a("s_lshl_b32 s53, s52, 3")
    a("v_add_u32 v4, s53, v2")

def rows_tail(a):
    a(f"v_mul_u32_u24 v5, {RS}, v4")
    a("v_lshl_add_u32 v5, v3, 4, v5")
    for i in range(9):
        a(f"ds_write_b128 v5, {vr(X0+4*i,4)} offset:{i*128}")
    a("s_lshr_b32 s55, s52, 1")
    a("s_and_b32 s56, s52, 1")
    a("v_lshrrev_b32 v6, 5, v0")
    a("v_bfe_u32 v7, v0, 2, 2")
    a("v_lshl_add_u32 v6, v6, 3, v7")
    a("s_lshl_b32 s60, s55, 4")
    a("v_add_u32 v6, s60, v6")
    a(f"v_mul_u32_u24 v6, {RS}, v6")
    a("v_bfe_u32 v7, v0, 4, 1")
    a("v_lshl_add_u32 v6, v7, 5, v6")
    a("v_and_b32 v7, 3, v0")
    a("v_lshl_add_u32 v6, v7, 3, v6")
    a("s_mul_i32 s60, s56, 576")
    a("v_add_u32 v6, s60, v6")
    a("s_mul_i32 s60, s52, 9216")
    a("s_add_u32 s57, s57, s60")
    a("v_lshlrev_b32 v7, 4, v0")
    a("s_waitcnt lgkmcnt(0)")
    a("s_barrier")
    for i in range(7):
        for sec in range(2):
            a(f"ds_read_b64_tr_b16 {vr(X0+4*i+2*sec,2)}, v6 offset:{sec*4*RS + i*64}")
    for i in range(9):
        a(f"s_waitcnt lgkmcnt({min(12, 2*(8-i))})")
        if i % 4 == 0 and i:
            a("s_add_u32 s57, s57, 4096")
        a(f"buffer_store_dwordx4 {vr(X0+4*i,4)}, v7, s[48:51], s57 offen offset:{(i%4)*1024}{SC}")
        if i + 7 < 9:
            for sec in range(2):
                a(f"ds_read_b64_tr_b16 {vr(X0+4*(i+7)+2*sec,2)}, v6 offset:{sec*4*RS + (i+7)*64}")

def ln_body(a, jreg, pub, pre=None):
    a.srd(40, P_X, S*D*2)
    rows_setup(a)
    a(f"s_and_b32 s58, {jreg}, 7")
    a(f"s_lshr_b32 s56, {jreg}, 3")
    a("s_lshl_b32 s58, s58, 3")
    a("s_add_u32 s58, s58, s56")
    a("s_lshl_b32 s56, s58, 5")
    a("v_add_u32 v6, s56, v4")
    a("v_mul_u32_u24 v7, 1152, v6")
    a("v_lshl_add_u32 v7, v3, 4, v7")
    for i in range(9):
        a(f"buffer_load_dwordx4 {vr(XK+4*i,4)}, v7, s[40:43], 0 offen offset:{i*128}")
    a.srd(44, P_GW, D*2)
    a("v_lshlrev_b32 v8, 4, v3")
    for i in range(9):
        a(f"buffer_load_dwordx4 {vr(GK+4*i,4)}, v8, s[44:47], 0 offen offset:{i*128}")
    a(f"s_mul_i32 s57, s58, {2*18*1024}")
    a(f"s_add_u32 s57, s57, {HT_OFF}")
    a("v_mov_b32 v8, 0")
    a("v_mov_b32 v9, 0")
    a.stamp_mid(0)
    def pk(i): return vr(F0+2*i, 2)
    for i in range(36):
        if i % 4 == 0: a(f"s_waitcnt vmcnt({17 - i//4})")
        a(f"v_lshlrev_b32 v{F0+2*i}, 16, v{XK+i}")
        a(f"v_and_b32 v{F0+2*i+1}, 0xffff0000, v{XK+i}")
        a(f"v_pk_add_f32 v[8:9], v[8:9], {pk(i)}")
    a.stamp_mid(1)
    a("v_add_f32 v8, v8, v9")
    red8(a, 8)
    a(f"v_mul_f32 v8, {f32bits(-1.0/D)}, v8")
    a("v_mov_b32 v10, 0")
    a("v_mov_b32 v9, v8")
    a("v_mov_b32 v11, 0")
    for i in range(36):
        a(f"v_pk_add_f32 {pk(i)}, {pk(i)}, v[8:9]")
    for i in range(36):
        a(f"v_pk_fma_f32 v[10:11], {pk(i)}, {pk(i)}, v[10:11]")
    a("v_add_f32 v10, v10, v11")
    red8(a, 10)
    a(f"v_mov_b32 v12, {f32bits(1e-5)}")
    a(f"v_fmac_f32 v12, {f32bits(1.0/D)}, v10")
    a("v_rsq_f32 v12, v12")
    a("s_nop 0")
    a("v_mov_b32 v13, v12")
    for i in range(36):
        a(f"v_pk_mul_f32 {pk(i)}, {pk(i)}, v[12:13]")
    for i in range(36):
        a(f"v_cvt_pk_bf16_f32 v{X0+i}, v{F0+2*i}, v{F0+2*i+1}")
    if pre: pre(a)
    rows_tail(a)
    pub(a)

def wo_body(a, jreg):
    a.srd(40, P_WO, D*D*2)
    rows_setup(a)
    a(f"s_lshl_b32 s57, {jreg}, 1")
    a("s_lshr_b32 s55, s52, 1")
    a("s_add_u32 s57, s57, s55")
    a("s_and_b32 s56, s52, 1")
    a("s_lshl_b32 s56, s56, 2")
    a("s_lshl_b32 s57, s57, 4")
    a("s_add_u32 s57, s57, s56")
    a("v_lshrrev_b32 v6, 2, v2")
    a("v_and_b32 v7, 3, v2")
    a("v_lshl_add_u32 v6, v6, 3, v7")
    a("v_add_u32 v6, s57, v6")
    a("v_mul_u32_u24 v7, 1152, v6")
    a("v_lshl_add_u32 v7, v3, 4, v7")
    for i in range(9):
        a(f"buffer_load_dwordx4 {vr(X0+4*i,4)}, v7, s[40:43], 0 offen offset:{i*128}")
    a(f"s_mul_i32 s57, {jreg}, {2*18*1024}")
    a(f"s_add_u32 s57, s57, {WOF_OFF}")
    a("s_waitcnt vmcnt(0)")
    rows_tail(a)

def gate_own(a):
    a("v_mov_b32 v8, 0")
    a("v_mov_b32 v9, 0")
    for i in range(36):
        a(f"v_lshlrev_b32 v12, 16, v{GK+i}")
        a(f"v_and_b32 v13, 0xffff0000, v{GK+i}")
        a(f"v_lshlrev_b32 v14, 16, v{XK+i}")
        a(f"v_and_b32 v15, 0xffff0000, v{XK+i}")
        a(f"v_pk_fma_f32 v[8:9], v[12:13], v[14:15], v[8:9]")
    a("v_add_f32 v8, v8, v9")
    red8(a, 8)
    a(f"v_mul_f32 v8, {f32bits(-math.log2(math.e))}, v8")
    a("v_exp_f32 v8, v8")
    a("s_lshl_b32 s56, s58, 5")
    a("v_add_f32 v8, 1.0, v8")
    a("v_rcp_f32 v8, v8")
    a("v_add_u32 v6, s56, v4")
    a("v_lshlrev_b32 v6, 2, v6")
    a(f"s_mov_b32 s57, {G_OFF}")
    a("s_mov_b32 exec_lo, 0x01010101")
    a("s_mov_b32 exec_hi, 0x01010101")
    a(f"buffer_store_dword v8, v6, s[48:51], s57 offen{SC}")
    a("s_mov_b64 exec, -1")

def xw_touch(a, greg):
    a.srd(40, P_WQKV, D*3*D*2)
    a.srd(44, P_X, S*D*2)
    a(f"s_lshr_b32 s53, {greg}, 3")
    a("s_lshl_b32 s53, s53, 2")
    a("s_add_u32 s53, s53, s52")
    a("s_lshl_b32 s54, s53, 6")
    a("v_add_u32 v5, s54, v0")
    a("v_mul_u32_u24 v6, 18725, v5")
    a("v_lshrrev_b32 v6, 18, v6")
    a("v_mul_u32_u24 v7, 13, v6")
    a("v_add_u32 v7, v7, v5")
    a(f"s_and_b32 s54, {greg}, 1")
    a("s_mul_i32 s54, s54, 13")
    a("v_add_lshl_u32 v7, v7, s54, 7")
    a(f"buffer_load_dword v60, v7, s[40:43], 0 offen{XNT}")
    L = a.newlabel("nox")
    a("s_cmp_ge_u32 s53, 72")
    a(f"s_cbranch_scc1 {L}")
    a(f"s_bfe_u32 s54, {greg}, 0x20001")
    a("s_mul_i32 s54, s54, 4608")
    a("v_add_lshl_u32 v7, v5, s54, 7")
    a(f"buffer_load_dword v61, v7, s[44:47], 0 offen{XNT}")
    a.label(L)
for n in range(8192):
    assert (n*18725) >> 18 == n//14

def xw_touch2(a, greg, depth=1):
    L = a.newlabel("nox")
    a(f"s_cmp_lt_u32 {greg}, 192")
    a(f"s_cbranch_scc1 {L}")
    a.srd(40, P_WQKV, D*3*D*2)
    a.srd(44, P_X, S*D*2)
    a(f"s_bfe_u32 s53, {greg}, 0x30003")
    a("s_lshl_b32 s53, s53, 2")
    a("s_add_u32 s53, s53, s52")
    a(f"s_and_b32 s54, {greg}, 1")
    a("s_mul_i32 s54, s54, 13")
    a(f"s_add_u32 s54, s54, {128*27}")
    a(f"s_bfe_u32 s55, {greg}, 0x20001")
    a("s_mul_i32 s55, s55, 4608")
    a("s_add_u32 s55, s55, 2")
    a("v_mul_u32_u24 v8, 9, v0")
    for r in range(5):
        Lx = a.newlabel("tx"); Le = a.newlabel("te")
        a(f"s_add_u32 s56, s53, {32*r}")
        a("s_mul_i32 s57, s56, 745")
        a("s_lshr_b32 s57, s57, 14")
        a("s_mul_i32 s58, s57, 22")
        a("s_sub_u32 s56, s56, s58")
        if r == 4:
            a("s_cmp_ge_u32 s57, 7")
            a(f"s_cbranch_scc1 {Le}")
        a("s_cmp_ge_u32 s56, 14")
        a(f"s_cbranch_scc1 {Lx}")
        a("s_lshl_b32 s56, s56, 6")
        a("v_add_u32 v5, s56, v0")
        a("v_mul_u32_u24 v6, 18725, v5")
        a("v_lshrrev_b32 v6, 18, v6")
        a("v_mul_u32_u24 v6, 13, v6")
        a(f"s_mul_i32 s57, s57, {64*27}")
        a("s_add_u32 s57, s57, s54")
        a("v_add3_u32 v5, v5, v6, s57")
        a("v_lshlrev_b32 v5, 7, v5")
        a(f"buffer_load_dword v{60+(r&1)}, v5, s[40:43], 0 offen")
        a(f"s_branch {Le}")
        a.label(Lx)
        a("s_sub_u32 s56, s56, 14")
        a(f"s_mul_i32 s56, s56, {64*9}")
        a("s_add_u32 s56, s56, s57")
        a("s_add_u32 s56, s56, s55")
        a("v_add_lshl_u32 v5, v8, s56, 7")
        a(f"buffer_load_dword v{60+(r&1)}, v5, s[44:47], 0 offen")
        a.label(Le)
        if r >= depth: a(f"s_waitcnt vmcnt({depth})")
    a.label(L)
for n in range(160):
    assert (n*745) >> 14 == n//22
```

```python
import sys
from common import *
import sync, k_front, k_mlp1, k_mlp1y, k_mlp2, k_attn, k_final, k_final2, k_mlp2f
from sync import mb, MB_U, MB_H, MB_QKV, MB_O, MB_Y, MB_G, MB_P

HEADER = open("cdna_kernels/" + NAME + ".s.ref").read().split("; Override launch geometry")[0]
N_WO = 18
W2_TOUCH = False
FRONT_ONLY = False
PARTNER = True
A_EXIT = False
PF1 = 0
QPOLL_ALL = False
UPOLL_ALL = True
HINT2 = 0
FUSED = True
INIT_LOW = 2
W1HEAD = True
PRE = 0
M1Y = True
COOP = False
COOP_H = False
COOP_U = False
BPRIO = 0
INIT_LATE = True
PFMODE = 'col'
PFH = False
SLP_H = 4
HEAD_PF = 0
CODE_PF = True
B_EXIT = False
DIAG = None
PF_AFTER_H = True
TLBW = 0
PFW1 = True
XW = 2
XWD = 1
LIST = True
NO_FINAL = False
PFD = 1
LN_WAIT = True
PF2 = 7
EARLY = 1
EARLY_FL = ''
PROMOTE = False
WAIT_QKV = True
HINT_AT = 3
SLP_HINT = 4
SLP_FIN = 2
W2_TAIL = 0
AUX_G0 = 16
AUX_NT = ''

DOC = """;
;                         240 tiles) scaled by (1-gate) with the output projection of gate*o appended along K
"""

def gen_main(a, name):
    a.kernel_begin(name)
    a("s_cmp_ge_u32 s2, 512")
    a("s_cbranch_scc1 L_end")
    a.load_kernargs()
    sync.wave_setup(a)
    a.srd(48, P_WS, WS_SIZE)
    a.srd(84, P_DBG, 256)
    a("s_cmp_ge_u32 s2, 256")
    a("s_cbranch_scc1 L_slotB")
    a("s_setprio 3")
    a("s_cmp_ge_u32 s2, 192")
    a("s_cbranch_scc1 L_ln")
    def hint2(a):
        L = a.newlabel("hint")
        a("s_cmp_lg_u32 s52, 0")
        a(f"s_cbranch_scc1 {L}")
        a("s_lshl_b32 s76, s2, 8")
        a(f"s_add_u32 s76, s76, {mb(MB_P)}")
        a("v_mov_b32 v8, 0")
        a("v_mov_b32 v9, 1")
        a("s_mov_b64 exec, 1")
        a("buffer_store_dword v9, v8, s[48:51], s76 offen offset:4 sc1")
        a("s_mov_b64 exec, -1")
        a.label(L)
    def pub_qkv(a):
        a("s_and_b32 s72, s56, 3")
        a("s_lshl_b32 s72, s72, 12")
        a("s_and_b32 s73, s55, 12")
        a("s_add_u32 s72, s72, s73")
        a(f"s_add_u32 s72, s72, {mb(MB_QKV)}")
        if HINT2 == 1: hint2(a)
        sync.publish(a, 72, 16, init=True)
        if HINT2 == 2: hint2(a)
    def hint(a):
        L = a.newlabel("hint")
        a("s_lshl_b32 s76, s52, 3")
        a("s_add_u32 s76, s76, s60")
        a(f"s_cmp_lg_u32 s76, {HINT_AT}")
        a(f"s_cbranch_scc1 {L}")
        a("s_lshl_b32 s76, s2, 8")
        a(f"s_add_u32 s76, s76, {mb(MB_P)}")
        a("v_mov_b32 v8, 0")
        a("v_mov_b32 v9, 1")
        a("s_mov_b64 exec, 1")
        a("buffer_store_dword v9, v8, s[48:51], s76 offen sc1")
        a("s_mov_b64 exec, -1")
        a.label(L)
    k_front.qkv_body(a, "s2", pub_qkv, hint if WAIT_QKV else None)
    a("s_branch L_attn")
    a.label("L_ln")
    a("s_sub_u32 s3, s2, 192")
    def pub_h(a):
        a("s_lshr_b32 s72, s58, 4")
        a("s_lshl_b32 s72, s72, 13")
        a(f"s_add_u32 s72, s72, {mb(MB_H)}")
        sync.publish(a, 72, 32, init=True)
    k_front.ln_body(a, "s3", pub_h)
    a.stamp_mid(6)
    k_front.gate_own(a)
    a(f"s_cmp_ge_u32 s3, {N_WO}")
    a("s_cbranch_scc1 L_nowo")
    k_front.wo_body(a, "s3")
    a.label("L_nowo")
    a(f"s_mov_b32 s72, {mb(MB_G)}")
    sync.publish(a, 72, 32, init='late')
    a.label("L_attn")
    a.stamp_mid(2)
    if FRONT_ONLY or A_EXIT: a("s_branch L_done")
    def dep_qkv(a):
        a("s_lshr_b32 s72, s61, 3")
        a("s_lshl_b32 s72, s72, 4")
        a("s_bfe_u32 s73, s2, 0x40003")
        a("s_add_u32 s72, s72, s73")
        a("s_lshl_b32 s72, s72, 8")
        a(f"s_add_u32 s79, s72, {mb(MB_QKV)}")
        a("s_lshr_b32 s73, s2, 6")
        a("s_lshl_b32 s73, s73, 2")
        a("s_add_u32 s72, s79, s73")
        if QPOLL_ALL:
            sync.poll(a, None, 0, vt=8, init='late')
            sync.spin(a, 48, "s72", 12, 8, sleep=2)
        else:
            sync.poll(a, 72, 12, vt=8, sleep=2, init='late')
        if HINT2 == 3: hint2(a)
    def dep_qkv2(a):
        L = a.newlabel("q2"); Ld = a.newlabel("q2d")
        a("s_mov_b32 s76, 0")
        a.label(L)
        a("s_buffer_load_dwordx4 s[72:75], s[48:51], s79 glc")
        a("s_add_u32 s76, s76, 1")
        a("s_waitcnt lgkmcnt(0)")
        a("s_min_u32 s72, s72, s73")
        a("s_min_u32 s74, s74, s75")
        a("s_min_u32 s72, s72, s74")
        a("s_cmp_ge_u32 s72, 12")
        a(f"s_cbranch_scc1 {Ld}")
        a("s_sleep 4")
        a(f"s_cmp_lt_u32 s76, {sync.SPIN_MAX}")
        a(f"s_cbranch_scc1 {L}")
        a.label(Ld)
    def dep_g(a):
        a("s_bfe_u32 s72, s2, 0x50003")
        a("s_lshl_b32 s72, s72, 8")
        a(f"s_add_u32 s72, s72, {mb(MB_G)}")
        sync.spin(a, 48, "s72", 64, 0)
    def pub_o_f(a):
        a("s_cmp_gt_u32 s61, 7")
        a("s_cselect_b32 s72, 1, 0")
        for hd in (14, 19, 24):
            a(f"s_cmp_gt_u32 s61, {hd}")
            a("s_addc_u32 s72, s72, 0")
        a("s_lshr_b32 s73, s2, 5")
        a("s_mul_i32 s73, s73, 5")
        a("s_add_u32 s72, s72, s73")
        a(f"s_mul_i32 s72, s72, {6*256}")
        a(f"s_add_u32 s72, s72, {mb(MB_O)}")
        a(f"s_lshr_b32 s73, {(1<<7)|(1<<14)|(1<<19)|(1<<24)}, s61")
        a("s_and_b32 s73, s73, 1")
        a("s_cselect_b32 s73, 0xfff, 63")
        sync.publish(a, 72, "s73")
    def pub_o(a):
        if FUSED: return pub_o_f(a)
        a("s_lshr_b32 s72, s2, 5")
        a("s_lshl_b32 s72, s72, 13")
        a("s_lshr_b32 s73, s61, 3")
        a("s_lshl_b32 s73, s73, 2")
        a("s_add_u32 s72, s72, s73")
        a(f"s_add_u32 s72, s72, {mb(MB_O)}")
        sync.publish(a, 72, 24)
    def last_extra(a):
        k_final2.wof_setup(a, "s2", 147)
        return [k_final2.wof_load(k, 147) for k in range(27)]
    TV = 140
    def tsetup(a):
        a.srd(80, P_W2, S*F*2)
        a("s_lshr_b32 s72, s2, 3")
        a("s_lshl_b32 s72, s72, 2")
        a("s_add_u32 s72, s72, s52")
        a("s_mul_i32 s73, s72, 205")
        a("s_lshr_b32 s73, s73, 11")
        a("s_mul_i32 s76, s73, 10")
        a("s_sub_u32 s72, s72, s76")
        a("s_and_b32 s76, s2, 7")
        a("s_mul_i32 s76, s76, 10")
        a("s_add_u32 s72, s72, s76")
        a("s_lshr_b32 s76, s72, 4")
        a("s_and_b32 s72, s72, 15")
        a(f"s_mul_i32 s76, s76, {928*4096}")
        a("s_lshl_b32 s72, s72, 8")
        a("s_add_u32 s76, s76, s72")
        a("s_lshl_b32 s72, s73, 17")
        a("s_add_u32 s76, s76, s72")
        a("s_cmp_ge_u32 s73, 12")
        a("s_cselect_b32 s82, 0, s82")
        a(f"v_lshrrev_b32 v{TV}, 1, v0")
        a(f"v_lshlrev_b32 v{TV}, 12, v{TV}")
        a(f"v_and_b32 v{TV+1}, 1, v0")
        a(f"v_lshl_add_u32 v{TV}, v{TV+1}, 7, v{TV}")
        a(f"v_add_u32 v{TV}, s76, v{TV}")
        a("s_mov_b32 s78, s73")
    def touch(a):
        a("s_cmp_ge_u32 s78, 29")
        a("s_cselect_b32 s82, 0, s82")
        a(f"buffer_load_dword v{TV+1}, v{TV}, s[80:83], 0 offen")
        a(f"v_add_u32 v{TV}, {12*32*4096}, v{TV}")
        a("s_add_u32 s78, s78, 12")
    k_attn.attn_body(a, "s2", dep_qkv, pub_o, sm=3, tsetup=tsetup if W2_TOUCH else None, touch=touch if W2_TOUCH else None, dep_g=dep_g, dep2=dep_qkv2, last_extra=None if FUSED else last_extra)
    a.stamp_mid(5)
    a("s_cmp_ge_u32 s2, 192")
    a("s_cbranch_scc1 L_done")
    if NO_FINAL: a("s_branch L_done")
    def dep_y(a, i):
        L = a.newlabel("y"); Ld = a.newlabel("yd")
        if i == 0:
            a("s_lshl_b32 s76, s54, 5")
            a("s_add_u32 s76, s76, s53")
            a("s_lshl_b32 s76, s76, 8")
            a(f"s_add_u32 s76, s76, {mb(MB_Y)}")
            a("s_mov_b32 s77, 0")
        else:
            a(f"s_cmp_ge_u32 s{72+i}, 5")
            a(f"s_cbranch_scc1 {Ld}")
        a.label(L)
        a("s_buffer_load_dwordx4 s[72:75], s[48:51], s76 glc")
        a("s_add_u32 s77, s77, 1")
        a("s_waitcnt lgkmcnt(0)")
        a(f"s_cmp_ge_u32 s{72+i}, 5")
        a(f"s_cbranch_scc1 {Ld}")
        if i == 0: a(f"s_sleep {SLP_FIN}")
        a(f"s_cmp_lt_u32 s77, {sync.SPIN_MAX}")
        a(f"s_cbranch_scc1 {L}")
        a.label(Ld)
        if i == 2: a.stamp_mid(7)
    def boxes(a):
        a("s_lshr_b32 s66, s53, 2")
        a("s_lshl_b32 s66, s66, 5")
        a("s_lshr_b32 s67, s2, 3")
        a("s_add_u32 s66, s66, s67")
        a("s_lshl_b32 s66, s66, 8")
        a("s_lshl_b32 s67, s52, 2")
        a("s_add_u32 s66, s66, s67")
        a(f"s_add_u32 s66, s66, {mb(MB_O)}")
        a("s_lshl_b32 s67, s54, 5")
        a("s_add_u32 s67, s67, s53")
        a("s_lshl_b32 s67, s67, 8")
        a(f"s_add_u32 s67, s67, {mb(MB_Y)}")
    if FUSED: k_final.final_body(a, "s2", dep_y)
    else: k_final2.final_body(a, "s2", boxes, sync.SPIN_MAX)
    a("s_branch L_done")
    a.label("L_slotB")
    a("s_sub_u32 s3, s2, 256")
    if INIT_LOW == 1:
        a(f"s_cmp_gt_u32 s3, {sync.N_LATE}")
        a("s_cbranch_scc1 L_noinit")
        a("s_mov_b32 s78, s3")
    elif INIT_LOW == 2:
        a("s_cmp_eq_u32 s3, 255")
        a(f"s_cselect_b32 s78, {sync.N_LATE}, s3")
        a(f"s_cmp_eq_u32 s3, {sync.N_LATE}")
        a("s_cselect_b32 s78, 99, s78")
        a(f"s_cmp_gt_u32 s78, {sync.N_LATE}")
        a("s_cbranch_scc1 L_noinit")
    else:
        a(f"s_cmp_lt_u32 s3, {255 - sync.N_LATE}")
        a("s_cbranch_scc1 L_noinit")
        a(f"s_sub_u32 s78, s3, {255 - sync.N_LATE}")
    a("s_setprio 3")
    sync.init_mailboxes(a, "s78")
    a("s_setprio 0")
    a.stamp_mid(0)
    a.label("L_noinit")
    if CODE_PF:
        Lc = a.newlabel("cpf")
        a("s_lshr_b32 s72, s3, 4")
        a("s_cmp_lg_u32 s72, 2")
        a(f"s_cbranch_scc1 {Lc}")
        a("s_getpc_b64 s[80:81]")
        a.label("L_pc")
        a(f"s_sub_u32 s80, s80, L_pc - {name}")
        a("s_subb_u32 s81, s81, 0")
        a(f"s_mov_b32 s82, L_code_end - {name}")
        a("s_mov_b32 s83, 0x00020000")
        a("s_bfe_u32 s72, s3, 0x10003")
        a("s_lshl_b32 s72, s72, 2")
        a("s_add_u32 s72, s72, s52")
        a("s_lshl_b32 s72, s72, 13")
        a("v_lshlrev_b32 v5, 7, v0")
        a("v_add_u32 v5, s72, v5")
        a("buffer_load_dword v58, v5, s[80:83], 0 offen")
        a.label(Lc)
    if WAIT_QKV:
        Lz = a.newlabel("hz")
        a("s_cmp_lg_u32 s52, 0")
        a(f"s_cbranch_scc1 {Lz}")
        a("s_lshl_b32 s72, s3, 8")
        a(f"s_add_u32 s72, s72, {mb(MB_P)}")
        a("v_lshlrev_b32 v5, 4, v0")
        for i in range(4): a(f"v_mov_b32 v{8+i}, 0")
        a("s_mov_b64 exec, 0xff")
        a("buffer_store_dwordx4 v[8:11], v5, s[48:51], s72 offen sc1")
        a("s_mov_b64 exec, -1")
        a.label(Lz)
    if XW == 1: k_front.xw_touch(a, "s3")
    if XW == 2: k_front.xw_touch2(a, "s3", XWD)
    if W1HEAD:
        Lh = a.newlabel("w1h")
        a("s_cmp_lt_u32 s3, 192")
        a(f"s_cbranch_scc1 {Lh}")
        a("s_cmp_ge_u32 s53, 30")
        a(f"s_cbranch_scc1 {Lh}")
        a.srd(80, P_W1, S*F*2)
        a("s_mul_i32 s57, s53, 205")
        a("s_lshr_b32 s57, s57, 10")
        a("s_mul_i32 s58, s57, 5")
        a("s_sub_u32 s58, s53, s58")
        a("s_and_b32 s56, s3, 7")
        a("s_mul_i32 s56, s56, 9")
        a("s_lshr_b32 s56, s56, 1")
        a("s_add_u32 s56, s56, s58")
        a("s_lshl_b32 s56, s56, 8")
        a(f"s_mul_i32 s57, s57, {32*F*2}")
        a("s_add_u32 s56, s56, s57")
        a("v_lshrrev_b32 v5, 1, v0")
        a(f"v_mul_u32_u24 v5, {F*2}, v5")
        a("v_and_b32 v6, 1, v0")
        a("v_lshl_add_u32 v5, v6, 7, v5")
        a("buffer_load_dword v62, v5, s[80:83], s56 offen")
        a.label(Lh)
    if COOP:
        Le = a.newlabel("head")
        a(f"s_cmp_ge_u32 s3, {k_mlp1.MLP1_GRID}")
        a(f"s_cbranch_scc1 {Le}")
        a.srd(80, P_W1, S*F*2)
        a("s_and_b32 s66, s3, 7")
        a("s_mul_i32 s66, s66, 27")
        a("s_lshr_b32 s67, s3, 3")
        a("s_add_u32 s67, s67, s66")
        a("s_mul_i32 s70, s67, 171")
        a("s_lshr_b32 s70, s70, 10")
        a("s_mul_i32 s68, s70, 6")
        a("s_sub_u32 s69, s67, s68")
        a("s_lshl_b32 s66, s70, 8")
        a("s_lshl_b32 s68, s52, 4")
        a("s_add_u32 s67, s69, s68")
        a(f"s_mul_i32 s67, s67, {32*F*2}")
        a("s_add_u32 s66, s66, s67")
        a("v_lshrrev_b32 v5, 1, v0")
        a(f"v_mul_u32_u24 v5, {F*2}, v5")
        a("v_and_b32 v6, 1, v0")
        a("v_lshl_add_u32 v5, v6, 7, v5")
        a("buffer_load_dword v62, v5, s[80:83], s66 offen")
        a("s_cmp_ge_u32 s69, 3")
        a(f"s_mov_b32 s67, {3*32*F*2}")
        a(f"s_cselect_b32 s67, {(-3*32*F*2) & 0xffffffff}, s67")
        a("s_add_u32 s67, s67, s66")
        a("s_lshr_b32 s68, 0x80402010, s70")
        a("s_cmp_lt_u32 s70, 32")
        a("s_cselect_b32 s68, s68, 0")
        a("s_and_b32 s68, s68, 1")
        a(f"s_cbranch_scc0 {Le}")
        a("buffer_load_dword v63, v5, s[80:83], s67 offen")
        a.label(Le)
    if TLBW:
        a("s_lshr_b32 s53, s3, 3")
        a("s_lshl_b32 s53, s53, 2")
        a("s_add_u32 s53, s53, s52")
        a("s_lshl_b32 s53, s53, 6")
        a("v_add_u32 v5, s53, v0")
        a(f"v_lshlrev_b32 v5, {TLBW}, v5")
        a.srd(80, P_W1, S*F*2)
        a("buffer_load_dword v62, v5, s[80:83], 0 offen nt")
        a.srd(80, P_W2, S*F*2)
        a("buffer_load_dword v63, v5, s[80:83], 0 offen nt")
        a.srd(80, P_WS, CNT_OFF)
        a("buffer_load_dword v59, v5, s[80:83], 0 offen nt")
    a(f"s_setprio {BPRIO}")
    if INIT_LATE:
        a(f"s_cmp_lt_u32 s3, {k_mlp1.MLP1_GRID}")
        a("s_cbranch_scc1 L_mlp1")
    a("s_waitcnt vmcnt(0)")
    sync.poll(a, None, 0, vt=5, init=True)
    a.stamp_mid(5)
    a("s_cmp_lt_u32 s3, 192")
    a("s_cbranch_scc1 L_mlp1")
    if PF_AFTER_H:
        a("s_bfe_u32 s72, s3, 0x20001")
        a("s_lshl_b32 s72, s72, 5")
        a("s_and_b32 s73, s3, 31")
        a("s_add_u32 s72, s72, s73")
        a("s_lshl_b32 s72, s72, 8")
        a(f"s_add_u32 s72, s72, {mb(MB_H)}")
        sync.poll(a, 72, 16, vt=5, sleep=4)
    a.srd(40, P_W1, S*F*2)
    a("s_sub_u32 s67, 255, s3")
    a(f"s_mul_i32 s66, s52, {512*F*2}")
    a("s_lshl_b32 s68, s67, 13")
    a("s_add_u32 s66, s66, s68")
    a("v_lshlrev_b32 v5, 7, v0")
    a("v_add_u32 v5, s66, v5")
    for r in range(PF1):
        a(f"buffer_load_dword v{60+(r&1)}, v5, s[40:43], 0 offen")
        a(f"v_add_u32 v5, {64*8192}, v5")
        if r >= PFD: a(f"s_waitcnt vmcnt({PFD})")
    a(f"s_cmp_ge_u32 s3, {k_mlp1.MLP1_GRID}")
    a("s_cbranch_scc1 L_aux")
    a.label("L_mlp1")
    if B_EXIT: a("s_branch L_done")
    def dep_h(a):
        a("s_lshl_b32 s72, s52, 5")
        a("s_and_b32 s73, s3, 31")
        a("s_add_u32 s72, s72, s73")
        a("s_lshl_b32 s72, s72, 8")
        a(f"s_add_u32 s72, s72, {mb(MB_H)}")
        sync.spin(a, 48, "s72", 16, 5, sleep=SLP_H)
    def dep_h_touch(a, part=0):
        if INIT_LATE and part != 2:
            a("s_waitcnt vmcnt(0)")
            sync.poll(a, None, 0, vt=12, init=True)
        if part == 1: return
        dep_h(a)
        a.stamp_mid(5)
        if COOP_H:
            a("s_and_b32 s72, s3, 7")
            a("s_mul_i32 s72, s72, 9")
            a("s_lshr_b32 s72, s72, 1")
            a("s_sub_u32 s72, s66, s72")
            a("s_lshl_b32 s72, s72, 6")
            a("v_add_u32 v60, s72, v0")
            a("v_mul_u32_u24 v61, 2731, v60")
            a("v_lshrrev_b32 v61, 16, v61")
            a("v_mul_u32_u24 v61, 120, v61")
            a("v_add_lshl_u32 v60, v60, v61, 7")
            a(f"buffer_load_dword v61, v60, s[48:51], s{k_mlp1.S_F} offen sc1")
    def hold(a, word=0):
        L = a.newlabel("hold"); Ld = a.newlabel("holdd")
        a("s_cmp_ge_u32 s3, 192")
        a(f"s_cbranch_scc1 {Ld}")
        a("s_lshl_b32 s72, s3, 8")
        a(f"s_add_u32 s72, s72, {mb(MB_P) + 4*word}")
        a("s_and_b32 s73, s3, 63")
        a("s_lshl_b32 s73, s73, 8")
        a(f"s_add_u32 s73, s73, {mb(MB_QKV)}")
        a("s_mov_b32 s74, 0")
        a.label(L)
        a("s_buffer_load_dword s75, s[48:51], s72 glc")
        a("s_add_u32 s74, s74, 1")
        a("s_waitcnt lgkmcnt(0)")
        a("s_cmp_lg_u32 s75, 0")
        a(f"s_cbranch_scc1 {Ld}")
        a("s_sleep 4")
        a("s_and_b32 s75, s74, 15")
        a(f"s_cbranch_scc1 {L}")
        a("s_buffer_load_dword s75, s[48:51], s73 glc")
        a("s_waitcnt lgkmcnt(0)")
        a("s_cmp_ge_u32 s75, 12")
        a(f"s_cbranch_scc1 {Ld}")
        a(f"s_cmp_lt_u32 s74, {sync.SPIN_MAX}")
        a(f"s_cbranch_scc1 {L}")
        a.label(Ld)
    def w2_tail(a):
        a.srd(80, P_W2, S*F*2)
        a("s_lshr_b32 s72, s3, 3")
        a("s_mul_i32 s73, s72, 86")
        a("s_lshr_b32 s73, s73, 8")
        a("s_mul_i32 s76, s73, 3")
        a("s_sub_u32 s72, s72, s76")
        a("s_and_b32 s76, s3, 7")
        a("s_mul_i32 s76, s76, 10")
        a("s_add_u32 s73, s73, s76")
        a("s_lshr_b32 s76, s73, 4")
        a("s_and_b32 s73, s73, 15")
        a(f"s_mul_i32 s76, s76, {928*4096}")
        a("s_lshl_b32 s73, s73, 8")
        a("s_add_u32 s76, s76, s73")
        a("s_lshl_b32 s72, s72, 2")
        a("s_add_u32 s72, s72, s52")
        a(f"s_add_u32 s72, s72, {29 - 12*W2_TAIL}")
        a("s_lshl_b32 s72, s72, 17")
        a("s_add_u32 s76, s76, s72")
        a("v_lshrrev_b32 v60, 1, v0")
        a("v_lshlrev_b32 v60, 12, v60")
        a("v_and_b32 v61, 1, v0")
        a("v_lshl_add_u32 v60, v61, 7, v60")
        a("v_add_u32 v60, s76, v60")
        for e in range(W2_TAIL):
            a(f"buffer_load_dword v{61+e}, v60, s[80:83], 0 offen")
            a(f"v_add_u32 v60, {12*32*4096}, v60")
    def checks(a, wave):
        Lg = a.newlabel("g")
        a(f"s_cmp_lg_u32 s52, {wave}")
        a(f"s_cbranch_scc1 {Lg}")
        sync.spin_init(a, 14, True)
        a("s_bfe_u32 s73, s2, 0x50003")
        a("s_lshl_b32 s73, s73, 8")
        a(f"s_add_u32 s73, s73, {mb(MB_G)}")
        sync.spin(a, 48, "s73", 64, 0)
        a.label(Lg)
    def pub_u(a, part):
        if part == 0:
            a("s_mul_i32 s18, s66, 565")
            a("s_lshr_b32 s18, s18, 12")
            a("s_lshr_b32 s19, s67, 1")
            a("s_mul_i32 s19, s19, 5")
            a("s_add_u32 s18, s18, s19")
            a("s_lshl_b32 s18, s18, 12")
            a(f"s_add_u32 s18, s18, {mb(MB_U)}")
            a("s_lshr_b32 s19, 0x204080, s66")
            a("s_cmp_lt_u32 s66, 32")
            a("s_cselect_b32 s19, s19, 0")
            a("s_and_b32 s19, s19, 1")
            a("s_cselect_b32 s19, -1, 0xffff")
        else:
            checks(a, 1)
            sync.publish(a, 18, "s19", vt=14)
    def early2(a):
        a("s_barrier")
        k_mlp2f.mlp2_body(a, "s3", 3, None, None, None, part=1)
    (k_mlp1y if M1Y else k_mlp1).mlp1_body(a, "s3", dep_h_touch, pub_u, sm=0, epi=early2, hold=hold if WAIT_QKV else None, hold2=(lambda a: hold(a, 1)) if HINT2 else None)
    a.stamp_mid(2)
    a("s_branch L_mlp2")
    a.label("L_aux")
    if B_EXIT: a("s_branch L_done")
    if PFMODE == "col":
        a("s_and_b32 s66, s3, 7")
        a("s_mul_i32 s66, s66, 9")
        a("s_lshr_b32 s66, s66, 1")
        a("s_lshr_b32 s67, s67, 3")
        a("s_add_u32 s66, s66, s67")
        a("s_lshl_b32 s66, s66, 8")
        a(f"s_mul_i32 s69, s52, {(32 if M1Y else 512)*F*2}")
        a("s_add_u32 s66, s66, s69")
        a("v_lshrrev_b32 v5, 1, v0")
        a(f"v_mul_u32_u24 v5, {F*2}, v5")
        a("v_and_b32 v6, 1, v0")
        a("v_lshl_add_u32 v5, v6, 7, v5")
        if PFH:
            dep_h(a)
            a(f"s_mul_i32 s69, s52, {32*18*1024}")
            a("s_lshl_b32 s70, s67, 13")
            a("s_add_u32 s69, s69, s70")
            a(f"s_add_u32 s69, s69, {HT_OFF}")
            a("v_lshlrev_b32 v7, 7, v0")
        g0 = 6 if COOP else 0
        a(f"s_add_u32 s66, s66, {g0*32*F*2}")
        if PFH and COOP_H: a(f"s_add_u32 s69, s69, {12*18*1024}")
        for n in range(16 - g0):
            a(f"buffer_load_dword v{60+(n&1)}, v5, s[40:43], s66 offen")
            a(f"s_add_u32 s66, s66, {(128 if M1Y else 32)*F*2}")
            if PFH and n < (9 if COOP_H else 14):
                a(f"buffer_load_dword v{62+(n&1)}, v7, s[48:51], s69 offen sc1")
                a(f"s_add_u32 s69, s69, {5*8192}")
            a(f"s_waitcnt vmcnt({PFD})")
        a.stamp_mid(1)
        a.srd(40, P_W2, S*F*2)
        a("s_lshl_b32 s68, s67, 2")
        a("s_add_u32 s68, s68, s52")
        a("s_and_b32 s66, s3, 7")
        a("s_mul_i32 s66, s66, 10")
        a("s_lshr_b32 s69, s68, 1")
        a("s_add_u32 s66, s66, s69")
        a("s_lshr_b32 s67, s66, 4")
        a("s_and_b32 s66, s66, 15")
        a(f"s_mul_i32 s67, s67, {928*4096}")
        a("s_lshl_b32 s66, s66, 8")
        a("s_add_u32 s67, s67, s66")
        a("s_and_b32 s66, s52, 1")
        a("s_lshl_b32 s66, s66, 17")
        a("s_add_u32 s67, s67, s66")
        a("v_lshrrev_b32 v5, 1, v0")
        a("v_lshlrev_b32 v5, 12, v5")
        a("v_and_b32 v6, 1, v0")
        a("v_lshl_add_u32 v5, v6, 7, v5")
        a("v_add_u32 v5, s67, v5")
        for n in range(PF2):
            a(f"buffer_load_dword v{60+(n&1)}, v5, s[40:43], 0 offen")
            a(f"v_add_u32 v5, {64*4096}, v5")
            a(f"s_waitcnt vmcnt({PFD})")
    else:
        for n in range(-(-(576 - 64*PF1)//40) if PFW1 else 0):
            a(f"buffer_load_dword v{60+(n&1)}, v5, s[40:43], 0 offen")
            a(f"v_add_u32 v5, {40*8192}, v5")
            a(f"s_waitcnt vmcnt({PFD})")
        a.stamp_mid(1)
        a.srd(40, P_W2, S*F*2)
        a("s_lshl_b32 s68, s67, 2")
        a("s_add_u32 s68, s68, s52")
        a("s_lshr_b32 s66, s68, 5")
        a("s_and_b32 s68, s68, 31")
        a(f"s_mul_i32 s66, s66, {928*4096}")
        a("s_lshl_b32 s68, s68, 13")
        a("s_add_u32 s66, s66, s68")
        a("v_lshlrev_b32 v5, 7, v0")
        a("v_add_u32 v5, s66, v5")
        for n in range(PF2):
            a(f"buffer_load_dword v{60+(n&1)}, v5, s[40:43], 0 offen")
            a(f"v_add_u32 v5, {32*8192}, v5")
            a(f"s_waitcnt vmcnt({PFD})")
    a("s_waitcnt vmcnt(0)")
    a.stamp_mid(2)
    a(f"s_cmp_ge_u32 s3, {k_mlp2.MLP2_GRID}")
    a("s_cbranch_scc1 L_done")
    k_mlp2f.mlp2_body(a, "s3", 3, None, None, None, part=1)
    checks(a, 0)
    a("s_barrier")
    a.label("L_mlp2")
    if k_mlp1y.PST: a("s_branch L_done")
    def dep_u(a):
        a("s_mul_i32 s73, s67, 5")
        a("s_add_u32 s73, s73, s69")
        a("s_lshl_b32 s73, s73, 4")
        a("s_add_u32 s73, s73, s66")
        a("s_lshl_b32 s73, s73, 8")
        a(f"s_add_u32 s73, s73, {mb(MB_U)}")
        a("s_cmp_eq_u32 s69, 4")
        a("s_cselect_b32 s76, 14, 16")
        (sync.spin(a, 48, "s73", "s76", 8, sleep=1) if UPOLL_ALL else sync.poll(a, 73, "s76", vt=8, sleep=2))
        if COOP_U:
            a("s_lshr_b32 s70, s3, 3")
            a("s_mul_i32 s70, s70, 86")
            a("s_lshr_b32 s70, s70, 8")
            a("s_mul_i32 s73, s52, 10")
            a("s_add_u32 s70, s70, s73")
            a("s_lshl_b32 s70, s70, 6")
            a("s_add_u32 s70, s70, 288")
            a("v_add_u32 v60, s70, v0")
            a("v_min_u32 v60, 2783, v60")
            a("v_mul_u32_u24 v61, 5462, v60")
            a("v_lshrrev_b32 v61, 18, v61")
            a("v_mul_u32_u24 v61, 96, v61")
            a("v_add_lshl_u32 v60, v60, v61, 7")
            a(f"s_mul_i32 s70, s69, {58*18*1024}")
            a("s_mul_i32 s73, s67, 6144")
            a("s_add_u32 s70, s70, s73")
            a(f"s_add_u32 s70, s70, {U_OFF}")
            a("s_mov_b32 s77, s70")
    def ybox(a):
        a("s_lshl_b32 s76, s67, 1")
        a("s_add_u32 s76, s76, s71")
        a("s_lshl_b32 s76, s76, 5")
        a("s_lshl_b32 s70, s66, 1")
        a("s_add_u32 s76, s76, s70")
        a("s_add_u32 s76, s76, s72")
        a("s_lshl_b32 s76, s76, 8")
        a(f"s_add_u32 s76, s76, {mb(MB_Y)}")
    def dep_o(a, block):
        if block == "look":
            a("v_readfirstlane_b32 s75, v57")
            a("s_lshl_b32 s76, s53, 1")
            a("s_cmp_ge_u32 s75, s76")
            a("s_cselect_b32 s79, 1, 0")
            return
        a("s_lshr_b32 s73, s66, 1")
        a("s_mul_i32 s73, s73, 5")
        a("s_add_u32 s73, s73, s69")
        a("s_mul_i32 s73, s73, 6")
        a("s_lshl_b32 s70, s67, 1")
        a("s_add_u32 s73, s73, s70")
        a("s_and_b32 s70, s66, 1")
        a("s_add_u32 s73, s73, s70")
        a("s_lshl_b32 s73, s73, 8")
        a(f"s_add_u32 s73, s73, {mb(MB_O)}")
        a("s_lshl_b32 s76, s53, 1")
        if block:
            sync.spin(a, 48, "s73", "s76", 8, sleep=2)
            if not k_mlp1.EPIST: a.stamp_mid(6)
        else:
            a("v_mov_b32 v56, 0")
            a("s_mov_b64 exec, 1")
            a("buffer_load_dword v57, v56, s[48:51], s73 offen sc1")
            a("s_mov_b64 exec, -1")
    if FUSED: k_mlp2f.mlp2_body(a, "s3", 3, dep_u, dep_o, ybox, part=2)
    else: k_mlp2.mlp2_body(a, "s3", 3, dep_u, ybox)
    a.label("L_done")
    if DIAG is not None:
        wg, slot, kind = DIAG
        Ld = a.newlabel("diag"); Lw = a.newlabel("diagw")
        a(f"s_cmp_lg_u32 s2, {wg}")
        a(f"s_cbranch_scc1 {Ld}")
        a("s_waitcnt vmcnt(0)")
        if slot == "end":
            a.stamp_mid(0); slot = 0
        if slot is None:
            a("s_mov_b32 s70, 0")
        elif kind == "t":
            a(f"s_sub_u32 s70, s{4+slot}, s88")
            a("s_mul_i32 s70, s70, 10")
        else:
            a(f"s_lshr_b32 s70, s{93+slot}, 1")
        a("s_add_u32 s70, s70, 20000")
        a.label(Lw)
        a("s_sleep 1")
        a("s_memrealtime s[90:91]")
        a("s_waitcnt lgkmcnt(0)")
        a("s_sub_u32 s71, s90, s88")
        a("s_cmp_lt_u32 s71, s70")
        a(f"s_cbranch_scc1 {Lw}")
        a.label(Ld)
    a.end()
    a.label("L_end")
    a("s_endpgm")
    a.label("L_code_end")

def build(stamp=False):
    a = Asm()
    a.stamp = stamp
    fin = NAME + "_kernel"
    out = HEADER
    out += (f"; @launch kernel={fin} grid=(512,1,1) block=(256,1,1) lds=81920\n" if LIST else "; @launch grid=(512,1,1) block=(256,1,1) lds=81920\n")
    out += DOC
    out += '.amdgcn_target "amdgcn-amd-amdhsa--gfx950"\n.text\n'
    gen_main(a, fin)
    if PRE:
        out = out.replace("; @launch kernel=", "; @launch kernel=pre_kernel grid=(256,1,1) block=(256,1,1) lds=0\n; @launch kernel=", 1)
        st = a.stamp; a.stamp = False
        a.kernel_begin("pre_kernel")
        if PRE > 1:
            a("s_cmp_ge_u32 s2, 256")
            a("s_cbranch_scc1 L_pre_end")
            a.load_kernargs()
            sync.wave_setup(a)
            k_front.xw_touch(a, "s2")
            a("s_getpc_b64 s[80:81]")
            a.label("L_pc2")
            a(f"s_sub_u32 s80, s80, L_pc2 - {fin}")
            a("s_subb_u32 s81, s81, 0")
            a(f"s_mov_b32 s82, L_code_end - {fin}")
            a("s_mov_b32 s83, 0x00020000")
            a("s_lshr_b32 s72, s2, 3")
            a("s_lshl_b32 s72, s72, 2")
            a("s_add_u32 s72, s72, s52")
            a("s_lshl_b32 s72, s72, 13")
            a("v_lshlrev_b32 v5, 7, v0")
            a("v_add_u32 v5, s72, v5")
            a("buffer_load_dword v58, v5, s[80:83], 0 offen")
            a("s_waitcnt vmcnt(0)")
            a.label("L_pre_end")
        a("s_endpgm")
        a.stamp = st
    out += a.text()
    out += '.section .rodata,"a"\n'
    if PRE: out += ".p2align 6\n" + descriptor("pre_kernel", 64, None)
    out += ".p2align 6\n" + descriptor(fin, 256, None)
    return out

if __name__ == "__main__":
    open("main.s", "w").write(build())
    open("stamp.s", "w").write(build(True))
    open("main_l.s", "w").write(build("lite"))
    LIST = False
    open("final.s", "w").write(build())
    LIST = True
    VARS = eval(open("vars.txt").read())
    import copy
    for nm, kv in VARS.items():
        saved = {}
        for k, v in kv.items():
            mod, name = (globals()[k.split(".")[0]].__dict__, k.split(".")[1]) if "." in k else (globals(), k)
            saved[k] = (mod, name, mod[name]); mod[name] = v
        open(f"gen/{nm}.s", "w").write(build(False))
        open(f"gen/{nm}_s.s", "w").write(build(True))
        open(f"gen/{nm}_l.s", "w").write(build("lite"))
        for mod, name, v in saved.values(): mod[name] = v
    print("wrote")
```

```python
from common import *

MLP2_GRID = 240
for n in range(30):
    assert (n*86) >> 8 == n//3

VF = [1, 2]; VT = [3, 4]
VDT, VDT2, VDF = 5, 6, 7
FR = [8, 28]
ACC = 64
TP = 160
def acc(i, n): return ACC + 16*(2*i + n)
S_T, S_F, S_CNT = 54, 55, 58
STAGE = 20480
NST = 29
LOOKS = (2,)
YIELD = 1
P0 = (0, 4, 8, 11, 14)
PC = (4, 4, 3, 3, 4)

def mlp2_body(a, wgreg, sm, dep, dep_o, ybox, post=None, part=0):
    real = a
    if part == 2:
        a = Asm()
    a.srd(40, P_W2, S*F*2)
    a.srd(44, P_WS, WS_SIZE)
    a(f"s_lshr_b32 s67, {wgreg}, 3")
    a("s_mul_i32 s66, s67, 86")
    a("s_lshr_b32 s66, s66, 8")
    a("s_mul_i32 s68, s66, 3")
    a("s_sub_u32 s67, s67, s68")
    a(f"s_and_b32 s68, {wgreg}, 7")
    a("s_mul_i32 s68, s68, 10")
    a("s_add_u32 s66, s66, s68")
    a("s_lshr_b32 s69, s66, 4")
    a("s_and_b32 s66, s66, 15")
    a("s_lshl_b32 s70, s69, 2")
    a(f"s_lshr_b32 s53, {sum(c << (4*i) for i, c in enumerate(PC))}, s70")
    a("s_and_b32 s53, s53, 15")
    a(f"s_lshr_b32 s65, {sum(c << (4*i) for i, c in enumerate(P0))}, s70")
    a("s_and_b32 s65, s65, 15")
    a("s_and_b32 s71, s52, 1")
    a("s_lshr_b32 s72, s52, 1")
    a("s_lshl_b32 s56, s66, 8")
    a("s_lshl_b32 s70, s52, 15")
    a("s_add_u32 s56, s56, s70")
    a("s_mul_i32 s57, s67, 6144")
    a(f"s_mul_i32 s70, s72, {18*1024}")
    a("s_add_u32 s57, s57, s70")
    a("s_mul_i32 s70, s71, 3072")
    a("s_add_u32 s57, s57, s70")
    a(f"s_mul_i32 s{S_T}, s69, {928*4096}")
    a(f"s_add_u32 s{S_T}, s{S_T}, s56")
    a(f"s_mul_i32 s{S_F}, s69, {58*18*1024}")
    a(f"s_add_u32 s{S_F}, s{S_F}, s57")
    a(f"s_add_u32 s{S_F}, s{S_F}, {U_OFF}")
    a("s_lshl_b32 s60, s52, 11")
    a("s_mul_i32 s61, s52, 3072")
    a("s_add_u32 s61, s61, 8192")
    a(f"s_mov_b32 s62, {32*4096}")
    a(f"s_mov_b32 s63, {2*18*1024}")
    a(f"v_lshrrev_b32 v8, 4, v0")
    a(f"v_and_b32 v9, 3, v0")
    a(f"v_lshlrev_b32 v9, 4, v9")
    a(f"v_lshl_add_u32 v8, v8, 6, v9")
    a(f"v_bfe_u32 v9, v0, 2, 2")
    a(f"v_lshl_add_u32 v{VDT}, v9, 12, v8")
    a(f"v_add_u32 v{VDT2}, {4*4096}, v{VDT}")
    a(f"v_lshlrev_b32 v{VDF}, 4, v0")
    def m0t(buf, i): a(f"s_add_u32 m0, s60, {buf*STAGE + i*1024}")
    def m0f(buf): a(f"s_add_u32 m0, s61, {buf*STAGE}")
    def ldt(i, st=S_T):
        a(f"buffer_load_dwordx4 v{VDT2 if i else VDT}, s[40:43], s{st} offen sc1 lds")
        if i: a(f"s_add_u32 s{st}, s{st}, s62")
    def ldf(i):
        a(f"buffer_load_dwordx4 v{VDF}, s[44:47], s{S_F} offen offset:{i*1024} sc1 lds")
        if i == 2: a(f"s_add_u32 s{S_F}, s{S_F}, s63")
    for st in range(4):
        for i in range(2):
            m0t(st, i); a("s_nop 0"); ldt(i)
    a(f"v_lshrrev_b32 v8, 5, v0")
    a(f"v_lshlrev_b32 v8, 10, v8")
    a(f"v_lshl_add_u32 v8, v9, 6, v8")
    a(f"v_bfe_u32 v9, v0, 4, 1")
    a(f"v_lshl_add_u32 v8, v9, 5, v8")
    a(f"v_and_b32 v9, 3, v0")
    a(f"v_lshl_add_u32 v8, v9, 3, v8")
    a("s_lshl_b32 s70, s72, 9")
    a(f"v_add_u32 v{VT[0]}, s70, v8")
    a(f"v_add_u32 v{VT[1]}, {2*STAGE}, v{VT[0]}")
    a("s_mul_i32 s70, s71, 3072")
    a("s_add_u32 s70, s70, 8192")
    a(f"v_add_u32 v{VF[0]}, s70, v{VDF}")
    a(f"v_add_u32 v{VF[1]}, {2*STAGE}, v{VF[0]}")
    if part == 1: return
    a = real
    dep(a)
    for st in range(3):
        m0f(st); a("s_nop 0")
        for i in range(3): ldf(i)
    def rdF(dst, buf, step, i):
        return f"ds_read_b128 {vr(dst,4)}, v{VF[buf>>1]} offset:{(buf&1)*STAGE + step*6144 + i*1024}"
    def rdT(dst, buf, step, n, sec):
        return f"ds_read_b64_tr_b16 {vr(dst,2)}, v{VT[buf>>1]} offset:{(buf&1)*STAGE + step*4096 + sec*2048 + n*256}"
    def reads(sn, buf, step):
        b = FR[sn]
        Fr = [((sn, "F", i), rdF(b+4*i, buf, step, i)) for i in range(3)]
        T = [((sn, "T", n), rdT(b+12+4*n+2*sec, buf, step, n, sec)) for n in range(2) for sec in range(2)]
        return [Fr[0], T[0], T[1], T[2], T[3], Fr[1], Fr[2]]
    def mfma(ls, sn, k, first):
        b = FR[sn]
        i, n = k >> 1, k & 1
        ls.need([(sn, "F", i), (sn, "T", n)])
        if YIELD > 1:
            if k % YIELD == 0: a("s_setprio 0")
            if k % YIELD == 1: a("s_setprio 2")
        elif YIELD < 0:
            if k % -YIELD == 0: a("s_setprio 0")
            if k % -YIELD == -YIELD - 1: a("s_setprio 2")
        c = vr(acc(i, n), 16)
        a(f"v_mfma_f32_32x32x16_bf16 {c}, {vr(b+4*i,4)}, {vr(b+12+4*n,4)}, {'0' if first else c}")
    def body(c, vm=10, mid=None, head=None, mid2=None):
        buf = c % 4; pb = (c - 1) % 4; last = (c == NST - 1)
        ls = LdsSched(a, [r[0] for r in reads(0, buf, 0)])
        ls.drain()
        if head: head()
        r = reads(1, buf, 1)
        mfma(ls, 0, 0, c == 0)
        m0f(pb)
        for x in r[0:3]: ls.read(*x)
        ldf(0)
        mfma(ls, 0, 1, c == 0)
        for x in r[3:7]: ls.read(*x)
        mfma(ls, 0, 2, c == 0)
        ldf(1)
        mfma(ls, 0, 3, c == 0)
        mfma(ls, 0, 4, c == 0)
        ldf(2)
        mfma(ls, 0, 5, c == 0)
        if mid: mid()
        ls.drain()
        mfma(ls, 1, 0, False)
        if mid2: mid2()
        a(f"s_waitcnt vmcnt({vm})")
        a("s_barrier")
        r = [] if last else reads(0, (c+1) % 4, 0)
        m0t(buf, 0)
        for x in r[0:3]: ls.read(*x)
        mfma(ls, 1, 1, False)
        for x in r[3:7]: ls.read(*x)
        mfma(ls, 1, 2, False)
        ldt(0)
        mfma(ls, 1, 3, False)
        m0t(buf, 1)
        mfma(ls, 1, 4, False)
        ldt(1)
        if last: m0f(buf)
        mfma(ls, 1, 5, False)
        if last:
            for i in range(3): ldf(i)
    if post:
        post(a)
    x = 1 if post else 0
    a(f"s_waitcnt vmcnt({6+x})")
    a("s_barrier")
    for r in reads(0, 0, 0): a(r[1])
    a("s_setprio 0")
    a.stamp_mid(sm)
    body(0, 6+x)
    body(1, 8+x)
    a(f"s_mov_b32 s{S_CNT}, 5")
    L = a.newlabel("mlp2")
    a.raw(".p2align 6")
    a.label(L)
    for c in range(2, 6): body(c)
    a(f"s_sub_u32 s{S_CNT}, s{S_CNT}, 1")
    a(f"s_cmp_lg_u32 s{S_CNT}, 0")
    a(f"s_cbranch_scc1 {L}")
    body(22); body(23, mid=lambda: dep_o(a, "addr"))
    def kill28():
        a("s_cmp_eq_u32 s69, 4")
        a("s_cselect_b32 s42, 0, s42")
        a("s_cselect_b32 s46, 0, s46")
    body(24, mid=kill28)
    def switch():
        a.srd(40, P_WS, 0)
        a(f"s_mov_b32 s46, {WS_SIZE}")
        a("s_mov_b32 s79, 0")
        a(f"s_lshl_b32 s{S_T}, s65, 17")
        a(f"s_add_u32 s{S_T}, s{S_T}, s56")
        a(f"s_add_u32 s{S_T}, s{S_T}, {O_OFF}")
        a(f"s_mov_b32 s78, s{S_T}")
        a(f"s_mul_i32 s{S_F}, s65, s63")
        a(f"s_add_u32 s{S_F}, s{S_F}, s57")
        a(f"s_add_u32 s{S_F}, s{S_F}, {WOF_OFF}")
        a("s_lshl_b32 s70, s66, 1")
        a("s_add_u32 s70, s70, s72")
        a("s_lshl_b32 s70, s70, 6")
        a("v_and_b32 v48, 31, v0")
        a("v_add_u32 v48, s70, v48")
        a("v_lshlrev_b32 v49, 2, v48")
        a("v_lshlrev_b32 v48, 1, v48")
        a(f"s_mov_b32 s70, {G_OFF}")
        a.srd(80, P_B2, S*2)
        a("s_cmp_eq_u32 s69, 0")
        a("s_cselect_b32 s82, s82, 0")
        a("buffer_load_dword v50, v49, s[48:51], s70 offen sc1")
        a("buffer_load_dword v51, v49, s[48:51], s70 offen offset:128 sc1")
        a("buffer_load_ushort v52, v48, s[80:83], 0 offen")
        a("buffer_load_ushort v53, v48, s[80:83], 0 offen offset:64")
    def peek(): a("s_buffer_load_dword s75, s[48:51], s59 glc")
    def look(j):
        def f():
            L = a.newlabel("lk")
            a("s_cmp_ge_u32 s75, s64")
            a("s_cselect_b32 s75, 1, 0")
            a("s_cmp_gt_u32 s75, s79")
            a(f"s_cbranch_scc0 {L}")
            a("s_mov_b32 s79, 1")
            a(f"s_mov_b32 s42, {WS_SIZE}")
            for jj in range(j):
                for i in range(2):
                    m0t((NST + jj) % 4, i); a("s_nop 0"); ldt(i, 78)
            a.label(L)
            if j == 3:
                a("s_cmp_lt_u32 s53, 4")
                a("s_cselect_b32 s42, 0, s42")
                a("s_cselect_b32 s46, 0, s46")
        return f
    def nolook3():
        a("s_cmp_lt_u32 s53, 4")
        a("s_cselect_b32 s42, 0, s42")
        a("s_cselect_b32 s46, 0, s46")
    for j in range(4):
        on = j in LOOKS
        body(25 + j, mid=switch if j == 0 else None, head=peek if on else None, mid2=look(j) if on else (nolook3 if j == 3 else None))
    a.stamp_mid(7)
    a("s_setprio 2")
    Lgo = a.newlabel("go")
    a("s_cmp_lg_u32 s79, 0")
    a(f"s_cbranch_scc1 {Lgo}")
    dep_o(a, True)
    a(f"s_mov_b32 s42, {WS_SIZE}")
    for j in range(4):
        if j == 3:
            a("s_cmp_lt_u32 s53, 4")
            a("s_cselect_b32 s42, 0, s42")
        for i in range(2):
            m0t((NST + j) % 4, i); a("s_nop 0"); ldt(i, 78)
    a.label(Lgo)
    for n in range(2):
        a(f"v_sub_f32 v{50+n}, 1.0, v{50+n}")
        a(f"v_lshlrev_b32 v{52+n}, 16, v{52+n}")
        a(f"v_mul_f32 v{52+n}, v{52+n}, v{50+n}")
    a(f"s_mul_i32 s73, s69, {YPB_SZ}")
    a("s_lshl_b32 s70, s67, 1")
    a("s_add_u32 s70, s70, s71")
    a(f"s_mul_i32 s70, s70, {3*64*2048}")
    a("s_add_u32 s73, s73, s70")
    a("s_lshl_b32 s70, s66, 1")
    a("s_add_u32 s70, s70, s72")
    a("s_lshl_b32 s70, s70, 12")
    a("s_add_u32 s73, s73, s70")
    a(f"s_add_u32 s73, s73, {YP_OFF}")
    ybox(a)
    a("v_mov_b32 v54, 0")
    a("v_mov_b32 v55, 1")
    for i in range(3):
        for n in range(2):
            for e in range(16):
                r = acc(i, n) + e
                a(f"v_fma_f32 v{r}, v{r}, v{50+n}, v{52+n}")
    a("s_waitcnt vmcnt(0)")
    a("s_barrier")
    ls = LdsSched(a)
    def prd(k): return ((NST + (k >> 1)) % 4, k & 1)
    def fread(i, k): ls.read(("F", i, k), rdF(8 + 4*k, *prd(k), i))
    def tread(k):
        for n in range(2):
            for sec in range(2):
                ls.read(("T", k), rdT(TP + 8*k + 4*n + 2*sec, *prd(k), n, sec))
    def signal(i, vm):
        a(f"s_waitcnt vmcnt({vm})")
        a("s_mov_b64 exec, 1")
        a(f"buffer_atomic_add v55, v54, s[48:51], s76 offen offset:{4*i} sc1")
        a("s_mov_b64 exec, -1")
    def finish(i):
        L = []
        for n in range(2):
            b = acc(i, n)
            for hf in range(2):
                for e in range(4*hf, 4*hf+4):
                    L.append(f"v_cvt_pk_bf16_f32 v{b+e}, v{b+2*e}, v{b+2*e+1}")
                L.append(f"buffer_store_dwordx4 {vr(b+4*hf,4)}, v{VDF}, s[48:51], s73 offen offset:{n*2048+hf*1024} sc1")
        if i < 2: L.append(f"s_add_u32 s73, s73, {64*2048}")
        return L
    for k in range(2):
        fread(0, k); tread(k)
    for i in range(3):
        fin = finish(i-1) if i else []
        for k in range(8):
            ls.need([("F", i, k), ("T", k)])
            for n in range(2):
                c = vr(acc(i, n), 16)
                a(f"v_mfma_f32_32x32x16_bf16 {c}, {vr(8+4*k,4)}, {vr(TP+8*k+4*n,4)}, {c}")
                if i and k == 3 and n == 0: a("s_nop 3")
                if k >= 3 and (k > 3 or n):
                    for x in fin[:3]: a(x)
                    fin = fin[3:]
            if i == 0 and k + 2 < 8:
                fread(0, k+2); tread(k+2)
            if i < 2 and k >= 2: fread(i+1, k-2)
            if i > 0 and k == 0:
                fread(i, 6); fread(i, 7)
        assert not fin
    a.stamp_mid(sm+1)
    a("s_nop 15")
    for x in finish(2): a(x)
    signal(0, 8)
    signal(1, 4)
    signal(2, 0)
```

```python
import sys
from common import *
import sync, k_front, k_mlp1, k_mlp1y, k_mlp2, k_attn, k_final, k_final2, k_mlp2f
from sync import mb, MB_U, MB_H, MB_QKV, MB_O, MB_Y, MB_G, MB_P

HEADER = open("cdna_kernels/" + NAME + ".s.ref").read().split("; Override launch geometry")[0]
N_WO = 18
W2_TOUCH = False
FRONT_ONLY = False
PARTNER = True
A_EXIT = False
PF1 = 0
QPOLL_ALL = False
UPOLL_ALL = True
HINT2 = 0
FUSED = True
INIT_LOW = 2
W1HEAD = True
PRE = 0
M1Y = True
COOP = False
COOP_H = False
COOP_U = False
BPRIO = 0
INIT_LATE = True
PFMODE = 'col'
PFH = False
SLP_H = 4
HEAD_PF = 0
CODE_PF = True
B_EXIT = False
DIAG = None
PF_AFTER_H = True
TLBW = 0
PFW1 = True
XW = 2
XWD = 1
LIST = True
NO_FINAL = False
PFD = 1
LN_WAIT = True
PF2 = 7
EARLY = 1
EARLY_FL = ''
PROMOTE = False
WAIT_QKV = True
HINT_AT = 3
SLP_HINT = 4
SLP_FIN = 2
W2_TAIL = 0
AUX_G0 = 16
AUX_NT = ''

DOC = """;
;                         240 tiles) scaled by (1-gate) with the output projection of gate*o appended along K
"""

def gen_main(a, name):
    a.kernel_begin(name)
    a("s_cmp_ge_u32 s2, 512")
    a("s_cbranch_scc1 L_end")
    a.load_kernargs()
    sync.wave_setup(a)
    a.srd(48, P_WS, WS_SIZE)
    a.srd(84, P_DBG, 256)
    a("s_cmp_ge_u32 s2, 256")
    a("s_cbranch_scc1 L_slotB")
    a("s_setprio 3")
    a("s_cmp_ge_u32 s2, 192")
    a("s_cbranch_scc1 L_ln")
    def hint2(a):
        L = a.newlabel("hint")
        a("s_cmp_lg_u32 s52, 0")
        a(f"s_cbranch_scc1 {L}")
        a("s_lshl_b32 s76, s2, 8")
        a(f"s_add_u32 s76, s76, {mb(MB_P)}")
        a("v_mov_b32 v8, 0")
        a("v_mov_b32 v9, 1")
        a("s_mov_b64 exec, 1")
        a("buffer_store_dword v9, v8, s[48:51], s76 offen offset:4 sc1")
        a("s_mov_b64 exec, -1")
        a.label(L)
    def pub_qkv(a):
        a("s_and_b32 s72, s56, 3")
        a("s_lshl_b32 s72, s72, 12")
        a("s_and_b32 s73, s55, 12")
        a("s_add_u32 s72, s72, s73")
        a(f"s_add_u32 s72, s72, {mb(MB_QKV)}")
        if HINT2 == 1: hint2(a)
        sync.publish(a, 72, 16, init=True)
        if HINT2 == 2: hint2(a)
    def hint(a):
        L = a.newlabel("hint")
        a("s_lshl_b32 s76, s52, 3")
        a("s_add_u32 s76, s76, s60")
        a(f"s_cmp_lg_u32 s76, {HINT_AT}")
        a(f"s_cbranch_scc1 {L}")
        a("s_lshl_b32 s76, s2, 8")
        a(f"s_add_u32 s76, s76, {mb(MB_P)}")
        a("v_mov_b32 v8, 0")
        a("v_mov_b32 v9, 1")
        a("s_mov_b64 exec, 1")
        a("buffer_store_dword v9, v8, s[48:51], s76 offen sc1")
        a("s_mov_b64 exec, -1")
        a.label(L)
    k_front.qkv_body(a, "s2", pub_qkv, hint if WAIT_QKV else None)
    a("s_branch L_attn")
    a.label("L_ln")
    a("s_sub_u32 s3, s2, 192")
    def pub_h(a):
        a("s_lshr_b32 s72, s58, 4")
        a("s_lshl_b32 s72, s72, 13")
        a(f"s_add_u32 s72, s72, {mb(MB_H)}")
        sync.publish(a, 72, 32, init=True)
    k_front.ln_body(a, "s3", pub_h)
    a.stamp_mid(6)
    k_front.gate_own(a)
    a(f"s_cmp_ge_u32 s3, {N_WO}")
    a("s_cbranch_scc1 L_nowo")
    k_front.wo_body(a, "s3")
    a.label("L_nowo")
    a(f"s_mov_b32 s72, {mb(MB_G)}")
    sync.publish(a, 72, 32, init='late')
    a.label("L_attn")
    a.stamp_mid(2)
    if FRONT_ONLY or A_EXIT: a("s_branch L_done")
    def dep_qkv(a):
        a("s_lshr_b32 s72, s61, 3")
        a("s_lshl_b32 s72, s72, 4")
        a("s_bfe_u32 s73, s2, 0x40003")
        a("s_add_u32 s72, s72, s73")
        a("s_lshl_b32 s72, s72, 8")
        a(f"s_add_u32 s79, s72, {mb(MB_QKV)}")
        a("s_lshr_b32 s73, s2, 6")
        a("s_lshl_b32 s73, s73, 2")
        a("s_add_u32 s72, s79, s73")
        if QPOLL_ALL:
            sync.poll(a, None, 0, vt=8, init='late')
            sync.spin(a, 48, "s72", 12, 8, sleep=2)
        else:
            sync.poll(a, 72, 12, vt=8, sleep=2, init='late')
        if HINT2 == 3: hint2(a)
    def dep_qkv2(a):
        L = a.newlabel("q2"); Ld = a.newlabel("q2d")
        a("s_mov_b32 s76, 0")
        a.label(L)
        a("s_buffer_load_dwordx4 s[72:75], s[48:51], s79 glc")
        a("s_add_u32 s76, s76, 1")
        a("s_waitcnt lgkmcnt(0)")
        a("s_min_u32 s72, s72, s73")
        a("s_min_u32 s74, s74, s75")
        a("s_min_u32 s72, s72, s74")
        a("s_cmp_ge_u32 s72, 12")
        a(f"s_cbranch_scc1 {Ld}")
        a("s_sleep 4")
        a(f"s_cmp_lt_u32 s76, {sync.SPIN_MAX}")
        a(f"s_cbranch_scc1 {L}")
        a.label(Ld)
    def dep_g(a):
        a("s_bfe_u32 s72, s2, 0x50003")
        a("s_lshl_b32 s72, s72, 8")
        a(f"s_add_u32 s72, s72, {mb(MB_G)}")
        sync.spin(a, 48, "s72", 64, 0)
    def pub_o_f(a):
        a("s_cmp_gt_u32 s61, 7")
        a("s_cselect_b32 s72, 1, 0")
        for hd in (14, 19, 24):
            a(f"s_cmp_gt_u32 s61, {hd}")
            a("s_addc_u32 s72, s72, 0")
        a("s_lshr_b32 s73, s2, 5")
        a("s_mul_i32 s73, s73, 5")
        a("s_add_u32 s72, s72, s73")
        a(f"s_mul_i32 s72, s72, {6*256}")
        a(f"s_add_u32 s72, s72, {mb(MB_O)}")
        a(f"s_lshr_b32 s73, {(1<<7)|(1<<14)|(1<<19)|(1<<24)}, s61")
        a("s_and_b32 s73, s73, 1")
        a("s_cselect_b32 s73, 0xfff, 63")
        sync.publish(a, 72, "s73")
    def pub_o(a):
        if FUSED: return pub_o_f(a)
        a("s_lshr_b32 s72, s2, 5")
        a("s_lshl_b32 s72, s72, 13")
        a("s_lshr_b32 s73, s61, 3")
        a("s_lshl_b32 s73, s73, 2")
        a("s_add_u32 s72, s72, s73")
        a(f"s_add_u32 s72, s72, {mb(MB_O)}")
        sync.publish(a, 72, 24)
    def last_extra(a):
        k_final2.wof_setup(a, "s2", 147)
        return [k_final2.wof_load(k, 147) for k in range(27)]
    TV = 140
    def tsetup(a):
        a.srd(80, P_W2, S*F*2)
        a("s_lshr_b32 s72, s2, 3")
        a("s_lshl_b32 s72, s72, 2")
        a("s_add_u32 s72, s72, s52")
        a("s_mul_i32 s73, s72, 205")
        a("s_lshr_b32 s73, s73, 11")
        a("s_mul_i32 s76, s73, 10")
        a("s_sub_u32 s72, s72, s76")
        a("s_and_b32 s76, s2, 7")
        a("s_mul_i32 s76, s76, 10")
        a("s_add_u32 s72, s72, s76")
        a("s_lshr_b32 s76, s72, 4")
        a("s_and_b32 s72, s72, 15")
        a(f"s_mul_i32 s76, s76, {928*4096}")
        a("s_lshl_b32 s72, s72, 8")
        a("s_add_u32 s76, s76, s72")
        a("s_lshl_b32 s72, s73, 17")
        a("s_add_u32 s76, s76, s72")
        a("s_cmp_ge_u32 s73, 12")
        a("s_cselect_b32 s82, 0, s82")
        a(f"v_lshrrev_b32 v{TV}, 1, v0")
        a(f"v_lshlrev_b32 v{TV}, 12, v{TV}")
        a(f"v_and_b32 v{TV+1}, 1, v0")
        a(f"v_lshl_add_u32 v{TV}, v{TV+1}, 7, v{TV}")
        a(f"v_add_u32 v{TV}, s76, v{TV}")
        a("s_mov_b32 s78, s73")
    def touch(a):
        a("s_cmp_ge_u32 s78, 29")
        a("s_cselect_b32 s82, 0, s82")
        a(f"buffer_load_dword v{TV+1}, v{TV}, s[80:83], 0 offen")
        a(f"v_add_u32 v{TV}, {12*32*4096}, v{TV}")
        a("s_add_u32 s78, s78, 12")
    k_attn.attn_body(a, "s2", dep_qkv, pub_o, sm=3, tsetup=tsetup if W2_TOUCH else None, touch=touch if W2_TOUCH else None, dep_g=dep_g, dep2=dep_qkv2, last_extra=None if FUSED else last_extra)
    a.stamp_mid(5)
    a("s_cmp_ge_u32 s2, 192")
    a("s_cbranch_scc1 L_done")
    if NO_FINAL: a("s_branch L_done")
    def dep_y(a, i):
        L = a.newlabel("y"); Ld = a.newlabel("yd")
        if i == 0:
            a("s_lshl_b32 s76, s54, 5")
            a("s_add_u32 s76, s76, s53")
            a("s_lshl_b32 s76, s76, 8")
            a(f"s_add_u32 s76, s76, {mb(MB_Y)}")
            a("s_mov_b32 s77, 0")
        else:
            a(f"s_cmp_ge_u32 s{72+i}, 5")
            a(f"s_cbranch_scc1 {Ld}")
        a.label(L)
        a("s_buffer_load_dwordx4 s[72:75], s[48:51], s76 glc")
        a("s_add_u32 s77, s77, 1")
        a("s_waitcnt lgkmcnt(0)")
        a(f"s_cmp_ge_u32 s{72+i}, 5")
        a(f"s_cbranch_scc1 {Ld}")
        if i == 0: a(f"s_sleep {SLP_FIN}")
        a(f"s_cmp_lt_u32 s77, {sync.SPIN_MAX}")
        a(f"s_cbranch_scc1 {L}")
        a.label(Ld)
        if i == 2: a.stamp_mid(7)
    def boxes(a):
        a("s_lshr_b32 s66, s53, 2")
        a("s_lshl_b32 s66, s66, 5")
        a("s_lshr_b32 s67, s2, 3")
        a("s_add_u32 s66, s66, s67")
        a("s_lshl_b32 s66, s66, 8")
        a("s_lshl_b32 s67, s52, 2")
        a("s_add_u32 s66, s66, s67")
        a(f"s_add_u32 s66, s66, {mb(MB_O)}")
        a("s_lshl_b32 s67, s54, 5")
        a("s_add_u32 s67, s67, s53")
        a("s_lshl_b32 s67, s67, 8")
        a(f"s_add_u32 s67, s67, {mb(MB_Y)}")
    if FUSED: k_final.final_body(a, "s2", dep_y)
    else: k_final2.final_body(a, "s2", boxes, sync.SPIN_MAX)
    a("s_branch L_done")
    a.label("L_slotB")
    a("s_sub_u32 s3, s2, 256")
    if INIT_LOW == 1:
        a(f"s_cmp_gt_u32 s3, {sync.N_LATE}")
        a("s_cbranch_scc1 L_noinit")
        a("s_mov_b32 s78, s3")
    elif INIT_LOW == 2:
        a("s_cmp_eq_u32 s3, 255")
        a(f"s_cselect_b32 s78, {sync.N_LATE}, s3")
        a(f"s_cmp_eq_u32 s3, {sync.N_LATE}")
        a("s_cselect_b32 s78, 99, s78")
        a(f"s_cmp_gt_u32 s78, {sync.N_LATE}")
        a("s_cbranch_scc1 L_noinit")
    else:
        a(f"s_cmp_lt_u32 s3, {255 - sync.N_LATE}")
        a("s_cbranch_scc1 L_noinit")
        a(f"s_sub_u32 s78, s3, {255 - sync.N_LATE}")
    a("s_setprio 3")
    sync.init_mailboxes(a, "s78")
    a("s_setprio 0")
    a.stamp_mid(0)
    a.label("L_noinit")
    if CODE_PF:
        Lc = a.newlabel("cpf")
        a("s_lshr_b32 s72, s3, 4")
        a("s_cmp_lg_u32 s72, 2")
        a(f"s_cbranch_scc1 {Lc}")
        a("s_getpc_b64 s[80:81]")
        a.label("L_pc")
        a(f"s_sub_u32 s80, s80, L_pc - {name}")
        a("s_subb_u32 s81, s81, 0")
        a(f"s_mov_b32 s82, L_code_end - {name}")
        a("s_mov_b32 s83, 0x00020000")
        a("s_bfe_u32 s72, s3, 0x10003")
        a("s_lshl_b32 s72, s72, 2")
        a("s_add_u32 s72, s72, s52")
        a("s_lshl_b32 s72, s72, 13")
        a("v_lshlrev_b32 v5, 7, v0")
        a("v_add_u32 v5, s72, v5")
        a("buffer_load_dword v58, v5, s[80:83], 0 offen")
        a.label(Lc)
    if WAIT_QKV:
        Lz = a.newlabel("hz")
        a("s_cmp_lg_u32 s52, 0")
        a(f"s_cbranch_scc1 {Lz}")
        a("s_lshl_b32 s72, s3, 8")
        a(f"s_add_u32 s72, s72, {mb(MB_P)}")
        a("v_lshlrev_b32 v5, 4, v0")
        for i in range(4): a(f"v_mov_b32 v{8+i}, 0")
        a("s_mov_b64 exec, 0xff")
        a("buffer_store_dwordx4 v[8:11], v5, s[48:51], s72 offen sc1")
        a("s_mov_b64 exec, -1")
        a.label(Lz)
    if XW == 1: k_front.xw_touch(a, "s3")
    if XW == 2: k_front.xw_touch2(a, "s3", XWD)
    if W1HEAD:
        Lh = a.newlabel("w1h")
        a("s_cmp_lt_u32 s3, 192")
        a(f"s_cbranch_scc1 {Lh}")
        a("s_cmp_ge_u32 s53, 30")
        a(f"s_cbranch_scc1 {Lh}")
        a.srd(80, P_W1, S*F*2)
        a("s_mul_i32 s57, s53, 205")
        a("s_lshr_b32 s57, s57, 10")
        a("s_mul_i32 s58, s57, 5")
        a("s_sub_u32 s58, s53, s58")
        a("s_and_b32 s56, s3, 7")
        a("s_mul_i32 s56, s56, 9")
        a("s_lshr_b32 s56, s56, 1")
        a("s_add_u32 s56, s56, s58")
        a("s_lshl_b32 s56, s56, 8")
        a(f"s_mul_i32 s57, s57, {32*F*2}")
        a("s_add_u32 s56, s56, s57")
        a("v_lshrrev_b32 v5, 1, v0")
        a(f"v_mul_u32_u24 v5, {F*2}, v5")
        a("v_and_b32 v6, 1, v0")
        a("v_lshl_add_u32 v5, v6, 7, v5")
        a("buffer_load_dword v62, v5, s[80:83], s56 offen")
        a.label(Lh)
    if COOP:
        Le = a.newlabel("head")
        a(f"s_cmp_ge_u32 s3, {k_mlp1.MLP1_GRID}")
        a(f"s_cbranch_scc1 {Le}")
        a.srd(80, P_W1, S*F*2)
        a("s_and_b32 s66, s3, 7")
        a("s_mul_i32 s66, s66, 27")
        a("s_lshr_b32 s67, s3, 3")
        a("s_add_u32 s67, s67, s66")
        a("s_mul_i32 s70, s67, 171")
        a("s_lshr_b32 s70, s70, 10")
        a("s_mul_i32 s68, s70, 6")
        a("s_sub_u32 s69, s67, s68")
        a("s_lshl_b32 s66, s70, 8")
        a("s_lshl_b32 s68, s52, 4")
        a("s_add_u32 s67, s69, s68")
        a(f"s_mul_i32 s67, s67, {32*F*2}")
        a("s_add_u32 s66, s66, s67")
        a("v_lshrrev_b32 v5, 1, v0")
        a(f"v_mul_u32_u24 v5, {F*2}, v5")
        a("v_and_b32 v6, 1, v0")
        a("v_lshl_add_u32 v5, v6, 7, v5")
        a("buffer_load_dword v62, v5, s[80:83], s66 offen")
        a("s_cmp_ge_u32 s69, 3")
        a(f"s_mov_b32 s67, {3*32*F*2}")
        a(f"s_cselect_b32 s67, {(-3*32*F*2) & 0xffffffff}, s67")
        a("s_add_u32 s67, s67, s66")
        a("s_lshr_b32 s68, 0x80402010, s70")
        a("s_cmp_lt_u32 s70, 32")
        a("s_cselect_b32 s68, s68, 0")
        a("s_and_b32 s68, s68, 1")
        a(f"s_cbranch_scc0 {Le}")
        a("buffer_load_dword v63, v5, s[80:83], s67 offen")
        a.label(Le)
    if TLBW:
        a("s_lshr_b32 s53, s3, 3")
        a("s_lshl_b32 s53, s53, 2")
        a("s_add_u32 s53, s53, s52")
        a("s_lshl_b32 s53, s53, 6")
        a("v_add_u32 v5, s53, v0")
        a(f"v_lshlrev_b32 v5, {TLBW}, v5")
        a.srd(80, P_W1, S*F*2)
        a("buffer_load_dword v62, v5, s[80:83], 0 offen nt")
        a.srd(80, P_W2, S*F*2)
        a("buffer_load_dword v63, v5, s[80:83], 0 offen nt")
        a.srd(80, P_WS, CNT_OFF)
        a("buffer_load_dword v59, v5, s[80:83], 0 offen nt")
    a(f"s_setprio {BPRIO}")
    if INIT_LATE:
        a(f"s_cmp_lt_u32 s3, {k_mlp1.MLP1_GRID}")
        a("s_cbranch_scc1 L_mlp1")
    a("s_waitcnt vmcnt(0)")
    sync.poll(a, None, 0, vt=5, init=True)
    a.stamp_mid(5)
    a("s_cmp_lt_u32 s3, 192")
    a("s_cbranch_scc1 L_mlp1")
    if PF_AFTER_H:
        a("s_bfe_u32 s72, s3, 0x20001")
        a("s_lshl_b32 s72, s72, 5")
        a("s_and_b32 s73, s3, 31")
        a("s_add_u32 s72, s72, s73")
        a("s_lshl_b32 s72, s72, 8")
        a(f"s_add_u32 s72, s72, {mb(MB_H)}")
        sync.poll(a, 72, 16, vt=5, sleep=4)
    a.srd(40, P_W1, S*F*2)
    a("s_sub_u32 s67, 255, s3")
    a(f"s_mul_i32 s66, s52, {512*F*2}")
    a("s_lshl_b32 s68, s67, 13")
    a("s_add_u32 s66, s66, s68")
    a("v_lshlrev_b32 v5, 7, v0")
    a("v_add_u32 v5, s66, v5")
    for r in range(PF1):
        a(f"buffer_load_dword v{60+(r&1)}, v5, s[40:43], 0 offen")
        a(f"v_add_u32 v5, {64*8192}, v5")
        if r >= PFD: a(f"s_waitcnt vmcnt({PFD})")
    a(f"s_cmp_ge_u32 s3, {k_mlp1.MLP1_GRID}")
    a("s_cbranch_scc1 L_aux")
    a.label("L_mlp1")
    if B_EXIT: a("s_branch L_done")
    def dep_h(a):
        a("s_lshl_b32 s72, s52, 5")
        a("s_and_b32 s73, s3, 31")
        a("s_add_u32 s72, s72, s73")
        a("s_lshl_b32 s72, s72, 8")
        a(f"s_add_u32 s72, s72, {mb(MB_H)}")
        sync.spin(a, 48, "s72", 16, 5, sleep=SLP_H)
    def dep_h_touch(a, part=0):
        if INIT_LATE and part != 2:
            a("s_waitcnt vmcnt(0)")
            sync.poll(a, None, 0, vt=12, init=True)
        if part == 1: return
        dep_h(a)
        a.stamp_mid(5)
        if COOP_H:
            a("s_and_b32 s72, s3, 7")
            a("s_mul_i32 s72, s72, 9")
            a("s_lshr_b32 s72, s72, 1")
            a("s_sub_u32 s72, s66, s72")
            a("s_lshl_b32 s72, s72, 6")
            a("v_add_u32 v60, s72, v0")
            a("v_mul_u32_u24 v61, 2731, v60")
            a("v_lshrrev_b32 v61, 16, v61")
            a("v_mul_u32_u24 v61, 120, v61")
            a("v_add_lshl_u32 v60, v60, v61, 7")
            a(f"buffer_load_dword v61, v60, s[48:51], s{k_mlp1.S_F} offen sc1")
    def hold(a, word=0):
        L = a.newlabel("hold"); Ld = a.newlabel("holdd")
        a("s_cmp_ge_u32 s3, 192")
        a(f"s_cbranch_scc1 {Ld}")
        a("s_lshl_b32 s72, s3, 8")
        a(f"s_add_u32 s72, s72, {mb(MB_P) + 4*word}")
        a("s_and_b32 s73, s3, 63")
        a("s_lshl_b32 s73, s73, 8")
        a(f"s_add_u32 s73, s73, {mb(MB_QKV)}")
        a("s_mov_b32 s74, 0")
        a.label(L)
        a("s_buffer_load_dword s75, s[48:51], s72 glc")
        a("s_add_u32 s74, s74, 1")
        a("s_waitcnt lgkmcnt(0)")
        a("s_cmp_lg_u32 s75, 0")
        a(f"s_cbranch_scc1 {Ld}")
        a("s_sleep 4")
        a("s_and_b32 s75, s74, 15")
        a(f"s_cbranch_scc1 {L}")
        a("s_buffer_load_dword s75, s[48:51], s73 glc")
        a("s_waitcnt lgkmcnt(0)")
        a("s_cmp_ge_u32 s75, 12")
        a(f"s_cbranch_scc1 {Ld}")
        a(f"s_cmp_lt_u32 s74, {sync.SPIN_MAX}")
        a(f"s_cbranch_scc1 {L}")
        a.label(Ld)
    def w2_tail(a):
        a.srd(80, P_W2, S*F*2)
        a("s_lshr_b32 s72, s3, 3")
        a("s_mul_i32 s73, s72, 86")
        a("s_lshr_b32 s73, s73, 8")
        a("s_mul_i32 s76, s73, 3")
        a("s_sub_u32 s72, s72, s76")
        a("s_and_b32 s76, s3, 7")
        a("s_mul_i32 s76, s76, 10")
        a("s_add_u32 s73, s73, s76")
        a("s_lshr_b32 s76, s73, 4")
        a("s_and_b32 s73, s73, 15")
        a(f"s_mul_i32 s76, s76, {928*4096}")
        a("s_lshl_b32 s73, s73, 8")
        a("s_add_u32 s76, s76, s73")
        a("s_lshl_b32 s72, s72, 2")
        a("s_add_u32 s72, s72, s52")
        a(f"s_add_u32 s72, s72, {29 - 12*W2_TAIL}")
        a("s_lshl_b32 s72, s72, 17")
        a("s_add_u32 s76, s76, s72")
        a("v_lshrrev_b32 v60, 1, v0")
        a("v_lshlrev_b32 v60, 12, v60")
        a("v_and_b32 v61, 1, v0")
        a("v_lshl_add_u32 v60, v61, 7, v60")
        a("v_add_u32 v60, s76, v60")
        for e in range(W2_TAIL):
            a(f"buffer_load_dword v{61+e}, v60, s[80:83], 0 offen")
            a(f"v_add_u32 v60, {12*32*4096}, v60")
    def checks(a, wave):
        Lg = a.newlabel("g")
        a(f"s_cmp_lg_u32 s52, {wave}")
        a(f"s_cbranch_scc1 {Lg}")
        sync.spin_init(a, 14, True)
        a("s_bfe_u32 s73, s2, 0x50003")
        a("s_lshl_b32 s73, s73, 8")
        a(f"s_add_u32 s73, s73, {mb(MB_G)}")
        sync.spin(a, 48, "s73", 64, 0)
        a.label(Lg)
    def pub_u(a, part):
        if part == 0:
            a("s_mul_i32 s18, s66, 565")
            a("s_lshr_b32 s18, s18, 12")
            a("s_lshr_b32 s19, s67, 1")
            a("s_mul_i32 s19, s19, 5")
            a("s_add_u32 s18, s18, s19")
            a("s_lshl_b32 s18, s18, 12")
            a(f"s_add_u32 s18, s18, {mb(MB_U)}")
            a("s_lshr_b32 s19, 0x204080, s66")
            a("s_cmp_lt_u32 s66, 32")
            a("s_cselect_b32 s19, s19, 0")
            a("s_and_b32 s19, s19, 1")
            a("s_cselect_b32 s19, -1, 0xffff")
        else:
            checks(a, 1)
            sync.publish(a, 18, "s19", vt=14)
    def early2(a):
        a("s_barrier")
        k_mlp2f.mlp2_body(a, "s3", 3, None, None, None, part=1)
    (k_mlp1y if M1Y else k_mlp1).mlp1_body(a, "s3", dep_h_touch, pub_u, sm=0, epi=early2, hold=hold if WAIT_QKV else None, hold2=(lambda a: hold(a, 1)) if HINT2 else None)
    a.stamp_mid(2)
    a("s_branch L_mlp2")
    a.label("L_aux")
    if B_EXIT: a("s_branch L_done")
    if PFMODE == "col":
        a("s_and_b32 s66, s3, 7")
        a("s_mul_i32 s66, s66, 9")
        a("s_lshr_b32 s66, s66, 1")
        a("s_lshr_b32 s67, s67, 3")
        a("s_add_u32 s66, s66, s67")
        a("s_lshl_b32 s66, s66, 8")
        a(f"s_mul_i32 s69, s52, {(32 if M1Y else 512)*F*2}")
        a("s_add_u32 s66, s66, s69")
        a("v_lshrrev_b32 v5, 1, v0")
        a(f"v_mul_u32_u24 v5, {F*2}, v5")
        a("v_and_b32 v6, 1, v0")
        a("v_lshl_add_u32 v5, v6, 7, v5")
        if PFH:
            dep_h(a)
            a(f"s_mul_i32 s69, s52, {32*18*1024}")
            a("s_lshl_b32 s70, s67, 13")
            a("s_add_u32 s69, s69, s70")
            a(f"s_add_u32 s69, s69, {HT_OFF}")
            a("v_lshlrev_b32 v7, 7, v0")
        g0 = 6 if COOP else 0
        a(f"s_add_u32 s66, s66, {g0*32*F*2}")
        if PFH and COOP_H: a(f"s_add_u32 s69, s69, {12*18*1024}")
        for n in range(16 - g0):
            a(f"buffer_load_dword v{60+(n&1)}, v5, s[40:43], s66 offen")
            a(f"s_add_u32 s66, s66, {(128 if M1Y else 32)*F*2}")
            if PFH and n < (9 if COOP_H else 14):
                a(f"buffer_load_dword v{62+(n&1)}, v7, s[48:51], s69 offen sc1")
                a(f"s_add_u32 s69, s69, {5*8192}")
            a(f"s_waitcnt vmcnt({PFD})")
        a.stamp_mid(1)
        a.srd(40, P_W2, S*F*2)
        a("s_lshl_b32 s68, s67, 2")
        a("s_add_u32 s68, s68, s52")
        a("s_and_b32 s66, s3, 7")
        a("s_mul_i32 s66, s66, 10")
        a("s_lshr_b32 s69, s68, 1")
        a("s_add_u32 s66, s66, s69")
        a("s_lshr_b32 s67, s66, 4")
        a("s_and_b32 s66, s66, 15")
        a(f"s_mul_i32 s67, s67, {928*4096}")
        a("s_lshl_b32 s66, s66, 8")
        a("s_add_u32 s67, s67, s66")
        a("s_and_b32 s66, s52, 1")
        a("s_lshl_b32 s66, s66, 17")
        a("s_add_u32 s67, s67, s66")
        a("v_lshrrev_b32 v5, 1, v0")
        a("v_lshlrev_b32 v5, 12, v5")
        a("v_and_b32 v6, 1, v0")
        a("v_lshl_add_u32 v5, v6, 7, v5")
        a("v_add_u32 v5, s67, v5")
        for n in range(PF2):
            a(f"buffer_load_dword v{60+(n&1)}, v5, s[40:43], 0 offen")
            a(f"v_add_u32 v5, {64*4096}, v5")
            a(f"s_waitcnt vmcnt({PFD})")
    else:
        for n in range(-(-(576 - 64*PF1)//40) if PFW1 else 0):
            a(f"buffer_load_dword v{60+(n&1)}, v5, s[40:43], 0 offen")
            a(f"v_add_u32 v5, {40*8192}, v5")
            a(f"s_waitcnt vmcnt({PFD})")
        a.stamp_mid(1)
        a.srd(40, P_W2, S*F*2)
        a("s_lshl_b32 s68, s67, 2")
        a("s_add_u32 s68, s68, s52")
        a("s_lshr_b32 s66, s68, 5")
        a("s_and_b32 s68, s68, 31")
        a(f"s_mul_i32 s66, s66, {928*4096}")
        a("s_lshl_b32 s68, s68, 13")
        a("s_add_u32 s66, s66, s68")
        a("v_lshlrev_b32 v5, 7, v0")
        a("v_add_u32 v5, s66, v5")
        for n in range(PF2):
            a(f"buffer_load_dword v{60+(n&1)}, v5, s[40:43], 0 offen")
            a(f"v_add_u32 v5, {32*8192}, v5")
            a(f"s_waitcnt vmcnt({PFD})")
    a("s_waitcnt vmcnt(0)")
    a.stamp_mid(2)
    a(f"s_cmp_ge_u32 s3, {k_mlp2.MLP2_GRID}")
    a("s_cbranch_scc1 L_done")
    k_mlp2f.mlp2_body(a, "s3", 3, None, None, None, part=1)
    checks(a, 0)
    a("s_barrier")
    a.label("L_mlp2")
    if k_mlp1y.PST: a("s_branch L_done")
    def dep_u(a):
        a("s_mul_i32 s73, s67, 5")
        a("s_add_u32 s73, s73, s69")
        a("s_lshl_b32 s73, s73, 4")
        a("s_add_u32 s73, s73, s66")
        a("s_lshl_b32 s73, s73, 8")
        a(f"s_add_u32 s73, s73, {mb(MB_U)}")
        a("s_cmp_eq_u32 s69, 4")
        a("s_cselect_b32 s76, 14, 16")
        (sync.spin(a, 48, "s73", "s76", 8, sleep=1) if UPOLL_ALL else sync.poll(a, 73, "s76", vt=8, sleep=2))
        if COOP_U:
            a("s_lshr_b32 s70, s3, 3")
            a("s_mul_i32 s70, s70, 86")
            a("s_lshr_b32 s70, s70, 8")
            a("s_mul_i32 s73, s52, 10")
            a("s_add_u32 s70, s70, s73")
            a("s_lshl_b32 s70, s70, 6")
            a("s_add_u32 s70, s70, 288")
            a("v_add_u32 v60, s70, v0")
            a("v_min_u32 v60, 2783, v60")
            a("v_mul_u32_u24 v61, 5462, v60")
            a("v_lshrrev_b32 v61, 18, v61")
            a("v_mul_u32_u24 v61, 96, v61")
            a("v_add_lshl_u32 v60, v60, v61, 7")
            a(f"s_mul_i32 s70, s69, {58*18*1024}")
            a("s_mul_i32 s73, s67, 6144")
            a("s_add_u32 s70, s70, s73")
            a(f"s_add_u32 s70, s70, {U_OFF}")
            a("s_mov_b32 s77, s70")
    def ybox(a):
        a("s_lshl_b32 s76, s67, 1")
        a("s_add_u32 s76, s76, s71")
        a("s_lshl_b32 s76, s76, 5")
        a("s_lshl_b32 s70, s66, 1")
        a("s_add_u32 s76, s76, s70")
        a("s_add_u32 s76, s76, s72")
        a("s_lshl_b32 s76, s76, 8")
        a(f"s_add_u32 s76, s76, {mb(MB_Y)}")
    def dep_o(a, block):
        if block == "addr":
            a("s_lshr_b32 s59, s66, 1")
            a("s_mul_i32 s59, s59, 5")
            a("s_add_u32 s59, s59, s69")
            a("s_mul_i32 s59, s59, 6")
            a("s_lshl_b32 s70, s67, 1")
            a("s_add_u32 s59, s59, s70")
            a("s_and_b32 s70, s66, 1")
            a("s_add_u32 s59, s59, s70")
            a("s_lshl_b32 s59, s59, 8")
            a(f"s_add_u32 s59, s59, {mb(MB_O)}")
            a("s_lshl_b32 s64, s53, 1")
        else:
            sync.spin(a, 48, "s59", "s64", 8, sleep=1)
            a.stamp_mid(6)
    if FUSED: k_mlp2f.mlp2_body(a, "s3", 3, dep_u, dep_o, ybox, part=2)
    else: k_mlp2.mlp2_body(a, "s3", 3, dep_u, ybox)
    a.label("L_done")
    if DIAG is not None:
        wg, slot, kind = DIAG
        Ld = a.newlabel("diag"); Lw = a.newlabel("diagw")
        a(f"s_cmp_lg_u32 s2, {wg}")
        a(f"s_cbranch_scc1 {Ld}")
        a("s_waitcnt vmcnt(0)")
        if slot == "end":
            a.stamp_mid(0); slot = 0
        if slot is None:
            a("s_mov_b32 s70, 0")
        elif kind == "t":
            a(f"s_sub_u32 s70, s{4+slot}, s88")
            a("s_mul_i32 s70, s70, 10")
        else:
            a(f"s_lshr_b32 s70, s{93+slot}, 1")
        a("s_add_u32 s70, s70, 20000")
        a.label(Lw)
        a("s_sleep 1")
        a("s_memrealtime s[90:91]")
        a("s_waitcnt lgkmcnt(0)")
        a("s_sub_u32 s71, s90, s88")
        a("s_cmp_lt_u32 s71, s70")
        a(f"s_cbranch_scc1 {Lw}")
        a.label(Ld)
    a.end()
    a.label("L_end")
    a("s_endpgm")
    a.label("L_code_end")

def build(stamp=False):
    a = Asm()
    a.stamp = stamp
    fin = NAME + "_kernel"
    out = HEADER
    out += (f"; @launch kernel={fin} grid=(512,1,1) block=(256,1,1) lds=81920\n" if LIST else "; @launch grid=(512,1,1) block=(256,1,1) lds=81920\n")
    out += DOC
    out += '.amdgcn_target "amdgcn-amd-amdhsa--gfx950"\n.text\n'
    gen_main(a, fin)
    if PRE:
        out = out.replace("; @launch kernel=", "; @launch kernel=pre_kernel grid=(256,1,1) block=(256,1,1) lds=0\n; @launch kernel=", 1)
        st = a.stamp; a.stamp = False
        a.kernel_begin("pre_kernel")
        if PRE > 1:
            a("s_cmp_ge_u32 s2, 256")
            a("s_cbranch_scc1 L_pre_end")
            a.load_kernargs()
            sync.wave_setup(a)
            k_front.xw_touch(a, "s2")
            a("s_getpc_b64 s[80:81]")
            a.label("L_pc2")
            a(f"s_sub_u32 s80, s80, L_pc2 - {fin}")
            a("s_subb_u32 s81, s81, 0")
            a(f"s_mov_b32 s82, L_code_end - {fin}")
            a("s_mov_b32 s83, 0x00020000")
            a("s_lshr_b32 s72, s2, 3")
            a("s_lshl_b32 s72, s72, 2")
            a("s_add_u32 s72, s72, s52")
            a("s_lshl_b32 s72, s72, 13")
            a("v_lshlrev_b32 v5, 7, v0")
            a("v_add_u32 v5, s72, v5")
            a("buffer_load_dword v58, v5, s[80:83], 0 offen")
            a("s_waitcnt vmcnt(0)")
            a.label("L_pre_end")
        a("s_endpgm")
        a.stamp = st
    out += a.text()
    out += '.section .rodata,"a"\n'
    if PRE: out += ".p2align 6\n" + descriptor("pre_kernel", 64, None)
    out += ".p2align 6\n" + descriptor(fin, 256, None)
    return out

if __name__ == "__main__":
    open("main.s", "w").write(build())
    open("stamp.s", "w").write(build(True))
    open("main_l.s", "w").write(build("lite"))
    LIST = False
    open("final.s", "w").write(build())
    LIST = True
    VARS = eval(open("vars.txt").read())
    import copy
    for nm, kv in VARS.items():
        saved = {}
        for k, v in kv.items():
            mod, name = (globals()[k.split(".")[0]].__dict__, k.split(".")[1]) if "." in k else (globals(), k)
            saved[k] = (mod, name, mod[name]); mod[name] = v
        open(f"gen/{nm}.s", "w").write(build(False))
        open(f"gen/{nm}_s.s", "w").write(build(True))
        open(f"gen/{nm}_l.s", "w").write(build("lite"))
        for mod, name, v in saved.values(): mod[name] = v
    print("wrote")
```

```python
import sys
from common import *
import sync, k_front, k_mlp1, k_mlp1y, k_mlp2, k_attn, k_final, k_final2, k_mlp2f
from sync import mb, MB_U, MB_H, MB_QKV, MB_O, MB_Y, MB_G, MB_P

HEADER = open("cdna_kernels/" + NAME + ".s.ref").read().split("; Override launch geometry")[0]
N_WO = 18
W2_TOUCH = False
FRONT_ONLY = False
PARTNER = True
A_EXIT = False
PF1 = 0
PFN1 = 16
PF3 = 0
QPOLL_ALL = False
UPOLL_ALL = True
HINT2 = 0
FUSED = True
INIT_LOW = 2
W1HEAD = True
PRE = 0
M1Y = True
COOP = False
COOP_H = False
COOP_U = False
BPRIO = 0
INIT_LATE = True
PFMODE = 'col'
PFH = False
SLP_H = 4
HEAD_PF = 0
CODE_PF = True
B_EXIT = False
DIAG = None
PF_AFTER_H = True
TLBW = 0
PFW1 = True
XW = 2
XWD = 1
LIST = True
NO_FINAL = False
PFD = 1
LN_WAIT = True
PF2 = 7
EARLY = 1
EARLY_FL = ''
PROMOTE = False
WAIT_QKV = True
HINT_AT = 3
SLP_HINT = 4
SLP_FIN = 2
W2_TAIL = 0
AUX_G0 = 16
AUX_NT = ''

DOC = """;
;                         240 tiles) scaled by (1-gate) with the output projection of gate*o appended along K
"""

def gen_main(a, name):
    a.kernel_begin(name)
    a("s_cmp_ge_u32 s2, 512")
    a("s_cbranch_scc1 L_end")
    a.load_kernargs()
    sync.wave_setup(a)
    a.srd(48, P_WS, WS_SIZE)
    a.srd(84, P_DBG, 256)
    a("s_cmp_ge_u32 s2, 256")
    a("s_cbranch_scc1 L_slotB")
    a("s_setprio 3")
    a("s_cmp_ge_u32 s2, 192")
    a("s_cbranch_scc1 L_ln")
    def hint2(a):
        L = a.newlabel("hint")
        a("s_cmp_lg_u32 s52, 0")
        a(f"s_cbranch_scc1 {L}")
        a("s_lshl_b32 s76, s2, 8")
        a(f"s_add_u32 s76, s76, {mb(MB_P)}")
        a("v_mov_b32 v8, 0")
        a("v_mov_b32 v9, 1")
        a("s_mov_b64 exec, 1")
        a("buffer_store_dword v9, v8, s[48:51], s76 offen offset:4 sc1")
        a("s_mov_b64 exec, -1")
        a.label(L)
    def pub_qkv(a):
        a("s_and_b32 s72, s56, 3")
        a("s_lshl_b32 s72, s72, 12")
        a("s_and_b32 s73, s55, 12")
        a("s_add_u32 s72, s72, s73")
        a(f"s_add_u32 s72, s72, {mb(MB_QKV)}")
        if HINT2 == 1: hint2(a)
        sync.publish(a, 72, 16, init=True)
        if HINT2 == 2: hint2(a)
    def hint(a):
        L = a.newlabel("hint")
        a("s_lshl_b32 s76, s52, 3")
        a("s_add_u32 s76, s76, s60")
        a(f"s_cmp_lg_u32 s76, {HINT_AT}")
        a(f"s_cbranch_scc1 {L}")
        a("s_lshl_b32 s76, s2, 8")
        a(f"s_add_u32 s76, s76, {mb(MB_P)}")
        a("v_mov_b32 v8, 0")
        a("v_mov_b32 v9, 1")
        a("s_mov_b64 exec, 1")
        a("buffer_store_dword v9, v8, s[48:51], s76 offen sc1")
        a("s_mov_b64 exec, -1")
        a.label(L)
    k_front.qkv_body(a, "s2", pub_qkv, hint if WAIT_QKV else None)
    a("s_branch L_attn")
    a.label("L_ln")
    a("s_sub_u32 s3, s2, 192")
    def pub_h(a):
        a("s_lshr_b32 s72, s58, 4")
        a("s_lshl_b32 s72, s72, 13")
        a(f"s_add_u32 s72, s72, {mb(MB_H)}")
        sync.publish(a, 72, 32, init=True)
    k_front.ln_body(a, "s3", pub_h)
    a.stamp_mid(6)
    k_front.gate_own(a)
    a(f"s_cmp_ge_u32 s3, {N_WO}")
    a("s_cbranch_scc1 L_nowo")
    k_front.wo_body(a, "s3")
    a.label("L_nowo")
    a(f"s_mov_b32 s72, {mb(MB_G)}")
    sync.publish(a, 72, 32, init='late')
    a.label("L_attn")
    a.stamp_mid(2)
    if FRONT_ONLY or A_EXIT: a("s_branch L_done")
    def dep_qkv(a):
        a("s_lshr_b32 s72, s61, 3")
        a("s_lshl_b32 s72, s72, 4")
        a("s_bfe_u32 s73, s2, 0x40003")
        a("s_add_u32 s72, s72, s73")
        a("s_lshl_b32 s72, s72, 8")
        a(f"s_add_u32 s79, s72, {mb(MB_QKV)}")
        a("s_lshr_b32 s73, s2, 6")
        a("s_lshl_b32 s73, s73, 2")
        a("s_add_u32 s72, s79, s73")
        if QPOLL_ALL:
            sync.poll(a, None, 0, vt=8, init='late')
            sync.spin(a, 48, "s72", 12, 8, sleep=2)
        else:
            sync.poll(a, 72, 12, vt=8, sleep=2, init='late')
        if HINT2 == 3: hint2(a)
    def dep_qkv2(a):
        L = a.newlabel("q2"); Ld = a.newlabel("q2d")
        a("s_mov_b32 s76, 0")
        a.label(L)
        a("s_buffer_load_dwordx4 s[72:75], s[48:51], s79 glc")
        a("s_add_u32 s76, s76, 1")
        a("s_waitcnt lgkmcnt(0)")
        a("s_min_u32 s72, s72, s73")
        a("s_min_u32 s74, s74, s75")
        a("s_min_u32 s72, s72, s74")
        a("s_cmp_ge_u32 s72, 12")
        a(f"s_cbranch_scc1 {Ld}")
        a("s_sleep 4")
        a(f"s_cmp_lt_u32 s76, {sync.SPIN_MAX}")
        a(f"s_cbranch_scc1 {L}")
        a.label(Ld)
    def dep_g(a):
        a("s_bfe_u32 s72, s2, 0x50003")
        a("s_lshl_b32 s72, s72, 8")
        a(f"s_add_u32 s72, s72, {mb(MB_G)}")
        sync.spin(a, 48, "s72", 64, 0)
    def pub_o_f(a):
        a("s_cmp_gt_u32 s61, 7")
        a("s_cselect_b32 s72, 1, 0")
        for hd in (14, 19, 24):
            a(f"s_cmp_gt_u32 s61, {hd}")
            a("s_addc_u32 s72, s72, 0")
        a("s_lshr_b32 s73, s2, 5")
        a("s_mul_i32 s73, s73, 5")
        a("s_add_u32 s72, s72, s73")
        a(f"s_mul_i32 s72, s72, {6*256}")
        a(f"s_add_u32 s72, s72, {mb(MB_O)}")
        a(f"s_lshr_b32 s73, {(1<<7)|(1<<14)|(1<<19)|(1<<24)}, s61")
        a("s_and_b32 s73, s73, 1")
        a("s_cselect_b32 s73, 0xfff, 63")
        sync.publish(a, 72, "s73")
    def pub_o(a):
        if FUSED: return pub_o_f(a)
        a("s_lshr_b32 s72, s2, 5")
        a("s_lshl_b32 s72, s72, 13")
        a("s_lshr_b32 s73, s61, 3")
        a("s_lshl_b32 s73, s73, 2")
        a("s_add_u32 s72, s72, s73")
        a(f"s_add_u32 s72, s72, {mb(MB_O)}")
        sync.publish(a, 72, 24)
    def last_extra(a):
        k_final2.wof_setup(a, "s2", 147)
        return [k_final2.wof_load(k, 147) for k in range(27)]
    TV = 140
    def tsetup(a):
        a.srd(80, P_W2, S*F*2)
        a("s_lshr_b32 s72, s2, 3")
        a("s_lshl_b32 s72, s72, 2")
        a("s_add_u32 s72, s72, s52")
        a("s_mul_i32 s73, s72, 205")
        a("s_lshr_b32 s73, s73, 11")
        a("s_mul_i32 s76, s73, 10")
        a("s_sub_u32 s72, s72, s76")
        a("s_and_b32 s76, s2, 7")
        a("s_mul_i32 s76, s76, 10")
        a("s_add_u32 s72, s72, s76")
        a("s_lshr_b32 s76, s72, 4")
        a("s_and_b32 s72, s72, 15")
        a(f"s_mul_i32 s76, s76, {928*4096}")
        a("s_lshl_b32 s72, s72, 8")
        a("s_add_u32 s76, s76, s72")
        a("s_lshl_b32 s72, s73, 17")
        a("s_add_u32 s76, s76, s72")
        a("s_cmp_ge_u32 s73, 12")
        a("s_cselect_b32 s82, 0, s82")
        a(f"v_lshrrev_b32 v{TV}, 1, v0")
        a(f"v_lshlrev_b32 v{TV}, 12, v{TV}")
        a(f"v_and_b32 v{TV+1}, 1, v0")
        a(f"v_lshl_add_u32 v{TV}, v{TV+1}, 7, v{TV}")
        a(f"v_add_u32 v{TV}, s76, v{TV}")
        a("s_mov_b32 s78, s73")
    def touch(a):
        a("s_cmp_ge_u32 s78, 29")
        a("s_cselect_b32 s82, 0, s82")
        a(f"buffer_load_dword v{TV+1}, v{TV}, s[80:83], 0 offen")
        a(f"v_add_u32 v{TV}, {12*32*4096}, v{TV}")
        a("s_add_u32 s78, s78, 12")
    k_attn.attn_body(a, "s2", dep_qkv, pub_o, sm=3, tsetup=tsetup if W2_TOUCH else None, touch=touch if W2_TOUCH else None, dep_g=dep_g, dep2=dep_qkv2, last_extra=None if FUSED else last_extra)
    a.stamp_mid(5)
    a("s_cmp_ge_u32 s2, 192")
    a("s_cbranch_scc1 L_done")
    if NO_FINAL: a("s_branch L_done")
    def dep_y(a, i):
        L = a.newlabel("y"); Ld = a.newlabel("yd")
        if i == 0:
            a("s_lshl_b32 s76, s54, 5")
            a("s_add_u32 s76, s76, s53")
            a("s_lshl_b32 s76, s76, 8")
            a(f"s_add_u32 s76, s76, {mb(MB_Y)}")
            a("s_mov_b32 s77, 0")
        else:
            a(f"s_cmp_ge_u32 s{72+i}, 5")
            a(f"s_cbranch_scc1 {Ld}")
        a.label(L)
        a("s_buffer_load_dwordx4 s[72:75], s[48:51], s76 glc")
        a("s_add_u32 s77, s77, 1")
        a("s_waitcnt lgkmcnt(0)")
        a(f"s_cmp_ge_u32 s{72+i}, 5")
        a(f"s_cbranch_scc1 {Ld}")
        if i == 0: a(f"s_sleep {SLP_FIN}")
        a(f"s_cmp_lt_u32 s77, {sync.SPIN_MAX}")
        a(f"s_cbranch_scc1 {L}")
        a.label(Ld)
        if i == 2: a.stamp_mid(7)
    def boxes(a):
        a("s_lshr_b32 s66, s53, 2")
        a("s_lshl_b32 s66, s66, 5")
        a("s_lshr_b32 s67, s2, 3")
        a("s_add_u32 s66, s66, s67")
        a("s_lshl_b32 s66, s66, 8")
        a("s_lshl_b32 s67, s52, 2")
        a("s_add_u32 s66, s66, s67")
        a(f"s_add_u32 s66, s66, {mb(MB_O)}")
        a("s_lshl_b32 s67, s54, 5")
        a("s_add_u32 s67, s67, s53")
        a("s_lshl_b32 s67, s67, 8")
        a(f"s_add_u32 s67, s67, {mb(MB_Y)}")
    if FUSED: k_final.final_body(a, "s2", dep_y)
    else: k_final2.final_body(a, "s2", boxes, sync.SPIN_MAX)
    a("s_branch L_done")
    a.label("L_slotB")
    a("s_sub_u32 s3, s2, 256")
    if INIT_LOW == 1:
        a(f"s_cmp_gt_u32 s3, {sync.N_LATE}")
        a("s_cbranch_scc1 L_noinit")
        a("s_mov_b32 s78, s3")
    elif INIT_LOW == 2:
        a("s_cmp_eq_u32 s3, 255")
        a(f"s_cselect_b32 s78, {sync.N_LATE}, s3")
        a(f"s_cmp_eq_u32 s3, {sync.N_LATE}")
        a("s_cselect_b32 s78, 99, s78")
        a(f"s_cmp_gt_u32 s78, {sync.N_LATE}")
        a("s_cbranch_scc1 L_noinit")
    else:
        a(f"s_cmp_lt_u32 s3, {255 - sync.N_LATE}")
        a("s_cbranch_scc1 L_noinit")
        a(f"s_sub_u32 s78, s3, {255 - sync.N_LATE}")
    a("s_setprio 3")
    sync.init_mailboxes(a, "s78")
    a("s_setprio 0")
    a.stamp_mid(0)
    a.label("L_noinit")
    if CODE_PF:
        Lc = a.newlabel("cpf")
        a("s_lshr_b32 s72, s3, 4")
        a("s_cmp_lg_u32 s72, 2")
        a(f"s_cbranch_scc1 {Lc}")
        a("s_getpc_b64 s[80:81]")
        a.label("L_pc")
        a(f"s_sub_u32 s80, s80, L_pc - {name}")
        a("s_subb_u32 s81, s81, 0")
        a(f"s_mov_b32 s82, L_code_end - {name}")
        a("s_mov_b32 s83, 0x00020000")
        a("s_bfe_u32 s72, s3, 0x10003")
        a("s_lshl_b32 s72, s72, 2")
        a("s_add_u32 s72, s72, s52")
        a("s_lshl_b32 s72, s72, 13")
        a("v_lshlrev_b32 v5, 7, v0")
        a("v_add_u32 v5, s72, v5")
        a("buffer_load_dword v58, v5, s[80:83], 0 offen")
        a.label(Lc)
    if WAIT_QKV:
        Lz = a.newlabel("hz")
        a("s_cmp_lg_u32 s52, 0")
        a(f"s_cbranch_scc1 {Lz}")
        a("s_lshl_b32 s72, s3, 8")
        a(f"s_add_u32 s72, s72, {mb(MB_P)}")
        a("v_lshlrev_b32 v5, 4, v0")
        for i in range(4): a(f"v_mov_b32 v{8+i}, 0")
        a("s_mov_b64 exec, 0xff")
        a("buffer_store_dwordx4 v[8:11], v5, s[48:51], s72 offen sc1")
        a("s_mov_b64 exec, -1")
        a.label(Lz)
    if XW == 1: k_front.xw_touch(a, "s3")
    if XW == 2: k_front.xw_touch2(a, "s3", XWD)
    if W1HEAD:
        Lh = a.newlabel("w1h")
        a("s_cmp_lt_u32 s3, 192")
        a(f"s_cbranch_scc1 {Lh}")
        a("s_cmp_ge_u32 s53, 30")
        a(f"s_cbranch_scc1 {Lh}")
        a.srd(80, P_W1, S*F*2)
        a("s_mul_i32 s57, s53, 205")
        a("s_lshr_b32 s57, s57, 10")
        a("s_mul_i32 s58, s57, 5")
        a("s_sub_u32 s58, s53, s58")
        a("s_and_b32 s56, s3, 7")
        a("s_mul_i32 s56, s56, 9")
        a("s_lshr_b32 s56, s56, 1")
        a("s_add_u32 s56, s56, s58")
        a("s_lshl_b32 s56, s56, 8")
        a(f"s_mul_i32 s57, s57, {32*F*2}")
        a("s_add_u32 s56, s56, s57")
        a("v_lshrrev_b32 v5, 1, v0")
        a(f"v_mul_u32_u24 v5, {F*2}, v5")
        a("v_and_b32 v6, 1, v0")
        a("v_lshl_add_u32 v5, v6, 7, v5")
        a("buffer_load_dword v62, v5, s[80:83], s56 offen")
        a.label(Lh)
    if COOP:
        Le = a.newlabel("head")
        a(f"s_cmp_ge_u32 s3, {k_mlp1.MLP1_GRID}")
        a(f"s_cbranch_scc1 {Le}")
        a.srd(80, P_W1, S*F*2)
        a("s_and_b32 s66, s3, 7")
        a("s_mul_i32 s66, s66, 27")
        a("s_lshr_b32 s67, s3, 3")
        a("s_add_u32 s67, s67, s66")
        a("s_mul_i32 s70, s67, 171")
        a("s_lshr_b32 s70, s70, 10")
        a("s_mul_i32 s68, s70, 6")
        a("s_sub_u32 s69, s67, s68")
        a("s_lshl_b32 s66, s70, 8")
        a("s_lshl_b32 s68, s52, 4")
        a("s_add_u32 s67, s69, s68")
        a(f"s_mul_i32 s67, s67, {32*F*2}")
        a("s_add_u32 s66, s66, s67")
        a("v_lshrrev_b32 v5, 1, v0")
        a(f"v_mul_u32_u24 v5, {F*2}, v5")
        a("v_and_b32 v6, 1, v0")
        a("v_lshl_add_u32 v5, v6, 7, v5")
        a("buffer_load_dword v62, v5, s[80:83], s66 offen")
        a("s_cmp_ge_u32 s69, 3")
        a(f"s_mov_b32 s67, {3*32*F*2}")
        a(f"s_cselect_b32 s67, {(-3*32*F*2) & 0xffffffff}, s67")
        a("s_add_u32 s67, s67, s66")
        a("s_lshr_b32 s68, 0x80402010, s70")
        a("s_cmp_lt_u32 s70, 32")
        a("s_cselect_b32 s68, s68, 0")
        a("s_and_b32 s68, s68, 1")
        a(f"s_cbranch_scc0 {Le}")
        a("buffer_load_dword v63, v5, s[80:83], s67 offen")
        a.label(Le)
    if TLBW:
        a("s_lshr_b32 s53, s3, 3")
        a("s_lshl_b32 s53, s53, 2")
        a("s_add_u32 s53, s53, s52")
        a("s_lshl_b32 s53, s53, 6")
        a("v_add_u32 v5, s53, v0")
        a(f"v_lshlrev_b32 v5, {TLBW}, v5")
        a.srd(80, P_W1, S*F*2)
        a("buffer_load_dword v62, v5, s[80:83], 0 offen nt")
        a.srd(80, P_W2, S*F*2)
        a("buffer_load_dword v63, v5, s[80:83], 0 offen nt")
        a.srd(80, P_WS, CNT_OFF)
        a("buffer_load_dword v59, v5, s[80:83], 0 offen nt")
    a(f"s_setprio {BPRIO}")
    if INIT_LATE:
        a(f"s_cmp_lt_u32 s3, {k_mlp1.MLP1_GRID}")
        a("s_cbranch_scc1 L_mlp1")
    a("s_waitcnt vmcnt(0)")
    sync.poll(a, None, 0, vt=5, init=True)
    a.stamp_mid(5)
    a("s_cmp_lt_u32 s3, 192")
    a("s_cbranch_scc1 L_mlp1")
    if PF_AFTER_H:
        a("s_bfe_u32 s72, s3, 0x20001")
        a("s_lshl_b32 s72, s72, 5")
        a("s_and_b32 s73, s3, 31")
        a("s_add_u32 s72, s72, s73")
        a("s_lshl_b32 s72, s72, 8")
        a(f"s_add_u32 s72, s72, {mb(MB_H)}")
        sync.poll(a, 72, 16, vt=5, sleep=4)
    a.srd(40, P_W1, S*F*2)
    a("s_sub_u32 s67, 255, s3")
    a(f"s_mul_i32 s66, s52, {512*F*2}")
    a("s_lshl_b32 s68, s67, 13")
    a("s_add_u32 s66, s66, s68")
    a("v_lshlrev_b32 v5, 7, v0")
    a("v_add_u32 v5, s66, v5")
    for r in range(PF1):
        a(f"buffer_load_dword v{60+(r&1)}, v5, s[40:43], 0 offen")
        a(f"v_add_u32 v5, {64*8192}, v5")
        if r >= PFD: a(f"s_waitcnt vmcnt({PFD})")
    a(f"s_cmp_ge_u32 s3, {k_mlp1.MLP1_GRID}")
    a("s_cbranch_scc1 L_aux")
    a.label("L_mlp1")
    if B_EXIT: a("s_branch L_done")
    def dep_h(a):
        a("s_lshl_b32 s72, s52, 5")
        a("s_and_b32 s73, s3, 31")
        a("s_add_u32 s72, s72, s73")
        a("s_lshl_b32 s72, s72, 8")
        a(f"s_add_u32 s72, s72, {mb(MB_H)}")
        sync.spin(a, 48, "s72", 16, 5, sleep=SLP_H)
    def dep_h_touch(a, part=0):
        if INIT_LATE and part != 2:
            a("s_waitcnt vmcnt(0)")
            sync.poll(a, None, 0, vt=12, init=True)
        if part == 1: return
        dep_h(a)
        a.stamp_mid(5)
        if COOP_H:
            a("s_and_b32 s72, s3, 7")
            a("s_mul_i32 s72, s72, 9")
            a("s_lshr_b32 s72, s72, 1")
            a("s_sub_u32 s72, s66, s72")
            a("s_lshl_b32 s72, s72, 6")
            a("v_add_u32 v60, s72, v0")
            a("v_mul_u32_u24 v61, 2731, v60")
            a("v_lshrrev_b32 v61, 16, v61")
            a("v_mul_u32_u24 v61, 120, v61")
            a("v_add_lshl_u32 v60, v60, v61, 7")
            a(f"buffer_load_dword v61, v60, s[48:51], s{k_mlp1.S_F} offen sc1")
    def hold(a, word=0):
        L = a.newlabel("hold"); Ld = a.newlabel("holdd")
        a("s_cmp_ge_u32 s3, 192")
        a(f"s_cbranch_scc1 {Ld}")
        a("s_lshl_b32 s72, s3, 8")
        a(f"s_add_u32 s72, s72, {mb(MB_P) + 4*word}")
        a("s_and_b32 s73, s3, 63")
        a("s_lshl_b32 s73, s73, 8")
        a(f"s_add_u32 s73, s73, {mb(MB_QKV)}")
        a("s_mov_b32 s74, 0")
        a.label(L)
        a("s_buffer_load_dword s75, s[48:51], s72 glc")
        a("s_add_u32 s74, s74, 1")
        a("s_waitcnt lgkmcnt(0)")
        a("s_cmp_lg_u32 s75, 0")
        a(f"s_cbranch_scc1 {Ld}")
        a("s_sleep 4")
        a("s_and_b32 s75, s74, 15")
        a(f"s_cbranch_scc1 {L}")
        a("s_buffer_load_dword s75, s[48:51], s73 glc")
        a("s_waitcnt lgkmcnt(0)")
        a("s_cmp_ge_u32 s75, 12")
        a(f"s_cbranch_scc1 {Ld}")
        a(f"s_cmp_lt_u32 s74, {sync.SPIN_MAX}")
        a(f"s_cbranch_scc1 {L}")
        a.label(Ld)
    def w2_tail(a):
        a.srd(80, P_W2, S*F*2)
        a("s_lshr_b32 s72, s3, 3")
        a("s_mul_i32 s73, s72, 86")
        a("s_lshr_b32 s73, s73, 8")
        a("s_mul_i32 s76, s73, 3")
        a("s_sub_u32 s72, s72, s76")
        a("s_and_b32 s76, s3, 7")
        a("s_mul_i32 s76, s76, 10")
        a("s_add_u32 s73, s73, s76")
        a("s_lshr_b32 s76, s73, 4")
        a("s_and_b32 s73, s73, 15")
        a(f"s_mul_i32 s76, s76, {928*4096}")
        a("s_lshl_b32 s73, s73, 8")
        a("s_add_u32 s76, s76, s73")
        a("s_lshl_b32 s72, s72, 2")
        a("s_add_u32 s72, s72, s52")
        a(f"s_add_u32 s72, s72, {29 - 12*W2_TAIL}")
        a("s_lshl_b32 s72, s72, 17")
        a("s_add_u32 s76, s76, s72")
        a("v_lshrrev_b32 v60, 1, v0")
        a("v_lshlrev_b32 v60, 12, v60")
        a("v_and_b32 v61, 1, v0")
        a("v_lshl_add_u32 v60, v61, 7, v60")
        a("v_add_u32 v60, s76, v60")
        for e in range(W2_TAIL):
            a(f"buffer_load_dword v{61+e}, v60, s[80:83], 0 offen")
            a(f"v_add_u32 v60, {12*32*4096}, v60")
    def checks(a, wave):
        Lg = a.newlabel("g")
        a(f"s_cmp_lg_u32 s52, {wave}")
        a(f"s_cbranch_scc1 {Lg}")
        sync.spin_init(a, 14, True)
        a("s_bfe_u32 s73, s2, 0x50003")
        a("s_lshl_b32 s73, s73, 8")
        a(f"s_add_u32 s73, s73, {mb(MB_G)}")
        sync.spin(a, 48, "s73", 64, 0)
        a.label(Lg)
    def pub_u(a, part):
        if part == 0:
            a("s_mul_i32 s18, s66, 565")
            a("s_lshr_b32 s18, s18, 12")
            a("s_lshr_b32 s19, s67, 1")
            a("s_mul_i32 s19, s19, 5")
            a("s_add_u32 s18, s18, s19")
            a("s_lshl_b32 s18, s18, 12")
            a(f"s_add_u32 s18, s18, {mb(MB_U)}")
            a("s_lshr_b32 s19, 0x204080, s66")
            a("s_cmp_lt_u32 s66, 32")
            a("s_cselect_b32 s19, s19, 0")
            a("s_and_b32 s19, s19, 1")
            a("s_cselect_b32 s19, -1, 0xffff")
        else:
            checks(a, 1)
            sync.publish(a, 18, "s19", vt=14)
    def early2(a):
        a("s_barrier")
        k_mlp2f.mlp2_body(a, "s3", 3, None, None, None, part=1)
    (k_mlp1y if M1Y else k_mlp1).mlp1_body(a, "s3", dep_h_touch, pub_u, sm=0, epi=early2, hold=hold if WAIT_QKV else None, hold2=(lambda a: hold(a, 1)) if HINT2 else None)
    a.stamp_mid(2)
    a("s_branch L_mlp2")
    a.label("L_aux")
    if B_EXIT: a("s_branch L_done")
    if PFMODE == "col":
        a("s_and_b32 s66, s3, 7")
        a("s_mul_i32 s66, s66, 9")
        a("s_lshr_b32 s66, s66, 1")
        a("s_lshr_b32 s67, s67, 3")
        a("s_add_u32 s66, s66, s67")
        a("s_lshl_b32 s66, s66, 8")
        a(f"s_mul_i32 s69, s52, {(32 if M1Y else 512)*F*2}")
        a("s_add_u32 s66, s66, s69")
        a("v_lshrrev_b32 v5, 1, v0")
        a(f"v_mul_u32_u24 v5, {F*2}, v5")
        a("v_and_b32 v6, 1, v0")
        a("v_lshl_add_u32 v5, v6, 7, v5")
        if PFH:
            dep_h(a)
            a(f"s_mul_i32 s69, s52, {32*18*1024}")
            a("s_lshl_b32 s70, s67, 13")
            a("s_add_u32 s69, s69, s70")
            a(f"s_add_u32 s69, s69, {HT_OFF}")
            a("v_lshlrev_b32 v7, 7, v0")
        g0 = 6 if COOP else 0
        a(f"s_add_u32 s66, s66, {g0*32*F*2}")
        if PFH and COOP_H: a(f"s_add_u32 s69, s69, {12*18*1024}")
        for n in range(min(PFN1, 16 - g0)):
            a(f"buffer_load_dword v{60+(n&1)}, v5, s[40:43], s66 offen")
            a(f"s_add_u32 s66, s66, {(128 if M1Y else 32)*F*2}")
            if PFH and n < (9 if COOP_H else 14):
                a(f"buffer_load_dword v{62+(n&1)}, v7, s[48:51], s69 offen sc1")
                a(f"s_add_u32 s69, s69, {5*8192}")
            a(f"s_waitcnt vmcnt({PFD})")
        a.stamp_mid(1)
        a.srd(40, P_W2, S*F*2)
        a("s_lshl_b32 s68, s67, 2")
        a("s_add_u32 s68, s68, s52")
        a("s_and_b32 s66, s3, 7")
        a("s_mul_i32 s66, s66, 10")
        a("s_lshr_b32 s69, s68, 1")
        a("s_add_u32 s66, s66, s69")
        a("s_lshr_b32 s67, s66, 4")
        a("s_and_b32 s66, s66, 15")
        a(f"s_mul_i32 s67, s67, {928*4096}")
        a("s_lshl_b32 s66, s66, 8")
        a("s_add_u32 s67, s67, s66")
        a("s_and_b32 s66, s52, 1")
        a("s_lshl_b32 s66, s66, 17")
        a("s_add_u32 s67, s67, s66")
        a("v_lshrrev_b32 v5, 1, v0")
        a("v_lshlrev_b32 v5, 12, v5")
        a("v_and_b32 v6, 1, v0")
        a("v_lshl_add_u32 v5, v6, 7, v5")
        a("v_add_u32 v5, s67, v5")
        for n in range(PF2):
            a(f"buffer_load_dword v{60+(n&1)}, v5, s[40:43], 0 offen")
            a(f"v_add_u32 v5, {64*4096}, v5")
            a(f"s_waitcnt vmcnt({PFD})")
    else:
        for n in range(-(-(576 - 64*PF1)//40) if PFW1 else 0):
            a(f"buffer_load_dword v{60+(n&1)}, v5, s[40:43], 0 offen")
            a(f"v_add_u32 v5, {40*8192}, v5")
            a(f"s_waitcnt vmcnt({PFD})")
        a.stamp_mid(1)
        a.srd(40, P_W2, S*F*2)
        a("s_lshl_b32 s68, s67, 2")
        a("s_add_u32 s68, s68, s52")
        a("s_lshr_b32 s66, s68, 5")
        a("s_and_b32 s68, s68, 31")
        a(f"s_mul_i32 s66, s66, {928*4096}")
        a("s_lshl_b32 s68, s68, 13")
        a("s_add_u32 s66, s66, s68")
        a("v_lshlrev_b32 v5, 7, v0")
        a("v_add_u32 v5, s66, v5")
        for n in range(PF2):
            a(f"buffer_load_dword v{60+(n&1)}, v5, s[40:43], 0 offen")
            a(f"v_add_u32 v5, {32*8192}, v5")
            a(f"s_waitcnt vmcnt({PFD})")
    a("s_waitcnt vmcnt(0)")
    a.stamp_mid(2)
    a(f"s_cmp_ge_u32 s3, {k_mlp2.MLP2_GRID}")
    a("s_cbranch_scc1 L_aux0" if PF3 else "s_cbranch_scc1 L_done")
    k_mlp2f.mlp2_body(a, "s3", 3, None, None, None, part=1)
    checks(a, 0)
    a("s_barrier")
    a.label("L_mlp2")
    if k_mlp1y.PST: a("s_branch L_done")
    def dep_u(a):
        a("s_mul_i32 s73, s67, 5")
        a("s_add_u32 s73, s73, s69")
        a("s_lshl_b32 s73, s73, 4")
        a("s_add_u32 s73, s73, s66")
        a("s_lshl_b32 s73, s73, 8")
        a(f"s_add_u32 s73, s73, {mb(MB_U)}")
        a("s_cmp_eq_u32 s69, 4")
        a("s_cselect_b32 s76, 14, 16")
        (sync.spin(a, 48, "s73", "s76", 8, sleep=1) if UPOLL_ALL else sync.poll(a, 73, "s76", vt=8, sleep=2))
        if COOP_U:
            a("s_lshr_b32 s70, s3, 3")
            a("s_mul_i32 s70, s70, 86")
            a("s_lshr_b32 s70, s70, 8")
            a("s_mul_i32 s73, s52, 10")
            a("s_add_u32 s70, s70, s73")
            a("s_lshl_b32 s70, s70, 6")
            a("s_add_u32 s70, s70, 288")
            a("v_add_u32 v60, s70, v0")
            a("v_min_u32 v60, 2783, v60")
            a("v_mul_u32_u24 v61, 5462, v60")
            a("v_lshrrev_b32 v61, 18, v61")
            a("v_mul_u32_u24 v61, 96, v61")
            a("v_add_lshl_u32 v60, v60, v61, 7")
            a(f"s_mul_i32 s70, s69, {58*18*1024}")
            a("s_mul_i32 s73, s67, 6144")
            a("s_add_u32 s70, s70, s73")
            a(f"s_add_u32 s70, s70, {U_OFF}")
            a("s_mov_b32 s77, s70")
    def ybox(a):
        a("s_lshl_b32 s76, s67, 1")
        a("s_add_u32 s76, s76, s71")
        a("s_lshl_b32 s76, s76, 5")
        a("s_lshl_b32 s70, s66, 1")
        a("s_add_u32 s76, s76, s70")
        a("s_add_u32 s76, s76, s72")
        a("s_lshl_b32 s76, s76, 8")
        a(f"s_add_u32 s76, s76, {mb(MB_Y)}")
    def dep_o(a, block):
        if block == "addr":
            a("s_lshr_b32 s59, s66, 1")
            a("s_mul_i32 s59, s59, 5")
            a("s_add_u32 s59, s59, s69")
            a("s_mul_i32 s59, s59, 6")
            a("s_lshl_b32 s70, s67, 1")
            a("s_add_u32 s59, s59, s70")
            a("s_and_b32 s70, s66, 1")
            a("s_add_u32 s59, s59, s70")
            a("s_lshl_b32 s59, s59, 8")
            a(f"s_add_u32 s59, s59, {mb(MB_O)}")
            a("s_lshl_b32 s64, s53, 1")
        else:
            sync.spin(a, 48, "s59", "s64", 8, sleep=1)
            a.stamp_mid(6)
    if FUSED: k_mlp2f.mlp2_body(a, "s3", 3, dep_u, dep_o, ybox, part=2, post=(lambda a: a("buffer_load_dword v61, v60, s[48:51], s77 offen sc1")) if COOP_U else None)
    else: k_mlp2.mlp2_body(a, "s3", 3, dep_u, ybox)
    if PF3:
        a("s_branch L_done")
        a.label("L_aux0")
        a("v_lshrrev_b32 v5, 1, v0")
        a("v_lshlrev_b32 v5, 12, v5")
        a("v_and_b32 v6, 1, v0")
        a("v_lshl_add_u32 v5, v6, 7, v5")
        a("s_and_b32 s66, s3, 7")
        a("s_mul_i32 s66, s66, 10")
        for r in range(PF3):
            a(f"s_add_u32 s69, s68, {8*r}")
            a("s_mul_i32 s70, s69, 205")
            a("s_lshr_b32 s70, s70, 11")
            a("s_mul_i32 s71, s70, 10")
            a("s_sub_u32 s69, s69, s71")
            a("s_add_u32 s69, s69, s66")
            a("s_lshr_b32 s71, s69, 4")
            a("s_and_b32 s69, s69, 15")
            a("s_mul_i32 s71, s71, 29")
            a("s_add_u32 s70, s70, s71")
            a(f"s_add_u32 s70, s70, {2*PF2}")
            a("s_lshl_b32 s70, s70, 17")
            a("s_lshl_b32 s69, s69, 8")
            a("s_add_u32 s69, s69, s70")
            a("v_add_u32 v7, s69, v5")
            a(f"buffer_load_dword v{60+(r&1)}, v7, s[40:43], 0 offen")
            a("s_waitcnt vmcnt(1)")
    a.label("L_done")
    if DIAG is not None:
        wg, slot, kind = DIAG
        Ld = a.newlabel("diag"); Lw = a.newlabel("diagw")
        a(f"s_cmp_lg_u32 s2, {wg}")
        a(f"s_cbranch_scc1 {Ld}")
        a("s_waitcnt vmcnt(0)")
        if slot == "end":
            a.stamp_mid(0); slot = 0
        if slot is None:
            a("s_mov_b32 s70, 0")
        elif kind == "t":
            a(f"s_sub_u32 s70, s{4+slot}, s88")
            a("s_mul_i32 s70, s70, 10")
        else:
            a(f"s_lshr_b32 s70, s{93+slot}, 1")
        a("s_add_u32 s70, s70, 20000")
        a.label(Lw)
        a("s_sleep 1")
        a("s_memrealtime s[90:91]")
        a("s_waitcnt lgkmcnt(0)")
        a("s_sub_u32 s71, s90, s88")
        a("s_cmp_lt_u32 s71, s70")
        a(f"s_cbranch_scc1 {Lw}")
        a.label(Ld)
    a.end()
    a.label("L_end")
    a("s_endpgm")
    a.label("L_code_end")

def build(stamp=False):
    a = Asm()
    a.stamp = stamp
    fin = NAME + "_kernel"
    out = HEADER
    out += (f"; @launch kernel={fin} grid=(512,1,1) block=(256,1,1) lds=81920\n" if LIST else "; @launch grid=(512,1,1) block=(256,1,1) lds=81920\n")
    out += DOC
    out += '.amdgcn_target "amdgcn-amd-amdhsa--gfx950"\n.text\n'
    gen_main(a, fin)
    if PRE:
        out = out.replace("; @launch kernel=", "; @launch kernel=pre_kernel grid=(256,1,1) block=(256,1,1) lds=0\n; @launch kernel=", 1)
        st = a.stamp; a.stamp = False
        a.kernel_begin("pre_kernel")
        if PRE > 1:
            a("s_cmp_ge_u32 s2, 256")
            a("s_cbranch_scc1 L_pre_end")
            a.load_kernargs()
            sync.wave_setup(a)
            k_front.xw_touch(a, "s2")
            a("s_getpc_b64 s[80:81]")
            a.label("L_pc2")
            a(f"s_sub_u32 s80, s80, L_pc2 - {fin}")
            a("s_subb_u32 s81, s81, 0")
            a(f"s_mov_b32 s82, L_code_end - {fin}")
            a("s_mov_b32 s83, 0x00020000")
            a("s_lshr_b32 s72, s2, 3")
            a("s_lshl_b32 s72, s72, 2")
            a("s_add_u32 s72, s72, s52")
            a("s_lshl_b32 s72, s72, 13")
            a("v_lshlrev_b32 v5, 7, v0")
            a("v_add_u32 v5, s72, v5")
            a("buffer_load_dword v58, v5, s[80:83], 0 offen")
            a("s_waitcnt vmcnt(0)")
            a.label("L_pre_end")
        a("s_endpgm")
        a.stamp = st
    out += a.text()
    out += '.section .rodata,"a"\n'
    if PRE: out += ".p2align 6\n" + descriptor("pre_kernel", 64, None)
    out += ".p2align 6\n" + descriptor(fin, 256, None)
    return out

if __name__ == "__main__":
    open("main.s", "w").write(build())
    open("stamp.s", "w").write(build(True))
    open("main_l.s", "w").write(build("lite"))
    LIST = False
    open("final.s", "w").write(build())
    LIST = True
    VARS = eval(open("vars.txt").read())
    import copy
    for nm, kv in VARS.items():
        saved = {}
        for k, v in kv.items():
            mod, name = (globals()[k.split(".")[0]].__dict__, k.split(".")[1]) if "." in k else (globals(), k)
            saved[k] = (mod, name, mod[name]); mod[name] = v
        open(f"gen/{nm}.s", "w").write(build(False))
        open(f"gen/{nm}_s.s", "w").write(build(True))
        open(f"gen/{nm}_l.s", "w").write(build("lite"))
        for mod, name, v in saved.values(): mod[name] = v
    print("wrote")
```

```python
from common import *
import k_mlp1y
STRIDE = F*2
TR = 16
FRG = 96
ACC = 144
PK = 192
STG = 12288
YIELD = 4
RELAX = 6
HTOUCH = True

def preload(a, fbreg):
    K0 = (64 - k_mlp1y.SHED)*32
    a.srd(40, P_W1, S*F*2)
    a(f"s_lshl_b32 s54, {fbreg}, 8")
    a(f"s_mul_i32 s55, s52, {80*STRIDE}")
    a("s_add_u32 s54, s54, s55")
    a(f"s_add_u32 s54, s54, {K0*STRIDE}")
    a("s_mul_i32 s60, s52, 20480")
    a("v_lshrrev_b32 v8, 4, v0")
    a("v_and_b32 v9, 3, v0")
    a("v_lshlrev_b32 v9, 4, v9")
    a("v_lshl_add_u32 v8, v8, 6, v9")
    a("v_bfe_u32 v9, v0, 2, 2")
    a(f"v_mul_u32_u24 v10, {STRIDE}, v9")
    a("v_add_u32 v5, v10, v8")
    for n in range(20):
        a(f"s_add_u32 m0, s60, {n*1024}")
        a(f"s_add_u32 s55, s54, {n*4*STRIDE}")
        a("buffer_load_dwordx4 v5, s[40:43], s55 offen lds")

def body_all(a, fbreg, dep, ebox):
    assert k_mlp1y.SHED == 10
    a("v_lshrrev_b32 v10, 5, v0")
    a("v_bfe_u32 v9, v0, 2, 2")
    a("v_lshlrev_b32 v8, 11, v10")
    a("v_lshl_add_u32 v8, v9, 6, v8")
    a("v_bfe_u32 v9, v0, 4, 1")
    a("v_lshl_add_u32 v8, v9, 5, v8")
    a("v_and_b32 v9, 3, v0")
    a("v_lshl_add_u32 v8, v9, 3, v8")
    a("s_lshl_b32 s70, s52, 8")
    a("v_add_u32 v3, s70, v8")
    a("v_add_u32 v4, 0xa000, v3")
    a("v_lshlrev_b32 v7, 4, v0")
    a("s_waitcnt vmcnt(0)")
    a("s_barrier")
    for t in range(20):
        for sec in range(2):
            a(f"ds_read_b64_tr_b16 {vr(TR+4*t+2*sec,2)}, v{3 if t < 10 else 4} offset:{(t%10)*4096 + sec*1024}")
        if t % 6 == 5: a("s_waitcnt lgkmcnt(2)")
    a(f"s_mul_i32 s55, s52, {18*1024}")
    a(f"s_add_u32 s55, s55, {HT_OFF + 108*18*1024}")
    a("s_mul_i32 s61, s52, 3072")
    a(f"s_mov_b32 s63, {4*18*1024}")
    a(f"s_mul_i32 s64, {fbreg}, {6*24576}")
    a("s_mul_i32 s65, s52, 6144")
    a("s_add_u32 s64, s64, s65")
    a(f"s_add_u32 s64, s64, {PP_OFF}")
    a(f"s_mul_i32 s59, {fbreg}, 6")
    a("v_mov_b32 v12, 0")
    a("v_mov_b32 v13, 1")
    ebox(a)
    dep(a)
    a("s_waitcnt lgkmcnt(0)")
    a("s_barrier")
    NS = 30
    if HTOUCH:
        a("s_lshr_b32 s70, s78, 3")
        a("s_lshl_b32 s70, s70, 2")
        a("s_add_u32 s70, s70, s52")
        a("s_lshl_b32 s70, s70, 13")
        a("v_lshlrev_b32 v8, 7, v0")
        a("v_add_u32 v8, s70, v8")
        a(f"s_mov_b32 s70, {HT_OFF + 108*18*1024}")
        for e in range(3):
            a(f"v_min_u32 v9, {20*18*1024 - 128}, v8")
            a(f"buffer_load_dword v{PK+e}, v9, s[48:51], s70 offen sc1")
            a(f"v_add_u32 v8, {16*8192}, v8")
    def ld(c, i):
        if i == 0: a(f"s_add_u32 m0, s61, {(c%5)*STG}")
        else:
            a(f"buffer_load_dwordx4 v7, s[48:51], s55 offen offset:{(i-1)*1024} sc1 lds")
            if i == 3:
                if c % 5 == 4: a(f"s_sub_u32 s55, s55, {16*18*1024 - 3072}")
                else: a("s_add_u32 s55, s55, s63")
    for c in range(4):
        ld(c, 0); a("s_nop 0")
        for i in range(1, 4): ld(c, i)
    def rd(c, k): a(f"ds_read_b128 {vr(FRG+4*k,4)}, v7 offset:{(c%5)*STG + k*1024}")
    def stage(c, vm):
        for k in range(12):
            last = (c == NS - 1)
            if k % 2 == 0:
                a(f"s_waitcnt lgkmcnt({6 if not (last and k > 3) else max(0, 10 - k - 0) if False else (6 if not (last and k >= 4) else 10 - k)})")
            if YIELD > 1:
                if k % YIELD == 0: a("s_setprio 0")
                if k % YIELD == 1: a("s_setprio 2")
            t = 4*(c % 5) + k//3; i = k % 3
            d = vr(ACC + 16*i, 16)
            a(f"v_mfma_f32_32x32x16_bf16 {d}, {vr(TR+4*t,4)}, {vr(FRG+4*k,4)}, {'0' if t == 0 else d}")
            if k == 4 and not last:
                a(f"s_waitcnt vmcnt({vm})")
                a("s_barrier")
            if k < 4: rd(c, k + 8)
            elif not last: rd(c + 1, k - 4)
            if c + 4 < NS and 5 <= k <= 8: ld(c + 4, k - 5)
    def flush():
        a("s_nop 11")
        for i in range(3):
            b = ACC + 16*i
            for e in range(8): a(f"v_cvt_pk_bf16_f32 v{PK+8*i+e}, v{b+2*e}, v{b+2*e+1}")
        a("s_add_u32 s70, s64, 4096")
        for n in range(6):
            a(f"buffer_store_dwordx4 {vr(PK+4*n,4)}, v7, s[48:51], s{64 if n < 4 else 70} offen offset:{(n%4)*1024} sc1")
        a("s_add_u32 s64, s64, 24576")
    def signal():
        a("s_mov_b64 exec, 1")
        a("buffer_atomic_add v13, v12, s[48:51], s65 offen sc1")
        a("s_mov_b64 exec, -1")
        a("s_add_u32 s65, s65, 256")
    a("s_waitcnt vmcnt(9)")
    a("s_barrier")
    for k in range(8): rd(0, k)
    a.stamp_mid(0)
    for c in range(5): stage(c, 6)
    flush()
    a("s_mov_b32 s58, 4")
    a.raw(".p2align 6")
    a.label("L_help_loop")
    for c in range(5): stage(c, 6 + (RELAX if c < 3 else 0))
    flush()
    a("s_sub_u32 s58, s58, 1")
    a("s_cmp_lg_u32 s58, 0")
    a("s_cbranch_scc1 L_help_loop")
    for c in range(25, 30): stage(c, {25: 6 + RELAX, 26: 6 + RELAX, 27: 3 + RELAX, 28: 0, 29: 0}[c])
    flush()
    a("s_waitcnt vmcnt(0)")
    a("v_lshlrev_b32 v12, 8, v0")
    a("s_mov_b64 exec, 63")
    a("buffer_atomic_add v13, v12, s[48:51], s65 offen sc1")
    a("s_mov_b64 exec, -1")
    a("s_barrier")
```

```python
from common import *
import math

MLP1_GRID = 216
for t in range(216):
    assert (t*171) >> 10 == t//6

VF = [1, 2]; VT = [3, 4]
VDT, VDT2, VDF = 5, 6, 7
SET = [16, 48]
ACC = 80
BIAS = 128
S_T, S_F, S_CNT = 54, 55, 58
STAGE = 14336
NB = 5
STRIDE = F*2
YIELD = 1
EPIST = False
RELAX = 6
GETP = 7
EPRIO = 2
EARLY2 = True
H2AT = 0
PST = False
HOLD_FIRST = 2

SHED = 0
HYIELD = 3
def mlp1_body(a, wgreg, dep, pub, sm=0, epi=None, hold=None, hold2=None, helper=False, ebox=None):
    NST = 6*SHED if helper else 64 - SHED
    YIELD = HYIELD if helper else globals()["YIELD"]
    a.srd(40, P_W1, S*F*2)
    a.srd(44, P_B1, F*2)
    if helper:
        a(f"s_mov_b32 s66, {wgreg}")
        a("s_mov_b32 s67, 0")
    else:
        a(f"s_and_b32 s66, {wgreg}, 7")
        a("s_mul_i32 s66, s66, 27")
        a(f"s_lshr_b32 s67, {wgreg}, 3")
        a("s_add_u32 s67, s67, s66")
        a("s_mul_i32 s66, s67, 171")
        a("s_lshr_b32 s66, s66, 10")
        a("s_mul_i32 s68, s66, 6")
        a("s_sub_u32 s67, s67, s68")
        a("s_add_u32 s59, s67, s68")
    a(f"s_mul_i32 s{S_T}, s52, {8*STRIDE}")
    a("s_lshl_b32 s70, s66, 8")
    a(f"s_add_u32 s{S_T}, s{S_T}, s70")
    a("s_lshr_b32 s70, s52, 1")
    a(f"s_mul_i32 s{S_F}, s70, {18*1024}")
    a("s_and_b32 s70, s52, 1")
    a("s_mul_i32 s70, s70, 1536")
    a(f"s_add_u32 s{S_F}, s{S_F}, s70")
    a("s_mul_i32 s70, s67, 3072")
    a(f"s_add_u32 s{S_F}, s{S_F}, s70")
    a(f"s_add_u32 s{S_F}, s{S_F}, {HT_OFF + ((64-SHED)*2*18*1024 if helper else 0)}")
    if helper: a(f"s_add_u32 s{S_T}, s{S_T}, {(64-SHED)*32*STRIDE}")
    a("s_lshl_b32 s60, s52, 11")
    a("s_mul_i32 s61, s52, 1536")
    a("s_add_u32 s61, s61, 8192")
    a(f"s_mov_b32 s62, {32*STRIDE}")
    a(f"s_mov_b32 s63, {2*18*1024}")
    a("v_lshrrev_b32 v8, 4, v0")
    a("v_and_b32 v9, 3, v0")
    a("v_lshlrev_b32 v9, 4, v9")
    a("v_lshl_add_u32 v8, v8, 6, v9")
    a("v_bfe_u32 v9, v0, 2, 2")
    a(f"v_mul_u32_u24 v10, {STRIDE}, v9")
    a(f"v_add_u32 v{VDT}, v10, v8")
    a(f"v_add_u32 v{VDT2}, {4*STRIDE}, v{VDT}")
    a(f"v_lshlrev_b32 v{VDF}, 4, v0")
    def m0t(buf, i): a(f"s_add_u32 m0, s60, {buf*STAGE + i*1024}")
    def m0f(buf): a(f"s_add_u32 m0, s61, {buf*STAGE}")
    def ldt(i):
        a(f"buffer_load_dwordx4 v{VDT2 if i else VDT}, s[40:43], s{S_T} offen lds")
        if i: a(f"s_add_u32 s{S_T}, s{S_T}, s62")
    def ldf(i):
        if i: a("s_mov_b32 exec_hi, 0")
        a(f"buffer_load_dwordx4 v{VDF}, s[48:51], s{S_F} offen offset:{i*1024} sc1 lds")
        if i:
            a("s_mov_b32 exec_hi, -1")
            a(f"s_add_u32 s{S_F}, s{S_F}, s63")
    a("s_lshl_b32 s69, s66, 2")
    a("s_add_u32 s69, s69, s52")
    a("s_lshl_b32 s71, s69, 6")
    a("v_lshrrev_b32 v10, 5, v0")
    a("v_lshlrev_b32 v11, 3, v10")
    for jj in range(0 if helper else 4):
        a(f"buffer_load_dwordx2 {vr(BIAS+16+2*jj,2)}, v11, s[44:47], s71 offen offset:{jj*16}")
    if hold and HOLD_FIRST == 1:
        dep(a); hold(a)
    if hold and HOLD_FIRST == 2:
        dep(a, 1); hold(a)
    for st in range(NB):
        for i in range(2):
            m0t(st, i); a("s_nop 0"); ldt(i)
    a("v_lshlrev_b32 v8, 11, v10")
    a("v_lshl_add_u32 v8, v9, 6, v8")
    a("v_bfe_u32 v9, v0, 4, 1")
    a("v_lshl_add_u32 v8, v9, 5, v8")
    a("v_and_b32 v9, 3, v0")
    a("v_lshl_add_u32 v8, v9, 3, v8")
    a("s_lshl_b32 s70, s52, 8")
    a(f"v_add_u32 v{VT[0]}, s70, v8")
    a(f"v_add_u32 v{VT[1]}, {3*STAGE}, v{VT[0]}")
    a(f"v_add_u32 v{VF[0]}, 0x2000, v{VDF}")
    a(f"v_add_u32 v{VF[1]}, {3*STAGE}, v{VF[0]}")
    if not (hold and HOLD_FIRST): dep(a)
    if hold and HOLD_FIRST == 2: dep(a, 2)
    a("s_barrier")
    for st in range(NB):
        m0f(st); a("s_nop 0")
        ldf(0); ldf(1)
    def reads(c):
        buf = c % NB; hi = 1 if buf >= 3 else 0; o = (buf - 3*hi)*STAGE
        L = []
        for step in range(2):
            b = SET[c & 1] + 16*step
            for sec in range(2):
                L.append(f"ds_read_b64_tr_b16 {vr(b+2*sec,2)}, v{VT[hi]} offset:{o + step*4096 + sec*1024}")
            for i in range(3):
                L.append(f"ds_read_b128 {vr(b+4+4*i,4)}, v{VF[hi]} offset:{o + step*3072 + i*1024}")
        return L
    def mfma(c, k):
        step, i = divmod(k, 3)
        b = SET[c & 1] + 16*step
        if YIELD > 1:
            if k % YIELD == 0: a("s_setprio 0")
            if k % YIELD == 1: a("s_setprio 2")
        elif YIELD < 0:
            if k % -YIELD == 0: a("s_setprio 0")
            if k % -YIELD == -YIELD - 1: a("s_setprio 2")
        d = vr(ACC + 16*i, 16)
        if helper: cin = "0" if (c % SHED == 0 and step == 0) else d
        else: cin = vr(BIAS, 16) if (c == 0 and step == 0) else d
        a(f"v_mfma_f32_32x32x16_bf16 {d}, {vr(b,4)}, {vr(b+4+4*i,4)}, {cin}")
    def body(c, vm, head=None, fill=()):
        fill = list(fill)
        buf = c % NB
        ld = c + NB < NST
        r = reads(c+1) if c + 1 < NST else []
        if c + 1 < NST:
            a(f"s_waitcnt vmcnt({vm}) lgkmcnt(0)")
            a("s_barrier")
        else:
            a("s_waitcnt lgkmcnt(0)")
        if head: head()
        mfma(c, 0)
        if ld: m0t(buf, 0)
        for x in r[0:3]: a(x)
        if ld: ldt(0)
        mfma(c, 1)
        if ld: m0t(buf, 1)
        for x in r[3:6]: a(x)
        mfma(c, 2)
        if ld: ldt(1)
        for x in r[6:8]: a(x)
        mfma(c, 3)
        if ld: m0f(buf)
        for x in r[8:10]: a(x)
        if ld: ldf(0)
        mfma(c, 4)
        if ld: ldf(1)
        if helper and ld and (c + NB) % SHED == SHED - 1:
            a(f"s_sub_u32 s{S_T}, s{S_T}, {SHED*32*STRIDE}")
            a(f"s_sub_u32 s{S_F}, s{S_F}, {SHED*2*18*1024 - 3072}")
        for x in fill: a(x)
        mfma(c, 5)
    def vm_of(c):
        order = [("T", s_) for s_ in range(NB) for _ in range(2)] + [("F", s_) for s_ in range(NB) for _ in range(2)]
        for b in range(c):
            if b + NB < NST: order += [("X", b + NB)]*4
        last = max(n for n, o in enumerate(order) if o[1] == c + 1)
        return len(order) - 1 - last
    a(f"s_waitcnt vmcnt({2*(NB-1)})")
    a("s_barrier")
    for x in reads(0): a(x)
    if helper:
        assert SHED == 10
        a(f"s_mul_i32 s64, s66, {6*24576}")
        a("s_mul_i32 s65, s52, 6144")
        a("s_add_u32 s64, s64, s65")
        a(f"s_add_u32 s64, s64, {PP_OFF}")
        a("s_mul_i32 s59, s66, 6")
        ebox(a)
        a("v_mov_b32 v12, 0")
        a("v_mov_b32 v13, 1")
        a("s_waitcnt vmcnt(0)")
        def flush():
            a("s_nop 9")
            for i in range(3):
                b = ACC + 16*i
                for e in range(8): a(f"v_cvt_pk_bf16_f32 v{BIAS+8*i+e}, v{b+2*e}, v{b+2*e+1}")
            a("s_add_u32 s70, s64, 4096")
            for i in range(3):
                for hf in range(2):
                    n = 2*i + hf
                    a(f"buffer_store_dwordx4 {vr(BIAS+4*n,4)}, v{VDF}, s[48:51], s{64 if n < 4 else 70} offen offset:{(n%4)*1024} sc1")
            a("s_add_u32 s64, s64, 24576")
        def signal():
            a("s_mov_b64 exec, 1")
            a("buffer_atomic_add v13, v12, s[48:51], s65 offen sc1")
            a("s_mov_b64 exec, -1")
            a("s_add_u32 s65, s65, 256")
        a.stamp_mid(0)
        for c in range(10): body(c, 12)
        a.stamp_mid(6)
        flush()
        a(f"s_mov_b32 s{S_CNT}, 4")
        a.raw(".p2align 6")
        a.label("L_help_loop")
        for c in range(10, 20): body(c, 12 + (RELAX if c < 14 else 0))
        signal()
        flush()
        a(f"s_sub_u32 s{S_CNT}, s{S_CNT}, 1")
        a(f"s_cmp_lg_u32 s{S_CNT}, 0")
        a("s_cbranch_scc1 L_help_loop")
        for c in range(50, 60): body(c, (vm_of(c) + (RELAX if c < 54 else 0)) if c + 1 < NST else 0)
        signal()
        flush()
        a("s_waitcnt vmcnt(0)")
        signal()
        a("s_barrier")
        return
    for p in range(8):
        a(f"v_lshlrev_b32 v{BIAS+2*p}, 16, v{BIAS+16+p}")
        a(f"v_and_b32 v{BIAS+2*p+1}, 0xffff0000, v{BIAS+16+p}")
    a.stamp_mid(6)
    if hold and not HOLD_FIRST: hold(a)
    a("s_setprio 0")
    a.stamp_mid(sm)
    P0 = 4
    if hold2 and H2AT == 0: hold2(a)
    for c in range(P0): body(c, vm_of(c))
    nl = (NST - NB - P0)//10
    for c in range(P0, P0 + 10*nl): assert vm_of(c) == 12
    a(f"s_mov_b32 s{S_CNT}, {nl}")
    a.raw(".p2align 6")
    a.label("L_mlp1_loop")
    for c in range(P0, P0 + 10): body(c, 12)
    a(f"s_sub_u32 s{S_CNT}, s{S_CNT}, 1")
    a(f"s_cmp_lg_u32 s{S_CNT}, 0")
    a("s_cbranch_scc1 L_mlp1_loop")
    PK = 200; PF_ = 152
    def getp():
        ebox(a, True)
        a("s_mul_i32 s64, s59, 24576")
        a("s_mul_i32 s70, s52, 6144")
        a("s_add_u32 s64, s64, s70")
        a(f"s_add_u32 s64, s64, {PP_OFF}")
        a("s_add_u32 s70, s64, 4096")
        for n in range(6):
            a(f"buffer_load_dwordx4 {vr(PK+4*n,4)}, v{VDF}, s[48:51], s{64 if n < 4 else 70} offen offset:{(n%4)*1024} sc1")
    unp = []
    for p in range(24):
        unp += [f"v_lshlrev_b32 v{PF_+2*p}, 16, v{PK+p}", f"v_and_b32 v{PF_+2*p+1}, 0xffff0000, v{PK+p}"]
    for c in range(P0 + 10*nl, NST):
        f = ()
        if SHED and c >= NST - 2: f = unp[24*(c-NST+2):24*(c-NST+3)]
        body(c, vm_of(c) if c + 1 < NST else 0, head=getp if (SHED and c == NST - GETP) else None, fill=f)
    a(f"s_setprio {EPRIO}")
    a.stamp_mid(sm+1)
    c0 = -2.0*math.sqrt(2.0/math.pi)*math.log2(math.e)
    a(f"v_mov_b32 v12, {f32bits(c0*0.044715)}")
    a(f"v_mov_b32 v13, {f32bits(c0)}")
    a(f"s_mul_i32 s16, s69, {2*18*1024}")
    a(f"s_mul_i32 s17, s67, 3072")
    a(f"s_add_u32 s16, s16, s17")
    a(f"s_add_u32 s16, s16, {U_OFF}")
    a(f"s_add_u32 s17, s16, {18*1024}")
    if EARLY2:
        pub(a, 0)
        if epi: epi(a)
    a("s_nop 3")
    T1 = 16
    for i in range(3):
        b = ACC + 16*i
        if SHED:
            for e in range(16): a(f"v_add_f32 v{b+e}, v{b+e}, v{PF_+16*i+e}")
        for e in range(16): a(f"v_mul_f32 v{T1+e}, v{b+e}, v{b+e}")
        for e in range(16): a(f"v_fma_f32 v{T1+e}, v{T1+e}, v12, v13")
        for e in range(16): a(f"v_mul_f32 v{T1+e}, v{T1+e}, v{b+e}")
        for e in range(16): a(f"v_exp_f32 v{T1+e}, v{T1+e}")
        for e in range(16): a(f"v_add_f32 v{T1+e}, 1.0, v{T1+e}")
        for e in range(16): a(f"v_rcp_f32 v{T1+e}, v{T1+e}")
        for e in range(16): a(f"v_mul_f32 v{b+e}, v{b+e}, v{T1+e}")
        for e in range(8):  a(f"v_cvt_pk_bf16_f32 v{b+e}, v{b+2*e}, v{b+2*e+1}")
        a(f"buffer_store_dwordx4 {vr(b,4)}, v{VDF}, s[48:51], s16 offen offset:{i*1024} sc1")
        a(f"buffer_store_dwordx4 {vr(b+4,4)}, v{VDF}, s[48:51], s17 offen offset:{i*1024} sc1")
    if not EARLY2:
        pub(a, 0)
        if epi: epi(a)
    pub(a, 1)
```

```python
from common import *

MLP2_GRID = 240
for n in range(30):
    assert (n*86) >> 8 == n//3

VF = [1, 2]; VT = [3, 4]
VDT, VDT2, VDF = 5, 6, 7
FR = [8, 28]
ACC = 64
TP = 160
def acc(i, n): return ACC + 16*(2*i + n)
S_T, S_F, S_CNT = 54, 55, 58
STAGE = 20480
NST = 29
SKEW = 0
LOOKS = (0, 2, 3)
YIELD = 1
P0 = (0, 4, 8, 11, 14)
PC = (4, 4, 3, 3, 4)

def mlp2_body(a, wgreg, sm, dep, dep_o, ybox, post=None, part=0):
    real = a
    if part == 2:
        a = Asm()
    a.srd(40, P_W2, S*F*2)
    a.srd(44, P_WS, WS_SIZE)
    a(f"s_lshr_b32 s67, {wgreg}, 3")
    a(f"s_and_b32 s68, {wgreg}, 7")
    a("s_mul_i32 s68, s68, 30")
    a("s_add_u32 s67, s67, s68")
    if SKEW:
        a(f"s_and_b32 s68, {wgreg}, 1")
        a(f"s_mul_i32 s68, s68, {SKEW}")
        a("s_add_u32 s67, s67, s68")
    a("s_mul_i32 s66, s67, 171")
    a("s_lshr_b32 s66, s66, 9")
    a("s_mul_i32 s68, s66, 3")
    a("s_sub_u32 s67, s67, s68")
    a("s_lshr_b32 s69, s66, 4")
    a("s_and_b32 s66, s66, 15")
    a("s_lshl_b32 s70, s69, 2")
    a(f"s_lshr_b32 s53, {sum(c << (4*i) for i, c in enumerate(PC))}, s70")
    a("s_and_b32 s53, s53, 15")
    a(f"s_lshr_b32 s65, {sum(c << (4*i) for i, c in enumerate(P0))}, s70")
    a("s_and_b32 s65, s65, 15")
    a("s_and_b32 s71, s52, 1")
    a("s_lshr_b32 s72, s52, 1")
    a("s_lshl_b32 s56, s66, 8")
    a("s_lshl_b32 s70, s52, 15")
    a("s_add_u32 s56, s56, s70")
    a("s_mul_i32 s57, s67, 6144")
    a(f"s_mul_i32 s70, s72, {18*1024}")
    a("s_add_u32 s57, s57, s70")
    a("s_mul_i32 s70, s71, 3072")
    a("s_add_u32 s57, s57, s70")
    a(f"s_mul_i32 s{S_T}, s69, {928*4096}")
    a(f"s_add_u32 s{S_T}, s{S_T}, s56")
    a(f"s_mul_i32 s{S_F}, s69, {58*18*1024}")
    a(f"s_add_u32 s{S_F}, s{S_F}, s57")
    a(f"s_add_u32 s{S_F}, s{S_F}, {U_OFF}")
    a("s_lshl_b32 s60, s52, 11")
    a("s_mul_i32 s61, s52, 3072")
    a("s_add_u32 s61, s61, 8192")
    a(f"s_mov_b32 s62, {32*4096}")
    a(f"s_mov_b32 s63, {2*18*1024}")
    a(f"v_lshrrev_b32 v8, 4, v0")
    a(f"v_and_b32 v9, 3, v0")
    a(f"v_lshlrev_b32 v9, 4, v9")
    a(f"v_lshl_add_u32 v8, v8, 6, v9")
    a(f"v_bfe_u32 v9, v0, 2, 2")
    a(f"v_lshl_add_u32 v{VDT}, v9, 12, v8")
    a(f"v_add_u32 v{VDT2}, {4*4096}, v{VDT}")
    a(f"v_lshlrev_b32 v{VDF}, 4, v0")
    def m0t(buf, i): a(f"s_add_u32 m0, s60, {buf*STAGE + i*1024}")
    def m0f(buf): a(f"s_add_u32 m0, s61, {buf*STAGE}")
    def ldt(i, st=S_T):
        a(f"buffer_load_dwordx4 v{VDT2 if i else VDT}, s[40:43], s{st} offen sc1 lds")
        if i: a(f"s_add_u32 s{st}, s{st}, s62")
    def ldf(i):
        a(f"buffer_load_dwordx4 v{VDF}, s[44:47], s{S_F} offen offset:{i*1024} sc1 lds")
        if i == 2: a(f"s_add_u32 s{S_F}, s{S_F}, s63")
    for st in range(4):
        for i in range(2):
            m0t(st, i); a("s_nop 0"); ldt(i)
    a(f"v_lshrrev_b32 v8, 5, v0")
    a(f"v_lshlrev_b32 v8, 10, v8")
    a(f"v_lshl_add_u32 v8, v9, 6, v8")
    a(f"v_bfe_u32 v9, v0, 4, 1")
    a(f"v_lshl_add_u32 v8, v9, 5, v8")
    a(f"v_and_b32 v9, 3, v0")
    a(f"v_lshl_add_u32 v8, v9, 3, v8")
    a("s_lshl_b32 s70, s72, 9")
    a(f"v_add_u32 v{VT[0]}, s70, v8")
    a(f"v_add_u32 v{VT[1]}, {2*STAGE}, v{VT[0]}")
    a("s_mul_i32 s70, s71, 3072")
    a("s_add_u32 s70, s70, 8192")
    a(f"v_add_u32 v{VF[0]}, s70, v{VDF}")
    a(f"v_add_u32 v{VF[1]}, {2*STAGE}, v{VF[0]}")
    if part == 1: return
    a = real
    dep(a)
    for st in range(3):
        m0f(st); a("s_nop 0")
        for i in range(3): ldf(i)
    def rdF(dst, buf, step, i):
        return f"ds_read_b128 {vr(dst,4)}, v{VF[buf>>1]} offset:{(buf&1)*STAGE + step*6144 + i*1024}"
    def rdT(dst, buf, step, n, sec):
        return f"ds_read_b64_tr_b16 {vr(dst,2)}, v{VT[buf>>1]} offset:{(buf&1)*STAGE + step*4096 + sec*2048 + n*256}"
    def reads(sn, buf, step):
        b = FR[sn]
        Fr = [((sn, "F", i), rdF(b+4*i, buf, step, i)) for i in range(3)]
        T = [((sn, "T", n), rdT(b+12+4*n+2*sec, buf, step, n, sec)) for n in range(2) for sec in range(2)]
        return [Fr[0], T[0], T[1], T[2], T[3], Fr[1], Fr[2]]
    def mfma(ls, sn, k, first):
        b = FR[sn]
        i, n = k >> 1, k & 1
        ls.need([(sn, "F", i), (sn, "T", n)])
        if YIELD > 1:
            if k % YIELD == 0: a("s_setprio 0")
            if k % YIELD == 1: a("s_setprio 2")
        elif YIELD < 0:
            if k % -YIELD == 0: a("s_setprio 0")
            if k % -YIELD == -YIELD - 1: a("s_setprio 2")
        c = vr(acc(i, n), 16)
        a(f"v_mfma_f32_32x32x16_bf16 {c}, {vr(b+4*i,4)}, {vr(b+12+4*n,4)}, {'0' if first else c}")
    def body(c, vm=10, mid=None, head=None, mid2=None):
        buf = c % 4; pb = (c - 1) % 4; last = (c == NST - 1)
        ls = LdsSched(a, [r[0] for r in reads(0, buf, 0)])
        ls.drain()
        if head: head()
        r = reads(1, buf, 1)
        mfma(ls, 0, 0, c == 0)
        m0f(pb)
        for x in r[0:3]: ls.read(*x)
        ldf(0)
        mfma(ls, 0, 1, c == 0)
        for x in r[3:7]: ls.read(*x)
        mfma(ls, 0, 2, c == 0)
        ldf(1)
        mfma(ls, 0, 3, c == 0)
        mfma(ls, 0, 4, c == 0)
        ldf(2)
        mfma(ls, 0, 5, c == 0)
        if mid: mid()
        ls.drain()
        mfma(ls, 1, 0, False)
        if mid2: mid2()
        a(f"s_waitcnt vmcnt({vm})")
        a("s_barrier")
        r = [] if last else reads(0, (c+1) % 4, 0)
        m0t(buf, 0)
        for x in r[0:3]: ls.read(*x)
        mfma(ls, 1, 1, False)
        for x in r[3:7]: ls.read(*x)
        mfma(ls, 1, 2, False)
        ldt(0)
        mfma(ls, 1, 3, False)
        m0t(buf, 1)
        mfma(ls, 1, 4, False)
        ldt(1)
        if last: m0f(buf)
        mfma(ls, 1, 5, False)
        if last:
            for i in range(3): ldf(i)
    if post:
        post(a)
    x = 1 if post else 0
    a(f"s_waitcnt vmcnt({6+x})")
    a("s_barrier")
    for r in reads(0, 0, 0): a(r[1])
    a("s_setprio 0")
    a.stamp_mid(sm)
    body(0, 6+x)
    body(1, 8+x)
    a(f"s_mov_b32 s{S_CNT}, 5")
    L = a.newlabel("mlp2")
    a.raw(".p2align 6")
    a.label(L)
    for c in range(2, 6): body(c)
    a(f"s_sub_u32 s{S_CNT}, s{S_CNT}, 1")
    a(f"s_cmp_lg_u32 s{S_CNT}, 0")
    a(f"s_cbranch_scc1 {L}")
    body(22); body(23, mid=lambda: dep_o(a, "addr"))
    def kill28():
        a("s_cmp_eq_u32 s69, 4")
        a("s_cselect_b32 s42, 0, s42")
        a("s_cselect_b32 s46, 0, s46")
    body(24, mid=kill28)
    def switch():
        a.srd(40, P_WS, 0)
        a(f"s_mov_b32 s46, {WS_SIZE}")
        a("s_mov_b32 s79, 0")
        a(f"s_lshl_b32 s{S_T}, s65, 17")
        a(f"s_add_u32 s{S_T}, s{S_T}, s56")
        a(f"s_add_u32 s{S_T}, s{S_T}, {O_OFF}")
        a(f"s_mov_b32 s78, s{S_T}")
        a(f"s_mul_i32 s{S_F}, s65, s63")
        a(f"s_add_u32 s{S_F}, s{S_F}, s57")
        a(f"s_add_u32 s{S_F}, s{S_F}, {WOF_OFF}")
        a("s_lshl_b32 s70, s66, 1")
        a("s_add_u32 s70, s70, s72")
        a("s_lshl_b32 s70, s70, 6")
        a("v_and_b32 v48, 31, v0")
        a("v_add_u32 v48, s70, v48")
        a("v_lshlrev_b32 v49, 2, v48")
        a("v_lshlrev_b32 v48, 1, v48")
        a(f"s_mov_b32 s70, {G_OFF}")
        a.srd(80, P_B2, S*2)
        a("s_cmp_eq_u32 s69, 0")
        a("s_cselect_b32 s82, s82, 0")
        a("buffer_load_dword v50, v49, s[48:51], s70 offen sc1")
        a("buffer_load_dword v51, v49, s[48:51], s70 offen offset:128 sc1")
        a("buffer_load_ushort v52, v48, s[80:83], 0 offen")
        a("buffer_load_ushort v53, v48, s[80:83], 0 offen offset:64")
    def peek(): a("s_buffer_load_dword s75, s[48:51], s59 glc")
    def look(j):
        def f():
            L = a.newlabel("lk")
            a("s_cmp_ge_u32 s75, s64")
            a("s_cselect_b32 s75, 1, 0")
            a("s_cmp_gt_u32 s75, s79")
            a(f"s_cbranch_scc0 {L}")
            a("s_mov_b32 s79, 1")
            a(f"s_mov_b32 s42, {WS_SIZE}")
            for jj in range(j):
                for i in range(2):
                    m0t((NST + jj) % 4, i); a("s_nop 0"); ldt(i, 78)
            a.label(L)
            if j == 3:
                a("s_cmp_lt_u32 s53, 4")
                a("s_cselect_b32 s42, 0, s42")
                a("s_cselect_b32 s46, 0, s46")
        return f
    def nolook3():
        a("s_cmp_lt_u32 s53, 4")
        a("s_cselect_b32 s42, 0, s42")
        a("s_cselect_b32 s46, 0, s46")
    for j in range(4):
        on = j in LOOKS
        body(25 + j, mid=switch if j == 0 else None, head=peek if on else None, mid2=look(j) if on else (nolook3 if j == 3 else None))
    a.stamp_mid(7)
    a("s_setprio 2")
    Lgo = a.newlabel("go")
    a("s_cmp_lg_u32 s79, 0")
    a(f"s_cbranch_scc1 {Lgo}")
    dep_o(a, True)
    a(f"s_mov_b32 s42, {WS_SIZE}")
    for j in range(4):
        if j == 3:
            a("s_cmp_lt_u32 s53, 4")
            a("s_cselect_b32 s42, 0, s42")
        for i in range(2):
            m0t((NST + j) % 4, i); a("s_nop 0"); ldt(i, 78)
    a.label(Lgo)
    for n in range(2):
        a(f"v_sub_f32 v{50+n}, 1.0, v{50+n}")
        a(f"v_lshlrev_b32 v{52+n}, 16, v{52+n}")
        a(f"v_mul_f32 v{52+n}, v{52+n}, v{50+n}")
    a(f"s_mul_i32 s73, s69, {YPB_SZ}")
    a("s_lshl_b32 s70, s67, 1")
    a("s_add_u32 s70, s70, s71")
    a(f"s_mul_i32 s70, s70, {3*64*2048}")
    a("s_add_u32 s73, s73, s70")
    a("s_lshl_b32 s70, s66, 1")
    a("s_add_u32 s70, s70, s72")
    a("s_lshl_b32 s70, s70, 12")
    a("s_add_u32 s73, s73, s70")
    a(f"s_add_u32 s73, s73, {YP_OFF}")
    ybox(a)
    a("v_mov_b32 v54, 0")
    a("v_mov_b32 v55, 1")
    for i in range(3):
        for n in range(2):
            for e in range(16):
                r = acc(i, n) + e
                a(f"v_fma_f32 v{r}, v{r}, v{50+n}, v{52+n}")
    a("s_waitcnt vmcnt(0)")
    a("s_barrier")
    ls = LdsSched(a)
    def prd(k): return ((NST + (k >> 1)) % 4, k & 1)
    def fread(i, k): ls.read(("F", i, k), rdF(8 + 4*k, *prd(k), i))
    def tread(k):
        for n in range(2):
            for sec in range(2):
                ls.read(("T", k), rdT(TP + 8*k + 4*n + 2*sec, *prd(k), n, sec))
    def signal(i, vm):
        a(f"s_waitcnt vmcnt({vm})")
        a("s_mov_b64 exec, 1")
        a(f"buffer_atomic_add v55, v54, s[48:51], s76 offen offset:{4*i} sc1")
        a("s_mov_b64 exec, -1")
    def finish(i):
        L = []
        for n in range(2):
            b = acc(i, n)
            for hf in range(2):
                for e in range(4*hf, 4*hf+4):
                    L.append(f"v_cvt_pk_bf16_f32 v{b+e}, v{b+2*e}, v{b+2*e+1}")
                L.append(f"buffer_store_dwordx4 {vr(b+4*hf,4)}, v{VDF}, s[48:51], s73 offen offset:{n*2048+hf*1024} sc1")
        if i < 2: L.append(f"s_add_u32 s73, s73, {64*2048}")
        return L
    for k in range(2):
        fread(0, k); tread(k)
    for i in range(3):
        fin = finish(i-1) if i else []
        for k in range(8):
            ls.need([("F", i, k), ("T", k)])
            for n in range(2):
                c = vr(acc(i, n), 16)
                a(f"v_mfma_f32_32x32x16_bf16 {c}, {vr(8+4*k,4)}, {vr(TP+8*k+4*n,4)}, {c}")
                if i and k == 3 and n == 0: a("s_nop 3")
                if k >= 3 and (k > 3 or n):
                    for x in fin[:3]: a(x)
                    fin = fin[3:]
            if i == 0 and k + 2 < 8:
                fread(0, k+2); tread(k+2)
            if i < 2 and k >= 2: fread(i+1, k-2)
            if i > 0 and k == 0:
                fread(i, 6); fread(i, 7)
        assert not fin
    a.stamp_mid(sm+1)
    a("s_nop 15")
    for x in finish(2): a(x)
    signal(0, 8)
    signal(1, 4)
    signal(2, 0)
```

```python
import sys
from common import *
import sync, k_front, k_mlp1, k_mlp1y, k_mlp2, k_attn, k_final, k_final2, k_mlp2f, k_help
from sync import mb, MB_U, MB_H, MB_QKV, MB_O, MB_Y, MB_G, MB_P, MB_E

HEADER = open("cdna_kernels/" + NAME + ".s.ref").read().split("; Override launch geometry")[0]
N_WO = 18
W2_TOUCH = False
FRONT_ONLY = False
PARTNER = True
A_EXIT = False
PF1 = 0
PFN1 = 16
PFS1 = 0
PF3 = 0
QPOLL_ALL = False
UPOLL_ALL = True
HINT2 = 0
FUSED = True
INIT_LOW = 2
W1HEAD = True
PRE = 0
M1Y = True
COOP = False
COOP_H = False
COOP_U = False
BPRIO = 0
INIT_LATE = True
PFMODE = 'col'
PFH = False
SLP_H = 4
HEAD_PF = 0
CODE_PF = True
B_EXIT = False
DIAG = None
PF_AFTER_H = True
TLBW = 0
PFW1 = True
XW = 2
XWD = 1
LIST = True
NO_FINAL = False
PFD = 1
LN_WAIT = True
PF2 = 7
EARLY = 1
EARLY_FL = ''
PROMOTE = False
WAIT_QKV = True
HINT_AT = 3
SLP_HINT = 4
SLP_FIN = 2
W2_TAIL = 0
AUX_G0 = 16
AUX_NT = ''

DOC = """;
;                         240 tiles) scaled by (1-gate) with the output projection of gate*o appended along K
"""

def gen_main(a, name):
    a.kernel_begin(name)
    a("s_cmp_ge_u32 s2, 512")
    a("s_cbranch_scc1 L_end")
    a.load_kernargs()
    sync.wave_setup(a)
    a.srd(48, P_WS, WS_SIZE)
    a.srd(84, P_DBG, 256)
    a("s_cmp_ge_u32 s2, 256")
    a("s_cbranch_scc1 L_slotB")
    a("s_setprio 3")
    a("s_cmp_ge_u32 s2, 192")
    a("s_cbranch_scc1 L_ln")
    def hint2(a):
        L = a.newlabel("hint")
        a("s_cmp_lg_u32 s52, 0")
        a(f"s_cbranch_scc1 {L}")
        a("s_lshl_b32 s76, s2, 8")
        a(f"s_add_u32 s76, s76, {mb(MB_P)}")
        a("v_mov_b32 v8, 0")
        a("v_mov_b32 v9, 1")
        a("s_mov_b64 exec, 1")
        a("buffer_store_dword v9, v8, s[48:51], s76 offen offset:4 sc1")
        a("s_mov_b64 exec, -1")
        a.label(L)
    def pub_qkv(a):
        a("s_and_b32 s72, s56, 3")
        a("s_lshl_b32 s72, s72, 12")
        a("s_and_b32 s73, s55, 12")
        a("s_add_u32 s72, s72, s73")
        a(f"s_add_u32 s72, s72, {mb(MB_QKV)}")
        if HINT2 == 1: hint2(a)
        sync.publish(a, 72, 16, init=True)
        if HINT2 == 2: hint2(a)
    def hint(a):
        L = a.newlabel("hint")
        a("s_lshl_b32 s76, s52, 3")
        a("s_add_u32 s76, s76, s60")
        a(f"s_cmp_lg_u32 s76, {HINT_AT}")
        a(f"s_cbranch_scc1 {L}")
        a("s_lshl_b32 s76, s2, 8")
        a(f"s_add_u32 s76, s76, {mb(MB_P)}")
        a("v_mov_b32 v8, 0")
        a("v_mov_b32 v9, 1")
        a("s_mov_b64 exec, 1")
        a("buffer_store_dword v9, v8, s[48:51], s76 offen sc1")
        a("s_mov_b64 exec, -1")
        a.label(L)
    k_front.qkv_body(a, "s2", pub_qkv, hint if WAIT_QKV else None)
    a("s_branch L_attn")
    a.label("L_ln")
    a("s_sub_u32 s3, s2, 192")
    def pub_h(a):
        a("s_lshr_b32 s72, s58, 4")
        a("s_lshl_b32 s72, s72, 13")
        a(f"s_add_u32 s72, s72, {mb(MB_H)}")
        sync.publish(a, 72, 32, init=True)
    k_front.ln_body(a, "s3", pub_h)
    a.stamp_mid(6)
    k_front.gate_own(a)
    a(f"s_cmp_ge_u32 s3, {N_WO}")
    a("s_cbranch_scc1 L_nowo")
    k_front.wo_body(a, "s3")
    a.label("L_nowo")
    a(f"s_mov_b32 s72, {mb(MB_G)}")
    sync.publish(a, 72, 32, init='late')
    a.label("L_attn")
    a.stamp_mid(2)
    if FRONT_ONLY or A_EXIT: a("s_branch L_done")
    def dep_qkv(a):
        a("s_lshr_b32 s72, s61, 3")
        a("s_lshl_b32 s72, s72, 4")
        a("s_bfe_u32 s73, s2, 0x40003")
        a("s_add_u32 s72, s72, s73")
        a("s_lshl_b32 s72, s72, 8")
        a(f"s_add_u32 s79, s72, {mb(MB_QKV)}")
        a("s_lshr_b32 s73, s2, 6")
        a("s_lshl_b32 s73, s73, 2")
        a("s_add_u32 s72, s79, s73")
        if QPOLL_ALL:
            sync.poll(a, None, 0, vt=8, init='late')
            sync.spin(a, 48, "s72", 12, 8, sleep=2)
        else:
            sync.poll(a, 72, 12, vt=8, sleep=2, init='late')
        if HINT2 == 3: hint2(a)
    def dep_qkv2(a):
        L = a.newlabel("q2"); Ld = a.newlabel("q2d")
        a("s_mov_b32 s76, 0")
        a.label(L)
        a("s_buffer_load_dwordx4 s[72:75], s[48:51], s79 glc")
        a("s_add_u32 s76, s76, 1")
        a("s_waitcnt lgkmcnt(0)")
        a("s_min_u32 s72, s72, s73")
        a("s_min_u32 s74, s74, s75")
        a("s_min_u32 s72, s72, s74")
        a("s_cmp_ge_u32 s72, 12")
        a(f"s_cbranch_scc1 {Ld}")
        a("s_sleep 4")
        a(f"s_cmp_lt_u32 s76, {sync.SPIN_MAX}")
        a(f"s_cbranch_scc1 {L}")
        a.label(Ld)
    def dep_g(a):
        a("s_bfe_u32 s72, s2, 0x50003")
        a("s_lshl_b32 s72, s72, 8")
        a(f"s_add_u32 s72, s72, {mb(MB_G)}")
        sync.spin(a, 48, "s72", 64, 0)
    def pub_o_f(a):
        a("s_cmp_gt_u32 s61, 7")
        a("s_cselect_b32 s72, 1, 0")
        for hd in (14, 19, 24):
            a(f"s_cmp_gt_u32 s61, {hd}")
            a("s_addc_u32 s72, s72, 0")
        a("s_lshr_b32 s73, s2, 5")
        a("s_mul_i32 s73, s73, 5")
        a("s_add_u32 s72, s72, s73")
        a(f"s_mul_i32 s72, s72, {6*256}")
        a(f"s_add_u32 s72, s72, {mb(MB_O)}")
        a(f"s_lshr_b32 s73, {(1<<7)|(1<<14)|(1<<19)|(1<<24)}, s61")
        a("s_and_b32 s73, s73, 1")
        a("s_cselect_b32 s73, 0xfff, 63")
        sync.publish(a, 72, "s73")
    def pub_o(a):
        if FUSED: return pub_o_f(a)
        a("s_lshr_b32 s72, s2, 5")
        a("s_lshl_b32 s72, s72, 13")
        a("s_lshr_b32 s73, s61, 3")
        a("s_lshl_b32 s73, s73, 2")
        a("s_add_u32 s72, s72, s73")
        a(f"s_add_u32 s72, s72, {mb(MB_O)}")
        sync.publish(a, 72, 24)
    def last_extra(a):
        k_final2.wof_setup(a, "s2", 147)
        return [k_final2.wof_load(k, 147) for k in range(27)]
    TV = 140
    def tsetup(a):
        a.srd(80, P_W2, S*F*2)
        a("s_lshr_b32 s72, s2, 3")
        a("s_lshl_b32 s72, s72, 2")
        a("s_add_u32 s72, s72, s52")
        a("s_mul_i32 s73, s72, 205")
        a("s_lshr_b32 s73, s73, 11")
        a("s_mul_i32 s76, s73, 10")
        a("s_sub_u32 s72, s72, s76")
        a("s_and_b32 s76, s2, 7")
        a("s_mul_i32 s76, s76, 10")
        a("s_add_u32 s72, s72, s76")
        a("s_lshr_b32 s76, s72, 4")
        a("s_and_b32 s72, s72, 15")
        a(f"s_mul_i32 s76, s76, {928*4096}")
        a("s_lshl_b32 s72, s72, 8")
        a("s_add_u32 s76, s76, s72")
        a("s_lshl_b32 s72, s73, 17")
        a("s_add_u32 s76, s76, s72")
        a("s_cmp_ge_u32 s73, 12")
        a("s_cselect_b32 s82, 0, s82")
        a(f"v_lshrrev_b32 v{TV}, 1, v0")
        a(f"v_lshlrev_b32 v{TV}, 12, v{TV}")
        a(f"v_and_b32 v{TV+1}, 1, v0")
        a(f"v_lshl_add_u32 v{TV}, v{TV+1}, 7, v{TV}")
        a(f"v_add_u32 v{TV}, s76, v{TV}")
        a("s_mov_b32 s78, s73")
    def touch(a):
        a("s_cmp_ge_u32 s78, 29")
        a("s_cselect_b32 s82, 0, s82")
        a(f"buffer_load_dword v{TV+1}, v{TV}, s[80:83], 0 offen")
        a(f"v_add_u32 v{TV}, {12*32*4096}, v{TV}")
        a("s_add_u32 s78, s78, 12")
    k_attn.attn_body(a, "s2", dep_qkv, pub_o, sm=3, tsetup=tsetup if W2_TOUCH else None, touch=touch if W2_TOUCH else None, dep_g=dep_g, dep2=dep_qkv2, last_extra=None if FUSED else last_extra)
    a.stamp_mid(5)
    a("s_cmp_ge_u32 s2, 192")
    a("s_cbranch_scc1 L_done")
    if NO_FINAL: a("s_branch L_done")
    def dep_y(a, i):
        L = a.newlabel("y"); Ld = a.newlabel("yd")
        if i == 0:
            a("s_lshl_b32 s76, s54, 5")
            a("s_add_u32 s76, s76, s53")
            a("s_lshl_b32 s76, s76, 8")
            a(f"s_add_u32 s76, s76, {mb(MB_Y)}")
            a("s_mov_b32 s77, 0")
        else:
            a(f"s_cmp_ge_u32 s{72+i}, 5")
            a(f"s_cbranch_scc1 {Ld}")
        a.label(L)
        a("s_buffer_load_dwordx4 s[72:75], s[48:51], s76 glc")
        a("s_add_u32 s77, s77, 1")
        a("s_waitcnt lgkmcnt(0)")
        a(f"s_cmp_ge_u32 s{72+i}, 5")
        a(f"s_cbranch_scc1 {Ld}")
        if i == 0: a(f"s_sleep {SLP_FIN}")
        a(f"s_cmp_lt_u32 s77, {sync.SPIN_MAX}")
        a(f"s_cbranch_scc1 {L}")
        a.label(Ld)
        if i == 2: a.stamp_mid(7)
    def boxes(a):
        a("s_lshr_b32 s66, s53, 2")
        a("s_lshl_b32 s66, s66, 5")
        a("s_lshr_b32 s67, s2, 3")
        a("s_add_u32 s66, s66, s67")
        a("s_lshl_b32 s66, s66, 8")
        a("s_lshl_b32 s67, s52, 2")
        a("s_add_u32 s66, s66, s67")
        a(f"s_add_u32 s66, s66, {mb(MB_O)}")
        a("s_lshl_b32 s67, s54, 5")
        a("s_add_u32 s67, s67, s53")
        a("s_lshl_b32 s67, s67, 8")
        a(f"s_add_u32 s67, s67, {mb(MB_Y)}")
    if FUSED: k_final.final_body(a, "s2", dep_y)
    else: k_final2.final_body(a, "s2", boxes, sync.SPIN_MAX)
    a("s_branch L_done")
    a.label("L_slotB")
    a("s_sub_u32 s3, s2, 256")
    if INIT_LOW == 1:
        a(f"s_cmp_gt_u32 s3, {sync.N_LATE}")
        a("s_cbranch_scc1 L_noinit")
        a("s_mov_b32 s78, s3")
    elif INIT_LOW == 2:
        a("s_cmp_eq_u32 s3, 255")
        a(f"s_cselect_b32 s78, {sync.N_LATE}, s3")
        a(f"s_cmp_eq_u32 s3, {sync.N_LATE}")
        a("s_cselect_b32 s78, 99, s78")
        a(f"s_cmp_gt_u32 s78, {sync.N_LATE}")
        a("s_cbranch_scc1 L_noinit")
    else:
        a(f"s_cmp_lt_u32 s3, {255 - sync.N_LATE}")
        a("s_cbranch_scc1 L_noinit")
        a(f"s_sub_u32 s78, s3, {255 - sync.N_LATE}")
    a("s_setprio 3")
    sync.init_mailboxes(a, "s78")
    a("s_setprio 0")
    a.stamp_mid(0)
    a.label("L_noinit")
    if CODE_PF:
        Lc = a.newlabel("cpf")
        a("s_lshr_b32 s72, s3, 4")
        a("s_cmp_lg_u32 s72, 2")
        a(f"s_cbranch_scc1 {Lc}")
        a("s_getpc_b64 s[80:81]")
        a.label("L_pc")
        a(f"s_sub_u32 s80, s80, L_pc - {name}")
        a("s_subb_u32 s81, s81, 0")
        a(f"s_mov_b32 s82, L_code_end - {name}")
        a("s_mov_b32 s83, 0x00020000")
        a("s_bfe_u32 s72, s3, 0x10003")
        a("s_lshl_b32 s72, s72, 2")
        a("s_add_u32 s72, s72, s52")
        a("s_lshl_b32 s72, s72, 13")
        a("v_lshlrev_b32 v5, 7, v0")
        a("v_add_u32 v5, s72, v5")
        a("buffer_load_dword v58, v5, s[80:83], 0 offen")
        a.label(Lc)
    if WAIT_QKV:
        Lz = a.newlabel("hz")
        a("s_cmp_lg_u32 s52, 0")
        a(f"s_cbranch_scc1 {Lz}")
        a("s_lshl_b32 s72, s3, 8")
        a(f"s_add_u32 s72, s72, {mb(MB_P)}")
        a("v_lshlrev_b32 v5, 4, v0")
        for i in range(4): a(f"v_mov_b32 v{8+i}, 0")
        a("s_mov_b64 exec, 0xff")
        a("buffer_store_dwordx4 v[8:11], v5, s[48:51], s72 offen sc1")
        a("s_mov_b64 exec, -1")
        a.label(Lz)
    if XW == 1: k_front.xw_touch(a, "s3")
    if XW == 2: k_front.xw_touch2(a, "s3", XWD)
    if W1HEAD:
        Lh = a.newlabel("w1h")
        a("s_cmp_lt_u32 s3, 192")
        a(f"s_cbranch_scc1 {Lh}")
        a("s_cmp_ge_u32 s53, 30")
        a(f"s_cbranch_scc1 {Lh}")
        a.srd(80, P_W1, S*F*2)
        a("s_mul_i32 s57, s53, 205")
        a("s_lshr_b32 s57, s57, 10")
        a("s_mul_i32 s58, s57, 5")
        a("s_sub_u32 s58, s53, s58")
        a("s_and_b32 s56, s3, 7")
        a("s_mul_i32 s56, s56, 9")
        a("s_lshr_b32 s56, s56, 1")
        a("s_add_u32 s56, s56, s58")
        a("s_lshl_b32 s56, s56, 8")
        a(f"s_mul_i32 s57, s57, {32*F*2}")
        a("s_add_u32 s56, s56, s57")
        a("v_lshrrev_b32 v5, 1, v0")
        a(f"v_mul_u32_u24 v5, {F*2}, v5")
        a("v_and_b32 v6, 1, v0")
        a("v_lshl_add_u32 v5, v6, 7, v5")
        a("buffer_load_dword v62, v5, s[80:83], s56 offen")
        a.label(Lh)
    if COOP:
        Le = a.newlabel("head")
        a(f"s_cmp_ge_u32 s3, {k_mlp1.MLP1_GRID}")
        a(f"s_cbranch_scc1 {Le}")
        a.srd(80, P_W1, S*F*2)
        a("s_and_b32 s66, s3, 7")
        a("s_mul_i32 s66, s66, 27")
        a("s_lshr_b32 s67, s3, 3")
        a("s_add_u32 s67, s67, s66")
        a("s_mul_i32 s70, s67, 171")
        a("s_lshr_b32 s70, s70, 10")
        a("s_mul_i32 s68, s70, 6")
        a("s_sub_u32 s69, s67, s68")
        a("s_lshl_b32 s66, s70, 8")
        a("s_lshl_b32 s68, s52, 4")
        a("s_add_u32 s67, s69, s68")
        a(f"s_mul_i32 s67, s67, {32*F*2}")
        a("s_add_u32 s66, s66, s67")
        a("v_lshrrev_b32 v5, 1, v0")
        a(f"v_mul_u32_u24 v5, {F*2}, v5")
        a("v_and_b32 v6, 1, v0")
        a("v_lshl_add_u32 v5, v6, 7, v5")
        a("buffer_load_dword v62, v5, s[80:83], s66 offen")
        a("s_cmp_ge_u32 s69, 3")
        a(f"s_mov_b32 s67, {3*32*F*2}")
        a(f"s_cselect_b32 s67, {(-3*32*F*2) & 0xffffffff}, s67")
        a("s_add_u32 s67, s67, s66")
        a("s_lshr_b32 s68, 0x80402010, s70")
        a("s_cmp_lt_u32 s70, 32")
        a("s_cselect_b32 s68, s68, 0")
        a("s_and_b32 s68, s68, 1")
        a(f"s_cbranch_scc0 {Le}")
        a("buffer_load_dword v63, v5, s[80:83], s67 offen")
        a.label(Le)
    if TLBW:
        a("s_lshr_b32 s53, s3, 3")
        a("s_lshl_b32 s53, s53, 2")
        a("s_add_u32 s53, s53, s52")
        a("s_lshl_b32 s53, s53, 6")
        a("v_add_u32 v5, s53, v0")
        a(f"v_lshlrev_b32 v5, {TLBW}, v5")
        a.srd(80, P_W1, S*F*2)
        a("buffer_load_dword v62, v5, s[80:83], 0 offen nt")
        a.srd(80, P_W2, S*F*2)
        a("buffer_load_dword v63, v5, s[80:83], 0 offen nt")
        a.srd(80, P_WS, CNT_OFF)
        a("buffer_load_dword v59, v5, s[80:83], 0 offen nt")
    if k_mlp1y.SHED:
        Lp = a.newlabel("pre")
        a("s_cmp_lt_u32 s3, 220")
        a(f"s_cbranch_scc1 {Lp}")
        a("s_sub_u32 s78, 255, s3")
        k_help.preload(a, "s78")
        a.label(Lp)
    a(f"s_setprio {BPRIO}")
    if INIT_LATE:
        a(f"s_cmp_lt_u32 s3, {k_mlp1.MLP1_GRID}")
        a("s_cbranch_scc1 L_mlp1")
    a("s_waitcnt vmcnt(0)")
    sync.poll(a, None, 0, vt=5, init=True)
    a.stamp_mid(5)
    a("s_cmp_lt_u32 s3, 192")
    a("s_cbranch_scc1 L_mlp1")
    if PF_AFTER_H:
        a("s_bfe_u32 s72, s3, 0x20001")
        a("s_lshl_b32 s72, s72, 5")
        a("s_and_b32 s73, s3, 31")
        a("s_add_u32 s72, s72, s73")
        a("s_lshl_b32 s72, s72, 8")
        a(f"s_add_u32 s72, s72, {mb(MB_H)}")
        sync.poll(a, 72, 16, vt=5, sleep=4)
    a.srd(40, P_W1, S*F*2)
    a("s_sub_u32 s67, 255, s3")
    a(f"s_mul_i32 s66, s52, {512*F*2}")
    a("s_lshl_b32 s68, s67, 13")
    a("s_add_u32 s66, s66, s68")
    a("v_lshlrev_b32 v5, 7, v0")
    a("v_add_u32 v5, s66, v5")
    for r in range(PF1):
        a(f"buffer_load_dword v{60+(r&1)}, v5, s[40:43], 0 offen")
        a(f"v_add_u32 v5, {64*8192}, v5")
        if r >= PFD: a(f"s_waitcnt vmcnt({PFD})")
    a(f"s_cmp_ge_u32 s3, {k_mlp1.MLP1_GRID}")
    a("s_cbranch_scc1 L_aux")
    a.label("L_mlp1")
    if B_EXIT: a("s_branch L_done")
    def dep_h(a):
        a("s_lshl_b32 s72, s52, 5")
        a("s_and_b32 s73, s3, 31")
        a("s_add_u32 s72, s72, s73")
        a("s_lshl_b32 s72, s72, 8")
        a(f"s_add_u32 s72, s72, {mb(MB_H)}")
        sync.spin(a, 48, "s72", 16, 5, sleep=SLP_H)
    def dep_h3(a):
        a("s_and_b32 s72, s3, 31")
        a("s_lshl_b32 s72, s72, 8")
        a(f"s_add_u32 s72, s72, {mb(MB_H + 96)}")
        sync.spin(a, 48, "s72", 16, 5, sleep=SLP_H)
    def dep_h_touch(a, part=0):
        if INIT_LATE and part != 2:
            a("s_waitcnt vmcnt(0)")
            sync.poll(a, None, 0, vt=12, init=True)
        if part == 1: return
        dep_h(a)
        a.stamp_mid(5)
        if COOP_H:
            a("s_and_b32 s72, s3, 7")
            a("s_mul_i32 s72, s72, 9")
            a("s_lshr_b32 s72, s72, 1")
            a("s_sub_u32 s72, s66, s72")
            a("s_lshl_b32 s72, s72, 6")
            a("v_add_u32 v60, s72, v0")
            a("v_mul_u32_u24 v61, 2731, v60")
            a("v_lshrrev_b32 v61, 16, v61")
            a("v_mul_u32_u24 v61, 120, v61")
            a("v_add_lshl_u32 v60, v60, v61, 7")
            a(f"buffer_load_dword v61, v60, s[48:51], s{k_mlp1.S_F} offen sc1")
    def hold(a, word=0):
        L = a.newlabel("hold"); Ld = a.newlabel("holdd")
        a("s_cmp_ge_u32 s3, 192")
        a(f"s_cbranch_scc1 {Ld}")
        a("s_lshl_b32 s72, s3, 8")
        a(f"s_add_u32 s72, s72, {mb(MB_P) + 4*word}")
        a("s_and_b32 s73, s3, 63")
        a("s_lshl_b32 s73, s73, 8")
        a(f"s_add_u32 s73, s73, {mb(MB_QKV)}")
        a("s_mov_b32 s74, 0")
        a.label(L)
        a("s_buffer_load_dword s75, s[48:51], s72 glc")
        a("s_add_u32 s74, s74, 1")
        a("s_waitcnt lgkmcnt(0)")
        a("s_cmp_lg_u32 s75, 0")
        a(f"s_cbranch_scc1 {Ld}")
        a("s_sleep 4")
        a("s_and_b32 s75, s74, 15")
        a(f"s_cbranch_scc1 {L}")
        a("s_buffer_load_dword s75, s[48:51], s73 glc")
        a("s_waitcnt lgkmcnt(0)")
        a("s_cmp_ge_u32 s75, 12")
        a(f"s_cbranch_scc1 {Ld}")
        a(f"s_cmp_lt_u32 s74, {sync.SPIN_MAX}")
        a(f"s_cbranch_scc1 {L}")
        a.label(Ld)
    def w2_tail(a):
        a.srd(80, P_W2, S*F*2)
        a("s_lshr_b32 s72, s3, 3")
        a("s_mul_i32 s73, s72, 86")
        a("s_lshr_b32 s73, s73, 8")
        a("s_mul_i32 s76, s73, 3")
        a("s_sub_u32 s72, s72, s76")
        a("s_and_b32 s76, s3, 7")
        a("s_mul_i32 s76, s76, 10")
        a("s_add_u32 s73, s73, s76")
        a("s_lshr_b32 s76, s73, 4")
        a("s_and_b32 s73, s73, 15")
        a(f"s_mul_i32 s76, s76, {928*4096}")
        a("s_lshl_b32 s73, s73, 8")
        a("s_add_u32 s76, s76, s73")
        a("s_lshl_b32 s72, s72, 2")
        a("s_add_u32 s72, s72, s52")
        a(f"s_add_u32 s72, s72, {29 - 12*W2_TAIL}")
        a("s_lshl_b32 s72, s72, 17")
        a("s_add_u32 s76, s76, s72")
        a("v_lshrrev_b32 v60, 1, v0")
        a("v_lshlrev_b32 v60, 12, v60")
        a("v_and_b32 v61, 1, v0")
        a("v_lshl_add_u32 v60, v61, 7, v60")
        a("v_add_u32 v60, s76, v60")
        for e in range(W2_TAIL):
            a(f"buffer_load_dword v{61+e}, v60, s[80:83], 0 offen")
            a(f"v_add_u32 v60, {12*32*4096}, v60")
    def checks(a, wave):
        Lg = a.newlabel("g")
        a(f"s_cmp_lg_u32 s52, {wave}")
        a(f"s_cbranch_scc1 {Lg}")
        sync.spin_init(a, 14, True)
        a("s_bfe_u32 s73, s2, 0x50003")
        a("s_lshl_b32 s73, s73, 8")
        a(f"s_add_u32 s73, s73, {mb(MB_G)}")
        sync.spin(a, 48, "s73", 64, 0)
        a.label(Lg)
    def pub_u(a, part):
        if part == 0:
            a("s_mul_i32 s18, s66, 565")
            a("s_lshr_b32 s18, s18, 12")
            a("s_lshr_b32 s19, s67, 1")
            a("s_mul_i32 s19, s19, 5")
            a("s_add_u32 s18, s18, s19")
            a("s_lshl_b32 s18, s18, 12")
            a(f"s_add_u32 s18, s18, {mb(MB_U)}")
            a("s_lshr_b32 s19, 0x204080, s66")
            a("s_cmp_lt_u32 s66, 32")
            a("s_cselect_b32 s19, s19, 0")
            a("s_and_b32 s19, s19, 1")
            a("s_cselect_b32 s19, -1, 0xffff")
        else:
            checks(a, 1)
            sync.publish(a, 18, "s19", vt=14)
    def ebox(a, wait=False):
        a("s_lshl_b32 s65, s59, 8")
        a("s_lshl_b32 s70, s52, 2")
        a("s_add_u32 s65, s65, s70")
        a(f"s_add_u32 s65, s65, {mb(MB_E)}")
        sync.spin_init(a, 14, True)
        if wait: sync.spin(a, 48, "s65", 1, 0, sleep=2)
    def early2(a):
        a("s_barrier")
        k_mlp2f.mlp2_body(a, "s3", 3, None, None, None, part=1)
    (k_mlp1y if M1Y else k_mlp1).mlp1_body(a, "s3", dep_h_touch, pub_u, sm=0, epi=early2, hold=hold if WAIT_QKV else None, hold2=(lambda a: hold(a, 1)) if HINT2 else None, ebox=ebox)
    a.stamp_mid(2)
    a("s_branch L_mlp2")
    a.label("L_aux")
    if B_EXIT: a("s_branch L_done")
    if k_mlp1y.SHED:
        a("s_cmp_ge_u32 s67, 36")
        a("s_cbranch_scc1 L_nohelp")
        a("s_mov_b32 s78, s67")
        k_help.body_all(a, "s78", dep_h3, ebox)
        a.label("L_nohelp")
        a.stamp_mid(6)
        a("s_setprio 0")
        a("s_sub_u32 s67, 255, s3")
    if PFMODE == "col":
        a("s_and_b32 s66, s3, 7")
        a("s_mul_i32 s66, s66, 9")
        a("s_lshr_b32 s66, s66, 1")
        a("s_lshr_b32 s67, s67, 3")
        a("s_add_u32 s66, s66, s67")
        a("s_lshl_b32 s66, s66, 8")
        a(f"s_mul_i32 s69, s52, {(32 if M1Y else 512)*F*2}")
        a("s_add_u32 s66, s66, s69")
        a("v_lshrrev_b32 v5, 1, v0")
        a(f"v_mul_u32_u24 v5, {F*2}, v5")
        a("v_and_b32 v6, 1, v0")
        a("v_lshl_add_u32 v5, v6, 7, v5")
        if PFH:
            dep_h(a)
            a(f"s_mul_i32 s69, s52, {32*18*1024}")
            a("s_lshl_b32 s70, s67, 13")
            a("s_add_u32 s69, s69, s70")
            a(f"s_add_u32 s69, s69, {HT_OFF}")
            a("v_lshlrev_b32 v7, 7, v0")
        g0 = 6 if COOP else 0
        a(f"s_add_u32 s66, s66, {(g0*32 + PFS1*128)*F*2}")
        if PFH and COOP_H: a(f"s_add_u32 s69, s69, {12*18*1024}")
        for n in range(min(PFN1, 16 - g0)):
            a(f"buffer_load_dword v{60+(n&1)}, v5, s[40:43], s66 offen")
            a(f"s_add_u32 s66, s66, {(128 if M1Y else 32)*F*2}")
            if PFH and n < (9 if COOP_H else 14):
                a(f"buffer_load_dword v{62+(n&1)}, v7, s[48:51], s69 offen sc1")
                a(f"s_add_u32 s69, s69, {5*8192}")
            a(f"s_waitcnt vmcnt({PFD})")
        a.stamp_mid(1)
        a.srd(40, P_W2, S*F*2)
        a("s_lshl_b32 s68, s67, 2")
        a("s_add_u32 s68, s68, s52")
        a("s_and_b32 s66, s3, 7")
        a("s_mul_i32 s66, s66, 10")
        a("s_lshr_b32 s69, s68, 1")
        a("s_add_u32 s66, s66, s69")
        a("s_lshr_b32 s67, s66, 4")
        a("s_and_b32 s66, s66, 15")
        a(f"s_mul_i32 s67, s67, {928*4096}")
        a("s_lshl_b32 s66, s66, 8")
        a("s_add_u32 s67, s67, s66")
        a("s_and_b32 s66, s52, 1")
        a("s_lshl_b32 s66, s66, 17")
        a("s_add_u32 s67, s67, s66")
        a("v_lshrrev_b32 v5, 1, v0")
        a("v_lshlrev_b32 v5, 12, v5")
        a("v_and_b32 v6, 1, v0")
        a("v_lshl_add_u32 v5, v6, 7, v5")
        a("v_add_u32 v5, s67, v5")
        for n in range(PF2):
            a(f"buffer_load_dword v{60+(n&1)}, v5, s[40:43], 0 offen")
            a(f"v_add_u32 v5, {64*4096}, v5")
            a(f"s_waitcnt vmcnt({PFD})")
    else:
        for n in range(-(-(576 - 64*PF1)//40) if PFW1 else 0):
            a(f"buffer_load_dword v{60+(n&1)}, v5, s[40:43], 0 offen")
            a(f"v_add_u32 v5, {40*8192}, v5")
            a(f"s_waitcnt vmcnt({PFD})")
        a.stamp_mid(1)
        a.srd(40, P_W2, S*F*2)
        a("s_lshl_b32 s68, s67, 2")
        a("s_add_u32 s68, s68, s52")
        a("s_lshr_b32 s66, s68, 5")
        a("s_and_b32 s68, s68, 31")
        a(f"s_mul_i32 s66, s66, {928*4096}")
        a("s_lshl_b32 s68, s68, 13")
        a("s_add_u32 s66, s66, s68")
        a("v_lshlrev_b32 v5, 7, v0")
        a("v_add_u32 v5, s66, v5")
        for n in range(PF2):
            a(f"buffer_load_dword v{60+(n&1)}, v5, s[40:43], 0 offen")
            a(f"v_add_u32 v5, {32*8192}, v5")
            a(f"s_waitcnt vmcnt({PFD})")
    a("s_waitcnt vmcnt(0)")
    a.stamp_mid(2)
    a("s_and_b32 s70, s3, 1")
    a(f"s_mul_i32 s70, s70, {(-16*k_mlp2f.SKEW) & 0xffffffff}")
    a(f"s_add_u32 s70, s70, {240 + 8*k_mlp2f.SKEW}")
    a(f"s_cmp_ge_u32 s3, s70")
    a("s_cbranch_scc1 L_aux0" if PF3 else "s_cbranch_scc1 L_done")
    k_mlp2f.mlp2_body(a, "s3", 3, None, None, None, part=1)
    checks(a, 0)
    a("s_barrier")
    a.label("L_mlp2")
    if k_mlp1y.PST: a("s_branch L_done")
    def dep_u(a):
        a("s_mul_i32 s73, s67, 5")
        a("s_add_u32 s73, s73, s69")
        a("s_lshl_b32 s73, s73, 4")
        a("s_add_u32 s73, s73, s66")
        a("s_lshl_b32 s73, s73, 8")
        a(f"s_add_u32 s73, s73, {mb(MB_U)}")
        a("s_cmp_eq_u32 s69, 4")
        a("s_cselect_b32 s76, 14, 16")
        (sync.spin(a, 48, "s73", "s76", 8, sleep=1) if UPOLL_ALL else sync.poll(a, 73, "s76", vt=8, sleep=2))
        if COOP_U:
            a("s_lshr_b32 s70, s3, 3")
            a("s_mul_i32 s70, s70, 86")
            a("s_lshr_b32 s70, s70, 8")
            a("s_mul_i32 s73, s52, 10")
            a("s_add_u32 s70, s70, s73")
            a("s_lshl_b32 s70, s70, 6")
            a("s_add_u32 s70, s70, 288")
            a("v_add_u32 v60, s70, v0")
            a("v_min_u32 v60, 2783, v60")
            a("v_mul_u32_u24 v61, 5462, v60")
            a("v_lshrrev_b32 v61, 18, v61")
            a("v_mul_u32_u24 v61, 96, v61")
            a("v_add_lshl_u32 v60, v60, v61, 7")
            a(f"s_mul_i32 s70, s69, {58*18*1024}")
            a("s_mul_i32 s73, s67, 6144")
            a("s_add_u32 s70, s70, s73")
            a(f"s_add_u32 s70, s70, {U_OFF}")
            a("s_mov_b32 s77, s70")
    def ybox(a):
        a("s_lshl_b32 s76, s67, 1")
        a("s_add_u32 s76, s76, s71")
        a("s_lshl_b32 s76, s76, 5")
        a("s_lshl_b32 s70, s66, 1")
        a("s_add_u32 s76, s76, s70")
        a("s_add_u32 s76, s76, s72")
        a("s_lshl_b32 s76, s76, 8")
        a(f"s_add_u32 s76, s76, {mb(MB_Y)}")
    def dep_o(a, block):
        if block == "addr":
            a("s_lshr_b32 s59, s66, 1")
            a("s_mul_i32 s59, s59, 5")
            a("s_add_u32 s59, s59, s69")
            a("s_mul_i32 s59, s59, 6")
            a("s_lshl_b32 s70, s67, 1")
            a("s_add_u32 s59, s59, s70")
            a("s_and_b32 s70, s66, 1")
            a("s_add_u32 s59, s59, s70")
            a("s_lshl_b32 s59, s59, 8")
            a(f"s_add_u32 s59, s59, {mb(MB_O)}")
            a("s_lshl_b32 s64, s53, 1")
        else:
            sync.spin(a, 48, "s59", "s64", 8, sleep=1)
            a.stamp_mid(6)
    if FUSED: k_mlp2f.mlp2_body(a, "s3", 3, dep_u, dep_o, ybox, part=2, post=(lambda a: a("buffer_load_dword v61, v60, s[48:51], s77 offen sc1")) if COOP_U else None)
    else: k_mlp2.mlp2_body(a, "s3", 3, dep_u, ybox)
    if PF3:
        a("s_branch L_done")
        a.label("L_aux0")
        a("v_lshrrev_b32 v5, 1, v0")
        a("v_lshlrev_b32 v5, 12, v5")
        a("v_and_b32 v6, 1, v0")
        a("v_lshl_add_u32 v5, v6, 7, v5")
        a("s_and_b32 s66, s3, 7")
        a("s_mul_i32 s66, s66, 10")
        for r in range(PF3):
            a(f"s_add_u32 s69, s68, {8*r}")
            a("s_mul_i32 s70, s69, 205")
            a("s_lshr_b32 s70, s70, 11")
            a("s_mul_i32 s71, s70, 10")
            a("s_sub_u32 s69, s69, s71")
            a("s_add_u32 s69, s69, s66")
            a("s_lshr_b32 s71, s69, 4")
            a("s_and_b32 s69, s69, 15")
            a("s_mul_i32 s71, s71, 29")
            a("s_add_u32 s70, s70, s71")
            a(f"s_add_u32 s70, s70, {2*PF2}")
            a("s_lshl_b32 s70, s70, 17")
            a("s_lshl_b32 s69, s69, 8")
            a("s_add_u32 s69, s69, s70")
            a("v_add_u32 v7, s69, v5")
            a(f"buffer_load_dword v{60+(r&1)}, v7, s[40:43], 0 offen")
            a("s_waitcnt vmcnt(1)")
    a.label("L_done")
    if DIAG is not None:
        wg, slot, kind = DIAG
        Ld = a.newlabel("diag"); Lw = a.newlabel("diagw")
        a(f"s_cmp_lg_u32 s2, {wg}")
        a(f"s_cbranch_scc1 {Ld}")
        a("s_waitcnt vmcnt(0)")
        if slot == "end":
            a.stamp_mid(0); slot = 0
        if slot is None:
            a("s_mov_b32 s70, 0")
        elif kind == "t":
            a(f"s_sub_u32 s70, s{4+slot}, s88")
            a("s_mul_i32 s70, s70, 10")
        else:
            a(f"s_lshr_b32 s70, s{93+slot}, 1")
        a("s_add_u32 s70, s70, 20000")
        a.label(Lw)
        a("s_sleep 1")
        a("s_memrealtime s[90:91]")
        a("s_waitcnt lgkmcnt(0)")
        a("s_sub_u32 s71, s90, s88")
        a("s_cmp_lt_u32 s71, s70")
        a(f"s_cbranch_scc1 {Lw}")
        a.label(Ld)
    a.end()
    a.label("L_end")
    a("s_endpgm")
    a.label("L_code_end")

def build(stamp=False):
    a = Asm()
    a.stamp = stamp
    fin = NAME + "_kernel"
    out = HEADER
    out += (f"; @launch kernel={fin} grid=(512,1,1) block=(256,1,1) lds=81920\n" if LIST else "; @launch grid=(512,1,1) block=(256,1,1) lds=81920\n")
    out += DOC
    out += '.amdgcn_target "amdgcn-amd-amdhsa--gfx950"\n.text\n'
    gen_main(a, fin)
    if PRE:
        out = out.replace("; @launch kernel=", "; @launch kernel=pre_kernel grid=(256,1,1) block=(256,1,1) lds=0\n; @launch kernel=", 1)
        st = a.stamp; a.stamp = False
        a.kernel_begin("pre_kernel")
        if PRE > 1:
            a("s_cmp_ge_u32 s2, 256")
            a("s_cbranch_scc1 L_pre_end")
            a.load_kernargs()
            sync.wave_setup(a)
            k_front.xw_touch(a, "s2")
            a("s_getpc_b64 s[80:81]")
            a.label("L_pc2")
            a(f"s_sub_u32 s80, s80, L_pc2 - {fin}")
            a("s_subb_u32 s81, s81, 0")
            a(f"s_mov_b32 s82, L_code_end - {fin}")
            a("s_mov_b32 s83, 0x00020000")
            a("s_lshr_b32 s72, s2, 3")
            a("s_lshl_b32 s72, s72, 2")
            a("s_add_u32 s72, s72, s52")
            a("s_lshl_b32 s72, s72, 13")
            a("v_lshlrev_b32 v5, 7, v0")
            a("v_add_u32 v5, s72, v5")
            a("buffer_load_dword v58, v5, s[80:83], 0 offen")
            a("s_waitcnt vmcnt(0)")
            a.label("L_pre_end")
        a("s_endpgm")
        a.stamp = st
    out += a.text()
    out += '.section .rodata,"a"\n'
    if PRE: out += ".p2align 6\n" + descriptor("pre_kernel", 64, None)
    out += ".p2align 6\n" + descriptor(fin, 256, None)
    return out

if __name__ == "__main__":
    open("main.s", "w").write(build())
    open("stamp.s", "w").write(build(True))
    open("main_l.s", "w").write(build("lite"))
    LIST = False
    open("final.s", "w").write(build())
    LIST = True
    VARS = eval(open("vars.txt").read())
    import copy
    for nm, kv in VARS.items():
        saved = {}
        for k, v in kv.items():
            mod, name = (globals()[k.split(".")[0]].__dict__, k.split(".")[1]) if "." in k else (globals(), k)
            saved[k] = (mod, name, mod[name]); mod[name] = v
        open(f"gen/{nm}.s", "w").write(build(False))
        open(f"gen/{nm}_s.s", "w").write(build(True))
        open(f"gen/{nm}_l.s", "w").write(build("lite"))
        for mod, name, v in saved.values(): mod[name] = v
    print("wrote")
```

```python
from common import *
import math
QSCALE = (DH ** -0.5) * math.log2(math.e)
SC = " sc1"
CB = 17408
ACC = 96
SET = [32, 52]

XNT = ''
PRE0 = 2
QEPRIO = None
QST = False
def qkv_body(a, wgreg, pub, hint=None):
    a.srd(40, P_X, S*D*2)
    a.srd(44, P_WQKV, D*3*D*2)
    a(f"s_and_b32 s53, {wgreg}, 7")
    a(f"s_lshr_b32 s54, {wgreg}, 3")
    a("s_lshr_b32 s55, s53, 1")
    a("s_lshl_b32 s55, s55, 2")
    a("s_and_b32 s56, s54, 3")
    a("s_add_u32 s55, s55, s56")
    a("s_and_b32 s56, s53, 1")
    a("s_mul_i32 s56, s56, 6")
    a("s_lshr_b32 s57, s54, 2")
    a("s_add_u32 s56, s56, s57")
    a("s_lshl_b32 s59, s55, 2")
    a("s_add_u32 s60, s59, s52")
    a("v_lshrrev_b32 v2, 2, v0")
    a("s_lshl_b32 s60, s60, 5")
    a("v_add_u32 v2, s60, v2")
    a("v_mul_u32_u24 v2, 1152, v2")
    a("v_lshrrev_b32 v3, 4, v0")
    a("v_xor_b32 v3, v3, v0")
    a("v_and_b32 v3, 3, v3")
    a("v_lshl_add_u32 v2, v3, 4, v2")
    a(f"v_add_u32 v3, {16*1152}, v2")
    a("s_mul_i32 s65, s56, 288")
    a(f"s_mul_i32 s60, s52, {8*3456}")
    a("s_add_u32 s65, s65, s60")
    for i in range(3):
        a(f"v_add_u32 v7, {64*i}, v0")
        a(f"v_mul_u32_u24 v8, 3641, v7")
        a(f"v_lshrrev_b32 v8, 16, v8")
        a(f"v_mul_u32_u24 v9, 18, v8")
        a(f"v_sub_u32 v7, v7, v9")
        a(f"v_and_b32 v10, 1, v8")
        a(f"v_lshrrev_b32 v9, 1, v8")
        a(f"v_lshl_or_b32 v9, v10, 2, v9")
        a(f"v_mul_u32_u24 v9, 3456, v9")
        a(f"v_lshl_add_u32 v9, v7, 4, v9")
        a(f"v_add_u32 v{4+i}, s65, v9")
    a("s_lshl_b32 s61, s52, 11")
    a("s_mul_i32 s62, s52, 2304")
    a("s_add_u32 s62, s62, 8192")
    a("s_mov_b32 s63, 0")
    a("s_mov_b32 s64, 0")
    a(f"s_mov_b32 s71, {32*3456}")
    a("s_mov_b64 s[72:73], 0xffff")
    def setm0(buf, i):
        if i < 2: a(f"s_add_u32 m0, s61, {buf*CB + i*1024}")
        else: a(f"s_add_u32 m0, s62, {buf*CB + (i-2)*1024}")
    def load(i):
        if i < 2:
            a(f"buffer_load_dwordx4 v{2+i}, s[40:43], s63 offen lds")
            if i == 1: a("s_add_u32 s63, s63, 64")
        elif i < 4:
            a(f"buffer_load_dwordx4 v{2+i}, s[44:47], s64 offen lds")
        else:
            a("s_mov_b64 exec, s[72:73]")
            a(f"buffer_load_dwordx4 v6, s[44:47], s64 offen lds")
            a("s_mov_b64 exec, -1")
            a("s_add_u32 s64, s64, s71")
    for c in range(PRE0):
        for i in range(5):
            setm0(c, i); a("s_nop 0"); load(i)
    a("s_and_b32 s57, s52, 1")
    a("s_lshr_b32 s58, s52, 1")
    a("s_lshl_b32 s60, s57, 1")
    a("s_add_u32 s60, s60, s58")
    a("s_add_u32 s59, s59, s60")
    a("v_and_b32 v10, 31, v0")
    a("v_lshrrev_b32 v11, 5, v0")
    a("v_bfe_u32 v12, v10, 2, 2")
    a("v_xor_b32 v12, v12, v11")
    a("v_lshlrev_b32 v13, 6, v10")
    a("v_lshl_add_u32 v16, v12, 4, v13")
    a("s_lshl_b32 s60, s60, 11")
    a("v_add_u32 v16, s60, v16")
    a("v_xor_b32 v17, 32, v16")
    a("v_xor_b32 v18, 0x800, v16")
    a("v_xor_b32 v19, 0x800, v17")
    a("v_bfe_u32 v12, v0, 2, 2")
    a("v_lshlrev_b32 v12, 1, v12")
    a("v_lshl_add_u32 v12, v11, 3, v12")
    a("v_mul_u32_u24 v12, 288, v12")
    a("v_add_u32 v12, 0x2000, v12")
    a("v_bfe_u32 v13, v0, 4, 1")
    a("v_and_b32 v14, 3, v0")
    a("v_lshl_add_u32 v15, v14, 3, v12")
    a("v_lshl_add_u32 v20, v13, 5, v15")
    a("s_and_b32 s69, s56, 3")
    a("s_lshl_b32 s69, s69, 9")
    a("s_cmp_ge_u32 s56, 8")
    a("s_cbranch_scc1 L_qkv_v")
    a("s_mul_i32 s60, s58, 144")
    a("s_add_u32 s60, s60, 40")
    a("v_add_u32 v21, 112, v20")
    a("v_add_u32 v20, s60, v20")
    a("v_lshl_add_u32 v23, v13, 8, v15")
    a("s_cmp_lg_u32 s58, 0")
    a("s_cselect_b64 vcc, -1, 0")
    a("v_cndmask_b32 v21, v21, v23, vcc")
    a("v_mul_u32_u24 v22, 72, v14")
    a("v_add3_u32 v22, v22, v12, 32")
    a("s_cmp_ge_u32 s56, 4")
    a(f"s_mov_b32 s66, {QR_OFF}")
    a(f"s_mov_b32 s67, {QR_RS}")
    a(f"s_mov_b32 s68, {f32bits(QSCALE)}")
    a(f"s_cselect_b32 s66, {KV_OFF}, s66")
    a(f"s_cselect_b32 s67, {KV_RS}, s67")
    a(f"s_cselect_b32 s68, 1.0, s68")
    a("s_xor_b32 s65, s59, 1")
    a("s_add_u32 s65, s65, s69")
    a("s_add_u32 s69, s59, s69")
    a("s_mul_i32 s69, s69, s67")
    a("s_add_u32 s69, s69, s66")
    a("s_mul_i32 s65, s65, s67")
    a("s_add_u32 s65, s65, s66")
    a("s_lshl_b32 s70, s67, 6")
    a("s_lshl_b32 s60, s58, 2")
    a("s_add_u32 s78, s60, 1")
    a("s_add_u32 s79, s60, 2")
    a("s_cmp_lg_u32 s58, 0")
    a("s_cselect_b32 s53, 0, 3")
    a("s_cselect_b32 s54, 7, 4")
    for r in (78, 79, 53, 54): a(f"s_mul_i32 s{r}, s{r}, s70")
    loop(a, False, setm0, load, hint)
    a("s_nop 7")
    for j, (hx, hy, rec) in enumerate(((78, 79, 69), (78, 79, 65), (53, 54, 69), (53, 54, 65))):
        qk_store_main(a, j, hx, hy, rec)
    qk_store_left(a, 4)
    a("s_branch L_qkv_done")
    a.label("L_qkv_v")
    a("s_lshl_b32 s60, s58, 7")
    a("v_add_u32 v20, s60, v20")
    a("v_add_u32 v21, 64, v20")
    a("v_add_u32 v22, 256, v15")
    a("s_and_b32 s66, s59, 3")
    a("s_mul_i32 s67, s66, 1152")
    a("s_xor_b32 s66, s66, 1")
    a("s_mul_i32 s66, s66, 1152")
    a("s_lshl_b32 s60, s58, 6")
    a("v_add_u32 v12, s60, v10")
    v_addr(a, "v12"); a("v_add_u32 v176, s67, v7"); a("v_add_u32 v177, s66, v7")
    a("v_add_u32 v12, 32, v12")
    v_addr(a, "v12"); a("v_add_u32 v178, s67, v7"); a("v_add_u32 v179, s66, v7")
    a("v_add_u32 v12, 128, v10")
    v_addr(a, "v12"); a("v_add_u32 v180, s67, v7")
    a("s_lshl_b32 s60, s52, 7")
    a("s_add_u32 s69, s69, s60")
    a("s_and_b32 s60, s59, 60")
    a("s_add_u32 s69, s69, s60")
    a(f"s_mul_i32 s69, s69, {KV_RS}")
    a(f"s_add_u32 s69, s69, {KV_OFF + 1152}")
    for n in range(9):
        a(f"v_add_u32 v7, {64*n}, v0")
        a("v_mul_u32_u24 v8, 911, v7")
        a("v_lshrrev_b32 v8, 16, v8")
        a("v_lshrrev_b32 v9, 2, v8")
        a(f"v_mul_u32_u24 v9, {60*144}, v9")
        a(f"v_mul_u32_u24 v8, 72, v8")
        a("v_add3_u32 v7, v7, v8, v9")
        a(f"v_lshlrev_b32 v{184+n}, 4, v7")
    loop(a, True, setm0, load, hint)
    a("s_mul_i32 s60, s52, 9216")
    a("v_add_u32 v3, s60, v2")
    a("s_waitcnt vmcnt(0)")
    a("s_barrier")
    a("s_nop 3")
    for k in range(5): v_put(a, k)
    a("s_waitcnt lgkmcnt(0)")
    a("s_barrier")
    for n in range(9):
        a(f"ds_read_b128 {vr(32+4*n,4)}, v3 offset:{n*1024}")
    for n in range(9):
        a(f"s_waitcnt lgkmcnt({8-n})")
        a(f"buffer_store_dwordx4 {vr(32+4*n,4)}, v{184+n}, s[48:51], s69 offen{SC}")
    a.label("L_qkv_done")
    a.stamp_mid(7)
    pub(a)

def loop(a, isv, setm0, load, hint):
    def reads(sn, buf, t):
        b = SET[sn]
        X = [((sn, "x", n), f"ds_read_b128 {vr(b+4*n,4)}, v{16+2*n+t} offset:{buf*CB}") for n in range(2)]
        W = [((sn, "w", j), f"ds_read_b64_tr_b16 {vr(b+8+4*j+2*sec,2)}, v{20+j} offset:{buf*CB + t*4608 + sec*288}") for j in range(3) for sec in range(2)]
        return [X[0], W[0], W[1], X[1], W[2], W[3], W[4], W[5]]
    MF = [(0, 0), (0, 1), (1, 0), (1, 1), (2, 0)]
    def mfma(ls, sn, k, first):
        b = SET[sn]
        j, n = MF[k]
        ls.need([(sn, "x", n), (sn, "w", j)])
        w = vr(b+8+4*j, 4); x = vr(b+4*n, 4); c = vr(ACC+16*k, 16)
        A, B = (x, w) if isv else (w, x)
        a(f"v_mfma_f32_32x32x16_bf16 {c}, {A}, {B}, {'0' if first else c}")
    def body(c, first=False, kill=False, last=False):
        buf = c % 4; pb = (c - 1) % 4
        ls = LdsSched(a, [r[0] for r in reads(0, buf, 0)])
        ls.need([(0, "w", 1)])
        r = reads(1, buf, 1)
        mfma(ls, 0, 0, first)
        if not last: setm0(pb, 2)
        for x in r[0:3]: ls.read(*x)
        if not last: load(2)
        mfma(ls, 0, 1, first)
        for x in r[3:7]: ls.read(*x)
        mfma(ls, 0, 2, first)
        if not last: setm0(pb, 3)
        ls.read(*r[7])
        if not last: load(3)
        mfma(ls, 0, 3, first)
        if not last: setm0(pb, 4); load(4)
        mfma(ls, 0, 4, first)
        if kill: kill()
        if last:
            ls.drain()
            for k in range(5): mfma(ls, 1, k, False)
            return
        ls.drain()
        mfma(ls, 1, 0, False)
        a("s_waitcnt vmcnt(10)")
        a("s_barrier")
        r = reads(0, (c+1) % 4, 0)
        for x in r[0:3]: ls.read(*x)
        mfma(ls, 1, 1, False)
        for x in r[3:7]: ls.read(*x)
        mfma(ls, 1, 2, False)
        setm0(buf, 0)
        ls.read(*r[7])
        load(0)
        mfma(ls, 1, 3, False)
        setm0(buf, 1)
        mfma(ls, 1, 4, False)
        load(1)
    for c in range(PRE0, 4):
        for i in range(5 if c < 3 else 2):
            setm0(c, i); a("s_nop 0"); load(i)
    a.stamp_mid(0)
    a("s_waitcnt vmcnt(12)")
    a("s_barrier")
    a.stamp_mid(1)
    for r in reads(0, 0, 0): a(r[1])
    body(0, first=True)
    a("s_mov_b32 s60, 4")
    L = a.newlabel("qkv")
    def kill():
        a("s_cmp_gt_u32 s60, 1")
        a("s_cselect_b32 s42, s42, 0")
        a("s_cselect_b32 s46, s46, 0")
    a.raw(".p2align 6")
    a.label(L)
    for c in range(1, 5):
        body(c, kill=kill if c == 2 else None)
    if hint: hint(a)
    if QST and a.stamp is True:
        for cnt, slot in ((4, 3), (3, 4), (2, 5)):
            Ls = a.newlabel("st")
            a(f"s_cmp_lg_u32 s60, {cnt}")
            a(f"s_cbranch_scc1 {Ls}")
            a.stamp_mid(slot)
            a.label(Ls)
    a("s_sub_u32 s60, s60, 1")
    a("s_cmp_lg_u32 s60, 0")
    a(f"s_cbranch_scc1 {L}")
    body(17, last=True)
    a("v_lshlrev_b32 v2, 4, v0")
    if QEPRIO is not None: a(f"s_setprio {QEPRIO}")
    a.stamp_mid(6)

def qk_store_main(a, j, hx, hy, rec):
    b = ACC + 16*j
    for i in range(16):
        a(f"v_mul_f32 v{b+i}, s68, v{b+i}")
    for i in range(8):
        a(f"v_cvt_pk_bf16_f32 v{b+i}, v{b+2*i}, v{b+2*i+1}")
    for half, hd in ((0, hx), (1, hy)):
        a(f"s_add_u32 s60, s{hd}, s{rec}")
        a(f"buffer_store_dwordx4 {vr(b+4*half,4)}, v2, s[48:51], s60 offen{SC}")

def qk_store_left(a, j):
    b = ACC + 16*j
    for i in range(8):
        a(f"v_mul_f32 v{b+i}, s68, v{b+i}")
    for i in range(4):
        a(f"v_cvt_pk_bf16_f32 v{b+i}, v{b+2*i}, v{b+2*i+1}")
    a("s_lshl_b32 s60, s70, 1")
    a("v_mul_lo_u32 v3, v11, s60")
    a("v_lshl_add_u32 v3, v10, 2, v3")
    for jj in range(2):
        for bb in range(2):
            a(f"s_mul_i32 s60, s70, {4*jj+bb}")
            a(f"s_add_u32 s60, s60, s69")
            a(f"buffer_store_dword v{b+2*jj+bb}, v3, s[48:51], s60 offen offset:1024{SC}")

def v_addr(a, col):
    a(f"v_mul_u32_u24 v8, 3641, {col}")
    a(f"v_lshrrev_b32 v8, 16, v8")
    a(f"v_mul_u32_u24 v9, 18, v8")
    a(f"v_sub_u32 v7, {col}, v9")
    a(f"v_mul_u32_u24 v8, {4*1152}, v8")
    a(f"v_lshl_add_u32 v7, v7, 4, v8")
    a(f"v_mul_u32_u24 v8, 288, v11")
    a(f"v_add_u32 v7, v7, v8")

def v_put(a, k):
    b = ACC + 16*k
    for i in range(8):
        a(f"v_cvt_pk_bf16_f32 v{b+i}, v{b+2*i}, v{b+2*i+1}")
    if k == 4:
        a("s_mov_b32 exec_lo, 0xffff")
        a("s_mov_b32 exec_hi, 0xffff")
    a(f"ds_write_b128 v{176+k}, {vr(b,4)}")
    a(f"ds_write_b128 v{176+k}, {vr(b+4,4)} offset:576")
    if k == 4:
        a("s_mov_b64 exec, -1")
for u in range(576):
    assert (u*911) >> 16 == u//72

RS = 1216
X0, F0 = 16, 88
XK, GK = 160, 196

def red8(a, r):
    a("s_nop 1")
    a(f"v_add_f32_dpp v{r}, v{r}, v{r} quad_perm:[1,0,3,2] row_mask:0xf bank_mask:0xf")
    a("s_nop 1")
    a(f"v_add_f32_dpp v{r}, v{r}, v{r} quad_perm:[2,3,0,1] row_mask:0xf bank_mask:0xf")
    a("s_nop 1")
    a(f"v_add_f32_dpp v{r}, v{r}, v{r} row_half_mirror row_mask:0xf bank_mask:0xf")

def rows_setup(a):
    a("v_lshrrev_b32 v2, 3, v0")
    a("v_and_b32 v3, 7, v0")
    a("s_lshl_b32 s53, s52, 3")
    a("v_add_u32 v4, s53, v2")

def rows_tail(a):
    a(f"v_mul_u32_u24 v5, {RS}, v4")
    a("v_lshl_add_u32 v5, v3, 4, v5")
    for i in range(9):
        a(f"ds_write_b128 v5, {vr(X0+4*i,4)} offset:{i*128}")
    a("s_lshr_b32 s55, s52, 1")
    a("s_and_b32 s56, s52, 1")
    a("v_lshrrev_b32 v6, 5, v0")
    a("v_bfe_u32 v7, v0, 2, 2")
    a("v_lshl_add_u32 v6, v6, 3, v7")
    a("s_lshl_b32 s60, s55, 4")
    a("v_add_u32 v6, s60, v6")
    a(f"v_mul_u32_u24 v6, {RS}, v6")
    a("v_bfe_u32 v7, v0, 4, 1")
    a("v_lshl_add_u32 v6, v7, 5, v6")
    a("v_and_b32 v7, 3, v0")
    a("v_lshl_add_u32 v6, v7, 3, v6")
    a("s_mul_i32 s60, s56, 576")
    a("v_add_u32 v6, s60, v6")
    a("s_mul_i32 s60, s52, 9216")
    a("s_add_u32 s57, s57, s60")
    a("v_lshlrev_b32 v7, 4, v0")
    a("s_waitcnt lgkmcnt(0)")
    a("s_barrier")
    for i in range(7):
        for sec in range(2):
            a(f"ds_read_b64_tr_b16 {vr(X0+4*i+2*sec,2)}, v6 offset:{sec*4*RS + i*64}")
    for i in range(9):
        a(f"s_waitcnt lgkmcnt({min(12, 2*(8-i))})")
        if i % 4 == 0 and i:
            a("s_add_u32 s57, s57, 4096")
        a(f"buffer_store_dwordx4 {vr(X0+4*i,4)}, v7, s[48:51], s57 offen offset:{(i%4)*1024}{SC}")
        if i + 7 < 9:
            for sec in range(2):
                a(f"ds_read_b64_tr_b16 {vr(X0+4*(i+7)+2*sec,2)}, v6 offset:{sec*4*RS + (i+7)*64}")

def ln_body(a, jreg, pub, pre=None, gate=True, only_load=False):
    a.srd(40, P_X, S*D*2)
    rows_setup(a)
    a(f"s_and_b32 s58, {jreg}, 7")
    a(f"s_lshr_b32 s56, {jreg}, 3")
    a("s_lshl_b32 s58, s58, 3")
    a("s_add_u32 s58, s58, s56")
    a("s_lshl_b32 s56, s58, 5")
    a("v_add_u32 v6, s56, v4")
    a("v_mul_u32_u24 v7, 1152, v6")
    a("v_lshl_add_u32 v7, v3, 4, v7")
    for i in range(9):
        a(f"buffer_load_dwordx4 {vr(XK+4*i,4)}, v7, s[40:43], 0 offen offset:{i*128}")
    if gate:
        a.srd(44, P_GW, D*2)
        a("v_lshlrev_b32 v8, 4, v3")
        for i in range(9):
            a(f"buffer_load_dwordx4 {vr(GK+4*i,4)}, v8, s[44:47], 0 offen offset:{i*128}")
    if only_load:
        a("s_waitcnt vmcnt(0)")
        return
    a(f"s_mul_i32 s57, s58, {2*18*1024}")
    a(f"s_add_u32 s57, s57, {HT_OFF}")
    a("v_mov_b32 v8, 0")
    a("v_mov_b32 v9, 0")
    a.stamp_mid(0)
    def pk(i): return vr(F0+2*i, 2)
    for i in range(36):
        if i % 4 == 0: a(f"s_waitcnt vmcnt({(17 if gate else 8) - i//4})")
        a(f"v_lshlrev_b32 v{F0+2*i}, 16, v{XK+i}")
        a(f"v_and_b32 v{F0+2*i+1}, 0xffff0000, v{XK+i}")
        a(f"v_pk_add_f32 v[8:9], v[8:9], {pk(i)}")
    a.stamp_mid(1)
    a("v_add_f32 v8, v8, v9")
    red8(a, 8)
    a(f"v_mul_f32 v8, {f32bits(-1.0/D)}, v8")
    a("v_mov_b32 v10, 0")
    a("v_mov_b32 v9, v8")
    a("v_mov_b32 v11, 0")
    for i in range(36):
        a(f"v_pk_add_f32 {pk(i)}, {pk(i)}, v[8:9]")
    for i in range(36):
        a(f"v_pk_fma_f32 v[10:11], {pk(i)}, {pk(i)}, v[10:11]")
    a("v_add_f32 v10, v10, v11")
    red8(a, 10)
    a(f"v_mov_b32 v12, {f32bits(1e-5)}")
    a(f"v_fmac_f32 v12, {f32bits(1.0/D)}, v10")
    a("v_rsq_f32 v12, v12")
    a("s_nop 0")
    a("v_mov_b32 v13, v12")
    for i in range(36):
        a(f"v_pk_mul_f32 {pk(i)}, {pk(i)}, v[12:13]")
    for i in range(36):
        a(f"v_cvt_pk_bf16_f32 v{X0+i}, v{F0+2*i}, v{F0+2*i+1}")
    if pre: pre(a)
    rows_tail(a)
    pub(a)

def wo_body(a, jreg):
    a.srd(40, P_WO, D*D*2)
    rows_setup(a)
    a(f"s_lshl_b32 s57, {jreg}, 1")
    a("s_lshr_b32 s55, s52, 1")
    a("s_add_u32 s57, s57, s55")
    a("s_and_b32 s56, s52, 1")
    a("s_lshl_b32 s56, s56, 2")
    a("s_lshl_b32 s57, s57, 4")
    a("s_add_u32 s57, s57, s56")
    a("v_lshrrev_b32 v6, 2, v2")
    a("v_and_b32 v7, 3, v2")
    a("v_lshl_add_u32 v6, v6, 3, v7")
    a("v_add_u32 v6, s57, v6")
    a("v_mul_u32_u24 v7, 1152, v6")
    a("v_lshl_add_u32 v7, v3, 4, v7")
    for i in range(9):
        a(f"buffer_load_dwordx4 {vr(X0+4*i,4)}, v7, s[40:43], 0 offen offset:{i*128}")
    a(f"s_mul_i32 s57, {jreg}, {2*18*1024}")
    a(f"s_add_u32 s57, s57, {WOF_OFF}")
    a("s_waitcnt vmcnt(0)")
    rows_tail(a)

def gate_own(a):
    a("v_mov_b32 v8, 0")
    a("v_mov_b32 v9, 0")
    for i in range(36):
        a(f"v_lshlrev_b32 v12, 16, v{GK+i}")
        a(f"v_and_b32 v13, 0xffff0000, v{GK+i}")
        a(f"v_lshlrev_b32 v14, 16, v{XK+i}")
        a(f"v_and_b32 v15, 0xffff0000, v{XK+i}")
        a(f"v_pk_fma_f32 v[8:9], v[12:13], v[14:15], v[8:9]")
    a("v_add_f32 v8, v8, v9")
    red8(a, 8)
    a(f"v_mul_f32 v8, {f32bits(-math.log2(math.e))}, v8")
    a("v_exp_f32 v8, v8")
    a("s_lshl_b32 s56, s58, 5")
    a("v_add_f32 v8, 1.0, v8")
    a("v_rcp_f32 v8, v8")
    a("v_add_u32 v6, s56, v4")
    a("v_lshlrev_b32 v6, 2, v6")
    a(f"s_mov_b32 s57, {G_OFF}")
    a("s_mov_b32 exec_lo, 0x01010101")
    a("s_mov_b32 exec_hi, 0x01010101")
    a(f"buffer_store_dword v8, v6, s[48:51], s57 offen{SC}")
    a("s_mov_b64 exec, -1")

def xw_touch(a, greg):
    a.srd(40, P_WQKV, D*3*D*2)
    a.srd(44, P_X, S*D*2)
    a(f"s_lshr_b32 s53, {greg}, 3")
    a("s_lshl_b32 s53, s53, 2")
    a("s_add_u32 s53, s53, s52")
    a("s_lshl_b32 s54, s53, 6")
    a("v_add_u32 v5, s54, v0")
    a("v_mul_u32_u24 v6, 18725, v5")
    a("v_lshrrev_b32 v6, 18, v6")
    a("v_mul_u32_u24 v7, 13, v6")
    a("v_add_u32 v7, v7, v5")
    a(f"s_and_b32 s54, {greg}, 1")
    a("s_mul_i32 s54, s54, 13")
    a("v_add_lshl_u32 v7, v7, s54, 7")
    a(f"buffer_load_dword v60, v7, s[40:43], 0 offen{XNT}")
    L = a.newlabel("nox")
    a("s_cmp_ge_u32 s53, 72")
    a(f"s_cbranch_scc1 {L}")
    a(f"s_bfe_u32 s54, {greg}, 0x20001")
    a("s_mul_i32 s54, s54, 4608")
    a("v_add_lshl_u32 v7, v5, s54, 7")
    a(f"buffer_load_dword v61, v7, s[44:47], 0 offen{XNT}")
    a.label(L)
for n in range(8192):
    assert (n*18725) >> 18 == n//14

def xw_touch2(a, greg, depth=1):
    L = a.newlabel("nox")
    a(f"s_cmp_lt_u32 {greg}, 192")
    a(f"s_cbranch_scc1 {L}")
    a.srd(40, P_WQKV, D*3*D*2)
    a.srd(44, P_X, S*D*2)
    a(f"s_bfe_u32 s53, {greg}, 0x30003")
    a("s_lshl_b32 s53, s53, 2")
    a("s_add_u32 s53, s53, s52")
    a(f"s_and_b32 s54, {greg}, 1")
    a("s_mul_i32 s54, s54, 13")
    a(f"s_add_u32 s54, s54, {128*27}")
    a(f"s_bfe_u32 s55, {greg}, 0x20001")
    a("s_mul_i32 s55, s55, 4608")
    a("s_add_u32 s55, s55, 2")
    a("v_mul_u32_u24 v8, 9, v0")
    for r in range(5):
        Lx = a.newlabel("tx"); Le = a.newlabel("te")
        a(f"s_add_u32 s56, s53, {32*r}")
        a("s_mul_i32 s57, s56, 745")
        a("s_lshr_b32 s57, s57, 14")
        a("s_mul_i32 s58, s57, 22")
        a("s_sub_u32 s56, s56, s58")
        if r == 4:
            a("s_cmp_ge_u32 s57, 7")
            a(f"s_cbranch_scc1 {Le}")
        a("s_cmp_ge_u32 s56, 14")
        a(f"s_cbranch_scc1 {Lx}")
        a("s_lshl_b32 s56, s56, 6")
        a("v_add_u32 v5, s56, v0")
        a("v_mul_u32_u24 v6, 18725, v5")
        a("v_lshrrev_b32 v6, 18, v6")
        a("v_mul_u32_u24 v6, 13, v6")
        a(f"s_mul_i32 s57, s57, {64*27}")
        a("s_add_u32 s57, s57, s54")
        a("v_add3_u32 v5, v5, v6, s57")
        a("v_lshlrev_b32 v5, 7, v5")
        a(f"buffer_load_dword v{60+(r&1)}, v5, s[40:43], 0 offen")
        a(f"s_branch {Le}")
        a.label(Lx)
        a("s_sub_u32 s56, s56, 14")
        a(f"s_mul_i32 s56, s56, {64*9}")
        a("s_add_u32 s56, s56, s57")
        a("s_add_u32 s56, s56, s55")
        a("v_add_lshl_u32 v5, v8, s56, 7")
        a(f"buffer_load_dword v{60+(r&1)}, v5, s[44:47], 0 offen")
        a.label(Le)
        if r >= depth: a(f"s_waitcnt vmcnt({depth})")
    a.label(L)
for n in range(160):
    assert (n*745) >> 14 == n//22
```

```python
import sys
from common import *
import sync, k_front, k_mlp1, k_mlp1y, k_mlp2, k_attn, k_final, k_final2, k_mlp2f, k_help
from sync import mb, MB_U, MB_H, MB_QKV, MB_O, MB_Y, MB_G, MB_P, MB_E

HEADER = open("cdna_kernels/" + NAME + ".s.ref").read().split("; Override launch geometry")[0]
N_WO = 18
W2_TOUCH = False
FRONT_ONLY = False
PARTNER = True
A_EXIT = False
PF1 = 0
LNB = False
LNB_PRIO = 3
CW = (None, None, None)
PFN1 = 16
PFS1 = 0
PF3 = 0
QPOLL_ALL = False
UPOLL_ALL = True
HINT2 = 0
FUSED = True
INIT_LOW = 2
W1HEAD = True
PRE = 0
M1Y = True
COOP = False
COOP_H = False
COOP_U = False
BPRIO = 0
INIT_LATE = True
PFMODE = 'col'
PFH = False
SLP_H = 4
HEAD_PF = 0
CODE_PF = True
B_EXIT = False
DIAG = None
PF_AFTER_H = True
TLBW = 0
PFW1 = True
XW = 2
XWD = 1
LIST = True
NO_FINAL = False
PFD = 1
LN_WAIT = True
PF2 = 7
EARLY = 1
EARLY_FL = ''
PROMOTE = False
WAIT_QKV = True
HINT_AT = 3
SLP_HINT = 4
SLP_FIN = 2
W2_TAIL = 0
AUX_G0 = 16
AUX_NT = ''

DOC = """;
;                         240 tiles) scaled by (1-gate) with the output projection of gate*o appended along K
"""

def w1_touch(a, g0, ng, vt, srd=40):
    L = a.newlabel("w1t")
    a("s_and_b32 s72, s2, 255")
    a(f"s_cmp_ge_u32 s72, {k_mlp1y.MLP1_GRID}")
    a(f"s_cbranch_scc1 {L}")
    a.srd(srd, P_W1, S*F*2)
    a("s_and_b32 s73, s72, 7")
    a("s_mul_i32 s73, s73, 27")
    a("s_lshr_b32 s72, s72, 3")
    a("s_add_u32 s72, s72, s73")
    a("s_mul_i32 s73, s72, 171")
    a("s_lshr_b32 s73, s73, 10")
    a("s_mul_i32 s74, s73, 6")
    a("s_sub_u32 s72, s72, s74")
    a("s_mul_i32 s74, s52, 6")
    a("s_add_u32 s72, s72, s74")
    a("s_lshl_b32 s73, s73, 8")
    a(f"s_mul_i32 s74, s72, {32*F*2}")
    a("s_add_u32 s73, s73, s74")
    a(f"s_add_u32 s73, s73, {g0*32*F*2}")
    a(f"v_lshrrev_b32 v{vt}, 1, v0")
    a(f"v_mul_u32_u24 v{vt}, {F*2}, v{vt}")
    a(f"v_and_b32 v{vt+1}, 1, v0")
    a(f"v_lshl_add_u32 v{vt}, v{vt+1}, 7, v{vt}")
    for r in range(-(-ng//24)):
        if ng - 24*r < 24:
            a(f"s_cmp_ge_u32 s72, {ng - 24*r}")
            a(f"s_cbranch_scc1 {L}")
        a(f"buffer_load_dword v{vt+1}, v{vt}, s[{srd}:{srd+3}], s73 offen")
        a(f"s_add_u32 s73, s73, {24*32*F*2}")
    a.label(L)

def gen_main(a, name):
    a.kernel_begin(name)
    a("s_cmp_ge_u32 s2, 512")
    a("s_cbranch_scc1 L_end")
    a.load_kernargs()
    sync.wave_setup(a)
    a.srd(48, P_WS, WS_SIZE)
    a.srd(84, P_DBG, 256)
    a("s_cmp_ge_u32 s2, 256")
    a("s_cbranch_scc1 L_slotB")
    a("s_setprio 3")
    a("s_cmp_ge_u32 s2, 192")
    a("s_cbranch_scc1 L_ln")
    def hint2(a):
        L = a.newlabel("hint")
        a("s_cmp_lg_u32 s52, 0")
        a(f"s_cbranch_scc1 {L}")
        a("s_lshl_b32 s76, s2, 8")
        a(f"s_add_u32 s76, s76, {mb(MB_P)}")
        a("v_mov_b32 v8, 0")
        a("v_mov_b32 v9, 1")
        a("s_mov_b64 exec, 1")
        a("buffer_store_dword v9, v8, s[48:51], s76 offen offset:4 sc1")
        a("s_mov_b64 exec, -1")
        a.label(L)
    def pub_qkv(a):
        a("s_and_b32 s72, s56, 3")
        a("s_lshl_b32 s72, s72, 12")
        a("s_and_b32 s73, s55, 12")
        a("s_add_u32 s72, s72, s73")
        a(f"s_add_u32 s72, s72, {mb(MB_QKV)}")
        if HINT2 == 1: hint2(a)
        sync.publish(a, 72, 16, init=True)
        if HINT2 == 2: hint2(a)
    def hint(a):
        L = a.newlabel("hint")
        a("s_lshl_b32 s76, s52, 3")
        a("s_add_u32 s76, s76, s60")
        a(f"s_cmp_lg_u32 s76, {HINT_AT}")
        a(f"s_cbranch_scc1 {L}")
        a("s_lshl_b32 s76, s2, 8")
        a(f"s_add_u32 s76, s76, {mb(MB_P)}")
        a("v_mov_b32 v8, 0")
        a("v_mov_b32 v9, 1")
        a("s_mov_b64 exec, 1")
        a("buffer_store_dword v9, v8, s[48:51], s76 offen sc1")
        a("s_mov_b64 exec, -1")
        a.label(L)
    k_front.qkv_body(a, "s2", pub_qkv, hint if WAIT_QKV else None)
    a("s_branch L_attn")
    a.label("L_ln")
    a("s_sub_u32 s3, s2, 192")
    def pub_h(a):
        a("s_lshr_b32 s72, s58, 4")
        a("s_lshl_b32 s72, s72, 13")
        a(f"s_add_u32 s72, s72, {mb(MB_H)}")
        sync.publish(a, 72, 32, init=True)
    k_front.ln_body(a, "s3", pub_h, only_load=LNB)
    a.stamp_mid(6)
    k_front.gate_own(a)
    a(f"s_cmp_ge_u32 s3, {N_WO}")
    a("s_cbranch_scc1 L_nowo")
    k_front.wo_body(a, "s3")
    a.label("L_nowo")
    a(f"s_mov_b32 s72, {mb(MB_G)}")
    sync.publish(a, 72, 32, init='late')
    a.label("L_attn")
    if CW[1]: w1_touch(a, CW[1][0], CW[1][1], 250)
    a.stamp_mid(2)
    if FRONT_ONLY or A_EXIT: a("s_branch L_done")
    def dep_qkv(a):
        a("s_lshr_b32 s72, s61, 3")
        a("s_lshl_b32 s72, s72, 4")
        a("s_bfe_u32 s73, s2, 0x40003")
        a("s_add_u32 s72, s72, s73")
        a("s_lshl_b32 s72, s72, 8")
        a(f"s_add_u32 s79, s72, {mb(MB_QKV)}")
        a("s_lshr_b32 s73, s2, 6")
        a("s_lshl_b32 s73, s73, 2")
        a("s_add_u32 s72, s79, s73")
        if QPOLL_ALL:
            sync.poll(a, None, 0, vt=8, init='late')
            sync.spin(a, 48, "s72", 12, 8, sleep=2)
        else:
            sync.poll(a, 72, 12, vt=8, sleep=2, init='late')
        if HINT2 == 3: hint2(a)
    def dep_qkv2(a):
        L = a.newlabel("q2"); Ld = a.newlabel("q2d")
        a("s_mov_b32 s76, 0")
        a.label(L)
        a("s_buffer_load_dwordx4 s[72:75], s[48:51], s79 glc")
        a("s_add_u32 s76, s76, 1")
        a("s_waitcnt lgkmcnt(0)")
        a("s_min_u32 s72, s72, s73")
        a("s_min_u32 s74, s74, s75")
        a("s_min_u32 s72, s72, s74")
        a("s_cmp_ge_u32 s72, 12")
        a(f"s_cbranch_scc1 {Ld}")
        a("s_sleep 4")
        a(f"s_cmp_lt_u32 s76, {sync.SPIN_MAX}")
        a(f"s_cbranch_scc1 {L}")
        a.label(Ld)
    def dep_g(a):
        if CW[2]: w1_touch(a, CW[2][0], CW[2][1], 252)
        a("s_bfe_u32 s72, s2, 0x50003")
        a("s_lshl_b32 s72, s72, 8")
        a(f"s_add_u32 s72, s72, {mb(MB_G)}")
        sync.spin(a, 48, "s72", 64, 0)
    def pub_o_f(a):
        a("s_cmp_gt_u32 s61, 7")
        a("s_cselect_b32 s72, 1, 0")
        for hd in (14, 19, 24):
            a(f"s_cmp_gt_u32 s61, {hd}")
            a("s_addc_u32 s72, s72, 0")
        a("s_lshr_b32 s73, s2, 5")
        a("s_mul_i32 s73, s73, 5")
        a("s_add_u32 s72, s72, s73")
        a(f"s_mul_i32 s72, s72, {6*256}")
        a(f"s_add_u32 s72, s72, {mb(MB_O)}")
        a(f"s_lshr_b32 s73, {(1<<7)|(1<<14)|(1<<19)|(1<<24)}, s61")
        a("s_and_b32 s73, s73, 1")
        a("s_cselect_b32 s73, 0xfff, 63")
        sync.publish(a, 72, "s73")
    def pub_o(a):
        if FUSED: return pub_o_f(a)
        a("s_lshr_b32 s72, s2, 5")
        a("s_lshl_b32 s72, s72, 13")
        a("s_lshr_b32 s73, s61, 3")
        a("s_lshl_b32 s73, s73, 2")
        a("s_add_u32 s72, s72, s73")
        a(f"s_add_u32 s72, s72, {mb(MB_O)}")
        sync.publish(a, 72, 24)
    def last_extra(a):
        k_final2.wof_setup(a, "s2", 147)
        return [k_final2.wof_load(k, 147) for k in range(27)]
    TV = 140
    def tsetup(a):
        a.srd(80, P_W2, S*F*2)
        a("s_lshr_b32 s72, s2, 3")
        a("s_lshl_b32 s72, s72, 2")
        a("s_add_u32 s72, s72, s52")
        a("s_mul_i32 s73, s72, 205")
        a("s_lshr_b32 s73, s73, 11")
        a("s_mul_i32 s76, s73, 10")
        a("s_sub_u32 s72, s72, s76")
        a("s_and_b32 s76, s2, 7")
        a("s_mul_i32 s76, s76, 10")
        a("s_add_u32 s72, s72, s76")
        a("s_lshr_b32 s76, s72, 4")
        a("s_and_b32 s72, s72, 15")
        a(f"s_mul_i32 s76, s76, {928*4096}")
        a("s_lshl_b32 s72, s72, 8")
        a("s_add_u32 s76, s76, s72")
        a("s_lshl_b32 s72, s73, 17")
        a("s_add_u32 s76, s76, s72")
        a("s_cmp_ge_u32 s73, 12")
        a("s_cselect_b32 s82, 0, s82")
        a(f"v_lshrrev_b32 v{TV}, 1, v0")
        a(f"v_lshlrev_b32 v{TV}, 12, v{TV}")
        a(f"v_and_b32 v{TV+1}, 1, v0")
        a(f"v_lshl_add_u32 v{TV}, v{TV+1}, 7, v{TV}")
        a(f"v_add_u32 v{TV}, s76, v{TV}")
        a("s_mov_b32 s78, s73")
    def touch(a):
        a("s_cmp_ge_u32 s78, 29")
        a("s_cselect_b32 s82, 0, s82")
        a(f"buffer_load_dword v{TV+1}, v{TV}, s[80:83], 0 offen")
        a(f"v_add_u32 v{TV}, {12*32*4096}, v{TV}")
        a("s_add_u32 s78, s78, 12")
    k_attn.attn_body(a, "s2", dep_qkv, pub_o, sm=3, tsetup=tsetup if W2_TOUCH else None, touch=touch if W2_TOUCH else None, dep_g=dep_g, dep2=dep_qkv2, last_extra=None if FUSED else last_extra)
    a.stamp_mid(5)
    a("s_cmp_ge_u32 s2, 192")
    a("s_cbranch_scc1 L_done")
    if NO_FINAL: a("s_branch L_done")
    def dep_y(a, i):
        L = a.newlabel("y"); Ld = a.newlabel("yd")
        if i == 0:
            a("s_lshl_b32 s76, s54, 5")
            a("s_add_u32 s76, s76, s53")
            a("s_lshl_b32 s76, s76, 8")
            a(f"s_add_u32 s76, s76, {mb(MB_Y)}")
            a("s_mov_b32 s77, 0")
        else:
            a(f"s_cmp_ge_u32 s{72+i}, 5")
            a(f"s_cbranch_scc1 {Ld}")
        a.label(L)
        a("s_buffer_load_dwordx4 s[72:75], s[48:51], s76 glc")
        a("s_add_u32 s77, s77, 1")
        a("s_waitcnt lgkmcnt(0)")
        a(f"s_cmp_ge_u32 s{72+i}, 5")
        a(f"s_cbranch_scc1 {Ld}")
        if i == 0: a(f"s_sleep {SLP_FIN}")
        a(f"s_cmp_lt_u32 s77, {sync.SPIN_MAX}")
        a(f"s_cbranch_scc1 {L}")
        a.label(Ld)
        if i == 2: a.stamp_mid(7)
    def boxes(a):
        a("s_lshr_b32 s66, s53, 2")
        a("s_lshl_b32 s66, s66, 5")
        a("s_lshr_b32 s67, s2, 3")
        a("s_add_u32 s66, s66, s67")
        a("s_lshl_b32 s66, s66, 8")
        a("s_lshl_b32 s67, s52, 2")
        a("s_add_u32 s66, s66, s67")
        a(f"s_add_u32 s66, s66, {mb(MB_O)}")
        a("s_lshl_b32 s67, s54, 5")
        a("s_add_u32 s67, s67, s53")
        a("s_lshl_b32 s67, s67, 8")
        a(f"s_add_u32 s67, s67, {mb(MB_Y)}")
    if FUSED: k_final.final_body(a, "s2", dep_y)
    else: k_final2.final_body(a, "s2", boxes, sync.SPIN_MAX)
    a("s_branch L_done")
    a.label("L_slotB")
    a("s_sub_u32 s3, s2, 256")
    if INIT_LOW == 1:
        a(f"s_cmp_gt_u32 s3, {sync.N_LATE}")
        a("s_cbranch_scc1 L_noinit")
        a("s_mov_b32 s78, s3")
    elif INIT_LOW == 2:
        a("s_cmp_eq_u32 s3, 255")
        a(f"s_cselect_b32 s78, {sync.N_LATE}, s3")
        a(f"s_cmp_eq_u32 s3, {sync.N_LATE}")
        a("s_cselect_b32 s78, 99, s78")
        a(f"s_cmp_gt_u32 s78, {sync.N_LATE}")
        a("s_cbranch_scc1 L_noinit")
    else:
        a(f"s_cmp_lt_u32 s3, {255 - sync.N_LATE}")
        a("s_cbranch_scc1 L_noinit")
        a(f"s_sub_u32 s78, s3, {255 - sync.N_LATE}")
    a("s_setprio 3")
    sync.init_mailboxes(a, "s78")
    a("s_setprio 0")
    a.stamp_mid(0)
    a.label("L_noinit")
    if CODE_PF:
        Lc = a.newlabel("cpf")
        a("s_lshr_b32 s72, s3, 4")
        a("s_cmp_lg_u32 s72, 2")
        a(f"s_cbranch_scc1 {Lc}")
        a("s_getpc_b64 s[80:81]")
        a.label("L_pc")
        a(f"s_sub_u32 s80, s80, L_pc - {name}")
        a("s_subb_u32 s81, s81, 0")
        a(f"s_mov_b32 s82, L_code_end - {name}")
        a("s_mov_b32 s83, 0x00020000")
        a("s_bfe_u32 s72, s3, 0x10003")
        a("s_lshl_b32 s72, s72, 2")
        a("s_add_u32 s72, s72, s52")
        a("s_lshl_b32 s72, s72, 13")
        a("v_lshlrev_b32 v5, 7, v0")
        a("v_add_u32 v5, s72, v5")
        a("buffer_load_dword v58, v5, s[80:83], 0 offen")
        a.label(Lc)
    if WAIT_QKV:
        Lz = a.newlabel("hz")
        a("s_cmp_lg_u32 s52, 0")
        a(f"s_cbranch_scc1 {Lz}")
        a("s_lshl_b32 s72, s3, 8")
        a(f"s_add_u32 s72, s72, {mb(MB_P)}")
        a("v_lshlrev_b32 v5, 4, v0")
        for i in range(4): a(f"v_mov_b32 v{8+i}, 0")
        a("s_mov_b64 exec, 0xff")
        a("buffer_store_dwordx4 v[8:11], v5, s[48:51], s72 offen sc1")
        a("s_mov_b64 exec, -1")
        a.label(Lz)
    if LNB:
        a("s_lshr_b32 s72, s3, 6")
        a("s_cmp_lg_u32 s72, 1")
        a("s_cbranch_scc1 L_nolnb")
        a(f"s_setprio {LNB_PRIO}")
        a("s_sub_u32 s78, s3, 64")
        st = a.stamp; a.stamp = False
        k_front.ln_body(a, "s78", pub_h, gate=False)
        a.stamp = st
        a("s_setprio 0")
        a.label("L_nolnb")
    if XW == 1: k_front.xw_touch(a, "s3")
    if XW == 2: k_front.xw_touch2(a, "s3", XWD)
    if W1HEAD:
        Lh = a.newlabel("w1h")
        a("s_cmp_lt_u32 s3, 192")
        a(f"s_cbranch_scc1 {Lh}")
        a("s_cmp_ge_u32 s53, 30")
        a(f"s_cbranch_scc1 {Lh}")
        a.srd(80, P_W1, S*F*2)
        a("s_mul_i32 s57, s53, 205")
        a("s_lshr_b32 s57, s57, 10")
        a("s_mul_i32 s58, s57, 5")
        a("s_sub_u32 s58, s53, s58")
        a("s_and_b32 s56, s3, 7")
        a("s_mul_i32 s56, s56, 9")
        a("s_lshr_b32 s56, s56, 1")
        a("s_add_u32 s56, s56, s58")
        a("s_lshl_b32 s56, s56, 8")
        a(f"s_mul_i32 s57, s57, {32*F*2}")
        a("s_add_u32 s56, s56, s57")
        a("v_lshrrev_b32 v5, 1, v0")
        a(f"v_mul_u32_u24 v5, {F*2}, v5")
        a("v_and_b32 v6, 1, v0")
        a("v_lshl_add_u32 v5, v6, 7, v5")
        a("buffer_load_dword v62, v5, s[80:83], s56 offen")
        a.label(Lh)
    if COOP:
        Le = a.newlabel("head")
        a(f"s_cmp_ge_u32 s3, {k_mlp1.MLP1_GRID}")
        a(f"s_cbranch_scc1 {Le}")
        a.srd(80, P_W1, S*F*2)
        a("s_and_b32 s66, s3, 7")
        a("s_mul_i32 s66, s66, 27")
        a("s_lshr_b32 s67, s3, 3")
        a("s_add_u32 s67, s67, s66")
        a("s_mul_i32 s70, s67, 171")
        a("s_lshr_b32 s70, s70, 10")
        a("s_mul_i32 s68, s70, 6")
        a("s_sub_u32 s69, s67, s68")
        a("s_lshl_b32 s66, s70, 8")
        a("s_lshl_b32 s68, s52, 4")
        a("s_add_u32 s67, s69, s68")
        a(f"s_mul_i32 s67, s67, {32*F*2}")
        a("s_add_u32 s66, s66, s67")
        a("v_lshrrev_b32 v5, 1, v0")
        a(f"v_mul_u32_u24 v5, {F*2}, v5")
        a("v_and_b32 v6, 1, v0")
        a("v_lshl_add_u32 v5, v6, 7, v5")
        a("buffer_load_dword v62, v5, s[80:83], s66 offen")
        a("s_cmp_ge_u32 s69, 3")
        a(f"s_mov_b32 s67, {3*32*F*2}")
        a(f"s_cselect_b32 s67, {(-3*32*F*2) & 0xffffffff}, s67")
        a("s_add_u32 s67, s67, s66")
        a("s_lshr_b32 s68, 0x80402010, s70")
        a("s_cmp_lt_u32 s70, 32")
        a("s_cselect_b32 s68, s68, 0")
        a("s_and_b32 s68, s68, 1")
        a(f"s_cbranch_scc0 {Le}")
        a("buffer_load_dword v63, v5, s[80:83], s67 offen")
        a.label(Le)
    if TLBW:
        a("s_lshr_b32 s53, s3, 3")
        a("s_lshl_b32 s53, s53, 2")
        a("s_add_u32 s53, s53, s52")
        a("s_lshl_b32 s53, s53, 6")
        a("v_add_u32 v5, s53, v0")
        a(f"v_lshlrev_b32 v5, {TLBW}, v5")
        a.srd(80, P_W1, S*F*2)
        a("buffer_load_dword v62, v5, s[80:83], 0 offen nt")
        a.srd(80, P_W2, S*F*2)
        a("buffer_load_dword v63, v5, s[80:83], 0 offen nt")
        a.srd(80, P_WS, CNT_OFF)
        a("buffer_load_dword v59, v5, s[80:83], 0 offen nt")
    if k_mlp1y.SHED:
        Lp = a.newlabel("pre")
        a("s_cmp_lt_u32 s3, 220")
        a(f"s_cbranch_scc1 {Lp}")
        a("s_sub_u32 s78, 255, s3")
        k_help.preload(a, "s78")
        a.label(Lp)
    a(f"s_setprio {BPRIO}")
    if INIT_LATE:
        a(f"s_cmp_lt_u32 s3, {k_mlp1.MLP1_GRID}")
        a("s_cbranch_scc1 L_mlp1")
    a("s_waitcnt vmcnt(0)")
    sync.poll(a, None, 0, vt=5, init=True)
    a.stamp_mid(5)
    a("s_cmp_lt_u32 s3, 192")
    a("s_cbranch_scc1 L_mlp1")
    if PF_AFTER_H:
        a("s_bfe_u32 s72, s3, 0x20001")
        a("s_lshl_b32 s72, s72, 5")
        a("s_and_b32 s73, s3, 31")
        a("s_add_u32 s72, s72, s73")
        a("s_lshl_b32 s72, s72, 8")
        a(f"s_add_u32 s72, s72, {mb(MB_H)}")
        sync.poll(a, 72, 16, vt=5, sleep=4)
    a.srd(40, P_W1, S*F*2)
    a("s_sub_u32 s67, 255, s3")
    a(f"s_mul_i32 s66, s52, {512*F*2}")
    a("s_lshl_b32 s68, s67, 13")
    a("s_add_u32 s66, s66, s68")
    a("v_lshlrev_b32 v5, 7, v0")
    a("v_add_u32 v5, s66, v5")
    for r in range(PF1):
        a(f"buffer_load_dword v{60+(r&1)}, v5, s[40:43], 0 offen")
        a(f"v_add_u32 v5, {64*8192}, v5")
        if r >= PFD: a(f"s_waitcnt vmcnt({PFD})")
    a(f"s_cmp_ge_u32 s3, {k_mlp1.MLP1_GRID}")
    a("s_cbranch_scc1 L_aux")
    a.label("L_mlp1")
    if B_EXIT: a("s_branch L_done")
    def dep_h(a):
        a("s_lshl_b32 s72, s52, 5")
        a("s_and_b32 s73, s3, 31")
        a("s_add_u32 s72, s72, s73")
        a("s_lshl_b32 s72, s72, 8")
        a(f"s_add_u32 s72, s72, {mb(MB_H)}")
        sync.spin(a, 48, "s72", 16, 5, sleep=SLP_H)
    def dep_h3(a):
        a("s_and_b32 s72, s3, 31")
        a("s_lshl_b32 s72, s72, 8")
        a(f"s_add_u32 s72, s72, {mb(MB_H + 96)}")
        sync.spin(a, 48, "s72", 16, 5, sleep=SLP_H)
    def dep_h_touch(a, part=0):
        if INIT_LATE and part != 2:
            a("s_waitcnt vmcnt(0)")
            sync.poll(a, None, 0, vt=12, init=True)
        if part == 1: return
        if CW[0]: w1_touch(a, CW[0][0], CW[0][1], 250, srd=80)
        dep_h(a)
        a.stamp_mid(5)
        if COOP_H:
            a("s_and_b32 s72, s3, 7")
            a("s_mul_i32 s72, s72, 9")
            a("s_lshr_b32 s72, s72, 1")
            a("s_sub_u32 s72, s66, s72")
            a("s_lshl_b32 s72, s72, 6")
            a("v_add_u32 v60, s72, v0")
            a("v_mul_u32_u24 v61, 2731, v60")
            a("v_lshrrev_b32 v61, 16, v61")
            a("v_mul_u32_u24 v61, 120, v61")
            a("v_add_lshl_u32 v60, v60, v61, 7")
            a(f"buffer_load_dword v61, v60, s[48:51], s{k_mlp1.S_F} offen sc1")
    def hold(a, word=0):
        L = a.newlabel("hold"); Ld = a.newlabel("holdd")
        a("s_cmp_ge_u32 s3, 192")
        a(f"s_cbranch_scc1 {Ld}")
        a("s_lshl_b32 s72, s3, 8")
        a(f"s_add_u32 s72, s72, {mb(MB_P) + 4*word}")
        a("s_and_b32 s73, s3, 63")
        a("s_lshl_b32 s73, s73, 8")
        a(f"s_add_u32 s73, s73, {mb(MB_QKV)}")
        a("s_mov_b32 s74, 0")
        a.label(L)
        a("s_buffer_load_dword s75, s[48:51], s72 glc")
        a("s_add_u32 s74, s74, 1")
        a("s_waitcnt lgkmcnt(0)")
        a("s_cmp_lg_u32 s75, 0")
        a(f"s_cbranch_scc1 {Ld}")
        a("s_sleep 4")
        a("s_and_b32 s75, s74, 15")
        a(f"s_cbranch_scc1 {L}")
        a("s_buffer_load_dword s75, s[48:51], s73 glc")
        a("s_waitcnt lgkmcnt(0)")
        a("s_cmp_ge_u32 s75, 12")
        a(f"s_cbranch_scc1 {Ld}")
        a(f"s_cmp_lt_u32 s74, {sync.SPIN_MAX}")
        a(f"s_cbranch_scc1 {L}")
        a.label(Ld)
    def w2_tail(a):
        a.srd(80, P_W2, S*F*2)
        a("s_lshr_b32 s72, s3, 3")
        a("s_mul_i32 s73, s72, 86")
        a("s_lshr_b32 s73, s73, 8")
        a("s_mul_i32 s76, s73, 3")
        a("s_sub_u32 s72, s72, s76")
        a("s_and_b32 s76, s3, 7")
        a("s_mul_i32 s76, s76, 10")
        a("s_add_u32 s73, s73, s76")
        a("s_lshr_b32 s76, s73, 4")
        a("s_and_b32 s73, s73, 15")
        a(f"s_mul_i32 s76, s76, {928*4096}")
        a("s_lshl_b32 s73, s73, 8")
        a("s_add_u32 s76, s76, s73")
        a("s_lshl_b32 s72, s72, 2")
        a("s_add_u32 s72, s72, s52")
        a(f"s_add_u32 s72, s72, {29 - 12*W2_TAIL}")
        a("s_lshl_b32 s72, s72, 17")
        a("s_add_u32 s76, s76, s72")
        a("v_lshrrev_b32 v60, 1, v0")
        a("v_lshlrev_b32 v60, 12, v60")
        a("v_and_b32 v61, 1, v0")
        a("v_lshl_add_u32 v60, v61, 7, v60")
        a("v_add_u32 v60, s76, v60")
        for e in range(W2_TAIL):
            a(f"buffer_load_dword v{61+e}, v60, s[80:83], 0 offen")
            a(f"v_add_u32 v60, {12*32*4096}, v60")
    def checks(a, wave):
        Lg = a.newlabel("g")
        a(f"s_cmp_lg_u32 s52, {wave}")
        a(f"s_cbranch_scc1 {Lg}")
        sync.spin_init(a, 14, True)
        a("s_bfe_u32 s73, s2, 0x50003")
        a("s_lshl_b32 s73, s73, 8")
        a(f"s_add_u32 s73, s73, {mb(MB_G)}")
        sync.spin(a, 48, "s73", 64, 0)
        a.label(Lg)
    def pub_u(a, part):
        if part == 0:
            a("s_mul_i32 s18, s66, 565")
            a("s_lshr_b32 s18, s18, 12")
            a("s_lshr_b32 s19, s67, 1")
            a("s_mul_i32 s19, s19, 5")
            a("s_add_u32 s18, s18, s19")
            a("s_lshl_b32 s18, s18, 12")
            a(f"s_add_u32 s18, s18, {mb(MB_U)}")
            a("s_lshr_b32 s19, 0x204080, s66")
            a("s_cmp_lt_u32 s66, 32")
            a("s_cselect_b32 s19, s19, 0")
            a("s_and_b32 s19, s19, 1")
            a("s_cselect_b32 s19, -1, 0xffff")
        else:
            checks(a, 1)
            sync.publish(a, 18, "s19", vt=14)
    def ebox(a, wait=False):
        a("s_lshl_b32 s65, s59, 8")
        a("s_lshl_b32 s70, s52, 2")
        a("s_add_u32 s65, s65, s70")
        a(f"s_add_u32 s65, s65, {mb(MB_E)}")
        sync.spin_init(a, 14, True)
        if wait: sync.spin(a, 48, "s65", 1, 0, sleep=2)
    def early2(a):
        a("s_barrier")
        k_mlp2f.mlp2_body(a, "s3", 3, None, None, None, part=1)
    (k_mlp1y if M1Y else k_mlp1).mlp1_body(a, "s3", dep_h_touch, pub_u, sm=0, epi=early2, hold=hold if WAIT_QKV else None, hold2=(lambda a: hold(a, 1)) if HINT2 else None, ebox=ebox)
    a.stamp_mid(2)
    a("s_branch L_mlp2")
    a.label("L_aux")
    if B_EXIT: a("s_branch L_done")
    if k_mlp1y.SHED:
        a("s_cmp_ge_u32 s67, 36")
        a("s_cbranch_scc1 L_nohelp")
        a("s_mov_b32 s78, s67")
        k_help.body_all(a, "s78", dep_h3, ebox)
        a.label("L_nohelp")
        a.stamp_mid(6)
        a("s_setprio 0")
        a("s_sub_u32 s67, 255, s3")
    if PFMODE == "col":
        a("s_and_b32 s66, s3, 7")
        a("s_mul_i32 s66, s66, 9")
        a("s_lshr_b32 s66, s66, 1")
        a("s_lshr_b32 s67, s67, 3")
        a("s_add_u32 s66, s66, s67")
        a("s_lshl_b32 s66, s66, 8")
        a(f"s_mul_i32 s69, s52, {(32 if M1Y else 512)*F*2}")
        a("s_add_u32 s66, s66, s69")
        a("v_lshrrev_b32 v5, 1, v0")
        a(f"v_mul_u32_u24 v5, {F*2}, v5")
        a("v_and_b32 v6, 1, v0")
        a("v_lshl_add_u32 v5, v6, 7, v5")
        if PFH:
            dep_h(a)
            a(f"s_mul_i32 s69, s52, {32*18*1024}")
            a("s_lshl_b32 s70, s67, 13")
            a("s_add_u32 s69, s69, s70")
            a(f"s_add_u32 s69, s69, {HT_OFF}")
            a("v_lshlrev_b32 v7, 7, v0")
        g0 = 6 if COOP else 0
        a(f"s_add_u32 s66, s66, {(g0*32 + PFS1*128)*F*2}")
        if PFH and COOP_H: a(f"s_add_u32 s69, s69, {12*18*1024}")
        for n in range(min(PFN1, 16 - g0)):
            a(f"buffer_load_dword v{60+(n&1)}, v5, s[40:43], s66 offen")
            a(f"s_add_u32 s66, s66, {(128 if M1Y else 32)*F*2}")
            if PFH and n < (9 if COOP_H else 14):
                a(f"buffer_load_dword v{62+(n&1)}, v7, s[48:51], s69 offen sc1")
                a(f"s_add_u32 s69, s69, {5*8192}")
            a(f"s_waitcnt vmcnt({PFD})")
        a.stamp_mid(1)
        a.srd(40, P_W2, S*F*2)
        a("s_lshl_b32 s68, s67, 2")
        a("s_add_u32 s68, s68, s52")
        a("s_and_b32 s66, s3, 7")
        a("s_mul_i32 s66, s66, 10")
        a("s_lshr_b32 s69, s68, 1")
        a("s_add_u32 s66, s66, s69")
        a("s_lshr_b32 s67, s66, 4")
        a("s_and_b32 s66, s66, 15")
        a(f"s_mul_i32 s67, s67, {928*4096}")
        a("s_lshl_b32 s66, s66, 8")
        a("s_add_u32 s67, s67, s66")
        a("s_and_b32 s66, s52, 1")
        a("s_lshl_b32 s66, s66, 17")
        a("s_add_u32 s67, s67, s66")
        a("v_lshrrev_b32 v5, 1, v0")
        a("v_lshlrev_b32 v5, 12, v5")
        a("v_and_b32 v6, 1, v0")
        a("v_lshl_add_u32 v5, v6, 7, v5")
        a("v_add_u32 v5, s67, v5")
        for n in range(PF2):
            a(f"buffer_load_dword v{60+(n&1)}, v5, s[40:43], 0 offen")
            a(f"v_add_u32 v5, {64*4096}, v5")
            a(f"s_waitcnt vmcnt({PFD})")
    else:
        for n in range(-(-(576 - 64*PF1)//40) if PFW1 else 0):
            a(f"buffer_load_dword v{60+(n&1)}, v5, s[40:43], 0 offen")
            a(f"v_add_u32 v5, {40*8192}, v5")
            a(f"s_waitcnt vmcnt({PFD})")
        a.stamp_mid(1)
        a.srd(40, P_W2, S*F*2)
        a("s_lshl_b32 s68, s67, 2")
        a("s_add_u32 s68, s68, s52")
        a("s_lshr_b32 s66, s68, 5")
        a("s_and_b32 s68, s68, 31")
        a(f"s_mul_i32 s66, s66, {928*4096}")
        a("s_lshl_b32 s68, s68, 13")
        a("s_add_u32 s66, s66, s68")
        a("v_lshlrev_b32 v5, 7, v0")
        a("v_add_u32 v5, s66, v5")
        for n in range(PF2):
            a(f"buffer_load_dword v{60+(n&1)}, v5, s[40:43], 0 offen")
            a(f"v_add_u32 v5, {32*8192}, v5")
            a(f"s_waitcnt vmcnt({PFD})")
    a("s_waitcnt vmcnt(0)")
    a.stamp_mid(2)
    a("s_and_b32 s70, s3, 1")
    a(f"s_mul_i32 s70, s70, {(-16*k_mlp2f.SKEW) & 0xffffffff}")
    a(f"s_add_u32 s70, s70, {240 + 8*k_mlp2f.SKEW}")
    a(f"s_cmp_ge_u32 s3, s70")
    a("s_cbranch_scc1 L_aux0" if PF3 else "s_cbranch_scc1 L_done")
    k_mlp2f.mlp2_body(a, "s3", 3, None, None, None, part=1)
    checks(a, 0)
    a("s_barrier")
    a.label("L_mlp2")
    if k_mlp1y.PST: a("s_branch L_done")
    def dep_u(a):
        a("s_mul_i32 s73, s67, 5")
        a("s_add_u32 s73, s73, s69")
        a("s_lshl_b32 s73, s73, 4")
        a("s_add_u32 s73, s73, s66")
        a("s_lshl_b32 s73, s73, 8")
        a(f"s_add_u32 s73, s73, {mb(MB_U)}")
        a("s_cmp_eq_u32 s69, 4")
        a("s_cselect_b32 s76, 14, 16")
        (sync.spin(a, 48, "s73", "s76", 8, sleep=1) if UPOLL_ALL else sync.poll(a, 73, "s76", vt=8, sleep=2))
        if COOP_U:
            a("s_lshr_b32 s70, s3, 3")
            a("s_mul_i32 s70, s70, 86")
            a("s_lshr_b32 s70, s70, 8")
            a("s_mul_i32 s73, s52, 10")
            a("s_add_u32 s70, s70, s73")
            a("s_lshl_b32 s70, s70, 6")
            a("s_add_u32 s70, s70, 288")
            a("v_add_u32 v60, s70, v0")
            a("v_min_u32 v60, 2783, v60")
            a("v_mul_u32_u24 v61, 5462, v60")
            a("v_lshrrev_b32 v61, 18, v61")
            a("v_mul_u32_u24 v61, 96, v61")
            a("v_add_lshl_u32 v60, v60, v61, 7")
            a(f"s_mul_i32 s70, s69, {58*18*1024}")
            a("s_mul_i32 s73, s67, 6144")
            a("s_add_u32 s70, s70, s73")
            a(f"s_add_u32 s70, s70, {U_OFF}")
            a("s_mov_b32 s77, s70")
    def ybox(a):
        a("s_lshl_b32 s76, s67, 1")
        a("s_add_u32 s76, s76, s71")
        a("s_lshl_b32 s76, s76, 5")
        a("s_lshl_b32 s70, s66, 1")
        a("s_add_u32 s76, s76, s70")
        a("s_add_u32 s76, s76, s72")
        a("s_lshl_b32 s76, s76, 8")
        a(f"s_add_u32 s76, s76, {mb(MB_Y)}")
    def dep_o(a, block):
        if block == "addr":
            a("s_lshr_b32 s59, s66, 1")
            a("s_mul_i32 s59, s59, 5")
            a("s_add_u32 s59, s59, s69")
            a("s_mul_i32 s59, s59, 6")
            a("s_lshl_b32 s70, s67, 1")
            a("s_add_u32 s59, s59, s70")
            a("s_and_b32 s70, s66, 1")
            a("s_add_u32 s59, s59, s70")
            a("s_lshl_b32 s59, s59, 8")
            a(f"s_add_u32 s59, s59, {mb(MB_O)}")
            a("s_lshl_b32 s64, s53, 1")
        else:
            sync.spin(a, 48, "s59", "s64", 8, sleep=1)
            a.stamp_mid(6)
    if FUSED: k_mlp2f.mlp2_body(a, "s3", 3, dep_u, dep_o, ybox, part=2, post=(lambda a: a("buffer_load_dword v61, v60, s[48:51], s77 offen sc1")) if COOP_U else None)
    else: k_mlp2.mlp2_body(a, "s3", 3, dep_u, ybox)
    if PF3:
        a("s_branch L_done")
        a.label("L_aux0")
        a("v_lshrrev_b32 v5, 1, v0")
        a("v_lshlrev_b32 v5, 12, v5")
        a("v_and_b32 v6, 1, v0")
        a("v_lshl_add_u32 v5, v6, 7, v5")
        a("s_and_b32 s66, s3, 7")
        a("s_mul_i32 s66, s66, 10")
        for r in range(PF3):
            a(f"s_add_u32 s69, s68, {8*r}")
            a("s_mul_i32 s70, s69, 205")
            a("s_lshr_b32 s70, s70, 11")
            a("s_mul_i32 s71, s70, 10")
            a("s_sub_u32 s69, s69, s71")
            a("s_add_u32 s69, s69, s66")
            a("s_lshr_b32 s71, s69, 4")
            a("s_and_b32 s69, s69, 15")
            a("s_mul_i32 s71, s71, 29")
            a("s_add_u32 s70, s70, s71")
            a(f"s_add_u32 s70, s70, {2*PF2}")
            a("s_lshl_b32 s70, s70, 17")
            a("s_lshl_b32 s69, s69, 8")
            a("s_add_u32 s69, s69, s70")
            a("v_add_u32 v7, s69, v5")
            a(f"buffer_load_dword v{60+(r&1)}, v7, s[40:43], 0 offen")
            a("s_waitcnt vmcnt(1)")
    a.label("L_done")
    if DIAG is not None:
        wg, slot, kind = DIAG
        Ld = a.newlabel("diag"); Lw = a.newlabel("diagw")
        a(f"s_cmp_lg_u32 s2, {wg}")
        a(f"s_cbranch_scc1 {Ld}")
        a("s_waitcnt vmcnt(0)")
        if slot == "end":
            a.stamp_mid(0); slot = 0
        if slot is None:
            a("s_mov_b32 s70, 0")
        elif kind == "t":
            a(f"s_sub_u32 s70, s{4+slot}, s88")
            a("s_mul_i32 s70, s70, 10")
        else:
            a(f"s_lshr_b32 s70, s{93+slot}, 1")
        a("s_add_u32 s70, s70, 20000")
        a.label(Lw)
        a("s_sleep 1")
        a("s_memrealtime s[90:91]")
        a("s_waitcnt lgkmcnt(0)")
        a("s_sub_u32 s71, s90, s88")
        a("s_cmp_lt_u32 s71, s70")
        a(f"s_cbranch_scc1 {Lw}")
        a.label(Ld)
    a.end()
    a.label("L_end")
    a("s_endpgm")
    a.label("L_code_end")

def build(stamp=False):
    a = Asm()
    a.stamp = stamp
    fin = NAME + "_kernel"
    out = HEADER
    out += (f"; @launch kernel={fin} grid=(512,1,1) block=(256,1,1) lds=81920\n" if LIST else "; @launch grid=(512,1,1) block=(256,1,1) lds=81920\n")
    out += DOC
    out += '.amdgcn_target "amdgcn-amd-amdhsa--gfx950"\n.text\n'
    gen_main(a, fin)
    if PRE:
        out = out.replace("; @launch kernel=", "; @launch kernel=pre_kernel grid=(256,1,1) block=(256,1,1) lds=0\n; @launch kernel=", 1)
        st = a.stamp; a.stamp = False
        a.kernel_begin("pre_kernel")
        if PRE > 1:
            a("s_cmp_ge_u32 s2, 256")
            a("s_cbranch_scc1 L_pre_end")
            a.load_kernargs()
            sync.wave_setup(a)
            k_front.xw_touch(a, "s2")
            a("s_getpc_b64 s[80:81]")
            a.label("L_pc2")
            a(f"s_sub_u32 s80, s80, L_pc2 - {fin}")
            a("s_subb_u32 s81, s81, 0")
            a(f"s_mov_b32 s82, L_code_end - {fin}")
            a("s_mov_b32 s83, 0x00020000")
            a("s_lshr_b32 s72, s2, 3")
            a("s_lshl_b32 s72, s72, 2")
            a("s_add_u32 s72, s72, s52")
            a("s_lshl_b32 s72, s72, 13")
            a("v_lshlrev_b32 v5, 7, v0")
            a("v_add_u32 v5, s72, v5")
            a("buffer_load_dword v58, v5, s[80:83], 0 offen")
            a("s_waitcnt vmcnt(0)")
            a.label("L_pre_end")
        a("s_endpgm")
        a.stamp = st
    out += a.text()
    out += '.section .rodata,"a"\n'
    if PRE: out += ".p2align 6\n" + descriptor("pre_kernel", 64, None)
    out += ".p2align 6\n" + descriptor(fin, 256, None)
    return out

if __name__ == "__main__":
    open("main.s", "w").write(build())
    open("stamp.s", "w").write(build(True))
    open("main_l.s", "w").write(build("lite"))
    LIST = False
    open("final.s", "w").write(build())
    LIST = True
    VARS = eval(open("vars.txt").read())
    import copy
    for nm, kv in VARS.items():
        saved = {}
        for k, v in kv.items():
            mod, name = (globals()[k.split(".")[0]].__dict__, k.split(".")[1]) if "." in k else (globals(), k)
            saved[k] = (mod, name, mod[name]); mod[name] = v
        open(f"gen/{nm}.s", "w").write(build(False))
        open(f"gen/{nm}_s.s", "w").write(build(True))
        open(f"gen/{nm}_l.s", "w").write(build("lite"))
        for mod, name, v in saved.values(): mod[name] = v
    print("wrote")
```

```python
import sys
from common import *
import sync, k_front, k_mlp1, k_mlp1y, k_mlp2, k_attn, k_final, k_final2, k_mlp2f, k_help
from sync import mb, MB_U, MB_H, MB_QKV, MB_O, MB_Y, MB_G, MB_P, MB_E

HEADER = open("cdna_kernels/" + NAME + ".s.ref").read().split("; Override launch geometry")[0]
N_WO = 18
W2_TOUCH = False
FRONT_ONLY = False
PARTNER = True
A_EXIT = False
PF1 = 0
PFN1 = 16
PFS1 = 0
PF3 = 0
QPOLL_ALL = False
UPOLL_ALL = True
HINT2 = 0
FUSED = True
INIT_LOW = 2
W1HEAD = True
PRE = 0
M1Y = True
COOP = False
COOP_H = False
COOP_U = False
BPRIO = 0
INIT_LATE = True
PFMODE = 'col'
PFH = False
SLP_H = 4
HEAD_PF = 0
CODE_PF = True
B_EXIT = False
DIAG = None
PF_AFTER_H = True
TLBW = 0
PFW1 = True
XW = 2
XWD = 1
LIST = True
NO_FINAL = False
PFD = 1
LN_WAIT = True
PF2 = 7
EARLY = 1
EARLY_FL = ''
PROMOTE = False
WAIT_QKV = True
HINT_AT = 3
SLP_HINT = 4
SLP_FIN = 2
W2_TAIL = 0
AUX_G0 = 16
AUX_NT = ''

DOC = """;
;                         240 tiles) scaled by (1-gate) with the output projection of gate*o appended along K
"""

def gen_main(a, name):
    a.kernel_begin(name)
    a("s_cmp_ge_u32 s2, 512")
    a("s_cbranch_scc1 L_end")
    a.load_kernargs()
    sync.wave_setup(a)
    a.srd(48, P_WS, WS_SIZE)
    a.srd(84, P_DBG, 256)
    a("s_cmp_ge_u32 s2, 256")
    a("s_cbranch_scc1 L_slotB")
    a("s_setprio 3")
    a("s_cmp_ge_u32 s2, 192")
    a("s_cbranch_scc1 L_ln")
    def hint2(a):
        L = a.newlabel("hint")
        a("s_cmp_lg_u32 s52, 0")
        a(f"s_cbranch_scc1 {L}")
        a("s_lshl_b32 s76, s2, 8")
        a(f"s_add_u32 s76, s76, {mb(MB_P)}")
        a("v_mov_b32 v8, 0")
        a("v_mov_b32 v9, 1")
        a("s_mov_b64 exec, 1")
        a("buffer_store_dword v9, v8, s[48:51], s76 offen offset:4 sc1")
        a("s_mov_b64 exec, -1")
        a.label(L)
    def pub_qkv(a):
        a("s_and_b32 s72, s56, 3")
        a("s_lshl_b32 s72, s72, 12")
        a("s_and_b32 s73, s55, 12")
        a("s_add_u32 s72, s72, s73")
        a(f"s_add_u32 s72, s72, {mb(MB_QKV)}")
        if HINT2 == 1: hint2(a)
        sync.publish(a, 72, 16, init=True)
        if HINT2 == 2: hint2(a)
    def hint(a):
        L = a.newlabel("hint")
        a("s_lshl_b32 s76, s52, 3")
        a("s_add_u32 s76, s76, s60")
        a(f"s_cmp_lg_u32 s76, {HINT_AT}")
        a(f"s_cbranch_scc1 {L}")
        a("s_lshl_b32 s76, s2, 8")
        a(f"s_add_u32 s76, s76, {mb(MB_P)}")
        a("v_mov_b32 v8, 0")
        a("v_mov_b32 v9, 1")
        a("s_mov_b64 exec, 1")
        a("buffer_store_dword v9, v8, s[48:51], s76 offen sc1")
        a("s_mov_b64 exec, -1")
        a.label(L)
    k_front.qkv_body(a, "s2", pub_qkv, hint if WAIT_QKV else None)
    a("s_branch L_attn")
    a.label("L_ln")
    a("s_sub_u32 s3, s2, 192")
    def pub_h(a):
        a("s_lshr_b32 s72, s58, 4")
        a("s_lshl_b32 s72, s72, 13")
        a(f"s_add_u32 s72, s72, {mb(MB_H)}")
        sync.publish(a, 72, 32, init=True)
    k_front.ln_body(a, "s3", pub_h)
    a.stamp_mid(6)
    k_front.gate_own(a)
    a(f"s_cmp_ge_u32 s3, {N_WO}")
    a("s_cbranch_scc1 L_nowo")
    k_front.wo_body(a, "s3")
    a.label("L_nowo")
    a(f"s_mov_b32 s72, {mb(MB_G)}")
    sync.publish(a, 72, 32, init='late')
    a.label("L_attn")
    a.stamp_mid(2)
    if FRONT_ONLY or A_EXIT: a("s_branch L_done")
    def dep_qkv(a):
        a("s_lshr_b32 s72, s61, 3")
        a("s_lshl_b32 s72, s72, 4")
        a("s_bfe_u32 s73, s2, 0x40003")
        a("s_add_u32 s72, s72, s73")
        a("s_lshl_b32 s72, s72, 8")
        a(f"s_add_u32 s79, s72, {mb(MB_QKV)}")
        a("s_lshr_b32 s73, s2, 6")
        a("s_lshl_b32 s73, s73, 2")
        a("s_add_u32 s72, s79, s73")
        if QPOLL_ALL:
            sync.poll(a, None, 0, vt=8, init='late')
            sync.spin(a, 48, "s72", 12, 8, sleep=2)
        else:
            sync.poll(a, 72, 12, vt=8, sleep=2, init='late')
        if HINT2 == 3: hint2(a)
    def dep_qkv2(a):
        L = a.newlabel("q2"); Ld = a.newlabel("q2d")
        a("s_mov_b32 s76, 0")
        a.label(L)
        a("s_buffer_load_dwordx4 s[72:75], s[48:51], s79 glc")
        a("s_add_u32 s76, s76, 1")
        a("s_waitcnt lgkmcnt(0)")
        a("s_min_u32 s72, s72, s73")
        a("s_min_u32 s74, s74, s75")
        a("s_min_u32 s72, s72, s74")
        a("s_cmp_ge_u32 s72, 12")
        a(f"s_cbranch_scc1 {Ld}")
        a("s_sleep 4")
        a(f"s_cmp_lt_u32 s76, {sync.SPIN_MAX}")
        a(f"s_cbranch_scc1 {L}")
        a.label(Ld)
    def dep_g(a):
        a("s_bfe_u32 s72, s2, 0x50003")
        a("s_lshl_b32 s72, s72, 8")
        a(f"s_add_u32 s72, s72, {mb(MB_G)}")
        sync.spin(a, 48, "s72", 64, 0)
    def pub_o_f(a):
        a("s_cmp_gt_u32 s61, 7")
        a("s_cselect_b32 s72, 1, 0")
        for hd in (14, 19, 24):
            a(f"s_cmp_gt_u32 s61, {hd}")
            a("s_addc_u32 s72, s72, 0")
        a("s_lshr_b32 s73, s2, 5")
        a("s_mul_i32 s73, s73, 5")
        a("s_add_u32 s72, s72, s73")
        a(f"s_mul_i32 s72, s72, {6*256}")
        a(f"s_add_u32 s72, s72, {mb(MB_O)}")
        a(f"s_lshr_b32 s73, {(1<<7)|(1<<14)|(1<<19)|(1<<24)}, s61")
        a("s_and_b32 s73, s73, 1")
        a("s_cselect_b32 s73, 0xfff, 63")
        sync.publish(a, 72, "s73")
    def pub_o(a):
        if FUSED: return pub_o_f(a)
        a("s_lshr_b32 s72, s2, 5")
        a("s_lshl_b32 s72, s72, 13")
        a("s_lshr_b32 s73, s61, 3")
        a("s_lshl_b32 s73, s73, 2")
        a("s_add_u32 s72, s72, s73")
        a(f"s_add_u32 s72, s72, {mb(MB_O)}")
        sync.publish(a, 72, 24)
    def last_extra(a):
        k_final2.wof_setup(a, "s2", 147)
        return [k_final2.wof_load(k, 147) for k in range(27)]
    TV = 140
    def tsetup(a):
        a.srd(80, P_W2, S*F*2)
        a("s_lshr_b32 s72, s2, 3")
        a("s_lshl_b32 s72, s72, 2")
        a("s_add_u32 s72, s72, s52")
        a("s_mul_i32 s73, s72, 205")
        a("s_lshr_b32 s73, s73, 11")
        a("s_mul_i32 s76, s73, 10")
        a("s_sub_u32 s72, s72, s76")
        a("s_and_b32 s76, s2, 7")
        a("s_mul_i32 s76, s76, 10")
        a("s_add_u32 s72, s72, s76")
        a("s_lshr_b32 s76, s72, 4")
        a("s_and_b32 s72, s72, 15")
        a(f"s_mul_i32 s76, s76, {928*4096}")
        a("s_lshl_b32 s72, s72, 8")
        a("s_add_u32 s76, s76, s72")
        a("s_lshl_b32 s72, s73, 17")
        a("s_add_u32 s76, s76, s72")
        a("s_cmp_ge_u32 s73, 12")
        a("s_cselect_b32 s82, 0, s82")
        a(f"v_lshrrev_b32 v{TV}, 1, v0")
        a(f"v_lshlrev_b32 v{TV}, 12, v{TV}")
        a(f"v_and_b32 v{TV+1}, 1, v0")
        a(f"v_lshl_add_u32 v{TV}, v{TV+1}, 7, v{TV}")
        a(f"v_add_u32 v{TV}, s76, v{TV}")
        a("s_mov_b32 s78, s73")
    def touch(a):
        a("s_cmp_ge_u32 s78, 29")
        a("s_cselect_b32 s82, 0, s82")
        a(f"buffer_load_dword v{TV+1}, v{TV}, s[80:83], 0 offen")
        a(f"v_add_u32 v{TV}, {12*32*4096}, v{TV}")
        a("s_add_u32 s78, s78, 12")
    k_attn.attn_body(a, "s2", dep_qkv, pub_o, sm=3, tsetup=tsetup if W2_TOUCH else None, touch=touch if W2_TOUCH else None, dep_g=dep_g, dep2=dep_qkv2, last_extra=None if FUSED else last_extra)
    a.stamp_mid(5)
    a("s_cmp_ge_u32 s2, 192")
    a("s_cbranch_scc1 L_done")
    if NO_FINAL: a("s_branch L_done")
    def dep_y(a, i):
        L = a.newlabel("y"); Ld = a.newlabel("yd")
        if i == 0:
            a("s_lshl_b32 s76, s54, 5")
            a("s_add_u32 s76, s76, s53")
            a("s_lshl_b32 s76, s76, 8")
            a(f"s_add_u32 s76, s76, {mb(MB_Y)}")
            a("s_mov_b32 s77, 0")
        else:
            a(f"s_cmp_ge_u32 s{72+i}, 5")
            a(f"s_cbranch_scc1 {Ld}")
        a.label(L)
        a("s_buffer_load_dwordx4 s[72:75], s[48:51], s76 glc")
        a("s_add_u32 s77, s77, 1")
        a("s_waitcnt lgkmcnt(0)")
        a(f"s_cmp_ge_u32 s{72+i}, 5")
        a(f"s_cbranch_scc1 {Ld}")
        if i == 0: a(f"s_sleep {SLP_FIN}")
        a(f"s_cmp_lt_u32 s77, {sync.SPIN_MAX}")
        a(f"s_cbranch_scc1 {L}")
        a.label(Ld)
        if i == 2: a.stamp_mid(7)
    def boxes(a):
        a("s_lshr_b32 s66, s53, 2")
        a("s_lshl_b32 s66, s66, 5")
        a("s_lshr_b32 s67, s2, 3")
        a("s_add_u32 s66, s66, s67")
        a("s_lshl_b32 s66, s66, 8")
        a("s_lshl_b32 s67, s52, 2")
        a("s_add_u32 s66, s66, s67")
        a(f"s_add_u32 s66, s66, {mb(MB_O)}")
        a("s_lshl_b32 s67, s54, 5")
        a("s_add_u32 s67, s67, s53")
        a("s_lshl_b32 s67, s67, 8")
        a(f"s_add_u32 s67, s67, {mb(MB_Y)}")
    if FUSED: k_final.final_body(a, "s2", dep_y)
    else: k_final2.final_body(a, "s2", boxes, sync.SPIN_MAX)
    a("s_branch L_done")
    a.label("L_slotB")
    a("s_sub_u32 s3, s2, 256")
    if INIT_LOW == 1:
        a(f"s_cmp_gt_u32 s3, {sync.N_LATE}")
        a("s_cbranch_scc1 L_noinit")
        a("s_mov_b32 s78, s3")
    elif INIT_LOW == 2:
        a("s_cmp_eq_u32 s3, 255")
        a(f"s_cselect_b32 s78, {sync.N_LATE}, s3")
        a(f"s_cmp_eq_u32 s3, {sync.N_LATE}")
        a("s_cselect_b32 s78, 99, s78")
        a(f"s_cmp_gt_u32 s78, {sync.N_LATE}")
        a("s_cbranch_scc1 L_noinit")
    else:
        a(f"s_cmp_lt_u32 s3, {255 - sync.N_LATE}")
        a("s_cbranch_scc1 L_noinit")
        a(f"s_sub_u32 s78, s3, {255 - sync.N_LATE}")
    a("s_setprio 3")
    sync.init_mailboxes(a, "s78")
    a("s_setprio 0")
    a.stamp_mid(0)
    a.label("L_noinit")
    if CODE_PF:
        Lc = a.newlabel("cpf")
        a("s_lshr_b32 s72, s3, 4")
        a("s_cmp_lg_u32 s72, 2")
        a(f"s_cbranch_scc1 {Lc}")
        a("s_getpc_b64 s[80:81]")
        a.label("L_pc")
        a(f"s_sub_u32 s80, s80, L_pc - {name}")
        a("s_subb_u32 s81, s81, 0")
        a(f"s_mov_b32 s82, L_code_end - {name}")
        a("s_mov_b32 s83, 0x00020000")
        a("s_bfe_u32 s72, s3, 0x10003")
        a("s_lshl_b32 s72, s72, 2")
        a("s_add_u32 s72, s72, s52")
        a("s_lshl_b32 s72, s72, 13")
        a("v_lshlrev_b32 v5, 7, v0")
        a("v_add_u32 v5, s72, v5")
        a("buffer_load_dword v58, v5, s[80:83], 0 offen")
        a.label(Lc)
    if WAIT_QKV:
        Lz = a.newlabel("hz")
        a("s_cmp_lg_u32 s52, 0")
        a(f"s_cbranch_scc1 {Lz}")
        a("s_lshl_b32 s72, s3, 8")
        a(f"s_add_u32 s72, s72, {mb(MB_P)}")
        a("v_lshlrev_b32 v5, 4, v0")
        for i in range(4): a(f"v_mov_b32 v{8+i}, 0")
        a("s_mov_b64 exec, 0xff")
        a("buffer_store_dwordx4 v[8:11], v5, s[48:51], s72 offen sc1")
        a("s_mov_b64 exec, -1")
        a.label(Lz)
    if XW == 1: k_front.xw_touch(a, "s3")
    if XW == 2: k_front.xw_touch2(a, "s3", XWD)
    if W1HEAD:
        Lh = a.newlabel("w1h")
        a("s_cmp_lt_u32 s3, 192")
        a(f"s_cbranch_scc1 {Lh}")
        a("s_cmp_ge_u32 s53, 30")
        a(f"s_cbranch_scc1 {Lh}")
        a.srd(80, P_W1, S*F*2)
        a("s_mul_i32 s57, s53, 205")
        a("s_lshr_b32 s57, s57, 10")
        a("s_mul_i32 s58, s57, 5")
        a("s_sub_u32 s58, s53, s58")
        a("s_and_b32 s56, s3, 7")
        a("s_mul_i32 s56, s56, 9")
        a("s_lshr_b32 s56, s56, 1")
        a("s_add_u32 s56, s56, s58")
        a("s_lshl_b32 s56, s56, 8")
        a(f"s_mul_i32 s57, s57, {32*F*2}")
        a("s_add_u32 s56, s56, s57")
        a("v_lshrrev_b32 v5, 1, v0")
        a(f"v_mul_u32_u24 v5, {F*2}, v5")
        a("v_and_b32 v6, 1, v0")
        a("v_lshl_add_u32 v5, v6, 7, v5")
        a("buffer_load_dword v62, v5, s[80:83], s56 offen")
        a.label(Lh)
    if COOP:
        Le = a.newlabel("head")
        a(f"s_cmp_ge_u32 s3, {k_mlp1.MLP1_GRID}")
        a(f"s_cbranch_scc1 {Le}")
        a.srd(80, P_W1, S*F*2)
        a("s_and_b32 s66, s3, 7")
        a("s_mul_i32 s66, s66, 27")
        a("s_lshr_b32 s67, s3, 3")
        a("s_add_u32 s67, s67, s66")
        a("s_mul_i32 s70, s67, 171")
        a("s_lshr_b32 s70, s70, 10")
        a("s_mul_i32 s68, s70, 6")
        a("s_sub_u32 s69, s67, s68")
        a("s_lshl_b32 s66, s70, 8")
        a("s_lshl_b32 s68, s52, 4")
        a("s_add_u32 s67, s69, s68")
        a(f"s_mul_i32 s67, s67, {32*F*2}")
        a("s_add_u32 s66, s66, s67")
        a("v_lshrrev_b32 v5, 1, v0")
        a(f"v_mul_u32_u24 v5, {F*2}, v5")
        a("v_and_b32 v6, 1, v0")
        a("v_lshl_add_u32 v5, v6, 7, v5")
        a("buffer_load_dword v62, v5, s[80:83], s66 offen")
        a("s_cmp_ge_u32 s69, 3")
        a(f"s_mov_b32 s67, {3*32*F*2}")
        a(f"s_cselect_b32 s67, {(-3*32*F*2) & 0xffffffff}, s67")
        a("s_add_u32 s67, s67, s66")
        a("s_lshr_b32 s68, 0x80402010, s70")
        a("s_cmp_lt_u32 s70, 32")
        a("s_cselect_b32 s68, s68, 0")
        a("s_and_b32 s68, s68, 1")
        a(f"s_cbranch_scc0 {Le}")
        a("buffer_load_dword v63, v5, s[80:83], s67 offen")
        a.label(Le)
    if TLBW:
        a("s_lshr_b32 s53, s3, 3")
        a("s_lshl_b32 s53, s53, 2")
        a("s_add_u32 s53, s53, s52")
        a("s_lshl_b32 s53, s53, 6")
        a("v_add_u32 v5, s53, v0")
        a(f"v_lshlrev_b32 v5, {TLBW}, v5")
        a.srd(80, P_W1, S*F*2)
        a("buffer_load_dword v62, v5, s[80:83], 0 offen nt")
        a.srd(80, P_W2, S*F*2)
        a("buffer_load_dword v63, v5, s[80:83], 0 offen nt")
        a.srd(80, P_WS, CNT_OFF)
        a("buffer_load_dword v59, v5, s[80:83], 0 offen nt")
    if k_mlp1y.SHED:
        Lp = a.newlabel("pre")
        a("s_cmp_lt_u32 s3, 220")
        a(f"s_cbranch_scc1 {Lp}")
        a("s_sub_u32 s78, 255, s3")
        k_help.preload(a, "s78")
        a.label(Lp)
    a(f"s_setprio {BPRIO}")
    if INIT_LATE:
        a(f"s_cmp_lt_u32 s3, {k_mlp1.MLP1_GRID}")
        a("s_cbranch_scc1 L_mlp1")
    a("s_waitcnt vmcnt(0)")
    sync.poll(a, None, 0, vt=5, init=True)
    a.stamp_mid(5)
    a("s_cmp_lt_u32 s3, 192")
    a("s_cbranch_scc1 L_mlp1")
    if PF_AFTER_H:
        a("s_bfe_u32 s72, s3, 0x20001")
        a("s_lshl_b32 s72, s72, 5")
        a("s_and_b32 s73, s3, 31")
        a("s_add_u32 s72, s72, s73")
        a("s_lshl_b32 s72, s72, 8")
        a(f"s_add_u32 s72, s72, {mb(MB_H)}")
        sync.poll(a, 72, 16, vt=5, sleep=4)
    a.srd(40, P_W1, S*F*2)
    a("s_sub_u32 s67, 255, s3")
    a(f"s_mul_i32 s66, s52, {512*F*2}")
    a("s_lshl_b32 s68, s67, 13")
    a("s_add_u32 s66, s66, s68")
    a("v_lshlrev_b32 v5, 7, v0")
    a("v_add_u32 v5, s66, v5")
    for r in range(PF1):
        a(f"buffer_load_dword v{60+(r&1)}, v5, s[40:43], 0 offen")
        a(f"v_add_u32 v5, {64*8192}, v5")
        if r >= PFD: a(f"s_waitcnt vmcnt({PFD})")
    a(f"s_cmp_ge_u32 s3, {k_mlp1.MLP1_GRID}")
    a("s_cbranch_scc1 L_aux")
    a.label("L_mlp1")
    if B_EXIT: a("s_branch L_done")
    def dep_h(a):
        a("s_lshl_b32 s72, s52, 5")
        a("s_and_b32 s73, s3, 31")
        a("s_add_u32 s72, s72, s73")
        a("s_lshl_b32 s72, s72, 8")
        a(f"s_add_u32 s72, s72, {mb(MB_H)}")
        sync.spin(a, 48, "s72", 16, 5, sleep=SLP_H)
    def dep_h3(a):
        a("s_and_b32 s72, s3, 31")
        a("s_lshl_b32 s72, s72, 8")
        a(f"s_add_u32 s72, s72, {mb(MB_H + 96)}")
        sync.spin(a, 48, "s72", 16, 5, sleep=SLP_H)
    def dep_h_touch(a, part=0):
        if INIT_LATE and part != 2:
            a("s_waitcnt vmcnt(0)")
            sync.poll(a, None, 0, vt=12, init=True)
        if part == 1: return
        dep_h(a)
        a.stamp_mid(5)
        if COOP_H:
            a("s_and_b32 s72, s3, 7")
            a("s_mul_i32 s72, s72, 9")
            a("s_lshr_b32 s72, s72, 1")
            a("s_sub_u32 s72, s66, s72")
            a("s_lshl_b32 s72, s72, 6")
            a("v_add_u32 v60, s72, v0")
            a("v_mul_u32_u24 v61, 2731, v60")
            a("v_lshrrev_b32 v61, 16, v61")
            a("v_mul_u32_u24 v61, 120, v61")
            a("v_add_lshl_u32 v60, v60, v61, 7")
            a(f"buffer_load_dword v61, v60, s[48:51], s{k_mlp1.S_F} offen sc1")
    def hold(a, word=0):
        L = a.newlabel("hold"); Ld = a.newlabel("holdd")
        a("s_cmp_ge_u32 s3, 192")
        a(f"s_cbranch_scc1 {Ld}")
        a("s_lshl_b32 s72, s3, 8")
        a(f"s_add_u32 s72, s72, {mb(MB_P) + 4*word}")
        a("s_and_b32 s73, s3, 63")
        a("s_lshl_b32 s73, s73, 8")
        a(f"s_add_u32 s73, s73, {mb(MB_QKV)}")
        a("s_mov_b32 s74, 0")
        a.label(L)
        a("s_buffer_load_dword s75, s[48:51], s72 glc")
        a("s_add_u32 s74, s74, 1")
        a("s_waitcnt lgkmcnt(0)")
        a("s_cmp_lg_u32 s75, 0")
        a(f"s_cbranch_scc1 {Ld}")
        a("s_sleep 4")
        a("s_and_b32 s75, s74, 15")
        a(f"s_cbranch_scc1 {L}")
        a("s_buffer_load_dword s75, s[48:51], s73 glc")
        a("s_waitcnt lgkmcnt(0)")
        a("s_cmp_ge_u32 s75, 12")
        a(f"s_cbranch_scc1 {Ld}")
        a(f"s_cmp_lt_u32 s74, {sync.SPIN_MAX}")
        a(f"s_cbranch_scc1 {L}")
        a.label(Ld)
    def w2_tail(a):
        a.srd(80, P_W2, S*F*2)
        a("s_lshr_b32 s72, s3, 3")
        a("s_mul_i32 s73, s72, 86")
        a("s_lshr_b32 s73, s73, 8")
        a("s_mul_i32 s76, s73, 3")
        a("s_sub_u32 s72, s72, s76")
        a("s_and_b32 s76, s3, 7")
        a("s_mul_i32 s76, s76, 10")
        a("s_add_u32 s73, s73, s76")
        a("s_lshr_b32 s76, s73, 4")
        a("s_and_b32 s73, s73, 15")
        a(f"s_mul_i32 s76, s76, {928*4096}")
        a("s_lshl_b32 s73, s73, 8")
        a("s_add_u32 s76, s76, s73")
        a("s_lshl_b32 s72, s72, 2")
        a("s_add_u32 s72, s72, s52")
        a(f"s_add_u32 s72, s72, {29 - 12*W2_TAIL}")
        a("s_lshl_b32 s72, s72, 17")
        a("s_add_u32 s76, s76, s72")
        a("v_lshrrev_b32 v60, 1, v0")
        a("v_lshlrev_b32 v60, 12, v60")
        a("v_and_b32 v61, 1, v0")
        a("v_lshl_add_u32 v60, v61, 7, v60")
        a("v_add_u32 v60, s76, v60")
        for e in range(W2_TAIL):
            a(f"buffer_load_dword v{61+e}, v60, s[80:83], 0 offen")
            a(f"v_add_u32 v60, {12*32*4096}, v60")
    def checks(a, wave):
        Lg = a.newlabel("g")
        a(f"s_cmp_lg_u32 s52, {wave}")
        a(f"s_cbranch_scc1 {Lg}")
        sync.spin_init(a, 14, True)
        a("s_bfe_u32 s73, s2, 0x50003")
        a("s_lshl_b32 s73, s73, 8")
        a(f"s_add_u32 s73, s73, {mb(MB_G)}")
        sync.spin(a, 48, "s73", 64, 0)
        a.label(Lg)
    def pub_u(a, part):
        if part == 0:
            a("s_mul_i32 s18, s66, 565")
            a("s_lshr_b32 s18, s18, 12")
            a("s_lshr_b32 s19, s67, 1")
            a("s_mul_i32 s19, s19, 5")
            a("s_add_u32 s18, s18, s19")
            a("s_lshl_b32 s18, s18, 12")
            a(f"s_add_u32 s18, s18, {mb(MB_U)}")
            a("s_lshr_b32 s19, 0x204080, s66")
            a("s_cmp_lt_u32 s66, 32")
            a("s_cselect_b32 s19, s19, 0")
            a("s_and_b32 s19, s19, 1")
            a("s_cselect_b32 s19, -1, 0xffff")
        else:
            checks(a, 1)
            sync.publish(a, 18, "s19", vt=14)
    def ebox(a, wait=False):
        a("s_lshl_b32 s65, s59, 8")
        a("s_lshl_b32 s70, s52, 2")
        a("s_add_u32 s65, s65, s70")
        a(f"s_add_u32 s65, s65, {mb(MB_E)}")
        sync.spin_init(a, 14, True)
        if wait: sync.spin(a, 48, "s65", 1, 0, sleep=2)
    def early2(a):
        a("s_barrier")
        k_mlp2f.mlp2_body(a, "s3", 3, None, None, None, part=1)
    (k_mlp1y if M1Y else k_mlp1).mlp1_body(a, "s3", dep_h_touch, pub_u, sm=0, epi=early2, hold=hold if WAIT_QKV else None, hold2=(lambda a: hold(a, 1)) if HINT2 else None, ebox=ebox)
    a.stamp_mid(2)
    a("s_branch L_mlp2")
    a.label("L_aux")
    if B_EXIT: a("s_branch L_done")
    if k_mlp1y.SHED:
        a("s_cmp_ge_u32 s67, 36")
        a("s_cbranch_scc1 L_nohelp")
        a("s_mov_b32 s78, s67")
        k_help.body_all(a, "s78", dep_h3, ebox)
        a.label("L_nohelp")
        a.stamp_mid(6)
        a("s_setprio 0")
        a("s_sub_u32 s67, 255, s3")
    if PFMODE == "col":
        a("s_and_b32 s66, s3, 7")
        a("s_mul_i32 s66, s66, 9")
        a("s_lshr_b32 s66, s66, 1")
        a("s_lshr_b32 s67, s67, 3")
        a("s_add_u32 s66, s66, s67")
        a("s_lshl_b32 s66, s66, 8")
        a(f"s_mul_i32 s69, s52, {(32 if M1Y else 512)*F*2}")
        a("s_add_u32 s66, s66, s69")
        a("v_lshrrev_b32 v5, 1, v0")
        a(f"v_mul_u32_u24 v5, {F*2}, v5")
        a("v_and_b32 v6, 1, v0")
        a("v_lshl_add_u32 v5, v6, 7, v5")
        if PFH:
            dep_h(a)
            a(f"s_mul_i32 s69, s52, {32*18*1024}")
            a("s_lshl_b32 s70, s67, 13")
            a("s_add_u32 s69, s69, s70")
            a(f"s_add_u32 s69, s69, {HT_OFF}")
            a("v_lshlrev_b32 v7, 7, v0")
        g0 = 6 if COOP else 0
        a(f"s_add_u32 s66, s66, {(g0*32 + PFS1*128)*F*2}")
        if PFH and COOP_H: a(f"s_add_u32 s69, s69, {12*18*1024}")
        for n in range(min(PFN1, 16 - g0)):
            a(f"buffer_load_dword v{60+(n&1)}, v5, s[40:43], s66 offen")
            a(f"s_add_u32 s66, s66, {(128 if M1Y else 32)*F*2}")
            if PFH and n < (9 if COOP_H else 14):
                a(f"buffer_load_dword v{62+(n&1)}, v7, s[48:51], s69 offen sc1")
                a(f"s_add_u32 s69, s69, {5*8192}")
            a(f"s_waitcnt vmcnt({PFD})")
        a.stamp_mid(1)
        a.srd(40, P_W2, S*F*2)
        a("s_lshl_b32 s68, s67, 2")
        a("s_add_u32 s68, s68, s52")
        a("s_and_b32 s66, s3, 7")
        a("s_mul_i32 s66, s66, 10")
        a("s_lshr_b32 s69, s68, 1")
        a("s_add_u32 s66, s66, s69")
        a("s_lshr_b32 s67, s66, 4")
        a("s_and_b32 s66, s66, 15")
        a(f"s_mul_i32 s67, s67, {928*4096}")
        a("s_lshl_b32 s66, s66, 8")
        a("s_add_u32 s67, s67, s66")
        a("s_and_b32 s66, s52, 1")
        a("s_lshl_b32 s66, s66, 17")
        a("s_add_u32 s67, s67, s66")
        a("v_lshrrev_b32 v5, 1, v0")
        a("v_lshlrev_b32 v5, 12, v5")
        a("v_and_b32 v6, 1, v0")
        a("v_lshl_add_u32 v5, v6, 7, v5")
        a("v_add_u32 v5, s67, v5")
        for n in range(PF2):
            a(f"buffer_load_dword v{60+(n&1)}, v5, s[40:43], 0 offen")
            a(f"v_add_u32 v5, {64*4096}, v5")
            a(f"s_waitcnt vmcnt({PFD})")
    else:
        for n in range(-(-(576 - 64*PF1)//40) if PFW1 else 0):
            a(f"buffer_load_dword v{60+(n&1)}, v5, s[40:43], 0 offen")
            a(f"v_add_u32 v5, {40*8192}, v5")
            a(f"s_waitcnt vmcnt({PFD})")
        a.stamp_mid(1)
        a.srd(40, P_W2, S*F*2)
        a("s_lshl_b32 s68, s67, 2")
        a("s_add_u32 s68, s68, s52")
        a("s_lshr_b32 s66, s68, 5")
        a("s_and_b32 s68, s68, 31")
        a(f"s_mul_i32 s66, s66, {928*4096}")
        a("s_lshl_b32 s68, s68, 13")
        a("s_add_u32 s66, s66, s68")
        a("v_lshlrev_b32 v5, 7, v0")
        a("v_add_u32 v5, s66, v5")
        for n in range(PF2):
            a(f"buffer_load_dword v{60+(n&1)}, v5, s[40:43], 0 offen")
            a(f"v_add_u32 v5, {32*8192}, v5")
            a(f"s_waitcnt vmcnt({PFD})")
    a("s_waitcnt vmcnt(0)")
    a.stamp_mid(2)
    a(f"s_cmp_ge_u32 s3, {k_mlp2.MLP2_GRID}")
    a("s_cbranch_scc1 L_aux0" if PF3 else "s_cbranch_scc1 L_done")
    k_mlp2f.mlp2_body(a, "s3", 3, None, None, None, part=1)
    checks(a, 0)
    a("s_barrier")
    a.label("L_mlp2")
    if k_mlp1y.PST: a("s_branch L_done")
    def dep_u(a):
        a("s_mul_i32 s73, s67, 5")
        a("s_add_u32 s73, s73, s69")
        a("s_lshl_b32 s73, s73, 4")
        a("s_add_u32 s73, s73, s66")
        a("s_lshl_b32 s73, s73, 8")
        a(f"s_add_u32 s73, s73, {mb(MB_U)}")
        a("s_cmp_eq_u32 s69, 4")
        a("s_cselect_b32 s76, 14, 16")
        (sync.spin(a, 48, "s73", "s76", 8, sleep=1) if UPOLL_ALL else sync.poll(a, 73, "s76", vt=8, sleep=2))
        if COOP_U:
            a("s_lshr_b32 s70, s3, 3")
            a("s_mul_i32 s70, s70, 86")
            a("s_lshr_b32 s70, s70, 8")
            a("s_mul_i32 s73, s52, 10")
            a("s_add_u32 s70, s70, s73")
            a("s_lshl_b32 s70, s70, 6")
            a("s_add_u32 s70, s70, 288")
            a("v_add_u32 v60, s70, v0")
            a("v_min_u32 v60, 2783, v60")
            a("v_mul_u32_u24 v61, 5462, v60")
            a("v_lshrrev_b32 v61, 18, v61")
            a("v_mul_u32_u24 v61, 96, v61")
            a("v_add_lshl_u32 v60, v60, v61, 7")
            a(f"s_mul_i32 s70, s69, {58*18*1024}")
            a("s_mul_i32 s73, s67, 6144")
            a("s_add_u32 s70, s70, s73")
            a(f"s_add_u32 s70, s70, {U_OFF}")
            a("s_mov_b32 s77, s70")
    def ybox(a):
        a("s_lshl_b32 s76, s67, 1")
        a("s_add_u32 s76, s76, s71")
        a("s_lshl_b32 s76, s76, 5")
        a("s_lshl_b32 s70, s66, 1")
        a("s_add_u32 s76, s76, s70")
        a("s_add_u32 s76, s76, s72")
        a("s_lshl_b32 s76, s76, 8")
        a(f"s_add_u32 s76, s76, {mb(MB_Y)}")
    def dep_o(a, block):
        if block == "addr":
            a("s_lshr_b32 s59, s66, 1")
            a("s_mul_i32 s59, s59, 5")
            a("s_add_u32 s59, s59, s69")
            a("s_mul_i32 s59, s59, 6")
            a("s_lshl_b32 s70, s67, 1")
            a("s_add_u32 s59, s59, s70")
            a("s_and_b32 s70, s66, 1")
            a("s_add_u32 s59, s59, s70")
            a("s_lshl_b32 s59, s59, 8")
            a(f"s_add_u32 s59, s59, {mb(MB_O)}")
            a("s_lshl_b32 s64, s53, 1")
        else:
            sync.spin(a, 48, "s59", "s64", 8, sleep=1)
            a.stamp_mid(6)
    if FUSED: k_mlp2f.mlp2_body(a, "s3", 3, dep_u, dep_o, ybox, part=2, post=(lambda a: a("buffer_load_dword v61, v60, s[48:51], s77 offen sc1")) if COOP_U else None)
    else: k_mlp2.mlp2_body(a, "s3", 3, dep_u, ybox)
    if PF3:
        a("s_branch L_done")
        a.label("L_aux0")
        a("v_lshrrev_b32 v5, 1, v0")
        a("v_lshlrev_b32 v5, 12, v5")
        a("v_and_b32 v6, 1, v0")
        a("v_lshl_add_u32 v5, v6, 7, v5")
        a("s_and_b32 s66, s3, 7")
        a("s_mul_i32 s66, s66, 10")
        for r in range(PF3):
            a(f"s_add_u32 s69, s68, {8*r}")
            a("s_mul_i32 s70, s69, 205")
            a("s_lshr_b32 s70, s70, 11")
            a("s_mul_i32 s71, s70, 10")
            a("s_sub_u32 s69, s69, s71")
            a("s_add_u32 s69, s69, s66")
            a("s_lshr_b32 s71, s69, 4")
            a("s_and_b32 s69, s69, 15")
            a("s_mul_i32 s71, s71, 29")
            a("s_add_u32 s70, s70, s71")
            a(f"s_add_u32 s70, s70, {2*PF2}")
            a("s_lshl_b32 s70, s70, 17")
            a("s_lshl_b32 s69, s69, 8")
            a("s_add_u32 s69, s69, s70")
            a("v_add_u32 v7, s69, v5")
            a(f"buffer_load_dword v{60+(r&1)}, v7, s[40:43], 0 offen")
            a("s_waitcnt vmcnt(1)")
    a.label("L_done")
    if DIAG is not None:
        wg, slot, kind = DIAG
        Ld = a.newlabel("diag"); Lw = a.newlabel("diagw")
        a(f"s_cmp_lg_u32 s2, {wg}")
        a(f"s_cbranch_scc1 {Ld}")
        a("s_waitcnt vmcnt(0)")
        if slot == "end":
            a.stamp_mid(0); slot = 0
        if slot is None:
            a("s_mov_b32 s70, 0")
        elif kind == "t":
            a(f"s_sub_u32 s70, s{4+slot}, s88")
            a("s_mul_i32 s70, s70, 10")
        else:
            a(f"s_lshr_b32 s70, s{93+slot}, 1")
        a("s_add_u32 s70, s70, 20000")
        a.label(Lw)
        a("s_sleep 1")
        a("s_memrealtime s[90:91]")
        a("s_waitcnt lgkmcnt(0)")
        a("s_sub_u32 s71, s90, s88")
        a("s_cmp_lt_u32 s71, s70")
        a(f"s_cbranch_scc1 {Lw}")
        a.label(Ld)
    a.end()
    a.label("L_end")
    a("s_endpgm")
    a.label("L_code_end")

def build(stamp=False):
    a = Asm()
    a.stamp = stamp
    fin = NAME + "_kernel"
    out = HEADER
    out += (f"; @launch kernel={fin} grid=(512,1,1) block=(256,1,1) lds=81920\n" if LIST else "; @launch grid=(512,1,1) block=(256,1,1) lds=81920\n")
    out += DOC
    out += '.amdgcn_target "amdgcn-amd-amdhsa--gfx950"\n.text\n'
    gen_main(a, fin)
    if PRE:
        out = out.replace("; @launch kernel=", "; @launch kernel=pre_kernel grid=(256,1,1) block=(256,1,1) lds=0\n; @launch kernel=", 1)
        st = a.stamp; a.stamp = False
        a.kernel_begin("pre_kernel")
        if PRE > 1:
            a("s_cmp_ge_u32 s2, 256")
            a("s_cbranch_scc1 L_pre_end")
            a.load_kernargs()
            sync.wave_setup(a)
            k_front.xw_touch(a, "s2")
            a("s_getpc_b64 s[80:81]")
            a.label("L_pc2")
            a(f"s_sub_u32 s80, s80, L_pc2 - {fin}")
            a("s_subb_u32 s81, s81, 0")
            a(f"s_mov_b32 s82, L_code_end - {fin}")
            a("s_mov_b32 s83, 0x00020000")
            a("s_lshr_b32 s72, s2, 3")
            a("s_lshl_b32 s72, s72, 2")
            a("s_add_u32 s72, s72, s52")
            a("s_lshl_b32 s72, s72, 13")
            a("v_lshlrev_b32 v5, 7, v0")
            a("v_add_u32 v5, s72, v5")
            a("buffer_load_dword v58, v5, s[80:83], 0 offen")
            a("s_waitcnt vmcnt(0)")
            a.label("L_pre_end")
        a("s_endpgm")
        a.stamp = st
    out += a.text()
    out += '.section .rodata,"a"\n'
    if PRE: out += ".p2align 6\n" + descriptor("pre_kernel", 64, None)
    out += ".p2align 6\n" + descriptor(fin, 256, None)
    return out

if __name__ == "__main__":
    open("main.s", "w").write(build())
    open("stamp.s", "w").write(build(True))
    open("main_l.s", "w").write(build("lite"))
    LIST = False
    open("final.s", "w").write(build())
    LIST = True
    VARS = eval(open("vars.txt").read())
    import copy
    for nm, kv in VARS.items():
        saved = {}
        for k, v in kv.items():
            mod, name = (globals()[k.split(".")[0]].__dict__, k.split(".")[1]) if "." in k else (globals(), k)
            saved[k] = (mod, name, mod[name]); mod[name] = v
        open(f"gen/{nm}.s", "w").write(build(False))
        open(f"gen/{nm}_s.s", "w").write(build(True))
        open(f"gen/{nm}_l.s", "w").write(build("lite"))
        for mod, name, v in saved.values(): mod[name] = v
    print("wrote")
```

```python
import sys
from common import *
import sync, k_front, k_mlp1, k_mlp1y, k_mlp2, k_attn, k_final, k_final2, k_mlp2f, k_help
from sync import mb, MB_U, MB_H, MB_QKV, MB_O, MB_Y, MB_G, MB_P, MB_E

HEADER = open("cdna_kernels/" + NAME + ".s.ref").read().split("; Override launch geometry")[0]
N_WO = 18
W2_TOUCH = False
FRONT_ONLY = False
PARTNER = True
A_EXIT = False
PF1 = 0
LNB = False
LNB_PRIO = 3
CW = (None, None, None)
PFN1 = 16
PFS1 = 0
PF3 = 0
QPOLL_ALL = False
UPOLL_ALL = True
HINT2 = 0
FUSED = True
INIT_LOW = 2
W1HEAD = True
PRE = 0
M1Y = True
COOP = False
COOP_H = False
COOP_U = False
BPRIO = 0
INIT_LATE = True
PFMODE = 'col'
PFH = False
SLP_H = 4
HEAD_PF = 0
CODE_PF = False
B_EXIT = False
DIAG = None
PF_AFTER_H = True
TLBW = 0
PFW1 = True
XW = 2
XWD = 1
LIST = True
NO_FINAL = False
PFD = 1
LN_WAIT = True
PF2 = 7
EARLY = 1
EARLY_FL = ''
PROMOTE = False
WAIT_QKV = True
HINT_AT = 3
SLP_HINT = 4
SLP_FIN = 2
W2_TAIL = 0
AUX_G0 = 16
AUX_NT = ''

DOC = """;
;                         240 tiles) scaled by (1-gate) with the output projection of gate*o appended along K
"""

def w1_touch(a, g0, ng, vt, srd=40):
    L = a.newlabel("w1t")
    a("s_and_b32 s72, s2, 255")
    a(f"s_cmp_ge_u32 s72, {k_mlp1y.MLP1_GRID}")
    a(f"s_cbranch_scc1 {L}")
    a.srd(srd, P_W1, S*F*2)
    a("s_and_b32 s73, s72, 7")
    a("s_mul_i32 s73, s73, 27")
    a("s_lshr_b32 s72, s72, 3")
    a("s_add_u32 s72, s72, s73")
    a("s_mul_i32 s73, s72, 171")
    a("s_lshr_b32 s73, s73, 10")
    a("s_mul_i32 s74, s73, 6")
    a("s_sub_u32 s72, s72, s74")
    a("s_mul_i32 s74, s52, 6")
    a("s_add_u32 s72, s72, s74")
    a("s_lshl_b32 s73, s73, 8")
    a(f"s_mul_i32 s74, s72, {32*F*2}")
    a("s_add_u32 s73, s73, s74")
    a(f"s_add_u32 s73, s73, {g0*32*F*2}")
    a(f"v_lshrrev_b32 v{vt}, 1, v0")
    a(f"v_mul_u32_u24 v{vt}, {F*2}, v{vt}")
    a(f"v_and_b32 v{vt+1}, 1, v0")
    a(f"v_lshl_add_u32 v{vt}, v{vt+1}, 7, v{vt}")
    for r in range(-(-ng//24)):
        if ng - 24*r < 24:
            a(f"s_cmp_ge_u32 s72, {ng - 24*r}")
            a(f"s_cbranch_scc1 {L}")
        a(f"buffer_load_dword v{vt+1}, v{vt}, s[{srd}:{srd+3}], s73 offen")
        a(f"s_add_u32 s73, s73, {24*32*F*2}")
    a.label(L)

def gen_main(a, name):
    a.kernel_begin(name)
    a("s_cmp_ge_u32 s2, 512")
    a("s_cbranch_scc1 L_end")
    a.load_kernargs()
    sync.wave_setup(a)
    a.srd(48, P_WS, WS_SIZE)
    a.srd(84, P_DBG, 256)
    a("s_cmp_ge_u32 s2, 256")
    a("s_cbranch_scc1 L_slotB")
    a("s_setprio 3")
    a("s_cmp_ge_u32 s2, 192")
    a("s_cbranch_scc1 L_ln")
    def hint2(a):
        L = a.newlabel("hint")
        a("s_cmp_lg_u32 s52, 0")
        a(f"s_cbranch_scc1 {L}")
        a("s_lshl_b32 s76, s2, 8")
        a(f"s_add_u32 s76, s76, {mb(MB_P)}")
        a("v_mov_b32 v8, 0")
        a("v_mov_b32 v9, 1")
        a("s_mov_b64 exec, 1")
        a("buffer_store_dword v9, v8, s[48:51], s76 offen offset:4 sc1")
        a("s_mov_b64 exec, -1")
        a.label(L)
    def pub_qkv(a):
        a("s_and_b32 s72, s56, 3")
        a("s_lshl_b32 s72, s72, 12")
        a("s_and_b32 s73, s55, 12")
        a("s_add_u32 s72, s72, s73")
        a(f"s_add_u32 s72, s72, {mb(MB_QKV)}")
        if HINT2 == 1: hint2(a)
        sync.publish(a, 72, 16, init=True)
        if HINT2 == 2: hint2(a)
    def hint(a):
        L = a.newlabel("hint")
        a("s_lshl_b32 s76, s52, 3")
        a("s_add_u32 s76, s76, s60")
        a(f"s_cmp_lg_u32 s76, {HINT_AT}")
        a(f"s_cbranch_scc1 {L}")
        a("s_lshl_b32 s76, s2, 8")
        a(f"s_add_u32 s76, s76, {mb(MB_P)}")
        a("v_mov_b32 v8, 0")
        a("v_mov_b32 v9, 1")
        a("s_mov_b64 exec, 1")
        a("buffer_store_dword v9, v8, s[48:51], s76 offen sc1")
        a("s_mov_b64 exec, -1")
        a.label(L)
    k_front.qkv_body(a, "s2", pub_qkv, hint if WAIT_QKV else None)
    a("s_branch L_attn")
    a.label("L_ln")
    a("s_sub_u32 s3, s2, 192")
    def pub_h(a):
        a("s_lshr_b32 s72, s58, 4")
        a("s_lshl_b32 s72, s72, 13")
        a(f"s_add_u32 s72, s72, {mb(MB_H)}")
        sync.publish(a, 72, 32, init=True)
    k_front.ln_body(a, "s3", pub_h, only_load=LNB)
    a.stamp_mid(6)
    k_front.gate_own(a)
    a(f"s_cmp_ge_u32 s3, {N_WO}")
    a("s_cbranch_scc1 L_nowo")
    k_front.wo_body(a, "s3")
    a.label("L_nowo")
    a(f"s_mov_b32 s72, {mb(MB_G)}")
    sync.publish(a, 72, 32, init='late')
    a.label("L_attn")
    if CW[1]: w1_touch(a, CW[1][0], CW[1][1], 250)
    a.stamp_mid(2)
    if FRONT_ONLY or A_EXIT: a("s_branch L_done")
    def dep_qkv(a):
        a("s_lshr_b32 s72, s61, 3")
        a("s_lshl_b32 s72, s72, 4")
        a("s_bfe_u32 s73, s2, 0x40003")
        a("s_add_u32 s72, s72, s73")
        a("s_lshl_b32 s72, s72, 8")
        a(f"s_add_u32 s79, s72, {mb(MB_QKV)}")
        a("s_lshr_b32 s73, s2, 6")
        a("s_lshl_b32 s73, s73, 2")
        a("s_add_u32 s72, s79, s73")
        if QPOLL_ALL:
            sync.poll(a, None, 0, vt=8, init='late')
            sync.spin(a, 48, "s72", 12, 8, sleep=2)
        else:
            sync.poll(a, 72, 12, vt=8, sleep=2, init='late')
        if HINT2 == 3: hint2(a)
    def dep_qkv2(a):
        L = a.newlabel("q2"); Ld = a.newlabel("q2d")
        a("s_mov_b32 s76, 0")
        a.label(L)
        a("s_buffer_load_dwordx4 s[72:75], s[48:51], s79 glc")
        a("s_add_u32 s76, s76, 1")
        a("s_waitcnt lgkmcnt(0)")
        a("s_min_u32 s72, s72, s73")
        a("s_min_u32 s74, s74, s75")
        a("s_min_u32 s72, s72, s74")
        a("s_cmp_ge_u32 s72, 12")
        a(f"s_cbranch_scc1 {Ld}")
        a("s_sleep 4")
        a(f"s_cmp_lt_u32 s76, {sync.SPIN_MAX}")
        a(f"s_cbranch_scc1 {L}")
        a.label(Ld)
    def dep_g(a):
        if CW[2]: w1_touch(a, CW[2][0], CW[2][1], 252)
        a("s_bfe_u32 s72, s2, 0x50003")
        a("s_lshl_b32 s72, s72, 8")
        a(f"s_add_u32 s72, s72, {mb(MB_G)}")
        sync.spin(a, 48, "s72", 64, 0)
    def pub_o_f(a):
        a("s_cmp_gt_u32 s61, 7")
        a("s_cselect_b32 s72, 1, 0")
        for hd in (14, 19, 24):
            a(f"s_cmp_gt_u32 s61, {hd}")
            a("s_addc_u32 s72, s72, 0")
        a("s_lshr_b32 s73, s2, 5")
        a("s_mul_i32 s73, s73, 5")
        a("s_add_u32 s72, s72, s73")
        a(f"s_mul_i32 s72, s72, {6*256}")
        a(f"s_add_u32 s72, s72, {mb(MB_O)}")
        a(f"s_lshr_b32 s73, {(1<<7)|(1<<14)|(1<<19)|(1<<24)}, s61")
        a("s_and_b32 s73, s73, 1")
        a("s_cselect_b32 s73, 0xfff, 63")
        sync.publish(a, 72, "s73")
    def pub_o(a):
        if FUSED: return pub_o_f(a)
        a("s_lshr_b32 s72, s2, 5")
        a("s_lshl_b32 s72, s72, 13")
        a("s_lshr_b32 s73, s61, 3")
        a("s_lshl_b32 s73, s73, 2")
        a("s_add_u32 s72, s72, s73")
        a(f"s_add_u32 s72, s72, {mb(MB_O)}")
        sync.publish(a, 72, 24)
    def last_extra(a):
        k_final2.wof_setup(a, "s2", 147)
        return [k_final2.wof_load(k, 147) for k in range(27)]
    TV = 140
    def tsetup(a):
        a.srd(80, P_W2, S*F*2)
        a("s_lshr_b32 s72, s2, 3")
        a("s_lshl_b32 s72, s72, 2")
        a("s_add_u32 s72, s72, s52")
        a("s_mul_i32 s73, s72, 205")
        a("s_lshr_b32 s73, s73, 11")
        a("s_mul_i32 s76, s73, 10")
        a("s_sub_u32 s72, s72, s76")
        a("s_and_b32 s76, s2, 7")
        a("s_mul_i32 s76, s76, 10")
        a("s_add_u32 s72, s72, s76")
        a("s_lshr_b32 s76, s72, 4")
        a("s_and_b32 s72, s72, 15")
        a(f"s_mul_i32 s76, s76, {928*4096}")
        a("s_lshl_b32 s72, s72, 8")
        a("s_add_u32 s76, s76, s72")
        a("s_lshl_b32 s72, s73, 17")
        a("s_add_u32 s76, s76, s72")
        a("s_cmp_ge_u32 s73, 12")
        a("s_cselect_b32 s82, 0, s82")
        a(f"v_lshrrev_b32 v{TV}, 1, v0")
        a(f"v_lshlrev_b32 v{TV}, 12, v{TV}")
        a(f"v_and_b32 v{TV+1}, 1, v0")
        a(f"v_lshl_add_u32 v{TV}, v{TV+1}, 7, v{TV}")
        a(f"v_add_u32 v{TV}, s76, v{TV}")
        a("s_mov_b32 s78, s73")
    def touch(a):
        a("s_cmp_ge_u32 s78, 29")
        a("s_cselect_b32 s82, 0, s82")
        a(f"buffer_load_dword v{TV+1}, v{TV}, s[80:83], 0 offen")
        a(f"v_add_u32 v{TV}, {12*32*4096}, v{TV}")
        a("s_add_u32 s78, s78, 12")
    k_attn.attn_body(a, "s2", dep_qkv, pub_o, sm=3, tsetup=tsetup if W2_TOUCH else None, touch=touch if W2_TOUCH else None, dep_g=dep_g, dep2=dep_qkv2, last_extra=None if FUSED else last_extra)
    a.stamp_mid(5)
    a("s_cmp_ge_u32 s2, 192")
    a("s_cbranch_scc1 L_done")
    if NO_FINAL: a("s_branch L_done")
    def dep_y(a, i):
        L = a.newlabel("y"); Ld = a.newlabel("yd")
        if i == 0:
            a("s_lshl_b32 s76, s54, 5")
            a("s_add_u32 s76, s76, s53")
            a("s_lshl_b32 s76, s76, 8")
            a(f"s_add_u32 s76, s76, {mb(MB_Y)}")
            a("s_mov_b32 s77, 0")
        else:
            a(f"s_cmp_ge_u32 s{72+i}, 5")
            a(f"s_cbranch_scc1 {Ld}")
        a.label(L)
        a("s_buffer_load_dwordx4 s[72:75], s[48:51], s76 glc")
        a("s_add_u32 s77, s77, 1")
        a("s_waitcnt lgkmcnt(0)")
        a(f"s_cmp_ge_u32 s{72+i}, 5")
        a(f"s_cbranch_scc1 {Ld}")
        if i == 0: a(f"s_sleep {SLP_FIN}")
        a(f"s_cmp_lt_u32 s77, {sync.SPIN_MAX}")
        a(f"s_cbranch_scc1 {L}")
        a.label(Ld)
        if i == 2: a.stamp_mid(7)
    def boxes(a):
        a("s_lshr_b32 s66, s53, 2")
        a("s_lshl_b32 s66, s66, 5")
        a("s_lshr_b32 s67, s2, 3")
        a("s_add_u32 s66, s66, s67")
        a("s_lshl_b32 s66, s66, 8")
        a("s_lshl_b32 s67, s52, 2")
        a("s_add_u32 s66, s66, s67")
        a(f"s_add_u32 s66, s66, {mb(MB_O)}")
        a("s_lshl_b32 s67, s54, 5")
        a("s_add_u32 s67, s67, s53")
        a("s_lshl_b32 s67, s67, 8")
        a(f"s_add_u32 s67, s67, {mb(MB_Y)}")
    if FUSED: k_final.final_body(a, "s2", dep_y)
    else: k_final2.final_body(a, "s2", boxes, sync.SPIN_MAX)
    a("s_branch L_done")
    a.label("L_slotB")
    a("s_sub_u32 s3, s2, 256")
    if INIT_LOW == 1:
        a(f"s_cmp_gt_u32 s3, {sync.N_LATE}")
        a("s_cbranch_scc1 L_noinit")
        a("s_mov_b32 s78, s3")
    elif INIT_LOW == 2:
        a("s_cmp_eq_u32 s3, 255")
        a(f"s_cselect_b32 s78, {sync.N_LATE}, s3")
        a(f"s_cmp_eq_u32 s3, {sync.N_LATE}")
        a("s_cselect_b32 s78, 99, s78")
        a(f"s_cmp_gt_u32 s78, {sync.N_LATE}")
        a("s_cbranch_scc1 L_noinit")
    else:
        a(f"s_cmp_lt_u32 s3, {255 - sync.N_LATE}")
        a("s_cbranch_scc1 L_noinit")
        a(f"s_sub_u32 s78, s3, {255 - sync.N_LATE}")
    a("s_setprio 3")
    sync.init_mailboxes(a, "s78")
    a("s_setprio 0")
    a.stamp_mid(0)
    a.label("L_noinit")
    if CODE_PF:
        Lc = a.newlabel("cpf")
        a("s_lshr_b32 s72, s3, 4")
        a("s_cmp_lg_u32 s72, 2")
        a(f"s_cbranch_scc1 {Lc}")
        a("s_getpc_b64 s[80:81]")
        a.label("L_pc")
        a(f"s_sub_u32 s80, s80, L_pc - {name}")
        a("s_subb_u32 s81, s81, 0")
        a(f"s_mov_b32 s82, L_code_end - {name}")
        a("s_mov_b32 s83, 0x00020000")
        a("s_bfe_u32 s72, s3, 0x10003")
        a("s_lshl_b32 s72, s72, 2")
        a("s_add_u32 s72, s72, s52")
        a("s_lshl_b32 s72, s72, 13")
        a("v_lshlrev_b32 v5, 7, v0")
        a("v_add_u32 v5, s72, v5")
        a("buffer_load_dword v58, v5, s[80:83], 0 offen")
        a.label(Lc)
    if WAIT_QKV:
        Lz = a.newlabel("hz")
        a("s_cmp_lg_u32 s52, 0")
        a(f"s_cbranch_scc1 {Lz}")
        a("s_lshl_b32 s72, s3, 8")
        a(f"s_add_u32 s72, s72, {mb(MB_P)}")
        a("v_lshlrev_b32 v5, 4, v0")
        for i in range(4): a(f"v_mov_b32 v{8+i}, 0")
        a("s_mov_b64 exec, 0xff")
        a("buffer_store_dwordx4 v[8:11], v5, s[48:51], s72 offen sc1")
        a("s_mov_b64 exec, -1")
        a.label(Lz)
    if LNB:
        a("s_lshr_b32 s72, s3, 6")
        a("s_cmp_lg_u32 s72, 1")
        a("s_cbranch_scc1 L_nolnb")
        a(f"s_setprio {LNB_PRIO}")
        a("s_sub_u32 s78, s3, 64")
        st = a.stamp; a.stamp = False
        k_front.ln_body(a, "s78", pub_h, gate=False)
        a.stamp = st
        a("s_setprio 0")
        a.label("L_nolnb")
    if XW == 1: k_front.xw_touch(a, "s3")
    if XW == 2: k_front.xw_touch2(a, "s3", XWD)
    if W1HEAD:
        Lh = a.newlabel("w1h")
        a("s_cmp_lt_u32 s3, 192")
        a(f"s_cbranch_scc1 {Lh}")
        a("s_cmp_ge_u32 s53, 30")
        a(f"s_cbranch_scc1 {Lh}")
        a.srd(80, P_W1, S*F*2)
        a("s_mul_i32 s57, s53, 205")
        a("s_lshr_b32 s57, s57, 10")
        a("s_mul_i32 s58, s57, 5")
        a("s_sub_u32 s58, s53, s58")
        a("s_and_b32 s56, s3, 7")
        a("s_mul_i32 s56, s56, 9")
        a("s_lshr_b32 s56, s56, 1")
        a("s_add_u32 s56, s56, s58")
        a("s_lshl_b32 s56, s56, 8")
        a(f"s_mul_i32 s57, s57, {32*F*2}")
        a("s_add_u32 s56, s56, s57")
        a("v_lshrrev_b32 v5, 1, v0")
        a(f"v_mul_u32_u24 v5, {F*2}, v5")
        a("v_and_b32 v6, 1, v0")
        a("v_lshl_add_u32 v5, v6, 7, v5")
        a("buffer_load_dword v62, v5, s[80:83], s56 offen")
        a.label(Lh)
    if COOP:
        Le = a.newlabel("head")
        a(f"s_cmp_ge_u32 s3, {k_mlp1.MLP1_GRID}")
        a(f"s_cbranch_scc1 {Le}")
        a.srd(80, P_W1, S*F*2)
        a("s_and_b32 s66, s3, 7")
        a("s_mul_i32 s66, s66, 27")
        a("s_lshr_b32 s67, s3, 3")
        a("s_add_u32 s67, s67, s66")
        a("s_mul_i32 s70, s67, 171")
        a("s_lshr_b32 s70, s70, 10")
        a("s_mul_i32 s68, s70, 6")
        a("s_sub_u32 s69, s67, s68")
        a("s_lshl_b32 s66, s70, 8")
        a("s_lshl_b32 s68, s52, 4")
        a("s_add_u32 s67, s69, s68")
        a(f"s_mul_i32 s67, s67, {32*F*2}")
        a("s_add_u32 s66, s66, s67")
        a("v_lshrrev_b32 v5, 1, v0")
        a(f"v_mul_u32_u24 v5, {F*2}, v5")
        a("v_and_b32 v6, 1, v0")
        a("v_lshl_add_u32 v5, v6, 7, v5")
        a("buffer_load_dword v62, v5, s[80:83], s66 offen")
        a("s_cmp_ge_u32 s69, 3")
        a(f"s_mov_b32 s67, {3*32*F*2}")
        a(f"s_cselect_b32 s67, {(-3*32*F*2) & 0xffffffff}, s67")
        a("s_add_u32 s67, s67, s66")
        a("s_lshr_b32 s68, 0x80402010, s70")
        a("s_cmp_lt_u32 s70, 32")
        a("s_cselect_b32 s68, s68, 0")
        a("s_and_b32 s68, s68, 1")
        a(f"s_cbranch_scc0 {Le}")
        a("buffer_load_dword v63, v5, s[80:83], s67 offen")
        a.label(Le)
    if TLBW:
        a("s_lshr_b32 s53, s3, 3")
        a("s_lshl_b32 s53, s53, 2")
        a("s_add_u32 s53, s53, s52")
        a("s_lshl_b32 s53, s53, 6")
        a("v_add_u32 v5, s53, v0")
        a(f"v_lshlrev_b32 v5, {TLBW}, v5")
        a.srd(80, P_W1, S*F*2)
        a("buffer_load_dword v62, v5, s[80:83], 0 offen nt")
        a.srd(80, P_W2, S*F*2)
        a("buffer_load_dword v63, v5, s[80:83], 0 offen nt")
        a.srd(80, P_WS, CNT_OFF)
        a("buffer_load_dword v59, v5, s[80:83], 0 offen nt")
    if k_mlp1y.SHED:
        Lp = a.newlabel("pre")
        a("s_cmp_lt_u32 s3, 220")
        a(f"s_cbranch_scc1 {Lp}")
        a("s_sub_u32 s78, 255, s3")
        k_help.preload(a, "s78")
        a.label(Lp)
    a(f"s_setprio {BPRIO}")
    if INIT_LATE:
        a(f"s_cmp_lt_u32 s3, {k_mlp1.MLP1_GRID}")
        a("s_cbranch_scc1 L_mlp1")
    a("s_waitcnt vmcnt(0)")
    sync.poll(a, None, 0, vt=5, init=True)
    a.stamp_mid(5)
    a("s_cmp_lt_u32 s3, 192")
    a("s_cbranch_scc1 L_mlp1")
    if PF_AFTER_H:
        a("s_bfe_u32 s72, s3, 0x20001")
        a("s_lshl_b32 s72, s72, 5")
        a("s_and_b32 s73, s3, 31")
        a("s_add_u32 s72, s72, s73")
        a("s_lshl_b32 s72, s72, 8")
        a(f"s_add_u32 s72, s72, {mb(MB_H)}")
        sync.poll(a, 72, 16, vt=5, sleep=4)
    a.srd(40, P_W1, S*F*2)
    a("s_sub_u32 s67, 255, s3")
    a(f"s_mul_i32 s66, s52, {512*F*2}")
    a("s_lshl_b32 s68, s67, 13")
    a("s_add_u32 s66, s66, s68")
    a("v_lshlrev_b32 v5, 7, v0")
    a("v_add_u32 v5, s66, v5")
    for r in range(PF1):
        a(f"buffer_load_dword v{60+(r&1)}, v5, s[40:43], 0 offen")
        a(f"v_add_u32 v5, {64*8192}, v5")
        if r >= PFD: a(f"s_waitcnt vmcnt({PFD})")
    a(f"s_cmp_ge_u32 s3, {k_mlp1.MLP1_GRID}")
    a("s_cbranch_scc1 L_aux")
    a.label("L_mlp1")
    if B_EXIT: a("s_branch L_done")
    def dep_h(a):
        a("s_lshl_b32 s72, s52, 5")
        a("s_and_b32 s73, s3, 31")
        a("s_add_u32 s72, s72, s73")
        a("s_lshl_b32 s72, s72, 8")
        a(f"s_add_u32 s72, s72, {mb(MB_H)}")
        sync.spin(a, 48, "s72", 16, 5, sleep=SLP_H)
    def dep_h3(a):
        a("s_and_b32 s72, s3, 31")
        a("s_lshl_b32 s72, s72, 8")
        a(f"s_add_u32 s72, s72, {mb(MB_H + 96)}")
        sync.spin(a, 48, "s72", 16, 5, sleep=SLP_H)
    def dep_h_touch(a, part=0):
        if INIT_LATE and part != 2:
            a("s_waitcnt vmcnt(0)")
            sync.poll(a, None, 0, vt=12, init=True)
        if part == 1: return
        if CW[0]: w1_touch(a, CW[0][0], CW[0][1], 250, srd=80)
        dep_h(a)
        a.stamp_mid(5)
        if COOP_H:
            a("s_and_b32 s72, s3, 7")
            a("s_mul_i32 s72, s72, 9")
            a("s_lshr_b32 s72, s72, 1")
            a("s_sub_u32 s72, s66, s72")
            a("s_lshl_b32 s72, s72, 6")
            a("v_add_u32 v60, s72, v0")
            a("v_mul_u32_u24 v61, 2731, v60")
            a("v_lshrrev_b32 v61, 16, v61")
            a("v_mul_u32_u24 v61, 120, v61")
            a("v_add_lshl_u32 v60, v60, v61, 7")
            a(f"buffer_load_dword v61, v60, s[48:51], s{k_mlp1.S_F} offen sc1")
    def hold(a, word=0):
        L = a.newlabel("hold"); Ld = a.newlabel("holdd")
        a("s_cmp_ge_u32 s3, 192")
        a(f"s_cbranch_scc1 {Ld}")
        a("s_lshl_b32 s72, s3, 8")
        a(f"s_add_u32 s72, s72, {mb(MB_P) + 4*word}")
        a("s_and_b32 s73, s3, 63")
        a("s_lshl_b32 s73, s73, 8")
        a(f"s_add_u32 s73, s73, {mb(MB_QKV)}")
        a("s_mov_b32 s74, 0")
        a.label(L)
        a("s_buffer_load_dword s75, s[48:51], s72 glc")
        a("s_add_u32 s74, s74, 1")
        a("s_waitcnt lgkmcnt(0)")
        a("s_cmp_lg_u32 s75, 0")
        a(f"s_cbranch_scc1 {Ld}")
        a("s_sleep 4")
        a("s_and_b32 s75, s74, 15")
        a(f"s_cbranch_scc1 {L}")
        a("s_buffer_load_dword s75, s[48:51], s73 glc")
        a("s_waitcnt lgkmcnt(0)")
        a("s_cmp_ge_u32 s75, 12")
        a(f"s_cbranch_scc1 {Ld}")
        a(f"s_cmp_lt_u32 s74, {sync.SPIN_MAX}")
        a(f"s_cbranch_scc1 {L}")
        a.label(Ld)
    def w2_tail(a):
        a.srd(80, P_W2, S*F*2)
        a("s_lshr_b32 s72, s3, 3")
        a("s_mul_i32 s73, s72, 86")
        a("s_lshr_b32 s73, s73, 8")
        a("s_mul_i32 s76, s73, 3")
        a("s_sub_u32 s72, s72, s76")
        a("s_and_b32 s76, s3, 7")
        a("s_mul_i32 s76, s76, 10")
        a("s_add_u32 s73, s73, s76")
        a("s_lshr_b32 s76, s73, 4")
        a("s_and_b32 s73, s73, 15")
        a(f"s_mul_i32 s76, s76, {928*4096}")
        a("s_lshl_b32 s73, s73, 8")
        a("s_add_u32 s76, s76, s73")
        a("s_lshl_b32 s72, s72, 2")
        a("s_add_u32 s72, s72, s52")
        a(f"s_add_u32 s72, s72, {29 - 12*W2_TAIL}")
        a("s_lshl_b32 s72, s72, 17")
        a("s_add_u32 s76, s76, s72")
        a("v_lshrrev_b32 v60, 1, v0")
        a("v_lshlrev_b32 v60, 12, v60")
        a("v_and_b32 v61, 1, v0")
        a("v_lshl_add_u32 v60, v61, 7, v60")
        a("v_add_u32 v60, s76, v60")
        for e in range(W2_TAIL):
            a(f"buffer_load_dword v{61+e}, v60, s[80:83], 0 offen")
            a(f"v_add_u32 v60, {12*32*4096}, v60")
    def checks(a, wave):
        Lg = a.newlabel("g")
        a(f"s_cmp_lg_u32 s52, {wave}")
        a(f"s_cbranch_scc1 {Lg}")
        sync.spin_init(a, 14, True)
        a("s_bfe_u32 s73, s2, 0x50003")
        a("s_lshl_b32 s73, s73, 8")
        a(f"s_add_u32 s73, s73, {mb(MB_G)}")
        sync.spin(a, 48, "s73", 64, 0)
        a.label(Lg)
    def pub_u(a, part):
        if part == 0:
            a("s_mul_i32 s18, s66, 565")
            a("s_lshr_b32 s18, s18, 12")
            a("s_lshr_b32 s19, s67, 1")
            a("s_mul_i32 s19, s19, 5")
            a("s_add_u32 s18, s18, s19")
            a("s_lshl_b32 s18, s18, 12")
            a(f"s_add_u32 s18, s18, {mb(MB_U)}")
            a("s_lshr_b32 s19, 0x204080, s66")
            a("s_cmp_lt_u32 s66, 32")
            a("s_cselect_b32 s19, s19, 0")
            a("s_and_b32 s19, s19, 1")
            a("s_cselect_b32 s19, -1, 0xffff")
        else:
            checks(a, 1)
            sync.publish(a, 18, "s19", vt=14)
    def ebox(a, wait=False):
        a("s_lshl_b32 s65, s59, 8")
        a("s_lshl_b32 s70, s52, 2")
        a("s_add_u32 s65, s65, s70")
        a(f"s_add_u32 s65, s65, {mb(MB_E)}")
        sync.spin_init(a, 14, True)
        if wait: sync.spin(a, 48, "s65", 1, 0, sleep=2)
    def early2(a):
        a("s_barrier")
        k_mlp2f.mlp2_body(a, "s3", 3, None, None, None, part=1)
    (k_mlp1y if M1Y else k_mlp1).mlp1_body(a, "s3", dep_h_touch, pub_u, sm=0, epi=early2, hold=hold if WAIT_QKV else None, hold2=(lambda a: hold(a, 1)) if HINT2 else None, ebox=ebox)
    a.stamp_mid(2)
    a("s_branch L_mlp2")
    a.label("L_aux")
    if B_EXIT: a("s_branch L_done")
    if k_mlp1y.SHED:
        a("s_cmp_ge_u32 s67, 36")
        a("s_cbranch_scc1 L_nohelp")
        a("s_mov_b32 s78, s67")
        k_help.body_all(a, "s78", dep_h3, ebox)
        a.label("L_nohelp")
        a.stamp_mid(6)
        a("s_setprio 0")
        a("s_sub_u32 s67, 255, s3")
    if PFMODE == "col":
        a("s_and_b32 s66, s3, 7")
        a("s_mul_i32 s66, s66, 9")
        a("s_lshr_b32 s66, s66, 1")
        a("s_lshr_b32 s67, s67, 3")
        a("s_add_u32 s66, s66, s67")
        a("s_lshl_b32 s66, s66, 8")
        a(f"s_mul_i32 s69, s52, {(32 if M1Y else 512)*F*2}")
        a("s_add_u32 s66, s66, s69")
        a("v_lshrrev_b32 v5, 1, v0")
        a(f"v_mul_u32_u24 v5, {F*2}, v5")
        a("v_and_b32 v6, 1, v0")
        a("v_lshl_add_u32 v5, v6, 7, v5")
        if PFH:
            dep_h(a)
            a(f"s_mul_i32 s69, s52, {32*18*1024}")
            a("s_lshl_b32 s70, s67, 13")
            a("s_add_u32 s69, s69, s70")
            a(f"s_add_u32 s69, s69, {HT_OFF}")
            a("v_lshlrev_b32 v7, 7, v0")
        g0 = 6 if COOP else 0
        a(f"s_add_u32 s66, s66, {(g0*32 + PFS1*128)*F*2}")
        if PFH and COOP_H: a(f"s_add_u32 s69, s69, {12*18*1024}")
        for n in range(min(PFN1, 16 - g0)):
            a(f"buffer_load_dword v{60+(n&1)}, v5, s[40:43], s66 offen")
            a(f"s_add_u32 s66, s66, {(128 if M1Y else 32)*F*2}")
            if PFH and n < (9 if COOP_H else 14):
                a(f"buffer_load_dword v{62+(n&1)}, v7, s[48:51], s69 offen sc1")
                a(f"s_add_u32 s69, s69, {5*8192}")
            a(f"s_waitcnt vmcnt({PFD})")
        a.stamp_mid(1)
        a.srd(40, P_W2, S*F*2)
        a("s_lshl_b32 s68, s67, 2")
        a("s_add_u32 s68, s68, s52")
        a("s_and_b32 s66, s3, 7")
        a("s_mul_i32 s66, s66, 10")
        a("s_lshr_b32 s69, s68, 1")
        a("s_add_u32 s66, s66, s69")
        a("s_lshr_b32 s67, s66, 4")
        a("s_and_b32 s66, s66, 15")
        a(f"s_mul_i32 s67, s67, {928*4096}")
        a("s_lshl_b32 s66, s66, 8")
        a("s_add_u32 s67, s67, s66")
        a("s_and_b32 s66, s52, 1")
        a("s_lshl_b32 s66, s66, 17")
        a("s_add_u32 s67, s67, s66")
        a("v_lshrrev_b32 v5, 1, v0")
        a("v_lshlrev_b32 v5, 12, v5")
        a("v_and_b32 v6, 1, v0")
        a("v_lshl_add_u32 v5, v6, 7, v5")
        a("v_add_u32 v5, s67, v5")
        for n in range(PF2):
            a(f"buffer_load_dword v{60+(n&1)}, v5, s[40:43], 0 offen")
            a(f"v_add_u32 v5, {64*4096}, v5")
            a(f"s_waitcnt vmcnt({PFD})")
    else:
        for n in range(-(-(576 - 64*PF1)//40) if PFW1 else 0):
            a(f"buffer_load_dword v{60+(n&1)}, v5, s[40:43], 0 offen")
            a(f"v_add_u32 v5, {40*8192}, v5")
            a(f"s_waitcnt vmcnt({PFD})")
        a.stamp_mid(1)
        a.srd(40, P_W2, S*F*2)
        a("s_lshl_b32 s68, s67, 2")
        a("s_add_u32 s68, s68, s52")
        a("s_lshr_b32 s66, s68, 5")
        a("s_and_b32 s68, s68, 31")
        a(f"s_mul_i32 s66, s66, {928*4096}")
        a("s_lshl_b32 s68, s68, 13")
        a("s_add_u32 s66, s66, s68")
        a("v_lshlrev_b32 v5, 7, v0")
        a("v_add_u32 v5, s66, v5")
        for n in range(PF2):
            a(f"buffer_load_dword v{60+(n&1)}, v5, s[40:43], 0 offen")
            a(f"v_add_u32 v5, {32*8192}, v5")
            a(f"s_waitcnt vmcnt({PFD})")
    a("s_waitcnt vmcnt(0)")
    a.stamp_mid(2)
    a("s_and_b32 s70, s3, 1")
    a(f"s_mul_i32 s70, s70, {(-16*k_mlp2f.SKEW) & 0xffffffff}")
    a(f"s_add_u32 s70, s70, {240 + 8*k_mlp2f.SKEW}")
    a(f"s_cmp_ge_u32 s3, s70")
    a("s_cbranch_scc1 L_aux0" if PF3 else "s_cbranch_scc1 L_done")
    k_mlp2f.mlp2_body(a, "s3", 3, None, None, None, part=1)
    checks(a, 0)
    a("s_barrier")
    a.label("L_mlp2")
    if k_mlp1y.PST: a("s_branch L_done")
    def dep_u(a):
        a("s_mul_i32 s73, s67, 5")
        a("s_add_u32 s73, s73, s69")
        a("s_lshl_b32 s73, s73, 4")
        a("s_add_u32 s73, s73, s66")
        a("s_lshl_b32 s73, s73, 8")
        a(f"s_add_u32 s73, s73, {mb(MB_U)}")
        a("s_cmp_eq_u32 s69, 4")
        a("s_cselect_b32 s76, 14, 16")
        (sync.spin(a, 48, "s73", "s76", 8, sleep=1) if UPOLL_ALL else sync.poll(a, 73, "s76", vt=8, sleep=2))
        if COOP_U:
            a("s_lshr_b32 s70, s3, 3")
            a("s_mul_i32 s70, s70, 86")
            a("s_lshr_b32 s70, s70, 8")
            a("s_mul_i32 s73, s52, 10")
            a("s_add_u32 s70, s70, s73")
            a("s_lshl_b32 s70, s70, 6")
            a("s_add_u32 s70, s70, 288")
            a("v_add_u32 v60, s70, v0")
            a("v_min_u32 v60, 2783, v60")
            a("v_mul_u32_u24 v61, 5462, v60")
            a("v_lshrrev_b32 v61, 18, v61")
            a("v_mul_u32_u24 v61, 96, v61")
            a("v_add_lshl_u32 v60, v60, v61, 7")
            a(f"s_mul_i32 s70, s69, {58*18*1024}")
            a("s_mul_i32 s73, s67, 6144")
            a("s_add_u32 s70, s70, s73")
            a(f"s_add_u32 s70, s70, {U_OFF}")
            a("s_mov_b32 s77, s70")
    def ybox(a):
        a("s_lshl_b32 s76, s67, 1")
        a("s_add_u32 s76, s76, s71")
        a("s_lshl_b32 s76, s76, 5")
        a("s_lshl_b32 s70, s66, 1")
        a("s_add_u32 s76, s76, s70")
        a("s_add_u32 s76, s76, s72")
        a("s_lshl_b32 s76, s76, 8")
        a(f"s_add_u32 s76, s76, {mb(MB_Y)}")
    def dep_o(a, block):
        if block == "addr":
            a("s_lshr_b32 s59, s66, 1")
            a("s_mul_i32 s59, s59, 5")
            a("s_add_u32 s59, s59, s69")
            a("s_mul_i32 s59, s59, 6")
            a("s_lshl_b32 s70, s67, 1")
            a("s_add_u32 s59, s59, s70")
            a("s_and_b32 s70, s66, 1")
            a("s_add_u32 s59, s59, s70")
            a("s_lshl_b32 s59, s59, 8")
            a(f"s_add_u32 s59, s59, {mb(MB_O)}")
            a("s_lshl_b32 s64, s53, 1")
        else:
            sync.spin(a, 48, "s59", "s64", 8, sleep=1)
            a.stamp_mid(6)
    if FUSED: k_mlp2f.mlp2_body(a, "s3", 3, dep_u, dep_o, ybox, part=2, post=(lambda a: a("buffer_load_dword v61, v60, s[48:51], s77 offen sc1")) if COOP_U else None)
    else: k_mlp2.mlp2_body(a, "s3", 3, dep_u, ybox)
    if PF3:
        a("s_branch L_done")
        a.label("L_aux0")
        a("v_lshrrev_b32 v5, 1, v0")
        a("v_lshlrev_b32 v5, 12, v5")
        a("v_and_b32 v6, 1, v0")
        a("v_lshl_add_u32 v5, v6, 7, v5")
        a("s_and_b32 s66, s3, 7")
        a("s_mul_i32 s66, s66, 10")
        for r in range(PF3):
            a(f"s_add_u32 s69, s68, {8*r}")
            a("s_mul_i32 s70, s69, 205")
            a("s_lshr_b32 s70, s70, 11")
            a("s_mul_i32 s71, s70, 10")
            a("s_sub_u32 s69, s69, s71")
            a("s_add_u32 s69, s69, s66")
            a("s_lshr_b32 s71, s69, 4")
            a("s_and_b32 s69, s69, 15")
            a("s_mul_i32 s71, s71, 29")
            a("s_add_u32 s70, s70, s71")
            a(f"s_add_u32 s70, s70, {2*PF2}")
            a("s_lshl_b32 s70, s70, 17")
            a("s_lshl_b32 s69, s69, 8")
            a("s_add_u32 s69, s69, s70")
            a("v_add_u32 v7, s69, v5")
            a(f"buffer_load_dword v{60+(r&1)}, v7, s[40:43], 0 offen")
            a("s_waitcnt vmcnt(1)")
    a.label("L_done")
    if DIAG is not None:
        wg, slot, kind = DIAG
        Ld = a.newlabel("diag"); Lw = a.newlabel("diagw")
        a(f"s_cmp_lg_u32 s2, {wg}")
        a(f"s_cbranch_scc1 {Ld}")
        a("s_waitcnt vmcnt(0)")
        if slot == "end":
            a.stamp_mid(0); slot = 0
        if slot is None:
            a("s_mov_b32 s70, 0")
        elif kind == "t":
            a(f"s_sub_u32 s70, s{4+slot}, s88")
            a("s_mul_i32 s70, s70, 10")
        else:
            a(f"s_lshr_b32 s70, s{93+slot}, 1")
        a("s_add_u32 s70, s70, 20000")
        a.label(Lw)
        a("s_sleep 1")
        a("s_memrealtime s[90:91]")
        a("s_waitcnt lgkmcnt(0)")
        a("s_sub_u32 s71, s90, s88")
        a("s_cmp_lt_u32 s71, s70")
        a(f"s_cbranch_scc1 {Lw}")
        a.label(Ld)
    a.end()
    a.label("L_end")
    a("s_endpgm")
    a.label("L_code_end")

def build(stamp=False):
    a = Asm()
    a.stamp = stamp
    fin = NAME + "_kernel"
    out = HEADER
    out += (f"; @launch kernel={fin} grid=(512,1,1) block=(256,1,1) lds=81920\n" if LIST else "; @launch grid=(512,1,1) block=(256,1,1) lds=81920\n")
    out += DOC
    out += '.amdgcn_target "amdgcn-amd-amdhsa--gfx950"\n.text\n'
    gen_main(a, fin)
    if PRE:
        out = out.replace("; @launch kernel=", "; @launch kernel=pre_kernel grid=(256,1,1) block=(256,1,1) lds=0\n; @launch kernel=", 1)
        st = a.stamp; a.stamp = False
        a.kernel_begin("pre_kernel")
        if PRE > 1:
            a("s_cmp_ge_u32 s2, 256")
            a("s_cbranch_scc1 L_pre_end")
            a.load_kernargs()
            sync.wave_setup(a)
            k_front.xw_touch(a, "s2")
            a("s_getpc_b64 s[80:81]")
            a.label("L_pc2")
            a(f"s_sub_u32 s80, s80, L_pc2 - {fin}")
            a("s_subb_u32 s81, s81, 0")
            a(f"s_mov_b32 s82, L_code_end - {fin}")
            a("s_mov_b32 s83, 0x00020000")
            a("s_lshr_b32 s72, s2, 3")
            a("s_lshl_b32 s72, s72, 2")
            a("s_add_u32 s72, s72, s52")
            a("s_lshl_b32 s72, s72, 13")
            a("v_lshlrev_b32 v5, 7, v0")
            a("v_add_u32 v5, s72, v5")
            a("buffer_load_dword v58, v5, s[80:83], 0 offen")
            a("s_waitcnt vmcnt(0)")
            a.label("L_pre_end")
        a("s_endpgm")
        a.stamp = st
    out += a.text()
    out += '.section .rodata,"a"\n'
    if PRE: out += ".p2align 6\n" + descriptor("pre_kernel", 64, None)
    out += ".p2align 6\n" + descriptor(fin, 256, None)
    return out

if __name__ == "__main__":
    open("main.s", "w").write(build())
    open("stamp.s", "w").write(build(True))
    open("main_l.s", "w").write(build("lite"))
    LIST = False
    open("final.s", "w").write(build())
    LIST = True
    VARS = eval(open("vars.txt").read())
    import copy
    for nm, kv in VARS.items():
        saved = {}
        for k, v in kv.items():
            mod, name = (globals()[k.split(".")[0]].__dict__, k.split(".")[1]) if "." in k else (globals(), k)
            saved[k] = (mod, name, mod[name]); mod[name] = v
        open(f"gen/{nm}.s", "w").write(build(False))
        open(f"gen/{nm}_s.s", "w").write(build(True))
        open(f"gen/{nm}_l.s", "w").write(build("lite"))
        for mod, name, v in saved.values(): mod[name] = v
    print("wrote")
```

```python
import sys
from common import *
import sync, k_front, k_mlp1, k_mlp1y, k_mlp2, k_attn, k_final, k_final2, k_mlp2f, k_help, k_attn2, k_mlp2g
from sync import mb, MB_U, MB_H, MB_QKV, MB_O, MB_Y, MB_G, MB_P, MB_E

HEADER = open("cdna_kernels/" + NAME + ".s.ref").read().split("; Override launch geometry")[0]
N_WO = 18
W2_TOUCH = False
FRONT_ONLY = False
PARTNER = True
A_EXIT = False
PF1 = 0
M2G = False
LNB = False
LNB_PRIO = 3
CW = (None, None, None)
PFN1 = 16
PFS1 = 0
PF3 = 0
QPOLL_ALL = False
UPOLL_ALL = True
HINT2 = 0
FUSED = True
INIT_LOW = 2
W1HEAD = True
PRE = 0
M1Y = True
COOP = False
COOP_H = False
COOP_U = False
BPRIO = 0
INIT_LATE = True
PFMODE = 'col'
PFH = False
SLP_H = 4
HEAD_PF = 0
CODE_PF = False
B_EXIT = False
DIAG = None
PF_AFTER_H = True
TLBW = 0
PFW1 = True
XW = 2
XWD = 1
LIST = True
NO_FINAL = False
PFD = 1
LN_WAIT = True
PF2 = 7
EARLY = 1
EARLY_FL = ''
PROMOTE = False
WAIT_QKV = True
HINT_AT = 3
SLP_HINT = 4
SLP_FIN = 2
W2_TAIL = 0
AUX_G0 = 16
AUX_NT = ''

DOC = """;
;                         240 tiles) scaled by (1-gate) with the output projection of gate*o appended along K
"""

def w1_touch(a, g0, ng, vt, srd=40):
    L = a.newlabel("w1t")
    a("s_and_b32 s72, s2, 255")
    a(f"s_cmp_ge_u32 s72, {k_mlp1y.MLP1_GRID}")
    a(f"s_cbranch_scc1 {L}")
    a.srd(srd, P_W1, S*F*2)
    a("s_and_b32 s73, s72, 7")
    a("s_mul_i32 s73, s73, 27")
    a("s_lshr_b32 s72, s72, 3")
    a("s_add_u32 s72, s72, s73")
    a("s_mul_i32 s73, s72, 171")
    a("s_lshr_b32 s73, s73, 10")
    a("s_mul_i32 s74, s73, 6")
    a("s_sub_u32 s72, s72, s74")
    a("s_mul_i32 s74, s52, 6")
    a("s_add_u32 s72, s72, s74")
    a("s_lshl_b32 s73, s73, 8")
    a(f"s_mul_i32 s74, s72, {32*F*2}")
    a("s_add_u32 s73, s73, s74")
    a(f"s_add_u32 s73, s73, {g0*32*F*2}")
    a(f"v_lshrrev_b32 v{vt}, 1, v0")
    a(f"v_mul_u32_u24 v{vt}, {F*2}, v{vt}")
    a(f"v_and_b32 v{vt+1}, 1, v0")
    a(f"v_lshl_add_u32 v{vt}, v{vt+1}, 7, v{vt}")
    for r in range(-(-ng//24)):
        if ng - 24*r < 24:
            a(f"s_cmp_ge_u32 s72, {ng - 24*r}")
            a(f"s_cbranch_scc1 {L}")
        a(f"buffer_load_dword v{vt+1}, v{vt}, s[{srd}:{srd+3}], s73 offen")
        a(f"s_add_u32 s73, s73, {24*32*F*2}")
    a.label(L)

def gen_main(a, name):
    a.kernel_begin(name)
    a("s_cmp_ge_u32 s2, 512")
    a("s_cbranch_scc1 L_end")
    a.load_kernargs()
    sync.wave_setup(a)
    a.srd(48, P_WS, WS_SIZE)
    a.srd(84, P_DBG, 256)
    a("s_cmp_ge_u32 s2, 256")
    a("s_cbranch_scc1 L_slotB")
    a("s_setprio 3")
    a("s_cmp_ge_u32 s2, 192")
    a("s_cbranch_scc1 L_ln")
    def hint2(a):
        L = a.newlabel("hint")
        a("s_cmp_lg_u32 s52, 0")
        a(f"s_cbranch_scc1 {L}")
        a("s_lshl_b32 s76, s2, 8")
        a(f"s_add_u32 s76, s76, {mb(MB_P)}")
        a("v_mov_b32 v8, 0")
        a("v_mov_b32 v9, 1")
        a("s_mov_b64 exec, 1")
        a("buffer_store_dword v9, v8, s[48:51], s76 offen offset:4 sc1")
        a("s_mov_b64 exec, -1")
        a.label(L)
    def pub_qkv(a):
        a("s_and_b32 s72, s56, 3")
        a("s_lshl_b32 s72, s72, 12")
        a("s_and_b32 s73, s55, 12")
        a("s_add_u32 s72, s72, s73")
        a(f"s_add_u32 s72, s72, {mb(MB_QKV)}")
        if HINT2 == 1: hint2(a)
        sync.publish(a, 72, 16, init=True)
        if HINT2 == 2: hint2(a)
    def hint(a):
        L = a.newlabel("hint")
        a("s_lshl_b32 s76, s52, 3")
        a("s_add_u32 s76, s76, s60")
        a(f"s_cmp_lg_u32 s76, {HINT_AT}")
        a(f"s_cbranch_scc1 {L}")
        a("s_lshl_b32 s76, s2, 8")
        a(f"s_add_u32 s76, s76, {mb(MB_P)}")
        a("v_mov_b32 v8, 0")
        a("v_mov_b32 v9, 1")
        a("s_mov_b64 exec, 1")
        a("buffer_store_dword v9, v8, s[48:51], s76 offen sc1")
        a("s_mov_b64 exec, -1")
        a.label(L)
    k_front.qkv_body(a, "s2", pub_qkv, hint if WAIT_QKV else None)
    a("s_branch L_attn")
    a.label("L_ln")
    a("s_sub_u32 s3, s2, 192")
    def pub_h(a):
        a("s_lshr_b32 s72, s58, 4")
        a("s_lshl_b32 s72, s72, 13")
        a(f"s_add_u32 s72, s72, {mb(MB_H)}")
        sync.publish(a, 72, 32, init=True)
    k_front.ln_body(a, "s3", pub_h, only_load=LNB)
    a.stamp_mid(6)
    k_front.gate_own(a)
    a(f"s_cmp_ge_u32 s3, {N_WO}")
    a("s_cbranch_scc1 L_nowo")
    k_front.wo_body(a, "s3")
    a.label("L_nowo")
    a(f"s_mov_b32 s72, {mb(MB_G)}")
    sync.publish(a, 72, 32, init='late')
    a.label("L_attn")
    if CW[1]: w1_touch(a, CW[1][0], CW[1][1], 250)
    a.stamp_mid(2)
    if FRONT_ONLY or A_EXIT: a("s_branch L_done")
    def dep_qkv(a):
        a("s_lshr_b32 s72, s61, 3")
        a("s_lshl_b32 s72, s72, 4")
        a("s_bfe_u32 s73, s2, 0x40003")
        a("s_add_u32 s72, s72, s73")
        a("s_lshl_b32 s72, s72, 8")
        a(f"s_add_u32 s79, s72, {mb(MB_QKV)}")
        a("s_lshr_b32 s73, s2, 6")
        a("s_lshl_b32 s73, s73, 2")
        a("s_add_u32 s72, s79, s73")
        if QPOLL_ALL:
            sync.poll(a, None, 0, vt=8, init='late')
            sync.spin(a, 48, "s72", 12, 8, sleep=2)
        else:
            sync.poll(a, 72, 12, vt=8, sleep=2, init='late')
        if HINT2 == 3: hint2(a)
    def dep_qkv2(a):
        L = a.newlabel("q2"); Ld = a.newlabel("q2d")
        a("s_mov_b32 s76, 0")
        a.label(L)
        a("s_buffer_load_dwordx4 s[72:75], s[48:51], s79 glc")
        a("s_add_u32 s76, s76, 1")
        a("s_waitcnt lgkmcnt(0)")
        a("s_min_u32 s72, s72, s73")
        a("s_min_u32 s74, s74, s75")
        a("s_min_u32 s72, s72, s74")
        a("s_cmp_ge_u32 s72, 12")
        a(f"s_cbranch_scc1 {Ld}")
        a("s_sleep 4")
        a(f"s_cmp_lt_u32 s76, {sync.SPIN_MAX}")
        a(f"s_cbranch_scc1 {L}")
        a.label(Ld)
    def dep_g(a):
        if CW[2]: w1_touch(a, CW[2][0], CW[2][1], 252)
        a("s_bfe_u32 s72, s2, 0x50003")
        a("s_lshl_b32 s72, s72, 8")
        a(f"s_add_u32 s72, s72, {mb(MB_G)}")
        sync.spin(a, 48, "s72", 64, 0)
    def pub_o_f(a):
        a("s_cmp_gt_u32 s61, 7")
        a("s_cselect_b32 s72, 1, 0")
        for hd in (14, 19, 24):
            a(f"s_cmp_gt_u32 s61, {hd}")
            a("s_addc_u32 s72, s72, 0")
        a("s_lshr_b32 s73, s2, 5")
        a("s_mul_i32 s73, s73, 5")
        a("s_add_u32 s72, s72, s73")
        a(f"s_mul_i32 s72, s72, {6*256}")
        a(f"s_add_u32 s72, s72, {mb(MB_O)}")
        a(f"s_lshr_b32 s73, {(1<<7)|(1<<14)|(1<<19)|(1<<24)}, s61")
        a("s_and_b32 s73, s73, 1")
        a("s_cselect_b32 s73, 0xfff, 63")
        sync.publish(a, 72, "s73")
    def pub_o(a):
        if M2G:
            a("s_lshr_b32 s72, s2, 5")
            a("s_lshl_b32 s72, s72, 2")
            a("s_lshr_b32 s73, s61, 3")
            a("s_add_u32 s72, s72, s73")
            a("s_lshl_b32 s72, s72, 11")
            a(f"s_add_u32 s72, s72, {mb(MB_O)}")
            return sync.publish(a, 72, 8)
        if FUSED: return pub_o_f(a)
        a("s_lshr_b32 s72, s2, 5")
        a("s_lshl_b32 s72, s72, 13")
        a("s_lshr_b32 s73, s61, 3")
        a("s_lshl_b32 s73, s73, 2")
        a("s_add_u32 s72, s72, s73")
        a(f"s_add_u32 s72, s72, {mb(MB_O)}")
        sync.publish(a, 72, 24)
    def last_extra(a):
        k_final2.wof_setup(a, "s2", 147)
        return [k_final2.wof_load(k, 147) for k in range(27)]
    TV = 140
    def tsetup(a):
        a.srd(80, P_W2, S*F*2)
        a("s_lshr_b32 s72, s2, 3")
        a("s_lshl_b32 s72, s72, 2")
        a("s_add_u32 s72, s72, s52")
        a("s_mul_i32 s73, s72, 205")
        a("s_lshr_b32 s73, s73, 11")
        a("s_mul_i32 s76, s73, 10")
        a("s_sub_u32 s72, s72, s76")
        a("s_and_b32 s76, s2, 7")
        a("s_mul_i32 s76, s76, 10")
        a("s_add_u32 s72, s72, s76")
        a("s_lshr_b32 s76, s72, 4")
        a("s_and_b32 s72, s72, 15")
        a(f"s_mul_i32 s76, s76, {928*4096}")
        a("s_lshl_b32 s72, s72, 8")
        a("s_add_u32 s76, s76, s72")
        a("s_lshl_b32 s72, s73, 17")
        a("s_add_u32 s76, s76, s72")
        a("s_cmp_ge_u32 s73, 12")
        a("s_cselect_b32 s82, 0, s82")
        a(f"v_lshrrev_b32 v{TV}, 1, v0")
        a(f"v_lshlrev_b32 v{TV}, 12, v{TV}")
        a(f"v_and_b32 v{TV+1}, 1, v0")
        a(f"v_lshl_add_u32 v{TV}, v{TV+1}, 7, v{TV}")
        a(f"v_add_u32 v{TV}, s76, v{TV}")
        a("s_mov_b32 s78, s73")
    def touch(a):
        a("s_cmp_ge_u32 s78, 29")
        a("s_cselect_b32 s82, 0, s82")
        a(f"buffer_load_dword v{TV+1}, v{TV}, s[80:83], 0 offen")
        a(f"v_add_u32 v{TV}, {12*32*4096}, v{TV}")
        a("s_add_u32 s78, s78, 12")
    (k_attn2 if k_front.VNAT else k_attn).attn_body(a, "s2", dep_qkv, pub_o, sm=3, tsetup=tsetup if W2_TOUCH else None, touch=touch if W2_TOUCH else None, dep_g=dep_g, dep2=dep_qkv2, last_extra=None if FUSED else last_extra)
    a.stamp_mid(5)
    if not M2G:
        a("s_cmp_ge_u32 s2, 192")
        a("s_cbranch_scc1 L_done")
    if NO_FINAL: a("s_branch L_done")
    def dep_y(a, i):
        L = a.newlabel("y"); Ld = a.newlabel("yd")
        if i == 0:
            a("s_lshl_b32 s76, s54, 5")
            a("s_add_u32 s76, s76, s53")
            a("s_lshl_b32 s76, s76, 8")
            a(f"s_add_u32 s76, s76, {mb(MB_Y)}")
            a("s_mov_b32 s77, 0")
        else:
            a(f"s_cmp_ge_u32 s{72+i}, 5")
            a(f"s_cbranch_scc1 {Ld}")
        a.label(L)
        a("s_buffer_load_dwordx4 s[72:75], s[48:51], s76 glc")
        a("s_add_u32 s77, s77, 1")
        a("s_waitcnt lgkmcnt(0)")
        a(f"s_cmp_ge_u32 s{72+i}, 5")
        a(f"s_cbranch_scc1 {Ld}")
        if i == 0: a(f"s_sleep {SLP_FIN}")
        a(f"s_cmp_lt_u32 s77, {sync.SPIN_MAX}")
        a(f"s_cbranch_scc1 {L}")
        a.label(Ld)
        if i == 2: a.stamp_mid(7)
    def boxes(a):
        a("s_lshr_b32 s66, s53, 2")
        a("s_lshl_b32 s66, s66, 5")
        a("s_lshr_b32 s67, s2, 3")
        a("s_add_u32 s66, s66, s67")
        a("s_lshl_b32 s66, s66, 8")
        a("s_lshl_b32 s67, s52, 2")
        a("s_add_u32 s66, s66, s67")
        a(f"s_add_u32 s66, s66, {mb(MB_O)}")
        a("s_lshl_b32 s67, s54, 5")
        a("s_add_u32 s67, s67, s53")
        a("s_lshl_b32 s67, s67, 8")
        a(f"s_add_u32 s67, s67, {mb(MB_Y)}")
    def dep_yg(a):
        a("s_lshl_b32 s72, s2, 8")
        a(f"s_add_u32 s72, s72, {mb(MB_Y)}")
        sync.spin(a, 48, "s72", 4, 8, sleep=SLP_FIN)
        a.stamp_mid(7)
    if M2G: k_mlp2g.final_body(a, "s2", dep_yg)
    elif FUSED: k_final.final_body(a, "s2", dep_y)
    else: k_final2.final_body(a, "s2", boxes, sync.SPIN_MAX)
    a("s_branch L_done")
    a.label("L_slotB")
    a("s_sub_u32 s3, s2, 256")
    if INIT_LOW == 1:
        a(f"s_cmp_gt_u32 s3, {sync.N_LATE}")
        a("s_cbranch_scc1 L_noinit")
        a("s_mov_b32 s78, s3")
    elif INIT_LOW == 2:
        a("s_cmp_eq_u32 s3, 255")
        a(f"s_cselect_b32 s78, {sync.N_LATE}, s3")
        a(f"s_cmp_eq_u32 s3, {sync.N_LATE}")
        a("s_cselect_b32 s78, 99, s78")
        a(f"s_cmp_gt_u32 s78, {sync.N_LATE}")
        a("s_cbranch_scc1 L_noinit")
    else:
        a(f"s_cmp_lt_u32 s3, {255 - sync.N_LATE}")
        a("s_cbranch_scc1 L_noinit")
        a(f"s_sub_u32 s78, s3, {255 - sync.N_LATE}")
    a("s_setprio 3")
    sync.init_mailboxes(a, "s78")
    a("s_setprio 0")
    a.stamp_mid(0)
    a.label("L_noinit")
    if CODE_PF:
        Lc = a.newlabel("cpf")
        a("s_lshr_b32 s72, s3, 4")
        a("s_cmp_lg_u32 s72, 2")
        a(f"s_cbranch_scc1 {Lc}")
        a("s_getpc_b64 s[80:81]")
        a.label("L_pc")
        a(f"s_sub_u32 s80, s80, L_pc - {name}")
        a("s_subb_u32 s81, s81, 0")
        a(f"s_mov_b32 s82, L_code_end - {name}")
        a("s_mov_b32 s83, 0x00020000")
        a("s_bfe_u32 s72, s3, 0x10003")
        a("s_lshl_b32 s72, s72, 2")
        a("s_add_u32 s72, s72, s52")
        a("s_lshl_b32 s72, s72, 13")
        a("v_lshlrev_b32 v5, 7, v0")
        a("v_add_u32 v5, s72, v5")
        a("buffer_load_dword v58, v5, s[80:83], 0 offen")
        a.label(Lc)
    if WAIT_QKV:
        Lz = a.newlabel("hz")
        a("s_cmp_lg_u32 s52, 0")
        a(f"s_cbranch_scc1 {Lz}")
        a("s_lshl_b32 s72, s3, 8")
        a(f"s_add_u32 s72, s72, {mb(MB_P)}")
        a("v_lshlrev_b32 v5, 4, v0")
        for i in range(4): a(f"v_mov_b32 v{8+i}, 0")
        a("s_mov_b64 exec, 0xff")
        a("buffer_store_dwordx4 v[8:11], v5, s[48:51], s72 offen sc1")
        a("s_mov_b64 exec, -1")
        a.label(Lz)
    if LNB:
        a("s_lshr_b32 s72, s3, 6")
        a("s_cmp_lg_u32 s72, 1")
        a("s_cbranch_scc1 L_nolnb")
        a(f"s_setprio {LNB_PRIO}")
        a("s_sub_u32 s78, s3, 64")
        st = a.stamp; a.stamp = False
        k_front.ln_body(a, "s78", pub_h, gate=False)
        a.stamp = st
        a("s_setprio 0")
        a.label("L_nolnb")
    if XW == 1: k_front.xw_touch(a, "s3")
    if XW == 2: k_front.xw_touch2(a, "s3", XWD)
    if W1HEAD:
        Lh = a.newlabel("w1h")
        a("s_cmp_lt_u32 s3, 192")
        a(f"s_cbranch_scc1 {Lh}")
        a("s_cmp_ge_u32 s53, 30")
        a(f"s_cbranch_scc1 {Lh}")
        a.srd(80, P_W1, S*F*2)
        a("s_mul_i32 s57, s53, 205")
        a("s_lshr_b32 s57, s57, 10")
        a("s_mul_i32 s58, s57, 5")
        a("s_sub_u32 s58, s53, s58")
        a("s_and_b32 s56, s3, 7")
        a("s_mul_i32 s56, s56, 9")
        a("s_lshr_b32 s56, s56, 1")
        a("s_add_u32 s56, s56, s58")
        a("s_lshl_b32 s56, s56, 8")
        a(f"s_mul_i32 s57, s57, {32*F*2}")
        a("s_add_u32 s56, s56, s57")
        a("v_lshrrev_b32 v5, 1, v0")
        a(f"v_mul_u32_u24 v5, {F*2}, v5")
        a("v_and_b32 v6, 1, v0")
        a("v_lshl_add_u32 v5, v6, 7, v5")
        a("buffer_load_dword v62, v5, s[80:83], s56 offen")
        a.label(Lh)
    if COOP:
        Le = a.newlabel("head")
        a(f"s_cmp_ge_u32 s3, {k_mlp1.MLP1_GRID}")
        a(f"s_cbranch_scc1 {Le}")
        a.srd(80, P_W1, S*F*2)
        a("s_and_b32 s66, s3, 7")
        a("s_mul_i32 s66, s66, 27")
        a("s_lshr_b32 s67, s3, 3")
        a("s_add_u32 s67, s67, s66")
        a("s_mul_i32 s70, s67, 171")
        a("s_lshr_b32 s70, s70, 10")
        a("s_mul_i32 s68, s70, 6")
        a("s_sub_u32 s69, s67, s68")
        a("s_lshl_b32 s66, s70, 8")
        a("s_lshl_b32 s68, s52, 4")
        a("s_add_u32 s67, s69, s68")
        a(f"s_mul_i32 s67, s67, {32*F*2}")
        a("s_add_u32 s66, s66, s67")
        a("v_lshrrev_b32 v5, 1, v0")
        a(f"v_mul_u32_u24 v5, {F*2}, v5")
        a("v_and_b32 v6, 1, v0")
        a("v_lshl_add_u32 v5, v6, 7, v5")
        a("buffer_load_dword v62, v5, s[80:83], s66 offen")
        a("s_cmp_ge_u32 s69, 3")
        a(f"s_mov_b32 s67, {3*32*F*2}")
        a(f"s_cselect_b32 s67, {(-3*32*F*2) & 0xffffffff}, s67")
        a("s_add_u32 s67, s67, s66")
        a("s_lshr_b32 s68, 0x80402010, s70")
        a("s_cmp_lt_u32 s70, 32")
        a("s_cselect_b32 s68, s68, 0")
        a("s_and_b32 s68, s68, 1")
        a(f"s_cbranch_scc0 {Le}")
        a("buffer_load_dword v63, v5, s[80:83], s67 offen")
        a.label(Le)
    if TLBW:
        a("s_lshr_b32 s53, s3, 3")
        a("s_lshl_b32 s53, s53, 2")
        a("s_add_u32 s53, s53, s52")
        a("s_lshl_b32 s53, s53, 6")
        a("v_add_u32 v5, s53, v0")
        a(f"v_lshlrev_b32 v5, {TLBW}, v5")
        a.srd(80, P_W1, S*F*2)
        a("buffer_load_dword v62, v5, s[80:83], 0 offen nt")
        a.srd(80, P_W2, S*F*2)
        a("buffer_load_dword v63, v5, s[80:83], 0 offen nt")
        a.srd(80, P_WS, CNT_OFF)
        a("buffer_load_dword v59, v5, s[80:83], 0 offen nt")
    if k_mlp1y.SHED:
        Lp = a.newlabel("pre")
        a("s_cmp_lt_u32 s3, 220")
        a(f"s_cbranch_scc1 {Lp}")
        a("s_sub_u32 s78, 255, s3")
        k_help.preload(a, "s78")
        a.label(Lp)
    a(f"s_setprio {BPRIO}")
    if INIT_LATE:
        a(f"s_cmp_lt_u32 s3, {k_mlp1.MLP1_GRID}")
        a("s_cbranch_scc1 L_mlp1")
    a("s_waitcnt vmcnt(0)")
    sync.poll(a, None, 0, vt=5, init=True)
    a.stamp_mid(5)
    a("s_cmp_lt_u32 s3, 192")
    a("s_cbranch_scc1 L_mlp1")
    if PF_AFTER_H:
        a("s_bfe_u32 s72, s3, 0x20001")
        a("s_lshl_b32 s72, s72, 5")
        a("s_and_b32 s73, s3, 31")
        a("s_add_u32 s72, s72, s73")
        a("s_lshl_b32 s72, s72, 8")
        a(f"s_add_u32 s72, s72, {mb(MB_H)}")
        sync.poll(a, 72, 16, vt=5, sleep=4)
    a.srd(40, P_W1, S*F*2)
    a("s_sub_u32 s67, 255, s3")
    a(f"s_mul_i32 s66, s52, {512*F*2}")
    a("s_lshl_b32 s68, s67, 13")
    a("s_add_u32 s66, s66, s68")
    a("v_lshlrev_b32 v5, 7, v0")
    a("v_add_u32 v5, s66, v5")
    for r in range(PF1):
        a(f"buffer_load_dword v{60+(r&1)}, v5, s[40:43], 0 offen")
        a(f"v_add_u32 v5, {64*8192}, v5")
        if r >= PFD: a(f"s_waitcnt vmcnt({PFD})")
    a(f"s_cmp_ge_u32 s3, {k_mlp1.MLP1_GRID}")
    a("s_cbranch_scc1 L_aux")
    a.label("L_mlp1")
    if B_EXIT: a("s_branch L_done")
    def dep_h(a):
        a("s_lshl_b32 s72, s52, 5")
        a("s_and_b32 s73, s3, 31")
        a("s_add_u32 s72, s72, s73")
        a("s_lshl_b32 s72, s72, 8")
        a(f"s_add_u32 s72, s72, {mb(MB_H)}")
        sync.spin(a, 48, "s72", 16, 5, sleep=SLP_H)
    def dep_h3(a):
        a("s_and_b32 s72, s3, 31")
        a("s_lshl_b32 s72, s72, 8")
        a(f"s_add_u32 s72, s72, {mb(MB_H + 96)}")
        sync.spin(a, 48, "s72", 16, 5, sleep=SLP_H)
    def dep_h_touch(a, part=0):
        if INIT_LATE and part != 2:
            a("s_waitcnt vmcnt(0)")
            sync.poll(a, None, 0, vt=12, init=True)
        if part == 1: return
        if CW[0]: w1_touch(a, CW[0][0], CW[0][1], 250, srd=80)
        dep_h(a)
        a.stamp_mid(5)
        if COOP_H:
            a("s_and_b32 s72, s3, 7")
            a("s_mul_i32 s72, s72, 9")
            a("s_lshr_b32 s72, s72, 1")
            a("s_sub_u32 s72, s66, s72")
            a("s_lshl_b32 s72, s72, 6")
            a("v_add_u32 v60, s72, v0")
            a("v_mul_u32_u24 v61, 2731, v60")
            a("v_lshrrev_b32 v61, 16, v61")
            a("v_mul_u32_u24 v61, 120, v61")
            a("v_add_lshl_u32 v60, v60, v61, 7")
            a(f"buffer_load_dword v61, v60, s[48:51], s{k_mlp1.S_F} offen sc1")
    def hold(a, word=0):
        L = a.newlabel("hold"); Ld = a.newlabel("holdd")
        a("s_cmp_ge_u32 s3, 192")
        a(f"s_cbranch_scc1 {Ld}")
        a("s_lshl_b32 s72, s3, 8")
        a(f"s_add_u32 s72, s72, {mb(MB_P) + 4*word}")
        a("s_and_b32 s73, s3, 63")
        a("s_lshl_b32 s73, s73, 8")
        a(f"s_add_u32 s73, s73, {mb(MB_QKV)}")
        a("s_mov_b32 s74, 0")
        a.label(L)
        a("s_buffer_load_dword s75, s[48:51], s72 glc")
        a("s_add_u32 s74, s74, 1")
        a("s_waitcnt lgkmcnt(0)")
        a("s_cmp_lg_u32 s75, 0")
        a(f"s_cbranch_scc1 {Ld}")
        a("s_sleep 4")
        a("s_and_b32 s75, s74, 15")
        a(f"s_cbranch_scc1 {L}")
        a("s_buffer_load_dword s75, s[48:51], s73 glc")
        a("s_waitcnt lgkmcnt(0)")
        a("s_cmp_ge_u32 s75, 12")
        a(f"s_cbranch_scc1 {Ld}")
        a(f"s_cmp_lt_u32 s74, {sync.SPIN_MAX}")
        a(f"s_cbranch_scc1 {L}")
        a.label(Ld)
    def w2_tail(a):
        a.srd(80, P_W2, S*F*2)
        a("s_lshr_b32 s72, s3, 3")
        a("s_mul_i32 s73, s72, 86")
        a("s_lshr_b32 s73, s73, 8")
        a("s_mul_i32 s76, s73, 3")
        a("s_sub_u32 s72, s72, s76")
        a("s_and_b32 s76, s3, 7")
        a("s_mul_i32 s76, s76, 10")
        a("s_add_u32 s73, s73, s76")
        a("s_lshr_b32 s76, s73, 4")
        a("s_and_b32 s73, s73, 15")
        a(f"s_mul_i32 s76, s76, {928*4096}")
        a("s_lshl_b32 s73, s73, 8")
        a("s_add_u32 s76, s76, s73")
        a("s_lshl_b32 s72, s72, 2")
        a("s_add_u32 s72, s72, s52")
        a(f"s_add_u32 s72, s72, {29 - 12*W2_TAIL}")
        a("s_lshl_b32 s72, s72, 17")
        a("s_add_u32 s76, s76, s72")
        a("v_lshrrev_b32 v60, 1, v0")
        a("v_lshlrev_b32 v60, 12, v60")
        a("v_and_b32 v61, 1, v0")
        a("v_lshl_add_u32 v60, v61, 7, v60")
        a("v_add_u32 v60, s76, v60")
        for e in range(W2_TAIL):
            a(f"buffer_load_dword v{61+e}, v60, s[80:83], 0 offen")
            a(f"v_add_u32 v60, {12*32*4096}, v60")
    def checks(a, wave):
        Lg = a.newlabel("g")
        a(f"s_cmp_lg_u32 s52, {wave}")
        a(f"s_cbranch_scc1 {Lg}")
        sync.spin_init(a, 14, True)
        a("s_bfe_u32 s73, s2, 0x50003")
        a("s_lshl_b32 s73, s73, 8")
        a(f"s_add_u32 s73, s73, {mb(MB_G)}")
        sync.spin(a, 48, "s73", 64, 0)
        a.label(Lg)
    def pub_u(a, part):
        if part == 0 and M2G:
            a("s_mul_i32 s18, s66, 57")
            a("s_lshr_b32 s18, s18, 9")
            a("s_lshl_b32 s18, s18, 2")
            a("s_lshl_b32 s19, s67, 2")
            a("s_lshr_b32 s19, 0x322100, s19")
            a("s_and_b32 s19, s19, 15")
            a("s_add_u32 s18, s18, s19")
            a("s_lshl_b32 s18, s18, 12")
            a(f"s_add_u32 s18, s18, {mb(MB_U)}")
            a("s_lshr_b32 s19, 0x12, s67")
            a("s_and_b32 s19, s19, 1")
            a("s_cselect_b32 s19, -1, 0xffff")
        elif part == 0:
            a("s_mul_i32 s18, s66, 565")
            a("s_lshr_b32 s18, s18, 12")
            a("s_lshr_b32 s19, s67, 1")
            a("s_mul_i32 s19, s19, 5")
            a("s_add_u32 s18, s18, s19")
            a("s_lshl_b32 s18, s18, 12")
            a(f"s_add_u32 s18, s18, {mb(MB_U)}")
            a("s_lshr_b32 s19, 0x204080, s66")
            a("s_cmp_lt_u32 s66, 32")
            a("s_cselect_b32 s19, s19, 0")
            a("s_and_b32 s19, s19, 1")
            a("s_cselect_b32 s19, -1, 0xffff")
        else:
            checks(a, 1)
            sync.publish(a, 18, "s19", vt=14)
    def ebox(a, wait=False):
        a("s_lshl_b32 s65, s59, 8")
        a("s_lshl_b32 s70, s52, 2")
        a("s_add_u32 s65, s65, s70")
        a(f"s_add_u32 s65, s65, {mb(MB_E)}")
        sync.spin_init(a, 14, True)
        if wait: sync.spin(a, 48, "s65", 1, 0, sleep=2)
    def early2(a):
        a("s_barrier")
        (k_mlp2g if M2G else k_mlp2f).mlp2_body(a, "s3", 3, None, None, None, part=1)
    (k_mlp1y if M1Y else k_mlp1).mlp1_body(a, "s3", dep_h_touch, pub_u, sm=0, epi=early2, hold=hold if WAIT_QKV else None, hold2=(lambda a: hold(a, 1)) if HINT2 else None, ebox=ebox)
    a.stamp_mid(2)
    a("s_branch L_mlp2")
    a.label("L_aux")
    if B_EXIT: a("s_branch L_done")
    if k_mlp1y.SHED:
        a("s_cmp_ge_u32 s67, 36")
        a("s_cbranch_scc1 L_nohelp")
        a("s_mov_b32 s78, s67")
        k_help.body_all(a, "s78", dep_h3, ebox)
        a.label("L_nohelp")
        a.stamp_mid(6)
        a("s_setprio 0")
        a("s_sub_u32 s67, 255, s3")
    if PFMODE == "col":
        a("s_and_b32 s66, s3, 7")
        a("s_mul_i32 s66, s66, 9")
        a("s_lshr_b32 s66, s66, 1")
        a("s_lshr_b32 s67, s67, 3")
        a("s_add_u32 s66, s66, s67")
        a("s_lshl_b32 s66, s66, 8")
        a(f"s_mul_i32 s69, s52, {(32 if M1Y else 512)*F*2}")
        a("s_add_u32 s66, s66, s69")
        a("v_lshrrev_b32 v5, 1, v0")
        a(f"v_mul_u32_u24 v5, {F*2}, v5")
        a("v_and_b32 v6, 1, v0")
        a("v_lshl_add_u32 v5, v6, 7, v5")
        if PFH:
            dep_h(a)
            a(f"s_mul_i32 s69, s52, {32*18*1024}")
            a("s_lshl_b32 s70, s67, 13")
            a("s_add_u32 s69, s69, s70")
            a(f"s_add_u32 s69, s69, {HT_OFF}")
            a("v_lshlrev_b32 v7, 7, v0")
        g0 = 6 if COOP else 0
        a(f"s_add_u32 s66, s66, {(g0*32 + PFS1*128)*F*2}")
        if PFH and COOP_H: a(f"s_add_u32 s69, s69, {12*18*1024}")
        for n in range(min(PFN1, 16 - g0)):
            a(f"buffer_load_dword v{60+(n&1)}, v5, s[40:43], s66 offen")
            a(f"s_add_u32 s66, s66, {(128 if M1Y else 32)*F*2}")
            if PFH and n < (9 if COOP_H else 14):
                a(f"buffer_load_dword v{62+(n&1)}, v7, s[48:51], s69 offen sc1")
                a(f"s_add_u32 s69, s69, {5*8192}")
            a(f"s_waitcnt vmcnt({PFD})")
        a.stamp_mid(1)
        a.srd(40, P_W2, S*F*2)
        a("s_lshl_b32 s68, s67, 2")
        a("s_add_u32 s68, s68, s52")
        if M2G:
            a("s_bfe_u32 s66, s3, 0x20001")
            a(f"s_mul_i32 s66, s66, {1152*4096}")
            a("s_and_b32 s67, s3, 1")
            a("s_lshl_b32 s67, s67, 11")
            a("s_add_u32 s66, s66, s67")
            a("s_lshl_b32 s67, s68, 14")
            a("s_add_u32 s66, s66, s67")
            a("v_lshrrev_b32 v5, 4, v0")
            a("v_lshlrev_b32 v5, 12, v5")
            a("v_and_b32 v6, 15, v0")
            a("v_lshl_add_u32 v5, v6, 7, v5")
            a("v_add_u32 v5, s66, v5")
            for n in range(PF2):
                a(f"buffer_load_dword v{60+(n&1)}, v5, s[40:43], 0 offen")
                a(f"v_add_u32 v5, {80*4096}, v5")
                a(f"s_waitcnt vmcnt({PFD})")
        else:
            a("s_and_b32 s66, s3, 7")
            a("s_mul_i32 s66, s66, 10")
            a("s_lshr_b32 s69, s68, 1")
            a("s_add_u32 s66, s66, s69")
            a("s_lshr_b32 s67, s66, 4")
            a("s_and_b32 s66, s66, 15")
            a(f"s_mul_i32 s67, s67, {928*4096}")
            a("s_lshl_b32 s66, s66, 8")
            a("s_add_u32 s67, s67, s66")
            a("s_and_b32 s66, s52, 1")
            a("s_lshl_b32 s66, s66, 17")
            a("s_add_u32 s67, s67, s66")
            a("v_lshrrev_b32 v5, 1, v0")
            a("v_lshlrev_b32 v5, 12, v5")
            a("v_and_b32 v6, 1, v0")
            a("v_lshl_add_u32 v5, v6, 7, v5")
            a("v_add_u32 v5, s67, v5")
            for n in range(PF2):
                a(f"buffer_load_dword v{60+(n&1)}, v5, s[40:43], 0 offen")
                a(f"v_add_u32 v5, {64*4096}, v5")
                a(f"s_waitcnt vmcnt({PFD})")
    else:
        for n in range(-(-(576 - 64*PF1)//40) if PFW1 else 0):
            a(f"buffer_load_dword v{60+(n&1)}, v5, s[40:43], 0 offen")
            a(f"v_add_u32 v5, {40*8192}, v5")
            a(f"s_waitcnt vmcnt({PFD})")
        a.stamp_mid(1)
        a.srd(40, P_W2, S*F*2)
        a("s_lshl_b32 s68, s67, 2")
        a("s_add_u32 s68, s68, s52")
        a("s_lshr_b32 s66, s68, 5")
        a("s_and_b32 s68, s68, 31")
        a(f"s_mul_i32 s66, s66, {928*4096}")
        a("s_lshl_b32 s68, s68, 13")
        a("s_add_u32 s66, s66, s68")
        a("v_lshlrev_b32 v5, 7, v0")
        a("v_add_u32 v5, s66, v5")
        for n in range(PF2):
            a(f"buffer_load_dword v{60+(n&1)}, v5, s[40:43], 0 offen")
            a(f"v_add_u32 v5, {32*8192}, v5")
            a(f"s_waitcnt vmcnt({PFD})")
    a("s_waitcnt vmcnt(0)")
    a.stamp_mid(2)
    a("s_and_b32 s70, s3, 1")
    a(f"s_mul_i32 s70, s70, {(-16*k_mlp2f.SKEW) & 0xffffffff}")
    a(f"s_add_u32 s70, s70, {240 + 8*k_mlp2f.SKEW}")
    a(f"s_cmp_ge_u32 s3, {'256' if M2G else 's70'}")
    a("s_cbranch_scc1 L_aux0" if PF3 else "s_cbranch_scc1 L_done")
    (k_mlp2g if M2G else k_mlp2f).mlp2_body(a, "s3", 3, None, None, None, part=1)
    checks(a, 0)
    a("s_barrier")
    a.label("L_mlp2")
    if k_mlp1y.PST: a("s_branch L_done")
    def dep_u(a):
        if M2G:
            a("s_lshl_b32 s73, s69, 2")
            a("s_add_u32 s73, s73, s67")
            a("s_lshl_b32 s73, s73, 4")
            a("s_add_u32 s73, s73, s66")
            a("s_lshl_b32 s73, s73, 8")
            a(f"s_add_u32 s73, s73, {mb(MB_U)}")
            return sync.spin(a, 48, "s73", 18, 8, sleep=1)
        a("s_mul_i32 s73, s67, 5")
        a("s_add_u32 s73, s73, s69")
        a("s_lshl_b32 s73, s73, 4")
        a("s_add_u32 s73, s73, s66")
        a("s_lshl_b32 s73, s73, 8")
        a(f"s_add_u32 s73, s73, {mb(MB_U)}")
        a("s_cmp_eq_u32 s69, 4")
        a("s_cselect_b32 s76, 14, 16")
        (sync.spin(a, 48, "s73", "s76", 8, sleep=1) if UPOLL_ALL else sync.poll(a, 73, "s76", vt=8, sleep=2))
        if COOP_U:
            a("s_lshr_b32 s70, s3, 3")
            a("s_mul_i32 s70, s70, 86")
            a("s_lshr_b32 s70, s70, 8")
            a("s_mul_i32 s73, s52, 10")
            a("s_add_u32 s70, s70, s73")
            a("s_lshl_b32 s70, s70, 6")
            a("s_add_u32 s70, s70, 288")
            a("v_add_u32 v60, s70, v0")
            a("v_min_u32 v60, 2783, v60")
            a("v_mul_u32_u24 v61, 5462, v60")
            a("v_lshrrev_b32 v61, 18, v61")
            a("v_mul_u32_u24 v61, 96, v61")
            a("v_add_lshl_u32 v60, v60, v61, 7")
            a(f"s_mul_i32 s70, s69, {58*18*1024}")
            a("s_mul_i32 s73, s67, 6144")
            a("s_add_u32 s70, s70, s73")
            a(f"s_add_u32 s70, s70, {U_OFF}")
            a("s_mov_b32 s77, s70")
    def ybox(a):
        if M2G:
            a("s_lshl_b32 s76, s67, 6")
            a("s_add_u32 s76, s76, s65")
            a("s_lshl_b32 s76, s76, 8")
            a(f"s_add_u32 s76, s76, {mb(MB_Y)}")
            return
        a("s_lshl_b32 s76, s67, 1")
        a("s_add_u32 s76, s76, s71")
        a("s_lshl_b32 s76, s76, 5")
        a("s_lshl_b32 s70, s66, 1")
        a("s_add_u32 s76, s76, s70")
        a("s_add_u32 s76, s76, s72")
        a("s_lshl_b32 s76, s76, 8")
        a(f"s_add_u32 s76, s76, {mb(MB_Y)}")
    def dep_o(a, block):
        if block == "addr" and M2G:
            a("s_lshr_b32 s59, s66, 1")
            a("s_lshl_b32 s59, s59, 2")
            a("s_add_u32 s59, s59, s69")
            a("s_lshl_b32 s59, s59, 2")
            a("s_add_u32 s59, s59, s67")
            a("s_lshl_b32 s59, s59, 1")
            a("s_and_b32 s70, s66, 1")
            a("s_add_u32 s59, s59, s70")
            a("s_lshl_b32 s59, s59, 8")
            a(f"s_add_u32 s59, s59, {mb(MB_O)}")
            a("s_mov_b32 s64, 8")
        elif block == "addr":
            a("s_lshr_b32 s59, s66, 1")
            a("s_mul_i32 s59, s59, 5")
            a("s_add_u32 s59, s59, s69")
            a("s_mul_i32 s59, s59, 6")
            a("s_lshl_b32 s70, s67, 1")
            a("s_add_u32 s59, s59, s70")
            a("s_and_b32 s70, s66, 1")
            a("s_add_u32 s59, s59, s70")
            a("s_lshl_b32 s59, s59, 8")
            a(f"s_add_u32 s59, s59, {mb(MB_O)}")
            a("s_lshl_b32 s64, s53, 1")
        else:
            sync.spin(a, 48, "s59", "s64", 8, sleep=1)
            a.stamp_mid(6)
    if M2G: k_mlp2g.mlp2_body(a, "s3", 3, dep_u, dep_o, ybox, part=2)
    elif FUSED: k_mlp2f.mlp2_body(a, "s3", 3, dep_u, dep_o, ybox, part=2, post=(lambda a: a("buffer_load_dword v61, v60, s[48:51], s77 offen sc1")) if COOP_U else None)
    else: k_mlp2.mlp2_body(a, "s3", 3, dep_u, ybox)
    if PF3:
        a("s_branch L_done")
        a.label("L_aux0")
        a("v_lshrrev_b32 v5, 1, v0")
        a("v_lshlrev_b32 v5, 12, v5")
        a("v_and_b32 v6, 1, v0")
        a("v_lshl_add_u32 v5, v6, 7, v5")
        a("s_and_b32 s66, s3, 7")
        a("s_mul_i32 s66, s66, 10")
        for r in range(PF3):
            a(f"s_add_u32 s69, s68, {8*r}")
            a("s_mul_i32 s70, s69, 205")
            a("s_lshr_b32 s70, s70, 11")
            a("s_mul_i32 s71, s70, 10")
            a("s_sub_u32 s69, s69, s71")
            a("s_add_u32 s69, s69, s66")
            a("s_lshr_b32 s71, s69, 4")
            a("s_and_b32 s69, s69, 15")
            a("s_mul_i32 s71, s71, 29")
            a("s_add_u32 s70, s70, s71")
            a(f"s_add_u32 s70, s70, {2*PF2}")
            a("s_lshl_b32 s70, s70, 17")
            a("s_lshl_b32 s69, s69, 8")
            a("s_add_u32 s69, s69, s70")
            a("v_add_u32 v7, s69, v5")
            a(f"buffer_load_dword v{60+(r&1)}, v7, s[40:43], 0 offen")
            a("s_waitcnt vmcnt(1)")
    a.label("L_done")
    if DIAG is not None:
        wg, slot, kind = DIAG
        Ld = a.newlabel("diag"); Lw = a.newlabel("diagw")
        a(f"s_cmp_lg_u32 s2, {wg}")
        a(f"s_cbranch_scc1 {Ld}")
        a("s_waitcnt vmcnt(0)")
        if slot == "end":
            a.stamp_mid(0); slot = 0
        if slot is None:
            a("s_mov_b32 s70, 0")
        elif kind == "t":
            a(f"s_sub_u32 s70, s{4+slot}, s88")
            a("s_mul_i32 s70, s70, 10")
        else:
            a(f"s_lshr_b32 s70, s{93+slot}, 1")
        a("s_add_u32 s70, s70, 20000")
        a.label(Lw)
        a("s_sleep 1")
        a("s_memrealtime s[90:91]")
        a("s_waitcnt lgkmcnt(0)")
        a("s_sub_u32 s71, s90, s88")
        a("s_cmp_lt_u32 s71, s70")
        a(f"s_cbranch_scc1 {Lw}")
        a.label(Ld)
    a.end()
    a.label("L_end")
    a("s_endpgm")
    a.label("L_code_end")

def build(stamp=False):
    a = Asm()
    a.stamp = stamp
    fin = NAME + "_kernel"
    out = HEADER
    out += (f"; @launch kernel={fin} grid=(512,1,1) block=(256,1,1) lds=81920\n" if LIST else "; @launch grid=(512,1,1) block=(256,1,1) lds=81920\n")
    out += DOC
    out += '.amdgcn_target "amdgcn-amd-amdhsa--gfx950"\n.text\n'
    gen_main(a, fin)
    if PRE:
        out = out.replace("; @launch kernel=", "; @launch kernel=pre_kernel grid=(256,1,1) block=(256,1,1) lds=0\n; @launch kernel=", 1)
        st = a.stamp; a.stamp = False
        a.kernel_begin("pre_kernel")
        if PRE > 1:
            a("s_cmp_ge_u32 s2, 256")
            a("s_cbranch_scc1 L_pre_end")
            a.load_kernargs()
            sync.wave_setup(a)
            k_front.xw_touch(a, "s2")
            a("s_getpc_b64 s[80:81]")
            a.label("L_pc2")
            a(f"s_sub_u32 s80, s80, L_pc2 - {fin}")
            a("s_subb_u32 s81, s81, 0")
            a(f"s_mov_b32 s82, L_code_end - {fin}")
            a("s_mov_b32 s83, 0x00020000")
            a("s_lshr_b32 s72, s2, 3")
            a("s_lshl_b32 s72, s72, 2")
            a("s_add_u32 s72, s72, s52")
            a("s_lshl_b32 s72, s72, 13")
            a("v_lshlrev_b32 v5, 7, v0")
            a("v_add_u32 v5, s72, v5")
            a("buffer_load_dword v58, v5, s[80:83], 0 offen")
            a("s_waitcnt vmcnt(0)")
            a.label("L_pre_end")
        a("s_endpgm")
        a.stamp = st
    out += a.text()
    out += '.section .rodata,"a"\n'
    if PRE: out += ".p2align 6\n" + descriptor("pre_kernel", 64, None)
    out += ".p2align 6\n" + descriptor(fin, 256, None)
    return out

if __name__ == "__main__":
    open("main.s", "w").write(build())
    open("stamp.s", "w").write(build(True))
    open("main_l.s", "w").write(build("lite"))
    LIST = False
    open("final.s", "w").write(build())
    LIST = True
    VARS = eval(open("vars.txt").read())
    import copy
    for nm, kv in VARS.items():
        saved = {}
        for k, v in kv.items():
            mod, name = (globals()[k.split(".")[0]].__dict__, k.split(".")[1]) if "." in k else (globals(), k)
            saved[k] = (mod, name, mod[name]); mod[name] = v
        open(f"gen/{nm}.s", "w").write(build(False))
        open(f"gen/{nm}_s.s", "w").write(build(True))
        open(f"gen/{nm}_l.s", "w").write(build("lite"))
        for mod, name, v in saved.values(): mod[name] = v
    print("wrote")
```

```python
from common import *

ATTN_GRID = 256
SKIP = False
CH = 16*KV_RS
ATTN_LDS = 2*CH + 64

VK0, VK1, VV, VDM = 1, 2, 3, 4
VL, IXM, IXL = 144, 145, 146
OL = [148, 152]
Q0 = [8, 12]; Q1 = [16, 18]
K0 = [20, 24]; K1 = [28, 30]
V = [32, 40]
P = [48, 56]
Sx = [64, 80]
O = [96, 112]
TMP = 128
NV_ATTN = 144
S_KV, S_C, S_ATT, S_VM = 54, 55, 56, 58

def dma_chunk(a, sbuf, soff):
    for i in range(9):
        a(f"s_add_u32 m0, s{sbuf}, {i*4096}")
        a(f"s_add_u32 s60, s{soff}, {i*4096}")
        a(f"buffer_load_dwordx4 v{VDM}, s[48:51], s60 offen sc1 lds")

def qk(a, which, aq, kb):
    s = vr(Sx[aq], 16)
    if which == 0:
        a(f"v_mfma_f32_32x32x16_bf16 {s}, {vr(K0[kb],4)}, {vr(Q0[aq],4)}, 0")
    else:
        a(f"v_mfma_f32_32x32x8_bf16 {s}, {vr(K1[kb],2)}, {vr(Q1[aq],2)}, {s}")

def pv(a, which, aq, vb):
    if which == 0:
        a(f"v_smfmac_f32_32x32x32_bf16 {vr(O[aq],16)}, {vr(V[vb],4)}, {vr(P[aq],8)}, v{IXM}")
    else:
        a(f"v_smfmac_f32_16x16x64_bf16 {vr(OL[aq],4)}, {vr(V[vb]+4,4)}, {vr(P[aq],8)}, v{IXL}")

def read_k(a, kb, rec):
    a(f"ds_read_b128 {vr(K0[kb],4)}, v{VK0} offset:{rec*KV_RS}")
    a(f"ds_read_b32 v{K1[kb]}, v{VK1} offset:{rec*KV_RS}")

def read_v(a, vb, rec):
    for x in V_FILL(vb, rec): a(x)

def expq(a, aq, q, fill=()):
    fill = list(fill)
    for e in range(4):
        r = Sx[aq] + 4*q + e
        a(f"v_exp_f32 v{r}, v{r}")
        if fill: a(fill.pop(0))
    assert not fill
    for c in range(2):
        r = Sx[aq] + 4*q + 2*c
        a(f"v_cvt_pk_bf16_f32 v{P[aq]+2*q+c}, v{r}, v{r+1}")

def block(a, kt, aq, rec=None, do_qk=True, dma=None, extra=None):
    an = 1 - aq
    kq = (kt + aq) & 1
    vb = (kt - 1 + aq) & 1
    nb = (kt + 1) & 1
    f0 = []
    if rec is not None:
        if aq == 0:
            f0 = [f"ds_read_b128 {vr(K0[nb],4)}, v{VK0} offset:{rec*KV_RS}", f"ds_read_b32 v{K1[nb]}, v{VK1} offset:{rec*KV_RS}"]
        else:
            f0 = V_FILL(nb, rec)
    if NOLDS: f0 = []
    if aq == 1 and MODE != 1:
        a("s_waitcnt lgkmcnt(0)")
    ms = [lambda: qk(a, 0, an, kq) if do_qk else None, lambda: qk(a, 1, an, kq) if do_qk else None,
          lambda: pv(a, 0, an, vb), lambda: pv(a, 1, an, vb)]
    if MODE == 4:
        ops = []
        for q in range(4):
            for e in range(4): ops.append((8, f"v_exp_f32 v{Sx[aq]+4*q+e}, v{Sx[aq]+4*q+e}"))
            for c in range(2):
                r = Sx[aq] + 4*q + 2*c
                ops.append((4, f"v_cvt_pk_bf16_f32 v{P[aq]+2*q+c}, v{r}, v{r+1}"))
        done = 0; i = 0
        for q in range(4):
            ms[ORDER[q]]()
            if q == XG[aq]:
                for x in f0: a(x)
            if dma is not None and q == DG:
                a(f"s_add_u32 m0, s67, {dma*4096}")
                a(f"s_add_u32 s60, s66, {dma*4096}")
                a(f"buffer_load_dwordx4 v{VDM}, s[80:83], s60 offen sc1 lds")
            lim = CUT[aq][q] if q < 3 else 1e9
            while i < len(ops) and done + ops[i][0] <= lim:
                a(ops[i][1]); done += ops[i][0]; i += 1
        return
    for q in range(4):
        ms[q]()
        fl = []
        if dma is not None and q == 2:
            a(f"s_add_u32 m0, s67, {dma*4096}")
            a(f"s_add_u32 s60, s66, {dma*4096}")
        if dma is not None and q == 3:
            a(f"buffer_load_dwordx4 v{VDM}, s[80:83], s60 offen sc1 lds")
        if extra and q == 2:
            for x in extra: a(x)
        if MODE == 0:
            if q == 0:
                for x in f0: a(x)
        elif MODE == 1:
            if q == 0: fl = f0
            if q == 3 and aq == 0: fl = ["s_waitcnt lgkmcnt(0)"]
        elif MODE == 2:
            if q < len(f0): a(f0[q])
        expq(a, aq, q, fl)

MODE = 4
ORDER = (0, 1, 2, 3)
CUT = ((40, 88, 136), (32, 80, 128))
XG = (0, 0)
DG = 2
PROST = False
AST = False
K2 = 2
SPREAD = True
NOLDS = False
SPREAD_V = True
def V_FILL(vb, rec):
    return [f"ds_read_b128 {vr(V[vb],4)}, v{VV} offset:{rec*KV_RS}",
            f"s_mov_b64 exec, s[{S_VM}:{S_VM+1}]",
            f"ds_read_b64 {vr(V[vb]+4,2)}, v{VL} offset:{rec*KV_RS}",
            f"s_mov_b64 exec, s[76:77]",
            f"ds_read_b64 {vr(V[vb]+6,2)}, v{VL} offset:{rec*KV_RS}",
            f"s_mov_b64 exec, -1"]

def set_m(a, aq, m):
    t = TMP
    a(f"v_mov_b32 v{t}, v{m}")
    a("s_nop 1")
    a(f"v_permlane32_swap_b32 v{m}, v{t}")
    a("s_nop 1")
    a(f"v_max_f32 v{m}, v{m}, v{t}")
    a(f"v_sub_f32 v{m}, 0, v{m}")
    a(f"v_and_b32 v{t}, 0xffff0000, v{m}")
    a(f"v_sub_f32 v{m}, v{m}, v{t}")
    a(f"v_and_b32 v{t+1}, 0xffff0000, v{m}")
    a(f"v_sub_f32 v{m}, v{m}, v{t+1}")
    a(f"v_lshrrev_b32 v{t}, 16, v{t}")
    a(f"v_or_b32 v{t}, v{t}, v{t+1}")
    a(f"v_lshrrev_b32 v{m}, 16, v{m}")
    a(f"v_cmp_gt_u32 vcc, 32, v0")
    a("s_nop 1")
    a(f"v_cndmask_b32 v{Q1[aq]+1}, v{m}, v{t}, vcc")

def tile_max(a, aq, m, first):
    s = Sx[aq]
    if first:
        a(f"v_max3_f32 v{m}, v{s}, v{s+1}, v{s+2}")
        a(f"v_max_f32 v{m}, v{m}, v{s+3}")
        st = 4
    else:
        st = 0
    for e in range(st, 16, 2):
        a(f"v_max3_f32 v{m}, v{m}, v{s+e}, v{s+e+1}")

def attn_body(a, wgreg, dep, pub, sm=0, tsetup=None, touch=None, dep_g=None, dep2=None, last_extra=None):
    a(f"s_and_b32 s61, {wgreg}, 7")
    a("s_lshl_b32 s61, s61, 2")
    a(f"s_bfe_u32 s62, {wgreg}, 0x20003")
    a("s_add_u32 s61, s61, s62")
    a(f"s_lshr_b32 s62, {wgreg}, 5")
    a("s_lshl_b32 s62, s62, 3")
    a("s_lshl_b32 s63, s52, 1")
    a("s_add_u32 s62, s62, s63")
    a(f"s_mul_i32 s{S_KV}, s61, {64*KV_RS}")
    a(f"s_add_u32 s{S_KV}, s{S_KV}, {KV_OFF}")
    a("s_lshl_b32 s64, s52, 10")
    a(f"s_add_u32 s65, s64, {CH}")
    a(f"v_lshlrev_b32 v5, 4, v0")
    a(f"v_add_u32 v{VDM}, s64, v5")
    a("s_lshl_b32 s63, s61, 6")
    a("s_add_u32 s63, s63, s62")
    a(f"s_mul_i32 s63, s63, {QR_RS}")
    a(f"s_add_u32 s63, s63, {QR_OFF}")
    a("v_and_b32 v6, 31, v0")
    a("v_lshlrev_b32 v7, 2, v6")
    a(f"s_mov_b32 s{S_ATT}, 0")
    for b in range(2):
        a(f"v_mov_b32 v{K1[b]+1}, 0x3f803f80")
        a(f"v_mov_b32 v{Q1[b]+1}, 0")
    for b in range(2):
        for e in range(8):
            a(f"v_mov_b32 v{V[b]+e}, 0")
    for msk, o in ((0x03030303, 4), (0x30303030, 6)):
        a(f"s_mov_b32 exec_lo, {msk}")
        a(f"s_mov_b32 exec_hi, {msk}")
        for b in range(2):
            a(f"v_mov_b32 v{V[b]+o}, 0x3f803f80")
            a(f"v_mov_b32 v{V[b]+o+1}, 0x3f803f80")
    a("s_mov_b64 exec, -1")
    a(f"v_mov_b32 v{IXM}, 0x4444")
    a(f"v_mov_b32 v{IXL}, 0x4444")
    a("s_mov_b32 exec_lo, 0xffff0000")
    a("s_mov_b32 exec_hi, 0xffff0000")
    a(f"v_mov_b32 v{IXM}, 0xeeee")
    a("s_mov_b32 exec_lo, 0xaaaaaaaa")
    a("s_mov_b32 exec_hi, 0xaaaaaaaa")
    a(f"v_mov_b32 v{IXL}, 0xeeee")
    a("s_mov_b64 exec, -1")
    a(f"s_mov_b32 s{S_VM}, 0x0c0c0c0c")
    a(f"s_mov_b32 s{S_VM+1}, 0x0c0c0c0c")
    a.label("L_attn_start")
    a(f"s_lshr_b32 s57, {wgreg}, 6")
    def next_chunk(sbuf):
        a(f"s_mul_i32 s66, s57, {CH}")
        a(f"s_add_u32 s66, s66, s{S_KV}")
        a("s_add_u32 s57, s57, 1")
        a("s_and_b32 s57, s57, 3")
        if sbuf is not None: dma_chunk(a, sbuf, 66)
    a(f"v_mov_b32 v{VK0}, v5")
    a(f"v_add_u32 v{VK1}, 1024, v7")
    a(f"v_lshrrev_b32 v{VV}, 4, v0")
    a(f"v_mul_u32_u24 v{VV}, 288, v{VV}")
    a(f"v_and_b32 v{TMP}, 15, v0")
    a(f"v_lshl_add_u32 v{VV}, v{TMP}, 4, v{VV}")
    a(f"v_add_u32 v{VV}, 1152, v{VV}")
    a(f"v_lshrrev_b32 v{VL}, 5, v0")
    a(f"v_and_b32 v{TMP}, 1, v0")
    a(f"v_lshl_add_u32 v{VL}, v{VL}, 1, v{TMP}")
    a(f"v_mul_u32_u24 v{VL}, 288, v{VL}")
    a(f"v_bfe_u32 v{TMP}, v0, 3, 1")
    a(f"v_lshl_add_u32 v{VL}, v{TMP}, 4, v{VL}")
    a(f"v_bfe_u32 v{TMP}, v0, 4, 1")
    a(f"v_lshl_add_u32 v{VL}, v{TMP}, 3, v{VL}")
    a(f"v_add_u32 v{VL}, {1152 + 256}, v{VL}")
    for aq in range(2):
        for e in range(4):
            a(f"v_mov_b32 v{OL[aq]+e}, 0")
    for aq in range(2):
        for e in range(16):
            a(f"v_mov_b32 v{O[aq]+e}, 0")
    for e in range(8):
        a(f"v_mov_b32 v{P[1]+e}, 0")
    a.srd(80, P_WS, WS_SIZE)
    next_chunk(None)
    a(f"s_cmp_lg_u32 s{S_ATT}, 0")
    a("s_cbranch_scc1 L_attn_noq")
    dep(a)
    if PROST: a.stamp_mid(0)
    for aq in range(2):
        a(f"buffer_load_dwordx4 {vr(Q0[aq],4)}, v5, s[48:51], s63 offen offset:{aq*QR_RS} sc1")
        a(f"buffer_load_dword v{Q1[aq]}, v7, s[48:51], s63 offen offset:{aq*QR_RS + 1024} sc1")
    a.label("L_attn_noq")
    dma_chunk(a, 64, 66)
    next_chunk(None)
    a(f"s_mov_b32 s67, s65")
    a(f"s_mov_b32 s68, s64")
    if PROST: a.stamp_mid(1)
    a("s_waitcnt vmcnt(8) lgkmcnt(0)")
    a("s_barrier")
    if PROST: a.stamp_mid(6)
    if touch: touch(a)
    a("s_mov_b32 s76, 0xc0c0c0c0")
    a("s_mov_b32 s77, 0xc0c0c0c0")
    read_k(a, 0, 0)
    read_v(a, 0, 0)
    a(f"v_cmp_gt_u32 vcc, 32, v0")
    a("s_nop 1")
    for aq in range(2):
        a(f"v_cndmask_b32 v{Q1[aq]}, 0, v{Q1[aq]}, vcc")
    a("s_waitcnt lgkmcnt(0)")
    a(f"s_cmp_lg_u32 s{S_ATT}, 0")
    a("s_cbranch_scc1 L_attn_havemax")
    for aq in range(2):
        qk(a, 0, aq, 0); qk(a, 1, aq, 0)
    a("s_nop 15")
    for aq in range(2):
        tile_max(a, aq, TMP+2+aq, True)
    for aq in range(2):
        set_m(a, aq, TMP+2+aq)
    a("s_nop 1")
    a.label("L_attn_havemax")
    qk(a, 0, 0, 0); qk(a, 1, 0, 0)
    a("s_waitcnt vmcnt(7)")
    a("s_barrier")
    a(f"s_mov_b32 s{S_C}, 0")
    a.stamp_mid(sm)
    a("s_setprio 1")
    a("s_nop 7")
    a("s_branch L_attn_out" if SKIP else "s_branch L_attn_entry")
    a.raw(".p2align 6")
    a.label("L_attn_loop")
    a("s_waitcnt vmcnt(0) lgkmcnt(0)")
    a("s_barrier")
    a(f"v_xor_b32 v{VK0}, {CH}, v{VK0}")
    a(f"v_xor_b32 v{VK1}, {CH}, v{VK1}")
    a(f"v_xor_b32 v{VV}, {CH}, v{VV}")
    a(f"v_xor_b32 v{VL}, {CH}, v{VL}")
    a(f"s_cmp_eq_u32 s{S_C}, 3")
    if SPREAD:
        a("s_cselect_b32 s82, 0, s82")
        next_chunk(None)
    else:
        a("s_cbranch_scc1 L_attn_nodma")
        next_chunk(67)
    a("s_mov_b32 s69, s67")
    a("s_mov_b32 s67, s68")
    a("s_mov_b32 s68, s69")
    if touch: touch(a)
    a.label("L_attn_nodma")
    block(a, -1, 0, 0); block(a, -1, 1, 0)
    a.label("L_attn_entry")
    for kt in range(15):
        if kt == 2:
            a(f"s_cmp_lg_u32 s{S_C}, 0")
            a("s_cbranch_scc1 L_attn_k2")
            a("s_waitcnt vmcnt(0)")
            a("s_barrier")
            a.label("L_attn_k2")
        if kt == K2:
            a(f"s_cmp_lg_u32 s{S_C}, 0")
            a("s_cbranch_scc1 L_attn_k3")
            dep2(a)
            dep_g(a)
            a("s_lshl_b32 s69, s62, 7")
            a(f"s_add_u32 s69, s69, {G_OFF}")
            a(f"buffer_load_dword v{TMP+8}, v7, s[48:51], s69 offen sc1")
            a(f"buffer_load_dword v{TMP+9}, v7, s[48:51], s69 offen offset:128 sc1")
            a("s_mov_b32 s76, 0xc0c0c0c0")
            a.label("L_attn_k3")
        d = kt - K2 if (SPREAD and 0 <= kt - K2 < 9) else None
        block(a, kt, 0, kt+1, dma=d); block(a, kt, 1, kt+1)
    if AST and a.stamp is True:
        for cnt, slot in ((0, 0), (1, 1), (2, 2), (3, 6)):
            Ls = a.newlabel("st")
            a(f"s_cmp_lg_u32 s{S_C}, {cnt}")
            a(f"s_cbranch_scc1 {Ls}")
            a.stamp_mid(slot)
            a.label(Ls)
    a(f"s_add_u32 s{S_C}, s{S_C}, 1")
    a(f"s_cmp_lt_u32 s{S_C}, {3 if last_extra else 4}")
    a("s_cbranch_scc1 L_attn_loop")
    if last_extra:
        a("s_waitcnt vmcnt(0) lgkmcnt(0)")
        a("s_barrier")
        a(f"v_xor_b32 v{VK0}, {CH}, v{VK0}")
        a(f"v_xor_b32 v{VK1}, {CH}, v{VK1}")
        a(f"v_add_u32 v{VV}, v{VV}, v{VWR}")
        ex = last_extra(a)
        for kt in range(-1, 15):
            for aq in range(2):
                block(a, kt, aq, kt+1, extra=ex.pop(0) if ex else None)
    block(a, 15, 0); block(a, 15, 1, do_qk=False)
    a("s_nop 1")
    pv(a, 0, 1, 1); pv(a, 1, 1, 1)
    a("s_nop 15")
    a.stamp_mid(sm+1)
    a("s_setprio 3")
    for aq in range(2):
        for e in range(8):
            a(f"v_add_f32 v{O[aq]+e}, v{O[aq]+e}, v{O[aq]+8+e}")
        a(f"v_add_f32 v{O[aq]+8}, v{OL[aq]+2}, v{OL[aq]+3}")
        a(f"v_add_f32 v{O[aq]+10}, v{OL[aq]}, v{OL[aq]+1}")
    a(f"v_max_f32 v{TMP}, v{O[0]+10}, v{O[1]+10}")
    a(f"v_mov_b32 v{TMP+2}, 0")
    for e in (0, 1, 2, 3, 4, 5, 6, 7, 8, 10):
        a(f"v_fma_f32 v{TMP}, v{O[0]+e}, 0, v{TMP}")
        a(f"v_fma_f32 v{TMP+2}, v{O[1]+e}, 0, v{TMP+2}")
    a(f"v_add_f32 v{TMP}, v{TMP}, v{TMP+2}")
    a(f"v_mov_b32 v{TMP+1}, 0x5f800000")
    a(f"v_cmp_nlt_f32 vcc, v{TMP}, v{TMP+1}")
    for aq in range(2):
        a(f"v_rcp_f32 v{O[aq]+10}, v{O[aq]+10}")
    a("s_cmp_lg_u64 vcc, 0")
    a("s_cselect_b32 s69, 1, 0")
    a(f"v_mov_b32 v{TMP}, s69")
    a(f"s_lshl_b32 s69, s52, 2")
    a(f"s_add_u32 s69, s69, {2*CH}")
    a(f"v_mov_b32 v{TMP+1}, s69")
    a(f"ds_write_b32 v{TMP+1}, v{TMP}")
    a(f"v_lshrrev_b32 v{TMP}, 5, v0")
    a(f"v_lshlrev_b32 v{TMP}, 9, v{TMP}")
    a(f"v_lshl_add_u32 v{TMP}, v6, 1, v{TMP}")
    a(f"v_add_u32 v{TMP}, s64, v{TMP}")
    a(f"v_lshrrev_b32 v{TMP+3}, 5, v0")
    a(f"v_mul_u32_u24 v{TMP+3}, 384, v{TMP+3}")
    a(f"v_sub_u32 v{TMP+3}, v{TMP}, v{TMP+3}")
    a("s_waitcnt vmcnt(0)")
    for aq in range(2):
        o = O[aq]
        a(f"v_mul_f32 v{o+10}, v{o+10}, v{TMP+8+aq}")
        for e in range(9):
            a(f"v_mul_f32 v{o+e}, v{o+e}, v{o+10}")
        for e in range(4):
            a(f"v_cvt_pk_bf16_f32 v{o+e}, v{o+2*e}, v{o+2*e+1}")
        a(f"v_cvt_pk_bf16_f32 v{o+4}, v{o+8}, v{o+8}")
        for p in range(4):
            off = (p >> 1)*4096 + (p & 1)*256 + aq*64
            a(f"ds_write_b16 v{TMP}, v{o+p} offset:{off}")
            a(f"ds_write_b16_d16_hi v{TMP}, v{o+p} offset:{off+128}")
        a(f"ds_write_b16 v{TMP+3}, v{o+4} offset:{8192 + aq*64}")
    a(f"v_lshrrev_b32 v{TMP+1}, 3, v0")
    a(f"v_lshlrev_b32 v{TMP+1}, 12, v{TMP+1}")
    a(f"v_and_b32 v{TMP+2}, 7, v0")
    a(f"v_lshl_add_u32 v{TMP+1}, v{TMP+2}, 4, v{TMP+1}")
    a(f"s_mul_i32 s69, s61, {18*4096}")
    a("s_lshl_b32 s70, s62, 6")
    a("s_add_u32 s69, s69, s70")
    a(f"s_add_u32 s69, s69, {O_OFF}")
    a("s_add_u32 s70, s69, 32768")
    a("s_add_u32 s71, s69, 65536")
    a("s_waitcnt lgkmcnt(0)")
    a(f"ds_read_b128 {vr(O[0],4)}, v{VDM}")
    a(f"ds_read_b128 {vr(O[0]+4,4)}, v{VDM} offset:4096")
    a(f"ds_read_b128 {vr(O[0]+8,4)}, v{VDM} offset:8192")
    a(f"v_mov_b32 v{TMP+2}, {2*CH}")
    a("s_waitcnt lgkmcnt(2)")
    a(f"buffer_store_dwordx4 {vr(O[0],4)}, v{TMP+1}, s[48:51], s69 offen sc1")
    a("s_waitcnt lgkmcnt(1)")
    a(f"buffer_store_dwordx4 {vr(O[0]+4,4)}, v{TMP+1}, s[48:51], s70 offen sc1")
    a("s_waitcnt lgkmcnt(0)")
    a("s_mov_b64 exec, 0xffff")
    a(f"buffer_store_dwordx4 {vr(O[0]+8,4)}, v{TMP+1}, s[48:51], s71 offen sc1")
    a("s_mov_b64 exec, -1")
    a("s_barrier")
    a(f"ds_read_b128 {vr(TMP+4,4)}, v{TMP+2}")
    a(f"s_cmp_lg_u32 s{S_ATT}, 0")
    a("s_cbranch_scc1 L_attn_out")
    a("s_waitcnt lgkmcnt(0)")
    a(f"v_or_b32 v{TMP}, v{TMP+4}, v{TMP+5}")
    a(f"v_or3_b32 v{TMP}, v{TMP}, v{TMP+6}, v{TMP+7}")
    a("s_nop 0")
    a(f"v_readfirstlane_b32 s69, v{TMP}")
    a("s_nop 3")
    a("s_cmp_eq_u32 s69, 0")
    a("s_cbranch_scc1 L_attn_out")
    a(f"s_mov_b32 s{S_ATT}, 1")
    for aq in range(2):
        a(f"v_mov_b32 v{Q1[aq]+1}, 0")
        a(f"v_mov_b32 v{TMP+2+aq}, 0xff800000")
    a(f"s_mov_b32 s66, s{S_KV}")
    a(f"s_mov_b32 s{S_C}, 0")
    a.label("L_attn_mx_chunk")
    dma_chunk(a, 64, 66)
    a(f"s_add_u32 s66, s66, {CH}")
    a(f"v_mov_b32 v{VK0}, v5")
    a(f"v_add_u32 v{VK1}, 1024, v7")
    a("s_mov_b32 s69, 0")
    a("s_waitcnt vmcnt(0)")
    a("s_barrier")
    a.label("L_attn_mx_tile")
    read_k(a, 0, 0)
    a(f"v_add_u32 v{VK0}, {KV_RS}, v{VK0}")
    a(f"v_add_u32 v{VK1}, {KV_RS}, v{VK1}")
    a("s_waitcnt lgkmcnt(0)")
    for aq in range(2):
        qk(a, 0, aq, 0); qk(a, 1, aq, 0)
    a("s_nop 15")
    for aq in range(2):
        tile_max(a, aq, TMP+2+aq, False)
    a("s_add_u32 s69, s69, 1")
    a("s_cmp_lt_u32 s69, 16")
    a("s_cbranch_scc1 L_attn_mx_tile")
    a("s_barrier")
    a(f"s_add_u32 s{S_C}, s{S_C}, 1")
    a(f"s_cmp_lt_u32 s{S_C}, 4")
    a("s_cbranch_scc1 L_attn_mx_chunk")
    for aq in range(2):
        set_m(a, aq, TMP+2+aq)
    a("s_branch L_attn_start")
    a.label("L_attn_out")
    pub(a)
```

```python
from common import *

ATTN_GRID = 256
SKIP = False
CH = 16*KV_RS
ATTN_LDS = 2*CH + 64

VK0, VK1, VV, VDM = 1, 2, 3, 4
VST, VWR, VWC = 144, 145, 146
CONST = 2*CH + 64
Q0 = [8, 12]; Q1 = [16, 18]
K0 = [20, 24]; K1 = [28, 30]
V = [32, 40]
Sx = [64, 80, 48, 148]
IXM = 147
O = [96, 112]
TMP = 128
NV_ATTN = 144
S_KV, S_C, S_ATT, S_VM = 54, 55, 56, 58

def dma_chunk(a, sbuf, soff):
    for i in range(9):
        a(f"s_add_u32 m0, s{sbuf}, {i*4096}")
        a(f"s_add_u32 s60, s{soff}, {i*4096}")
        a(f"buffer_load_dwordx4 v{VDM}, s[48:51], s60 offen sc1 lds")

def qk(a, which, aq, kb, sb=None):
    s = vr(Sx[aq if sb is None else sb], 16)
    if which == 0:
        a(f"v_mfma_f32_32x32x16_bf16 {s}, {vr(K0[kb],4)}, {vr(Q0[aq],4)}, 0")
    else:
        a(f"v_mfma_f32_32x32x8_bf16 {s}, {vr(K1[kb],2)}, {vr(Q1[aq],2)}, {s}")

def pv(a, which, aq, vb, sb):
    a(f"v_smfmac_f32_32x32x32_bf16 {vr(O[aq],16)}, {vr(V[vb]+4*which,4)}, {vr(Sx[sb]+8*which,8)}, v{IXM}")

def read_k(a, kb, rec):
    a(f"ds_read_b128 {vr(K0[kb],4)}, v{VK0} offset:{rec*KV_RS}")
    a(f"ds_read_b32 v{K1[kb]}, v{VK1} offset:{rec*KV_RS}")

def read_v(a, vb, rec):
    for x in V_FILL(vb, rec): a(x)

def expq(a, aq, q, fill=()):
    fill = list(fill)
    for e in range(4):
        r = Sx[aq] + 4*q + e
        a(f"v_exp_f32 v{r}, v{r}")
        if fill: a(fill.pop(0))
    assert not fill
    for c in range(2):
        r = Sx[aq] + 4*q + 2*c
        a(f"v_cvt_pk_bf16_f32 v{P[aq]+2*q+c}, v{r}, v{r+1}")

def block(a, kt, aq, rec=None, do_qk=True, dma=None, extra=None):
    an = 1 - aq
    kq = (kt + aq) & 1
    vb = (kt - 1 + aq) & 1
    nb = (kt + 1) & 1
    f0 = []
    if rec is not None:
        if aq == 0:
            f0 = [f"ds_read_b128 {vr(K0[nb],4)}, v{VK0} offset:{rec*KV_RS}", f"ds_read_b32 v{K1[nb]}, v{VK1} offset:{rec*KV_RS}"]
        else:
            f0 = V_FILL(nb, rec)
    u = 2*kt + aq
    if aq == 1:
        a("s_waitcnt lgkmcnt(0)")
    ms = [lambda: qk(a, 0, an, kq, (u+1) % 4) if do_qk else None, lambda: qk(a, 1, an, kq, (u+1) % 4) if do_qk else None,
          lambda: pv(a, 0, an, vb, (u-1) % 4), lambda: pv(a, 1, an, vb, (u-1) % 4)]
    e = 0
    for q in range(4):
        ms[q]()
        if q == XG:
            for x in f0: a(x)
        if dma is not None and q == DG:
            a(f"s_add_u32 m0, s67, {dma*4096}")
            a(f"s_add_u32 s60, s66, {dma*4096}")
            a(f"buffer_load_dwordx4 v{VDM}, s[80:83], s60 offen sc1 lds")
        for _ in range(NE[q]):
            a(f"v_exp_f32 v{Sx[u % 4]+e}, v{Sx[u % 4]+e}"); e += 1

NE = (4, 4, 4, 4)
XG = 0
DG = 2
MODE = 0
PROST = False
AST = False
K2 = 2
SPREAD = True
NOLDS = False
SPREAD_V = True
def V_FILL(vb, rec):
    return [f"ds_read_b128 {vr(V[vb],4)}, v{VV}",
            f"ds_read_b128 {vr(V[vb]+4,4)}, v{VV} offset:576",
            f"v_add_u32 v{VV}, v{VV}, v{VST}"]

def set_m(a, aq, m):
    t = TMP
    a(f"v_mov_b32 v{t}, v{m}")
    a("s_nop 1")
    a(f"v_permlane32_swap_b32 v{m}, v{t}")
    a("s_nop 1")
    a(f"v_max_f32 v{m}, v{m}, v{t}")
    a(f"v_sub_f32 v{m}, 0, v{m}")
    a(f"v_and_b32 v{t}, 0xffff0000, v{m}")
    a(f"v_sub_f32 v{m}, v{m}, v{t}")
    a(f"v_and_b32 v{t+1}, 0xffff0000, v{m}")
    a(f"v_sub_f32 v{m}, v{m}, v{t+1}")
    a(f"v_lshrrev_b32 v{t}, 16, v{t}")
    a(f"v_or_b32 v{t}, v{t}, v{t+1}")
    a(f"v_lshrrev_b32 v{m}, 16, v{m}")
    a(f"v_cmp_gt_u32 vcc, 32, v0")
    a("s_nop 1")
    a(f"v_cndmask_b32 v{Q1[aq]+1}, v{m}, v{t}, vcc")

def tile_max(a, aq, m, first):
    s = Sx[aq]
    if first:
        a(f"v_max3_f32 v{m}, v{s}, v{s+1}, v{s+2}")
        a(f"v_max_f32 v{m}, v{m}, v{s+3}")
        st = 4
    else:
        st = 0
    for e in range(st, 16, 2):
        a(f"v_max3_f32 v{m}, v{m}, v{s+e}, v{s+e+1}")

def attn_body(a, wgreg, dep, pub, sm=0, tsetup=None, touch=None, dep_g=None, dep2=None, last_extra=None):
    a(f"s_and_b32 s61, {wgreg}, 7")
    a("s_lshl_b32 s61, s61, 2")
    a(f"s_bfe_u32 s62, {wgreg}, 0x20003")
    a("s_add_u32 s61, s61, s62")
    a(f"s_lshr_b32 s62, {wgreg}, 5")
    a("s_lshl_b32 s62, s62, 3")
    a("s_lshl_b32 s63, s52, 1")
    a("s_add_u32 s62, s62, s63")
    a(f"s_mul_i32 s{S_KV}, s61, {64*KV_RS}")
    a(f"s_add_u32 s{S_KV}, s{S_KV}, {KV_OFF}")
    a("s_lshl_b32 s64, s52, 10")
    a(f"s_add_u32 s65, s64, {CH}")
    a(f"v_lshlrev_b32 v5, 4, v0")
    a(f"v_add_u32 v{VDM}, s64, v5")
    a("s_lshl_b32 s63, s61, 6")
    a("s_add_u32 s63, s63, s62")
    a(f"s_mul_i32 s63, s63, {QR_RS}")
    a(f"s_add_u32 s63, s63, {QR_OFF}")
    a("v_and_b32 v6, 31, v0")
    a("v_lshlrev_b32 v7, 2, v6")
    a(f"s_mov_b32 s{S_ATT}, 0")
    for b in range(2):
        a(f"v_mov_b32 v{K1[b]+1}, 0x3f803f80")
        a(f"v_mov_b32 v{Q1[b]+1}, 0")
    for e in range(8):
        a(f"v_mov_b32 v{V[1]+e}, 0")
    a(f"v_cmp_gt_u32 vcc, 4, v0")
    a(f"v_mov_b32 v{TMP}, 0x3f803f80")
    a(f"v_lshlrev_b32 v{TMP+1}, 2, v0")
    a(f"v_cndmask_b32 v{TMP}, 0, v{TMP}, vcc")
    a(f"v_add_u32 v{TMP+1}, {CONST}, v{TMP+1}")
    a("s_mov_b64 exec, 0xff")
    a(f"ds_write_b32 v{TMP+1}, v{TMP}")
    a(f"ds_write_b32 v{TMP+1}, v{TMP} offset:576")
    a("s_mov_b64 exec, -1")
    a(f"v_cmp_gt_u32 s[{S_VM}:{S_VM+1}], 18, v6")
    a(f"v_mov_b32 v{VST}, {KV_RS}")
    a(f"v_mov_b32 v{VWC}, {(-2*CH) & 0xffffffff}")
    a(f"v_cndmask_b32 v{VST}, 0, v{VST}, s[{S_VM}:{S_VM+1}]")
    a(f"v_cndmask_b32 v{VWC}, 0, v{VWC}, s[{S_VM}:{S_VM+1}]")
    a.label("L_attn_start")
    a(f"s_lshr_b32 s57, {wgreg}, 6")
    def next_chunk(sbuf):
        a(f"s_mul_i32 s66, s57, {CH}")
        a(f"s_add_u32 s66, s66, s{S_KV}")
        a("s_add_u32 s57, s57, 1")
        a("s_and_b32 s57, s57, 3")
        if sbuf is not None: dma_chunk(a, sbuf, 66)
    a(f"v_mov_b32 v{VK0}, v5")
    a(f"v_add_u32 v{VK1}, 1024, v7")
    a(f"v_lshrrev_b32 v{VV}, 5, v0")
    a(f"v_mul_u32_u24 v{VV}, 288, v{VV}")
    a(f"v_lshl_add_u32 v{VV}, v6, 4, v{VV}")
    a(f"v_add_u32 v{VV}, 1152, v{VV}")
    a(f"v_and_b32 v{TMP}, 27, v6")
    a(f"v_cmp_eq_u32 vcc, 18, v{TMP}")
    a(f"v_mov_b32 v{TMP}, {CONST + 16}")
    a(f"v_mov_b32 v{TMP+1}, {CONST}")
    a(f"v_cndmask_b32 v{TMP}, v{TMP}, v{TMP+1}, vcc")
    a(f"v_cndmask_b32 v{VV}, v{TMP}, v{VV}, s[{S_VM}:{S_VM+1}]")
    a(f"v_mov_b32 v{VWR}, 0")
    for aq in range(2):
        for e in range(16):
            a(f"v_mov_b32 v{O[aq]+e}, 0")
    for e in range(16):
        a(f"v_mov_b32 v{Sx[3]+e}, 0")
    a(f"v_mov_b32 v{IXM}, 0xdddd")
    a.srd(80, P_WS, WS_SIZE)
    next_chunk(None)
    a(f"s_cmp_lg_u32 s{S_ATT}, 0")
    a("s_cbranch_scc1 L_attn_noq")
    dep(a)
    if PROST: a.stamp_mid(0)
    for aq in range(2):
        a(f"buffer_load_dwordx4 {vr(Q0[aq],4)}, v5, s[48:51], s63 offen offset:{aq*QR_RS} sc1")
        a(f"buffer_load_dword v{Q1[aq]}, v7, s[48:51], s63 offen offset:{aq*QR_RS + 1024} sc1")
    a.label("L_attn_noq")
    dma_chunk(a, 64, 66)
    next_chunk(None)
    a(f"s_mov_b32 s67, s65")
    a(f"s_mov_b32 s68, s64")
    if PROST: a.stamp_mid(1)
    a("s_waitcnt vmcnt(8) lgkmcnt(0)")
    a("s_barrier")
    if PROST: a.stamp_mid(6)
    if touch: touch(a)
    read_k(a, 0, 0)
    read_v(a, 0, 0)
    a(f"v_cmp_gt_u32 vcc, 32, v0")
    a("s_nop 1")
    for aq in range(2):
        a(f"v_cndmask_b32 v{Q1[aq]}, 0, v{Q1[aq]}, vcc")
    a("s_waitcnt lgkmcnt(0)")
    a(f"s_cmp_lg_u32 s{S_ATT}, 0")
    a("s_cbranch_scc1 L_attn_havemax")
    for aq in range(2):
        qk(a, 0, aq, 0); qk(a, 1, aq, 0)
    a("s_nop 15")
    for aq in range(2):
        tile_max(a, aq, TMP+2+aq, True)
    for aq in range(2):
        set_m(a, aq, TMP+2+aq)
    a("s_nop 1")
    a.label("L_attn_havemax")
    qk(a, 0, 0, 0); qk(a, 1, 0, 0)
    a("s_waitcnt vmcnt(7)")
    a("s_barrier")
    a(f"s_mov_b32 s{S_C}, 0")
    a.stamp_mid(sm)
    a("s_setprio 1")
    a("s_nop 7")
    a("s_branch L_attn_out" if SKIP else "s_branch L_attn_entry")
    a.raw(".p2align 6")
    a.label("L_attn_loop")
    a("s_waitcnt vmcnt(0) lgkmcnt(0)")
    a("s_barrier")
    a(f"v_xor_b32 v{VK0}, {CH}, v{VK0}")
    a(f"v_xor_b32 v{VK1}, {CH}, v{VK1}")
    a(f"v_add_u32 v{VV}, v{VV}, v{VWR}")
    a(f"v_xor_b32 v{VWR}, v{VWR}, v{VWC}")
    a(f"s_cmp_eq_u32 s{S_C}, 3")
    if SPREAD:
        a("s_cselect_b32 s82, 0, s82")
        next_chunk(None)
    else:
        a("s_cbranch_scc1 L_attn_nodma")
        next_chunk(67)
    a("s_mov_b32 s69, s67")
    a("s_mov_b32 s67, s68")
    a("s_mov_b32 s68, s69")
    if touch: touch(a)
    a.label("L_attn_nodma")
    block(a, -1, 0, 0); block(a, -1, 1, 0)
    a.label("L_attn_entry")
    for kt in range(15):
        if kt == 2:
            a(f"s_cmp_lg_u32 s{S_C}, 0")
            a("s_cbranch_scc1 L_attn_k2")
            a("s_waitcnt vmcnt(0)")
            a("s_barrier")
            a.label("L_attn_k2")
        if kt == K2:
            a(f"s_cmp_lg_u32 s{S_C}, 0")
            a("s_cbranch_scc1 L_attn_k3")
            dep2(a)
            dep_g(a)
            a("s_lshl_b32 s69, s62, 7")
            a(f"s_add_u32 s69, s69, {G_OFF}")
            a(f"buffer_load_dword v{TMP+8}, v7, s[48:51], s69 offen sc1")
            a(f"buffer_load_dword v{TMP+9}, v7, s[48:51], s69 offen offset:128 sc1")
            if not SPREAD: next_chunk(65)
            a.label("L_attn_k3")
        d = kt - K2 if (SPREAD and 0 <= kt - K2 < 9) else None
        block(a, kt, 0, kt+1, dma=d); block(a, kt, 1, kt+1)
    if AST and a.stamp is True:
        for cnt, slot in ((0, 0), (1, 1), (2, 2), (3, 6)):
            Ls = a.newlabel("st")
            a(f"s_cmp_lg_u32 s{S_C}, {cnt}")
            a(f"s_cbranch_scc1 {Ls}")
            a.stamp_mid(slot)
            a.label(Ls)
    a(f"s_add_u32 s{S_C}, s{S_C}, 1")
    a(f"s_cmp_lt_u32 s{S_C}, {3 if last_extra else 4}")
    a("s_cbranch_scc1 L_attn_loop")
    if last_extra:
        a("s_waitcnt vmcnt(0) lgkmcnt(0)")
        a("s_barrier")
        a(f"v_xor_b32 v{VK0}, {CH}, v{VK0}")
        a(f"v_xor_b32 v{VK1}, {CH}, v{VK1}")
        a(f"v_add_u32 v{VV}, v{VV}, v{VWR}")
        ex = last_extra(a)
        for kt in range(-1, 15):
            for aq in range(2):
                block(a, kt, aq, kt+1, extra=ex.pop(0) if ex else None)
    block(a, 15, 0); block(a, 15, 1, do_qk=False)
    a("s_nop 1")
    pv(a, 0, 1, 1, 3); pv(a, 1, 1, 1, 3)
    a("s_nop 15")
    a.stamp_mid(sm+1)
    a("s_setprio 3")
    a(f"v_max_f32 v{TMP}, v{O[0]+10}, v{O[1]+10}")
    a(f"v_mov_b32 v{TMP+2}, 0")
    for e in range(11):
        a(f"v_fma_f32 v{TMP}, v{O[0]+e}, 0, v{TMP}")
        a(f"v_fma_f32 v{TMP+2}, v{O[1]+e}, 0, v{TMP+2}")
    a(f"v_add_f32 v{TMP}, v{TMP}, v{TMP+2}")
    a(f"v_mov_b32 v{TMP+1}, 0x5f800000")
    a(f"v_cmp_nlt_f32 vcc, v{TMP}, v{TMP+1}")
    for aq in range(2):
        a(f"v_rcp_f32 v{O[aq]+10}, v{O[aq]+10}")
    a("s_cmp_lg_u64 vcc, 0")
    a("s_cselect_b32 s69, 1, 0")
    a(f"v_mov_b32 v{TMP}, s69")
    a(f"s_lshl_b32 s69, s52, 2")
    a(f"s_add_u32 s69, s69, {2*CH}")
    a(f"v_mov_b32 v{TMP+1}, s69")
    a(f"ds_write_b32 v{TMP+1}, v{TMP}")
    a(f"v_lshrrev_b32 v{TMP}, 5, v0")
    a(f"v_lshlrev_b32 v{TMP}, 9, v{TMP}")
    a(f"v_lshl_add_u32 v{TMP}, v6, 1, v{TMP}")
    a(f"v_add_u32 v{TMP}, s64, v{TMP}")
    a("s_waitcnt vmcnt(0)")
    for aq in range(2):
        o = O[aq]
        a(f"v_mul_f32 v{o+10}, v{o+10}, v{TMP+8+aq}")
        for e in range(10):
            a(f"v_mul_f32 v{o+e}, v{o+e}, v{o+10}")
        for e in range(5):
            a(f"v_cvt_pk_bf16_f32 v{o+e}, v{o+2*e}, v{o+2*e+1}")
        for p in range(5):
            off = (p >> 1)*4096 + (p & 1)*256 + aq*64
            if p == 4: a("s_mov_b32 exec_hi, 0")
            a(f"ds_write_b16 v{TMP}, v{o+p} offset:{off}")
            a(f"ds_write_b16_d16_hi v{TMP}, v{o+p} offset:{off+128}")
            if p == 4: a("s_mov_b64 exec, -1")
    a(f"v_lshrrev_b32 v{TMP+1}, 3, v0")
    a(f"v_lshlrev_b32 v{TMP+1}, 12, v{TMP+1}")
    a(f"v_and_b32 v{TMP+2}, 7, v0")
    a(f"v_lshl_add_u32 v{TMP+1}, v{TMP+2}, 4, v{TMP+1}")
    a(f"s_mul_i32 s69, s61, {18*4096}")
    a("s_lshl_b32 s70, s62, 6")
    a("s_add_u32 s69, s69, s70")
    a(f"s_add_u32 s69, s69, {O_OFF}")
    a("s_add_u32 s70, s69, 32768")
    a("s_add_u32 s71, s69, 65536")
    a("s_waitcnt lgkmcnt(0)")
    a(f"ds_read_b128 {vr(O[0],4)}, v{VDM}")
    a(f"ds_read_b128 {vr(O[0]+4,4)}, v{VDM} offset:4096")
    a(f"ds_read_b128 {vr(O[0]+8,4)}, v{VDM} offset:8192")
    a(f"v_mov_b32 v{TMP+2}, {2*CH}")
    a("s_waitcnt lgkmcnt(2)")
    a(f"buffer_store_dwordx4 {vr(O[0],4)}, v{TMP+1}, s[48:51], s69 offen sc1")
    a("s_waitcnt lgkmcnt(1)")
    a(f"buffer_store_dwordx4 {vr(O[0]+4,4)}, v{TMP+1}, s[48:51], s70 offen sc1")
    a("s_waitcnt lgkmcnt(0)")
    a("s_mov_b64 exec, 0xffff")
    a(f"buffer_store_dwordx4 {vr(O[0]+8,4)}, v{TMP+1}, s[48:51], s71 offen sc1")
    a("s_mov_b64 exec, -1")
    a("s_barrier")
    a(f"ds_read_b128 {vr(TMP+4,4)}, v{TMP+2}")
    a(f"s_cmp_lg_u32 s{S_ATT}, 0")
    a("s_cbranch_scc1 L_attn_out")
    a("s_waitcnt lgkmcnt(0)")
    a(f"v_or_b32 v{TMP}, v{TMP+4}, v{TMP+5}")
    a(f"v_or3_b32 v{TMP}, v{TMP}, v{TMP+6}, v{TMP+7}")
    a("s_nop 0")
    a(f"v_readfirstlane_b32 s69, v{TMP}")
    a("s_nop 3")
    a("s_cmp_eq_u32 s69, 0")
    a("s_cbranch_scc1 L_attn_out")
    a(f"s_mov_b32 s{S_ATT}, 1")
    for aq in range(2):
        a(f"v_mov_b32 v{Q1[aq]+1}, 0")
        a(f"v_mov_b32 v{TMP+2+aq}, 0xff800000")
    a(f"s_mov_b32 s66, s{S_KV}")
    a(f"s_mov_b32 s{S_C}, 0")
    a.label("L_attn_mx_chunk")
    dma_chunk(a, 64, 66)
    a(f"s_add_u32 s66, s66, {CH}")
    a(f"v_mov_b32 v{VK0}, v5")
    a(f"v_add_u32 v{VK1}, 1024, v7")
    a("s_mov_b32 s69, 0")
    a("s_waitcnt vmcnt(0)")
    a("s_barrier")
    a.label("L_attn_mx_tile")
    read_k(a, 0, 0)
    a(f"v_add_u32 v{VK0}, {KV_RS}, v{VK0}")
    a(f"v_add_u32 v{VK1}, {KV_RS}, v{VK1}")
    a("s_waitcnt lgkmcnt(0)")
    for aq in range(2):
        qk(a, 0, aq, 0); qk(a, 1, aq, 0)
    a("s_nop 15")
    for aq in range(2):
        tile_max(a, aq, TMP+2+aq, False)
    a("s_add_u32 s69, s69, 1")
    a("s_cmp_lt_u32 s69, 16")
    a("s_cbranch_scc1 L_attn_mx_tile")
    a("s_barrier")
    a(f"s_add_u32 s{S_C}, s{S_C}, 1")
    a(f"s_cmp_lt_u32 s{S_C}, 4")
    a("s_cbranch_scc1 L_attn_mx_chunk")
    for aq in range(2):
        set_m(a, aq, TMP+2+aq)
    a("s_branch L_attn_start")
    a.label("L_attn_out")
    pub(a)
```

```python
from common import *
import math
QSCALE = (DH ** -0.5) * math.log2(math.e)
SC = " sc1"
CB = 17408
ACC = 96
SET = [32, 52]

XNT = ''
VNAT = False
PRE0 = 2
QEPRIO = None
QST = False
def qkv_body(a, wgreg, pub, hint=None):
    a.srd(40, P_X, S*D*2)
    a.srd(44, P_WQKV, D*3*D*2)
    a(f"s_and_b32 s53, {wgreg}, 7")
    a(f"s_lshr_b32 s54, {wgreg}, 3")
    a("s_lshr_b32 s55, s53, 1")
    a("s_lshl_b32 s55, s55, 2")
    a("s_and_b32 s56, s54, 3")
    a("s_add_u32 s55, s55, s56")
    a("s_and_b32 s56, s53, 1")
    a("s_mul_i32 s56, s56, 6")
    a("s_lshr_b32 s57, s54, 2")
    a("s_add_u32 s56, s56, s57")
    a("s_lshl_b32 s59, s55, 2")
    a("s_add_u32 s60, s59, s52")
    a("v_lshrrev_b32 v2, 2, v0")
    a("s_lshl_b32 s60, s60, 5")
    a("v_add_u32 v2, s60, v2")
    a("v_mul_u32_u24 v2, 1152, v2")
    a("v_lshrrev_b32 v3, 4, v0")
    a("v_xor_b32 v3, v3, v0")
    a("v_and_b32 v3, 3, v3")
    a("v_lshl_add_u32 v2, v3, 4, v2")
    a(f"v_add_u32 v3, {16*1152}, v2")
    a("s_mul_i32 s65, s56, 288")
    a(f"s_mul_i32 s60, s52, {8*3456}")
    a("s_add_u32 s65, s65, s60")
    for i in range(3):
        a(f"v_add_u32 v7, {64*i}, v0")
        a(f"v_mul_u32_u24 v8, 3641, v7")
        a(f"v_lshrrev_b32 v8, 16, v8")
        a(f"v_mul_u32_u24 v9, 18, v8")
        a(f"v_sub_u32 v7, v7, v9")
        a(f"v_and_b32 v10, 1, v8")
        a(f"v_lshrrev_b32 v9, 1, v8")
        a(f"v_lshl_or_b32 v9, v10, 2, v9")
        a(f"v_mul_u32_u24 v9, 3456, v9")
        a(f"v_lshl_add_u32 v9, v7, 4, v9")
        a(f"v_add_u32 v{4+i}, s65, v9")
    a("s_lshl_b32 s61, s52, 11")
    a("s_mul_i32 s62, s52, 2304")
    a("s_add_u32 s62, s62, 8192")
    a("s_mov_b32 s63, 0")
    a("s_mov_b32 s64, 0")
    a(f"s_mov_b32 s71, {32*3456}")
    a("s_mov_b64 s[72:73], 0xffff")
    def setm0(buf, i):
        if i < 2: a(f"s_add_u32 m0, s61, {buf*CB + i*1024}")
        else: a(f"s_add_u32 m0, s62, {buf*CB + (i-2)*1024}")
    def load(i):
        if i < 2:
            a(f"buffer_load_dwordx4 v{2+i}, s[40:43], s63 offen lds")
            if i == 1: a("s_add_u32 s63, s63, 64")
        elif i < 4:
            a(f"buffer_load_dwordx4 v{2+i}, s[44:47], s64 offen lds")
        else:
            a("s_mov_b64 exec, s[72:73]")
            a(f"buffer_load_dwordx4 v6, s[44:47], s64 offen lds")
            a("s_mov_b64 exec, -1")
            a("s_add_u32 s64, s64, s71")
    for c in range(PRE0):
        for i in range(5):
            setm0(c, i); a("s_nop 0"); load(i)
    a("s_and_b32 s57, s52, 1")
    a("s_lshr_b32 s58, s52, 1")
    a("s_lshl_b32 s60, s57, 1")
    a("s_add_u32 s60, s60, s58")
    a("s_add_u32 s59, s59, s60")
    a("v_and_b32 v10, 31, v0")
    a("v_lshrrev_b32 v11, 5, v0")
    a("v_bfe_u32 v12, v10, 2, 2")
    a("v_xor_b32 v12, v12, v11")
    a("v_lshlrev_b32 v13, 6, v10")
    a("v_lshl_add_u32 v16, v12, 4, v13")
    a("s_lshl_b32 s60, s60, 11")
    a("v_add_u32 v16, s60, v16")
    a("v_xor_b32 v17, 32, v16")
    a("v_xor_b32 v18, 0x800, v16")
    a("v_xor_b32 v19, 0x800, v17")
    a("v_bfe_u32 v12, v0, 2, 2")
    a("v_lshlrev_b32 v12, 1, v12")
    a("v_lshl_add_u32 v12, v11, 3, v12")
    a("v_mul_u32_u24 v12, 288, v12")
    a("v_add_u32 v12, 0x2000, v12")
    a("v_bfe_u32 v13, v0, 4, 1")
    a("v_and_b32 v14, 3, v0")
    a("v_lshl_add_u32 v15, v14, 3, v12")
    a("v_lshl_add_u32 v20, v13, 5, v15")
    a("s_and_b32 s69, s56, 3")
    a("s_lshl_b32 s69, s69, 9")
    a("s_cmp_ge_u32 s56, 8")
    a("s_cbranch_scc1 L_qkv_v")
    a("s_mul_i32 s60, s58, 144")
    a("s_add_u32 s60, s60, 40")
    a("v_add_u32 v21, 112, v20")
    a("v_add_u32 v20, s60, v20")
    a("v_lshl_add_u32 v23, v13, 8, v15")
    a("s_cmp_lg_u32 s58, 0")
    a("s_cselect_b64 vcc, -1, 0")
    a("v_cndmask_b32 v21, v21, v23, vcc")
    a("v_mul_u32_u24 v22, 72, v14")
    a("v_add3_u32 v22, v22, v12, 32")
    a("s_cmp_ge_u32 s56, 4")
    a(f"s_mov_b32 s66, {QR_OFF}")
    a(f"s_mov_b32 s67, {QR_RS}")
    a(f"s_mov_b32 s68, {f32bits(QSCALE)}")
    a(f"s_cselect_b32 s66, {KV_OFF}, s66")
    a(f"s_cselect_b32 s67, {KV_RS}, s67")
    a(f"s_cselect_b32 s68, 1.0, s68")
    a("s_xor_b32 s65, s59, 1")
    a("s_add_u32 s65, s65, s69")
    a("s_add_u32 s69, s59, s69")
    a("s_mul_i32 s69, s69, s67")
    a("s_add_u32 s69, s69, s66")
    a("s_mul_i32 s65, s65, s67")
    a("s_add_u32 s65, s65, s66")
    a("s_lshl_b32 s70, s67, 6")
    a("s_lshl_b32 s60, s58, 2")
    a("s_add_u32 s78, s60, 1")
    a("s_add_u32 s79, s60, 2")
    a("s_cmp_lg_u32 s58, 0")
    a("s_cselect_b32 s53, 0, 3")
    a("s_cselect_b32 s54, 7, 4")
    for r in (78, 79, 53, 54): a(f"s_mul_i32 s{r}, s{r}, s70")
    loop(a, False, setm0, load, hint)
    a("s_nop 7")
    for j, (hx, hy, rec) in enumerate(((78, 79, 69), (78, 79, 65), (53, 54, 69), (53, 54, 65))):
        qk_store_main(a, j, hx, hy, rec)
    qk_store_left(a, 4)
    a("s_branch L_qkv_done")
    a.label("L_qkv_v")
    a("s_lshl_b32 s60, s58, 7")
    a("v_add_u32 v20, s60, v20")
    a("v_add_u32 v21, 64, v20")
    a("v_add_u32 v22, 256, v15")
    a("s_and_b32 s66, s59, 3")
    a("s_mul_i32 s67, s66, 1152")
    a("s_xor_b32 s66, s66, 1")
    a("s_mul_i32 s66, s66, 1152")
    a("s_lshl_b32 s60, s58, 6")
    a("v_add_u32 v12, s60, v10")
    v_addr(a, "v12"); a("v_add_u32 v176, s67, v7"); a("v_add_u32 v177, s66, v7")
    a("v_add_u32 v12, 32, v12")
    v_addr(a, "v12"); a("v_add_u32 v178, s67, v7"); a("v_add_u32 v179, s66, v7")
    a("v_add_u32 v12, 128, v10")
    v_addr(a, "v12"); a("v_add_u32 v180, s67, v7")
    a("s_lshl_b32 s60, s52, 7")
    a("s_add_u32 s69, s69, s60")
    a("s_and_b32 s60, s59, 60")
    a("s_add_u32 s69, s69, s60")
    a(f"s_mul_i32 s69, s69, {KV_RS}")
    a(f"s_add_u32 s69, s69, {KV_OFF + 1152}")
    for n in range(9):
        a(f"v_add_u32 v7, {64*n}, v0")
        a("v_mul_u32_u24 v8, 911, v7")
        a("v_lshrrev_b32 v8, 16, v8")
        a("v_lshrrev_b32 v9, 2, v8")
        a(f"v_mul_u32_u24 v9, {60*144}, v9")
        a(f"v_mul_u32_u24 v8, 72, v8")
        a("v_add3_u32 v7, v7, v8, v9")
        a(f"v_lshlrev_b32 v{184+n}, 4, v7")
    loop(a, True, setm0, load, hint)
    a("s_mul_i32 s60, s52, 9216")
    a("v_add_u32 v3, s60, v2")
    a("s_waitcnt vmcnt(0)")
    a("s_barrier")
    a("s_nop 3")
    for k in range(5): v_put(a, k)
    a("s_waitcnt lgkmcnt(0)")
    a("s_barrier")
    for n in range(9):
        a(f"ds_read_b128 {vr(32+4*n,4)}, v3 offset:{n*1024}")
    for n in range(9):
        a(f"s_waitcnt lgkmcnt({8-n})")
        a(f"buffer_store_dwordx4 {vr(32+4*n,4)}, v{184+n}, s[48:51], s69 offen{SC}")
    a.label("L_qkv_done")
    a.stamp_mid(7)
    pub(a)

def loop(a, isv, setm0, load, hint):
    def reads(sn, buf, t):
        b = SET[sn]
        X = [((sn, "x", n), f"ds_read_b128 {vr(b+4*n,4)}, v{16+2*n+t} offset:{buf*CB}") for n in range(2)]
        W = [((sn, "w", j), f"ds_read_b64_tr_b16 {vr(b+8+4*j+2*sec,2)}, v{20+j} offset:{buf*CB + t*4608 + sec*288}") for j in range(3) for sec in range(2)]
        return [X[0], W[0], W[1], X[1], W[2], W[3], W[4], W[5]]
    MF = [(0, 0), (0, 1), (1, 0), (1, 1), (2, 0)]
    def mfma(ls, sn, k, first):
        b = SET[sn]
        j, n = MF[k]
        ls.need([(sn, "x", n), (sn, "w", j)])
        w = vr(b+8+4*j, 4); x = vr(b+4*n, 4); c = vr(ACC+16*k, 16)
        A, B = (x, w) if isv else (w, x)
        a(f"v_mfma_f32_32x32x16_bf16 {c}, {A}, {B}, {'0' if first else c}")
    def body(c, first=False, kill=False, last=False):
        buf = c % 4; pb = (c - 1) % 4
        ls = LdsSched(a, [r[0] for r in reads(0, buf, 0)])
        ls.need([(0, "w", 1)])
        r = reads(1, buf, 1)
        mfma(ls, 0, 0, first)
        if not last: setm0(pb, 2)
        for x in r[0:3]: ls.read(*x)
        if not last: load(2)
        mfma(ls, 0, 1, first)
        for x in r[3:7]: ls.read(*x)
        mfma(ls, 0, 2, first)
        if not last: setm0(pb, 3)
        ls.read(*r[7])
        if not last: load(3)
        mfma(ls, 0, 3, first)
        if not last: setm0(pb, 4); load(4)
        mfma(ls, 0, 4, first)
        if kill: kill()
        if last:
            ls.drain()
            for k in range(5): mfma(ls, 1, k, False)
            return
        ls.drain()
        mfma(ls, 1, 0, False)
        a("s_waitcnt vmcnt(10)")
        a("s_barrier")
        r = reads(0, (c+1) % 4, 0)
        for x in r[0:3]: ls.read(*x)
        mfma(ls, 1, 1, False)
        for x in r[3:7]: ls.read(*x)
        mfma(ls, 1, 2, False)
        setm0(buf, 0)
        ls.read(*r[7])
        load(0)
        mfma(ls, 1, 3, False)
        setm0(buf, 1)
        mfma(ls, 1, 4, False)
        load(1)
    for c in range(PRE0, 4):
        for i in range(5 if c < 3 else 2):
            setm0(c, i); a("s_nop 0"); load(i)
    a.stamp_mid(0)
    a("s_waitcnt vmcnt(12)")
    a("s_barrier")
    a.stamp_mid(1)
    for r in reads(0, 0, 0): a(r[1])
    body(0, first=True)
    a("s_mov_b32 s60, 4")
    L = a.newlabel("qkv")
    def kill():
        a("s_cmp_gt_u32 s60, 1")
        a("s_cselect_b32 s42, s42, 0")
        a("s_cselect_b32 s46, s46, 0")
    a.raw(".p2align 6")
    a.label(L)
    for c in range(1, 5):
        body(c, kill=kill if c == 2 else None)
    if hint: hint(a)
    if QST and a.stamp is True:
        for cnt, slot in ((4, 3), (3, 4), (2, 5)):
            Ls = a.newlabel("st")
            a(f"s_cmp_lg_u32 s60, {cnt}")
            a(f"s_cbranch_scc1 {Ls}")
            a.stamp_mid(slot)
            a.label(Ls)
    a("s_sub_u32 s60, s60, 1")
    a("s_cmp_lg_u32 s60, 0")
    a(f"s_cbranch_scc1 {L}")
    body(17, last=True)
    a("v_lshlrev_b32 v2, 4, v0")
    if QEPRIO is not None: a(f"s_setprio {QEPRIO}")
    a.stamp_mid(6)

def qk_store_main(a, j, hx, hy, rec):
    b = ACC + 16*j
    for i in range(16):
        a(f"v_mul_f32 v{b+i}, s68, v{b+i}")
    for i in range(8):
        a(f"v_cvt_pk_bf16_f32 v{b+i}, v{b+2*i}, v{b+2*i+1}")
    for half, hd in ((0, hx), (1, hy)):
        a(f"s_add_u32 s60, s{hd}, s{rec}")
        a(f"buffer_store_dwordx4 {vr(b+4*half,4)}, v2, s[48:51], s60 offen{SC}")

def qk_store_left(a, j):
    b = ACC + 16*j
    for i in range(8):
        a(f"v_mul_f32 v{b+i}, s68, v{b+i}")
    for i in range(4):
        a(f"v_cvt_pk_bf16_f32 v{b+i}, v{b+2*i}, v{b+2*i+1}")
    a("s_lshl_b32 s60, s70, 1")
    a("v_mul_lo_u32 v3, v11, s60")
    a("v_lshl_add_u32 v3, v10, 2, v3")
    for jj in range(2):
        for bb in range(2):
            a(f"s_mul_i32 s60, s70, {4*jj+bb}")
            a(f"s_add_u32 s60, s60, s69")
            a(f"buffer_store_dword v{b+2*jj+bb}, v3, s[48:51], s60 offen offset:1024{SC}")

def v_addr(a, col):
    a(f"v_mul_u32_u24 v8, 3641, {col}")
    a(f"v_lshrrev_b32 v8, 16, v8")
    a(f"v_mul_u32_u24 v9, 18, v8")
    a(f"v_sub_u32 v7, {col}, v9")
    a(f"v_mul_u32_u24 v8, {4*1152}, v8")
    a(f"v_lshl_add_u32 v7, v7, 4, v8")
    a(f"v_lshl_add_u32 v7, v11, 3, v7")

def v_put(a, k):
    b = ACC + 16*k
    T = 32 + 8*k
    for p in range(8):
        ha, j, r = p >> 2, (p >> 1) & 1, p & 1
        a(f"v_cvt_pk_bf16_f32 v{T + p if VNAT else T + 4*ha + 2*r + j}, v{b+2*p}, v{b+2*p+1}")
    if k == 4:
        a("s_mov_b32 exec_lo, 0xffff")
        a("s_mov_b32 exec_hi, 0xffff")
    for n in range(4):
        a(f"ds_write_b64 v{176+k}, {vr(T+2*n,2)} offset:{n*288}")
    if k == 4:
        a("s_mov_b64 exec, -1")
for u in range(576):
    assert (u*911) >> 16 == u//72

RS = 1216
X0, F0 = 16, 88
XK, GK = 160, 196

def red8(a, r):
    a("s_nop 1")
    a(f"v_add_f32_dpp v{r}, v{r}, v{r} quad_perm:[1,0,3,2] row_mask:0xf bank_mask:0xf")
    a("s_nop 1")
    a(f"v_add_f32_dpp v{r}, v{r}, v{r} quad_perm:[2,3,0,1] row_mask:0xf bank_mask:0xf")
    a("s_nop 1")
    a(f"v_add_f32_dpp v{r}, v{r}, v{r} row_half_mirror row_mask:0xf bank_mask:0xf")

def rows_setup(a):
    a("v_lshrrev_b32 v2, 3, v0")
    a("v_and_b32 v3, 7, v0")
    a("s_lshl_b32 s53, s52, 3")
    a("v_add_u32 v4, s53, v2")

def rows_tail(a):
    a(f"v_mul_u32_u24 v5, {RS}, v4")
    a("v_lshl_add_u32 v5, v3, 4, v5")
    for i in range(9):
        a(f"ds_write_b128 v5, {vr(X0+4*i,4)} offset:{i*128}")
    a("s_lshr_b32 s55, s52, 1")
    a("s_and_b32 s56, s52, 1")
    a("v_lshrrev_b32 v6, 5, v0")
    a("v_bfe_u32 v7, v0, 2, 2")
    a("v_lshl_add_u32 v6, v6, 3, v7")
    a("s_lshl_b32 s60, s55, 4")
    a("v_add_u32 v6, s60, v6")
    a(f"v_mul_u32_u24 v6, {RS}, v6")
    a("v_bfe_u32 v7, v0, 4, 1")
    a("v_lshl_add_u32 v6, v7, 5, v6")
    a("v_and_b32 v7, 3, v0")
    a("v_lshl_add_u32 v6, v7, 3, v6")
    a("s_mul_i32 s60, s56, 576")
    a("v_add_u32 v6, s60, v6")
    a("s_mul_i32 s60, s52, 9216")
    a("s_add_u32 s57, s57, s60")
    a("v_lshlrev_b32 v7, 4, v0")
    a("s_waitcnt lgkmcnt(0)")
    a("s_barrier")
    for i in range(7):
        for sec in range(2):
            a(f"ds_read_b64_tr_b16 {vr(X0+4*i+2*sec,2)}, v6 offset:{sec*4*RS + i*64}")
    for i in range(9):
        a(f"s_waitcnt lgkmcnt({min(12, 2*(8-i))})")
        if i % 4 == 0 and i:
            a("s_add_u32 s57, s57, 4096")
        a(f"buffer_store_dwordx4 {vr(X0+4*i,4)}, v7, s[48:51], s57 offen offset:{(i%4)*1024}{SC}")
        if i + 7 < 9:
            for sec in range(2):
                a(f"ds_read_b64_tr_b16 {vr(X0+4*(i+7)+2*sec,2)}, v6 offset:{sec*4*RS + (i+7)*64}")

def ln_body(a, jreg, pub, pre=None, gate=True, only_load=False):
    a.srd(40, P_X, S*D*2)
    rows_setup(a)
    a(f"s_and_b32 s58, {jreg}, 7")
    a(f"s_lshr_b32 s56, {jreg}, 3")
    a("s_lshl_b32 s58, s58, 3")
    a("s_add_u32 s58, s58, s56")
    a("s_lshl_b32 s56, s58, 5")
    a("v_add_u32 v6, s56, v4")
    a("v_mul_u32_u24 v7, 1152, v6")
    a("v_lshl_add_u32 v7, v3, 4, v7")
    for i in range(9):
        a(f"buffer_load_dwordx4 {vr(XK+4*i,4)}, v7, s[40:43], 0 offen offset:{i*128}")
    if gate:
        a.srd(44, P_GW, D*2)
        a("v_lshlrev_b32 v8, 4, v3")
        for i in range(9):
            a(f"buffer_load_dwordx4 {vr(GK+4*i,4)}, v8, s[44:47], 0 offen offset:{i*128}")
    if only_load:
        a("s_waitcnt vmcnt(0)")
        return
    a(f"s_mul_i32 s57, s58, {2*18*1024}")
    a(f"s_add_u32 s57, s57, {HT_OFF}")
    a("v_mov_b32 v8, 0")
    a("v_mov_b32 v9, 0")
    a.stamp_mid(0)
    def pk(i): return vr(F0+2*i, 2)
    for i in range(36):
        if i % 4 == 0: a(f"s_waitcnt vmcnt({(17 if gate else 8) - i//4})")
        a(f"v_lshlrev_b32 v{F0+2*i}, 16, v{XK+i}")
        a(f"v_and_b32 v{F0+2*i+1}, 0xffff0000, v{XK+i}")
        a(f"v_pk_add_f32 v[8:9], v[8:9], {pk(i)}")
    a.stamp_mid(1)
    a("v_add_f32 v8, v8, v9")
    red8(a, 8)
    a(f"v_mul_f32 v8, {f32bits(-1.0/D)}, v8")
    a("v_mov_b32 v10, 0")
    a("v_mov_b32 v9, v8")
    a("v_mov_b32 v11, 0")
    for i in range(36):
        a(f"v_pk_add_f32 {pk(i)}, {pk(i)}, v[8:9]")
    for i in range(36):
        a(f"v_pk_fma_f32 v[10:11], {pk(i)}, {pk(i)}, v[10:11]")
    a("v_add_f32 v10, v10, v11")
    red8(a, 10)
    a(f"v_mov_b32 v12, {f32bits(1e-5)}")
    a(f"v_fmac_f32 v12, {f32bits(1.0/D)}, v10")
    a("v_rsq_f32 v12, v12")
    a("s_nop 0")
    a("v_mov_b32 v13, v12")
    for i in range(36):
        a(f"v_pk_mul_f32 {pk(i)}, {pk(i)}, v[12:13]")
    for i in range(36):
        a(f"v_cvt_pk_bf16_f32 v{X0+i}, v{F0+2*i}, v{F0+2*i+1}")
    if pre: pre(a)
    rows_tail(a)
    pub(a)

def wo_body(a, jreg):
    a.srd(40, P_WO, D*D*2)
    rows_setup(a)
    a(f"s_lshl_b32 s57, {jreg}, 1")
    a("s_lshr_b32 s55, s52, 1")
    a("s_add_u32 s57, s57, s55")
    a("s_and_b32 s56, s52, 1")
    a("s_lshl_b32 s56, s56, 2")
    a("s_lshl_b32 s57, s57, 4")
    a("s_add_u32 s57, s57, s56")
    a("v_lshrrev_b32 v6, 2, v2")
    a("v_and_b32 v7, 3, v2")
    a("v_lshl_add_u32 v6, v6, 3, v7")
    a("v_add_u32 v6, s57, v6")
    a("v_mul_u32_u24 v7, 1152, v6")
    a("v_lshl_add_u32 v7, v3, 4, v7")
    for i in range(9):
        a(f"buffer_load_dwordx4 {vr(X0+4*i,4)}, v7, s[40:43], 0 offen offset:{i*128}")
    a(f"s_mul_i32 s57, {jreg}, {2*18*1024}")
    a(f"s_add_u32 s57, s57, {WOF_OFF}")
    a("s_waitcnt vmcnt(0)")
    rows_tail(a)

def gate_own(a):
    a("v_mov_b32 v8, 0")
    a("v_mov_b32 v9, 0")
    for i in range(36):
        a(f"v_lshlrev_b32 v12, 16, v{GK+i}")
        a(f"v_and_b32 v13, 0xffff0000, v{GK+i}")
        a(f"v_lshlrev_b32 v14, 16, v{XK+i}")
        a(f"v_and_b32 v15, 0xffff0000, v{XK+i}")
        a(f"v_pk_fma_f32 v[8:9], v[12:13], v[14:15], v[8:9]")
    a("v_add_f32 v8, v8, v9")
    red8(a, 8)
    a(f"v_mul_f32 v8, {f32bits(-math.log2(math.e))}, v8")
    a("v_exp_f32 v8, v8")
    a("s_lshl_b32 s56, s58, 5")
    a("v_add_f32 v8, 1.0, v8")
    a("v_rcp_f32 v8, v8")
    a("v_add_u32 v6, s56, v4")
    a("v_lshlrev_b32 v6, 2, v6")
    a(f"s_mov_b32 s57, {G_OFF}")
    a("s_mov_b32 exec_lo, 0x01010101")
    a("s_mov_b32 exec_hi, 0x01010101")
    a(f"buffer_store_dword v8, v6, s[48:51], s57 offen{SC}")
    a("s_mov_b64 exec, -1")

def xw_touch(a, greg):
    a.srd(40, P_WQKV, D*3*D*2)
    a.srd(44, P_X, S*D*2)
    a(f"s_lshr_b32 s53, {greg}, 3")
    a("s_lshl_b32 s53, s53, 2")
    a("s_add_u32 s53, s53, s52")
    a("s_lshl_b32 s54, s53, 6")
    a("v_add_u32 v5, s54, v0")
    a("v_mul_u32_u24 v6, 18725, v5")
    a("v_lshrrev_b32 v6, 18, v6")
    a("v_mul_u32_u24 v7, 13, v6")
    a("v_add_u32 v7, v7, v5")
    a(f"s_and_b32 s54, {greg}, 1")
    a("s_mul_i32 s54, s54, 13")
    a("v_add_lshl_u32 v7, v7, s54, 7")
    a(f"buffer_load_dword v60, v7, s[40:43], 0 offen{XNT}")
    L = a.newlabel("nox")
    a("s_cmp_ge_u32 s53, 72")
    a(f"s_cbranch_scc1 {L}")
    a(f"s_bfe_u32 s54, {greg}, 0x20001")
    a("s_mul_i32 s54, s54, 4608")
    a("v_add_lshl_u32 v7, v5, s54, 7")
    a(f"buffer_load_dword v61, v7, s[44:47], 0 offen{XNT}")
    a.label(L)
for n in range(8192):
    assert (n*18725) >> 18 == n//14

def xw_touch2(a, greg, depth=1):
    L = a.newlabel("nox")
    a(f"s_cmp_lt_u32 {greg}, 192")
    a(f"s_cbranch_scc1 {L}")
    a.srd(40, P_WQKV, D*3*D*2)
    a.srd(44, P_X, S*D*2)
    a(f"s_bfe_u32 s53, {greg}, 0x30003")
    a("s_lshl_b32 s53, s53, 2")
    a("s_add_u32 s53, s53, s52")
    a(f"s_and_b32 s54, {greg}, 1")
    a("s_mul_i32 s54, s54, 13")
    a(f"s_add_u32 s54, s54, {128*27}")
    a(f"s_bfe_u32 s55, {greg}, 0x20001")
    a("s_mul_i32 s55, s55, 4608")
    a("s_add_u32 s55, s55, 2")
    a("v_mul_u32_u24 v8, 9, v0")
    for r in range(5):
        Lx = a.newlabel("tx"); Le = a.newlabel("te")
        a(f"s_add_u32 s56, s53, {32*r}")
        a("s_mul_i32 s57, s56, 745")
        a("s_lshr_b32 s57, s57, 14")
        a("s_mul_i32 s58, s57, 22")
        a("s_sub_u32 s56, s56, s58")
        if r == 4:
            a("s_cmp_ge_u32 s57, 7")
            a(f"s_cbranch_scc1 {Le}")
        a("s_cmp_ge_u32 s56, 14")
        a(f"s_cbranch_scc1 {Lx}")
        a("s_lshl_b32 s56, s56, 6")
        a("v_add_u32 v5, s56, v0")
        a("v_mul_u32_u24 v6, 18725, v5")
        a("v_lshrrev_b32 v6, 18, v6")
        a("v_mul_u32_u24 v6, 13, v6")
        a(f"s_mul_i32 s57, s57, {64*27}")
        a("s_add_u32 s57, s57, s54")
        a("v_add3_u32 v5, v5, v6, s57")
        a("v_lshlrev_b32 v5, 7, v5")
        a(f"buffer_load_dword v{60+(r&1)}, v5, s[40:43], 0 offen")
        a(f"s_branch {Le}")
        a.label(Lx)
        a("s_sub_u32 s56, s56, 14")
        a(f"s_mul_i32 s56, s56, {64*9}")
        a("s_add_u32 s56, s56, s57")
        a("s_add_u32 s56, s56, s55")
        a("v_add_lshl_u32 v5, v8, s56, 7")
        a(f"buffer_load_dword v{60+(r&1)}, v5, s[44:47], 0 offen")
        a.label(Le)
        if r >= depth: a(f"s_waitcnt vmcnt({depth})")
    a.label(L)
for n in range(160):
    assert (n*745) >> 14 == n//22
```

```python
from common import *

VF = [1, 2]; VT = [3, 4]
VDT, VDT2, VDF = 5, 6, 7
VH = 10
IX = 14
SET = [16, 60]
ACC = 112
S_T, S_F, S_CNT = 54, 55, 58
STAGE = 18432
NM = 36
NS = 41
YIELD = 1
LOOKS = (0, 2, 3)

def mlp2_body(a, wgreg, sm, dep, dep_o, ybox, part=0):
    real = a
    if part == 2: a = Asm()
    a.srd(40, P_W2, S*F*2)
    a.srd(44, P_WS, WS_SIZE)
    a(f"s_bfe_u32 s69, {wgreg}, 0x20001")
    a(f"s_bfe_u32 s67, {wgreg}, 0x20003")
    a(f"s_and_b32 s66, {wgreg}, 1")
    a("s_lshl_b32 s66, s66, 3")
    a(f"s_lshr_b32 s70, {wgreg}, 5")
    a("s_add_u32 s66, s66, s70")
    a("s_lshl_b32 s56, s66, 8")
    a("s_lshl_b32 s70, s52, 15")
    a("s_add_u32 s56, s56, s70")
    a("s_mul_i32 s57, s67, 9")
    a("s_lshr_b32 s57, s57, 1")
    a("s_lshl_b32 s57, s57, 10")
    a("s_lshr_b32 s70, s52, 1")
    a(f"s_mul_i32 s70, s70, {18*1024}")
    a("s_add_u32 s57, s57, s70")
    a("s_and_b32 s70, s52, 1")
    a("s_mul_i32 s70, s70, 2560")
    a("s_add_u32 s57, s57, s70")
    a(f"s_mul_i32 s{S_T}, s69, {1152*4096}")
    a(f"s_add_u32 s{S_T}, s{S_T}, s56")
    a(f"s_mul_i32 s{S_F}, s69, {72*18*1024}")
    a(f"s_add_u32 s{S_F}, s{S_F}, s57")
    a(f"s_add_u32 s{S_F}, s{S_F}, {U_OFF}")
    a("s_lshl_b32 s60, s52, 11")
    a("s_mul_i32 s61, s52, 2560")
    a("s_add_u32 s61, s61, 8192")
    a(f"s_mov_b32 s62, {32*4096}")
    a(f"s_mov_b32 s63, {2*18*1024}")
    a("v_lshrrev_b32 v8, 4, v0")
    a("v_and_b32 v9, 3, v0")
    a("v_lshlrev_b32 v9, 4, v9")
    a("v_lshl_add_u32 v8, v8, 6, v9")
    a("v_bfe_u32 v9, v0, 2, 2")
    a(f"v_lshl_add_u32 v{VDT}, v9, 12, v8")
    a(f"v_add_u32 v{VDT2}, {4*4096}, v{VDT}")
    a(f"v_lshlrev_b32 v{VDF}, 4, v0")
    def m0t(buf, i): a(f"s_add_u32 m0, s60, {buf*STAGE + i*1024}")
    def m0f(buf): a(f"s_add_u32 m0, s61, {buf*STAGE}")
    def ldt(i, st=S_T):
        a(f"buffer_load_dwordx4 v{VDT2 if i else VDT}, s[40:43], s{st} offen sc1 lds")
        if i: a(f"s_add_u32 s{st}, s{st}, s62")
    def ldf(i):
        if i == 2: a("s_mov_b32 exec_hi, 0")
        a(f"buffer_load_dwordx4 v{VDF}, s[44:47], s{S_F} offen offset:{i*1024} sc1 lds")
        if i == 2:
            a("s_mov_b32 exec_hi, -1")
            a(f"s_add_u32 s{S_F}, s{S_F}, s63")
    for st in range(4):
        for i in range(2):
            m0t(st, i); a("s_nop 0"); ldt(i)
    a("v_lshrrev_b32 v8, 5, v0")
    a("v_lshlrev_b32 v8, 10, v8")
    a("v_lshl_add_u32 v8, v9, 6, v8")
    a("v_bfe_u32 v9, v0, 4, 1")
    a("v_lshl_add_u32 v8, v9, 5, v8")
    a("v_and_b32 v9, 3, v0")
    a("v_lshl_add_u32 v8, v9, 3, v8")
    a("s_lshl_b32 s70, s52, 8")
    a(f"v_add_u32 v{VT[0]}, s70, v8")
    a(f"v_add_u32 v{VT[1]}, {2*STAGE}, v{VT[0]}")
    a("s_and_b32 s71, s67, 1")
    a("s_lshl_b32 s70, s71, 10")
    a("s_add_u32 s70, s70, 8192")
    a(f"v_add_u32 v{VF[0]}, s70, v{VDF}")
    a(f"v_add_u32 v{VF[1]}, {2*STAGE}, v{VF[0]}")
    if part == 1: return
    a = real
    a("s_cmp_lg_u32 s71, 0")
    a(f"s_mov_b32 s70, {8192 + 4096}")
    a(f"s_cselect_b32 s70, {8192 + 256}, s70")
    a("v_lshrrev_b32 v8, 5, v0")
    a("v_mul_u32_u24 v8, 5120, v8")
    a("v_and_b32 v9, 15, v0")
    a("v_lshl_add_u32 v8, v9, 4, v8")
    a("v_bfe_u32 v9, v0, 4, 1")
    a("v_lshl_add_u32 v8, v9, 2, v8")
    a(f"v_add_u32 v{VH}, s70, v8")
    for b in range(1, 4): a(f"v_add_u32 v{VH+b}, {b*STAGE}, v{VH}")
    a(f"v_mov_b32 v{IX}, 0x4444")
    a("s_mov_b32 exec_lo, 0xffff0000")
    a("s_mov_b32 exec_hi, 0xffff0000")
    a(f"v_mov_b32 v{IX}, 0xeeee")
    a("s_mov_b64 exec, -1")
    for e in range(16): a(f"v_mov_b32 v{ACC+64+e}, 0")
    dep(a)
    for st in range(4):
        m0f(st); a("s_nop 0")
        for i in range(3): ldf(i)
    def reads(c):
        buf = c % 4; b = SET[c & 1]; o = (buf & 1)*STAGE; hi = buf >> 1
        T = [f"ds_read_b64_tr_b16 {vr(b+4*st+2*sec,2)}, v{VT[hi]} offset:{o + st*4096 + sec*2048}" for st in range(2) for sec in range(2)]
        Fr = [f"ds_read_b128 {vr(b+8+16*st+4*i,4)}, v{VF[hi]} offset:{o + st*5120 + i*1024}" for st in range(2) for i in range(4)]
        H = [f"ds_read2_b32 {vr(b+40+2*h,2)}, v{VH+buf} offset0:{128*h} offset1:{128*h+2}" for h in range(2)]
        if c == NS - 1: Fr = Fr[:4]
        return T + Fr + H
    def mfma(c, k):
        b = SET[c & 1]
        if YIELD > 1 and c < NM:
            if k % YIELD == 0: a("s_setprio 0")
            if k % YIELD == 1: a("s_setprio 2")
        if k == 4:
            a(f"v_smfmac_f32_32x32x32_bf16 {vr(ACC+64,16)}, {vr(b+40,4)}, {vr(b,8)}, v{IX}")
            return
        st, i = (0, k) if k < 4 else (1, k - 5)
        if c == NS - 1 and st: return
        d = vr(ACC + 16*i, 16)
        a(f"v_mfma_f32_32x32x16_bf16 {d}, {vr(b+8+16*st+4*i,4)}, {vr(b+4*st,4)}, {'0' if (c == 0 and st == 0) else d}")
    def body(c, vm=10, top=None, tail=None, sync=True, rd=True):
        buf = c % 4
        ld = c + 4 < NS
        r = reads(c+1) if (c + 1 < NS and rd) else []
        if c + 1 < NS and sync:
            a(f"s_waitcnt vmcnt({vm}) lgkmcnt(0)")
            a("s_barrier")
        else:
            a("s_waitcnt lgkmcnt(0)")
        if top: top()
        cuts = [0, 3, 6, 8, 10, 12, 14, 14, 14, 14]
        for k in range(9):
            mfma(c, k)
            if ld:
                if k == 0: m0t(buf, 0)
                if k == 2: m0t(buf, 1)
                if k == 4: m0f(buf)
            for x in r[cuts[k]:cuts[k+1]]: a(x)
            if ld:
                if k == 1: ldt(0)
                if k == 3: ldt(1)
                if k in (5, 6, 7): ldf(k - 5)
        if tail: tail()
    a("s_waitcnt vmcnt(9)")
    a("s_barrier")
    for x in reads(0): a(x)
    a("s_setprio 0")
    a.stamp_mid(sm)
    body(0, 6); body(1, 8); body(2); body(3)
    a(f"s_mov_b32 s{S_CNT}, 7")
    L = a.newlabel("mlp2")
    a.raw(".p2align 6")
    a.label(L)
    for c in range(4, 8): body(c, tail=(lambda: a("s_buffer_load_dword s75, s[48:51], s59 glc")) if False else None)
    a(f"s_sub_u32 s{S_CNT}, s{S_CNT}, 1")
    a(f"s_cmp_lg_u32 s{S_CNT}, 0")
    a(f"s_cbranch_scc1 {L}")
    dep_o(a, "addr")
    a("s_buffer_load_dword s75, s[48:51], s59 glc")
    a.srd(40, P_WS, 0)
    a("s_mov_b32 s79, 0")
    a(f"s_mul_i32 s{S_T}, s69, {144*4096}")
    a(f"s_add_u32 s{S_T}, s{S_T}, s56")
    a(f"s_add_u32 s{S_T}, s{S_T}, {O_OFF}")
    a(f"s_mov_b32 s78, s{S_T}")
    a(f"s_mul_i32 s{S_F}, s69, {9*18*1024}")
    a(f"s_add_u32 s{S_F}, s{S_F}, s57")
    a(f"s_add_u32 s{S_F}, s{S_F}, {WOF_OFF}")
    a("s_lshl_b32 s70, s66, 2")
    a("s_add_u32 s65, s70, s52")
    a("s_lshl_b32 s70, s65, 5")
    a("v_and_b32 v104, 31, v0")
    a("v_add_u32 v104, s70, v104")
    a("v_lshlrev_b32 v105, 2, v104")
    a("v_lshlrev_b32 v104, 1, v104")
    a(f"s_mov_b32 s70, {G_OFF}")
    a.srd(80, P_B2, S*2)
    a("s_cmp_eq_u32 s69, 0")
    a("s_cselect_b32 s82, s82, 0")
    a("buffer_load_dword v106, v105, s[48:51], s70 offen sc1")
    a("buffer_load_ushort v107, v104, s[80:83], 0 offen")
    def look(j):
        def f():
            Lk = a.newlabel("lk")
            a("s_cmp_ge_u32 s75, 8")
            a("s_cselect_b32 s75, 1, 0")
            a("s_cmp_gt_u32 s75, s79")
            a(f"s_cbranch_scc0 {Lk}")
            a("s_mov_b32 s79, 1")
            a(f"s_mov_b32 s42, {WS_SIZE}")
            for jj in range(j):
                for i in range(2):
                    m0t(jj, i); a("s_nop 0"); ldt(i, 78)
            a.label(Lk)
            if j + 1 in LOOKS: a("s_buffer_load_dword s75, s[48:51], s59 glc")
        return f
    def peek(j):
        return (lambda: a("s_buffer_load_dword s75, s[48:51], s59 glc")) if j + 1 in LOOKS else None
    for j in range(4):
        body(32 + j, top=look(j) if j in LOOKS else peek(j), rd=(j < 3))
    a.stamp_mid(7)
    a("s_setprio 2")
    Lgo = a.newlabel("go")
    a("s_cmp_lg_u32 s79, 0")
    a(f"s_cbranch_scc1 {Lgo}")
    dep_o(a, True)
    a(f"s_mov_b32 s42, {WS_SIZE}")
    for j in range(4):
        for i in range(2):
            m0t(j, i); a("s_nop 0"); ldt(i, 78)
    a.label(Lgo)
    a("v_sub_f32 v106, 1.0, v106")
    a("v_lshlrev_b32 v107, 16, v107")
    a("v_mul_f32 v107, v107, v106")
    a(f"s_mul_i32 s73, s69, {YPB_SZ}")
    a("s_lshl_b32 s70, s65, 11")
    a("s_add_u32 s73, s73, s70")
    a(f"s_add_u32 s73, s73, {YP_OFF}")
    a("s_mul_i32 s70, s67, 9")
    a("s_lshr_b32 s72, s70, 1")
    a("s_add_u32 s70, s72, s71")
    a("s_lshl_b32 s70, s70, 17")
    a("s_add_u32 s77, s73, s70")
    a("s_cmp_lg_u32 s71, 0")
    a("s_cselect_b32 s70, 0, 4")
    a("s_add_u32 s72, s72, s70")
    a("s_lshl_b32 s72, s72, 17")
    a("s_add_u32 s73, s73, s72")
    a("s_lshl_b32 s70, s71, 10")
    a("s_add_u32 s73, s73, s70")
    ybox(a)
    a("v_mov_b32 v108, 0")
    a("v_mov_b32 v109, 1")
    for e in range(72): a(f"v_fma_f32 v{ACC+e}, v{ACC+e}, v106, v107")
    for e in range(72, 80): a(f"v_mul_f32 v{ACC+e}, v{ACC+e}, v106")
    a("s_cmp_ge_u32 s52, 2")
    a("s_cselect_b32 s42, 0, s42")
    a("s_cselect_b32 s46, 0, s46")
    a("s_waitcnt vmcnt(0)")
    a("s_barrier")
    for x in reads(36): a(x)
    body(36, 0); body(37, sync=False); body(38, sync=False); body(39, 0); body(40)
    a.stamp_mid(sm+1)
    a("s_nop 7")
    for i in range(4):
        b = ACC + 16*i
        for hf in range(2):
            for e in range(4*hf, 4*hf+4):
                a(f"v_cvt_pk_bf16_f32 v{b+e}, v{b+2*e}, v{b+2*e+1}")
            a(f"buffer_store_dwordx4 {vr(b+4*hf,4)}, v{VDF}, s[48:51], s77 offen offset:{hf*1024} sc1")
        if i < 3: a(f"s_add_u32 s77, s77, {64*2048}")
    b = ACC + 64
    for e in range(8): a(f"v_add_f32 v{b+e}, v{b+e}, v{b+8+e}")
    for e in range(4): a(f"v_cvt_pk_bf16_f32 v{b+e}, v{b+2*e}, v{b+2*e+1}")
    a(f"buffer_store_dwordx4 {vr(b,4)}, v{VDF}, s[48:51], s73 offen sc1")
    a("s_waitcnt vmcnt(0)")
    a("s_mov_b64 exec, 1")
    a("buffer_atomic_add v109, v108, s[48:51], s76 offen sc1")
    a("s_mov_b64 exec, -1")

OSC = " nt"
def final_body(a, wgreg, dep_y):
    a.srd(40, P_OUT, S*D*2)
    a.srd(44, P_WS, WS_SIZE)
    a(f"s_and_b32 s53, {wgreg}, 63")
    a(f"s_lshr_b32 s54, {wgreg}, 6")
    a("v_lshlrev_b32 v2, 4, v0")
    a("v_and_b32 v5, 31, v0")
    a("s_lshl_b32 s57, s53, 5")
    a("v_add_u32 v5, s57, v5")
    a("v_mul_u32_u24 v5, 1152, v5")
    a("v_lshrrev_b32 v6, 5, v0")
    a("v_lshl_add_u32 v5, v6, 4, v5")
    a("s_mul_i32 s55, s54, 9")
    a("s_add_u32 s55, s55, s52")
    a("s_lshl_b32 s58, s55, 5")
    a("s_lshr_b32 s56, s55, 1")
    a("s_lshl_b32 s56, s56, 17")
    a("s_and_b32 s57, s55, 1")
    a("s_lshl_b32 s57, s57, 10")
    a("s_add_u32 s56, s56, s57")
    a("s_lshl_b32 s57, s53, 11")
    a("s_add_u32 s56, s56, s57")
    a(f"s_add_u32 s56, s56, {YP_OFF}")
    dep_y(a)
    Y = 16
    for i in range(3):
        if i == 2:
            a("s_cmp_lg_u32 s52, 0")
            a("s_cselect_b32 s46, 0, s46")
        for ks in range(4):
            a(f"s_add_u32 s57, s56, {ks*YPB_SZ + i*2*64*2048}")
            a(f"buffer_load_dwordx4 {vr(Y+16*i+4*ks,4)}, v2, s[44:47], s57 offen sc1")
    Le = a.newlabel("fe")
    for i in range(3):
        T = 80 + 16*i
        if i == 2:
            a("s_cmp_lg_u32 s52, 0")
            a(f"s_cbranch_scc1 {Le}")
        for ks in range(4):
            a(f"s_waitcnt vmcnt({4*(2-i) + 3 - ks + i})")
            for p in range(4):
                y = Y + 16*i + 4*ks + p
                d = T + 2*p if ks == 0 else T + 8 + 2*p
                a(f"v_lshlrev_b32 v{d}, 16, v{y}")
                a(f"v_and_b32 v{d+1}, 0xffff0000, v{y}")
            if ks:
                for p in range(4):
                    a(f"v_pk_add_f32 {vr(T+2*p,2)}, {vr(T+2*p,2)}, {vr(T+8+2*p,2)}")
        for e in range(4):
            a(f"v_cvt_pk_bf16_f32 v{T+e}, v{T+2*e}, v{T+2*e+1}")
        a("s_nop 1")
        a(f"v_permlane32_swap_b32 v{T}, v{T+2}")
        a(f"v_permlane32_swap_b32 v{T+1}, v{T+3}")
        a(f"buffer_store_dwordx4 {vr(T,4)}, v5, s[40:43], s58 offen offset:{i*128}{OSC}")
    a.label(Le)
```

```python
from common import *

MB_H, MB_QKV, MB_U, MB_O, MB_Y, MB_N = 1152, 1280, 128, 384, 640, 1344
MB_G = 896
MB_E = 928
MB_P = 1344
def mb(i): return CNT_OFF + 256*i
SPIN_MAX = 0x40000

def wave_setup(a):
    a("v_lshrrev_b32 v1, 6, v0")
    a("v_and_b32 v0, 63, v0")
    a("s_nop 0")
    a("v_readfirstlane_b32 s52, v1")
    a("s_waitcnt lgkmcnt(0)")

def spin(a, srd, soff, target, vt, sleep=8):
    L = a.newlabel("poll"); Ld = a.newlabel("polld")
    a("s_mov_b32 s74, 0")
    a.label(L)
    a(f"s_buffer_load_dword s75, s[{srd}:{srd+3}], {soff} glc")
    a("s_add_u32 s74, s74, 1")
    a("s_waitcnt lgkmcnt(0)")
    a(f"s_cmp_ge_u32 s75, {target}")
    a(f"s_cbranch_scc1 {Ld}")
    a(f"s_sleep {sleep}")
    a(f"s_cmp_lt_u32 s74, {SPIN_MAX}")
    a(f"s_cbranch_scc1 {L}")
    a.label(Ld)

N_LATE = 25
def spin_init(a, vt, late=False):
    L = a.newlabel("ini"); Lr = a.newlabel("inir")
    off, tgt = (128, N_LATE) if late else (0, 1)
    a(f"s_buffer_load_dword s75, s[84:87], {off}")
    a("s_waitcnt lgkmcnt(0)")
    a(f"s_cmp_ge_u32 s75, {tgt}")
    a(f"s_cbranch_scc1 {L}")
    a(f"v_mov_b32 v{vt}, 0")
    a("s_mov_b32 s74, 0")
    a.label(Lr)
    a("s_sleep 6")
    a("s_mov_b64 exec, 1")
    a(f"buffer_load_dword v{vt+1}, v{vt}, s[84:87], 0 offen offset:{off} sc1")
    a("s_mov_b64 exec, -1")
    a("s_waitcnt vmcnt(0)")
    a(f"v_readfirstlane_b32 s75, v{vt+1}")
    a("s_add_u32 s74, s74, 1")
    a(f"s_cmp_ge_u32 s75, {tgt}")
    a(f"s_cbranch_scc1 {L}")
    a(f"s_cmp_lt_u32 s74, {SPIN_MAX}")
    a(f"s_cbranch_scc1 {Lr}")
    a.label(L)

def poll(a, sidx, target, vt=5, init=False, sleep=8):
    Ld = a.newlabel("pw")
    a("s_cmp_lg_u32 s52, 0")
    a(f"s_cbranch_scc1 {Ld}")
    if init: spin_init(a, vt, init == 'late')
    if sidx is not None:
        spin(a, 48, f"s{sidx}", target, vt, sleep=sleep)
    a.label(Ld)
    a("s_barrier")

def publish(a, sidx, nrep, vt=5, init=False, voff=None, ninstr=1, vm=0):
    L = a.newlabel("pub")
    if init:
        L0 = a.newlabel("pub")
        a("s_cmp_lg_u32 s52, 0")
        a(f"s_cbranch_scc1 {L0}")
        spin_init(a, vt, init == 'late')
        a.label(L0)
    a(f"s_waitcnt vmcnt({vm})")
    a("s_barrier")
    a("s_cmp_lg_u32 s52, 0")
    a(f"s_cbranch_scc1 {L}")
    if voff: voff(a, vt)
    else: a(f"v_lshlrev_b32 v{vt}, 8, v0")
    a(f"v_mov_b32 v{vt+1}, 1")
    if isinstance(nrep, str):
        a(f"s_mov_b32 exec_lo, {nrep}")
        a("s_mov_b32 exec_hi, 0")
    elif nrep <= 32:
        a(f"s_mov_b32 exec_lo, {((1 << nrep) - 1) & 0xffffffff}")
        a("s_mov_b32 exec_hi, 0")
    for i in range(ninstr):
        a(f"buffer_atomic_add v{vt+1}, v{vt}, s[48:51], s{sidx} offen sc1")
        if i + 1 < ninstr: a(f"s_add_u32 s{sidx}, s{sidx}, {64*256}")
    a("s_mov_b64 exec, -1")
    a.label(L)

def init_mailboxes(a, jreg):
    a("v_lshrrev_b32 v5, 3, v0")
    a("v_and_b32 v6, 7, v0")
    a("v_lshlrev_b32 v6, 4, v6")
    a("v_lshl_add_u32 v5, v5, 8, v6")
    for i in range(4): a(f"v_mov_b32 v{8+i}, 0")
    Le = a.newlabel("inie"); Lj = a.newlabel("inij")
    a(f"s_cmp_eq_u32 {jreg}, {N_LATE}")
    a(f"s_cbranch_scc1 {Le}")
    a(f"s_lshl_b32 s72, {jreg}, 2")
    a("s_add_u32 s72, s72, s52")
    a("s_lshl_b32 s72, s72, 11")
    a(f"s_add_u32 s72, s72, {mb(128)}")
    a("buffer_store_dwordx4 v[8:11], v5, s[48:51], s72 offen sc1")
    a("s_movk_i32 s73, 128")
    a(f"s_branch {Lj}")
    a.label(Le)
    a("s_mul_i32 s72, s52, 12288")
    a(f"s_add_u32 s72, s72, {mb(MB_H)}")
    for i in range(3):
        a("buffer_store_dwordx4 v[8:11], v5, s[48:51], s72 offen sc1")
        a("buffer_store_dwordx4 v[8:11], v5, s[48:51], s72 offen offset:2048 sc1")
        if i < 2: a("s_add_u32 s72, s72, 4096")
    a("s_mov_b32 s73, 0")
    a.label(Lj)
    a("buffer_load_dword v12, v8, s[84:87], 0 offen offset:64 sc1")
    a("s_waitcnt vmcnt(0)")
    a("s_barrier")
    L = a.newlabel("ini")
    a("s_cmp_lg_u32 s52, 0")
    a(f"s_cbranch_scc1 {L}")
    a("v_mov_b32 v6, 1")
    a("s_mov_b64 exec, 1")
    a("buffer_atomic_add v6, v8, s[84:87], s73 offen sc1")
    a("s_mov_b64 exec, -1")
    a.label(L)
```

```python
import gen, re
gen.M2G = True; gen.PF2 = 15
base = gen.build(True)
def variant(name, fn):
    out = []; inq = False
    for l in base.split("\n"):
        if re.match(r"L_mlp2_\d+:", l): inq = True
        if inq and "s_cbranch_scc1 L_mlp2_" in l: inq = False
        out.append(fn(l) if inq else l)
    open(f"gen/{name}.s", "w").write("\n".join(out))
variant("g_nodma", lambda l: "    s_nop 0" if "buffer_load" in l else l)
variant("g_nor2", lambda l: "    s_nop 0" if "ds_read2" in l else l)
variant("g_nosm", lambda l: "    s_nop 0" if "smfmac" in l else l)
variant("g_nolds", lambda l: "    s_nop 0" if "ds_read" in l else l)
```

```python
import sys
from common import *
import sync, k_front, k_mlp1, k_mlp1y, k_mlp2, k_attn, k_final, k_final2, k_mlp2f, k_help, k_attn2, k_mlp2g
from sync import mb, MB_U, MB_H, MB_QKV, MB_O, MB_Y, MB_G, MB_P, MB_E

HEADER = open("cdna_kernels/" + NAME + ".s.ref").read().split("; Override launch geometry")[0]
N_WO = 18
W2_TOUCH = False
FRONT_ONLY = False
PARTNER = True
A_EXIT = False
PF1 = 0
M2G = False
GTAIL = True
LNB = False
LNB_PRIO = 3
CW = (None, None, None)
PFN1 = 16
PFS1 = 0
PF3 = 0
QPOLL_ALL = False
UPOLL_ALL = True
HINT2 = 0
FUSED = True
INIT_LOW = 2
W1HEAD = True
PRE = 0
M1Y = True
COOP = False
COOP_H = False
COOP_U = False
BPRIO = 0
INIT_LATE = True
PFMODE = 'col'
PFH = False
SLP_H = 4
HEAD_PF = 0
CODE_PF = False
B_EXIT = False
DIAG = None
PF_AFTER_H = True
TLBW = 0
PFW1 = True
XW = 2
XWD = 1
LIST = True
NO_FINAL = False
PFD = 1
LN_WAIT = True
PF2 = 7
EARLY = 1
EARLY_FL = ''
PROMOTE = False
WAIT_QKV = True
HINT_AT = 3
SLP_HINT = 4
SLP_FIN = 2
W2_TAIL = 0
AUX_G0 = 16
AUX_NT = ''

DOC = """;
;                         240 tiles) scaled by (1-gate) with the output projection of gate*o appended along K
"""

def w1_touch(a, g0, ng, vt, srd=40):
    L = a.newlabel("w1t")
    a("s_and_b32 s72, s2, 255")
    a(f"s_cmp_ge_u32 s72, {k_mlp1y.MLP1_GRID}")
    a(f"s_cbranch_scc1 {L}")
    a.srd(srd, P_W1, S*F*2)
    a("s_and_b32 s73, s72, 7")
    a("s_mul_i32 s73, s73, 27")
    a("s_lshr_b32 s72, s72, 3")
    a("s_add_u32 s72, s72, s73")
    a("s_mul_i32 s73, s72, 171")
    a("s_lshr_b32 s73, s73, 10")
    a("s_mul_i32 s74, s73, 6")
    a("s_sub_u32 s72, s72, s74")
    a("s_mul_i32 s74, s52, 6")
    a("s_add_u32 s72, s72, s74")
    a("s_lshl_b32 s73, s73, 8")
    a(f"s_mul_i32 s74, s72, {32*F*2}")
    a("s_add_u32 s73, s73, s74")
    a(f"s_add_u32 s73, s73, {g0*32*F*2}")
    a(f"v_lshrrev_b32 v{vt}, 1, v0")
    a(f"v_mul_u32_u24 v{vt}, {F*2}, v{vt}")
    a(f"v_and_b32 v{vt+1}, 1, v0")
    a(f"v_lshl_add_u32 v{vt}, v{vt+1}, 7, v{vt}")
    for r in range(-(-ng//24)):
        if ng - 24*r < 24:
            a(f"s_cmp_ge_u32 s72, {ng - 24*r}")
            a(f"s_cbranch_scc1 {L}")
        a(f"buffer_load_dword v{vt+1}, v{vt}, s[{srd}:{srd+3}], s73 offen")
        a(f"s_add_u32 s73, s73, {24*32*F*2}")
    a.label(L)

def gen_main(a, name):
    a.kernel_begin(name)
    a("s_cmp_ge_u32 s2, 512")
    a("s_cbranch_scc1 L_end")
    a.load_kernargs()
    sync.wave_setup(a)
    a.srd(48, P_WS, WS_SIZE)
    a.srd(84, P_DBG, 256)
    a("s_cmp_ge_u32 s2, 256")
    a("s_cbranch_scc1 L_slotB")
    a("s_setprio 3")
    a("s_cmp_ge_u32 s2, 192")
    a("s_cbranch_scc1 L_ln")
    def hint2(a):
        L = a.newlabel("hint")
        a("s_cmp_lg_u32 s52, 0")
        a(f"s_cbranch_scc1 {L}")
        a("s_lshl_b32 s76, s2, 8")
        a(f"s_add_u32 s76, s76, {mb(MB_P)}")
        a("v_mov_b32 v8, 0")
        a("v_mov_b32 v9, 1")
        a("s_mov_b64 exec, 1")
        a("buffer_store_dword v9, v8, s[48:51], s76 offen offset:4 sc1")
        a("s_mov_b64 exec, -1")
        a.label(L)
    def pub_qkv(a):
        a("s_and_b32 s72, s56, 3")
        a("s_lshl_b32 s72, s72, 12")
        a("s_and_b32 s73, s55, 12")
        a("s_add_u32 s72, s72, s73")
        a(f"s_add_u32 s72, s72, {mb(MB_QKV)}")
        if HINT2 == 1: hint2(a)
        sync.publish(a, 72, 16, init=True)
        if HINT2 == 2: hint2(a)
    def hint(a):
        L = a.newlabel("hint")
        a("s_lshl_b32 s76, s52, 3")
        a("s_add_u32 s76, s76, s60")
        a(f"s_cmp_lg_u32 s76, {HINT_AT}")
        a(f"s_cbranch_scc1 {L}")
        a("s_lshl_b32 s76, s2, 8")
        a(f"s_add_u32 s76, s76, {mb(MB_P)}")
        a("v_mov_b32 v8, 0")
        a("v_mov_b32 v9, 1")
        a("s_mov_b64 exec, 1")
        a("buffer_store_dword v9, v8, s[48:51], s76 offen sc1")
        a("s_mov_b64 exec, -1")
        a.label(L)
    k_front.qkv_body(a, "s2", pub_qkv, hint if WAIT_QKV else None)
    a("s_branch L_attn")
    a.label("L_ln")
    a("s_sub_u32 s3, s2, 192")
    def pub_h(a):
        a("s_lshr_b32 s72, s58, 4")
        a("s_lshl_b32 s72, s72, 13")
        a(f"s_add_u32 s72, s72, {mb(MB_H)}")
        sync.publish(a, 72, 32, init=True)
    k_front.ln_body(a, "s3", pub_h, only_load=LNB)
    a.stamp_mid(6)
    k_front.gate_own(a)
    a(f"s_cmp_ge_u32 s3, {N_WO}")
    a("s_cbranch_scc1 L_nowo")
    k_front.wo_body(a, "s3")
    a.label("L_nowo")
    a(f"s_mov_b32 s72, {mb(MB_G)}")
    sync.publish(a, 72, 32, init='late')
    a.label("L_attn")
    if CW[1]: w1_touch(a, CW[1][0], CW[1][1], 250)
    a.stamp_mid(2)
    if FRONT_ONLY or A_EXIT: a("s_branch L_done")
    def dep_qkv(a):
        a("s_lshr_b32 s72, s61, 3")
        a("s_lshl_b32 s72, s72, 4")
        a("s_bfe_u32 s73, s2, 0x40003")
        a("s_add_u32 s72, s72, s73")
        a("s_lshl_b32 s72, s72, 8")
        a(f"s_add_u32 s79, s72, {mb(MB_QKV)}")
        a("s_lshr_b32 s73, s2, 6")
        a("s_lshl_b32 s73, s73, 2")
        a("s_add_u32 s72, s79, s73")
        if QPOLL_ALL:
            sync.poll(a, None, 0, vt=8, init='late')
            sync.spin(a, 48, "s72", 12, 8, sleep=2)
        else:
            sync.poll(a, 72, 12, vt=8, sleep=2, init='late')
        if HINT2 == 3: hint2(a)
    def dep_qkv2(a):
        L = a.newlabel("q2"); Ld = a.newlabel("q2d")
        a("s_mov_b32 s76, 0")
        a.label(L)
        a("s_buffer_load_dwordx4 s[72:75], s[48:51], s79 glc")
        a("s_add_u32 s76, s76, 1")
        a("s_waitcnt lgkmcnt(0)")
        a("s_min_u32 s72, s72, s73")
        a("s_min_u32 s74, s74, s75")
        a("s_min_u32 s72, s72, s74")
        a("s_cmp_ge_u32 s72, 12")
        a(f"s_cbranch_scc1 {Ld}")
        a("s_sleep 4")
        a(f"s_cmp_lt_u32 s76, {sync.SPIN_MAX}")
        a(f"s_cbranch_scc1 {L}")
        a.label(Ld)
    def dep_g(a):
        if CW[2]: w1_touch(a, CW[2][0], CW[2][1], 252)
        a("s_bfe_u32 s72, s2, 0x50003")
        a("s_lshl_b32 s72, s72, 8")
        a(f"s_add_u32 s72, s72, {mb(MB_G)}")
        sync.spin(a, 48, "s72", 64, 0)
    def pub_o_f(a):
        a("s_cmp_gt_u32 s61, 7")
        a("s_cselect_b32 s72, 1, 0")
        for hd in (14, 19, 24):
            a(f"s_cmp_gt_u32 s61, {hd}")
            a("s_addc_u32 s72, s72, 0")
        a("s_lshr_b32 s73, s2, 5")
        a("s_mul_i32 s73, s73, 5")
        a("s_add_u32 s72, s72, s73")
        a(f"s_mul_i32 s72, s72, {6*256}")
        a(f"s_add_u32 s72, s72, {mb(MB_O)}")
        a(f"s_lshr_b32 s73, {(1<<7)|(1<<14)|(1<<19)|(1<<24)}, s61")
        a("s_and_b32 s73, s73, 1")
        a("s_cselect_b32 s73, 0xfff, 63")
        sync.publish(a, 72, "s73")
    def pub_o(a):
        if M2G:
            a("s_lshr_b32 s72, s2, 5")
            a("s_lshl_b32 s72, s72, 2")
            a("s_lshr_b32 s73, s61, 3")
            a("s_add_u32 s72, s72, s73")
            a("s_lshl_b32 s72, s72, 11")
            a(f"s_add_u32 s72, s72, {mb(MB_O)}")
            return sync.publish(a, 72, 8)
        if FUSED: return pub_o_f(a)
        a("s_lshr_b32 s72, s2, 5")
        a("s_lshl_b32 s72, s72, 13")
        a("s_lshr_b32 s73, s61, 3")
        a("s_lshl_b32 s73, s73, 2")
        a("s_add_u32 s72, s72, s73")
        a(f"s_add_u32 s72, s72, {mb(MB_O)}")
        sync.publish(a, 72, 24)
    def last_extra(a):
        k_final2.wof_setup(a, "s2", 147)
        return [k_final2.wof_load(k, 147) for k in range(27)]
    TV = 140
    def tsetup(a):
        a.srd(80, P_W2, S*F*2)
        a("s_lshr_b32 s72, s2, 3")
        a("s_lshl_b32 s72, s72, 2")
        a("s_add_u32 s72, s72, s52")
        a("s_mul_i32 s73, s72, 205")
        a("s_lshr_b32 s73, s73, 11")
        a("s_mul_i32 s76, s73, 10")
        a("s_sub_u32 s72, s72, s76")
        a("s_and_b32 s76, s2, 7")
        a("s_mul_i32 s76, s76, 10")
        a("s_add_u32 s72, s72, s76")
        a("s_lshr_b32 s76, s72, 4")
        a("s_and_b32 s72, s72, 15")
        a(f"s_mul_i32 s76, s76, {928*4096}")
        a("s_lshl_b32 s72, s72, 8")
        a("s_add_u32 s76, s76, s72")
        a("s_lshl_b32 s72, s73, 17")
        a("s_add_u32 s76, s76, s72")
        a("s_cmp_ge_u32 s73, 12")
        a("s_cselect_b32 s82, 0, s82")
        a(f"v_lshrrev_b32 v{TV}, 1, v0")
        a(f"v_lshlrev_b32 v{TV}, 12, v{TV}")
        a(f"v_and_b32 v{TV+1}, 1, v0")
        a(f"v_lshl_add_u32 v{TV}, v{TV+1}, 7, v{TV}")
        a(f"v_add_u32 v{TV}, s76, v{TV}")
        a("s_mov_b32 s78, s73")
    def touch(a):
        a("s_cmp_ge_u32 s78, 29")
        a("s_cselect_b32 s82, 0, s82")
        a(f"buffer_load_dword v{TV+1}, v{TV}, s[80:83], 0 offen")
        a(f"v_add_u32 v{TV}, {12*32*4096}, v{TV}")
        a("s_add_u32 s78, s78, 12")
    (k_attn2 if k_front.VNAT else k_attn).attn_body(a, "s2", dep_qkv, pub_o, sm=3, tsetup=tsetup if W2_TOUCH else None, touch=touch if W2_TOUCH else None, dep_g=dep_g, dep2=dep_qkv2, last_extra=None if FUSED else last_extra)
    a.stamp_mid(5)
    if not M2G:
        a("s_cmp_ge_u32 s2, 192")
        a("s_cbranch_scc1 L_done")
    if NO_FINAL: a("s_branch L_done")
    def dep_y(a, i):
        L = a.newlabel("y"); Ld = a.newlabel("yd")
        if i == 0:
            a("s_lshl_b32 s76, s54, 5")
            a("s_add_u32 s76, s76, s53")
            a("s_lshl_b32 s76, s76, 8")
            a(f"s_add_u32 s76, s76, {mb(MB_Y)}")
            a("s_mov_b32 s77, 0")
        else:
            a(f"s_cmp_ge_u32 s{72+i}, 5")
            a(f"s_cbranch_scc1 {Ld}")
        a.label(L)
        a("s_buffer_load_dwordx4 s[72:75], s[48:51], s76 glc")
        a("s_add_u32 s77, s77, 1")
        a("s_waitcnt lgkmcnt(0)")
        a(f"s_cmp_ge_u32 s{72+i}, 5")
        a(f"s_cbranch_scc1 {Ld}")
        if i == 0: a(f"s_sleep {SLP_FIN}")
        a(f"s_cmp_lt_u32 s77, {sync.SPIN_MAX}")
        a(f"s_cbranch_scc1 {L}")
        a.label(Ld)
        if i == 2: a.stamp_mid(7)
    def boxes(a):
        a("s_lshr_b32 s66, s53, 2")
        a("s_lshl_b32 s66, s66, 5")
        a("s_lshr_b32 s67, s2, 3")
        a("s_add_u32 s66, s66, s67")
        a("s_lshl_b32 s66, s66, 8")
        a("s_lshl_b32 s67, s52, 2")
        a("s_add_u32 s66, s66, s67")
        a(f"s_add_u32 s66, s66, {mb(MB_O)}")
        a("s_lshl_b32 s67, s54, 5")
        a("s_add_u32 s67, s67, s53")
        a("s_lshl_b32 s67, s67, 8")
        a(f"s_add_u32 s67, s67, {mb(MB_Y)}")
    def dep_yg(a):
        a("s_lshl_b32 s72, s2, 8")
        a(f"s_add_u32 s72, s72, {mb(MB_Y)}")
        sync.spin(a, 48, "s72", 4, 8, sleep=SLP_FIN)
        a.stamp_mid(7)
    if M2G: k_mlp2g.final_body(a, "s2", dep_yg)
    elif FUSED: k_final.final_body(a, "s2", dep_y)
    else: k_final2.final_body(a, "s2", boxes, sync.SPIN_MAX)
    a("s_branch L_done")
    a.label("L_slotB")
    a("s_sub_u32 s3, s2, 256")
    if INIT_LOW == 1:
        a(f"s_cmp_gt_u32 s3, {sync.N_LATE}")
        a("s_cbranch_scc1 L_noinit")
        a("s_mov_b32 s78, s3")
    elif INIT_LOW == 2:
        a("s_cmp_eq_u32 s3, 255")
        a(f"s_cselect_b32 s78, {sync.N_LATE}, s3")
        a(f"s_cmp_eq_u32 s3, {sync.N_LATE}")
        a("s_cselect_b32 s78, 99, s78")
        a(f"s_cmp_gt_u32 s78, {sync.N_LATE}")
        a("s_cbranch_scc1 L_noinit")
    else:
        a(f"s_cmp_lt_u32 s3, {255 - sync.N_LATE}")
        a("s_cbranch_scc1 L_noinit")
        a(f"s_sub_u32 s78, s3, {255 - sync.N_LATE}")
    a("s_setprio 3")
    sync.init_mailboxes(a, "s78")
    a("s_setprio 0")
    a.stamp_mid(0)
    a.label("L_noinit")
    if CODE_PF:
        Lc = a.newlabel("cpf")
        a("s_lshr_b32 s72, s3, 4")
        a("s_cmp_lg_u32 s72, 2")
        a(f"s_cbranch_scc1 {Lc}")
        a("s_getpc_b64 s[80:81]")
        a.label("L_pc")
        a(f"s_sub_u32 s80, s80, L_pc - {name}")
        a("s_subb_u32 s81, s81, 0")
        a(f"s_mov_b32 s82, L_code_end - {name}")
        a("s_mov_b32 s83, 0x00020000")
        a("s_bfe_u32 s72, s3, 0x10003")
        a("s_lshl_b32 s72, s72, 2")
        a("s_add_u32 s72, s72, s52")
        a("s_lshl_b32 s72, s72, 13")
        a("v_lshlrev_b32 v5, 7, v0")
        a("v_add_u32 v5, s72, v5")
        a("buffer_load_dword v58, v5, s[80:83], 0 offen")
        a.label(Lc)
    if WAIT_QKV:
        Lz = a.newlabel("hz")
        a("s_cmp_lg_u32 s52, 0")
        a(f"s_cbranch_scc1 {Lz}")
        a("s_lshl_b32 s72, s3, 8")
        a(f"s_add_u32 s72, s72, {mb(MB_P)}")
        a("v_lshlrev_b32 v5, 4, v0")
        for i in range(4): a(f"v_mov_b32 v{8+i}, 0")
        a("s_mov_b64 exec, 0xff")
        a("buffer_store_dwordx4 v[8:11], v5, s[48:51], s72 offen sc1")
        a("s_mov_b64 exec, -1")
        a.label(Lz)
    if LNB:
        a("s_lshr_b32 s72, s3, 6")
        a("s_cmp_lg_u32 s72, 1")
        a("s_cbranch_scc1 L_nolnb")
        a(f"s_setprio {LNB_PRIO}")
        a("s_sub_u32 s78, s3, 64")
        st = a.stamp; a.stamp = False
        k_front.ln_body(a, "s78", pub_h, gate=False)
        a.stamp = st
        a("s_setprio 0")
        a.label("L_nolnb")
    if XW == 1: k_front.xw_touch(a, "s3")
    if XW == 2: k_front.xw_touch2(a, "s3", XWD)
    if W1HEAD:
        Lh = a.newlabel("w1h")
        a("s_cmp_lt_u32 s3, 192")
        a(f"s_cbranch_scc1 {Lh}")
        a("s_cmp_ge_u32 s53, 30")
        a(f"s_cbranch_scc1 {Lh}")
        a.srd(80, P_W1, S*F*2)
        a("s_mul_i32 s57, s53, 205")
        a("s_lshr_b32 s57, s57, 10")
        a("s_mul_i32 s58, s57, 5")
        a("s_sub_u32 s58, s53, s58")
        a("s_and_b32 s56, s3, 7")
        a("s_mul_i32 s56, s56, 9")
        a("s_lshr_b32 s56, s56, 1")
        a("s_add_u32 s56, s56, s58")
        a("s_lshl_b32 s56, s56, 8")
        a(f"s_mul_i32 s57, s57, {32*F*2}")
        a("s_add_u32 s56, s56, s57")
        a("v_lshrrev_b32 v5, 1, v0")
        a(f"v_mul_u32_u24 v5, {F*2}, v5")
        a("v_and_b32 v6, 1, v0")
        a("v_lshl_add_u32 v5, v6, 7, v5")
        a("buffer_load_dword v62, v5, s[80:83], s56 offen")
        a.label(Lh)
    if COOP:
        Le = a.newlabel("head")
        a(f"s_cmp_ge_u32 s3, {k_mlp1.MLP1_GRID}")
        a(f"s_cbranch_scc1 {Le}")
        a.srd(80, P_W1, S*F*2)
        a("s_and_b32 s66, s3, 7")
        a("s_mul_i32 s66, s66, 27")
        a("s_lshr_b32 s67, s3, 3")
        a("s_add_u32 s67, s67, s66")
        a("s_mul_i32 s70, s67, 171")
        a("s_lshr_b32 s70, s70, 10")
        a("s_mul_i32 s68, s70, 6")
        a("s_sub_u32 s69, s67, s68")
        a("s_lshl_b32 s66, s70, 8")
        a("s_lshl_b32 s68, s52, 4")
        a("s_add_u32 s67, s69, s68")
        a(f"s_mul_i32 s67, s67, {32*F*2}")
        a("s_add_u32 s66, s66, s67")
        a("v_lshrrev_b32 v5, 1, v0")
        a(f"v_mul_u32_u24 v5, {F*2}, v5")
        a("v_and_b32 v6, 1, v0")
        a("v_lshl_add_u32 v5, v6, 7, v5")
        a("buffer_load_dword v62, v5, s[80:83], s66 offen")
        a("s_cmp_ge_u32 s69, 3")
        a(f"s_mov_b32 s67, {3*32*F*2}")
        a(f"s_cselect_b32 s67, {(-3*32*F*2) & 0xffffffff}, s67")
        a("s_add_u32 s67, s67, s66")
        a("s_lshr_b32 s68, 0x80402010, s70")
        a("s_cmp_lt_u32 s70, 32")
        a("s_cselect_b32 s68, s68, 0")
        a("s_and_b32 s68, s68, 1")
        a(f"s_cbranch_scc0 {Le}")
        a("buffer_load_dword v63, v5, s[80:83], s67 offen")
        a.label(Le)
    if TLBW:
        a("s_lshr_b32 s53, s3, 3")
        a("s_lshl_b32 s53, s53, 2")
        a("s_add_u32 s53, s53, s52")
        a("s_lshl_b32 s53, s53, 6")
        a("v_add_u32 v5, s53, v0")
        a(f"v_lshlrev_b32 v5, {TLBW}, v5")
        a.srd(80, P_W1, S*F*2)
        a("buffer_load_dword v62, v5, s[80:83], 0 offen nt")
        a.srd(80, P_W2, S*F*2)
        a("buffer_load_dword v63, v5, s[80:83], 0 offen nt")
        a.srd(80, P_WS, CNT_OFF)
        a("buffer_load_dword v59, v5, s[80:83], 0 offen nt")
    if k_mlp1y.SHED:
        Lp = a.newlabel("pre")
        a("s_cmp_lt_u32 s3, 220")
        a(f"s_cbranch_scc1 {Lp}")
        a("s_sub_u32 s78, 255, s3")
        k_help.preload(a, "s78")
        a.label(Lp)
    a(f"s_setprio {BPRIO}")
    if INIT_LATE:
        a(f"s_cmp_lt_u32 s3, {k_mlp1.MLP1_GRID}")
        a("s_cbranch_scc1 L_mlp1")
    a("s_waitcnt vmcnt(0)")
    sync.poll(a, None, 0, vt=5, init=True)
    a.stamp_mid(5)
    a("s_cmp_lt_u32 s3, 192")
    a("s_cbranch_scc1 L_mlp1")
    if PF_AFTER_H:
        a("s_bfe_u32 s72, s3, 0x20001")
        a("s_lshl_b32 s72, s72, 5")
        a("s_and_b32 s73, s3, 31")
        a("s_add_u32 s72, s72, s73")
        a("s_lshl_b32 s72, s72, 8")
        a(f"s_add_u32 s72, s72, {mb(MB_H)}")
        sync.poll(a, 72, 16, vt=5, sleep=4)
    a.srd(40, P_W1, S*F*2)
    a("s_sub_u32 s67, 255, s3")
    a(f"s_mul_i32 s66, s52, {512*F*2}")
    a("s_lshl_b32 s68, s67, 13")
    a("s_add_u32 s66, s66, s68")
    a("v_lshlrev_b32 v5, 7, v0")
    a("v_add_u32 v5, s66, v5")
    for r in range(PF1):
        a(f"buffer_load_dword v{60+(r&1)}, v5, s[40:43], 0 offen")
        a(f"v_add_u32 v5, {64*8192}, v5")
        if r >= PFD: a(f"s_waitcnt vmcnt({PFD})")
    a(f"s_cmp_ge_u32 s3, {k_mlp1.MLP1_GRID}")
    a("s_cbranch_scc1 L_aux")
    a.label("L_mlp1")
    if B_EXIT: a("s_branch L_done")
    def dep_h(a):
        a("s_lshl_b32 s72, s52, 5")
        a("s_and_b32 s73, s3, 31")
        a("s_add_u32 s72, s72, s73")
        a("s_lshl_b32 s72, s72, 8")
        a(f"s_add_u32 s72, s72, {mb(MB_H)}")
        sync.spin(a, 48, "s72", 16, 5, sleep=SLP_H)
    def dep_h3(a):
        a("s_and_b32 s72, s3, 31")
        a("s_lshl_b32 s72, s72, 8")
        a(f"s_add_u32 s72, s72, {mb(MB_H + 96)}")
        sync.spin(a, 48, "s72", 16, 5, sleep=SLP_H)
    def dep_h_touch(a, part=0):
        if INIT_LATE and part != 2:
            a("s_waitcnt vmcnt(0)")
            sync.poll(a, None, 0, vt=12, init=True)
        if part == 1: return
        if CW[0]: w1_touch(a, CW[0][0], CW[0][1], 250, srd=80)
        dep_h(a)
        a.stamp_mid(5)
        if COOP_H:
            a("s_and_b32 s72, s3, 7")
            a("s_mul_i32 s72, s72, 9")
            a("s_lshr_b32 s72, s72, 1")
            a("s_sub_u32 s72, s66, s72")
            a("s_lshl_b32 s72, s72, 6")
            a("v_add_u32 v60, s72, v0")
            a("v_mul_u32_u24 v61, 2731, v60")
            a("v_lshrrev_b32 v61, 16, v61")
            a("v_mul_u32_u24 v61, 120, v61")
            a("v_add_lshl_u32 v60, v60, v61, 7")
            a(f"buffer_load_dword v61, v60, s[48:51], s{k_mlp1.S_F} offen sc1")
    def hold(a, word=0):
        L = a.newlabel("hold"); Ld = a.newlabel("holdd")
        a("s_cmp_ge_u32 s3, 192")
        a(f"s_cbranch_scc1 {Ld}")
        a("s_lshl_b32 s72, s3, 8")
        a(f"s_add_u32 s72, s72, {mb(MB_P) + 4*word}")
        a("s_and_b32 s73, s3, 63")
        a("s_lshl_b32 s73, s73, 8")
        a(f"s_add_u32 s73, s73, {mb(MB_QKV)}")
        a("s_mov_b32 s74, 0")
        a.label(L)
        a("s_buffer_load_dword s75, s[48:51], s72 glc")
        a("s_add_u32 s74, s74, 1")
        a("s_waitcnt lgkmcnt(0)")
        a("s_cmp_lg_u32 s75, 0")
        a(f"s_cbranch_scc1 {Ld}")
        a("s_sleep 4")
        a("s_and_b32 s75, s74, 15")
        a(f"s_cbranch_scc1 {L}")
        a("s_buffer_load_dword s75, s[48:51], s73 glc")
        a("s_waitcnt lgkmcnt(0)")
        a("s_cmp_ge_u32 s75, 12")
        a(f"s_cbranch_scc1 {Ld}")
        a(f"s_cmp_lt_u32 s74, {sync.SPIN_MAX}")
        a(f"s_cbranch_scc1 {L}")
        a.label(Ld)
    def w2_tail(a):
        a.srd(80, P_W2, S*F*2)
        a("s_lshr_b32 s72, s3, 3")
        a("s_mul_i32 s73, s72, 86")
        a("s_lshr_b32 s73, s73, 8")
        a("s_mul_i32 s76, s73, 3")
        a("s_sub_u32 s72, s72, s76")
        a("s_and_b32 s76, s3, 7")
        a("s_mul_i32 s76, s76, 10")
        a("s_add_u32 s73, s73, s76")
        a("s_lshr_b32 s76, s73, 4")
        a("s_and_b32 s73, s73, 15")
        a(f"s_mul_i32 s76, s76, {928*4096}")
        a("s_lshl_b32 s73, s73, 8")
        a("s_add_u32 s76, s76, s73")
        a("s_lshl_b32 s72, s72, 2")
        a("s_add_u32 s72, s72, s52")
        a(f"s_add_u32 s72, s72, {29 - 12*W2_TAIL}")
        a("s_lshl_b32 s72, s72, 17")
        a("s_add_u32 s76, s76, s72")
        a("v_lshrrev_b32 v60, 1, v0")
        a("v_lshlrev_b32 v60, 12, v60")
        a("v_and_b32 v61, 1, v0")
        a("v_lshl_add_u32 v60, v61, 7, v60")
        a("v_add_u32 v60, s76, v60")
        for e in range(W2_TAIL):
            a(f"buffer_load_dword v{61+e}, v60, s[80:83], 0 offen")
            a(f"v_add_u32 v60, {12*32*4096}, v60")
    def checks(a, wave):
        Lg = a.newlabel("g")
        a(f"s_cmp_lg_u32 s52, {wave}")
        a(f"s_cbranch_scc1 {Lg}")
        sync.spin_init(a, 14, True)
        a("s_bfe_u32 s73, s2, 0x50003")
        a("s_lshl_b32 s73, s73, 8")
        a(f"s_add_u32 s73, s73, {mb(MB_G)}")
        sync.spin(a, 48, "s73", 64, 0)
        a.label(Lg)
    def pub_u(a, part):
        if part == 0 and M2G:
            a("s_mul_i32 s18, s66, 57")
            a("s_lshr_b32 s18, s18, 9")
            a("s_lshl_b32 s18, s18, 2")
            a("s_lshl_b32 s19, s67, 2")
            a("s_lshr_b32 s19, 0x322100, s19")
            a("s_and_b32 s19, s19, 15")
            a("s_add_u32 s18, s18, s19")
            a("s_lshl_b32 s18, s18, 12")
            a(f"s_add_u32 s18, s18, {mb(MB_U)}")
            a("s_lshr_b32 s19, 0x12, s67")
            a("s_and_b32 s19, s19, 1")
            a("s_cselect_b32 s19, -1, 0xffff")
        elif part == 0:
            a("s_mul_i32 s18, s66, 565")
            a("s_lshr_b32 s18, s18, 12")
            a("s_lshr_b32 s19, s67, 1")
            a("s_mul_i32 s19, s19, 5")
            a("s_add_u32 s18, s18, s19")
            a("s_lshl_b32 s18, s18, 12")
            a(f"s_add_u32 s18, s18, {mb(MB_U)}")
            a("s_lshr_b32 s19, 0x204080, s66")
            a("s_cmp_lt_u32 s66, 32")
            a("s_cselect_b32 s19, s19, 0")
            a("s_and_b32 s19, s19, 1")
            a("s_cselect_b32 s19, -1, 0xffff")
        else:
            checks(a, 1)
            sync.publish(a, 18, "s19", vt=14)
    def ebox(a, wait=False):
        a("s_lshl_b32 s65, s59, 8")
        a("s_lshl_b32 s70, s52, 2")
        a("s_add_u32 s65, s65, s70")
        a(f"s_add_u32 s65, s65, {mb(MB_E)}")
        sync.spin_init(a, 14, True)
        if wait: sync.spin(a, 48, "s65", 1, 0, sleep=2)
    def early2(a):
        a("s_barrier")
        (k_mlp2g if M2G else k_mlp2f).mlp2_body(a, "s3", 3, None, None, None, part=1)
        if M2G and GTAIL:
            Lt = a.newlabel("gt")
            a("s_lshr_b32 s70, s3, 3")
            a("s_lshl_b32 s70, s70, 2")
            a("s_add_u32 s70, s70, s52")
            a("s_lshl_b32 s70, s70, 2")
            a(f"s_add_u32 s70, s70, {80*PF2}")
            a("s_cmp_ge_u32 s70, 1152")
            a(f"s_cbranch_scc1 {Lt}")
            a("s_mul_i32 s72, s69, 1152")
            a("s_add_u32 s70, s70, s72")
            a("s_lshl_b32 s70, s70, 12")
            a("s_and_b32 s72, s3, 1")
            a("s_lshl_b32 s72, s72, 11")
            a("s_add_u32 s70, s70, s72")
            a("v_lshrrev_b32 v60, 4, v0")
            a("v_lshlrev_b32 v60, 12, v60")
            a("v_and_b32 v61, 15, v0")
            a("v_lshl_add_u32 v60, v61, 7, v60")
            a("buffer_load_dword v61, v60, s[40:43], s70 offen")
            a.label(Lt)
    (k_mlp1y if M1Y else k_mlp1).mlp1_body(a, "s3", dep_h_touch, pub_u, sm=0, epi=early2, hold=hold if WAIT_QKV else None, hold2=(lambda a: hold(a, 1)) if HINT2 else None, ebox=ebox)
    a.stamp_mid(2)
    a("s_branch L_mlp2")
    a.label("L_aux")
    if B_EXIT: a("s_branch L_done")
    if k_mlp1y.SHED:
        a("s_cmp_ge_u32 s67, 36")
        a("s_cbranch_scc1 L_nohelp")
        a("s_mov_b32 s78, s67")
        k_help.body_all(a, "s78", dep_h3, ebox)
        a.label("L_nohelp")
        a.stamp_mid(6)
        a("s_setprio 0")
        a("s_sub_u32 s67, 255, s3")
    if PFMODE == "col":
        a("s_and_b32 s66, s3, 7")
        a("s_mul_i32 s66, s66, 9")
        a("s_lshr_b32 s66, s66, 1")
        a("s_lshr_b32 s67, s67, 3")
        a("s_add_u32 s66, s66, s67")
        a("s_lshl_b32 s66, s66, 8")
        a(f"s_mul_i32 s69, s52, {(32 if M1Y else 512)*F*2}")
        a("s_add_u32 s66, s66, s69")
        a("v_lshrrev_b32 v5, 1, v0")
        a(f"v_mul_u32_u24 v5, {F*2}, v5")
        a("v_and_b32 v6, 1, v0")
        a("v_lshl_add_u32 v5, v6, 7, v5")
        if PFH:
            dep_h(a)
            a(f"s_mul_i32 s69, s52, {32*18*1024}")
            a("s_lshl_b32 s70, s67, 13")
            a("s_add_u32 s69, s69, s70")
            a(f"s_add_u32 s69, s69, {HT_OFF}")
            a("v_lshlrev_b32 v7, 7, v0")
        g0 = 6 if COOP else 0
        a(f"s_add_u32 s66, s66, {(g0*32 + PFS1*128)*F*2}")
        if PFH and COOP_H: a(f"s_add_u32 s69, s69, {12*18*1024}")
        for n in range(min(PFN1, 16 - g0)):
            a(f"buffer_load_dword v{60+(n&1)}, v5, s[40:43], s66 offen")
            a(f"s_add_u32 s66, s66, {(128 if M1Y else 32)*F*2}")
            if PFH and n < (9 if COOP_H else 14):
                a(f"buffer_load_dword v{62+(n&1)}, v7, s[48:51], s69 offen sc1")
                a(f"s_add_u32 s69, s69, {5*8192}")
            a(f"s_waitcnt vmcnt({PFD})")
        a.stamp_mid(1)
        a.srd(40, P_W2, S*F*2)
        a("s_lshl_b32 s68, s67, 2")
        a("s_add_u32 s68, s68, s52")
        if M2G:
            a("s_bfe_u32 s66, s3, 0x20001")
            a(f"s_mul_i32 s66, s66, {1152*4096}")
            a("s_and_b32 s67, s3, 1")
            a("s_lshl_b32 s67, s67, 11")
            a("s_add_u32 s66, s66, s67")
            a("s_lshl_b32 s67, s68, 14")
            a("s_add_u32 s66, s66, s67")
            a("v_lshrrev_b32 v5, 4, v0")
            a("v_lshlrev_b32 v5, 12, v5")
            a("v_and_b32 v6, 15, v0")
            a("v_lshl_add_u32 v5, v6, 7, v5")
            a("v_add_u32 v5, s66, v5")
            for n in range(PF2):
                a(f"buffer_load_dword v{60+(n&1)}, v5, s[40:43], 0 offen")
                a(f"v_add_u32 v5, {80*4096}, v5")
                a(f"s_waitcnt vmcnt({PFD})")
        else:
            a("s_and_b32 s66, s3, 7")
            a("s_mul_i32 s66, s66, 10")
            a("s_lshr_b32 s69, s68, 1")
            a("s_add_u32 s66, s66, s69")
            a("s_lshr_b32 s67, s66, 4")
            a("s_and_b32 s66, s66, 15")
            a(f"s_mul_i32 s67, s67, {928*4096}")
            a("s_lshl_b32 s66, s66, 8")
            a("s_add_u32 s67, s67, s66")
            a("s_and_b32 s66, s52, 1")
            a("s_lshl_b32 s66, s66, 17")
            a("s_add_u32 s67, s67, s66")
            a("v_lshrrev_b32 v5, 1, v0")
            a("v_lshlrev_b32 v5, 12, v5")
            a("v_and_b32 v6, 1, v0")
            a("v_lshl_add_u32 v5, v6, 7, v5")
            a("v_add_u32 v5, s67, v5")
            for n in range(PF2):
                a(f"buffer_load_dword v{60+(n&1)}, v5, s[40:43], 0 offen")
                a(f"v_add_u32 v5, {64*4096}, v5")
                a(f"s_waitcnt vmcnt({PFD})")
    else:
        for n in range(-(-(576 - 64*PF1)//40) if PFW1 else 0):
            a(f"buffer_load_dword v{60+(n&1)}, v5, s[40:43], 0 offen")
            a(f"v_add_u32 v5, {40*8192}, v5")
            a(f"s_waitcnt vmcnt({PFD})")
        a.stamp_mid(1)
        a.srd(40, P_W2, S*F*2)
        a("s_lshl_b32 s68, s67, 2")
        a("s_add_u32 s68, s68, s52")
        a("s_lshr_b32 s66, s68, 5")
        a("s_and_b32 s68, s68, 31")
        a(f"s_mul_i32 s66, s66, {928*4096}")
        a("s_lshl_b32 s68, s68, 13")
        a("s_add_u32 s66, s66, s68")
        a("v_lshlrev_b32 v5, 7, v0")
        a("v_add_u32 v5, s66, v5")
        for n in range(PF2):
            a(f"buffer_load_dword v{60+(n&1)}, v5, s[40:43], 0 offen")
            a(f"v_add_u32 v5, {32*8192}, v5")
            a(f"s_waitcnt vmcnt({PFD})")
    a("s_waitcnt vmcnt(0)")
    a.stamp_mid(2)
    a("s_and_b32 s70, s3, 1")
    a(f"s_mul_i32 s70, s70, {(-16*k_mlp2f.SKEW) & 0xffffffff}")
    a(f"s_add_u32 s70, s70, {240 + 8*k_mlp2f.SKEW}")
    a(f"s_cmp_ge_u32 s3, {'256' if M2G else 's70'}")
    a("s_cbranch_scc1 L_aux0" if PF3 else "s_cbranch_scc1 L_done")
    (k_mlp2g if M2G else k_mlp2f).mlp2_body(a, "s3", 3, None, None, None, part=1)
    checks(a, 0)
    a("s_barrier")
    a.label("L_mlp2")
    if k_mlp1y.PST: a("s_branch L_done")
    def dep_u(a):
        if M2G:
            a("s_lshl_b32 s73, s69, 2")
            a("s_add_u32 s73, s73, s67")
            a("s_lshl_b32 s73, s73, 4")
            a("s_add_u32 s73, s73, s66")
            a("s_lshl_b32 s73, s73, 8")
            a(f"s_add_u32 s73, s73, {mb(MB_U)}")
            return sync.spin(a, 48, "s73", 18, 8, sleep=1)
        a("s_mul_i32 s73, s67, 5")
        a("s_add_u32 s73, s73, s69")
        a("s_lshl_b32 s73, s73, 4")
        a("s_add_u32 s73, s73, s66")
        a("s_lshl_b32 s73, s73, 8")
        a(f"s_add_u32 s73, s73, {mb(MB_U)}")
        a("s_cmp_eq_u32 s69, 4")
        a("s_cselect_b32 s76, 14, 16")
        (sync.spin(a, 48, "s73", "s76", 8, sleep=1) if UPOLL_ALL else sync.poll(a, 73, "s76", vt=8, sleep=2))
        if COOP_U:
            a("s_lshr_b32 s70, s3, 3")
            a("s_mul_i32 s70, s70, 86")
            a("s_lshr_b32 s70, s70, 8")
            a("s_mul_i32 s73, s52, 10")
            a("s_add_u32 s70, s70, s73")
            a("s_lshl_b32 s70, s70, 6")
            a("s_add_u32 s70, s70, 288")
            a("v_add_u32 v60, s70, v0")
            a("v_min_u32 v60, 2783, v60")
            a("v_mul_u32_u24 v61, 5462, v60")
            a("v_lshrrev_b32 v61, 18, v61")
            a("v_mul_u32_u24 v61, 96, v61")
            a("v_add_lshl_u32 v60, v60, v61, 7")
            a(f"s_mul_i32 s70, s69, {58*18*1024}")
            a("s_mul_i32 s73, s67, 6144")
            a("s_add_u32 s70, s70, s73")
            a(f"s_add_u32 s70, s70, {U_OFF}")
            a("s_mov_b32 s77, s70")
    def ybox(a):
        if M2G:
            a("s_lshl_b32 s76, s67, 6")
            a("s_add_u32 s76, s76, s65")
            a("s_lshl_b32 s76, s76, 8")
            a(f"s_add_u32 s76, s76, {mb(MB_Y)}")
            return
        a("s_lshl_b32 s76, s67, 1")
        a("s_add_u32 s76, s76, s71")
        a("s_lshl_b32 s76, s76, 5")
        a("s_lshl_b32 s70, s66, 1")
        a("s_add_u32 s76, s76, s70")
        a("s_add_u32 s76, s76, s72")
        a("s_lshl_b32 s76, s76, 8")
        a(f"s_add_u32 s76, s76, {mb(MB_Y)}")
    def dep_o(a, block):
        if block == "addr" and M2G:
            a("s_lshr_b32 s59, s66, 1")
            a("s_lshl_b32 s59, s59, 2")
            a("s_add_u32 s59, s59, s69")
            a("s_lshl_b32 s59, s59, 2")
            a("s_add_u32 s59, s59, s67")
            a("s_lshl_b32 s59, s59, 1")
            a("s_and_b32 s70, s66, 1")
            a("s_add_u32 s59, s59, s70")
            a("s_lshl_b32 s59, s59, 8")
            a(f"s_add_u32 s59, s59, {mb(MB_O)}")
            a("s_mov_b32 s64, 8")
        elif block == "addr":
            a("s_lshr_b32 s59, s66, 1")
            a("s_mul_i32 s59, s59, 5")
            a("s_add_u32 s59, s59, s69")
            a("s_mul_i32 s59, s59, 6")
            a("s_lshl_b32 s70, s67, 1")
            a("s_add_u32 s59, s59, s70")
            a("s_and_b32 s70, s66, 1")
            a("s_add_u32 s59, s59, s70")
            a("s_lshl_b32 s59, s59, 8")
            a(f"s_add_u32 s59, s59, {mb(MB_O)}")
            a("s_lshl_b32 s64, s53, 1")
        else:
            sync.spin(a, 48, "s59", "s64", 8, sleep=1)
            a.stamp_mid(6)
    if M2G: k_mlp2g.mlp2_body(a, "s3", 3, dep_u, dep_o, ybox, part=2)
    elif FUSED: k_mlp2f.mlp2_body(a, "s3", 3, dep_u, dep_o, ybox, part=2, post=(lambda a: a("buffer_load_dword v61, v60, s[48:51], s77 offen sc1")) if COOP_U else None)
    else: k_mlp2.mlp2_body(a, "s3", 3, dep_u, ybox)
    if PF3:
        a("s_branch L_done")
        a.label("L_aux0")
        a("v_lshrrev_b32 v5, 1, v0")
        a("v_lshlrev_b32 v5, 12, v5")
        a("v_and_b32 v6, 1, v0")
        a("v_lshl_add_u32 v5, v6, 7, v5")
        a("s_and_b32 s66, s3, 7")
        a("s_mul_i32 s66, s66, 10")
        for r in range(PF3):
            a(f"s_add_u32 s69, s68, {8*r}")
            a("s_mul_i32 s70, s69, 205")
            a("s_lshr_b32 s70, s70, 11")
            a("s_mul_i32 s71, s70, 10")
            a("s_sub_u32 s69, s69, s71")
            a("s_add_u32 s69, s69, s66")
            a("s_lshr_b32 s71, s69, 4")
            a("s_and_b32 s69, s69, 15")
            a("s_mul_i32 s71, s71, 29")
            a("s_add_u32 s70, s70, s71")
            a(f"s_add_u32 s70, s70, {2*PF2}")
            a("s_lshl_b32 s70, s70, 17")
            a("s_lshl_b32 s69, s69, 8")
            a("s_add_u32 s69, s69, s70")
            a("v_add_u32 v7, s69, v5")
            a(f"buffer_load_dword v{60+(r&1)}, v7, s[40:43], 0 offen")
            a("s_waitcnt vmcnt(1)")
    a.label("L_done")
    if DIAG is not None:
        wg, slot, kind = DIAG
        Ld = a.newlabel("diag"); Lw = a.newlabel("diagw")
        a(f"s_cmp_lg_u32 s2, {wg}")
        a(f"s_cbranch_scc1 {Ld}")
        a("s_waitcnt vmcnt(0)")
        if slot == "end":
            a.stamp_mid(0); slot = 0
        if slot is None:
            a("s_mov_b32 s70, 0")
        elif kind == "t":
            a(f"s_sub_u32 s70, s{4+slot}, s88")
            a("s_mul_i32 s70, s70, 10")
        else:
            a(f"s_lshr_b32 s70, s{93+slot}, 1")
        a("s_add_u32 s70, s70, 20000")
        a.label(Lw)
        a("s_sleep 1")
        a("s_memrealtime s[90:91]")
        a("s_waitcnt lgkmcnt(0)")
        a("s_sub_u32 s71, s90, s88")
        a("s_cmp_lt_u32 s71, s70")
        a(f"s_cbranch_scc1 {Lw}")
        a.label(Ld)
    a.end()
    a.label("L_end")
    a("s_endpgm")
    a.label("L_code_end")

def build(stamp=False):
    a = Asm()
    a.stamp = stamp
    fin = NAME + "_kernel"
    out = HEADER
    out += (f"; @launch kernel={fin} grid=(512,1,1) block=(256,1,1) lds=81920\n" if LIST else "; @launch grid=(512,1,1) block=(256,1,1) lds=81920\n")
    out += DOC
    out += '.amdgcn_target "amdgcn-amd-amdhsa--gfx950"\n.text\n'
    gen_main(a, fin)
    if PRE:
        out = out.replace("; @launch kernel=", "; @launch kernel=pre_kernel grid=(256,1,1) block=(256,1,1) lds=0\n; @launch kernel=", 1)
        st = a.stamp; a.stamp = False
        a.kernel_begin("pre_kernel")
        if PRE > 1:
            a("s_cmp_ge_u32 s2, 256")
            a("s_cbranch_scc1 L_pre_end")
            a.load_kernargs()
            sync.wave_setup(a)
            k_front.xw_touch(a, "s2")
            a("s_getpc_b64 s[80:81]")
            a.label("L_pc2")
            a(f"s_sub_u32 s80, s80, L_pc2 - {fin}")
            a("s_subb_u32 s81, s81, 0")
            a(f"s_mov_b32 s82, L_code_end - {fin}")
            a("s_mov_b32 s83, 0x00020000")
            a("s_lshr_b32 s72, s2, 3")
            a("s_lshl_b32 s72, s72, 2")
            a("s_add_u32 s72, s72, s52")
            a("s_lshl_b32 s72, s72, 13")
            a("v_lshlrev_b32 v5, 7, v0")
            a("v_add_u32 v5, s72, v5")
            a("buffer_load_dword v58, v5, s[80:83], 0 offen")
            a("s_waitcnt vmcnt(0)")
            a.label("L_pre_end")
        a("s_endpgm")
        a.stamp = st
    out += a.text()
    out += '.section .rodata,"a"\n'
    if PRE: out += ".p2align 6\n" + descriptor("pre_kernel", 64, None)
    out += ".p2align 6\n" + descriptor(fin, 256, None)
    return out

if __name__ == "__main__":
    open("main.s", "w").write(build())
    open("stamp.s", "w").write(build(True))
    open("main_l.s", "w").write(build("lite"))
    LIST = False
    open("final.s", "w").write(build())
    LIST = True
    VARS = eval(open("vars.txt").read())
    import copy
    for nm, kv in VARS.items():
        saved = {}
        for k, v in kv.items():
            mod, name = (globals()[k.split(".")[0]].__dict__, k.split(".")[1]) if "." in k else (globals(), k)
            saved[k] = (mod, name, mod[name]); mod[name] = v
        open(f"gen/{nm}.s", "w").write(build(False))
        open(f"gen/{nm}_s.s", "w").write(build(True))
        open(f"gen/{nm}_l.s", "w").write(build("lite"))
        for mod, name, v in saved.values(): mod[name] = v
    print("wrote")
```

```python
from common import *
import math

MLP1_GRID = 216
for t in range(216):
    assert (t*171) >> 10 == t//6

VF = [1, 2]; VT = [3, 4]
VDT, VDT2, VDF = 5, 6, 7
SET = [16, 48]
ACC = 80
BIAS = 128
S_T, S_F, S_CNT = 54, 55, 58
STAGE = 14336
NB = 5
STRIDE = F*2
YIELD = 1
EPIST = False
RELAX = 6
GETP = 7
EPRIO = 2
EARLY2 = True
H2AT = 0
PST = False
HOLD_FIRST = 2

SHED = 0
HYIELD = 3
def mlp1_body(a, wgreg, dep, pub, sm=0, epi=None, hold=None, hold2=None, helper=False, ebox=None):
    NST = 6*SHED if helper else 64 - SHED
    YIELD = HYIELD if helper else globals()["YIELD"]
    a.srd(40, P_W1, S*F*2)
    a.srd(44, P_B1, F*2)
    if helper:
        a(f"s_mov_b32 s66, {wgreg}")
        a("s_mov_b32 s67, 0")
    else:
        a(f"s_and_b32 s66, {wgreg}, 7")
        a("s_mul_i32 s66, s66, 27")
        a(f"s_lshr_b32 s67, {wgreg}, 3")
        a("s_add_u32 s67, s67, s66")
        a("s_mul_i32 s66, s67, 171")
        a("s_lshr_b32 s66, s66, 10")
        a("s_mul_i32 s68, s66, 6")
        a("s_sub_u32 s67, s67, s68")
        a("s_add_u32 s59, s67, s68")
    a(f"s_mul_i32 s{S_T}, s52, {8*STRIDE}")
    a("s_lshl_b32 s70, s66, 8")
    a(f"s_add_u32 s{S_T}, s{S_T}, s70")
    a("s_lshr_b32 s70, s52, 1")
    a(f"s_mul_i32 s{S_F}, s70, {18*1024}")
    a("s_and_b32 s70, s52, 1")
    a("s_mul_i32 s70, s70, 1536")
    a(f"s_add_u32 s{S_F}, s{S_F}, s70")
    a("s_mul_i32 s70, s67, 3072")
    a(f"s_add_u32 s{S_F}, s{S_F}, s70")
    a(f"s_add_u32 s{S_F}, s{S_F}, {HT_OFF + ((64-SHED)*2*18*1024 if helper else 0)}")
    if helper: a(f"s_add_u32 s{S_T}, s{S_T}, {(64-SHED)*32*STRIDE}")
    a("s_lshl_b32 s60, s52, 11")
    a("s_mul_i32 s61, s52, 1536")
    a("s_add_u32 s61, s61, 8192")
    a(f"s_mov_b32 s62, {32*STRIDE}")
    a(f"s_mov_b32 s63, {2*18*1024}")
    a("v_lshrrev_b32 v8, 4, v0")
    a("v_and_b32 v9, 3, v0")
    a("v_lshlrev_b32 v9, 4, v9")
    a("v_lshl_add_u32 v8, v8, 6, v9")
    a("v_bfe_u32 v9, v0, 2, 2")
    a(f"v_mul_u32_u24 v10, {STRIDE}, v9")
    a(f"v_add_u32 v{VDT}, v10, v8")
    a(f"v_add_u32 v{VDT2}, {4*STRIDE}, v{VDT}")
    a(f"v_lshlrev_b32 v{VDF}, 4, v0")
    def m0t(buf, i): a(f"s_add_u32 m0, s60, {buf*STAGE + i*1024}")
    def m0f(buf): a(f"s_add_u32 m0, s61, {buf*STAGE}")
    def ldt(i):
        a(f"buffer_load_dwordx4 v{VDT2 if i else VDT}, s[40:43], s{S_T} offen lds")
        if i: a(f"s_add_u32 s{S_T}, s{S_T}, s62")
    def ldf(i):
        if i: a("s_mov_b32 exec_hi, 0")
        a(f"buffer_load_dwordx4 v{VDF}, s[48:51], s{S_F} offen offset:{i*1024} sc1 lds")
        if i:
            a("s_mov_b32 exec_hi, -1")
            a(f"s_add_u32 s{S_F}, s{S_F}, s63")
    a("s_lshl_b32 s69, s66, 2")
    a("s_add_u32 s69, s69, s52")
    a("s_lshl_b32 s71, s69, 6")
    a("v_lshrrev_b32 v10, 5, v0")
    a("v_lshlrev_b32 v11, 3, v10")
    for jj in range(0 if helper else 4):
        a(f"buffer_load_dwordx2 {vr(BIAS+16+2*jj,2)}, v11, s[44:47], s71 offen offset:{jj*16}")
    if hold and HOLD_FIRST == 1:
        dep(a); hold(a)
    if hold and HOLD_FIRST == 2:
        dep(a, 1); hold(a)
    for st in range(NB):
        for i in range(2):
            m0t(st, i); a("s_nop 0"); ldt(i)
    a("v_lshlrev_b32 v8, 11, v10")
    a("v_lshl_add_u32 v8, v9, 6, v8")
    a("v_bfe_u32 v9, v0, 4, 1")
    a("v_lshl_add_u32 v8, v9, 5, v8")
    a("v_and_b32 v9, 3, v0")
    a("v_lshl_add_u32 v8, v9, 3, v8")
    a("s_lshl_b32 s70, s52, 8")
    a(f"v_add_u32 v{VT[0]}, s70, v8")
    a(f"v_add_u32 v{VT[1]}, {3*STAGE}, v{VT[0]}")
    a(f"v_add_u32 v{VF[0]}, 0x2000, v{VDF}")
    a(f"v_add_u32 v{VF[1]}, {3*STAGE}, v{VF[0]}")
    if not (hold and HOLD_FIRST): dep(a)
    if hold and HOLD_FIRST == 2: dep(a, 2)
    a("s_barrier")
    for st in range(NB):
        m0f(st); a("s_nop 0")
        ldf(0); ldf(1)
    def reads(c):
        buf = c % NB; hi = 1 if buf >= 3 else 0; o = (buf - 3*hi)*STAGE
        L = []
        for step in range(2):
            b = SET[c & 1] + 16*step
            for sec in range(2):
                L.append(f"ds_read_b64_tr_b16 {vr(b+2*sec,2)}, v{VT[hi]} offset:{o + step*4096 + sec*1024}")
            for i in range(3):
                L.append(f"ds_read_b128 {vr(b+4+4*i,4)}, v{VF[hi]} offset:{o + step*3072 + i*1024}")
        return L
    def mfma(c, k):
        step, i = divmod(k, 3)
        b = SET[c & 1] + 16*step
        if YIELD > 1:
            if k % YIELD == 0: a("s_setprio 0")
            if k % YIELD == 1: a("s_setprio 2")
        elif YIELD < 0:
            if k % -YIELD == 0: a("s_setprio 0")
            if k % -YIELD == -YIELD - 1: a("s_setprio 2")
        d = vr(ACC + 16*i, 16)
        if helper: cin = "0" if (c % SHED == 0 and step == 0) else d
        else: cin = vr(BIAS, 16) if (c == 0 and step == 0) else d
        a(f"v_mfma_f32_32x32x16_bf16 {d}, {vr(b,4)}, {vr(b+4+4*i,4)}, {cin}")
    def body(c, vm, head=None, fill=()):
        fill = list(fill)
        buf = c % NB
        ld = c + NB < NST
        r = reads(c+1) if c + 1 < NST else []
        if c + 1 < NST:
            a(f"s_waitcnt vmcnt({vm}) lgkmcnt(0)")
            a("s_barrier")
        else:
            a("s_waitcnt lgkmcnt(0)")
        if head: head()
        mfma(c, 0)
        if ld: m0t(buf, 0)
        for x in r[0:3]: a(x)
        if ld: ldt(0)
        mfma(c, 1)
        if ld: m0t(buf, 1)
        for x in r[3:6]: a(x)
        mfma(c, 2)
        if ld: ldt(1)
        for x in r[6:8]: a(x)
        mfma(c, 3)
        if ld: m0f(buf)
        for x in r[8:10]: a(x)
        if ld: ldf(0)
        mfma(c, 4)
        if ld: ldf(1)
        if helper and ld and (c + NB) % SHED == SHED - 1:
            a(f"s_sub_u32 s{S_T}, s{S_T}, {SHED*32*STRIDE}")
            a(f"s_sub_u32 s{S_F}, s{S_F}, {SHED*2*18*1024 - 3072}")
        for x in fill: a(x)
        mfma(c, 5)
    def vm_of(c):
        order = [("T", s_) for s_ in range(NB) for _ in range(2)] + [("F", s_) for s_ in range(NB) for _ in range(2)]
        for b in range(c):
            if b + NB < NST: order += [("X", b + NB)]*4
        last = max(n for n, o in enumerate(order) if o[1] == c + 1)
        return len(order) - 1 - last
    a(f"s_waitcnt vmcnt({2*(NB-1)})")
    a("s_barrier")
    for x in reads(0): a(x)
    if helper:
        assert SHED == 10
        a(f"s_mul_i32 s64, s66, {6*24576}")
        a("s_mul_i32 s65, s52, 6144")
        a("s_add_u32 s64, s64, s65")
        a(f"s_add_u32 s64, s64, {PP_OFF}")
        a("s_mul_i32 s59, s66, 6")
        ebox(a)
        a("v_mov_b32 v12, 0")
        a("v_mov_b32 v13, 1")
        a("s_waitcnt vmcnt(0)")
        def flush():
            a("s_nop 9")
            for i in range(3):
                b = ACC + 16*i
                for e in range(8): a(f"v_cvt_pk_bf16_f32 v{BIAS+8*i+e}, v{b+2*e}, v{b+2*e+1}")
            a("s_add_u32 s70, s64, 4096")
            for i in range(3):
                for hf in range(2):
                    n = 2*i + hf
                    a(f"buffer_store_dwordx4 {vr(BIAS+4*n,4)}, v{VDF}, s[48:51], s{64 if n < 4 else 70} offen offset:{(n%4)*1024} sc1")
            a("s_add_u32 s64, s64, 24576")
        def signal():
            a("s_mov_b64 exec, 1")
            a("buffer_atomic_add v13, v12, s[48:51], s65 offen sc1")
            a("s_mov_b64 exec, -1")
            a("s_add_u32 s65, s65, 256")
        a.stamp_mid(0)
        for c in range(10): body(c, 12)
        a.stamp_mid(6)
        flush()
        a(f"s_mov_b32 s{S_CNT}, 4")
        a.raw(".p2align 6")
        a.label("L_help_loop")
        for c in range(10, 20): body(c, 12 + (RELAX if c < 14 else 0))
        signal()
        flush()
        a(f"s_sub_u32 s{S_CNT}, s{S_CNT}, 1")
        a(f"s_cmp_lg_u32 s{S_CNT}, 0")
        a("s_cbranch_scc1 L_help_loop")
        for c in range(50, 60): body(c, (vm_of(c) + (RELAX if c < 54 else 0)) if c + 1 < NST else 0)
        signal()
        flush()
        a("s_waitcnt vmcnt(0)")
        signal()
        a("s_barrier")
        return
    for p in range(8):
        a(f"v_lshlrev_b32 v{BIAS+2*p}, 16, v{BIAS+16+p}")
        a(f"v_and_b32 v{BIAS+2*p+1}, 0xffff0000, v{BIAS+16+p}")
    a.stamp_mid(6)
    if hold and not HOLD_FIRST: hold(a)
    a("s_setprio 0")
    a.stamp_mid(sm)
    P0 = 4
    if hold2 and H2AT == 0: hold2(a)
    for c in range(P0): body(c, vm_of(c))
    if PST: a.stamp_mid(3)
    nl = (NST - NB - P0)//10
    for c in range(P0, P0 + 10*nl): assert vm_of(c) == 12
    a(f"s_mov_b32 s{S_CNT}, {nl}")
    a.raw(".p2align 6")
    a.label("L_mlp1_loop")
    for c in range(P0, P0 + 10):
        body(c, 12)
        if PST and a.stamp is True and c in (P0 + 4, P0 + 9):
            for cnt, slot in (((5, 4), (4, 6)) if c == P0 + 4 else ((5, 5), (4, 7))):
                Ls = a.newlabel("st")
                a(f"s_cmp_lg_u32 s{S_CNT}, {cnt}")
                a(f"s_cbranch_scc1 {Ls}")
                a.stamp_mid(slot)
                a.label(Ls)
    a(f"s_sub_u32 s{S_CNT}, s{S_CNT}, 1")
    a(f"s_cmp_lg_u32 s{S_CNT}, 0")
    a("s_cbranch_scc1 L_mlp1_loop")
    PK = 200; PF_ = 152
    def getp():
        ebox(a, True)
        a("s_mul_i32 s64, s59, 24576")
        a("s_mul_i32 s70, s52, 6144")
        a("s_add_u32 s64, s64, s70")
        a(f"s_add_u32 s64, s64, {PP_OFF}")
        a("s_add_u32 s70, s64, 4096")
        for n in range(6):
            a(f"buffer_load_dwordx4 {vr(PK+4*n,4)}, v{VDF}, s[48:51], s{64 if n < 4 else 70} offen offset:{(n%4)*1024} sc1")
    unp = []
    for p in range(24):
        unp += [f"v_lshlrev_b32 v{PF_+2*p}, 16, v{PK+p}", f"v_and_b32 v{PF_+2*p+1}, 0xffff0000, v{PK+p}"]
    for c in range(P0 + 10*nl, NST):
        f = ()
        if SHED and c >= NST - 2: f = unp[24*(c-NST+2):24*(c-NST+3)]
        body(c, vm_of(c) if c + 1 < NST else 0, head=getp if (SHED and c == NST - GETP) else None, fill=f)
    a(f"s_setprio {EPRIO}")
    a.stamp_mid(sm+1)
    c0 = -2.0*math.sqrt(2.0/math.pi)*math.log2(math.e)
    a(f"v_mov_b32 v12, {f32bits(c0*0.044715)}")
    a(f"v_mov_b32 v13, {f32bits(c0)}")
    a(f"s_mul_i32 s16, s69, {2*18*1024}")
    a(f"s_mul_i32 s17, s67, 3072")
    a(f"s_add_u32 s16, s16, s17")
    a(f"s_add_u32 s16, s16, {U_OFF}")
    a(f"s_add_u32 s17, s16, {18*1024}")
    if EARLY2:
        pub(a, 0)
        if epi: epi(a)
    a("s_nop 3")
    T1 = 16
    for i in range(3):
        b = ACC + 16*i
        if SHED:
            for e in range(16): a(f"v_add_f32 v{b+e}, v{b+e}, v{PF_+16*i+e}")
        for e in range(16): a(f"v_mul_f32 v{T1+e}, v{b+e}, v{b+e}")
        for e in range(16): a(f"v_fma_f32 v{T1+e}, v{T1+e}, v12, v13")
        for e in range(16): a(f"v_mul_f32 v{T1+e}, v{T1+e}, v{b+e}")
        for e in range(16): a(f"v_exp_f32 v{T1+e}, v{T1+e}")
        for e in range(16): a(f"v_add_f32 v{T1+e}, 1.0, v{T1+e}")
        for e in range(16): a(f"v_rcp_f32 v{T1+e}, v{T1+e}")
        for e in range(16): a(f"v_mul_f32 v{b+e}, v{b+e}, v{T1+e}")
        for e in range(8):  a(f"v_cvt_pk_bf16_f32 v{b+e}, v{b+2*e}, v{b+2*e+1}")
        a(f"buffer_store_dwordx4 {vr(b,4)}, v{VDF}, s[48:51], s16 offen offset:{i*1024} sc1")
        a(f"buffer_store_dwordx4 {vr(b+4,4)}, v{VDF}, s[48:51], s17 offen offset:{i*1024} sc1")
    if not EARLY2:
        pub(a, 0)
        if epi: epi(a)
    pub(a, 1)
```

```python
import gen, re, k_mlp1y
k_mlp1y.PST = True; gen.NO_FINAL = True
base = gen.build(True)
open("s_base.s", "w").write(base)
out = []; inq = False
for l in base.split("\n"):
    if re.match(r"L_qkv_\d+:", l): inq = True
    if l.startswith("L_qkv_done:"): inq = False
    out.append("    s_nop 0" if (inq and "buffer_store" in l and "s76" not in l) else l)
open("s_nost.s", "w").write("\n".join(out))
gen.A_EXIT = True
b2 = gen.build(True)
open("s_aex.s", "w").write(b2)
out = []; inq = False
for l in b2.split("\n"):
    if re.match(r"L_qkv_\d+:", l): inq = True
    if l.startswith("L_qkv_done:"): inq = False
    out.append("    s_nop 0" if (inq and "buffer_store" in l and "s76" not in l) else l)
open("s_aexns.s", "w").write("\n".join(out))
```
